```python
import torch

def _softmax(x, axis=-1):
    return torch.softmax(x, dim=axis)

def _gelu(x):
    return torch.nn.functional.gelu(x, approximate='tanh')

def _silu(x):
    return torch.nn.functional.silu(x)

def _sigmoid(x):
    return torch.sigmoid(x)

def _layernorm(x, axis=-1, eps=1e-05):
    m = x.mean(dim=axis, keepdim=True)
    v = x.var(dim=axis, keepdim=True, unbiased=False)
    return (x - m) / torch.sqrt(v + eps)

def _scatter_add(tgt, idx, src, axis=0):
    return tgt.clone().index_add_(axis, idx, src)

def _segment_sum(src, seg, n):
    out = torch.zeros((n,) + src.shape[1:], dtype=src.dtype)
    return out.index_add_(0, seg, src)

def _pad(x, pw):
    flat = tuple((v for pair in reversed(pw) for v in pair))
    return torch.nn.functional.pad(x, flat)
kernel_name = 'adaLN_cond__gqa_block_cached__moe_arch_mod__prompt'

def setup_inputs():

    _w = lambda a: (lambda t: t.to(torch.bfloat16) if t.is_floating_point() else t)(torch.as_tensor(a))

    def _A_setup():
        B, Sq, D = (1, 2048, 448)
        Hq, Hkv, Sk, Dh = (16, 8, 2048, 256)
        assert Hq % Hkv == 0, (Hq, Hkv)
        return {'x': _w((lambda *s: torch.randn(*s, dtype=torch.bfloat16) * 0.1)(B, Sq, D)), 'k_cache': _w((lambda *s: torch.randn(*s, dtype=torch.bfloat16) * 0.8)(B, Hkv, Sk, Dh)), 'v_cache': _w((lambda *s: torch.randn(*s, dtype=torch.bfloat16) * 1.6)(B, Hkv, Sk, Dh)), 'wq': _w((lambda *s: torch.randn(*s, dtype=torch.bfloat16) * 0.8)(D, Hq * Dh) * D ** (-0.5)), 'wo': _w((lambda *s: torch.randn(*s, dtype=torch.bfloat16) * 1.6)(Hq * Dh, D) * (Hq * Dh) ** (-0.5))}
    _A_in = _A_setup()

    def _B_setup():
        B, S, D, F, C = (1, 2048, 448, 1792, 8)
        return {'x': _w((lambda *s: torch.randn(*s, dtype=torch.bfloat16) * 0.1)(B, S, D)), 'w_r': _w((lambda *s: torch.randn(*s, dtype=torch.bfloat16) * 0.2)(D)), 'w_gate': _w((lambda *s: torch.randn(*s, dtype=torch.bfloat16) * 0.2)(D, F)), 'w_up': _w((lambda *s: torch.randn(*s, dtype=torch.bfloat16) * 0.2)(D, F)), 'w_down': _w((lambda *s: torch.randn(*s, dtype=torch.bfloat16) * 0.2)(F, D))}
    _B_in = _B_setup()
    return {'A_x': _A_in['x'], 'A_k_cache': _A_in['k_cache'], 'A_v_cache': _A_in['v_cache'], 'A_wq': _A_in['wq'], 'A_wo': _A_in['wo'], 'B_x': _B_in['x'], 'B_w_r': _B_in['w_r'], 'B_w_gate': _B_in['w_gate'], 'B_w_up': _B_in['w_up'], 'B_w_down': _B_in['w_down'], 'c': _w((lambda *s: torch.randn(*s, dtype=torch.bfloat16) * 0.2)(1, 448) * 8.0), 'w_mod': _w((lambda *s: torch.randn(*s, dtype=torch.bfloat16) * 0.2)(448, 6 * 448) * 448 ** (-0.5) * 8.0)}

def reference(A_x, A_k_cache, A_v_cache, A_wq, A_wo, B_x, B_w_r, B_w_gate, B_w_up, B_w_down, c, w_mod):

    def _A_ref(x, k_cache, v_cache, wq, wo):
        B, Sq, D = x.shape
        Hq, Dh = (16, 256)
        Hkv = k_cache.shape[1]
        rep = Hq // Hkv
        q = (lambda x, *d: x.permute(*d))((x @ wq).reshape(B, Sq, Hq, Dh), 0, 2, 1, 3)
        k = (lambda x, n, axis: torch.repeat_interleave(x, n, dim=axis))(k_cache, rep, axis=1)
        v = (lambda x, n, axis: torch.repeat_interleave(x, n, dim=axis))(v_cache, rep, axis=1)
        scores = torch.einsum('bhqd,bhkd->bhqk', q, k) * Dh ** (-0.5)
        p = _softmax(scores, axis=-1)
        o = torch.einsum('bhqk,bhkd->bhqd', p, v)
        return (lambda x, *d: x.permute(*d))(o, 0, 2, 1, 3).reshape(B, Sq, Hq * Dh) @ wo

    def _B_ref(x, w_r, w_gate, w_up, w_down):
        B, S, D = x.shape
        C = 8
        r = x @ w_r
        idx = torch.argsort(-r, axis=-1)[:, :C]
        idx_e = (lambda x, n, axis: torch.repeat_interleave(x, n, dim=axis))(idx.reshape(B, C, 1), D, axis=2)
        x_sel = (lambda x, i, axis: torch.take_along_dim(x, i, dim=axis))(x, idx_e, axis=1)
        g = _silu(x_sel @ w_gate)
        u = x_sel @ w_up
        y = g * u @ w_down
        r_sel = _sigmoid((lambda x, i, axis: torch.take_along_dim(x, i, dim=axis))(r, idx, axis=1))
        y = y * r_sel.reshape(B, C, 1)
        b_off = (torch.arange(B) * S).reshape(B, 1)
        flat_idx = (idx + b_off).reshape(B * C)
        zero = (x * 0.0).reshape(B * S, D)
        upd = _scatter_add(zero, flat_idx, y.reshape(B * C, D), axis=0)
        return x + upd.reshape(B, S, D)
    x = A_x
    mod = (_silu(c) @ w_mod).reshape(c.shape[0], 6, 1, -1)
    sa, ca, ga, sb, cb, gb = (mod[:, 0].clone(), mod[:, 1].clone(), mod[:, 2].clone(), mod[:, 3].clone(), mod[:, 4].clone(), mod[:, 5].clone())
    h = _layernorm(x, axis=-1) * (1 + ca) + sa
    x = x + ga * _A_ref(h, A_k_cache, A_v_cache, A_wq, A_wo)
    h = _layernorm(x, axis=-1) * (1 + cb) + sb
    x = x + gb * _B_ref(h, B_w_r, B_w_gate, B_w_up, B_w_down)
    return x
```

```python
import re

REG_RE = re.compile(r'^(-|\|)?([vas])(\d+)\|?$')
RNG_RE = re.compile(r'^(-)?([vas])\[(\d+):(\d+)\]$')

def regs_of(tok):
    tok = tok.strip()
    if tok.startswith('abs(') or tok.startswith('-abs('):
        tok = tok[tok.index('(')+1:-1]
    m = RNG_RE.match(tok)
    if m:
        return [(m.group(2), i) for i in range(int(m.group(3)), int(m.group(4)) + 1)]
    m = REG_RE.match(tok)
    if m:
        return [(m.group(2), int(m.group(3)))]
    if tok == 'vcc':
        return [('x', 'vcc')]
    if tok in ('vcc_lo', 'vcc_hi'):
        return [('x', 'vcc')]
    if tok == 'm0':
        return [('x', 'm0')]
    if tok == 'exec' or tok in ('exec_lo', 'exec_hi'):
        return [('x', 'exec')]
    return []

TRANS = ('v_exp_f32', 'v_log_f32', 'v_rcp_f32', 'v_rsq_f32', 'v_sqrt_f32', 'v_sin_f32', 'v_cos_f32')

class I:
    def __init__(self, text):
        self.text = text
        t = text.split(';')[0].strip()
        self.kind = None
        self.dst = []
        self.src = []
        self.op = ''
        self.nop_states = 1
        if not t or t.endswith(':') or t.startswith('.'):
            self.kind = 'label' if t.endswith(':') else 'dir'
            return
        parts = t.split(None, 1)
        op = parts[0]
        self.op = op
        rest = parts[1] if len(parts) > 1 else ''
        ops = []
        cur = ''
        depth = 0
        for ch in rest:
            if ch in '[(':
                depth += 1
            if ch in '])':
                depth -= 1
            if ch == ',' and depth == 0:
                ops.append(cur.strip()); cur = ''
            else:
                cur += ch
        if cur.strip():
            ops.append(cur.strip())
        mods = []
        if ops:
            last = ops[-1].split()
            ops[-1] = last[0]
            mods = last[1:]
        self.ops = ops
        self.mods = mods
        for mm in mods:
            if mm.startswith('offset:'):
                ov = int(mm[7:], 0)
                if op.startswith('buffer_'): assert 0 <= ov <= 4095, 'MUBUF offset too large: ' + text
                if op.startswith('ds_'): assert 0 <= ov <= 65535, 'DS offset too large: ' + text
                if op.startswith('global_'): assert -4096 <= ov <= 4095, 'global offset range: ' + text
        base = re.sub(r'_(e32|e64|dpp|sdwa)$', '', op)
        self.base = base
        R = regs_of
        if op.startswith('v_mfma'):
            self.kind = 'mfma'
            self.dst = R(ops[0]); self.a = R(ops[1]); self.b = R(ops[2]); self.c = R(ops[3])
            self.src = self.a + self.b + self.c
            self.passes = 8 if '32x32' in op else 4
        elif op.startswith('ds_'):
            self.kind = 'ds'
            if op.startswith('ds_read') or op.startswith('ds_bpermute') or op.startswith('ds_permute') or op.startswith('ds_swizzle'):
                self.dst = R(ops[0])
                for o in ops[1:]:
                    self.src += R(o)
            else:
                for o in ops:
                    self.src += R(o)
            self.isload = bool(self.dst)
        elif op.startswith('buffer_') or op.startswith('global_'):
            self.kind = 'vmem'
            allm = ' '.join(mods)
            self.lds = ' lds' in (' ' + allm)
            if op in ('buffer_wbl2', 'buffer_inv'):
                pass
            elif op.startswith('buffer_load'):
                if self.lds:
                    for o in ops: self.src += R(o)
                    self.src.append(('x', 'm0'))
                else:
                    self.dst = R(ops[0])
                    for o in ops[1:]: self.src += R(o)
            elif op.startswith('global_load'):
                if 'lds' in op:
                    for o in ops: self.src += R(o)
                    self.src.append(('x', 'm0'))
                    self.lds = True
                else:
                    self.dst = R(ops[0])
                    for o in ops[1:]: self.src += R(o)
            elif 'atomic' in op:
                ret = 'sc0' in mods
                if op.startswith('buffer_'):
                    for o in ops: self.src += R(o)
                    if ret: self.dst = R(ops[0])
                else:
                    if ret:
                        self.dst = R(ops[0])
                        for o in ops[1:]: self.src += R(o)
                    else:
                        for o in ops: self.src += R(o)
            else:
                for o in ops: self.src += R(o)
                self.store_data = R(ops[0]) if op.startswith('buffer_') else R(ops[1])
                self.wide = 'x4' in op or 'x3' in op
        elif op.startswith('s_'):
            self.kind = 'salu'
            if op == 's_nop':
                self.nop_states = int(ops[0], 0) + 1
                self.kind = 'nop'
            elif op == 's_waitcnt':
                self.kind = 'wait'
            elif op in ('s_barrier', 's_endpgm', 's_setprio', 's_sleep'):
                self.kind = 'sopp'
            elif op.startswith('s_cbranch') or op == 's_branch':
                self.kind = 'branch'
                if 'vcc' in op: self.src.append(('x', 'vcc'))
                if 'scc' in op: self.src.append(('x', 'scc'))
                if 'exec' in op: self.src.append(('x', 'exec'))
            elif op.startswith('s_cmp') or op.startswith('s_bitcmp'):
                for o in ops: self.src += R(o)
                self.dst = [('x', 'scc')]
            elif op.startswith('s_load') or op.startswith('s_buffer_load') or op in ('s_memtime', 's_memrealtime'):
                self.kind = 'smem'
                self.dst = R(ops[0])
                for o in ops[1:]: self.src += R(o)
            elif op == 's_getreg_b32':
                self.dst = R(ops[0])
            elif op.endswith('saveexec_b64'):
                self.dst = R(ops[0]) + [('x', 'exec'), ('x', 'scc')]
                self.src = R(ops[1]) + [('x', 'exec')]
            else:
                self.dst = R(ops[0])
                for o in ops[1:]: self.src += R(o)
                if op.startswith('s_cselect') or op.startswith('s_addc') or op.startswith('s_subb'):
                    self.src.append(('x', 'scc'))
                if not (op.startswith('s_mov') or op.startswith('s_cselect') or op.startswith('s_mul') or op.startswith('s_movk')):
                    self.dst = self.dst + [('x', 'scc')]
                if op in ('s_addk_i32', 's_mulk_i32'):
                    self.src += R(ops[0])
        elif op.startswith('v_'):
            self.kind = 'valu'
            self.trans = base in TRANS
            if base.startswith('v_cmp'):
                self.dst = R(ops[0])
                for o in ops[1:]: self.src += R(o)
                if base.startswith('v_cmpx'):
                    self.dst.append(('x', 'exec'))
            elif base in ('v_permlane32_swap_b32', 'v_permlane16_swap_b32'):
                self.dst = R(ops[0]) + R(ops[1])
                self.src = R(ops[0]) + R(ops[1])
                self.permlane = True
            elif base in ('v_add_co_u32', 'v_sub_co_u32', 'v_subrev_co_u32'):
                self.dst = R(ops[0]) + R(ops[1])
                for o in ops[2:]: self.src += R(o)
            elif base in ('v_addc_co_u32', 'v_subb_co_u32'):
                self.dst = R(ops[0]) + R(ops[1])
                for o in ops[2:]: self.src += R(o)
            else:
                self.dst = R(ops[0])
                for o in ops[1:]: self.src += R(o)
                if base in ('v_fmac_f32', 'v_dot2c_f32_bf16', 'v_writelane_b32', 'v_mac_f32', 'v_pk_fmac_f16'):
                    self.src += R(ops[0])
                if op.endswith('_dpp'):
                    self.src += R(ops[0])
                    self.dpp = True
        else:
            raise ValueError('unknown instruction: ' + text)

    def __repr__(self):
        return self.text

def size_of(ins):
    k = ins.kind
    if k in ('label', 'dir', None):
        return 0
    if k in ('mfma', 'ds', 'vmem', 'smem'):
        return 8
    def is_lit(tok):
        tok = tok.strip()
        if regs_of(tok): return False
        if tok in ('off', 'vcc', 'exec', 'scc'): return False
        try:
            v = int(tok, 0)
            return not (-16 <= v <= 64)
        except ValueError:
            pass
        try:
            f = float(tok)
            return f not in (0.0, 0.5, -0.5, 1.0, -1.0, 2.0, -2.0, 4.0, -4.0)
        except ValueError:
            return False
    if k in ('nop', 'wait', 'sopp', 'branch'):
        return 4
    if k == 'salu':
        if ins.op in ('s_movk_i32', 's_addk_i32', 's_mulk_i32', 's_getreg_b32'):
            return 4
        return 8 if any(is_lit(o) for o in ins.ops[1:]) or (ins.op.startswith('s_cmp') and any(is_lit(o) for o in ins.ops)) else 4
    if k == 'valu':
        if ins.op.endswith('_e64') or ins.op.endswith('_dpp') or ins.op.endswith('_sdwa'):
            return 8
        vop3only = ('v_fma_f32', 'v_max3_f32', 'v_min3_f32', 'v_med3_f32', 'v_cvt_pk_bf16_f32', 'v_mul_lo_u32', 'v_mul_hi_u32',
                    'v_lshl_add_u32', 'v_add_lshl_u32', 'v_and_or_b32', 'v_bfe_u32', 'v_bfi_b32', 'v_add3_u32', 'v_mad_u32_u24',
                    'v_lshl_or_b32', 'v_or3_b32', 'v_perm_b32', 'v_readlane_b32', 'v_writelane_b32', 'v_pk_mul_f32', 'v_pk_add_f32',
                    'v_pk_fma_f32', 'v_accvgpr_read_b32', 'v_accvgpr_write_b32', 'v_alignbit_b32', 'v_ldexp_f32', 'v_mbcnt_lo_u32_b32',
                    'v_mbcnt_hi_u32_b32', 'v_dot2_f32_bf16', 'v_bfe_i32', 'v_mad_i32_i24', 'v_xad_u32', 'v_lshlrev_b64', 'v_div_fixup_f32',
                    'v_div_scale_f32', 'v_div_fmas_f32', 'v_mul_i32_i24_x')
        if ins.base in vop3only:
            return 8
        if ins.base.startswith('v_cmp') and ins.ops[0] != 'vcc':
            return 8
        if ins.base == 'v_cndmask_b32' and ins.ops[3] != 'vcc':
            return 8
        if any(o.startswith('-v') or o.startswith('abs(') or o.startswith('-abs(') or o.startswith('|') for o in ins.ops[1:]):
            return 8
        if len(ins.ops) >= 3 and not ins.base.startswith('v_cmp'):
            s1 = ins.ops[2]
            if ins.base in ('v_add_co_u32', 'v_addc_co_u32', 'v_sub_co_u32'):
                s1 = ins.ops[3]
            r = regs_of(s1)
            if not r or r[0][0] != 'v':
                return 8
        if ins.base.startswith('v_cmp'):
            r = regs_of(ins.ops[2])
            if not r or r[0][0] != 'v':
                return 8
        return 8 if any(is_lit(o) for o in ins.ops[1:]) else 4
    raise ValueError(ins.text)


class Prog:
    def __init__(self):
        self.ins = []
    def __call__(self, text):
        for line in text.split('\n'):
            line = line.strip()
            if line:
                self.ins.append(I(line))
    def extend(self, other):
        self.ins.extend(other.ins if isinstance(other, Prog) else other)
    def text(self):
        out = []
        for i in self.ins:
            if i.kind == 'label' or (i.kind == 'dir'):
                out.append(i.text)
            else:
                out.append('    ' + i.text)
        return '\n'.join(out) + '\n'


def insert_waits(ins, state=None, lgkm_max=15, vm_max=63):
    if state is None:
        state = ([], [])
    dsq = [list(x) for x in state[0]]
    vmq = [list(x) for x in state[1]]
    out = []
    for ins_ in ins:
        k = ins_.kind
        need_only = False
        if k == 'dir' and ins_.text.startswith('.need '):
            ins_ = I(ins_.text[6:]); k = ins_.kind; need_only = True
        if k in ('label', 'dir', None):
            out.append(ins_); continue
        if k == 'wait':
            t = ins_.text
            m = re.search(r'lgkmcnt\((\d+)\)', t)
            if m:
                n = int(m.group(1))
                while len(dsq) > n: dsq.pop(0)
            m = re.search(r'vmcnt\((\d+)\)', t)
            if m:
                n = int(m.group(1))
                while len(vmq) > n: vmq.pop(0)
            out.append(ins_); continue
        touched = set(ins_.src) | set(ins_.dst)
        need_l = None
        for idx, d in enumerate(dsq):
            if touched & set(d):
                need_l = len(dsq) - 1 - idx
        need_v = None
        for idx, d in enumerate(vmq):
            if touched & set(d):
                need_v = len(vmq) - 1 - idx
        w = []
        if need_v is not None:
            assert need_v <= vm_max
            w.append('vmcnt(%d)' % need_v)
            while len(vmq) > need_v: vmq.pop(0)
        if need_l is not None:
            n = min(need_l, lgkm_max)
            w.append('lgkmcnt(%d)' % n)
            while len(dsq) > n: dsq.pop(0)
        if w:
            out.append(I('s_waitcnt ' + ' '.join(w)))
        if need_only:
            continue
        out.append(ins_)
        if k == 'ds':
            dsq.append(list(ins_.dst))
            assert len(dsq) <= 64
        elif k == 'smem':
            raise ValueError('smem inside auto-wait region: ' + ins_.text)
        elif k == 'vmem':
            vmq.append(list(ins_.dst))
    return out, (dsq, vmq)


def check_hazards(ins, name=''):
    probs = []
    seq = [i for i in ins if i.kind not in ('label', 'dir', None)]
    n = len(seq)
    def states_between(a, b):
        return sum(seq[j].nop_states for j in range(a + 1, b))
    WINDOW = 24
    for b in range(n):
        cb = seq[b]
        for a in range(b - 1, max(-1, b - WINDOW - 1), -1):
            ca = seq[a]
            st = states_between(a, b)
            if st >= 20:
                break
            need = 0
            why = ''
            da = set(ca.dst); sb = set(cb.src); db = set(cb.dst)
            vda = set(r for r in da if r[0] in 'va');
            if ca.kind == 'valu':
                sg = set(r for r in da if r[0] == 's' or r == ('x', 'vcc'))
                if cb.kind == 'mfma' and (vda & sb):
                    need, why = 2, 'VALU->MFMA src'
                if cb.kind == 'mfma' and ('x', 'exec') in da:
                    need, why = 4, 'VALU exec->MFMA'
                if cb.kind == 'valu':
                    if getattr(cb, 'permlane', False) and (vda & sb):
                        need, why = max(need, 2), 'VALU->permlane'
                    if getattr(cb, 'dpp', False) and (vda & sb):
                        need, why = max(need, 2), 'VALU->DPP'
                    if cb.base in ('v_readlane_b32', 'v_readfirstlane_b32') and (vda & sb):
                        need, why = max(need, 1), 'VALU->readlane'
                    if getattr(ca, 'trans', False) and not getattr(cb, 'trans', False) and (vda & sb):
                        need, why = max(need, 1), 'trans->VALU'
                    if sg & sb:
                        need, why = max(need, 2), 'VALU sgpr->VALU const'
                        if cb.base in ('v_readlane_b32', 'v_writelane_b32'):
                            need = 4
                    if ('x', 'exec') in da and getattr(cb, 'dpp', False):
                        need, why = max(need, 5), 'VALU exec->DPP'
                    if ('x', 'exec') in da and (cb.base in ('v_readlane_b32', 'v_readfirstlane_b32', 'v_writelane_b32') or getattr(cb, 'permlane', False)):
                        need, why = max(need, 4), 'cmpx->readlane/permlane'
                if cb.kind == 'vmem' and (sg & sb):
                    need, why = max(need, 5), 'VALU sgpr->VMEM'
                if getattr(ca, 'trans', False) and cb.kind in ('mfma',) and (vda & sb):
                    need = max(need, 2)
            if ca.kind == 'valu' and ca.base.startswith('v_dot'):
                if vda & (sb | db):
                    if cb.kind == 'valu' and cb.base == ca.base:
                        ab = set()
                        for oo in cb.ops[1:3]: ab |= set(regs_of(oo))
                        if vda & ab: need, why = max(need, 3), 'dot->dot A/B'
                    else:
                        need, why = max(need, 3), 'dot->other'
            if ca.kind == 'mfma':
                P = ca.passes
                D = set(ca.dst)
                if cb.kind == 'mfma':
                    if D & set(cb.c):
                        if set(cb.c) == D and cb.passes == P:
                            pass
                        else:
                            need, why = max(need, {4: 6, 8: 10}[P]), 'MFMA D->MFMA C overlap'
                    if D & (set(cb.a) | set(cb.b)):
                        need, why = max(need, {4: 8, 8: 12}[P]), 'MFMA D->MFMA A/B'
                    if D & db and not (D & set(cb.c)):
                        need, why = max(need, {4: 6, 8: 10}[P]), 'MFMA D->MFMA D WAW'
                elif cb.kind in ('valu', 'ds', 'vmem'):
                    if D & (sb | db):
                        need, why = max(need, {4: 8, 8: 12}[P]), 'MFMA D->VALU/mem'
                if cb.kind == 'valu' and (set(ca.c) & db):
                    need, why = max(need, {4: 3, 8: 7}[P]), 'MFMA C WAR VALU'
                if cb.kind in ('ds', 'vmem') and (set(ca.c) & db):
                    need, why = max(need, {4: 3, 8: 7}[P]), 'MFMA C WAR load'
            if ca.kind == 'vmem' and getattr(ca, 'wide', False) and cb.kind in ('valu', 'mfma'):
                if set(ca.store_data) & db:
                    need, why = max(need, 2), 'wide store data WAR'
            if ca.kind == 'ds' and not ca.isload and cb.kind == 'valu':
                pass
            if ca.kind == 'salu' and ('x', 'm0') in da and cb.kind == 'vmem' and ('x', 'm0') in sb:
                need, why = max(need, 1), 'm0->LDS DMA'
            if need > st:
                probs.append('%s: need %d have %d (%s)\n    %s\n    %s' % (name, need, st, why, ca.text, cb.text))
    return probs
```

```python
import sys
from asmlib import *

class Opt:
    dma = True; dsread = True; valu = True; barrier = True
    bar_slot = 118
    dma_lo = 0; dma_hi = 56
    e64 = False
    nit = 32
    summ = 'add'
    dflag = ''
    chain = 2
    e0lo = 36; e0hi = 76; e1lo = 72; e1hi = 116
    thr = 0x53800000
    kgap = 2
    dma_gaps = [1, 5, 9, 13, 17, 21, 25, 29, 33, 37, 41, 45, 49, 53, 57, 61]
    even = 1; ehi = 122; vm_valu = 1; hoist = 1

BLK = 1056
HALF = 16 * BLK; KBUF = 2 * HALF; VBASE = 2 * KBUF
SREG = 128
PBUF = [160, 176]
NEGM = 192
FR = 208
VK, VV, VOFF = 224, 225, 226
LREG = [228, 236]
TMP = 244
VLANE = 252
VONE = 253
S_K0, S_K1, S_V0, S_V1 = 8, 12, 16, 20
S_WS = 24
S_DST = 28; S_THR = 29; S_RET = 30; S_CNT = 33; S_W = 34; S_96 = 35

def vr(a, n=1):
    return 'v%d' % a if n == 1 else 'v[%d:%d]' % (a, a + n - 1)
def ar(a, n=1):
    return 'a%d' % a if n == 1 else 'a[%d:%d]' % (a, a + n - 1)
def E(o, op):
    return op + '_e64' if o.e64 else op
def frag(n):
    return FR + 4 * (n % 4)
def kread(o, n, buf):
    a, ks = n // 8, n % 8
    return ['ds_read_b128 %s, v%d offset:%d' % (vr(frag(n), 4), VK, buf * KBUF + a * 8 * BLK + ks * 64)]
def vread(o, dt, buf):
    r = frag(16 + dt)
    return ['ds_read_b64_tr_b16 %s, v%d offset:%d' % (vr(r + 2 * a, 2), VV, buf * KBUF + a * 8 * BLK + dt * 32) for a in range(2)]
def S(a, b): return SREG + 16 * a + 4 * b
def qk_list(o, czero=False):
    L = []
    for a in range(2):
        if o.chain == 2:
            for kp in range(4):
                for b in range(4):
                    for k2 in range(2):
                        ks = 2 * kp + k2
                        c = ('0' if czero else vr(NEGM + 4 * b, 4)) if ks == 0 else vr(S(a, b), 4)
                        L.append('v_mfma_f32_16x16x32_bf16 %s, %s, %s, %s' % (vr(S(a, b), 4), vr(frag(a * 8 + ks), 4), vr(32 * b + 4 * ks, 4), c))
        else:
            for kp in range(4):
                for k2 in range(2):
                    for b in range(4):
                        ks = 2 * kp + k2
                        c = ('0' if czero else vr(NEGM + 4 * b, 4)) if ks == 0 else vr(S(a, b), 4)
                        L.append('v_mfma_f32_16x16x32_bf16 %s, %s, %s, %s' % (vr(S(a, b), 4), vr(frag(a * 8 + ks), 4), vr(32 * b + 4 * ks, 4), c))
    return L
def pv_list(o, pb, first=False):
    L = []
    for dt in range(16):
        for b in range(4):
            O = (dt * 4 + b) * 4
            c = '0' if first else ar(O, 4)
            L.append('v_mfma_f32_16x16x32_bf16 %s, %s, %s, %s' % (ar(O, 4), vr(frag(16 + dt), 4), vr(PBUF[pb] + 4 * b, 4), c))
    return L

def lreg(o, par, b):
    return LREG[par] + (2 * b if o.summ == 'pk' else b)

def exps(o, a, pb, lold, lnew):
    groups = []
    k = 0
    for b in range(4):
        for hp in range(2):
            s = S(a, b) + 2 * hp
            t = TMP + 2 * (k % 4)
            P = PBUF[pb] + 4 * b + 2 * a + hp
            e = ['%s v%d, v%d' % (E(o, 'v_exp_f32'), t, s), '%s v%d, v%d' % (E(o, 'v_exp_f32'), t + 1, s + 1)]
            first = (a == 0 and hp == 0)
            ln = lreg(o, lnew, b); lo = lreg(o, lold, b) if first else ln
            cv = 'v_cvt_pk_bf16_f32 v%d, v%d, v%d' % (P, t, t + 1)
            if o.summ == 'add':
                c = ['%s v%d, v%d, v%d' % (E(o, 'v_add_f32'), ln, lo, t), '%s v%d, v%d, v%d' % (E(o, 'v_add_f32'), ln, ln, t + 1), cv]
            elif o.summ == 'pk':
                c = ['v_pk_add_f32 %s, %s, %s' % (vr(ln, 2), vr(lo, 2), vr(t, 2)), cv]
            else:
                c = [cv, ('dot', 'v_dot2_f32_bf16 v%d, v%d, v%d, v%d' % (ln, P, VONE, lo))]
            groups.append((e, c))
            k += 1
    out = []
    pend = []
    for i, (e, c) in enumerate(groups):
        out += e
        out += pend; pend = []
        if i >= 1:
            for x in groups[i - 1][1]:
                if isinstance(x, tuple): pend.append(x[1])
                else: out.append(x)
    out += pend; pend = []
    for x in groups[-1][1]:
        out.append(x[1] if isinstance(x, tuple) else x)
    return out

def dma(o, kbuf, vbuf, do_k=True, do_v=True, nop=False):
    out = []
    grp = []
    if do_k: grp += [(S_K0, kbuf * KBUF), (S_K1, kbuf * KBUF + 4 * BLK)]
    if do_v: grp += [(S_V0, VBASE + vbuf * KBUF), (S_V1, VBASE + vbuf * KBUF + 4 * BLK)]
    for srd, dst in grp:
        out.append('s_add_u32 m0, s%d, %d' % (S_DST, dst) if dst else 's_mov_b32 m0, s%d' % S_DST)
        if nop: out.append('s_nop 0')
        for j in range(4):
            so = ('s%d' % S_96, '64', '32', '0')[j]
            out.append('buffer_load_dwordx4 v%d, s[%d:%d], %s offen offset:%d %s lds' % (VOFF, srd, srd + 3, so, BLK * j, o.dflag))
    return out

def spread(slots, stream, lo, hi):
    n = len(stream)
    for i, s in enumerate(stream):
        slots[lo + (i * (hi - lo + 1)) // n].append(s)

def check(o, par, tag):
    if o.summ == 'pk':
        r = [LREG[par] + i for i in range(8)]
        return ['v_max3_f32 v%d, v%d, v%d, v%d' % (TMP, r[0], r[1], r[2]),
                'v_max3_f32 v%d, v%d, v%d, v%d' % (TMP + 1, r[3], r[4], r[5]),
                'v_max3_f32 v%d, v%d, v%d, v%d' % (TMP, TMP, r[6], r[7]),
                'v_max_f32 v%d, v%d, v%d' % (TMP, TMP, TMP + 1),
                'v_cmp_lt_f32 vcc, s%d, v%d' % (S_THR, TMP)]
    r = [LREG[par] + i for i in range(4)]
    return ['v_max3_f32 v%d, v%d, v%d, v%d' % (TMP, r[0], r[1], r[2]),
            'v_max_f32 v%d, v%d, v%d' % (TMP, TMP, r[3]),
            'v_cmp_lt_f32 vcc, s%d, v%d' % (S_THR, TMP)]

def is_exp(s): return s.startswith('v_exp')

def iteration(o, par, tag, do_qk=True, do_dma_k=True, do_dma_v=True, next_k=True, first_pv=False):
    p = Prog()
    cur = par; nxt = par ^ 1
    N = 128
    sc = [[] for _ in range(N)]
    mem = [[] for _ in range(N)]
    val = [[] for _ in range(N)]
    B = o.bar_slot
    if o.dsread:
        if do_qk:
            for n in range(2, 16):
                i = n // 2
                mem[8 * (i - 1) + (n % 2) * o.kgap] += kread(o, n, nxt)
        for dt in range(16):
            if dt < 2: sl = 56 + 2 * dt + 1
            elif dt < 4: sl = 64 + (dt - 2) * 2
            else: sl = 64 + 4 * (dt - 4) + 4
            mem[sl] += vread(o, dt, cur)
        if next_k:
            mem[B] += kread(o, 0, cur)
            mem[max(B + 1, 120)] += kread(o, 1, cur)
    if o.dma and (do_dma_k or do_dma_v):
        d = dma(o, cur, nxt, do_dma_k, do_dma_v)
        gaps = list(o.dma_gaps)
        gi = 0
        last = None
        for s in d:
            if s.startswith('s_'):
                g = gaps[gi]
                gm = g - 1
                assert last is None or gm >= last
                sc[gm % N].append(s) if gm >= 0 else pre_m0.append(s) if False else sc[max(gm, 0)].append(s)
            else:
                g = gaps[gi]; gi += 1
                while len(mem[g]) >= 1: g += 1;
                mem[g].append(s); last = g
        val[last + 1].append('v_add_u32 v%d, 0x8000, v%d' % (VOFF, VOFF))
    def cost(g):
        return 4 * len(mem[g]) + sum(8 if is_exp(x) else 4 for x in val[g])
    if o.valu and do_qk:
        stream = [(x, o.e0lo) for x in exps(o, 0, nxt, cur, nxt)] + [(x, o.e1lo) for x in exps(o, 1, nxt, cur, nxt)] + [(x, 0) for x in check(o, nxt, tag)]
        g = o.e0lo
        total = sum(8 if is_exp(x) else 4 for x, _ in stream)
        done = 0
        lo, hi = o.e0lo, o.ehi
        for x, early in stream:
            c = 8 if is_exp(x) else 4
            tgt = lo + int(done * (hi - lo) / total) if o.even else 0
            g = max(g, early, tgt)
            while True:
                lim = 8
                hasvm = any(y.startswith('buffer') for y in mem[g])
                if hasvm and not o.vm_valu: lim = 0 if False else 4
                if cost(g) + c <= lim and g != B: break
                g += 1
            val[g].append(x); done += c
        assert g < N - 1, 'valu overflow %d' % g
        o.last_valu_gap = g
    qk = qk_list(o); pv = pv_list(o, cur, first_pv)
    mf = [(qk[sl] if do_qk else None) if sl < 64 else pv[sl - 64] for sl in range(N)]
    for sl in range(N):
        if mf[sl]: p(mf[sl])
        nx = mf[sl + 1] if sl + 1 < N else None
        if nx and o.hoist: p('.need ' + nx)
        if sl == B and next_k:
            p('s_waitcnt vmcnt(0) lgkmcnt(0)')
            if o.barrier: p('s_barrier')
        for s in sc[sl]: p(s)
        for s in mem[sl]: p(s)
        for s in val[sl]: p(s)
    if o.valu and do_qk:
        p('s_cbranch_vccnz L_rare_%s' % tag)
        p('L_back_%s:' % tag)
    return p

def xlane_max(p, t):
    p('v_mov_b32 v%d, v%d' % (t + 1, t))
    p('s_nop 1')
    p('v_permlane16_swap_b32 v%d, v%d' % (t, t + 1))
    p('s_nop 1')
    p('v_max_f32 v%d, v%d, v%d' % (t, t, t + 1))
    p('v_mov_b32 v%d, v%d' % (t + 1, t))
    p('s_nop 1')
    p('v_permlane32_swap_b32 v%d, v%d' % (t, t + 1))
    p('s_nop 1')
    p('v_max_f32 v%d, v%d, v%d' % (t, t, t + 1))

def max8(p, t, b):
    p('v_max3_f32 v%d, v%d, v%d, v%d' % (t, S(0, b), S(0, b) + 1, S(0, b) + 2))
    p('v_max3_f32 v%d, v%d, v%d, v%d' % (t, t, S(0, b) + 3, S(1, b)))
    p('v_max3_f32 v%d, v%d, v%d, v%d' % (t, t, S(1, b) + 1, S(1, b) + 2))
    p('v_max_f32 v%d, v%d, v%d' % (t, t, S(1, b) + 3))

def fallback(o, par):
    p = Prog()
    nxt = par ^ 1
    p('L_fb_%d:' % par)
    p('s_nop 7'); p('s_nop 7')
    t = TMP
    for b in range(4):
        max8(p, t, b)
        xlane_max(p, t)
        p('v_max_f32 v%d, 0, v%d' % (t, t))
        for r in range(4):
            p('v_sub_f32 v%d, v%d, v%d' % (NEGM + 4 * b + r, NEGM + 4 * b + r, t))
        p('v_sub_f32 v%d, 0, v%d' % (t + 1, t))
        p('v_exp_f32 v%d, v%d' % (t + 1, t + 1))
        p('s_nop 0')
        lo = lreg(o, par, b); ln = lreg(o, nxt, b)
        p('v_mul_f32 v%d, v%d, v%d' % (ln, lo, t + 1))
        if o.summ == 'pk':
            p('v_mul_f32 v%d, v%d, v%d' % (ln + 1, lo + 1, t + 1))
        for dt in range(16):
            for r in range(4):
                a = (dt * 4 + b) * 4 + r
                tt = t + 2 + r
                p('v_accvgpr_read_b32 v%d, a%d' % (tt, a))
                p('v_mul_f32 v%d, v%d, v%d' % (tt, tt, t + 1))
                p('v_accvgpr_write_b32 a%d, v%d' % (a, tt))
        for a in range(2):
            for hp in range(2):
                s = S(a, b) + 2 * hp
                p('v_sub_f32 v%d, v%d, v%d' % (t + 2, s, t))
                p('v_sub_f32 v%d, v%d, v%d' % (t + 3, s + 1, t))
                p('v_exp_f32 v%d, v%d' % (t + 2, t + 2))
                p('v_exp_f32 v%d, v%d' % (t + 3, t + 3))
                p('s_nop 0')
                p('v_add_f32 v%d, v%d, v%d' % (ln, ln, t + 2))
                p('v_add_f32 v%d, v%d, v%d' % (ln, ln, t + 3))
                p('v_cvt_pk_bf16_f32 v%d, v%d, v%d' % (PBUF[nxt] + 4 * b + 2 * a + hp, t + 2, t + 3))
    p('s_nop 3')
    p('s_setpc_b64 s[%d:%d]' % (S_RET, S_RET + 1))
    return p

def build(o):
    p = Prog()
    name = 'attn_kernel'
    p('''
%s:
    s_cmp_ge_u32 s2, 256
    s_cbranch_scc1 L_end
    s_load_dwordx2 s[4:5], s[0:1], 8
    s_load_dwordx2 s[6:7], s[0:1], 16
    s_load_dwordx2 s[24:25], s[0:1], 112
    v_lshrrev_b32 v1, 6, v0
    v_and_b32 v%d, 63, v0
    s_nop 0
    v_readfirstlane_b32 s%d, v1
    s_and_b32 s36, s2, 7          ; g
    s_lshl_b32 s37, s36, 20       ; g * 1MB
    s_waitcnt lgkmcnt(0)
    s_mov_b32 s26, 0x10000000
    s_mov_b32 s27, 0x20000
    s_mov_b32 s%d, 96
''' % (name, VLANE, S_W, S_96))
    p('''
    s_add_u32 s8, s4, s37
    s_addc_u32 s9, s5, 0
    s_sub_u32 s8, s8, 96
    s_subb_u32 s9, s9, 0
    s_mov_b32 s10, %d
    s_mov_b32 s11, 0x20000
    s_add_u32 s12, s8, 4096
    s_addc_u32 s13, s9, 0
    s_mov_b32 s14, %d
    s_mov_b32 s15, 0x20000
    s_add_u32 s16, s6, s37
    s_addc_u32 s17, s7, 0
    s_sub_u32 s16, s16, 96
    s_subb_u32 s17, s17, 0
    s_mov_b32 s18, %d
    s_mov_b32 s19, 0x20000
    s_add_u32 s20, s16, 4096
    s_addc_u32 s21, s17, 0
    s_mov_b32 s22, %d
    s_mov_b32 s23, 0x20000
''' % ((1 << 20) + 96, (1 << 20) + 96 - 4096, (1 << 20) + 96, (1 << 20) + 96 - 4096))
    p('''
    s_lshr_b32 s38, s%d, 1        ; s = key half
    s_and_b32 s39, s%d, 1         ; qh
    s_mul_i32 s40, s38, %d
    s_mul_i32 s41, s39, %d
    s_add_u32 s%d, s40, s41       ; LDS DMA dest base
    s_mov_b32 s%d, 0x%x
    s_lshl_b32 s42, s38, 14
    s_lshl_b32 s43, s39, 13
    s_add_u32 s42, s42, s43
    v_lshlrev_b32 v%d, 4, v%d
    v_add_u32 v%d, s42, v%d
    v_mov_b32 v%d, 0x3f803f80
''' % (S_W, S_W, HALF, 8 * BLK, S_DST, S_THR, o.thr, VOFF, VLANE, VOFF, VOFF, VONE))
    L = VLANE
    p('''
    v_and_b32 v1, 7, v%d
    v_mul_u32_u24 v1, %d, v1
    v_bfe_u32 v2, v%d, 3, 1
    v_lshlrev_b32 v2, 9, v2
    v_add_u32 v1, v1, v2
    v_lshrrev_b32 v2, 4, v%d
    v_lshlrev_b32 v2, 4, v2
    v_add_u32 v1, v1, v2
    v_add_u32 v%d, s40, v1
    v_lshrrev_b32 v1, 2, v%d         ; mv = lane>>2 (=4G+r)
    v_and_b32 v2, 7, v1
    v_mul_u32_u24 v2, %d, v2
    v_lshrrev_b32 v1, 3, v1
    v_lshlrev_b32 v1, 9, v1
    v_add_u32 v1, v1, v2
    v_and_b32 v2, 3, v%d
    v_lshlrev_b32 v2, 3, v2
    v_add_u32 v1, v1, v2
    v_add_u32 v1, s40, v1
    v_add_u32 v%d, %d, v1
''' % (L, BLK, L, L, VK, L, BLK, L, VV, VBASE))
    for s in dma(o, 0, 0, nop=True): p(s)
    p('v_add_u32 v%d, 0x8000, v%d' % (VOFF, VOFF))
    p('s_nop 0')
    for s in dma(o, 1, 0, True, False, nop=True): p(s)
    p('''
    s_add_u32 s8, s8, 0x8000
    s_addc_u32 s9, s9, 0
    s_sub_u32 s10, s10, 0x8000
    s_add_u32 s12, s12, 0x8000
    s_addc_u32 s13, s13, 0
    s_sub_u32 s14, s14, 0x8000
''')
    p('''
    s_lshl_b32 s44, s2, 1
    s_add_u32 s44, s44, s39
    s_lshl_b32 s44, s44, 15          ; *32 frags*1024 B
    v_lshlrev_b32 v254, 4, v%d
    v_add_u32 v254, s44, v254
''' % L)
    for n in range(32):
        if n % 4 == 0 and n:
            p('v_add_u32 v254, 0x1000, v254')
        p('buffer_load_dwordx4 %s, v254, s[24:27], 0 offen offset:%d' % (vr(4 * n, 4), (n % 4) * 1024))
    p('s_waitcnt vmcnt(0)')
    p('s_barrier')
    q = Prog()
    qk = qk_list(o, czero=True)
    for n in range(2):
        for s in kread(o, n, 0): q(s)
    for sl in range(64):
        if sl % 8 == 0 and sl // 8 + 1 < 8:
            for s in kread(o, 2 * (sl // 8 + 1), 0) + kread(o, 2 * (sl // 8 + 1) + 1, 0): q(s)
        q(qk[sl])
    w, _ = insert_waits(q.ins)
    p.extend(w)
    p('s_nop 7'); p('s_nop 7')
    t = TMP
    for b in range(4):
        max8(p, t, b)
        xlane_max(p, t)
        for r in range(4):
            p('v_sub_f32 v%d, 0, v%d' % (NEGM + 4 * b + r, t))
        for a in range(2):
            for r in range(4):
                p('v_sub_f32 v%d, v%d, v%d' % (S(a, b) + r, S(a, b) + r, t))
    for i in range(8):
        p('v_mov_b32 v%d, 0' % (LREG[1] + i))
    for s in exps(o, 0, 0, 1, 0): p(s)
    for s in exps(o, 1, 0, 1, 0): p(s)
    for r in range(256):
        p('v_accvgpr_write_b32 a%d, 0' % r)
    p('s_waitcnt vmcnt(0) lgkmcnt(0)')
    p('s_barrier')
    for n in range(2):
        for s in kread(o, n, 1): p(s)
    p('s_waitcnt lgkmcnt(0)')
    p('s_memtime s[46:47]')
    p('s_memrealtime s[48:49]')
    p('s_waitcnt lgkmcnt(0)')
    p('s_mov_b32 s%d, %d' % (S_CNT, (o.nit - 2) // 2))
    p('.p2align 6')
    p('L_loop:')
    body = Prog()
    body.extend(iteration(o, 0, 'a'))
    body.extend(iteration(o, 1, 'b'))
    _, st = insert_waits(body.ins)
    w, st2 = insert_waits(body.ins, st)
    assert st2 == st, 'not steady'
    loop_ins = w
    p.extend(w)
    p('s_sub_u32 s%d, s%d, 1' % (S_CNT, S_CNT))
    p('s_cmp_lg_u32 s%d, 0' % S_CNT)
    p('s_cbranch_scc1 L_loop')
    tail = Prog()
    tail.extend(iteration(o, 0, 'c', do_dma_k=False, next_k=False))
    tail('s_waitcnt vmcnt(0) lgkmcnt(0)')
    tail('s_barrier')
    tail.extend(iteration(o, 1, 'd', do_qk=False, do_dma_k=False, do_dma_v=False, next_k=False))
    w, _ = insert_waits(tail.ins, st)
    tail_ins = w
    p.extend(w)
    p('s_nop 7'); p('s_nop 7')
    p('s_memtime s[50:51]')
    p('s_memrealtime s[52:53]')
    p('s_waitcnt lgkmcnt(0)')
    p('''
    s_lshl_b32 s44, s2, 18
    s_lshl_b32 s45, s%d, 16
    s_add_u32 s44, s44, s45
    s_add_u32 s44, s44, 0x2000000
    v_lshlrev_b32 v1, 4, v%d
    v_add_u32 v1, s44, v1
''' % (S_W, L))
    for r4 in range(64):
        if r4 % 4 == 0 and r4:
            p('v_add_u32 v1, 0x1000, v1')
        p('buffer_store_dwordx4 %s, v1, s[24:27], 0 offen offset:%d' % (ar(4 * r4, 4), (r4 % 4) * 1024))
    p('''
    s_lshl_b32 s44, s2, 2
    s_add_u32 s44, s44, s%d
    s_lshl_b32 s44, s44, 11
    s_add_u32 s44, s44, 0x8000000
    v_lshlrev_b32 v1, 2, v%d
    v_add_u32 v1, s44, v1
''' % (S_W, L))
    for b in range(4):
        p('buffer_store_dword v%d, v1, s[24:27], 0 offen offset:%d' % (NEGM + 4 * b, 256 * b))
        lr = lreg(o, 1, b)
        if o.summ == 'pk':
            p('v_add_f32 v%d, v%d, v%d' % (lr, lr, lr + 1))
        p('buffer_store_dword v%d, v1, s[24:27], 0 offen offset:%d' % (lr, 1024 + 256 * b))
    p('''
    s_lshl_b32 s44, s2, 2
    s_add_u32 s44, s44, s%d
    s_lshl_b32 s44, s44, 5
    s_add_u32 s44, s44, 0xa000000
    s_sub_u32 s50, s50, s46
    s_subb_u32 s51, s51, s47
    s_sub_u32 s52, s52, s48
    s_subb_u32 s53, s53, s49
    s_getreg_b32 s54, hwreg(HW_REG_XCC_ID)
    v_mov_b32 v2, s50
    v_mov_b32 v3, s52
    v_mov_b32 v4, s54
    v_mov_b32 v5, s48
    v_mov_b32 v1, s44
    v_cmp_eq_u32 vcc, 0, v%d
    s_and_saveexec_b64 s[56:57], vcc
    s_cbranch_execz L_nostamp
    buffer_store_dwordx4 v[2:5], v1, s[24:27], 0 offen
L_nostamp:
    s_mov_b64 exec, s[56:57]
''' % (S_W, L))
    p('s_waitcnt vmcnt(0)')
    p('L_end:')
    p('s_endpgm')
    if o.valu:
        for tag, par in (('a', 0), ('b', 1), ('c', 0)):
            p('L_rare_%s:' % tag)
            p('s_call_b64 s[%d:%d], L_fb_%d' % (S_RET, S_RET + 1, par))
            p('s_branch L_back_%s' % tag)
        p.extend(fallback(o, 0))
        p.extend(fallback(o, 1))
    probs = check_hazards(loop_ins + loop_ins, 'loop') + check_hazards(loop_ins + tail_ins, 'tail') + check_hazards(p.ins, 'all')
    hdr = '''; @launch grid=(256,1,1) block=(256,1,1) lds=%d
.amdgcn_target "amdgcn-amd-amdhsa--gfx950"
.text
.globl attn_kernel
.p2align 8
.type attn_kernel,@function
''' % (4 * KBUF)
    ftr = '''
.section .rodata,"a"
.p2align 6
.amdhsa_kernel attn_kernel
  .amdhsa_next_free_vgpr 512
  .amdhsa_next_free_sgpr 96
  .amdhsa_accum_offset 256
  .amdhsa_group_segment_fixed_size 0
  .amdhsa_kernarg_size 120
  .amdhsa_user_sgpr_count 2
  .amdhsa_user_sgpr_kernarg_segment_ptr 1
  .amdhsa_system_sgpr_workgroup_id_x 1
  .amdhsa_float_denorm_mode_32 3
.end_amdhsa_kernel
'''
    return hdr + p.text() + ftr, probs, loop_ins

if __name__ == '__main__':
    o = Opt()
    out = sys.argv[1]
    for kv in sys.argv[2:]:
        k, v = kv.split('=')
        try: v = int(v, 0)
        except ValueError:
            if v.startswith('['): v = eval(v)
        setattr(o, k, v)
    txt, probs, loop = build(o)
    for pr in probs[:12]: print(pr)
    n = sum(1 for i in loop if i.kind not in ('label', 'dir'))
    print(out, 'hazards:', len(probs), 'loop instrs', n, 'bytes', sum(size_of(i) for i in loop))
    open(out, 'w').write(txt)
```

```python
from asmlib import *
import gen_attn2 as A
from gen_attn2 import (vr, ar, BLK, HALF, KBUF, VBASE, SREG, PBUF, NEGM, FR, VK, VV, VOFF, LREG, TMP, VLANE,
                       S_K0, S_K1, S_V0, S_V1, S_DST, S_THR, S_RET, S_CNT, S_W, S_96, S, frag, kread, vread, qk_list, exps, dma,
                       max8, lreg)

WS_MOD = 0
WS_R = 0x4000
WS_IDX = 0x8000
WS_ACT = 0x10000
WS_H2 = 0x100000
WS_PART = 0x400000
WS_STAMP = 0xa000000

H_OFF = 0
MV_OFF = 57344
QSLOT = [98304, 131072, 65536, 32768]
QX = 67584
XR = 0
ST = 131072
WO0 = 135168

S_G, S_QB, S_S, S_QH = 36, 37, 38, 39
S_X = 40
S_WQ = 44
S_WO = 48
S_SO = 52
S_T0, S_T1, S_T2, S_T3 = 60, 61, 62, 63
S_QD = 64
S_WST = 65
S_PART = 68
S_STAMP = 72

class VmTracker:
    def __init__(self): self.ops = []
    def add(self, tag): self.ops.append(tag)
    def wait(self, tag):
        idx = max(i for i, t in enumerate(self.ops) if t == tag)
        n = len(self.ops) - 1 - idx
        assert n <= 63
        return 's_waitcnt vmcnt(%d)' % n

def stamp(p, o, k):
    if o.stamps:
        p('s_memrealtime s[%d:%d]' % (S_STAMP + 2 * k, S_STAMP + 2 * k + 1))

def xreduce(p, r, t, op='v_add_f32'):
    p('v_mov_b32 v%d, v%d' % (t, r))
    p('s_nop 1')
    p('v_permlane16_swap_b32 v%d, v%d' % (r, t))
    p('s_nop 1')
    p('%s v%d, v%d, v%d' % (op, r, r, t))
    p('v_mov_b32 v%d, v%d' % (t, r))
    p('s_nop 1')
    p('v_permlane32_swap_b32 v%d, v%d' % (r, t))
    p('s_nop 1')
    p('%s v%d, v%d, v%d' % (op, r, r, t))

def wq_dma(step, vm, VQ):
    out = []
    slot = QSLOT[step % 4]
    for jj in range(8):
        if jj % 4 == 0:
            out.append('s_add_u32 m0, s%d, %d' % (S_QD, slot + jj * 1024))
        out.append(('buffer_load_dwordx4 v%d, s[%d:%d], s%d offen offset:%d lds' % (VQ[(jj >> 1) & 1], S_WQ, S_WQ + 3, S_SO + jj, (jj & 3) * 1024), 'wq%d' % step))
    return out

def emit_dma(p, lst, vm, nop=True):
    for s in lst:
        if isinstance(s, tuple):
            p(s[0]); vm.add(s[1])
        else:
            p(s)
            if nop and s.startswith('s_') and 'm0' in s: p('s_nop 0')

def prologue(o):
    p = Prog()
    L = VLANE
    vm = VmTracker()
    p('''
    s_cmp_ge_u32 s2, 256
    s_cbranch_scc1 L_end_k1
    s_load_dwordx2 s[40:41], s[0:1], 0
    s_load_dwordx4 s[4:7], s[0:1], 8
    s_load_dwordx4 s[44:47], s[0:1], 24
    s_load_dwordx2 s[24:25], s[0:1], 112
    v_lshrrev_b32 v1, 6, v0
    v_and_b32 v%d, 63, v0
    s_nop 0
    v_readfirstlane_b32 s%d, v1
    s_and_b32 s%d, s2, 7          ; g
    s_lshr_b32 s%d, s2, 3         ; qb
    s_lshr_b32 s%d, s%d, 1        ; s (key half)
    s_and_b32 s%d, s%d, 1         ; qh
''' % (L, S_W, S_G, S_QB, S_S, S_W, S_QH, S_W))
    if o.stamps:
        p('s_memrealtime s[%d:%d]' % (S_STAMP, S_STAMP + 1))
    p('s_waitcnt lgkmcnt(0)')
    p('''
    s_mov_b32 s48, s46
    s_mov_b32 s49, s47
    s_mul_i32 s60, s%d, 458752
    s_add_u32 s48, s48, s60
    s_addc_u32 s49, s49, 0
    s_mov_b32 s50, 458752
    s_mov_b32 s51, 0x20000
    s_lshl_b32 s60, s%d, 10
    s_add_u32 s44, s44, s60
    s_addc_u32 s45, s45, 0
    s_sub_u32 s46, 3670016, s60
    s_mov_b32 s47, 0x20000
    s_mul_i32 s60, s%d, 57344
    s_add_u32 s40, s40, s60
    s_addc_u32 s41, s41, 0
    s_mov_b32 s42, 57344
    s_mov_b32 s43, 0x20000
    s_mov_b32 s26, 0x10000000
    s_mov_b32 s27, 0x20000
''' % (S_G, S_G, S_QB))
    p('''
    v_and_b32 v200, 15, v%d           ; n
    v_lshrrev_b32 v201, 4, v%d        ; kq
    s_lshl_b32 s60, s%d, 4
    v_add_u32 v202, s60, v200
    v_mul_u32_u24 v202, 896, v202
    v_lshl_add_u32 v202, v201, 4, v202
''' % (L, L, S_W))
    for ks in range(14):
        p('buffer_load_dwordx4 %s, v202, s[40:43], 0 offen offset:%d' % (vr(4 * ks, 4), ks * 64)); vm.add('x')
    p('''
    v_lshlrev_b32 v203, 4, v%d
    s_lshl_b32 s60, s%d, 10
    v_add_u32 v203, s60, v203
    s_add_u32 m0, s60, %d
    s_nop 0
    buffer_load_dwordx4 v203, s[24:27], 0 offen lds
''' % (L, S_W, MV_OFF)); vm.add('mod')
    VQ = (204, 205)
    p('''
    v_lshlrev_b32 v206, 1, v201       ; 2*rr
    v_xor_b32 v206, v206, v200        ; slot ^ 2rr
    v_lshlrev_b32 v206, 4, v206
    v_lshl_add_u32 v206, v201, 13, v206
    s_lshl_b32 s60, s%d, 8
    v_add_u32 v204, s60, v206
    v_xor_b32 v205, 0x80, v204
    s_lshl_b32 s%d, s%d, 13
''' % (S_W, S_QD, S_W))
    for jj in range(8):
        p('s_mov_b32 s%d, %d' % (S_SO + jj, jj * 32768 - (jj & 3) * 1024))
    for st in range(3):
        emit_dma(p, wq_dma(st, vm, VQ), vm)
        p('v_add_u32 v204, 0x40000, v204')
        p('v_add_u32 v205, 0x40000, v205')
    p('''
    s_lshl_b32 s60, s%d, 20
    s_add_u32 s8, s4, s60
    s_addc_u32 s9, s5, 0
    s_sub_u32 s8, s8, 96
    s_subb_u32 s9, s9, 0
    s_mov_b32 s10, %d
    s_mov_b32 s11, 0x20000
    s_add_u32 s12, s8, 4096
    s_addc_u32 s13, s9, 0
    s_mov_b32 s14, %d
    s_mov_b32 s15, 0x20000
    s_add_u32 s16, s6, s60
    s_addc_u32 s17, s7, 0
    s_sub_u32 s16, s16, 96
    s_subb_u32 s17, s17, 0
    s_mov_b32 s18, %d
    s_mov_b32 s19, 0x20000
    s_add_u32 s20, s16, 4096
    s_addc_u32 s21, s17, 0
    s_mov_b32 s22, %d
    s_mov_b32 s23, 0x20000
    s_mov_b32 s%d, 96
    s_mul_i32 s61, s%d, %d
    s_mul_i32 s62, s%d, %d
    s_add_u32 s%d, s61, s62       ; LDS DMA dest base for K/V
    s_mov_b32 s%d, 0x%x
''' % (S_G, (1 << 20) + 96, (1 << 20) + 96 - 4096, (1 << 20) + 96, (1 << 20) + 96 - 4096, S_96, S_S, HALF, S_QH, 8 * BLK, S_DST, S_THR, o.thr))
    XC = 56
    ONE = 210; SELLO = 211; SELHI = 212; ACC = 214
    p('v_mov_b32 v%d, 0x3f803f80' % ONE)
    p('v_mov_b32 v%d, 0x00003f80' % SELLO)
    p('v_mov_b32 v%d, 0x3f800000' % SELHI)
    for i in range(4): p('v_mov_b32 v%d, 0' % (ACC + i))
    p(vm.wait('x'))
    for i in range(56):
        p('v_dot2_f32_bf16 v%d, v%d, v%d, v%d' % (ACC + i % 4, i, ONE, ACC + i % 4))
    p('s_nop 2')
    p('v_add_f32 v%d, v%d, v%d' % (ACC, ACC, ACC + 1))
    p('v_add_f32 v%d, v%d, v%d' % (ACC + 2, ACC + 2, ACC + 3))
    p('v_add_f32 v%d, v%d, v%d' % (ACC, ACC, ACC + 2))
    xreduce(p, ACC, ACC + 1)
    p('v_mul_f32 v%d, 0x%x, v%d' % (ACC, 0xbb124925, ACC))
    for i in range(56):
        p('v_dot2_f32_bf16 v%d, v%d, v%d, v%d' % (XC + 2 * i, i, SELLO, ACC))
        p('v_dot2_f32_bf16 v%d, v%d, v%d, v%d' % (XC + 2 * i + 1, i, SELHI, ACC))
    V2 = 216
    for i in range(4): p('v_mov_b32 v%d, 0' % (V2 + i))
    for i in range(56):
        a = V2 + 2 * (i % 2)
        p('v_pk_fma_f32 %s, %s, %s, %s' % (vr(a, 2), vr(XC + 2 * i, 2), vr(XC + 2 * i, 2), vr(a, 2)))
    p('v_add_f32 v%d, v%d, v%d' % (V2, V2, V2 + 1))
    p('v_add_f32 v%d, v%d, v%d' % (V2 + 2, V2 + 2, V2 + 3))
    p('v_add_f32 v%d, v%d, v%d' % (V2, V2, V2 + 2))
    xreduce(p, V2, V2 + 1)
    p('v_mov_b32 v%d, 0x3727c5ac' % (V2 + 1))
    p('v_fmac_f32 v%d, 0x3b124925, v%d' % (V2 + 1, V2))
    p('v_rsq_f32 v%d, v%d' % (V2, V2 + 1))
    p('s_nop 0')
    p('v_mov_b32 v%d, v%d' % (V2 + 1, V2))
    p(vm.wait('mod'))
    p('s_barrier')
    MVA = 222
    HA = 223
    p('v_lshlrev_b32 v%d, 5, v201' % MVA)
    p('v_add_u32 v%d, %d, v%d' % (MVA, MV_OFF, MVA))
    p('s_mul_i32 s60, s%d, 14336' % S_W)
    p('v_lshlrev_b32 v%d, 4, v%d' % (HA, L))
    p('v_add_u32 v%d, s60, v%d' % (HA, HA))
    q = Prog()
    TA = [168, 184]
    def mvread(ks):
        t = TA[ks % 2]
        q('ds_read_b128 %s, v%d offset:%d' % (vr(t, 4), MVA, ks * 128))
        q('ds_read_b128 %s, v%d offset:%d' % (vr(t + 4, 4), MVA, ks * 128 + 16))
        q('ds_read_b128 %s, v%d offset:%d' % (vr(t + 8, 4), MVA, 1792 + ks * 128))
        q('ds_read_b128 %s, v%d offset:%d' % (vr(t + 12, 4), MVA, 1792 + ks * 128 + 16))
    mvread(0)
    for ks in range(14):
        if ks + 1 < 14: mvread(ks + 1)
        t = TA[ks % 2]
        for j in range(4):
            q('v_pk_mul_f32 %s, %s, %s' % (vr(t + 8 + 2 * j, 2), vr(t + 8 + 2 * j, 2), vr(V2, 2)))
        for j in range(4):
            q('v_pk_fma_f32 %s, %s, %s, %s' % (vr(t + 2 * j, 2), vr(XC + 8 * ks + 2 * j, 2), vr(t + 8 + 2 * j, 2), vr(t + 2 * j, 2)))
        hr = 4 * (ks % 4) + 0
        for j in range(4):
            q('v_cvt_pk_bf16_f32 v%d, v%d, v%d' % (hr + j, t + 2 * j, t + 2 * j + 1))
        q('ds_write_b128 v%d, %s offset:%d' % (HA, vr(hr, 4), H_OFF + ks * 1024))
    w, _ = insert_waits(q.ins)
    p.extend(w)
    p('s_waitcnt lgkmcnt(0)')
    p('s_barrier')
    p('v_lshlrev_b32 v%d, 4, v%d' % (HA, L))
    for f in range(56):
        p('ds_read_b128 %s, v%d offset:%d' % (ar(4 * f, 4), HA, H_OFF + f * 1024))
    VA = 232
    p('''
    v_bfe_u32 v206, v%d, 2, 2          ; r
    v_and_b32 v207, 1, v201            ; kq&1
    v_lshl_add_u32 v207, v207, 2, v206 ; f = r + 4*(kq&1)
    v_lshlrev_b32 v208, 11, v201       ; 2*kq*1024
    v_lshl_add_u32 v208, v206, 8, v208 ; + r*256
    v_and_b32 v209, 3, v%d             ; c
    v_lshl_add_u32 v208, v209, 3, v208 ; + c*8   (= (c>>1)*16 + (c&1)*8)
    v_add_u32 v208, s%d, v208          ; + w*8192
''' % (L, L, S_QD))
    for T in range(8):
        p('v_xor_b32 v209, %d, v207' % T)
        p('v_lshl_add_u32 v%d, v209, 5, v208' % (VA + T))
    p('s_waitcnt lgkmcnt(0)')
    p('s_barrier')
    stamp(p, o, 1)
    if getattr(o, 'dump', '') == 'h':
        p('''
    s_lshl_b32 s60, s2, 2
    s_add_u32 s60, s60, s%d
    s_lshl_b32 s60, s60, 16
    s_add_u32 s60, s60, 0x2000000
    v_lshlrev_b32 v200, 4, v%d
    v_add_u32 v200, s60, v200
''' % (S_W, VLANE))
        for n in range(56):
            if n % 4 == 0 and n: p('v_add_u32 v200, 0x1000, v200')
            p('buffer_store_dwordx4 %s, v200, s[24:27], 0 offen offset:%d' % (ar(4 * n, 4), (n % 4) * 1024))
        p('s_waitcnt vmcnt(0)')
    return p, vm, VQ, VA

def qproj(o, vm, VQ, VA):
    p = Prog()
    N = 14 * 32
    sc = [[] for _ in range(N)]; mem = [[] for _ in range(N)]; val = [[] for _ in range(N)]
    def aread(n):
        st, T = n // 8, n % 8
        r = FR + 4 * (n % 4)
        off = QSLOT[st % 4]
        return st, T, r, off
    reads = []
    for n in range(14 * 8):
        st, T, r, off = aread(n)
        reads.append(['ds_read_b64_tr_b16 %s, v%d offset:%d' % (vr(r, 2), VA + T, 0),
                      'ds_read_b64_tr_b16 %s, v%d offset:%d' % (vr(r + 2, 2), VA + T, 1024)])
    pre = Prog()
    for T in range(8):
        pre('v_add_u32 v%d, %d, v%d' % (VA + T, QSLOT[0], VA + T))
    pre(vm.wait('wq0'))
    for n in range(3):
        for s in reads[n]: pre(s)
    for n in range(14 * 8):
        st, T = n // 8, n % 8
        g = 4 * (n - 3)
        if n >= 3:
            mem[g] += reads[n]
        if st + 1 < 14:
            d = QSLOT[(st + 1) % 4] - QSLOT[st % 4]
            upd = 'v_add_u32 v%d, %s, v%d' % (VA + T, ('0x%x' % (d & 0xffffffff)), VA + T)
            if n >= 3: val[g + 1].append(upd)
            else: val[n + 1].append(upd)
    for st in range(14):
        base = st * 32
        lst = None
        if st <= 10:
            lst = wq_dma(st + 3, vm, VQ)
            post = ['v_add_u32 v%d, 0x40000, v%d' % (VQ[0], VQ[0]), 'v_add_u32 v%d, 0x40000, v%d' % (VQ[1], VQ[1])]
        elif st >= 12:
            lst = [(s if s.startswith('s_') else (s, 'k%d' % (st - 12))) for s in dma(o, st - 12, 0, True, False)]
            post = ['v_add_u32 v%d, 0x8000, v%d' % (VOFF, VOFF)]
        if lst:
            gi = 0
            gaps = [base + 2 + 4 * i for i in range(8)]
            for s in lst:
                if isinstance(s, tuple):
                    mem[gaps[gi]].append(s); gi += 1
                else:
                    sc[gaps[gi] - 1].append(s)
            for i, s in enumerate(post):
                val[base + 31].append(s)
    p.extend(pre)
    for gidx in range(N):
        st, rem = gidx // 32, gidx % 32
        T, qt = rem // 4, rem % 4
        n = st * 8 + T
        acc = (T * 4 + qt) * 4
        c = '0' if st == 0 else vr(acc, 4)
        m = 'v_mfma_f32_16x16x32_bf16 %s, %s, %s, %s' % (vr(acc, 4), vr(FR + 4 * (n % 4), 4), ar((qt * 14 + st) * 4, 4), c)
        p(m)
        if gidx + 1 < N:
            st2, rem2 = (gidx + 1) // 32, (gidx + 1) % 32
            if rem2 % 4 == 0:
                n2 = st2 * 8 + rem2 // 4
                p('.need v_mfma_f32_16x16x32_bf16 v[0:3], %s, v[0:3], 0' % vr(FR + 4 * (n2 % 4), 4))
        if rem == 20 and st + 1 < 14:
            p(vm.wait('wq%d' % (st + 1)))
        if st == 11 and rem == 31:
            p('s_barrier')
        for s in sc[gidx]: p(s)
        for s in mem[gidx]:
            if isinstance(s, tuple):
                p(s[0]); vm.add(s[1])
            else: p(s)
        for s in val[gidx]: p(s)
    return p

def kv_addresses(o):
    p = Prog()
    L = VLANE
    p('''
    s_mul_i32 s61, s%d, %d
    s_lshl_b32 s62, s%d, 14
    s_lshl_b32 s63, s%d, 13
    s_add_u32 s62, s62, s63
    v_lshlrev_b32 v%d, 4, v%d
    v_add_u32 v%d, s62, v%d
''' % (S_S, HALF, S_S, S_QH, VOFF, L, VOFF, VOFF))
    p('''
    v_and_b32 v240, 7, v%d
    v_mul_u32_u24 v240, %d, v240
    v_bfe_u32 v241, v%d, 3, 1
    v_lshlrev_b32 v241, 9, v241
    v_add_u32 v240, v240, v241
    v_lshrrev_b32 v241, 4, v%d
    v_lshlrev_b32 v241, 4, v241
    v_add_u32 v240, v240, v241
    v_add_u32 v%d, s61, v240
    v_lshrrev_b32 v240, 2, v%d
    v_and_b32 v241, 7, v240
    v_mul_u32_u24 v241, %d, v241
    v_lshrrev_b32 v240, 3, v240
    v_lshlrev_b32 v240, 9, v240
    v_add_u32 v240, v240, v241
    v_and_b32 v241, 3, v%d
    v_lshlrev_b32 v241, 3, v241
    v_add_u32 v240, v240, v241
    v_add_u32 v240, s61, v240
    v_add_u32 v%d, %d, v240
''' % (L, BLK, L, L, VK, L, BLK, L, VV, VBASE))
    return p

def qexchange(o, vm):
    p = Prog()
    L = VLANE
    p('s_nop 7')
    p('s_barrier')
    p('''
    v_and_b32 v200, 15, v%d
    v_lshrrev_b32 v201, 4, v%d
    v_mul_u32_u24 v202, 1056, v200
    v_lshl_add_u32 v202, v201, 3, v202
    s_lshl_b32 s60, s%d, 8
    s_add_u32 s60, s60, %d
    v_add_u32 v202, s60, v202
    s_mov_b32 s61, 0x%x
''' % (L, L, S_W, QX, 0x3db8aa3b))
    q = Prog()
    k = 0
    for T in range(8):
        for qt in range(4):
            a = (T * 4 + qt) * 4
            t = 128 + 2 * (k % 8)
            for r in range(4):
                q('v_mul_f32 v%d, s61, v%d' % (a + r, a + r))
            q('v_cvt_pk_bf16_f32 v%d, v%d, v%d' % (t, a, a + 1))
            q('v_cvt_pk_bf16_f32 v%d, v%d, v%d' % (t + 1, a + 2, a + 3))
            q('ds_write_b64 v202, %s offset:%d' % (vr(t, 2), qt * 16 * 1056 + T * 32))
            k += 1
    p.extend(q)
    p('s_waitcnt lgkmcnt(0)')
    p('s_barrier')
    p('''
    s_mul_i32 s60, s%d, %d
    s_add_u32 s60, s60, %d
    v_mul_u32_u24 v202, 1056, v200
    v_lshl_add_u32 v202, v201, 4, v202
    v_add_u32 v202, s60, v202
''' % (S_QH, 32 * 1056, QX))
    for h in range(2):
        for qt in range(2):
            b = 2 * h + qt
            for ks in range(8):
                p('ds_read_b128 %s, v202 offset:%d' % (vr(32 * b + 4 * ks, 4), qt * 16 * 1056 + h * 512 + ks * 64))
    p(vm.wait('k1'))
    p('s_waitcnt lgkmcnt(0)')
    p('s_barrier')
    return p

def attn_prologue(o):
    p = Prog()
    p('v_add_u32 v%d, 0xffff0000, v%d' % (VOFF, VOFF))
    p('s_nop 0')
    for s in dma(o, 0, 0, False, True, nop=True): p(s)
    p('v_add_u32 v%d, 0x8000, v%d' % (VOFF, VOFF))
    p('''
    s_add_u32 s8, s8, 0x8000
    s_addc_u32 s9, s9, 0
    s_sub_u32 s10, s10, 0x8000
    s_add_u32 s12, s12, 0x8000
    s_addc_u32 s13, s13, 0
    s_sub_u32 s14, s14, 0x8000
''')
    q = Prog()
    qk = qk_list(o, czero=True)
    for n in range(2):
        for s in kread(o, n, 0): q(s)
    for sl in range(64):
        if sl % 8 == 0 and sl // 8 + 1 < 8:
            for s in kread(o, 2 * (sl // 8 + 1), 0) + kread(o, 2 * (sl // 8 + 1) + 1, 0): q(s)
        q(qk[sl])
    w, _ = insert_waits(q.ins)
    p.extend(w)
    p('s_nop 7')
    t = TMP
    for b in range(4):
        max8(p, t + b, b)
    for b in range(4):
        xreduce(p, t + b, t + 4, 'v_max_f32')
    for b in range(4):
        for r in range(4):
            p('v_sub_f32 v%d, 0, v%d' % (NEGM + 4 * b + r, t + b))
        for a in range(2):
            for r in range(4):
                p('v_sub_f32 v%d, v%d, v%d' % (S(a, b) + r, S(a, b) + r, t + b))
    for i in range(4):
        p('v_mov_b32 v%d, 0' % (LREG[1] + i))
    for s in exps(o, 0, 0, 1, 0): p(s)
    for s in exps(o, 1, 0, 1, 0): p(s)
    p('s_waitcnt vmcnt(0) lgkmcnt(0)')
    p('s_barrier')
    for n in range(2):
        for s in kread(o, n, 1): p(s)
    p('s_waitcnt lgkmcnt(0)')
    return p

def attn_loop(o):
    p = Prog()
    first = A.iteration(o, 0, 'f', first_pv=True)
    w0, st0 = insert_waits(first.ins)
    p.extend(w0)
    p('s_mov_b32 s%d, 14' % S_CNT)
    p('.p2align 6')
    p('L_loop:')
    body = Prog()
    body.extend(A.iteration(o, 1, 'a'))
    body.extend(A.iteration(o, 0, 'b'))
    w1, st1 = insert_waits(body.ins, st0)
    w, st2 = insert_waits(body.ins, st1)
    assert st2 == st1 and [i.text for i in w] == [i.text for i in w1], 'not steady'
    loop_ins = w
    p.extend(w)
    p('s_sub_u32 s%d, s%d, 1' % (S_CNT, S_CNT))
    p('s_cmp_lg_u32 s%d, 0' % S_CNT)
    p('s_cbranch_scc1 L_loop')
    tail = Prog()
    tail.extend(A.iteration(o, 1, 'c'))
    tail.extend(A.iteration(o, 0, 'd', do_dma_k=False, next_k=False))
    tail('s_waitcnt vmcnt(0) lgkmcnt(0)')
    tail('s_barrier')
    tail.extend(A.iteration(o, 1, 'e', do_qk=False, do_dma_k=False, do_dma_v=False, next_k=False))
    w, _ = insert_waits(tail.ins, st1)
    p.extend(w)
    return p, w0, loop_ins, w

def combine(o, s):
    p = Prog()
    L = VLANE
    own = s; oth = 1 - s
    k = 0
    for dt in range(16):
        for qt in range(2):
            b = 2 * oth + qt
            p('ds_write_b128 v200, %s offset:%d' % (ar((dt * 4 + b) * 4, 4), (dt * 2 + qt) * 1024))
    p('s_waitcnt lgkmcnt(0)')
    p('s_barrier')
    q = Prog()
    q('ds_read_b128 v[204:207], v203')
    q('ds_read_b128 v[208:211], v203 offset:16')
    for dt in range(16):
        for qt in range(2):
            q('ds_read_b128 %s, v201 offset:%d' % (vr((dt * 2 + qt) * 4, 4), (dt * 2 + qt) * 1024))
    AL = 212; BE = 216
    for qt in range(2):
        b = 2 * own + qt
        mo = 224 + b
        mp = 204 + b
        lo = 228 + b; lp = 208 + b
        t = 220
        q('v_min_f32 v%d, v%d, v%d' % (t, mo, mp))
        q('v_sub_f32 v%d, v%d, v%d' % (t + 1, t, mo))
        q('v_sub_f32 v%d, v%d, v%d' % (t + 2, t, mp))
        q('v_exp_f32 v%d, v%d' % (t + 1, t + 1))
        q('v_exp_f32 v%d, v%d' % (t + 2, t + 2))
        q('s_nop 0')
        q('v_mul_f32 v%d, v%d, v%d' % (t + 3, t + 1, lo))
        q('v_fmac_f32 v%d, v%d, v%d' % (t + 3, t + 2, lp))
        q('v_rcp_f32 v%d, v%d' % (t + 3, t + 3))
        q('s_nop 0')
        q('v_mul_f32 v%d, v%d, v%d' % (AL + 2 * qt, t + 1, t + 3))
        q('v_mul_f32 v%d, v%d, v%d' % (BE + 2 * qt, t + 2, t + 3))
        q('v_mov_b32 v%d, v%d' % (AL + 2 * qt + 1, AL + 2 * qt))
        q('v_mov_b32 v%d, v%d' % (BE + 2 * qt + 1, BE + 2 * qt))
    k = 0
    for i in range(8):
        for qt in range(2):
            b = 2 * own + qt
            for y in range(2):
                dt = 2 * i + y
                rv = (dt * 2 + qt) * 4
                t = 192 + 4 * (k % 2); k += 1
                for r in range(4):
                    q('v_accvgpr_read_b32 v%d, a%d' % (t + r, (dt * 4 + b) * 4 + r))
                q('v_pk_mul_f32 %s, %s, %s' % (vr(rv, 2), vr(rv, 2), vr(BE + 2 * qt, 2)))
                q('v_pk_mul_f32 %s, %s, %s' % (vr(rv + 2, 2), vr(rv + 2, 2), vr(BE + 2 * qt, 2)))
                q('v_pk_fma_f32 %s, %s, %s, %s' % (vr(rv, 2), vr(t, 2), vr(AL + 2 * qt, 2), vr(rv, 2)))
                q('v_pk_fma_f32 %s, %s, %s, %s' % (vr(rv + 2, 2), vr(t + 2, 2), vr(AL + 2 * qt, 2), vr(rv + 2, 2)))
                f = 128 + (i * 2 + qt) * 4 + 2 * y
                q('v_cvt_pk_bf16_f32 v%d, v%d, v%d' % (f, rv, rv + 1))
                q('v_cvt_pk_bf16_f32 v%d, v%d, v%d' % (f + 1, rv + 2, rv + 3))
            q('ds_write_b128 v201, %s offset:%d' % (vr(128 + (i * 2 + qt) * 4, 4), (i * 2 + qt) * 1024))
    w, _ = insert_waits(q.ins)
    p.extend(w)
    return p

def wo_dma(step, slot, VW):
    out = []
    for jj in range(7):
        out.append('s_add_u32 m0, s%d, %d' % (S_T0 + slot, jj * 1024))
        out.append(('buffer_load_dwordx4 v%d, s[%d:%d], s%d offen lds' % (VW + jj, S_WO, S_WO + 3, S_WST), 'wo%d' % step))
    return out

def epilogue(o):
    p = Prog()
    L = VLANE
    vm = VmTracker()
    VW = 232
    p('s_nop 7')
    for b in range(4):
        p('v_mov_b32 v%d, v%d' % (224 + b, NEGM + 4 * b))
        p('v_mov_b32 v%d, v%d' % (228 + b, LREG[1] + b))
    for b in range(4):
        xreduce(p, 228 + b, TMP)
    p('s_mul_i32 s60, s%d, 224' % S_W)
    p('s_mov_b32 s61, 0x124925')
    for jj in range(7):
        p('v_add_u32 v200, %d, v%d' % (64 * jj, L))
        p('v_mul_u32_u24 v201, s61, v200')
        p('v_lshrrev_b32 v201, 24, v201')
        p('v_mul_u32_u24 v202, 14, v201')
        p('v_sub_u32 v202, v200, v202')
        p('v_mul_u32_u24 v201, 896, v201')
        p('v_lshl_add_u32 v201, v202, 4, v201')
        p('v_add_u32 v%d, s60, v201' % (VW + jj))
    p('''
    s_mul_i32 s60, s%d, 7168
    s_add_u32 s60, s60, %d
    s_lshl_b32 s61, s%d, 15
    s_add_u32 s61, s61, 16384
    s_add_u32 s62, s61, 7168
    s_mov_b32 s%d, 0
''' % (S_W, WO0, S_W, S_WST))
    emit_dma(p, wo_dma(0, 0, VW), vm)
    p('s_mov_b32 s%d, 28672' % S_WST)
    p('''
    v_and_b32 v203, 15, v%d
    v_lshlrev_b32 v203, 5, v203         ; n*32
    s_lshl_b32 s63, s%d, 9
    s_add_u32 s63, s63, %d
    v_add_u32 v202, s63, v203           ; own stats address
    s_xor_b32 s63, s%d, 2
    s_lshl_b32 s64, s63, 9
    s_add_u32 s64, s64, %d
    v_add_u32 v203, s64, v203           ; partner stats address
    v_lshlrev_b32 v200, 4, v%d
    s_lshl_b32 s63, s63, 15
    v_add_u32 v201, s63, v200           ; partner XR + lane*16
    s_lshl_b32 s63, s%d, 15
    v_add_u32 v200, s63, v200           ; own XR + lane*16
    s_barrier
    ds_write_b128 v202, v[224:227]
    ds_write_b128 v202, v[228:231] offset:16
    s_cmp_eq_u32 s%d, 0
    s_cbranch_scc0 L_comb1
''' % (L, S_W, ST, S_W, ST, L, S_W, S_S))
    c0 = combine(o, 0); c1 = combine(o, 1)
    p.extend(c0)
    p('s_branch L_combdone')
    p('L_comb1:')
    p.extend(c1)
    p('L_combdone:')
    p('s_waitcnt lgkmcnt(0)')
    p('s_barrier')
    emit_dma(p, wo_dma(1, 1, VW), vm)
    p('s_mov_b32 s%d, %d' % (S_WST, 2 * 28672))
    AW = 240
    BW = 244
    p('''
    v_lshrrev_b32 v200, 2, v%d          ; 4kq + r
    v_mul_u32_u24 v200, 224, v200
    v_and_b32 v201, 3, v%d
    v_lshl_add_u32 v200, v201, 3, v200
    v_add_u32 v%d, s60, v200
    v_add_u32 v%d, s61, v200
    v_add_u32 v%d, s62, v200
    v_lshlrev_b32 v200, 4, v%d
''' % (L, L, AW, AW + 1, AW + 2, L))
    for r in range(4):
        p('v_add_u32 v%d, %d, v200' % (BW + r, r * 32768))
    def bread(ks, qtile):
        h, i = ks >> 3, ks & 7
        qh, qt = qtile >> 1, qtile & 1
        reg = qh + 2 * (1 - h)
        return 'ds_read_b128 %s, v%d offset:%d' % (vr(112 + 16 * (ks % 2) + 4 * qtile, 4), BW + reg, (i * 2 + qt) * 1024)
    def aread(n):
        ks, T = n // 7, n % 7
        r = FR + 4 * (n % 4)
        return ['ds_read_b64_tr_b16 %s, v%d offset:%d' % (vr(r + 2 * a, 2), AW + ks % 3, a * 3584 + T * 32) for a in range(2)]
    N = 16 * 28
    sc = [[] for _ in range(N)]; mem = [[] for _ in range(N)]; val = [[] for _ in range(N)]
    pre = Prog()
    pre(vm.wait('wo0'))
    for qtile in range(4): pre(bread(0, qtile))
    for n in range(3):
        for s in aread(n): pre(s)
    for n in range(3, 16 * 7):
        mem[4 * (n - 3)] += aread(n)
    for ks in range(15):
        for qtile in range(4):
            mem[28 * ks + 4 * qtile + 5 + 8].append(bread(ks + 1, qtile))
    for ks in range(14):
        lst = wo_dma(ks + 2, (ks + 2) % 3, VW)
        gaps = [28 * ks + 2 + 4 * i for i in range(7)]
        gi = 0
        for s in lst:
            if isinstance(s, tuple):
                mem[gaps[gi]].append(s); gi += 1
            else:
                sc[gaps[gi] - 1].append(s)
        sc[28 * ks + 27].append('s_add_u32 s%d, s%d, 28672' % (S_WST, S_WST))
    body = Prog()
    body.extend(pre)
    for gidx in range(N):
        ks, rem = gidx // 28, gidx % 28
        T, qt = rem // 4, rem % 4
        n = ks * 7 + T
        acc = (T * 4 + qt) * 4
        c = '0' if ks == 0 else vr(acc, 4)
        body('v_mfma_f32_16x16x32_bf16 %s, %s, %s, %s' % (vr(acc, 4), vr(FR + 4 * (n % 4), 4), vr(112 + 16 * (ks % 2) + 4 * qt, 4), c))
        if gidx + 1 < N:
            ks2, rem2 = (gidx + 1) // 28, (gidx + 1) % 28
            n2 = ks2 * 7 + rem2 // 4
            body('.need v_mfma_f32_16x16x32_bf16 v[0:3], %s, %s, 0' % (vr(FR + 4 * (n2 % 4), 4), vr(112 + 16 * (ks2 % 2) + 4 * (rem2 % 4), 4)))
        if rem == 16 and ks + 1 < 16:
            body(vm.wait('wo%d' % (ks + 1)))
        for s in sc[gidx]: body(s)
        for s in mem[gidx]:
            if isinstance(s, tuple):
                body(s[0]); vm.add(s[1])
            else: body(s)
        for s in val[gidx]: body(s)
    w, _ = insert_waits(body.ins)
    p.extend(w)
    stamp(p, o, 6)
    p('''
    s_mov_b32 s68, s24
    s_mov_b32 s69, s25
    s_lshl_b32 s60, s%d, 11
    s_lshl_b32 s61, s%d, 6
    s_add_u32 s60, s60, s61
    s_mul_i32 s60, s60, 896
    s_add_u32 s60, s60, %d
    s_add_u32 s68, s68, s60
    s_addc_u32 s69, s69, 0
    s_mov_b32 s70, 57344
    s_mov_b32 s71, 0x20000
    v_and_b32 v200, 15, v%d
    v_mul_u32_u24 v200, 896, v200
    v_lshrrev_b32 v201, 4, v%d
    v_lshl_add_u32 v200, v201, 3, v200
    s_mul_i32 s60, s%d, 224
    v_add_u32 v200, s60, v200
    s_mov_b32 s61, 14336
    s_mov_b32 s62, 28672
    s_mov_b32 s63, 43008
    s_nop 4
''' % (S_G, S_QB, WS_PART, L, L, S_W))
    k = 0
    for qt in range(4):
        for T in range(7):
            acc = (T * 4 + qt) * 4
            t = 128 + 2 * (k % 16); k += 1
            p('v_cvt_pk_bf16_f32 v%d, v%d, v%d' % (t, acc, acc + 1))
            p('v_cvt_pk_bf16_f32 v%d, v%d, v%d' % (t + 1, acc + 2, acc + 3))
            so = ('0', 's61', 's62', 's63')[qt]
            p('buffer_store_dwordx2 %s, v200, s[68:71], %s offen offset:%d' % (vr(t, 2), so, T * 32))
    return p

def build_k1(o):
    p = Prog()
    p('k1_kernel:')
    pro, vm, VQ, VA = prologue(o)
    p.extend(pro)
    p.extend(kv_addresses(o))
    qp = qproj(o, vm, VQ, VA)
    w, _ = insert_waits(qp.ins)
    p.extend(w)
    stamp(p, o, 2)
    p.extend(qexchange(o, vm))
    stamp(p, o, 3)
    if getattr(o, 'dump', '') == 'q':
        p('''
    s_lshl_b32 s60, s2, 2
    s_add_u32 s60, s60, s%d
    s_lshl_b32 s60, s60, 15
    s_add_u32 s60, s60, 0x2000000
    v_lshlrev_b32 v200, 4, v%d
    v_add_u32 v200, s60, v200
''' % (S_W, VLANE))
        for n in range(32):
            if n % 4 == 0 and n: p('v_add_u32 v200, 0x1000, v200')
            p('buffer_store_dwordx4 %s, v200, s[24:27], 0 offen offset:%d' % (vr(4 * n, 4), (n % 4) * 1024))
        p('s_waitcnt vmcnt(0)')
    p.extend(attn_prologue(o))
    stamp(p, o, 4)
    if o.stamps: p('s_waitcnt lgkmcnt(0)')
    lp, first, loop_ins, tail = attn_loop(o)
    p.extend(lp)
    stamp(p, o, 5)
    if getattr(o, 'dump', '') == 'o':
        p('s_nop 7')
        p('''
    s_lshl_b32 s60, s2, 18
    s_lshl_b32 s61, s%d, 16
    s_add_u32 s60, s60, s61
    s_add_u32 s60, s60, 0x2000000
    v_lshlrev_b32 v210, 4, v%d
    v_add_u32 v210, s60, v210
''' % (S_W, VLANE))
        for r4 in range(64):
            if r4 % 4 == 0 and r4: p('v_add_u32 v210, 0x1000, v210')
            p('buffer_store_dwordx4 %s, v210, s[24:27], 0 offen offset:%d' % (ar(4 * r4, 4), (r4 % 4) * 1024))
        p('''
    s_lshl_b32 s60, s2, 2
    s_add_u32 s60, s60, s%d
    s_lshl_b32 s60, s60, 11
    s_add_u32 s60, s60, 0x8000000
    v_lshlrev_b32 v210, 2, v%d
    v_add_u32 v210, s60, v210
''' % (S_W, VLANE))
        for b in range(4):
            p('buffer_store_dword v%d, v210, s[24:27], 0 offen offset:%d' % (NEGM + 4 * b, 256 * b))
            p('buffer_store_dword v%d, v210, s[24:27], 0 offen offset:%d' % (LREG[1] + b, 1024 + 256 * b))
        p('s_waitcnt vmcnt(0)')
    p.extend(epilogue(o))
    if o.stamps:
        stamp(p, o, 7)
        p('s_waitcnt lgkmcnt(0)')
        p('''
    s_lshl_b32 s60, s2, 2
    s_add_u32 s60, s60, s%d
    s_lshl_b32 s60, s60, 6
    s_add_u32 s60, s60, 0x%x
    v_mov_b32 v1, s60
''' % (S_W, WS_STAMP))
        for k in range(8):
            p('v_mov_b32 v%d, s%d' % (2 + k, S_STAMP + 2 * k))
        p('''
    v_cmp_eq_u32 vcc, 0, v%d
    s_and_saveexec_b64 s[60:61], vcc
    s_cbranch_execz L_nostamp
    buffer_store_dwordx4 v[2:5], v1, s[24:27], 0 offen
    buffer_store_dwordx4 v[6:9], v1, s[24:27], 0 offen offset:16
L_nostamp:
    s_mov_b64 exec, s[60:61]
''' % VLANE)
    p('s_waitcnt vmcnt(0)')
    p('L_end_k1:')
    p('s_endpgm')
    for tag, par in (('f', 0), ('a', 1), ('b', 0), ('c', 1), ('d', 0)):
        p('L_rare_%s:' % tag)
        p('s_call_b64 s[%d:%d], L_fb_%d' % (S_RET, S_RET + 1, par))
        p('s_branch L_back_%s' % tag)
    p.extend(A.fallback(o, 0))
    p.extend(A.fallback(o, 1))
    probs = check_hazards(first + loop_ins + loop_ins + tail, 'loop') + check_hazards(p.ins, 'all')
    return p, probs

KD = '''
.amdhsa_kernel %s
  .amdhsa_next_free_vgpr %d
  .amdhsa_next_free_sgpr %d
  .amdhsa_accum_offset %d
  .amdhsa_group_segment_fixed_size 0
  .amdhsa_kernarg_size 120
  .amdhsa_user_sgpr_count 2
  .amdhsa_user_sgpr_kernarg_segment_ptr 1
  .amdhsa_system_sgpr_workgroup_id_x 1
  .amdhsa_float_denorm_mode_32 3
.end_amdhsa_kernel
'''

if __name__ == '__main__':
    import sys
    o = A.Opt()
    o.kgap = 1
    o.dma_gaps = [3, 7, 11, 15, 19, 23, 27, 31, 35, 39, 43, 47, 51, 55, 59, 63]
    o.stamps = 1
    out = sys.argv[1]
    for kv in sys.argv[2:]:
        k, v = kv.split('=')
        try: v = int(v, 0)
        except ValueError:
            if v.startswith('['): v = eval(v)
        setattr(o, k, v)
    p, probs = build_k1(o)
    for pr in probs[:20]: print(pr)
    print('hazards', len(probs), 'instrs', len(p.ins))
    hdr = '''; @launch kernel=k1_kernel grid=(256,1,1) block=(256,1,1) lds=163840
.amdgcn_target "amdgcn-amd-amdhsa--gfx950"
.text
.globl k1_kernel
.p2align 8
.type k1_kernel,@function
'''
    ftr = '.section .rodata,"a"\n.p2align 6' + KD % ('k1_kernel', 512, 96, 256)
    open(out, 'w').write(hdr + p.text() + ftr)
```

```python
from asmlib import *
from k1 import WS_MOD, WS_R, WS_IDX, WS_ACT, WS_H2, WS_PART, xreduce
def vr(a, n=1): return 'v%d' % a if n == 1 else 'v[%d:%d]' % (a, a + n - 1)

def srd(p, s, ptr_lo, nbytes, off=None):
    if off is None:
        if s != ptr_lo:
            p('s_mov_b32 s%d, s%d' % (s, ptr_lo)); p('s_mov_b32 s%d, s%d' % (s + 1, ptr_lo + 1))
    else:
        p('s_add_u32 s%d, s%d, %s' % (s, ptr_lo, off)); p('s_addc_u32 s%d, s%d, 0' % (s + 1, ptr_lo + 1))
    p('s_mov_b32 s%d, %s' % (s + 2, nbytes)); p('s_mov_b32 s%d, 0x20000' % (s + 3))

def wave_reduce(p, r, t, op='v_add_f32'):
    for k in (1, 2, 4, 8):
        p('s_nop 1')
        p('%s_dpp v%d, v%d, v%d row_ror:%d row_mask:0xf bank_mask:0xf' % (op, r, r, r, k))
    p('s_nop 0')
    xreduce(p, r, t, op)

def wave_reduce_multi(p, regs, temps, op='v_add_f32'):
    for k in (1, 2, 4, 8):
        if len(regs) < 3: p('s_nop %d' % (2 - len(regs)))
        for r in regs:
            p('%s_dpp v%d, v%d, v%d row_ror:%d row_mask:0xf bank_mask:0xf' % (op, r, r, r, k))
    for sw in ('v_permlane16_swap_b32', 'v_permlane32_swap_b32'):
        p('s_nop 0')
        for r, t in zip(regs, temps): p('v_mov_b32 v%d, v%d' % (t, r))
        p('s_nop 1')
        for r, t in zip(regs, temps): p('%s v%d, v%d' % (sw, r, t))
        p('s_nop 1')
        for r, t in zip(regs, temps): p('%s v%d, v%d, v%d' % (op, r, r, t))

def build_k0():
    p = Prog()
    p('''
k0_kernel:
    s_cmp_ge_u32 s2, 42
    s_cbranch_scc1 L_end_k0
    s_load_dwordx4 s[4:7], s[0:1], 80
    s_load_dwordx2 s[24:25], s[0:1], 112
    v_and_b32 v1, 7, v0            ; cc
    v_lshrrev_b32 v2, 3, v0        ; kg 0..31
    s_waitcnt lgkmcnt(0)
''')
    srd(p, 8, 4, 896)
    srd(p, 12, 6, 448 * 5376)
    srd(p, 24, 24, 10752)
    p('''
    v_mul_u32_u24 v3, 5376, v2
    v_lshl_add_u32 v3, v1, 4, v3
    s_lshl_b32 s16, s2, 7
    v_add_u32 v3, s16, v3
    v_lshlrev_b32 v4, 1, v2        ; c offset
''')
    for i in range(14):
        p('buffer_load_ushort v%d, v4, s[8:11], 0 offen offset:%d' % (10 + i, 64 * i))
    p('s_mov_b32 s17, %d' % (32 * 5376))
    for i in range(14):
        p('buffer_load_dwordx4 %s, v3, s[12:15], 0 offen' % vr(32 + 4 * i, 4))
        if i < 13: p('v_add_u32 v3, s17, v3')
    p('s_waitcnt vmcnt(14)')
    for i in range(14):
        p('v_lshlrev_b32 v%d, 16, v%d' % (10 + i, 10 + i))
    for i in range(14):
        p('v_mul_f32 v%d, 0xbfb8aa3b, v%d' % (96 + i, 10 + i))
    for i in range(14):
        p('v_exp_f32 v%d, v%d' % (96 + i, 96 + i))
    for i in range(14):
        p('v_add_f32 v%d, 1.0, v%d' % (96 + i, 96 + i))
    for i in range(14):
        p('v_rcp_f32 v%d, v%d' % (96 + i, 96 + i))
    for i in range(14):
        p('v_mul_f32 v%d, v%d, v%d' % (10 + i, 10 + i, 96 + i))
    for i in range(14):
        p('v_cvt_pk_bf16_f32 v%d, v%d, 0' % (10 + i, 10 + i))
    for i in range(14):
        p('v_lshlrev_b32 v%d, 16, v%d' % (96 + i, 10 + i))
    for j in range(8): p('v_mov_b32 v%d, 0' % (112 + j))
    p('s_waitcnt vmcnt(0)')
    for i in range(14):
        for j in range(8):
            w = 32 + 4 * i + j // 2
            sel = (10 + i) if j % 2 == 0 else (96 + i)
            p('v_dot2_f32_bf16 v%d, v%d, v%d, v%d' % (112 + j, w, sel, 112 + j))
    p('s_nop 2')
    regs = [112 + j for j in range(8)]; temps = [120 + j for j in range(8)]
    for r in regs:
        p('v_add_f32_dpp v%d, v%d, v%d row_ror:8 row_mask:0xf bank_mask:0xf' % (r, r, r))
    for sw in ('v_permlane16_swap_b32', 'v_permlane32_swap_b32'):
        for r, t in zip(regs, temps): p('v_mov_b32 v%d, v%d' % (t, r))
        p('s_nop 1')
        for r, t in zip(regs, temps): p('%s v%d, v%d' % (sw, r, t))
        p('s_nop 1')
        for r, t in zip(regs, temps): p('v_add_f32 v%d, v%d, v%d' % (r, r, t))
    p('''
    v_lshrrev_b32 v5, 6, v0
    v_lshlrev_b32 v5, 8, v5
    v_lshl_add_u32 v5, v1, 5, v5
    ds_write_b128 v5, v[112:115]
    ds_write_b128 v5, v[116:119] offset:16
    s_waitcnt lgkmcnt(0)
    s_barrier
    v_cmp_gt_u32 vcc, 64, v0
    s_and_saveexec_b64 s[18:19], vcc
    s_cbranch_execz L_k0_done
    v_lshlrev_b32 v5, 2, v0
    ds_read_b32 v6, v5
    ds_read_b32 v7, v5 offset:256
    ds_read_b32 v8, v5 offset:512
    ds_read_b32 v9, v5 offset:768
    s_waitcnt lgkmcnt(0)
    v_add_f32 v6, v6, v7
    v_add_f32 v8, v8, v9
    v_add_f32 v6, v6, v8
    v_cvt_pk_bf16_f32 v6, v6, 0
    v_lshlrev_b32 v6, 16, v6
    s_mul_i32 s20, s2, 37
    s_lshr_b32 s20, s20, 8
    s_cmp_eq_u32 s20, 1
    s_cselect_b32 s21, 1, 0
    s_cmp_eq_u32 s20, 4
    s_cselect_b32 s21, 1, s21
    s_cmp_eq_u32 s21, 0
    s_cbranch_scc1 L_k0_store
    v_add_f32 v6, 1.0, v6
    v_cvt_pk_bf16_f32 v6, v6, 0
    v_lshlrev_b32 v6, 16, v6
L_k0_store:
    s_lshl_b32 s16, s2, 8
    v_add_u32 v5, s16, v5
    buffer_store_dword v6, v5, s[24:27], 0 offen
L_k0_done:
    s_mov_b64 exec, s[18:19]
    s_waitcnt vmcnt(0)
L_end_k0:
    s_endpgm
''')
    return p

def build_k2():
    p = Prog()
    p('''
k2_kernel:
    s_cmp_ge_u32 s2, 256
    s_cbranch_scc1 L_end_k2
    s_load_dwordx2 s[4:5], s[0:1], 0
    s_load_dwordx2 s[6:7], s[0:1], 48
    s_load_dwordx2 s[28:29], s[0:1], 96
    s_load_dwordx2 s[24:25], s[0:1], 112
    v_and_b32 v1, 63, v0
    v_lshrrev_b32 v2, 6, v0
    s_nop 0
    v_readfirstlane_b32 s3, v2
    s_lshl_b32 s41, s2, 3
    s_lshl_b32 s42, s3, 1
    s_add_u32 s41, s41, s42
    s_mul_i32 s42, s41, 896
    s_waitcnt lgkmcnt(0)
''')
    srd(p, 8, 4, 2048 * 896)
    srd(p, 12, 6, 896)
    srd(p, 16, 24, 8 * 2048 * 896, str(WS_PART))
    srd(p, 20, 24, 2048 * 896, str(WS_H2))
    srd(p, 32, 24, 10752)
    srd(p, 36, 24, 8192, str(WS_R))
    srd(p, 28, 28, 2048 * 896)
    p('''
    v_lshlrev_b32 v3, 4, v1            ; lane*16
    v_lshlrev_b32 v4, 5, v1
    v_mov_b32 v5, 0x40000000
    v_cmp_gt_u32 vcc, 56, v1
    s_nop 1
    v_cndmask_b32 v3, v5, v3, vcc
    v_cndmask_b32 v4, v5, v4, vcc
    v_cndmask_b32 v6, 0, 1.0, vcc
    v_add_u32 v7, s42, v3
''')
    for rr in range(2):
        for g in range(8):
            p('s_mov_b32 s40, %d' % (g * 2048 * 896 + rr * 896) if not (g == 0 and rr == 0) else 's_mov_b32 s40, 0')
            p('buffer_load_dwordx4 %s, v7, s[16:19], s40 offen' % vr(16 + rr * 40 + 4 * g, 4))
        p('buffer_load_dwordx4 %s, v7, s[8:11], 0 offen offset:%d' % (vr(16 + rr * 40 + 32, 4), rr * 896))
    for k, seg in enumerate((2, 3, 4, 5)):
        p('s_mov_b32 s40, %d' % (seg * 1792))
        p('buffer_load_dwordx4 %s, v4, s[32:35], s40 offen' % vr(96 + 8 * k, 4))
        p('buffer_load_dwordx4 %s, v4, s[32:35], s40 offen offset:16' % vr(100 + 8 * k, 4))
    p('buffer_load_dwordx4 v[128:131], v3, s[12:15], 0 offen')
    p('v_mov_b32 v8, 0x00003f80')
    p('v_mov_b32 v9, 0x3f800000')
    ACC = [136, 152]
    for rr in range(2):
        for j in range(8): p('v_mov_b32 v%d, 0' % (ACC[rr] + j))
    for rr in range(2):
        p('s_waitcnt vmcnt(%d)' % (9 + 1 + (9 if rr == 0 else 0)))
        for g in range(8):
            for j in range(8):
                p('v_dot2_f32_bf16 v%d, v%d, v%d, v%d' % (ACC[rr] + j, 16 + rr * 40 + 4 * g + j // 2, 8 + j % 2, ACC[rr] + j))
    p('s_waitcnt vmcnt(0)')
    X1 = [168, 184]
    for rr in range(2):
        xr = 16 + rr * 40 + 32
        for j in range(8):
            p('v_mul_f32 v%d, v%d, v%d' % (ACC[rr] + j, ACC[rr] + j, 96 + j))
        for j in range(8):
            p('v_dot2_f32_bf16 v%d, v%d, v%d, v%d' % (ACC[rr] + j, xr + j // 2, 8 + j % 2, ACC[rr] + j))
    p('s_nop 2')
    for rr in range(2):
        for j in range(0, 8, 2):
            p('v_cvt_pk_bf16_f32 v%d, v%d, v%d' % (200 + rr * 4 + j // 2, ACC[rr] + j, ACC[rr] + j + 1))
    for rr in range(2):
        for j in range(8):
            if j % 2 == 0: p('v_lshlrev_b32 v%d, 16, v%d' % (X1[rr] + j, 200 + rr * 4 + j // 2))
            else: p('v_and_b32 v%d, 0xffff0000, v%d' % (X1[rr] + j, 200 + rr * 4 + j // 2))
    SUM = [10, 11]
    for rr in range(2):
        p('v_add_f32 v%d, v%d, v%d' % (SUM[rr], X1[rr], X1[rr] + 1))
        for j in range(2, 8): p('v_add_f32 v%d, v%d, v%d' % (SUM[rr], SUM[rr], X1[rr] + j))
    wave_reduce_multi(p, SUM, [12, 13])
    XC = [16, 32]
    for rr in range(2):
        p('v_mul_f32 v%d, 0xbb124925, v%d' % (SUM[rr], SUM[rr]))
    for rr in range(2):
        for j in range(8):
            p('v_add_f32 v%d, v%d, v%d' % (XC[rr] + j, X1[rr] + j, SUM[rr]))
    VAR = [12, 13]
    for rr in range(2):
        p('v_mul_f32 v%d, v%d, v%d' % (VAR[rr], XC[rr], XC[rr]))
        for j in range(1, 8): p('v_fmac_f32 v%d, v%d, v%d' % (VAR[rr], XC[rr] + j, XC[rr] + j))
    for rr in range(2):
        p('v_mul_f32 v%d, v%d, v6' % (VAR[rr], VAR[rr]))
    wave_reduce_multi(p, VAR, [14, 15])
    for rr in range(2):
        p('v_mov_b32 v%d, 0x3727c5ac' % (14 + rr))
        p('v_fmac_f32 v%d, 0x3b124925, v%d' % (14 + rr, VAR[rr]))
    for rr in range(2):
        p('v_rsq_f32 v%d, v%d' % (VAR[rr], 14 + rr))
    p('s_nop 0')
    H = [48, 64]
    for rr in range(2):
        for j in range(8):
            p('v_mul_f32 v%d, v%d, v%d' % (XC[rr] + j, XC[rr] + j, VAR[rr]))
        for j in range(8):
            p('v_fma_f32 v%d, v%d, v%d, v%d' % (XC[rr] + j, XC[rr] + j, 112 + j, 104 + j))
        for j in range(0, 8, 2):
            p('v_cvt_pk_bf16_f32 v%d, v%d, v%d' % (H[rr] + j // 2, XC[rr] + j, XC[rr] + j + 1))
    for rr in range(2):
        p('buffer_store_dwordx4 %s, v7, s[20:23], 0 offen offset:%d' % (vr(H[rr], 4), rr * 896))
    RR = [14, 15]
    for rr in range(2):
        p('v_mov_b32 v%d, 0' % RR[rr])
    for j in range(4):
        for rr in range(2):
            p('v_dot2_f32_bf16 v%d, v%d, v%d, v%d' % (RR[rr], H[rr] + j, 128 + j, RR[rr]))
    for rr in range(2):
        for j in range(8):
            if j % 2 == 0: p('v_lshlrev_b32 v%d, 16, v%d' % (XC[rr] + j, H[rr] + j // 2))
            else: p('v_and_b32 v%d, 0xffff0000, v%d' % (XC[rr] + j, H[rr] + j // 2))
        for j in range(8):
            p('v_fma_f32 v%d, v%d, v%d, v%d' % (XC[rr] + j, XC[rr] + j, 120 + j, X1[rr] + j))
        for j in range(0, 8, 2):
            p('v_cvt_pk_bf16_f32 v%d, v%d, v%d' % (80 + rr * 4 + j // 2, XC[rr] + j, XC[rr] + j + 1))
        p('buffer_store_dwordx4 %s, v7, s[28:31], 0 offen offset:%d' % (vr(80 + rr * 4, 4), rr * 896))
    wave_reduce_multi(p, RR, [12, 13])
    p('''
    v_cvt_pk_bf16_f32 v14, v14, 0
    v_cvt_pk_bf16_f32 v15, v15, 0
    v_lshlrev_b32 v14, 16, v14
    v_lshlrev_b32 v15, 16, v15
    v_cmp_eq_u32 vcc, 1, v1
    s_nop 1
    v_cndmask_b32 v14, v14, v15, vcc
    v_add_u32 v2, s41, v1
    v_lshlrev_b32 v2, 2, v2
    v_cmp_gt_u32 vcc, 2, v1
    s_nop 1
    v_cndmask_b32 v2, v5, v2, vcc
    buffer_store_dword v14, v2, s[36:39], 0 offen
    s_waitcnt vmcnt(0)
L_end_k2:
    s_endpgm
''')
    return p

def top8(p, KEY, wave_lds, T):
    for rnd in range(8):
        p('v_max3_u32 v%d, v%d, v%d, v%d' % (T, KEY, KEY + 1, KEY + 2))
        p('v_max3_u32 v%d, v%d, v%d, v%d' % (T, T, KEY + 3, KEY + 4))
        p('v_max3_u32 v%d, v%d, v%d, v%d' % (T, T, KEY + 5, KEY + 6))
        p('v_max_u32 v%d, v%d, v%d' % (T, T, KEY + 7))
        wave_reduce(p, T, T + 1, 'v_max_u32')
        p('v_writelane_b32 v%d, s3, 0' % (T + 2) if False else 's_nop 0')
        p('v_readfirstlane_b32 s%d, v%d' % (64 + rnd, T))
        if rnd < 7:
            for j in range(8):
                p('v_cmp_eq_u32 vcc, v%d, v%d' % (KEY + j, T))
                p('s_nop 1')
                p('v_cndmask_b32 v%d, v%d, 0, vcc' % (KEY + j, KEY + j) if False else 'v_cndmask_b32_e64 v%d, v%d, 0, vcc' % (KEY + j, KEY + j))
    for rnd in range(8):
        p('v_mov_b32 v%d, s%d' % (KEY + rnd, 64 + rnd))
    p('ds_write_b128 v%d, %s' % (wave_lds, vr(KEY, 4)))
    p('ds_write_b128 v%d, %s offset:16' % (wave_lds, vr(KEY + 4, 4)))
    p('s_waitcnt lgkmcnt(0)')
    p('s_barrier')
    p('v_and_b32 v%d, 31, v1' % T)
    p('v_lshlrev_b32 v%d, 2, v%d' % (T, T))
    p('ds_read_b32 v%d, v%d offset:%d' % (KEY, T, TOPK_LDS))
    p('v_cmp_gt_u32 vcc, 32, v1')
    p('s_waitcnt lgkmcnt(0)')
    p('s_nop 0')
    p('v_cndmask_b32_e64 v%d, 0, v%d, vcc' % (KEY, KEY))
    for rnd in range(8):
        p('v_mov_b32 v%d, v%d' % (T, KEY))
        wave_reduce(p, T, T + 1, 'v_max_u32')
        p('s_nop 0')
        p('v_readfirstlane_b32 s%d, v%d' % (64 + rnd, T))
        if rnd < 7:
            p('v_cmp_eq_u32 vcc, v%d, v%d' % (KEY, T))
            p('s_nop 1')
            p('v_cndmask_b32_e64 v%d, v%d, 0, vcc' % (KEY, KEY))

TOPK_LDS = 57344

def wstage(p, srd_, voff, nsteps, lds_sgpr):
    p('s_mov_b32 s44, 0')
    for i in range(nsteps):
        p('s_add_u32 m0, s%d, %d' % (lds_sgpr, i * 1024))
        p('s_nop 0')
        p('buffer_load_dwordx4 v%d, s[%d:%d], s44 offen lds' % (voff, srd_, srd_ + 3))
        if i + 1 < nsteps: p('s_add_u32 s44, s44, s45')

def tr_frags(p, addr, dst, nsteps):
    for i in range(nsteps):
        p('ds_read_b64_tr_b16 %s, v%d offset:%d' % (vr(dst + 4 * i, 2), addr, i * 1024))
        p('ds_read_b64_tr_b16 %s, v%d offset:%d' % (vr(dst + 4 * i + 2, 2), addr, i * 1024 + 128))

def build_k3():
    p = Prog()
    p('''
k3_kernel:
    s_cmp_ge_u32 s2, 56
    s_cbranch_scc1 L_end_k3
    s_load_dwordx4 s[4:7], s[0:1], 56
    s_load_dwordx2 s[24:25], s[0:1], 112
    v_and_b32 v1, 63, v0
    v_lshrrev_b32 v2, 6, v0
    s_nop 0
    v_readfirstlane_b32 s3, v2
    s_waitcnt lgkmcnt(0)
    s_cmp_ge_u32 s3, 2
    s_cselect_b32 s4, s6, s4
    s_cselect_b32 s5, s7, s5
''')
    srd(p, 8, 4, 448 * 3584)
    srd(p, 12, 24, 8192, str(WS_R))
    srd(p, 16, 24, 2048 * 896, str(WS_H2))
    srd(p, 20, 24, 28672, str(WS_ACT))
    srd(p, 28, 24, 64, str(WS_IDX))
    p('''
    s_lshl_b32 s40, s2, 6
    s_and_b32 s41, s3, 1
    s_lshl_b32 s41, s41, 5
    s_add_u32 s40, s40, s41
    v_lshrrev_b32 v3, 1, v1
    v_mul_u32_u24 v3, 3584, v3
    v_and_b32 v4, 1, v1
    v_lshl_add_u32 v3, v4, 4, v3
    v_add_u32 v3, s40, v3
    s_mov_b32 s45, %d
    s_mul_i32 s46, s3, 14336
''' % (32 * 3584))
    p('v_lshlrev_b32 v5, 5, v0')
    p('buffer_load_dwordx4 v[8:11], v5, s[12:15], 0 offen')
    p('buffer_load_dwordx4 v[12:15], v5, s[12:15], 0 offen offset:16')
    wstage(p, 8, 3, 14, 46)
    p('v_lshlrev_b32 v6, 3, v0')
    p('v_sub_u32 v6, 2047, v6')
    p('s_waitcnt vmcnt(14)')
    for j in range(8):
        k = 8 + j
        p('v_ashrrev_i32 v16, 31, v%d' % k)
        p('v_or_b32 v16, 0x80000000, v16')
        p('v_xor_b32 v%d, v%d, v16' % (k, k))
        p('v_and_b32 v%d, 0xffff0000, v%d' % (k, k))
        p('v_subrev_u32 v17, %d, v6' % j)
        p('v_or_b32 v%d, v%d, v17' % (k, k))
    p('v_lshlrev_b32 v7, 5, v2')
    p('v_add_u32 v7, %d, v7' % TOPK_LDS)
    top8(p, 8, 7, 16)
    for r in range(8):
        p('s_and_b32 s%d, s%d, 0xffff' % (72 + r, 64 + r))
        p('s_sub_u32 s%d, 2047, s%d' % (72 + r, 72 + r))
    p('v_and_b32 v4, 7, v1')
    p('v_mov_b32 v20, s72')
    for r in range(1, 8):
        p('v_cmp_eq_u32 vcc, %d, v4' % r)
        p('v_mov_b32 v21, s%d' % (72 + r))
        p('s_nop 0')
        p('v_cndmask_b32 v20, v20, v21, vcc')
    p('''
    v_mul_u32_u24 v22, 896, v20
    v_lshrrev_b32 v23, 4, v1
    v_lshl_add_u32 v22, v23, 4, v22
''')
    for i in range(14):
        p('buffer_load_dwordx4 %s, v22, s[16:19], 0 offen offset:%d' % (vr(32 + 4 * i, 4), 64 * i))
    p('''
    s_or_b32 s47, s2, s3
    s_cmp_lg_u32 s47, 0
    s_cbranch_scc1 L_k3_nopub
    v_mov_b32 v24, s64
''')
    for r in range(1, 8):
        p('v_cmp_eq_u32 vcc, %d, v4' % r)
        p('v_mov_b32 v21, s%d' % (64 + r))
        p('s_nop 0')
        p('v_cndmask_b32 v24, v24, v21, vcc')
    p('''
    v_and_b32 v24, 0xffff0000, v24
    v_ashrrev_i32 v25, 31, v24
    v_not_b32 v25, v25
    v_or_b32 v25, 0x80000000, v25
    v_xor_b32 v24, v24, v25
    v_and_b32 v24, 0xffff0000, v24
    v_mul_f32 v25, 0xbfb8aa3b, v24
    v_exp_f32 v25, v25
    s_nop 0
    v_add_f32 v25, 1.0, v25
    v_rcp_f32 v25, v25
    s_nop 0
    v_cvt_pk_bf16_f32 v25, v25, 0
    v_lshlrev_b32 v25, 16, v25
    v_lshlrev_b32 v26, 2, v1
    v_cmp_gt_u32 vcc, 8, v1
    v_mov_b32 v27, 0x40000000
    s_nop 0
    v_cndmask_b32 v26, v27, v26, vcc
    buffer_store_dword v20, v26, s[28:31], 0 offen
    buffer_store_dword v25, v26, s[28:31], 0 offen offset:32
L_k3_nopub:
''')
    p('''
    v_lshrrev_b32 v28, 4, v1            ; kq
    v_lshlrev_b32 v28, 3, v28           ; 8 kq
    v_bfe_u32 v29, v1, 2, 2             ; r
    v_add_u32 v28, v28, v29
    v_lshlrev_b32 v28, 5, v28           ; row*32
    v_and_b32 v29, 3, v1
    v_lshl_add_u32 v28, v29, 3, v28
    v_add_u32 v28, s46, v28
    s_waitcnt vmcnt(14)
''')
    tr_frags(p, 28, 96, 14)
    p('s_waitcnt vmcnt(0) lgkmcnt(0)')
    for i in range(14):
        c = '0' if i == 0 else 'v[160:163]'
        p('v_mfma_f32_16x16x32_bf16 v[160:163], %s, %s, %s' % (vr(32 + 4 * i, 4), vr(96 + 4 * i, 4), c))
    p('s_nop 7')
    p('v_cvt_pk_bf16_f32 v164, v160, v161')
    p('v_cvt_pk_bf16_f32 v165, v162, v163')
    p('''
    v_lshlrev_b32 v160, 16, v164
    v_and_b32 v161, 0xffff0000, v164
    v_lshlrev_b32 v162, 16, v165
    v_and_b32 v163, 0xffff0000, v165
    s_cmp_ge_u32 s3, 2
    s_cbranch_scc1 L_k3_up
''')
    for r in range(4): p('v_mul_f32 v%d, 0xbfb8aa3b, v%d' % (166 + r, 160 + r))
    for r in range(4): p('v_exp_f32 v%d, v%d' % (166 + r, 166 + r))
    for r in range(4): p('v_add_f32 v%d, 1.0, v%d' % (166 + r, 166 + r))
    for r in range(4): p('v_rcp_f32 v%d, v%d' % (166 + r, 166 + r))
    p('s_nop 0')
    for r in range(4): p('v_mul_f32 v%d, v%d, v%d' % (160 + r, 160 + r, 166 + r))
    p('v_cvt_pk_bf16_f32 v164, v160, v161')
    p('v_cvt_pk_bf16_f32 v165, v162, v163')
    p('''
    v_lshlrev_b32 v160, 16, v164
    v_and_b32 v161, 0xffff0000, v164
    v_lshlrev_b32 v162, 16, v165
    v_and_b32 v163, 0xffff0000, v165
L_k3_up:
    s_and_b32 s41, s3, 1
    s_lshl_b32 s41, s41, 10
    v_lshlrev_b32 v30, 4, v1
    v_add_u32 v30, s41, v30
    v_add_u32 v30, %d, v30
    s_cmp_ge_u32 s3, 2
    s_cbranch_scc0 L_k3_gate_wait
    ds_write_b128 v30, v[160:163]
L_k3_gate_wait:
    s_waitcnt lgkmcnt(0)
    s_barrier
    s_cmp_ge_u32 s3, 2
    s_cbranch_scc1 L_end_k3
    ds_read_b128 v[164:167], v30
    s_waitcnt lgkmcnt(0)
''' % (TOPK_LDS + 256))
    for r in range(4): p('v_mul_f32 v%d, v%d, v%d' % (160 + r, 160 + r, 164 + r))
    p('''
    v_cvt_pk_bf16_f32 v160, v160, v161
    v_cvt_pk_bf16_f32 v162, v162, v163
    v_lshrrev_b32 v23, 4, v1
    v_mul_u32_u24 v24, %d, v23          ; 4 rows * 3584 B
    v_and_b32 v25, 15, v1
    v_lshl_add_u32 v24, v25, 1, v24
    v_add_u32 v24, s40, v24
    v_mov_b32 v27, 0x40000000
    v_cmp_gt_u32 vcc, 32, v1
    s_nop 1
    v_cndmask_b32 v24, v27, v24, vcc
    buffer_store_short v160, v24, s[20:23], 0 offen
    buffer_store_short_d16_hi v160, v24, s[20:23], 0 offen offset:3584
    s_mov_b32 s41, 7168
    buffer_store_short v162, v24, s[20:23], s41 offen
    buffer_store_short_d16_hi v162, v24, s[20:23], s41 offen offset:3584
    s_waitcnt vmcnt(0)
L_end_k3:
    s_endpgm
''' % (4 * 3584))
    return p

def build_k4():
    p = Prog()
    p('''
k4_kernel:
    s_cmp_ge_u32 s2, 28
    s_cbranch_scc1 L_end_k4
    s_load_dwordx2 s[4:5], s[0:1], 72
    s_load_dwordx2 s[28:29], s[0:1], 96
    s_load_dwordx2 s[24:25], s[0:1], 112
    v_and_b32 v1, 63, v0
    v_lshrrev_b32 v2, 6, v0
    s_nop 0
    v_readfirstlane_b32 s3, v2
    s_waitcnt lgkmcnt(0)
''')
    p('s_mul_i32 s40, s3, %d' % (448 * 896))
    p('s_add_u32 s4, s4, s40'); p('s_addc_u32 s5, s5, 0')
    srd(p, 8, 4, 448 * 896)
    srd(p, 12, 24, 10752)
    srd(p, 16, 24, 64, str(WS_IDX))
    srd(p, 20, 24, 28672, str(WS_ACT))
    srd(p, 28, 28, 2048 * 896)
    p('''
    s_lshl_b32 s40, s2, 5               ; column byte offset
    v_lshrrev_b32 v3, 1, v1
    v_mul_u32_u24 v3, 896, v3
    v_and_b32 v4, 1, v1
    v_lshl_add_u32 v3, v4, 4, v3
    v_add_u32 v3, s40, v3
    s_mov_b32 s45, %d
    s_mul_i32 s46, s3, 14336
''' % (32 * 896))
    p('''
    v_lshrrev_b32 v23, 4, v1
    v_and_b32 v23, 1, v23
    v_lshlrev_b32 v24, 4, v23
    buffer_load_dwordx4 v[8:11], v24, s[16:19], 0 offen            ; idx[4kq..]
    buffer_load_dwordx4 v[12:15], v24, s[16:19], 0 offen offset:32 ; sig[4kq..]
    v_and_b32 v25, 15, v1
    v_lshlrev_b32 v26, 2, v25
    s_lshl_b32 s41, s2, 6
    v_add_u32 v26, s41, v26
    s_mov_b32 s42, 8960
    buffer_load_dword v16, v26, s[12:15], s42 offen                ; gb[col]
''')
    p('''
    v_and_b32 v4, 7, v1
    v_mul_u32_u24 v22, 3584, v4
    v_lshrrev_b32 v23, 4, v1
    v_lshl_add_u32 v22, v23, 4, v22
    s_mul_i32 s41, s3, 896
    v_add_u32 v22, s41, v22
''')
    for i in range(14):
        p('buffer_load_dwordx4 %s, v22, s[20:23], 0 offen offset:%d' % (vr(32 + 4 * i, 4), 64 * i))
    wstage(p, 8, 3, 14, 46)
    p('''
    v_lshrrev_b32 v28, 4, v1
    v_lshlrev_b32 v28, 3, v28
    v_bfe_u32 v29, v1, 2, 2
    v_add_u32 v28, v28, v29
    v_lshlrev_b32 v28, 5, v28
    v_and_b32 v29, 3, v1
    v_lshl_add_u32 v28, v29, 3, v28
    v_add_u32 v28, s46, v28
    s_waitcnt vmcnt(28)
''')
    for r in range(4):
        p('v_mul_u32_u24 v%d, 896, v%d' % (17 + r, 8 + r))
    p('v_lshlrev_b32 v25, 1, v25')
    p('v_add_u32 v25, s40, v25')
    for r in range(4):
        p('v_add_u32 v%d, v%d, v25' % (17 + r, 17 + r))
    for r in range(4):
        p('buffer_load_ushort v%d, v%d, s[28:31], 0 offen' % (100 + r, 17 + r))
    p('s_waitcnt vmcnt(4)')
    tr_frags(p, 28, 104, 14)
    p('s_waitcnt lgkmcnt(0)')
    for i in range(14):
        c = '0' if i == 0 else 'v[160:163]'
        p('v_mfma_f32_16x16x32_bf16 v[160:163], %s, %s, %s' % (vr(32 + 4 * i, 4), vr(104 + 4 * i, 4), c))
    p('s_nop 7')
    p('''
    v_lshlrev_b32 v30, 4, v1
    s_lshl_b32 s41, s3, 10
    v_add_u32 v30, s41, v30
    ds_write_b128 v30, v[160:163] offset:57344
    s_waitcnt lgkmcnt(0)
    s_barrier
    s_cmp_lg_u32 s3, 0
    s_cbranch_scc1 L_end_k4
    ds_read_b128 v[164:167], v30 offset:58368
    ds_read_b128 v[168:171], v30 offset:59392
    ds_read_b128 v[172:175], v30 offset:60416
    s_waitcnt vmcnt(0) lgkmcnt(0)
''')
    for r in range(4):
        p('v_add_f32 v%d, v%d, v%d' % (160 + r, 160 + r, 164 + r))
        p('v_add_f32 v%d, v%d, v%d' % (168 + r, 168 + r, 172 + r))
    for r in range(4):
        p('v_add_f32 v%d, v%d, v%d' % (160 + r, 160 + r, 168 + r))
    def rnd(a):
        p('v_cvt_pk_bf16_f32 v164, v%d, v%d' % (a, a + 1))
        p('v_cvt_pk_bf16_f32 v165, v%d, v%d' % (a + 2, a + 3))
        p('v_lshlrev_b32 v%d, 16, v164' % a); p('v_and_b32 v%d, 0xffff0000, v164' % (a + 1))
        p('v_lshlrev_b32 v%d, 16, v165' % (a + 2)); p('v_and_b32 v%d, 0xffff0000, v165' % (a + 3))
    rnd(160)
    for r in range(4): p('v_mul_f32 v%d, v%d, v%d' % (160 + r, 160 + r, 12 + r))
    rnd(160)
    for r in range(4):
        p('v_lshlrev_b32 v%d, 16, v%d' % (100 + r, 100 + r))
        p('v_fma_f32 v%d, v%d, v16, v%d' % (160 + r, 160 + r, 100 + r))
    p('v_cvt_pk_bf16_f32 v164, v160, v161')
    p('v_cvt_pk_bf16_f32 v165, v162, v163')
    p('''
    v_mov_b32 v27, 0x40000000
    v_cmp_gt_u32 vcc, 32, v1
    s_nop 1
''')
    for r in range(4): p('v_cndmask_b32 v%d, v27, v%d, vcc' % (17 + r, 17 + r))
    p('''
    buffer_store_short v164, v17, s[28:31], 0 offen
    buffer_store_short_d16_hi v164, v18, s[28:31], 0 offen
    buffer_store_short v165, v19, s[28:31], 0 offen
    buffer_store_short_d16_hi v165, v20, s[28:31], 0 offen
    s_waitcnt vmcnt(0)
L_end_k4:
    s_endpgm
''')
    return p
```

```python
import sys
from asmlib import *
import gen_attn2 as A
import k1, ksmall
def build(o, list_k=('k0', 'k1', 'k2', 'k3', 'k4')):
    parts = []
    probs = []
    kernels = {'k0': (ksmall.build_k0, 42, 1024, 128), 'k1': (None, 256, 163840, 512), 'k2': (ksmall.build_k2, 256, 0, 256),
               'k3': (ksmall.build_k3, 56, 57344 + 256 + 2048 + 256, 256), 'k4': (ksmall.build_k4, 28, 57344 + 4096, 256)}
    hdr = ''
    for k in list_k:
        hdr += '; @launch kernel=%s_kernel grid=(%d,1,1) block=(256,1,1) lds=%d\n' % (k, kernels[k][1], kernels[k][2])
    hdr += '.amdgcn_target "amdgcn-amd-amdhsa--gfx950"\n.text\n'
    body = ''; kd = ''
    for k in dict.fromkeys(list_k):
        if k == 'k1':
            p, pr = k1.build_k1(o)
        else:
            p = kernels[k][0](); pr = check_hazards(p.ins, k)
        probs += pr
        body += '.globl %s_kernel\n.p2align 8\n.type %s_kernel,@function\n' % (k, k) + p.text()
        nv = kernels[k][3]
        kd += '.p2align 6' + k1.KD % ('%s_kernel' % k, nv, 96, min(nv, 256))
    return hdr + body + '.section .rodata,"a"\n' + kd, probs
if __name__ == '__main__':
    o = A.Opt()
    o.kgap = 1
    o.dma_gaps = [3, 7, 11, 15, 19, 23, 27, 31, 35, 39, 43, 47, 51, 55, 59, 63]
    o.stamps = 0
    out = sys.argv[1]
    for kv in sys.argv[2:]:
        k, v = kv.split('=')
        try: v = int(v, 0)
        except ValueError:
            if v.startswith('['): v = eval(v)
        setattr(o, k, v)
    txt, probs = build(o)
    for pr in probs[:20]: print(pr)
    print('hazards', len(probs), 'bytes', len(txt))
    open(out, 'w').write(txt)
```

```python
import re

REG_RE = re.compile(r'^(-|\|)?([vas])(\d+)\|?$')
RNG_RE = re.compile(r'^(-)?([vas])\[(\d+):(\d+)\]$')

def regs_of(tok):
    tok = tok.strip()
    if tok.startswith('abs(') or tok.startswith('-abs('):
        tok = tok[tok.index('(')+1:-1]
    m = RNG_RE.match(tok)
    if m:
        return [(m.group(2), i) for i in range(int(m.group(3)), int(m.group(4)) + 1)]
    m = REG_RE.match(tok)
    if m:
        return [(m.group(2), int(m.group(3)))]
    if tok == 'vcc':
        return [('x', 'vcc')]
    if tok in ('vcc_lo', 'vcc_hi'):
        return [('x', 'vcc')]
    if tok == 'm0':
        return [('x', 'm0')]
    if tok == 'exec' or tok in ('exec_lo', 'exec_hi'):
        return [('x', 'exec')]
    return []

TRANS = ('v_exp_f32', 'v_log_f32', 'v_rcp_f32', 'v_rsq_f32', 'v_sqrt_f32', 'v_sin_f32', 'v_cos_f32')

class I:
    def __init__(self, text):
        self.text = text
        t = text.split(';')[0].strip()
        if text.startswith(';'): t = ''
        self.kind = None
        self.dst = []
        self.src = []
        self.op = ''
        self.nop_states = 1
        if not t or t.endswith(':') or t.startswith('.'):
            self.kind = 'label' if t.endswith(':') else 'dir'
            return
        parts = t.split(None, 1)
        op = parts[0]
        self.op = op
        rest = parts[1] if len(parts) > 1 else ''
        ops = []
        cur = ''
        depth = 0
        for ch in rest:
            if ch in '[(':
                depth += 1
            if ch in '])':
                depth -= 1
            if ch == ',' and depth == 0:
                ops.append(cur.strip()); cur = ''
            else:
                cur += ch
        if cur.strip():
            ops.append(cur.strip())
        mods = []
        if ops:
            last = ops[-1].split()
            ops[-1] = last[0]
            mods = last[1:]
        self.ops = ops
        self.mods = mods
        for mm in mods:
            if mm.startswith('offset:'):
                ov = int(mm[7:], 0)
                if op.startswith('buffer_'): assert 0 <= ov <= 4095, 'MUBUF offset too large: ' + text
                if op.startswith('ds_'): assert 0 <= ov <= 65535, 'DS offset too large: ' + text
                if op.startswith('global_'): assert -4096 <= ov <= 4095, 'global offset range: ' + text
        base = re.sub(r'_(e32|e64|dpp|sdwa)$', '', op)
        self.base = base
        R = regs_of
        if op.startswith('v_mfma'):
            self.kind = 'mfma'
            self.dst = R(ops[0]); self.a = R(ops[1]); self.b = R(ops[2]); self.c = R(ops[3])
            self.src = self.a + self.b + self.c
            self.passes = 8 if '32x32' in op else 4
        elif op.startswith('ds_'):
            self.kind = 'ds'
            if op.startswith('ds_read') or op.startswith('ds_bpermute') or op.startswith('ds_permute') or op.startswith('ds_swizzle'):
                self.dst = R(ops[0])
                for o in ops[1:]:
                    self.src += R(o)
            else:
                for o in ops:
                    self.src += R(o)
            self.isload = bool(self.dst)
        elif op.startswith('buffer_') or op.startswith('global_'):
            self.kind = 'vmem'
            allm = ' '.join(mods)
            self.lds = ' lds' in (' ' + allm)
            if op in ('buffer_wbl2', 'buffer_inv'):
                pass
            elif op.startswith('buffer_load'):
                if self.lds:
                    for o in ops: self.src += R(o)
                    self.src.append(('x', 'm0'))
                else:
                    self.dst = R(ops[0])
                    for o in ops[1:]: self.src += R(o)
            elif op.startswith('global_load'):
                if 'lds' in op:
                    for o in ops: self.src += R(o)
                    self.src.append(('x', 'm0'))
                    self.lds = True
                else:
                    self.dst = R(ops[0])
                    for o in ops[1:]: self.src += R(o)
            elif 'atomic' in op:
                ret = 'sc0' in mods
                if op.startswith('buffer_'):
                    for o in ops: self.src += R(o)
                    if ret: self.dst = R(ops[0])
                else:
                    if ret:
                        self.dst = R(ops[0])
                        for o in ops[1:]: self.src += R(o)
                    else:
                        for o in ops: self.src += R(o)
            else:
                for o in ops: self.src += R(o)
                self.store_data = R(ops[0]) if op.startswith('buffer_') else R(ops[1])
                self.wide = 'x4' in op or 'x3' in op
        elif op.startswith('s_'):
            self.kind = 'salu'
            if op == 's_nop':
                self.nop_states = int(ops[0], 0) + 1
                self.kind = 'nop'
            elif op == 's_waitcnt':
                self.kind = 'wait'
            elif op in ('s_barrier', 's_endpgm', 's_setprio', 's_sleep'):
                self.kind = 'sopp'
            elif op.startswith('s_cbranch') or op == 's_branch':
                self.kind = 'branch'
                if 'vcc' in op: self.src.append(('x', 'vcc'))
                if 'scc' in op: self.src.append(('x', 'scc'))
                if 'exec' in op: self.src.append(('x', 'exec'))
            elif op.startswith('s_cmp') or op.startswith('s_bitcmp'):
                for o in ops: self.src += R(o)
                self.dst = [('x', 'scc')]
            elif op.startswith('s_load') or op.startswith('s_buffer_load') or op in ('s_memtime', 's_memrealtime'):
                self.kind = 'smem'
                self.dst = R(ops[0])
                for o in ops[1:]: self.src += R(o)
            elif op == 's_getreg_b32':
                self.dst = R(ops[0])
            elif op.endswith('saveexec_b64'):
                self.dst = R(ops[0]) + [('x', 'exec'), ('x', 'scc')]
                self.src = R(ops[1]) + [('x', 'exec')]
            else:
                self.dst = R(ops[0])
                for o in ops[1:]: self.src += R(o)
                if op.startswith('s_cselect') or op.startswith('s_addc') or op.startswith('s_subb'):
                    self.src.append(('x', 'scc'))
                if not (op.startswith('s_mov') or op.startswith('s_cselect') or op.startswith('s_mul') or op.startswith('s_movk')):
                    self.dst = self.dst + [('x', 'scc')]
                if op in ('s_addk_i32', 's_mulk_i32'):
                    self.src += R(ops[0])
        elif op.startswith('v_'):
            self.kind = 'valu'
            self.trans = base in TRANS
            if base.startswith('v_cmp'):
                self.dst = R(ops[0])
                for o in ops[1:]: self.src += R(o)
                if base.startswith('v_cmpx'):
                    self.dst.append(('x', 'exec'))
            elif base in ('v_permlane32_swap_b32', 'v_permlane16_swap_b32'):
                self.dst = R(ops[0]) + R(ops[1])
                self.src = R(ops[0]) + R(ops[1])
                self.permlane = True
            elif base in ('v_add_co_u32', 'v_sub_co_u32', 'v_subrev_co_u32'):
                self.dst = R(ops[0]) + R(ops[1])
                for o in ops[2:]: self.src += R(o)
            elif base in ('v_addc_co_u32', 'v_subb_co_u32'):
                self.dst = R(ops[0]) + R(ops[1])
                for o in ops[2:]: self.src += R(o)
            else:
                self.dst = R(ops[0])
                for o in ops[1:]: self.src += R(o)
                if base in ('v_fmac_f32', 'v_dot2c_f32_bf16', 'v_writelane_b32', 'v_mac_f32', 'v_pk_fmac_f16'):
                    self.src += R(ops[0])
                if op.endswith('_dpp'):
                    self.src += R(ops[0])
                    self.dpp = True
        else:
            raise ValueError('unknown instruction: ' + text)

    def __repr__(self):
        return self.text

def size_of(ins):
    k = ins.kind
    if k in ('label', 'dir', None):
        return 0
    if k in ('mfma', 'ds', 'vmem', 'smem'):
        return 8
    def is_lit(tok):
        tok = tok.strip()
        if regs_of(tok): return False
        if tok in ('off', 'vcc', 'exec', 'scc'): return False
        try:
            v = int(tok, 0)
            return not (-16 <= v <= 64)
        except ValueError:
            pass
        try:
            f = float(tok)
            return f not in (0.0, 0.5, -0.5, 1.0, -1.0, 2.0, -2.0, 4.0, -4.0)
        except ValueError:
            return False
    if k in ('nop', 'wait', 'sopp', 'branch'):
        return 4
    if k == 'salu':
        if ins.op in ('s_movk_i32', 's_addk_i32', 's_mulk_i32', 's_getreg_b32'):
            return 4
        return 8 if any(is_lit(o) for o in ins.ops[1:]) or (ins.op.startswith('s_cmp') and any(is_lit(o) for o in ins.ops)) else 4
    if k == 'valu':
        if ins.op.endswith('_e64') or ins.op.endswith('_dpp') or ins.op.endswith('_sdwa'):
            return 8
        vop3only = ('v_fma_f32', 'v_max3_f32', 'v_min3_f32', 'v_med3_f32', 'v_cvt_pk_bf16_f32', 'v_mul_lo_u32', 'v_mul_hi_u32',
                    'v_lshl_add_u32', 'v_add_lshl_u32', 'v_and_or_b32', 'v_bfe_u32', 'v_bfi_b32', 'v_add3_u32', 'v_mad_u32_u24',
                    'v_lshl_or_b32', 'v_or3_b32', 'v_perm_b32', 'v_readlane_b32', 'v_writelane_b32', 'v_pk_mul_f32', 'v_pk_add_f32',
                    'v_pk_fma_f32', 'v_accvgpr_read_b32', 'v_accvgpr_write_b32', 'v_alignbit_b32', 'v_ldexp_f32', 'v_mbcnt_lo_u32_b32',
                    'v_mbcnt_hi_u32_b32', 'v_dot2_f32_bf16', 'v_bfe_i32', 'v_mad_i32_i24', 'v_xad_u32', 'v_lshlrev_b64', 'v_div_fixup_f32',
                    'v_div_scale_f32', 'v_div_fmas_f32', 'v_mul_i32_i24_x')
        if ins.base in vop3only:
            return 8
        if ins.base.startswith('v_cmp') and ins.ops[0] != 'vcc':
            return 8
        if ins.base == 'v_cndmask_b32' and ins.ops[3] != 'vcc':
            return 8
        if any(o.startswith('-v') or o.startswith('abs(') or o.startswith('-abs(') or o.startswith('|') for o in ins.ops[1:]):
            return 8
        if len(ins.ops) >= 3 and not ins.base.startswith('v_cmp'):
            s1 = ins.ops[2]
            if ins.base in ('v_add_co_u32', 'v_addc_co_u32', 'v_sub_co_u32'):
                s1 = ins.ops[3]
            r = regs_of(s1)
            if not r or r[0][0] != 'v':
                return 8
        if ins.base.startswith('v_cmp'):
            r = regs_of(ins.ops[2])
            if not r or r[0][0] != 'v':
                return 8
        return 8 if any(is_lit(o) for o in ins.ops[1:]) else 4
    raise ValueError(ins.text)


class Prog:
    def __init__(self):
        self.ins = []
    def __call__(self, text):
        for line in text.split('\n'):
            line = line.strip()
            if line:
                self.ins.append(I(line))
    def extend(self, other):
        self.ins.extend(other.ins if isinstance(other, Prog) else other)
    def text(self):
        out = []
        for i in self.ins:
            if i.kind == 'label' or (i.kind == 'dir'):
                out.append(i.text)
            else:
                out.append('    ' + i.text)
        return '\n'.join(out) + '\n'


DUMMY_DST = {('v', 253), ('v', 254), ('v', 255)}

def insert_waits(ins, state=None, lgkm_max=15, vm_max=63):
    if state is None:
        state = ([], [])
    dsq = [list(x) for x in state[0]]
    vmq = [list(x) for x in state[1]]
    out = []
    for ins_ in ins:
        k = ins_.kind
        need_only = False
        if k == 'dir' and ins_.text.startswith('.need '):
            ins_ = I(ins_.text[6:]); k = ins_.kind; need_only = True
        if k in ('label', 'dir', None):
            out.append(ins_); continue
        if k == 'wait':
            t = ins_.text
            m = re.search(r'lgkmcnt\((\d+)\)', t)
            if m:
                n = int(m.group(1))
                while len(dsq) > n: dsq.pop(0)
            m = re.search(r'vmcnt\((\d+)\)', t)
            if m:
                n = int(m.group(1))
                while len(vmq) > n: vmq.pop(0)
            out.append(ins_); continue
        touched = set(ins_.src) | set(ins_.dst)
        need_l = None
        for idx, d in enumerate(dsq):
            if touched & set(d):
                need_l = len(dsq) - 1 - idx
        need_v = None
        for idx, d in enumerate(vmq):
            if touched & set(d):
                need_v = len(vmq) - 1 - idx
        w = []
        if need_v is not None:
            assert need_v <= vm_max
            w.append('vmcnt(%d)' % need_v)
            while len(vmq) > need_v: vmq.pop(0)
        if need_l is not None:
            n = min(need_l, lgkm_max)
            w.append('lgkmcnt(%d)' % n)
            while len(dsq) > n: dsq.pop(0)
        if w:
            out.append(I('s_waitcnt ' + ' '.join(w)))
        if need_only:
            continue
        out.append(ins_)
        if k == 'ds':
            dsq.append(list(ins_.dst))
            assert len(dsq) <= 64
        elif k == 'smem':
            raise ValueError('smem inside auto-wait region: ' + ins_.text)
        elif k == 'vmem':
            vmq.append([r for r in ins_.dst if r not in DUMMY_DST])
    return out, (dsq, vmq)


def check_hazards(ins, name=''):
    probs = []
    seq = [i for i in ins if i.kind not in ('label', 'dir', None)]
    n = len(seq)
    def states_between(a, b):
        return sum(seq[j].nop_states for j in range(a + 1, b))
    WINDOW = 24
    for b in range(n):
        cb = seq[b]
        for a in range(b - 1, max(-1, b - WINDOW - 1), -1):
            ca = seq[a]
            st = states_between(a, b)
            if st >= 20:
                break
            need = 0
            why = ''
            da = set(ca.dst); sb = set(cb.src); db = set(cb.dst)
            vda = set(r for r in da if r[0] in 'va');
            if ca.kind == 'valu':
                sg = set(r for r in da if r[0] == 's' or r == ('x', 'vcc'))
                if cb.kind == 'mfma' and (vda & sb):
                    need, why = 2, 'VALU->MFMA src'
                if cb.kind == 'mfma' and ('x', 'exec') in da:
                    need, why = 4, 'VALU exec->MFMA'
                if cb.kind == 'valu':
                    if getattr(cb, 'permlane', False) and (vda & sb):
                        need, why = max(need, 2), 'VALU->permlane'
                    if getattr(cb, 'dpp', False) and (vda & sb):
                        need, why = max(need, 2), 'VALU->DPP'
                    if cb.base in ('v_readlane_b32', 'v_readfirstlane_b32') and (vda & sb):
                        need, why = max(need, 1), 'VALU->readlane'
                    if getattr(ca, 'trans', False) and not getattr(cb, 'trans', False) and (vda & sb):
                        need, why = max(need, 1), 'trans->VALU'
                    if sg & sb:
                        need, why = max(need, 2), 'VALU sgpr->VALU const'
                        if cb.base in ('v_readlane_b32', 'v_writelane_b32'):
                            need = 4
                    if ('x', 'exec') in da and getattr(cb, 'dpp', False):
                        need, why = max(need, 5), 'VALU exec->DPP'
                    if ('x', 'exec') in da and (cb.base in ('v_readlane_b32', 'v_readfirstlane_b32', 'v_writelane_b32') or getattr(cb, 'permlane', False)):
                        need, why = max(need, 4), 'cmpx->readlane/permlane'
                if cb.kind == 'vmem' and (sg & sb):
                    need, why = max(need, 5), 'VALU sgpr->VMEM'
                if getattr(ca, 'trans', False) and cb.kind in ('mfma',) and (vda & sb):
                    need = max(need, 2)
            if ca.kind == 'valu' and ca.base.startswith('v_dot'):
                if vda & (sb | db):
                    if cb.kind == 'valu' and cb.base == ca.base:
                        ab = set()
                        for oo in cb.ops[1:3]: ab |= set(regs_of(oo))
                        if vda & ab: need, why = max(need, 3), 'dot->dot A/B'
                    else:
                        need, why = max(need, 3), 'dot->other'
            if ca.kind == 'mfma':
                P = ca.passes
                D = set(ca.dst)
                if cb.kind == 'mfma':
                    if D & set(cb.c):
                        if set(cb.c) == D and cb.passes == P:
                            pass
                        else:
                            need, why = max(need, {4: 6, 8: 10}[P]), 'MFMA D->MFMA C overlap'
                    if D & (set(cb.a) | set(cb.b)):
                        need, why = max(need, {4: 8, 8: 12}[P]), 'MFMA D->MFMA A/B'
                    if D & db and not (D & set(cb.c)):
                        need, why = max(need, {4: 6, 8: 10}[P]), 'MFMA D->MFMA D WAW'
                elif cb.kind in ('valu', 'ds', 'vmem'):
                    if D & (sb | db):
                        need, why = max(need, {4: 8, 8: 12}[P]), 'MFMA D->VALU/mem'
                if cb.kind == 'valu' and (set(ca.c) & db):
                    need, why = max(need, {4: 3, 8: 7}[P]), 'MFMA C WAR VALU'
                if cb.kind in ('ds', 'vmem') and (set(ca.c) & db):
                    need, why = max(need, {4: 3, 8: 7}[P]), 'MFMA C WAR load'
            if ca.kind == 'vmem' and getattr(ca, 'wide', False) and cb.kind in ('valu', 'mfma'):
                if set(ca.store_data) & db:
                    need, why = max(need, 2), 'wide store data WAR'
            if ca.kind == 'ds' and not ca.isload and cb.kind == 'valu':
                pass
            if ca.kind == 'salu' and ('x', 'm0') in da and cb.kind == 'vmem' and ('x', 'm0') in sb:
                need, why = max(need, 1), 'm0->LDS DMA'
            if need > st:
                probs.append('%s: need %d have %d (%s)\n    %s\n    %s' % (name, need, st, why, ca.text, cb.text))
    return probs
```

```python
import sys
from asmlib import *

class Opt:
    dma = True; dsread = True; valu = True; barrier = True
    bar_slot = 118
    dma_lo = 0; dma_hi = 56
    e64 = False
    nit = 32
    summ = 'add'
    dflag = ''
    chain = 2
    e0lo = 36; e0hi = 76; e1lo = 72; e1hi = 116
    thr = 0x53800000
    kgap = 2
    dma_gaps = [1, 5, 9, 13, 17, 21, 25, 29, 33, 37, 41, 45, 49, 53, 57, 61]
    pf = 0; pf_gap = 67
    even = 1; ehi = 122; vm_valu = 1; hoist = 1

BLK = 1056
HALF = 16 * BLK; KBUF = 2 * HALF; VBASE = 2 * KBUF
SREG = 128
PBUF = [160, 176]
NEGM = 192
FR = 208
VK, VV, VOFF = 224, 225, 226
LREG = [228, 236]
TMP = 244
VLANE = 252
VONE = 253
S_K0, S_K1, S_V0, S_V1 = 8, 12, 16, 20
S_WS = 24
VPFA, VPFD = 227, 253
S_PF = 92
S_DST = 28; S_THR = 29; S_RET = 30; S_CNT = 33; S_W = 34; S_96 = 35

def vr(a, n=1):
    return 'v%d' % a if n == 1 else 'v[%d:%d]' % (a, a + n - 1)
def ar(a, n=1):
    return 'a%d' % a if n == 1 else 'a[%d:%d]' % (a, a + n - 1)
def E(o, op):
    return op + '_e64' if o.e64 else op
def frag(n):
    return FR + 4 * (n % 4)
def kread(o, n, buf):
    a, ks = n // 8, n % 8
    return ['ds_read_b128 %s, v%d offset:%d' % (vr(frag(n), 4), VK, buf * KBUF + a * 8 * BLK + ks * 64)]
def vread(o, dt, buf):
    r = frag(16 + dt)
    return ['ds_read_b64_tr_b16 %s, v%d offset:%d' % (vr(r + 2 * a, 2), VV, buf * KBUF + a * 8 * BLK + dt * 32) for a in range(2)]
def S(a, b): return SREG + 16 * a + 4 * b
def qk_list(o, czero=False):
    L = []
    for a in range(2):
        if o.chain == 2:
            for kp in range(4):
                for b in range(4):
                    for k2 in range(2):
                        ks = 2 * kp + k2
                        c = ('0' if czero else vr(NEGM + 4 * b, 4)) if ks == 0 else vr(S(a, b), 4)
                        L.append('v_mfma_f32_16x16x32_bf16 %s, %s, %s, %s' % (vr(S(a, b), 4), vr(frag(a * 8 + ks), 4), vr(32 * b + 4 * ks, 4), c))
        else:
            for kp in range(4):
                for k2 in range(2):
                    for b in range(4):
                        ks = 2 * kp + k2
                        c = ('0' if czero else vr(NEGM + 4 * b, 4)) if ks == 0 else vr(S(a, b), 4)
                        L.append('v_mfma_f32_16x16x32_bf16 %s, %s, %s, %s' % (vr(S(a, b), 4), vr(frag(a * 8 + ks), 4), vr(32 * b + 4 * ks, 4), c))
    return L
def pv_list(o, pb, first=False):
    L = []
    for dt in range(16):
        for b in range(4):
            O = (dt * 4 + b) * 4
            c = '0' if first else ar(O, 4)
            L.append('v_mfma_f32_16x16x32_bf16 %s, %s, %s, %s' % (ar(O, 4), vr(frag(16 + dt), 4), vr(PBUF[pb] + 4 * b, 4), c))
    return L

def lreg(o, par, b):
    return LREG[par] + (2 * b if o.summ == 'pk' else b)

def exps(o, a, pb, lold, lnew):
    groups = []
    k = 0
    for b in range(4):
        for hp in range(2):
            s = S(a, b) + 2 * hp
            t = TMP + 2 * (k % 4)
            P = PBUF[pb] + 4 * b + 2 * a + hp
            e = ['%s v%d, v%d' % (E(o, 'v_exp_f32'), t, s), '%s v%d, v%d' % (E(o, 'v_exp_f32'), t + 1, s + 1)]
            first = (a == 0 and hp == 0)
            ln = lreg(o, lnew, b); lo = lreg(o, lold, b) if first else ln
            cv = 'v_cvt_pk_bf16_f32 v%d, v%d, v%d' % (P, t, t + 1)
            if o.summ == 'add':
                c = ['%s v%d, v%d, v%d' % (E(o, 'v_add_f32'), ln, lo, t), '%s v%d, v%d, v%d' % (E(o, 'v_add_f32'), ln, ln, t + 1), cv]
            elif o.summ == 'pk':
                c = ['v_pk_add_f32 %s, %s, %s' % (vr(ln, 2), vr(lo, 2), vr(t, 2)), cv]
            else:
                c = [cv, ('dot', 'v_dot2_f32_bf16 v%d, v%d, v%d, v%d' % (ln, P, VONE, lo))]
            groups.append((e, c))
            k += 1
    out = []
    pend = []
    for i, (e, c) in enumerate(groups):
        out += e
        out += pend; pend = []
        if i >= 1:
            for x in groups[i - 1][1]:
                if isinstance(x, tuple): pend.append(x[1])
                else: out.append(x)
    out += pend; pend = []
    for x in groups[-1][1]:
        out.append(x[1] if isinstance(x, tuple) else x)
    return out

def dma(o, kbuf, vbuf, do_k=True, do_v=True, nop=False):
    out = []
    grp = []
    if do_k: grp += [(S_K0, kbuf * KBUF), (S_K1, kbuf * KBUF + 4 * BLK)]
    if do_v: grp += [(S_V0, VBASE + vbuf * KBUF), (S_V1, VBASE + vbuf * KBUF + 4 * BLK)]
    for srd, dst in grp:
        out.append('s_add_u32 m0, s%d, %d' % (S_DST, dst) if dst else 's_mov_b32 m0, s%d' % S_DST)
        if nop: out.append('s_nop 0')
        for j in range(4):
            so = ('s%d' % S_96, '64', '32', '0')[j]
            out.append('buffer_load_dwordx4 v%d, s[%d:%d], %s offen offset:%d %s lds' % (VOFF, srd, srd + 3, so, BLK * j, o.dflag))
    return out

def spread(slots, stream, lo, hi):
    n = len(stream)
    for i, s in enumerate(stream):
        slots[lo + (i * (hi - lo + 1)) // n].append(s)

def check(o, par, tag):
    if o.summ == 'pk':
        r = [LREG[par] + i for i in range(8)]
        return ['v_max3_f32 v%d, v%d, v%d, v%d' % (TMP, r[0], r[1], r[2]),
                'v_max3_f32 v%d, v%d, v%d, v%d' % (TMP + 1, r[3], r[4], r[5]),
                'v_max3_f32 v%d, v%d, v%d, v%d' % (TMP, TMP, r[6], r[7]),
                'v_max_f32 v%d, v%d, v%d' % (TMP, TMP, TMP + 1),
                'v_cmp_lt_f32 vcc, s%d, v%d' % (S_THR, TMP)]
    r = [LREG[par] + i for i in range(4)]
    return ['v_max3_f32 v%d, v%d, v%d, v%d' % (TMP, r[0], r[1], r[2]),
            'v_max_f32 v%d, v%d, v%d' % (TMP, TMP, r[3]),
            'v_cmp_lt_f32 vcc, s%d, v%d' % (S_THR, TMP)]

def is_exp(s): return s.startswith('v_exp')

def iteration(o, par, tag, do_qk=True, do_dma_k=True, do_dma_v=True, next_k=True, first_pv=False, pf_ok=True, extra_mem=(), vm_left=None):
    p = Prog()
    cur = par; nxt = par ^ 1
    N = 128
    sc = [[] for _ in range(N)]
    mem = [[] for _ in range(N)]
    val = [[] for _ in range(N)]
    B = o.bar_slot
    if o.dsread:
        if do_qk:
            for n in range(2, 16):
                i = n // 2
                mem[8 * (i - 1) + (n % 2) * o.kgap] += kread(o, n, nxt)
        for dt in range(16):
            if dt < 2: sl = 56 + 2 * dt + 1
            elif dt < 4: sl = 64 + (dt - 2) * 2
            else: sl = 64 + 4 * (dt - 4) + 4
            mem[sl] += vread(o, dt, cur)
        if next_k:
            mem[B] += kread(o, 0, cur)
            mem[max(B + 1, 120)] += kread(o, 1, cur)
    if o.dma and (do_dma_k or do_dma_v):
        d = dma(o, cur, nxt, do_dma_k, do_dma_v)
        gaps = list(o.dma_gaps)
        gi = 0
        last = None
        for s in d:
            if s.startswith('s_'):
                g = gaps[gi]
                gm = g - 1
                assert last is None or gm >= last
                sc[gm % N].append(s) if gm >= 0 else pre_m0.append(s) if False else sc[max(gm, 0)].append(s)
            else:
                g = gaps[gi]; gi += 1
                while len(mem[g]) >= 1: g += 1;
                mem[g].append(s); last = g
        val[last + 1].append('v_add_u32 v%d, 0x8000, v%d' % (VOFF, VOFF))
    pf = getattr(o, 'pf', 0) and do_dma_v and pf_ok
    if pf:
        g = o.pf_gap
        while len(mem[g]) >= 1: g += 1
        mem[g].append('buffer_load_dword v%d, v%d, s[%d:%d], 0 offen' % (VPFD + par, VPFA, S_PF, S_PF + 3))
        val[g + 1].append('v_add_u32 v%d, 0x8000, v%d' % (VPFA, VPFA))
    for g0, txt in extra_mem:
        g = g0
        while len(mem[g]) >= 1: g += 1
        mem[g].append(txt)
    def cost(g):
        return 4 * len(mem[g]) + sum(8 if is_exp(x) else 4 for x in val[g])
    if o.valu and do_qk:
        stream = [(x, o.e0lo) for x in exps(o, 0, nxt, cur, nxt)] + [(x, o.e1lo) for x in exps(o, 1, nxt, cur, nxt)] + [(x, 0) for x in check(o, nxt, tag)]
        g = o.e0lo
        total = sum(8 if is_exp(x) else 4 for x, _ in stream)
        done = 0
        lo, hi = o.e0lo, o.ehi
        for x, early in stream:
            c = 8 if is_exp(x) else 4
            tgt = lo + int(done * (hi - lo) / total) if o.even else 0
            g = max(g, early, tgt)
            while True:
                lim = 8
                hasvm = any(y.startswith('buffer') for y in mem[g])
                if hasvm and not o.vm_valu: lim = 0 if False else 4
                if cost(g) + c <= lim and g != B: break
                g += 1
            val[g].append(x); done += c
        assert g < N - 1, 'valu overflow %d' % g
        o.last_valu_gap = g
    qk = qk_list(o); pv = pv_list(o, cur, first_pv)
    mf = [(qk[sl] if do_qk else None) if sl < 64 else pv[sl - 64] for sl in range(N)]
    for sl in range(N):
        if mf[sl]: p(mf[sl])
        nx = mf[sl + 1] if sl + 1 < N else None
        if nx and o.hoist: p('.need ' + nx)
        if sl == B and next_k:
            left = (1 if pf else 0) + len([1 for g0, _ in extra_mem]) if vm_left is None else vm_left
            p('s_waitcnt vmcnt(%d) lgkmcnt(0)' % left)
            if o.barrier: p('s_barrier')
        for s in sc[sl]: p(s)
        for s in mem[sl]: p(s)
        for s in val[sl]: p(s)
    if o.valu and do_qk:
        p('s_cbranch_vccnz L_rare_%s' % tag)
        p('L_back_%s:' % tag)
    return p

def xlane_max(p, t):
    p('v_mov_b32 v%d, v%d' % (t + 1, t))
    p('s_nop 1')
    p('v_permlane16_swap_b32 v%d, v%d' % (t, t + 1))
    p('s_nop 1')
    p('v_max_f32 v%d, v%d, v%d' % (t, t, t + 1))
    p('v_mov_b32 v%d, v%d' % (t + 1, t))
    p('s_nop 1')
    p('v_permlane32_swap_b32 v%d, v%d' % (t, t + 1))
    p('s_nop 1')
    p('v_max_f32 v%d, v%d, v%d' % (t, t, t + 1))

def max8(p, t, b):
    p('v_max3_f32 v%d, v%d, v%d, v%d' % (t, S(0, b), S(0, b) + 1, S(0, b) + 2))
    p('v_max3_f32 v%d, v%d, v%d, v%d' % (t, t, S(0, b) + 3, S(1, b)))
    p('v_max3_f32 v%d, v%d, v%d, v%d' % (t, t, S(1, b) + 1, S(1, b) + 2))
    p('v_max_f32 v%d, v%d, v%d' % (t, t, S(1, b) + 3))

def fallback(o, par):
    p = Prog()
    nxt = par ^ 1
    p('L_fb_%d:' % par)
    p('s_nop 7'); p('s_nop 7')
    t = TMP
    for b in range(4):
        max8(p, t, b)
        xlane_max(p, t)
        p('v_max_f32 v%d, 0, v%d' % (t, t))
        for r in range(4):
            p('v_sub_f32 v%d, v%d, v%d' % (NEGM + 4 * b + r, NEGM + 4 * b + r, t))
        p('v_sub_f32 v%d, 0, v%d' % (t + 1, t))
        p('v_exp_f32 v%d, v%d' % (t + 1, t + 1))
        p('s_nop 0')
        lo = lreg(o, par, b); ln = lreg(o, nxt, b)
        p('v_mul_f32 v%d, v%d, v%d' % (ln, lo, t + 1))
        if o.summ == 'pk':
            p('v_mul_f32 v%d, v%d, v%d' % (ln + 1, lo + 1, t + 1))
        for dt in range(16):
            for r in range(4):
                a = (dt * 4 + b) * 4 + r
                tt = t + 2 + r
                p('v_accvgpr_read_b32 v%d, a%d' % (tt, a))
                p('v_mul_f32 v%d, v%d, v%d' % (tt, tt, t + 1))
                p('v_accvgpr_write_b32 a%d, v%d' % (a, tt))
        for a in range(2):
            for hp in range(2):
                s = S(a, b) + 2 * hp
                p('v_sub_f32 v%d, v%d, v%d' % (t + 2, s, t))
                p('v_sub_f32 v%d, v%d, v%d' % (t + 3, s + 1, t))
                p('v_exp_f32 v%d, v%d' % (t + 2, t + 2))
                p('v_exp_f32 v%d, v%d' % (t + 3, t + 3))
                p('s_nop 0')
                p('v_add_f32 v%d, v%d, v%d' % (ln, ln, t + 2))
                p('v_add_f32 v%d, v%d, v%d' % (ln, ln, t + 3))
                p('v_cvt_pk_bf16_f32 v%d, v%d, v%d' % (PBUF[nxt] + 4 * b + 2 * a + hp, t + 2, t + 3))
    p('s_nop 3')
    p('s_setpc_b64 s[%d:%d]' % (S_RET, S_RET + 1))
    return p

def build(o):
    p = Prog()
    name = 'attn_kernel'
    p('''
%s:
    s_cmp_ge_u32 s2, 256
    s_cbranch_scc1 L_end
    s_load_dwordx2 s[4:5], s[0:1], 8
    s_load_dwordx2 s[6:7], s[0:1], 16
    s_load_dwordx2 s[24:25], s[0:1], 112
    v_lshrrev_b32 v1, 6, v0
    v_and_b32 v%d, 63, v0
    s_nop 0
    v_readfirstlane_b32 s%d, v1
    s_and_b32 s36, s2, 7          ; g
    s_lshl_b32 s37, s36, 20       ; g * 1MB
    s_waitcnt lgkmcnt(0)
    s_mov_b32 s26, 0x10000000
    s_mov_b32 s27, 0x20000
    s_mov_b32 s%d, 96
''' % (name, VLANE, S_W, S_96))
    p('''
    s_add_u32 s8, s4, s37
    s_addc_u32 s9, s5, 0
    s_sub_u32 s8, s8, 96
    s_subb_u32 s9, s9, 0
    s_mov_b32 s10, %d
    s_mov_b32 s11, 0x20000
    s_add_u32 s12, s8, 4096
    s_addc_u32 s13, s9, 0
    s_mov_b32 s14, %d
    s_mov_b32 s15, 0x20000
    s_add_u32 s16, s6, s37
    s_addc_u32 s17, s7, 0
    s_sub_u32 s16, s16, 96
    s_subb_u32 s17, s17, 0
    s_mov_b32 s18, %d
    s_mov_b32 s19, 0x20000
    s_add_u32 s20, s16, 4096
    s_addc_u32 s21, s17, 0
    s_mov_b32 s22, %d
    s_mov_b32 s23, 0x20000
''' % ((1 << 20) + 96, (1 << 20) + 96 - 4096, (1 << 20) + 96, (1 << 20) + 96 - 4096))
    p('''
    s_lshr_b32 s38, s%d, 1        ; s = key half
    s_and_b32 s39, s%d, 1         ; qh
    s_mul_i32 s40, s38, %d
    s_mul_i32 s41, s39, %d
    s_add_u32 s%d, s40, s41       ; LDS DMA dest base
    s_mov_b32 s%d, 0x%x
    s_lshl_b32 s42, s38, 14
    s_lshl_b32 s43, s39, 13
    s_add_u32 s42, s42, s43
    v_lshlrev_b32 v%d, 4, v%d
    v_add_u32 v%d, s42, v%d
    v_mov_b32 v%d, 0x3f803f80
''' % (S_W, S_W, HALF, 8 * BLK, S_DST, S_THR, o.thr, VOFF, VLANE, VOFF, VOFF, VONE))
    L = VLANE
    p('''
    v_and_b32 v1, 7, v%d
    v_mul_u32_u24 v1, %d, v1
    v_bfe_u32 v2, v%d, 3, 1
    v_lshlrev_b32 v2, 9, v2
    v_add_u32 v1, v1, v2
    v_lshrrev_b32 v2, 4, v%d
    v_lshlrev_b32 v2, 4, v2
    v_add_u32 v1, v1, v2
    v_add_u32 v%d, s40, v1
    v_lshrrev_b32 v1, 2, v%d         ; mv = lane>>2 (=4G+r)
    v_and_b32 v2, 7, v1
    v_mul_u32_u24 v2, %d, v2
    v_lshrrev_b32 v1, 3, v1
    v_lshlrev_b32 v1, 9, v1
    v_add_u32 v1, v1, v2
    v_and_b32 v2, 3, v%d
    v_lshlrev_b32 v2, 3, v2
    v_add_u32 v1, v1, v2
    v_add_u32 v1, s40, v1
    v_add_u32 v%d, %d, v1
''' % (L, BLK, L, L, VK, L, BLK, L, VV, VBASE))
    for s in dma(o, 0, 0, nop=True): p(s)
    p('v_add_u32 v%d, 0x8000, v%d' % (VOFF, VOFF))
    p('s_nop 0')
    for s in dma(o, 1, 0, True, False, nop=True): p(s)
    p('''
    s_add_u32 s8, s8, 0x8000
    s_addc_u32 s9, s9, 0
    s_sub_u32 s10, s10, 0x8000
    s_add_u32 s12, s12, 0x8000
    s_addc_u32 s13, s13, 0
    s_sub_u32 s14, s14, 0x8000
''')
    p('''
    s_lshl_b32 s44, s2, 1
    s_add_u32 s44, s44, s39
    s_lshl_b32 s44, s44, 15          ; *32 frags*1024 B
    v_lshlrev_b32 v254, 4, v%d
    v_add_u32 v254, s44, v254
''' % L)
    for n in range(32):
        if n % 4 == 0 and n:
            p('v_add_u32 v254, 0x1000, v254')
        p('buffer_load_dwordx4 %s, v254, s[24:27], 0 offen offset:%d' % (vr(4 * n, 4), (n % 4) * 1024))
    p('s_waitcnt vmcnt(0)')
    p('s_barrier')
    q = Prog()
    qk = qk_list(o, czero=True)
    for n in range(2):
        for s in kread(o, n, 0): q(s)
    for sl in range(64):
        if sl % 8 == 0 and sl // 8 + 1 < 8:
            for s in kread(o, 2 * (sl // 8 + 1), 0) + kread(o, 2 * (sl // 8 + 1) + 1, 0): q(s)
        q(qk[sl])
    w, _ = insert_waits(q.ins)
    p.extend(w)
    p('s_nop 7'); p('s_nop 7')
    t = TMP
    for b in range(4):
        max8(p, t, b)
        xlane_max(p, t)
        for r in range(4):
            p('v_sub_f32 v%d, 0, v%d' % (NEGM + 4 * b + r, t))
        for a in range(2):
            for r in range(4):
                p('v_sub_f32 v%d, v%d, v%d' % (S(a, b) + r, S(a, b) + r, t))
    for i in range(8):
        p('v_mov_b32 v%d, 0' % (LREG[1] + i))
    for s in exps(o, 0, 0, 1, 0): p(s)
    for s in exps(o, 1, 0, 1, 0): p(s)
    for r in range(256):
        p('v_accvgpr_write_b32 a%d, 0' % r)
    p('s_waitcnt vmcnt(0) lgkmcnt(0)')
    p('s_barrier')
    for n in range(2):
        for s in kread(o, n, 1): p(s)
    p('s_waitcnt lgkmcnt(0)')
    p('s_memtime s[46:47]')
    p('s_memrealtime s[48:49]')
    p('s_waitcnt lgkmcnt(0)')
    p('s_mov_b32 s%d, %d' % (S_CNT, (o.nit - 2) // 2))
    p('.p2align 6')
    p('L_loop:')
    body = Prog()
    body.extend(iteration(o, 0, 'a'))
    body.extend(iteration(o, 1, 'b'))
    _, st = insert_waits(body.ins)
    w, st2 = insert_waits(body.ins, st)
    assert st2 == st, 'not steady'
    loop_ins = w
    p.extend(w)
    p('s_sub_u32 s%d, s%d, 1' % (S_CNT, S_CNT))
    p('s_cmp_lg_u32 s%d, 0' % S_CNT)
    p('s_cbranch_scc1 L_loop')
    tail = Prog()
    tail.extend(iteration(o, 0, 'c', do_dma_k=False, next_k=False))
    tail('s_waitcnt vmcnt(0) lgkmcnt(0)')
    tail('s_barrier')
    tail.extend(iteration(o, 1, 'd', do_qk=False, do_dma_k=False, do_dma_v=False, next_k=False))
    w, _ = insert_waits(tail.ins, st)
    tail_ins = w
    p.extend(w)
    p('s_nop 7'); p('s_nop 7')
    p('s_memtime s[50:51]')
    p('s_memrealtime s[52:53]')
    p('s_waitcnt lgkmcnt(0)')
    p('''
    s_lshl_b32 s44, s2, 18
    s_lshl_b32 s45, s%d, 16
    s_add_u32 s44, s44, s45
    s_add_u32 s44, s44, 0x2000000
    v_lshlrev_b32 v1, 4, v%d
    v_add_u32 v1, s44, v1
''' % (S_W, L))
    for r4 in range(64):
        if r4 % 4 == 0 and r4:
            p('v_add_u32 v1, 0x1000, v1')
        p('buffer_store_dwordx4 %s, v1, s[24:27], 0 offen offset:%d' % (ar(4 * r4, 4), (r4 % 4) * 1024))
    p('''
    s_lshl_b32 s44, s2, 2
    s_add_u32 s44, s44, s%d
    s_lshl_b32 s44, s44, 11
    s_add_u32 s44, s44, 0x8000000
    v_lshlrev_b32 v1, 2, v%d
    v_add_u32 v1, s44, v1
''' % (S_W, L))
    for b in range(4):
        p('buffer_store_dword v%d, v1, s[24:27], 0 offen offset:%d' % (NEGM + 4 * b, 256 * b))
        lr = lreg(o, 1, b)
        if o.summ == 'pk':
            p('v_add_f32 v%d, v%d, v%d' % (lr, lr, lr + 1))
        p('buffer_store_dword v%d, v1, s[24:27], 0 offen offset:%d' % (lr, 1024 + 256 * b))
    p('''
    s_lshl_b32 s44, s2, 2
    s_add_u32 s44, s44, s%d
    s_lshl_b32 s44, s44, 5
    s_add_u32 s44, s44, 0xa000000
    s_sub_u32 s50, s50, s46
    s_subb_u32 s51, s51, s47
    s_sub_u32 s52, s52, s48
    s_subb_u32 s53, s53, s49
    s_getreg_b32 s54, hwreg(HW_REG_XCC_ID)
    v_mov_b32 v2, s50
    v_mov_b32 v3, s52
    v_mov_b32 v4, s54
    v_mov_b32 v5, s48
    v_mov_b32 v1, s44
    v_cmp_eq_u32 vcc, 0, v%d
    s_and_saveexec_b64 s[56:57], vcc
    s_cbranch_execz L_nostamp
    buffer_store_dwordx4 v[2:5], v1, s[24:27], 0 offen
L_nostamp:
    s_mov_b64 exec, s[56:57]
''' % (S_W, L))
    p('s_waitcnt vmcnt(0)')
    p('L_end:')
    p('s_endpgm')
    if o.valu:
        for tag, par in (('a', 0), ('b', 1), ('c', 0)):
            p('L_rare_%s:' % tag)
            p('s_call_b64 s[%d:%d], L_fb_%d' % (S_RET, S_RET + 1, par))
            p('s_branch L_back_%s' % tag)
        p.extend(fallback(o, 0))
        p.extend(fallback(o, 1))
    probs = check_hazards(loop_ins + loop_ins, 'loop') + check_hazards(loop_ins + tail_ins, 'tail') + check_hazards(p.ins, 'all')
    hdr = '''; @launch grid=(256,1,1) block=(256,1,1) lds=%d
.amdgcn_target "amdgcn-amd-amdhsa--gfx950"
.text
.globl attn_kernel
.p2align 8
.type attn_kernel,@function
''' % (4 * KBUF)
    ftr = '''
.section .rodata,"a"
.p2align 6
.amdhsa_kernel attn_kernel
  .amdhsa_next_free_vgpr 512
  .amdhsa_next_free_sgpr 96
  .amdhsa_accum_offset 256
  .amdhsa_group_segment_fixed_size 0
  .amdhsa_kernarg_size 120
  .amdhsa_user_sgpr_count 2
  .amdhsa_user_sgpr_kernarg_segment_ptr 1
  .amdhsa_system_sgpr_workgroup_id_x 1
  .amdhsa_float_denorm_mode_32 3
.end_amdhsa_kernel
'''
    return hdr + p.text() + ftr, probs, loop_ins

if __name__ == '__main__':
    o = Opt()
    out = sys.argv[1]
    for kv in sys.argv[2:]:
        k, v = kv.split('=')
        try: v = int(v, 0)
        except ValueError:
            if v.startswith('['): v = eval(v)
        setattr(o, k, v)
    txt, probs, loop = build(o)
    for pr in probs[:12]: print(pr)
    n = sum(1 for i in loop if i.kind not in ('label', 'dir'))
    print(out, 'hazards:', len(probs), 'loop instrs', n, 'bytes', sum(size_of(i) for i in loop))
    open(out, 'w').write(txt)
```

```python
from asmlib import *
import gen_attn2 as A
from gen_attn2 import (vr, ar, BLK, HALF, KBUF, VBASE, SREG, PBUF, NEGM, FR, VK, VV, VOFF, LREG, TMP, VLANE,
                       S_K0, S_K1, S_V0, S_V1, S_DST, S_THR, S_RET, S_CNT, S_W, S_96, S, frag, kread, vread, qk_list, exps, dma,
                       max8, lreg)

WS_MOD = 0
WS_R = 0x4000
WS_IDX = 0x8000
WS_ACT = 0x10000
WS_H2 = 0x100000
WS_PART = 0x400000
WS_STAMP = 0xa000000

H_OFF = 0
MV_OFF = 57344
QSLOT = [98304, 131072, 65536, 32768]
QX = 67584
XR = 0
ST = 131072
WO0 = 135168

S_G, S_QB, S_S, S_QH = 36, 37, 38, 39
S_X = 40
S_WQ = 44
S_WO = 48
S_SO = 52
S_T0, S_T1, S_T2, S_T3 = 60, 61, 62, 63
S_QD = 64
S_QD2 = 32
S_WST = 65
S_PART = 68
S_STAMP = 72

class VmTracker:
    def __init__(self): self.ops = []
    def add(self, tag): self.ops.append(tag)
    def wait(self, tag):
        idx = max(i for i, t in enumerate(self.ops) if t == tag)
        n = len(self.ops) - 1 - idx
        assert n <= 63
        return 's_waitcnt vmcnt(%d)' % n

STAMPS = {1: ['start', 'ln_done', 'qproj', 'qexch', 'attnpro', 'loop', 'oproj', 'end'],
          2: ['start', 'xwait', 'stats', 'modbar', 'hbar', 'ln_done', 'qproj', 'end'],
          4: ['start', 'p_w', 'p_bar', 'p_st', 'stats', 'poll_done', 'modbar', 'end'],
          3: ['start', 'loop', 'e1bar', 'comb', 'e3bar', 'oproj', 'stores', 'end']}
def stamp(p, o, name):
    if o.stamps and name in STAMPS[o.stamps]:
        k = STAMPS[o.stamps].index(name)
        p('s_memrealtime s[%d:%d]' % (S_STAMP + 2 * k, S_STAMP + 2 * k + 1))
        if name in ('xwait', 'stats', 'modbar', 'hbar', 'e1bar', 'comb', 'e3bar', 'p_w', 'p_bar', 'p_st', 'poll_done'): p('s_waitcnt lgkmcnt(0)')

def xreduce(p, r, t, op='v_add_f32'):
    p('v_mov_b32 v%d, v%d' % (t, r))
    p('s_nop 1')
    p('v_permlane16_swap_b32 v%d, v%d' % (r, t))
    p('s_nop 1')
    p('%s v%d, v%d, v%d' % (op, r, r, t))
    p('v_mov_b32 v%d, v%d' % (t, r))
    p('s_nop 1')
    p('v_permlane32_swap_b32 v%d, v%d' % (r, t))
    p('s_nop 1')
    p('%s v%d, v%d, v%d' % (op, r, r, t))

def wq_dma(step, vm, VQ):
    out = []
    slot = QSLOT[step % 4]
    for jj in range(8):
        if jj % 4 == 0:
            out.append('s_add_u32 m0, s%d, %d' % (S_QD2, slot + jj * 1024))
        out.append(('buffer_load_dwordx4 v%d, s[%d:%d], s%d offen offset:%d lds' % (VQ[(jj >> 1) & 1], S_WQ, S_WQ + 3, S_SO + jj, (jj & 3) * 1024), 'wq%d' % step))
    return out

def emit_dma(p, lst, vm, nop=True):
    for s in lst:
        if isinstance(s, tuple):
            p(s[0]); vm.add(s[1])
        else:
            p(s)
            if nop and s.startswith('s_') and 'm0' in s: p('s_nop 0')

def mod_producer(o, p):
    C0, W0, HI, ACC, TT = 60, 76, 132, 148, 156
    for i in range(14): p('v_lshlrev_b32 v%d, 16, v%d' % (C0 + i, C0 + i))
    for i in range(14): p('v_mul_f32 v%d, 0xbfb8aa3b, v%d' % (HI + i, C0 + i))
    for i in range(14): p('v_exp_f32 v%d, v%d' % (HI + i, HI + i))
    for i in range(14): p('v_add_f32 v%d, 1.0, v%d' % (HI + i, HI + i))
    for i in range(14): p('v_rcp_f32 v%d, v%d' % (HI + i, HI + i))
    for i in range(14): p('v_mul_f32 v%d, v%d, v%d' % (C0 + i, C0 + i, HI + i))
    for i in range(14): p('v_cvt_pk_bf16_f32 v%d, v%d, 0' % (C0 + i, C0 + i))
    for i in range(14): p('v_lshlrev_b32 v%d, 16, v%d' % (HI + i, C0 + i))
    for j in range(8): p('v_mov_b32 v%d, 0' % (ACC + j))
    p('s_waitcnt vmcnt(14)')
    stamp(p, o, 'p_w')
    for i in range(14):
        for j in range(8):
            w = W0 + 4 * i + j // 2
            sel = (C0 + i) if j % 2 == 0 else (HI + i)
            p('v_dot2_f32_bf16 v%d, v%d, v%d, v%d' % (ACC + j, w, sel, ACC + j))
    p('s_nop 2')
    regs = [ACC + j for j in range(8)]; temps = [TT + j for j in range(8)]
    for r in regs:
        p('v_add_f32_dpp v%d, v%d, v%d row_ror:8 row_mask:0xf bank_mask:0xf' % (r, r, r))
    for sw in ('v_permlane16_swap_b32', 'v_permlane32_swap_b32'):
        for r, t in zip(regs, temps): p('v_mov_b32 v%d, v%d' % (t, r))
        p('s_nop 1')
        for r, t in zip(regs, temps): p('%s v%d, v%d' % (sw, r, t))
        p('s_nop 1')
        for r, t in zip(regs, temps): p('v_add_f32 v%d, v%d, v%d' % (r, r, t))
    p("""
    v_and_b32 v164, 7, v%d
    s_lshl_b32 s60, s%d, 8
    v_lshlrev_b32 v164, 5, v164
    v_add_u32 v164, s60, v164
    ds_write_b128 v164, v[148:151] offset:%d
    ds_write_b128 v164, v[152:155] offset:%d
    s_waitcnt lgkmcnt(0)
    s_barrier
    ;STAMP p_bar
    s_cmp_lg_u32 s%d, 0
    s_cbranch_scc1 L_prod_done
    v_lshlrev_b32 v164, 2, v%d
    ds_read_b32 v165, v164 offset:%d
    ds_read_b32 v166, v164 offset:%d
    ds_read_b32 v167, v164 offset:%d
    ds_read_b32 v168, v164 offset:%d
    s_mul_i32 s60, s2, 37
    s_lshr_b32 s60, s60, 8          ; segment = wg / 7
    s_waitcnt lgkmcnt(0)
    v_add_f32 v165, v165, v166
    v_add_f32 v167, v167, v168
    v_add_f32 v165, v165, v167
    v_cvt_pk_bf16_f32 v165, v165, 0
    v_lshlrev_b32 v165, 16, v165
    s_cmp_eq_u32 s60, 1
    s_cselect_b32 s61, 1, 0
    s_cmp_eq_u32 s60, 4
    s_cselect_b32 s61, 1, s61
    s_cmp_eq_u32 s61, 0
    s_cbranch_scc1 L_prod_noone
    v_add_f32 v165, 1.0, v165
    v_cvt_pk_bf16_f32 v165, v165, 0
    v_lshlrev_b32 v165, 16, v165
L_prod_noone:
    s_cmp_lt_u32 s60, 2
    s_cbranch_scc0 L_prod_noscale
    v_mul_f32 v165, 0x3db8aa3b, v165      ; fold log2(e)/16 of the attention scores into sa and (1+ca)
L_prod_noscale:
    s_lshl_b32 s61, s2, 8
    v_add_u32 v164, s61, v164
    buffer_store_dword v165, v164, s[24:27], 0 offen sc1
    s_waitcnt vmcnt(0)
    ;STAMP p_st
    s_cmp_lt_u32 s60, 2
    s_cbranch_scc0 L_prod_done
    v_mov_b32 v165, 1
    v_mov_b32 v164, 0
    v_cmp_eq_u32 vcc, 0, v%d
    s_and_saveexec_b64 s[62:63], vcc
    buffer_atomic_add v165, v164, s[88:91], 0 offen sc0 sc1
    s_waitcnt vmcnt(0)
    v_readfirstlane_b32 s60, v165
    s_cmp_eq_u32 s60, 13
    s_cbranch_scc0 L_prod_notlast
    v_mov_b32 v165, 1
    buffer_store_dword v165, v164, s[88:91], 0 offen offset:128 sc1
L_prod_notlast:
    s_mov_b64 exec, s[62:63]
L_prod_done:
""" % (VLANE, S_W, MV_OFF + 4096, MV_OFF + 4096 + 16, S_W, VLANE, MV_OFF + 4096, MV_OFF + 4096 + 256, MV_OFF + 4096 + 512, MV_OFF + 4096 + 768, VLANE))

def prologue(o):
    p = Prog()
    L = VLANE
    vm = VmTracker()
    p("""
    s_cmp_ge_u32 s2, 256
    s_cbranch_scc1 L_end_k1
    s_load_dwordx2 s[40:41], s[0:1], 0
    s_load_dwordx4 s[4:7], s[0:1], 8
    s_load_dwordx4 s[44:47], s[0:1], 24
    s_load_dwordx4 s[64:67], s[0:1], 80
    s_load_dwordx4 s[88:91], s[0:1], 104
    s_load_dwordx4 s[96:99], s[0:1], 56
    s_load_dwordx2 s[100:101], s[0:1], 72
    v_lshrrev_b32 v1, 6, v0
    v_and_b32 v%d, 63, v0
    s_nop 0
    v_readfirstlane_b32 s%d, v1
    s_and_b32 s%d, s2, 7          ; g
    s_lshr_b32 s%d, s2, 3         ; qb
    s_lshr_b32 s%d, s%d, 1        ; s (key half)
    s_and_b32 s%d, s%d, 1         ; qh
""" % (L, S_W, S_G, S_QB, S_S, S_W, S_QH, S_W))
    if o.stamps:
        p('s_memrealtime s[%d:%d]' % (S_STAMP, S_STAMP + 1))
    p("""
    v_and_b32 v200, 15, v%d           ; n
    v_lshrrev_b32 v201, 4, v%d        ; kq
    s_lshl_b32 s60, s%d, 4
    v_add_u32 v202, s60, v200
    v_mul_u32_u24 v202, 896, v202
    v_lshl_add_u32 v202, v201, 4, v202
    s_mul_i32 s60, s%d, 57344
    s_waitcnt lgkmcnt(0)
    s_mov_b32 s24, s90
    s_mov_b32 s25, s91
    s_mov_b32 s26, 0x10000000
    s_mov_b32 s27, 0x20000
    s_mov_b32 s90, 256
    s_mov_b32 s91, 0x20000
    s_add_u32 s40, s40, s60
    s_addc_u32 s41, s41, 0
    s_mov_b32 s42, 57344
    s_mov_b32 s43, 0x20000
""" % (L, L, S_W, S_QB))
    p("""
    s_cmp_ge_u32 s2, 42
    s_cbranch_scc1 L_noprod_a
    s_mov_b32 s68, s64
    s_mov_b32 s69, s65
    s_mov_b32 s70, 896
    s_mov_b32 s71, 0x20000
    s_mov_b32 s64, s66
    s_mov_b32 s65, s67
    s_mov_b32 s66, %d
    s_mov_b32 s67, 0x20000
    v_and_b32 v206, 7, v0
    v_lshrrev_b32 v207, 3, v0
    v_mul_u32_u24 v208, 5376, v207
    v_lshl_add_u32 v208, v206, 4, v208
    s_lshl_b32 s60, s2, 7
    v_add_u32 v208, s60, v208
    v_lshlrev_b32 v209, 1, v207
""" % (448 * 5376))
    for i in range(14):
        p('buffer_load_ushort v%d, v209, s[68:71], 0 offen offset:%d' % (60 + i, 64 * i))
    p('s_mov_b32 s60, %d' % (32 * 5376))
    for i in range(14):
        p('buffer_load_dwordx4 %s, v208, s[64:67], 0 offen' % vr(76 + 4 * i, 4))
        if i < 13: p('v_add_u32 v208, s60, v208')
    p('L_noprod_a:')
    for ks in range(14):
        p('buffer_load_dwordx4 %s, v202, s[40:43], 0 offen offset:%d' % (vr(4 * ks, 4), ks * 64)); vm.add('x')
    p("""
    s_cmp_ge_u32 s2, 42
    s_cbranch_scc1 L_noprod_b
    s_waitcnt vmcnt(28)
""")
    mod_producer(o, p)
    p('L_noprod_b:')
    p("""
    s_mov_b32 s48, s46
    s_mov_b32 s49, s47
    s_mul_i32 s60, s%d, 458752
    s_add_u32 s48, s48, s60
    s_addc_u32 s49, s49, 0
    s_mov_b32 s50, 458752
    s_mov_b32 s51, 0x20000
    s_lshl_b32 s60, s%d, 10
    s_add_u32 s44, s44, s60
    s_addc_u32 s45, s45, 0
    s_sub_u32 s46, 3670016, s60
    s_mov_b32 s47, 0x20000
""" % (S_G, S_G))
    if o.pf:
        D = o.pfd
        p("""
    s_lshl_b32 s60, s%d, 20
    s_cmp_lt_u32 s%d, 16
    s_cselect_b32 s92, s4, s6
    s_cselect_b32 s93, s5, s7
    s_add_u32 s92, s92, s60
    s_addc_u32 s93, s93, 0
    s_mov_b32 s94, 0x100000
    s_mov_b32 s95, 0x20000
    s_and_b32 s60, s%d, 15
    s_lshl_b32 s60, s60, 4
    s_lshl_b32 s61, s%d, 2
    s_add_u32 s60, s60, s61            ; line0 = (qb&15)*16 + w*4
    v_and_b32 v206, 3, v%d
    v_add_u32 v206, s60, v206
    v_lshlrev_b32 v206, 7, v206        ; line*128
    v_lshrrev_b32 v207, 2, v%d         ; tile = lane>>2
    v_lshl_add_u32 v207, v207, 15, v206
    v_mov_b32 v208, 0x40000000
    v_cmp_gt_u32 vcc, %d, v%d
    s_nop 1
    v_cndmask_b32 v207, v208, v207, vcc
    v_cmp_gt_u32 vcc, 4, v%d
    v_add_u32 v206, %d, v206
    s_nop 0
    v_cndmask_b32 v%d, v208, v206, vcc
""" % (S_G, S_QB, S_QB, S_W, L, L, 4 * D, L, L, D * 32768, A.VPFA))
        p("""
    s_mul_i32 s60, s%d, 112
    s_mul_i32 s61, s%d, 28
    s_add_u32 s60, s60, s61
    v_add_u32 v206, s60, v%d
    v_lshrrev_b32 v209, 3, v206
    v_lshlrev_b32 v209, 13, v209
    v_and_b32 v210, 7, v206
    v_lshl_add_u32 v209, v210, 7, v209
    v_lshlrev_b32 v206, 7, v206        ; wo prefetch offset = L*128
    v_cmp_gt_u32 vcc, 28, v%d
    s_nop 1
    v_cndmask_b32 v209, v208, v209, vcc
    v_cndmask_b32 v242, v208, v206, vcc
    v_mov_b32 v240, v209
    v_mov_b32 v241, v207
""" % (S_QB, S_W, L, L))
        p("""
    s_mul_i32 s60, s2, 49
    s_mul_i32 s61, s%d, 13
    s_add_u32 s60, s60, s61
    v_add_u32 v206, s60, v%d
    v_min_u32 v206, 12543, v206
    v_lshlrev_b32 v243, 7, v206
""" % (S_W, L))
    VQ = (204, 205)
    p("""
    v_lshlrev_b32 v206, 1, v201       ; 2*rr
    v_xor_b32 v206, v206, v200        ; slot ^ 2rr
    v_lshlrev_b32 v206, 4, v206
    v_lshl_add_u32 v206, v201, 13, v206
    s_lshl_b32 s60, s%d, 8
    v_add_u32 v204, s60, v206
    v_xor_b32 v205, 0x80, v204
    s_lshl_b32 s%d, s%d, 13
""" % (S_W, S_QD2, S_W))
    for jj in range(8):
        p('s_mov_b32 s%d, %d' % (S_SO + jj, jj * 32768 - (jj & 3) * 1024))
    p("""
    s_lshl_b32 s60, s%d, 20
    s_add_u32 s8, s4, s60
    s_addc_u32 s9, s5, 0
    s_sub_u32 s8, s8, 96
    s_subb_u32 s9, s9, 0
    s_mov_b32 s10, %d
    s_mov_b32 s11, 0x20000
    s_add_u32 s12, s8, 4096
    s_addc_u32 s13, s9, 0
    s_mov_b32 s14, %d
    s_mov_b32 s15, 0x20000
    s_add_u32 s16, s6, s60
    s_addc_u32 s17, s7, 0
    s_sub_u32 s16, s16, 96
    s_subb_u32 s17, s17, 0
    s_mov_b32 s18, %d
    s_mov_b32 s19, 0x20000
    s_add_u32 s20, s16, 4096
    s_addc_u32 s21, s17, 0
    s_mov_b32 s22, %d
    s_mov_b32 s23, 0x20000
    s_mov_b32 s%d, 96
    s_mul_i32 s61, s%d, %d
    s_mul_i32 s62, s%d, %d
    s_add_u32 s%d, s61, s62       ; LDS DMA dest base for K/V
    s_mov_b32 s%d, 0x%x
""" % (S_G, (1 << 20) + 96, (1 << 20) + 96 - 4096, (1 << 20) + 96, (1 << 20) + 96 - 4096, S_96, S_S, HALF, S_QH, 8 * BLK, S_DST, S_THR, o.thr))
    XC = 56
    ONE = 210; SELLO = 211; SELHI = 212; ACC = 214
    p('v_mov_b32 v%d, 0x3f803f80' % ONE)
    p('v_mov_b32 v%d, 0x00003f80' % SELLO)
    p('v_mov_b32 v%d, 0x3f800000' % SELHI)
    for i in range(4): p('v_mov_b32 v%d, 0' % (ACC + i))
    p(vm.wait('x'))
    stamp(p, o, 'xwait')
    if o.pf:
        p('buffer_load_dword v253, v240, s[44:47], 0 offen'); vm.add('pf')
    dmas = []
    for st in range(3):
        dmas += wq_dma(st, vm, VQ)
        dmas += ['v_add_u32 v204, 0x40000, v204', 'v_add_u32 v205, 0x40000, v205']
    valu = []
    for i in range(56):
        valu.append('v_dot2_f32_bf16 v%d, v%d, v%d, v%d' % (ACC + i % 4, i, ONE, ACC + i % 4))
    r = Prog()
    r('s_nop 2')
    r('v_add_f32 v%d, v%d, v%d' % (ACC, ACC, ACC + 1))
    r('v_add_f32 v%d, v%d, v%d' % (ACC + 2, ACC + 2, ACC + 3))
    r('v_add_f32 v%d, v%d, v%d' % (ACC, ACC, ACC + 2))
    xreduce(r, ACC, ACC + 1)
    r('v_mul_f32 v%d, 0x%x, v%d' % (ACC, 0xbb124925, ACC))
    valu.append([i.text for i in r.ins])
    for i in range(56):
        valu.append('v_dot2_f32_bf16 v%d, v%d, v%d, v%d' % (XC + 2 * i, i, SELLO, ACC))
        valu.append('v_dot2_f32_bf16 v%d, v%d, v%d, v%d' % (XC + 2 * i + 1, i, SELHI, ACC))
    V2 = 216
    valu.append(['v_mov_b32 v%d, 0' % (V2 + i) for i in range(4)])
    for i in range(56):
        a_ = V2 + 2 * (i % 2)
        valu.append('v_pk_fma_f32 %s, %s, %s, %s' % (vr(a_, 2), vr(XC + 2 * i, 2), vr(XC + 2 * i, 2), vr(a_, 2)))
    di = 0
    for k, v in enumerate(valu):
        if isinstance(v, list):
            for x in v: p(x)
        else: p(v)
        if k % 6 == 5 and di < len(dmas):
            while di < len(dmas):
                d = dmas[di]; di += 1
                if isinstance(d, tuple):
                    p(d[0]); vm.add(d[1]); break
                p(d)
                if 'm0' in d:
                    p('s_nop 0')
    while di < len(dmas):
        d = dmas[di]; di += 1
        if isinstance(d, tuple): p(d[0]); vm.add(d[1])
        else:
            p(d)
            if 'm0' in d: p('s_nop 0')
    p('v_add_f32 v%d, v%d, v%d' % (V2, V2, V2 + 1))
    p('v_add_f32 v%d, v%d, v%d' % (V2 + 2, V2 + 2, V2 + 3))
    p('v_add_f32 v%d, v%d, v%d' % (V2, V2, V2 + 2))
    xreduce(p, V2, V2 + 1)
    p('v_mov_b32 v%d, 0x3727c5ac' % (V2 + 1))
    p('v_fmac_f32 v%d, 0x3b124925, v%d' % (V2 + 1, V2))
    p('v_rsq_f32 v%d, v%d' % (V2, V2 + 1))
    p('s_nop 0')
    p('v_mov_b32 v%d, v%d' % (V2 + 1, V2))
    if o.pf and o.pf_kv_early:
        p('buffer_load_dword v254, v241, s[92:95], 0 offen'); vm.add('pf')
    stamp(p, o, 'stats')
    p("""
    s_cmp_lg_u32 s%d, 0
    s_cbranch_scc1 L_modwait_done
    v_mov_b32 v206, 0
L_poll:
    buffer_load_dword v207, v206, s[88:91], 0 offen offset:128 sc1
    s_waitcnt vmcnt(0)
    v_readfirstlane_b32 s60, v207
    s_cmp_eq_u32 s60, 1
    s_cbranch_scc1 L_poll_done
    s_sleep 8
    s_branch L_poll
L_poll_done:
    ;STAMP poll_done
    v_lshlrev_b32 v206, 4, v%d
    buffer_load_dwordx4 v[168:171], v206, s[24:27], 0 offen sc1
    buffer_load_dwordx4 v[172:175], v206, s[24:27], 0 offen offset:1024 sc1
    buffer_load_dwordx4 v[176:179], v206, s[24:27], 0 offen offset:2048 sc1
    buffer_load_dwordx4 v[180:183], v206, s[24:27], 0 offen offset:3072 sc1
    s_waitcnt vmcnt(0)
    ds_write_b128 v206, v[168:171] offset:%d
    ds_write_b128 v206, v[172:175] offset:%d
    ds_write_b128 v206, v[176:179] offset:%d
    ds_write_b128 v206, v[180:183] offset:%d
    s_waitcnt lgkmcnt(0)
L_modwait_done:
    s_barrier
""" % (S_W, L, MV_OFF, MV_OFF + 1024, MV_OFF + 2048, MV_OFF + 3072))
    stamp(p, o, 'modbar')
    if o.pf and not o.pf_kv_early:
        p('buffer_load_dword v254, v241, s[92:95], 0 offen'); vm.add('pf')
    MVA = 222; HA = 223
    p('v_lshlrev_b32 v%d, 5, v201' % MVA)
    p('v_add_u32 v%d, %d, v%d' % (MVA, MV_OFF, MVA))
    p('s_mul_i32 s60, s%d, 14336' % S_W)
    p('v_lshlrev_b32 v%d, 4, v%d' % (HA, L))
    p('v_add_u32 v%d, s60, v%d' % (HA, HA))
    q = Prog()
    TA = [16, 32, 168, 184]
    def mvread(ks):
        t = TA[ks % 4]
        q('ds_read_b128 %s, v%d offset:%d' % (vr(t, 4), MVA, ks * 128))
        q('ds_read_b128 %s, v%d offset:%d' % (vr(t + 4, 4), MVA, ks * 128 + 16))
        q('ds_read_b128 %s, v%d offset:%d' % (vr(t + 8, 4), MVA, 1792 + ks * 128))
        q('ds_read_b128 %s, v%d offset:%d' % (vr(t + 12, 4), MVA, 1792 + ks * 128 + 16))
    for ks in range(3): mvread(ks)
    for ks in range(14):
        if ks + 3 < 14: mvread(ks + 3)
        t = TA[ks % 4]
        for j in range(4):
            q('v_pk_mul_f32 %s, %s, %s' % (vr(t + 8 + 2 * j, 2), vr(t + 8 + 2 * j, 2), vr(V2, 2)))
        for j in range(4):
            q('v_pk_fma_f32 %s, %s, %s, %s' % (vr(t + 2 * j, 2), vr(XC + 8 * ks + 2 * j, 2), vr(t + 8 + 2 * j, 2), vr(t + 2 * j, 2)))
        hr = 4 * (ks % 4)
        for j in range(4):
            q('v_cvt_pk_bf16_f32 v%d, v%d, v%d' % (hr + j, t + 2 * j, t + 2 * j + 1))
        q('ds_write_b128 v%d, %s offset:%d' % (HA, vr(hr, 4), H_OFF + ks * 1024))
    w, _ = insert_waits(q.ins)
    p.extend(w)
    p('s_waitcnt lgkmcnt(0)')
    p('s_barrier')
    stamp(p, o, 'hbar')
    p('v_lshlrev_b32 v%d, 4, v%d' % (HA, L))
    for st in range(14):
        for qt in range(4):
            f = qt * 14 + st
            p('ds_read_b128 %s, v%d offset:%d' % (ar(4 * f, 4), HA, H_OFF + f * 1024))
    VA = 232
    p("""
    v_bfe_u32 v206, v%d, 2, 2          ; r
    v_and_b32 v207, 1, v201            ; kq&1
    v_lshl_add_u32 v207, v207, 2, v206 ; f = r + 4*(kq&1)
    v_lshlrev_b32 v208, 11, v201       ; 2*kq*1024
    v_lshl_add_u32 v208, v206, 8, v208 ; + r*256
    v_and_b32 v209, 3, v%d             ; c
    v_lshl_add_u32 v208, v209, 3, v208 ; + c*8
    v_add_u32 v208, s%d, v208          ; + w*8192
""" % (L, L, S_QD2))
    for T in range(8):
        p('v_xor_b32 v209, %d, v207' % T)
        p('v_lshl_add_u32 v%d, v209, 5, v208' % (VA + T))
    p('s_waitcnt lgkmcnt(0)')
    p('s_barrier')
    stamp(p, o, 'ln_done')
    return p, vm, VQ, VA

def qproj(o, vm, VQ, VA):
    p = Prog()
    N = 14 * 32
    sc = [[] for _ in range(N)]; mem = [[] for _ in range(N)]; val = [[] for _ in range(N)]
    def aread(n):
        st, T = n // 8, n % 8
        r = FR + 4 * (n % 4)
        off = QSLOT[st % 4]
        return st, T, r, off
    reads = []
    for n in range(14 * 8):
        st, T, r, off = aread(n)
        reads.append(['ds_read_b64_tr_b16 %s, v%d offset:%d' % (vr(r, 2), VA + T, 0),
                      'ds_read_b64_tr_b16 %s, v%d offset:%d' % (vr(r + 2, 2), VA + T, 1024)])
    pre = Prog()
    for T in range(8):
        pre('v_add_u32 v%d, %d, v%d' % (VA + T, QSLOT[0], VA + T))
    pre(vm.wait('wq0'))
    for n in range(3):
        for s in reads[n]: pre(s)
    for n in range(14 * 8):
        st, T = n // 8, n % 8
        g = 4 * (n - 3)
        if n >= 3:
            mem[g] += reads[n]
        if st + 1 < 14:
            d = QSLOT[(st + 1) % 4] - QSLOT[st % 4]
            upd = 'v_add_u32 v%d, %s, v%d' % (VA + T, ('0x%x' % (d & 0xffffffff)), VA + T)
            if n >= 3: val[g + 1].append(upd)
            else: val[n + 1].append(upd)
    for st in range(14):
        base = st * 32
        lst = None
        if st <= 10:
            lst = wq_dma(st + 3, vm, VQ)
            post = ['v_add_u32 v%d, 0x40000, v%d' % (VQ[0], VQ[0]), 'v_add_u32 v%d, 0x40000, v%d' % (VQ[1], VQ[1])]
        elif st >= 12:
            lst = [(s if s.startswith('s_') else (s, 'k%d' % (st - 12))) for s in dma(o, st - 12, 0, True, False)]
            post = ['v_add_u32 v%d, 0x8000, v%d' % (VOFF, VOFF)]
        if lst:
            gi = 0
            gaps = [base + 2 + 4 * i for i in range(8)]
            for s in lst:
                if isinstance(s, tuple):
                    mem[gaps[gi]].append(s); gi += 1
                else:
                    sc[gaps[gi] - 1].append(s)
            for i, s in enumerate(post):
                val[base + 31].append(s)
    p.extend(pre)
    for gidx in range(N):
        st, rem = gidx // 32, gidx % 32
        T, qt = rem // 4, rem % 4
        n = st * 8 + T
        acc = (T * 4 + qt) * 4
        c = '0' if st == 0 else vr(acc, 4)
        m = 'v_mfma_f32_16x16x32_bf16 %s, %s, %s, %s' % (vr(acc, 4), vr(FR + 4 * (n % 4), 4), ar((qt * 14 + st) * 4, 4), c)
        p(m)
        if gidx + 1 < N:
            st2, rem2 = (gidx + 1) // 32, (gidx + 1) % 32
            if rem2 % 4 == 0:
                n2 = st2 * 8 + rem2 // 4
                p('.need v_mfma_f32_16x16x32_bf16 v[0:3], %s, v[0:3], 0' % vr(FR + 4 * (n2 % 4), 4))
        if rem == 20 and st + 1 < 14:
            p(vm.wait('wq%d' % (st + 1)))
        if st == 11 and rem == 31:
            p('s_barrier')
        for s in sc[gidx]: p(s)
        for s in mem[gidx]:
            if isinstance(s, tuple):
                p(s[0]); vm.add(s[1])
            else: p(s)
        for s in val[gidx]: p(s)
    return p

def kv_addresses(o):
    p = Prog()
    L = VLANE
    p('''
    s_mul_i32 s61, s%d, %d
    s_lshl_b32 s62, s%d, 14
    s_lshl_b32 s63, s%d, 13
    s_add_u32 s62, s62, s63
    v_lshlrev_b32 v%d, 4, v%d
    v_add_u32 v%d, s62, v%d
''' % (S_S, HALF, S_S, S_QH, VOFF, L, VOFF, VOFF))
    p('''
    v_and_b32 v240, 7, v%d
    v_mul_u32_u24 v240, %d, v240
    v_bfe_u32 v241, v%d, 3, 1
    v_lshlrev_b32 v241, 9, v241
    v_add_u32 v240, v240, v241
    v_lshrrev_b32 v241, 4, v%d
    v_lshlrev_b32 v241, 4, v241
    v_add_u32 v240, v240, v241
    v_add_u32 v%d, s61, v240
    v_lshrrev_b32 v240, 2, v%d
    v_and_b32 v241, 7, v240
    v_mul_u32_u24 v241, %d, v241
    v_lshrrev_b32 v240, 3, v240
    v_lshlrev_b32 v240, 9, v240
    v_add_u32 v240, v240, v241
    v_and_b32 v241, 3, v%d
    v_lshlrev_b32 v241, 3, v241
    v_add_u32 v240, v240, v241
    v_add_u32 v240, s61, v240
    v_add_u32 v%d, %d, v240
''' % (L, BLK, L, L, VK, L, BLK, L, VV, VBASE))
    return p

def qexchange(o, vm):
    p = Prog()
    L = VLANE
    p('s_nop 7')
    p('s_barrier')
    p('''
    v_and_b32 v200, 15, v%d
    v_lshrrev_b32 v201, 4, v%d
    v_mul_u32_u24 v202, 1040, v200
    v_lshl_add_u32 v202, v201, 3, v202
    s_lshl_b32 s60, s%d, 8
    s_add_u32 s60, s60, %d
    v_add_u32 v202, s60, v202
    s_mov_b32 s61, 0x%x
''' % (L, L, S_W, QX, 0x3db8aa3b))
    q = Prog()
    k = 0
    for T in range(8):
        for qt in range(4):
            a = (T * 4 + qt) * 4
            t = 128 + 2 * (k % 8)
            q('v_cvt_pk_bf16_f32 v%d, v%d, v%d' % (t, a, a + 1))
            q('v_cvt_pk_bf16_f32 v%d, v%d, v%d' % (t + 1, a + 2, a + 3))
            q('ds_write_b64 v202, %s offset:%d' % (vr(t, 2), qt * 16 * 1040 + T * 32))
            k += 1
    p.extend(q)
    p('s_waitcnt lgkmcnt(0)')
    p('s_barrier')
    p('''
    s_mul_i32 s60, s%d, %d
    s_add_u32 s60, s60, %d
    v_mul_u32_u24 v202, 1040, v200
    v_lshl_add_u32 v202, v201, 4, v202
    v_add_u32 v202, s60, v202
''' % (S_QH, 32 * 1040, QX))
    for h in range(2):
        for qt in range(2):
            b = 2 * h + qt
            for ks in range(8):
                p('ds_read_b128 %s, v202 offset:%d' % (vr(32 * b + 4 * ks, 4), qt * 16 * 1040 + h * 512 + ks * 64))
    p(vm.wait('k1'))
    p('s_waitcnt lgkmcnt(0)')
    p('s_barrier')
    return p

def attn_prologue(o):
    p = Prog()
    p('v_add_u32 v%d, 0xffff0000, v%d' % (VOFF, VOFF))
    p('s_nop 0')
    for s in dma(o, 0, 0, False, True, nop=True): p(s)
    p('v_add_u32 v%d, 0x8000, v%d' % (VOFF, VOFF))
    p('''
    s_add_u32 s8, s8, 0x8000
    s_addc_u32 s9, s9, 0
    s_sub_u32 s10, s10, 0x8000
    s_add_u32 s12, s12, 0x8000
    s_addc_u32 s13, s13, 0
    s_sub_u32 s14, s14, 0x8000
''')
    q = Prog()
    qk = qk_list(o, czero=True)
    for n in range(2):
        for s in kread(o, n, 0): q(s)
    for sl in range(64):
        if sl % 8 == 0 and sl // 8 + 1 < 8:
            for s in kread(o, 2 * (sl // 8 + 1), 0) + kread(o, 2 * (sl // 8 + 1) + 1, 0): q(s)
        q(qk[sl])
    w, _ = insert_waits(q.ins)
    p.extend(w)
    p('s_nop 7')
    t = TMP
    for b in range(4):
        max8(p, t + b, b)
    for b in range(4):
        xreduce(p, t + b, t + 4, 'v_max_f32')
    for b in range(4):
        for r in range(4):
            p('v_sub_f32 v%d, 0, v%d' % (NEGM + 4 * b + r, t + b))
        for a in range(2):
            for r in range(4):
                p('v_sub_f32 v%d, v%d, v%d' % (S(a, b) + r, S(a, b) + r, t + b))
    for i in range(4):
        p('v_mov_b32 v%d, 0' % (LREG[1] + i))
    for s in exps(o, 0, 0, 1, 0): p(s)
    for s in exps(o, 1, 0, 1, 0): p(s)
    p('s_waitcnt vmcnt(0) lgkmcnt(0)')
    p('s_barrier')
    for n in range(2):
        for s in kread(o, n, 1): p(s)
    p('s_waitcnt lgkmcnt(0)')
    return p

def attn_loop(o):
    p = Prog()
    first = A.iteration(o, 0, 'f', first_pv=True)
    w0, st0 = insert_waits(first.ins)
    p.extend(w0)
    p('s_mov_b32 s%d, 14' % S_CNT)
    p('.p2align 6')
    p('L_loop:')
    body = Prog()
    body.extend(A.iteration(o, 1, 'a'))
    body.extend(A.iteration(o, 0, 'b'))
    w1, st1 = insert_waits(body.ins, st0)
    w, st2 = insert_waits(body.ins, st1)
    assert st2 == st1 and [i.text for i in w] == [i.text for i in w1], 'not steady'
    loop_ins = w
    p.extend(w)
    p('s_sub_u32 s%d, s%d, 1' % (S_CNT, S_CNT))
    p('s_cmp_lg_u32 s%d, 0' % S_CNT)
    p('s_cbranch_scc1 L_loop')
    tail = Prog()
    ex = []
    if o.pf:
        ex = [(71, 'buffer_load_dword v255, v242, s[48:51], 0 offen')]
    tail.extend(A.iteration(o, 1, 'c', extra_mem=ex))
    ex = []
    if o.pf and o.pfmoe:
        ex = [(71, 'global_load_dword v255, v243, s[96:97]'), (75, 'global_load_dword v255, v243, s[98:99]'), (79, 'global_load_dword v255, v243, s[100:101]')]
    tail.extend(A.iteration(o, 0, 'd', do_dma_k=False, next_k=False, pf_ok=False, extra_mem=ex))
    tail('s_waitcnt vmcnt(%d) lgkmcnt(0)' % len(ex))
    tail('s_barrier')
    tail.extend(A.iteration(o, 1, 'e', do_qk=False, do_dma_k=False, do_dma_v=False, next_k=False))
    w, _ = insert_waits(tail.ins, st1)
    p.extend(w)
    return p, w0, loop_ins, w

def combine(o, s):
    p = Prog()
    L = VLANE
    own = s; oth = 1 - s
    k = 0
    for dt in range(16):
        for qt in range(2):
            b = 2 * oth + qt
            p('ds_write_b128 v200, %s offset:%d' % (ar((dt * 4 + b) * 4, 4), (dt * 2 + qt) * 1024))
    p('s_waitcnt lgkmcnt(0)')
    p('s_barrier')
    stamp(p, o, 'e1bar')
    q = Prog()
    q('ds_read_b128 v[204:207], v203')
    q('ds_read_b128 v[208:211], v203 offset:16')
    for dt in range(16):
        for qt in range(2):
            q('ds_read_b128 %s, v201 offset:%d' % (vr((dt * 2 + qt) * 4, 4), (dt * 2 + qt) * 1024))
    AL = 212; BE = 216
    for qt in range(2):
        b = 2 * own + qt
        mo = 224 + b
        mp = 204 + b
        lo = 228 + b; lp = 208 + b
        t = 220
        q('v_min_f32 v%d, v%d, v%d' % (t, mo, mp))
        q('v_sub_f32 v%d, v%d, v%d' % (t + 1, t, mo))
        q('v_sub_f32 v%d, v%d, v%d' % (t + 2, t, mp))
        q('v_exp_f32 v%d, v%d' % (t + 1, t + 1))
        q('v_exp_f32 v%d, v%d' % (t + 2, t + 2))
        q('s_nop 0')
        q('v_mul_f32 v%d, v%d, v%d' % (t + 3, t + 1, lo))
        q('v_fmac_f32 v%d, v%d, v%d' % (t + 3, t + 2, lp))
        q('v_rcp_f32 v%d, v%d' % (t + 3, t + 3))
        q('s_nop 0')
        q('v_mul_f32 v%d, v%d, v%d' % (AL + 2 * qt, t + 1, t + 3))
        q('v_mul_f32 v%d, v%d, v%d' % (BE + 2 * qt, t + 2, t + 3))
        q('v_mov_b32 v%d, v%d' % (AL + 2 * qt + 1, AL + 2 * qt))
        q('v_mov_b32 v%d, v%d' % (BE + 2 * qt + 1, BE + 2 * qt))
    k = 0
    for i in range(8):
        for qt in range(2):
            b = 2 * own + qt
            for y in range(2):
                dt = 2 * i + y
                rv = (dt * 2 + qt) * 4
                t = 192 + 4 * (k % 2); k += 1
                for r in range(4):
                    q('v_accvgpr_read_b32 v%d, a%d' % (t + r, (dt * 4 + b) * 4 + r))
                q('v_pk_mul_f32 %s, %s, %s' % (vr(rv, 2), vr(rv, 2), vr(BE + 2 * qt, 2)))
                q('v_pk_mul_f32 %s, %s, %s' % (vr(rv + 2, 2), vr(rv + 2, 2), vr(BE + 2 * qt, 2)))
                q('v_pk_fma_f32 %s, %s, %s, %s' % (vr(rv, 2), vr(t, 2), vr(AL + 2 * qt, 2), vr(rv, 2)))
                q('v_pk_fma_f32 %s, %s, %s, %s' % (vr(rv + 2, 2), vr(t + 2, 2), vr(AL + 2 * qt, 2), vr(rv + 2, 2)))
                f = 128 + (i * 2 + qt) * 4 + 2 * y
                q('v_cvt_pk_bf16_f32 v%d, v%d, v%d' % (f, rv, rv + 1))
                q('v_cvt_pk_bf16_f32 v%d, v%d, v%d' % (f + 1, rv + 2, rv + 3))
            q('ds_write_b128 v201, %s offset:%d' % (vr(128 + (i * 2 + qt) * 4, 4), (i * 2 + qt) * 1024))
    w, _ = insert_waits(q.ins)
    p.extend(w)
    return p

def wo_dma(step, slot, VW):
    out = []
    for jj in range(7):
        out.append('s_add_u32 m0, s%d, %d' % (S_T0 + slot, jj * 1024))
        out.append(('buffer_load_dwordx4 v%d, s[%d:%d], s%d offen lds' % (VW + jj, S_WO, S_WO + 3, S_WST), 'wo%d' % step))
    return out

def epilogue(o):
    p = Prog()
    L = VLANE
    vm = VmTracker()
    VW = 232
    p('s_nop 7')
    for b in range(4):
        p('v_mov_b32 v%d, v%d' % (224 + b, NEGM + 4 * b))
        p('v_mov_b32 v%d, v%d' % (228 + b, LREG[1] + b))
    for b in range(4):
        xreduce(p, 228 + b, TMP)
    p('s_mul_i32 s60, s%d, 224' % S_W)
    p('s_mov_b32 s61, 0x124925')
    for jj in range(7):
        p('v_add_u32 v200, %d, v%d' % (64 * jj, L))
        p('v_mul_u32_u24 v201, s61, v200')
        p('v_lshrrev_b32 v201, 24, v201')
        p('v_mul_u32_u24 v202, 14, v201')
        p('v_sub_u32 v202, v200, v202')
        p('v_mul_u32_u24 v201, 896, v201')
        p('v_lshl_add_u32 v201, v202, 4, v201')
        p('v_add_u32 v%d, s60, v201' % (VW + jj))
    p('''
    s_mul_i32 s60, s%d, 7168
    s_add_u32 s60, s60, %d
    s_lshl_b32 s61, s%d, 15
    s_add_u32 s61, s61, 16384
    s_add_u32 s62, s61, 7168
    s_mov_b32 s%d, 0
''' % (S_W, WO0, S_W, S_WST))
    emit_dma(p, wo_dma(0, 0, VW), vm)
    p('s_mov_b32 s%d, 28672' % S_WST)
    p('''
    v_and_b32 v203, 15, v%d
    v_lshlrev_b32 v203, 5, v203         ; n*32
    s_lshl_b32 s63, s%d, 9
    s_add_u32 s63, s63, %d
    v_add_u32 v202, s63, v203           ; own stats address
    s_xor_b32 s63, s%d, 2
    s_lshl_b32 s64, s63, 9
    s_add_u32 s64, s64, %d
    v_add_u32 v203, s64, v203           ; partner stats address
    v_lshlrev_b32 v200, 4, v%d
    s_lshl_b32 s63, s63, 15
    v_add_u32 v201, s63, v200           ; partner XR + lane*16
    s_lshl_b32 s63, s%d, 15
    v_add_u32 v200, s63, v200           ; own XR + lane*16
    s_barrier
    ds_write_b128 v202, v[224:227]
    ds_write_b128 v202, v[228:231] offset:16
    s_cmp_eq_u32 s%d, 0
    s_cbranch_scc0 L_comb1
''' % (L, S_W, ST, S_W, ST, L, S_W, S_S))
    c0 = combine(o, 0); c1 = combine(o, 1)
    p.extend(c0)
    p('s_branch L_combdone')
    p('L_comb1:')
    p.extend(c1)
    p('L_combdone:')
    stamp(p, o, 'comb')
    p('s_waitcnt lgkmcnt(0)')
    p('s_barrier')
    stamp(p, o, 'e3bar')
    emit_dma(p, wo_dma(1, 1, VW), vm)
    p('s_mov_b32 s%d, %d' % (S_WST, 2 * 28672))
    AW = 240
    BW = 244
    p('''
    v_lshrrev_b32 v200, 2, v%d          ; 4kq + r
    v_mul_u32_u24 v200, 224, v200
    v_and_b32 v201, 3, v%d
    v_lshl_add_u32 v200, v201, 3, v200
    v_add_u32 v%d, s60, v200
    v_add_u32 v%d, s61, v200
    v_add_u32 v%d, s62, v200
    v_lshlrev_b32 v200, 4, v%d
''' % (L, L, AW, AW + 1, AW + 2, L))
    for r in range(4):
        p('v_add_u32 v%d, %d, v200' % (BW + r, r * 32768))
    def bread(ks, qtile):
        h, i = ks >> 3, ks & 7
        qh, qt = qtile >> 1, qtile & 1
        reg = qh + 2 * (1 - h)
        return 'ds_read_b128 %s, v%d offset:%d' % (vr(112 + 16 * (ks % 2) + 4 * qtile, 4), BW + reg, (i * 2 + qt) * 1024)
    def aread(n):
        ks, T = n // 7, n % 7
        r = FR + 4 * (n % 4)
        return ['ds_read_b64_tr_b16 %s, v%d offset:%d' % (vr(r + 2 * a, 2), AW + ks % 3, a * 3584 + T * 32) for a in range(2)]
    N = 16 * 28
    sc = [[] for _ in range(N)]; mem = [[] for _ in range(N)]; val = [[] for _ in range(N)]
    pre = Prog()
    pre(vm.wait('wo0'))
    for qtile in range(4): pre(bread(0, qtile))
    for n in range(3):
        for s in aread(n): pre(s)
    for n in range(3, 16 * 7):
        mem[4 * (n - 3)] += aread(n)
    for ks in range(15):
        for qtile in range(4):
            mem[28 * ks + 4 * qtile + 5 + 8].append(bread(ks + 1, qtile))
    for ks in range(14):
        lst = wo_dma(ks + 2, (ks + 2) % 3, VW)
        gaps = [28 * ks + 2 + 4 * i for i in range(7)]
        gi = 0
        for s in lst:
            if isinstance(s, tuple):
                mem[gaps[gi]].append(s); gi += 1
            else:
                sc[gaps[gi] - 1].append(s)
        sc[28 * ks + 27].append('s_add_u32 s%d, s%d, 28672' % (S_WST, S_WST))
    body = Prog()
    body.extend(pre)
    for gidx in range(N):
        ks, rem = gidx // 28, gidx % 28
        T, qt = rem // 4, rem % 4
        n = ks * 7 + T
        acc = (T * 4 + qt) * 4
        c = '0' if ks == 0 else vr(acc, 4)
        body('v_mfma_f32_16x16x32_bf16 %s, %s, %s, %s' % (vr(acc, 4), vr(FR + 4 * (n % 4), 4), vr(112 + 16 * (ks % 2) + 4 * qt, 4), c))
        if gidx + 1 < N:
            ks2, rem2 = (gidx + 1) // 28, (gidx + 1) % 28
            n2 = ks2 * 7 + rem2 // 4
            body('.need v_mfma_f32_16x16x32_bf16 v[0:3], %s, %s, 0' % (vr(FR + 4 * (n2 % 4), 4), vr(112 + 16 * (ks2 % 2) + 4 * (rem2 % 4), 4)))
        if rem == 16 and ks + 1 < 16:
            body(vm.wait('wo%d' % (ks + 1)))
        for s in sc[gidx]: body(s)
        for s in mem[gidx]:
            if isinstance(s, tuple):
                body(s[0]); vm.add(s[1])
            else: body(s)
        for s in val[gidx]: body(s)
    w, _ = insert_waits(body.ins)
    p.extend(w)
    stamp(p, o, 'oproj')
    p('''
    s_mov_b32 s68, s24
    s_mov_b32 s69, s25
    s_lshl_b32 s60, s%d, 11
    s_lshl_b32 s61, s%d, 6
    s_add_u32 s60, s60, s61
    s_mul_i32 s60, s60, 896
    s_add_u32 s60, s60, %d
    s_add_u32 s68, s68, s60
    s_addc_u32 s69, s69, 0
    s_mov_b32 s70, 57344
    s_mov_b32 s71, 0x20000
    v_and_b32 v200, 15, v%d
    v_mul_u32_u24 v200, 912, v200
    v_lshrrev_b32 v201, 4, v%d
    v_lshl_add_u32 v200, v201, 3, v200
    s_mul_i32 s60, s%d, 224
    v_add_u32 v200, s60, v200          ; LDS write address
    v_lshlrev_b32 v201, 4, v%d
    s_mul_i32 s60, s%d, %d
    v_add_u32 v202, s60, v201          ; LDS read address: (16w)*912 + lane*16
    s_mul_i32 s60, s%d, %d
    v_add_u32 v203, s60, v201          ; global offset: (16w)*896 + lane*16
    v_mov_b32 v204, 0x40000000
    v_cmp_gt_u32 vcc, 56, v%d
    s_barrier
    s_nop 0
    v_cndmask_b32 v203, v204, v203, vcc
''' % (S_G, S_QB, WS_PART, L, L, S_W, L, S_W, 16 * 912, S_W, 16 * 896, L))
    k = 0
    for qt in range(4):
        for T in range(7):
            acc = (T * 4 + qt) * 4
            t = 128 + 2 * (k % 16); k += 1
            p('v_cvt_pk_bf16_f32 v%d, v%d, v%d' % (t, acc, acc + 1))
            p('v_cvt_pk_bf16_f32 v%d, v%d, v%d' % (t + 1, acc + 2, acc + 3))
            p('ds_write_b64 v200, %s offset:%d' % (vr(t, 2), qt * 16 * 912 + T * 32))
    p('s_waitcnt lgkmcnt(0)')
    p('s_barrier')
    q = Prog()
    for rr in range(16):
        q('ds_read_b128 %s, v202 offset:%d' % (vr(4 * rr, 4), rr * 912))
    for rr in range(16):
        if rr % 4 == 0 and rr: q('v_add_u32 v203, %d, v203' % (4 * 896))
        q('buffer_store_dwordx4 %s, v203, s[68:71], 0 offen offset:%d%s' % (vr(4 * rr, 4), (rr % 4) * 896, o.part_flags))
    w, _ = insert_waits(q.ins)
    p.extend(w)
    return p

def expand_stamps(p, o):
    q = Prog()
    for i in p.ins:
        if i.text.startswith(';STAMP'):
            stamp(q, o, i.text.split()[1])
        else: q.ins.append(i)
    return q

def build_k1(o):
    p = Prog()
    p('k1_kernel:')
    pro, vm, VQ, VA = prologue(o)
    p.extend(expand_stamps(pro, o))
    p.extend(kv_addresses(o))
    qp = qproj(o, vm, VQ, VA)
    w, _ = insert_waits(qp.ins)
    p.extend(w)
    stamp(p, o, 'qproj')
    p.extend(qexchange(o, vm))
    stamp(p, o, 'qexch')
    if getattr(o, 'dump', '') == 'q':
        p('''
    s_lshl_b32 s60, s2, 2
    s_add_u32 s60, s60, s%d
    s_lshl_b32 s60, s60, 15
    s_add_u32 s60, s60, 0x2000000
    v_lshlrev_b32 v200, 4, v%d
    v_add_u32 v200, s60, v200
''' % (S_W, VLANE))
        for n in range(32):
            if n % 4 == 0 and n: p('v_add_u32 v200, 0x1000, v200')
            p('buffer_store_dwordx4 %s, v200, s[24:27], 0 offen offset:%d' % (vr(4 * n, 4), (n % 4) * 1024))
        p('s_waitcnt vmcnt(0)')
    p.extend(attn_prologue(o))
    stamp(p, o, 'attnpro')
    if o.stamps: p('s_waitcnt lgkmcnt(0)')
    lp, first, loop_ins, tail = attn_loop(o)
    p.extend(lp)
    stamp(p, o, 'loop')
    if getattr(o, 'dump', '') == 'o':
        p('s_nop 7')
        p('''
    s_lshl_b32 s60, s2, 18
    s_lshl_b32 s61, s%d, 16
    s_add_u32 s60, s60, s61
    s_add_u32 s60, s60, 0x2000000
    v_lshlrev_b32 v210, 4, v%d
    v_add_u32 v210, s60, v210
''' % (S_W, VLANE))
        for r4 in range(64):
            if r4 % 4 == 0 and r4: p('v_add_u32 v210, 0x1000, v210')
            p('buffer_store_dwordx4 %s, v210, s[24:27], 0 offen offset:%d' % (ar(4 * r4, 4), (r4 % 4) * 1024))
        p('''
    s_lshl_b32 s60, s2, 2
    s_add_u32 s60, s60, s%d
    s_lshl_b32 s60, s60, 11
    s_add_u32 s60, s60, 0x8000000
    v_lshlrev_b32 v210, 2, v%d
    v_add_u32 v210, s60, v210
''' % (S_W, VLANE))
        for b in range(4):
            p('buffer_store_dword v%d, v210, s[24:27], 0 offen offset:%d' % (NEGM + 4 * b, 256 * b))
            p('buffer_store_dword v%d, v210, s[24:27], 0 offen offset:%d' % (LREG[1] + b, 1024 + 256 * b))
        p('s_waitcnt vmcnt(0)')
    p.extend(epilogue(o))
    if o.stamps:
        stamp(p, o, 'stores')
        p('s_waitcnt vmcnt(0)')
        stamp(p, o, 'end')
        p('s_waitcnt lgkmcnt(0)')
        p('''
    s_lshl_b32 s60, s2, 2
    s_add_u32 s60, s60, s%d
    s_lshl_b32 s60, s60, 6
    s_add_u32 s60, s60, 0x%x
    v_mov_b32 v1, s60
''' % (S_W, WS_STAMP))
        for k in range(8):
            p('v_mov_b32 v%d, s%d' % (2 + k, S_STAMP + 2 * k))
        p('''
    v_cmp_eq_u32 vcc, 0, v%d
    s_and_saveexec_b64 s[60:61], vcc
    s_cbranch_execz L_nostamp
    buffer_store_dwordx4 v[2:5], v1, s[24:27], 0 offen
    buffer_store_dwordx4 v[6:9], v1, s[24:27], 0 offen offset:16
L_nostamp:
    s_mov_b64 exec, s[60:61]
''' % VLANE)
    p('s_waitcnt vmcnt(0)')
    p('L_end_k1:')
    p('s_endpgm')
    for tag, par in (('f', 0), ('a', 1), ('b', 0), ('c', 1), ('d', 0)):
        p('L_rare_%s:' % tag)
        p('s_call_b64 s[%d:%d], L_fb_%d' % (S_RET, S_RET + 1, par))
        p('s_branch L_back_%s' % tag)
    p.extend(A.fallback(o, 0))
    p.extend(A.fallback(o, 1))
    probs = check_hazards(first + loop_ins + loop_ins + tail, 'loop') + check_hazards(p.ins, 'all')
    return p, probs

KD = '''
.amdhsa_kernel %s
  .amdhsa_next_free_vgpr %d
  .amdhsa_next_free_sgpr %d
  .amdhsa_accum_offset %d
  .amdhsa_group_segment_fixed_size 0
  .amdhsa_kernarg_size 120
  .amdhsa_user_sgpr_count 2
  .amdhsa_user_sgpr_kernarg_segment_ptr 1
  .amdhsa_system_sgpr_workgroup_id_x 1
  .amdhsa_float_denorm_mode_32 3
.end_amdhsa_kernel
'''

if __name__ == '__main__':
    import sys
    o = A.Opt()
    o.kgap = 1
    o.dma_gaps = [3, 7, 11, 15, 19, 23, 27, 31, 35, 39, 43, 47, 51, 55, 59, 63]
    o.stamps = 1; o.pf = 1; o.pfd = 4; o.pfmoe = 1; o.pf_kv_early = 0; o.part_flags = ''
    out = sys.argv[1]
    for kv in sys.argv[2:]:
        k, v = kv.split('=')
        try: v = int(v, 0)
        except ValueError:
            if v.startswith('['): v = eval(v)
        setattr(o, k, v)
    p, probs = build_k1(o)
    for pr in probs[:20]: print(pr)
    print('hazards', len(probs), 'instrs', len(p.ins))
    hdr = '''; @launch kernel=k1_kernel grid=(256,1,1) block=(256,1,1) lds=163840
.amdgcn_target "amdgcn-amd-amdhsa--gfx950"
.text
.globl k1_kernel
.p2align 8
.type k1_kernel,@function
'''
    ftr = '.section .rodata,"a"\n.p2align 6' + KD % ('k1_kernel', 512, 102, 256)
    open(out, 'w').write(hdr + p.text() + ftr)
```

```python
from asmlib import *
from k1 import WS_MOD, WS_R, WS_IDX, WS_ACT, WS_H2, WS_PART, xreduce
def vr(a, n=1): return 'v%d' % a if n == 1 else 'v[%d:%d]' % (a, a + n - 1)

def srd(p, s, ptr_lo, nbytes, off=None):
    if off is None:
        if s != ptr_lo:
            p('s_mov_b32 s%d, s%d' % (s, ptr_lo)); p('s_mov_b32 s%d, s%d' % (s + 1, ptr_lo + 1))
    else:
        p('s_add_u32 s%d, s%d, %s' % (s, ptr_lo, off)); p('s_addc_u32 s%d, s%d, 0' % (s + 1, ptr_lo + 1))
    p('s_mov_b32 s%d, %s' % (s + 2, nbytes)); p('s_mov_b32 s%d, 0x20000' % (s + 3))

def wave_reduce(p, r, t, op='v_add_f32'):
    for k in (1, 2, 4, 8):
        p('s_nop 1')
        p('%s_dpp v%d, v%d, v%d row_ror:%d row_mask:0xf bank_mask:0xf' % (op, r, r, r, k))
    p('s_nop 0')
    xreduce(p, r, t, op)

def wave_reduce_multi(p, regs, temps, op='v_add_f32'):
    for k in (1, 2, 4, 8):
        if len(regs) < 3: p('s_nop %d' % (2 - len(regs)))
        for r in regs:
            p('%s_dpp v%d, v%d, v%d row_ror:%d row_mask:0xf bank_mask:0xf' % (op, r, r, r, k))
    for sw in ('v_permlane16_swap_b32', 'v_permlane32_swap_b32'):
        p('s_nop 0')
        for r, t in zip(regs, temps): p('v_mov_b32 v%d, v%d' % (t, r))
        p('s_nop 1')
        for r, t in zip(regs, temps): p('%s v%d, v%d' % (sw, r, t))
        p('s_nop 1')
        for r, t in zip(regs, temps): p('%s v%d, v%d, v%d' % (op, r, r, t))

def build_k0():
    p = Prog()
    p('''
k0_kernel:
    s_cmp_ge_u32 s2, 42
    s_cbranch_scc1 L_end_k0
    s_load_dwordx4 s[4:7], s[0:1], 80
    s_load_dwordx2 s[24:25], s[0:1], 112
    v_and_b32 v1, 7, v0            ; cc
    v_lshrrev_b32 v2, 3, v0        ; kg 0..31
    s_waitcnt lgkmcnt(0)
''')
    srd(p, 8, 4, 896)
    srd(p, 12, 6, 448 * 5376)
    srd(p, 24, 24, 10752)
    p('''
    v_mul_u32_u24 v3, 5376, v2
    v_lshl_add_u32 v3, v1, 4, v3
    s_lshl_b32 s16, s2, 7
    v_add_u32 v3, s16, v3
    v_lshlrev_b32 v4, 1, v2        ; c offset
''')
    for i in range(14):
        p('buffer_load_ushort v%d, v4, s[8:11], 0 offen offset:%d' % (10 + i, 64 * i))
    p('s_mov_b32 s17, %d' % (32 * 5376))
    for i in range(14):
        p('buffer_load_dwordx4 %s, v3, s[12:15], 0 offen' % vr(32 + 4 * i, 4))
        if i < 13: p('v_add_u32 v3, s17, v3')
    p('s_waitcnt vmcnt(14)')
    for i in range(14):
        p('v_lshlrev_b32 v%d, 16, v%d' % (10 + i, 10 + i))
    for i in range(14):
        p('v_mul_f32 v%d, 0xbfb8aa3b, v%d' % (96 + i, 10 + i))
    for i in range(14):
        p('v_exp_f32 v%d, v%d' % (96 + i, 96 + i))
    for i in range(14):
        p('v_add_f32 v%d, 1.0, v%d' % (96 + i, 96 + i))
    for i in range(14):
        p('v_rcp_f32 v%d, v%d' % (96 + i, 96 + i))
    for i in range(14):
        p('v_mul_f32 v%d, v%d, v%d' % (10 + i, 10 + i, 96 + i))
    for i in range(14):
        p('v_cvt_pk_bf16_f32 v%d, v%d, 0' % (10 + i, 10 + i))
    for i in range(14):
        p('v_lshlrev_b32 v%d, 16, v%d' % (96 + i, 10 + i))
    for j in range(8): p('v_mov_b32 v%d, 0' % (112 + j))
    p('s_waitcnt vmcnt(0)')
    for i in range(14):
        for j in range(8):
            w = 32 + 4 * i + j // 2
            sel = (10 + i) if j % 2 == 0 else (96 + i)
            p('v_dot2_f32_bf16 v%d, v%d, v%d, v%d' % (112 + j, w, sel, 112 + j))
    p('s_nop 2')
    regs = [112 + j for j in range(8)]; temps = [120 + j for j in range(8)]
    for r in regs:
        p('v_add_f32_dpp v%d, v%d, v%d row_ror:8 row_mask:0xf bank_mask:0xf' % (r, r, r))
    for sw in ('v_permlane16_swap_b32', 'v_permlane32_swap_b32'):
        for r, t in zip(regs, temps): p('v_mov_b32 v%d, v%d' % (t, r))
        p('s_nop 1')
        for r, t in zip(regs, temps): p('%s v%d, v%d' % (sw, r, t))
        p('s_nop 1')
        for r, t in zip(regs, temps): p('v_add_f32 v%d, v%d, v%d' % (r, r, t))
    p('''
    v_lshrrev_b32 v5, 6, v0
    v_lshlrev_b32 v5, 8, v5
    v_lshl_add_u32 v5, v1, 5, v5
    ds_write_b128 v5, v[112:115]
    ds_write_b128 v5, v[116:119] offset:16
    s_waitcnt lgkmcnt(0)
    s_barrier
    v_cmp_gt_u32 vcc, 64, v0
    s_and_saveexec_b64 s[18:19], vcc
    s_cbranch_execz L_k0_done
    v_lshlrev_b32 v5, 2, v0
    ds_read_b32 v6, v5
    ds_read_b32 v7, v5 offset:256
    ds_read_b32 v8, v5 offset:512
    ds_read_b32 v9, v5 offset:768
    s_waitcnt lgkmcnt(0)
    v_add_f32 v6, v6, v7
    v_add_f32 v8, v8, v9
    v_add_f32 v6, v6, v8
    v_cvt_pk_bf16_f32 v6, v6, 0
    v_lshlrev_b32 v6, 16, v6
    s_mul_i32 s20, s2, 37
    s_lshr_b32 s20, s20, 8
    s_cmp_eq_u32 s20, 1
    s_cselect_b32 s21, 1, 0
    s_cmp_eq_u32 s20, 4
    s_cselect_b32 s21, 1, s21
    s_cmp_eq_u32 s21, 0
    s_cbranch_scc1 L_k0_store
    v_add_f32 v6, 1.0, v6
    v_cvt_pk_bf16_f32 v6, v6, 0
    v_lshlrev_b32 v6, 16, v6
L_k0_store:
    s_lshl_b32 s16, s2, 8
    v_add_u32 v5, s16, v5
    buffer_store_dword v6, v5, s[24:27], 0 offen
L_k0_done:
    s_mov_b64 exec, s[18:19]
    s_waitcnt vmcnt(0)
L_end_k0:
    s_endpgm
''')
    return p

PF_MOE = True
def build_k2():
    p = Prog()
    p('''
k2_kernel:
    s_cmp_ge_u32 s2, 256
    s_cbranch_scc1 L_end_k2
    s_load_dwordx2 s[4:5], s[0:1], 0
    s_load_dwordx2 s[6:7], s[0:1], 48
    s_load_dwordx2 s[28:29], s[0:1], 96
    s_load_dwordx2 s[24:25], s[0:1], 112
    s_load_dwordx4 s[44:47], s[0:1], 56
    s_load_dwordx2 s[48:49], s[0:1], 72
    v_and_b32 v1, 63, v0
    v_lshrrev_b32 v2, 6, v0
    s_nop 0
    v_readfirstlane_b32 s3, v2
    s_lshl_b32 s41, s2, 3
    s_lshl_b32 s42, s3, 1
    s_add_u32 s41, s41, s42
    s_mul_i32 s42, s41, 896
    s_waitcnt lgkmcnt(0)
''')
    srd(p, 8, 4, 2048 * 896)
    srd(p, 12, 6, 896)
    srd(p, 16, 24, 8 * 2048 * 896, str(WS_PART))
    srd(p, 20, 24, 2048 * 896, str(WS_H2))
    srd(p, 32, 24, 10752)
    srd(p, 36, 24, 8192, str(WS_R))
    srd(p, 28, 28, 2048 * 896)
    p('''
    v_lshlrev_b32 v3, 4, v1            ; lane*16
    v_lshlrev_b32 v4, 5, v1
    v_mov_b32 v5, 0x40000000
    v_cmp_gt_u32 vcc, 56, v1
    s_nop 1
    v_cndmask_b32 v3, v5, v3, vcc
    v_cndmask_b32 v4, v5, v4, vcc
    v_cndmask_b32 v6, 0, 1.0, vcc
    v_add_u32 v7, s42, v3
''')
    for rr in range(2):
        for g in range(8):
            p('s_mov_b32 s40, %d' % (g * 2048 * 896 + rr * 896) if not (g == 0 and rr == 0) else 's_mov_b32 s40, 0')
            p('buffer_load_dwordx4 %s, v7, s[16:19], s40 offen' % vr(16 + rr * 40 + 4 * g, 4))
        p('buffer_load_dwordx4 %s, v7, s[8:11], 0 offen offset:%d' % (vr(16 + rr * 40 + 32, 4), rr * 896))
    for k, seg in enumerate((2, 3, 4, 5)):
        p('s_mov_b32 s40, %d' % (seg * 1792))
        p('buffer_load_dwordx4 %s, v4, s[32:35], s40 offen' % vr(96 + 8 * k, 4))
        p('buffer_load_dwordx4 %s, v4, s[32:35], s40 offen offset:16' % vr(100 + 8 * k, 4))
    p('buffer_load_dwordx4 v[128:131], v3, s[12:15], 0 offen')
    p('v_mov_b32 v8, 0x00003f80')
    p('v_mov_b32 v9, 0x3f800000')
    ACC = [136, 152]
    for rr in range(2):
        for j in range(8): p('v_mov_b32 v%d, 0' % (ACC[rr] + j))
    for rr in range(2):
        p('s_waitcnt vmcnt(%d)' % (9 + 1 + (9 if rr == 0 else 0)))
        for g in range(8):
            for j in range(8):
                p('v_dot2_f32_bf16 v%d, v%d, v%d, v%d' % (ACC[rr] + j, 16 + rr * 40 + 4 * g + j // 2, 8 + j % 2, ACC[rr] + j))
    p('s_waitcnt vmcnt(0)')
    p(';ST 0')
    if PF_MOE:
        p('''
    s_and_b32 s50, s2, 7               ; x
    s_lshr_b32 s51, s2, 3              ; i
    v_min_u32 v210, 55, v1
    s_cmp_ge_u32 s3, 2
    s_cbranch_scc1 L_k2_pfdown
    s_mul_i32 s52, s50, 448
    s_lshr_b32 s52, s52, 7
    s_mul_i32 s53, s51, 14
    v_lshrrev_b32 v211, 2, v210
    v_add_u32 v211, s53, v211
    v_mul_u32_u24 v211, 3584, v211
    v_and_b32 v212, 3, v210
    v_add_u32 v212, s52, v212
    v_lshl_add_u32 v211, v212, 7, v211
    s_cmp_eq_u32 s3, 0
    s_cselect_b32 s54, s44, s46
    s_cselect_b32 s55, s45, s47
    global_load_dword v213, v211, s[54:55]
    s_branch L_k2_pfdone
L_k2_pfdown:
    s_lshl_b32 s52, s50, 7             ; x<4: byte 128x
    s_mul_i32 s53, s50, 96
    s_add_u32 s53, s53, 128            ; x>=4: 512 + 96(x-4) = 96x + 128
    s_cmp_lt_u32 s50, 4
    s_cselect_b32 s52, s52, s53
    s_and_b32 s53, s3, 1
    s_mul_i32 s53, s53, 95
    s_add_u32 s52, s52, s53
    s_and_b32 s52, s52, 0xffffff80
    s_mul_i32 s53, s51, 56
    v_add_u32 v211, s53, v210
    v_mul_u32_u24 v211, 896, v211
    v_add_u32 v211, s52, v211
    global_load_dword v213, v211, s[48:49]
L_k2_pfdone:
''')
    X1 = [168, 184]
    for rr in range(2):
        xr = 16 + rr * 40 + 32
        for j in range(8):
            p('v_mul_f32 v%d, v%d, v%d' % (ACC[rr] + j, ACC[rr] + j, 96 + j))
        for j in range(8):
            p('v_dot2_f32_bf16 v%d, v%d, v%d, v%d' % (ACC[rr] + j, xr + j // 2, 8 + j % 2, ACC[rr] + j))
    p('s_nop 2')
    for rr in range(2):
        for j in range(0, 8, 2):
            p('v_cvt_pk_bf16_f32 v%d, v%d, v%d' % (200 + rr * 4 + j // 2, ACC[rr] + j, ACC[rr] + j + 1))
    for rr in range(2):
        for j in range(8):
            if j % 2 == 0: p('v_lshlrev_b32 v%d, 16, v%d' % (X1[rr] + j, 200 + rr * 4 + j // 2))
            else: p('v_and_b32 v%d, 0xffff0000, v%d' % (X1[rr] + j, 200 + rr * 4 + j // 2))
    SUM = [10, 11]
    for rr in range(2):
        p('v_add_f32 v%d, v%d, v%d' % (SUM[rr], X1[rr], X1[rr] + 1))
        for j in range(2, 8): p('v_add_f32 v%d, v%d, v%d' % (SUM[rr], SUM[rr], X1[rr] + j))
    wave_reduce_multi(p, SUM, [12, 13])
    XC = [16, 32]
    for rr in range(2):
        p('v_mul_f32 v%d, 0xbb124925, v%d' % (SUM[rr], SUM[rr]))
    for rr in range(2):
        for j in range(8):
            p('v_add_f32 v%d, v%d, v%d' % (XC[rr] + j, X1[rr] + j, SUM[rr]))
    VAR = [12, 13]
    for rr in range(2):
        p('v_mul_f32 v%d, v%d, v%d' % (VAR[rr], XC[rr], XC[rr]))
        for j in range(1, 8): p('v_fmac_f32 v%d, v%d, v%d' % (VAR[rr], XC[rr] + j, XC[rr] + j))
    for rr in range(2):
        p('v_mul_f32 v%d, v%d, v6' % (VAR[rr], VAR[rr]))
    wave_reduce_multi(p, VAR, [14, 15])
    for rr in range(2):
        p('v_mov_b32 v%d, 0x3727c5ac' % (14 + rr))
        p('v_fmac_f32 v%d, 0x3b124925, v%d' % (14 + rr, VAR[rr]))
    for rr in range(2):
        p('v_rsq_f32 v%d, v%d' % (VAR[rr], 14 + rr))
    p('s_nop 0')
    H = [48, 64]
    for rr in range(2):
        for j in range(8):
            p('v_mul_f32 v%d, v%d, v%d' % (XC[rr] + j, XC[rr] + j, VAR[rr]))
        for j in range(8):
            p('v_fma_f32 v%d, v%d, v%d, v%d' % (XC[rr] + j, XC[rr] + j, 112 + j, 104 + j))
        for j in range(0, 8, 2):
            p('v_cvt_pk_bf16_f32 v%d, v%d, v%d' % (H[rr] + j // 2, XC[rr] + j, XC[rr] + j + 1))
    p(';ST 1')
    for rr in range(2):
        p('buffer_store_dwordx4 %s, v7, s[20:23], 0 offen offset:%d' % (vr(H[rr], 4), rr * 896))
    RR = [14, 15]
    for rr in range(2):
        p('v_mov_b32 v%d, 0' % RR[rr])
    for j in range(4):
        for rr in range(2):
            p('v_dot2_f32_bf16 v%d, v%d, v%d, v%d' % (RR[rr], H[rr] + j, 128 + j, RR[rr]))
    for rr in range(2):
        for j in range(8):
            if j % 2 == 0: p('v_lshlrev_b32 v%d, 16, v%d' % (XC[rr] + j, H[rr] + j // 2))
            else: p('v_and_b32 v%d, 0xffff0000, v%d' % (XC[rr] + j, H[rr] + j // 2))
        for j in range(8):
            p('v_fma_f32 v%d, v%d, v%d, v%d' % (XC[rr] + j, XC[rr] + j, 120 + j, X1[rr] + j))
        for j in range(0, 8, 2):
            p('v_cvt_pk_bf16_f32 v%d, v%d, v%d' % (80 + rr * 4 + j // 2, XC[rr] + j, XC[rr] + j + 1))
        p('buffer_store_dwordx4 %s, v7, s[28:31], 0 offen offset:%d' % (vr(80 + rr * 4, 4), rr * 896))
    wave_reduce_multi(p, RR, [12, 13])
    p('''
    v_cvt_pk_bf16_f32 v14, v14, 0
    v_cvt_pk_bf16_f32 v15, v15, 0
    v_lshlrev_b32 v14, 16, v14
    v_lshlrev_b32 v15, 16, v15
    v_cmp_eq_u32 vcc, 1, v1
    s_nop 1
    v_cndmask_b32 v14, v14, v15, vcc
    v_add_u32 v2, s41, v1
    v_lshlrev_b32 v2, 2, v2
    v_cmp_gt_u32 vcc, 2, v1
    s_nop 1
    v_cndmask_b32 v2, v5, v2, vcc
    buffer_store_dword v14, v2, s[36:39], 0 offen
    s_waitcnt vmcnt(0)
L_end_k2:
    s_endpgm
''')
    return p

def sort8(p, K, T):
    net = [(0,1),(2,3),(4,5),(6,7),(0,2),(1,3),(4,6),(5,7),(1,2),(5,6),(0,4),(3,7),(1,5),(2,6),(1,4),(3,6),(2,4),(3,5),(3,4)]
    for a_, b_ in net:
        p('v_max_u32 v%d, v%d, v%d' % (T, K + a_, K + b_))
        p('v_min_u32 v%d, v%d, v%d' % (K + b_, K + a_, K + b_))
        p('v_mov_b32 v%d, v%d' % (K + a_, T))

def row_rounds(p, K, T, RES, MASK):
    for rnd in range(8):
        p('v_mov_b32 v%d, v%d' % (T, K))
        for k in (1, 2, 4, 8):
            p('s_nop 1')
            p('v_max_u32_dpp v%d, v%d, v%d row_ror:%d row_mask:0xf bank_mask:0xf' % (T, T, T, k))
        p('s_nop 0')
        p('v_cmp_eq_u32 vcc, v%d, v%d' % (K, T))
        p('v_cndmask_b32_e64 v%d, v%d, v%d, s[%d:%d]' % (RES, RES, T, MASK + 2 * rnd, MASK + 2 * rnd + 1))
        if rnd < 7:
            p('s_nop 0')
            for j in range(7 - rnd):
                p('v_cndmask_b32 v%d, v%d, v%d, vcc' % (K + j, K + j, K + j + 1))
            p('v_cndmask_b32_e64 v%d, v%d, 0, vcc' % (K + 7 - rnd, K + 7 - rnd))

def top8(p, KEY, T):
    RES = T + 1
    p('v_and_b32 v%d, 7, v1' % T)
    for i in range(8):
        p('v_cmp_eq_u32 s[%d:%d], %d, v%d' % (64 + 2 * i, 65 + 2 * i, i, T))
    sort8(p, KEY, T)
    p('v_mov_b32 v%d, 0' % RES)
    row_rounds(p, KEY, T, RES, 64)
    p('v_lshrrev_b32 v%d, 4, v0' % T)
    p('v_lshlrev_b32 v%d, 5, v%d' % (T, T))
    p('v_and_b32 v%d, 7, v1' % (T + 2))
    p('v_lshl_add_u32 v%d, v%d, 2, v%d' % (T, T + 2, T))
    p('ds_write_b32 v%d, v%d offset:%d' % (T, RES, TOPK_LDS))
    p('s_waitcnt lgkmcnt(0)')
    p('s_barrier')
    p('v_and_b32 v%d, 15, v1' % T)
    p('v_lshlrev_b32 v%d, 5, v%d' % (T, T))
    p('ds_read_b128 %s, v%d offset:%d' % (vr(KEY, 4), T, TOPK_LDS))
    p('ds_read_b128 %s, v%d offset:%d' % (vr(KEY + 4, 4), T, TOPK_LDS + 16))
    p('v_mov_b32 v%d, 0' % RES)
    p('s_waitcnt lgkmcnt(0)')
    row_rounds(p, KEY, T, RES, 64)

TOPK_LDS = 57344

def wstage(p, srd_, voff, nsteps, lds_sgpr):
    p('s_mov_b32 s44, 0')
    for i in range(nsteps):
        p('s_add_u32 m0, s%d, %d' % (lds_sgpr, i * 1024))
        p('s_nop 0')
        p('buffer_load_dwordx4 v%d, s[%d:%d], s44 offen lds' % (voff, srd_, srd_ + 3))
        if i + 1 < nsteps: p('s_add_u32 s44, s44, s45')

def tr_frags(p, addr, dst, nsteps):
    for i in range(nsteps):
        p('ds_read_b64_tr_b16 %s, v%d offset:%d' % (vr(dst + 4 * i, 2), addr, i * 1024))
        p('ds_read_b64_tr_b16 %s, v%d offset:%d' % (vr(dst + 4 * i + 2, 2), addr, i * 1024 + 128))

def build_k3():
    p = Prog()
    p('''
k3_kernel:
    s_cmp_ge_u32 s2, 56
    s_cbranch_scc1 L_end_k3
    s_load_dwordx4 s[4:7], s[0:1], 56
    s_load_dwordx2 s[24:25], s[0:1], 112
    v_and_b32 v1, 63, v0
    v_lshrrev_b32 v2, 6, v0
    s_nop 0
    v_readfirstlane_b32 s3, v2
    s_waitcnt lgkmcnt(0)
    s_cmp_ge_u32 s3, 2
    s_cselect_b32 s4, s6, s4
    s_cselect_b32 s5, s7, s5
''')
    srd(p, 8, 4, 448 * 3584)
    srd(p, 12, 24, 8192, str(WS_R))
    srd(p, 16, 24, 2048 * 896, str(WS_H2))
    srd(p, 20, 24, 28672, str(WS_ACT))
    srd(p, 28, 24, 64, str(WS_IDX))
    p('''
    s_and_b32 s40, s2, 7
    s_mul_i32 s40, s40, 7
    s_lshr_b32 s41, s2, 3
    s_add_u32 s40, s40, s41           ; column block = (wg&7)*7 + (wg>>3): neighbours share an XCD (speed only)
    s_lshl_b32 s40, s40, 6
    s_and_b32 s41, s3, 1
    s_lshl_b32 s41, s41, 5
    s_add_u32 s40, s40, s41
    v_lshrrev_b32 v3, 1, v1
    v_mul_u32_u24 v3, 3584, v3
    v_and_b32 v4, 1, v1
    v_lshl_add_u32 v3, v4, 4, v3
    v_add_u32 v3, s40, v3
    s_mov_b32 s45, %d
    s_mul_i32 s46, s3, 14336
''' % (32 * 3584))
    p('v_lshlrev_b32 v5, 5, v0')
    p('buffer_load_dwordx4 v[8:11], v5, s[12:15], 0 offen')
    p('buffer_load_dwordx4 v[12:15], v5, s[12:15], 0 offen offset:16')
    wstage(p, 8, 3, 14, 46)
    p('v_lshlrev_b32 v6, 3, v0')
    p('v_sub_u32 v6, 2047, v6')
    p('s_waitcnt vmcnt(14)')
    p(';ST 0')
    for j in range(8):
        k = 8 + j
        p('v_ashrrev_i32 v16, 31, v%d' % k)
        p('v_or_b32 v16, 0x80000000, v16')
        p('v_xor_b32 v%d, v%d, v16' % (k, k))
        p('v_and_b32 v%d, 0xffff0000, v%d' % (k, k))
        p('v_subrev_u32 v17, %d, v6' % j)
        p('v_or_b32 v%d, v%d, v17' % (k, k))
    top8(p, 8, 16)
    p(';ST 1')
    p('v_and_b32 v20, 0xffff, v17')
    p('v_sub_u32 v20, 2047, v20')
    p('''
    v_mul_u32_u24 v22, 896, v20
    v_lshrrev_b32 v23, 4, v1
    v_lshl_add_u32 v22, v23, 4, v22
''')
    for i in range(14):
        p('buffer_load_dwordx4 %s, v22, s[16:19], 0 offen offset:%d' % (vr(32 + 4 * i, 4), 64 * i))
    p('''
    s_or_b32 s47, s2, s3
    s_cmp_lg_u32 s47, 0
    s_cbranch_scc1 L_k3_nopub
    v_mov_b32 v24, v17
    v_and_b32 v24, 0xffff0000, v24
    v_ashrrev_i32 v25, 31, v24
    v_not_b32 v25, v25
    v_or_b32 v25, 0x80000000, v25
    v_xor_b32 v24, v24, v25
    v_and_b32 v24, 0xffff0000, v24
    v_mul_f32 v25, 0xbfb8aa3b, v24
    v_exp_f32 v25, v25
    s_nop 0
    v_add_f32 v25, 1.0, v25
    v_rcp_f32 v25, v25
    s_nop 0
    v_cvt_pk_bf16_f32 v25, v25, 0
    v_lshlrev_b32 v25, 16, v25
    v_lshlrev_b32 v26, 2, v1
    v_cmp_gt_u32 vcc, 8, v1
    v_mov_b32 v27, 0x40000000
    s_nop 0
    v_cndmask_b32 v26, v27, v26, vcc
    buffer_store_dword v20, v26, s[28:31], 0 offen
    buffer_store_dword v25, v26, s[28:31], 0 offen offset:32
L_k3_nopub:
''')
    p('''
    v_lshrrev_b32 v28, 4, v1            ; kq
    v_lshlrev_b32 v28, 3, v28           ; 8 kq
    v_bfe_u32 v29, v1, 2, 2             ; r
    v_add_u32 v28, v28, v29
    v_lshlrev_b32 v28, 5, v28           ; row*32
    v_and_b32 v29, 3, v1
    v_lshl_add_u32 v28, v29, 3, v28
    v_add_u32 v28, s46, v28
    s_waitcnt vmcnt(14)
''')
    p(';ST 2')
    tr_frags(p, 28, 96, 14)
    p('s_waitcnt vmcnt(0) lgkmcnt(0)')
    p(';ST 3')
    for i in range(14):
        c = '0' if i == 0 else 'v[160:163]'
        p('v_mfma_f32_16x16x32_bf16 v[160:163], %s, %s, %s' % (vr(32 + 4 * i, 4), vr(96 + 4 * i, 4), c))
    p('s_nop 7')
    p('v_cvt_pk_bf16_f32 v164, v160, v161')
    p('v_cvt_pk_bf16_f32 v165, v162, v163')
    p('''
    v_lshlrev_b32 v160, 16, v164
    v_and_b32 v161, 0xffff0000, v164
    v_lshlrev_b32 v162, 16, v165
    v_and_b32 v163, 0xffff0000, v165
    s_cmp_ge_u32 s3, 2
    s_cbranch_scc1 L_k3_up
''')
    for r in range(4): p('v_mul_f32 v%d, 0xbfb8aa3b, v%d' % (166 + r, 160 + r))
    for r in range(4): p('v_exp_f32 v%d, v%d' % (166 + r, 166 + r))
    for r in range(4): p('v_add_f32 v%d, 1.0, v%d' % (166 + r, 166 + r))
    for r in range(4): p('v_rcp_f32 v%d, v%d' % (166 + r, 166 + r))
    p('s_nop 0')
    for r in range(4): p('v_mul_f32 v%d, v%d, v%d' % (160 + r, 160 + r, 166 + r))
    p('v_cvt_pk_bf16_f32 v164, v160, v161')
    p('v_cvt_pk_bf16_f32 v165, v162, v163')
    p('''
    v_lshlrev_b32 v160, 16, v164
    v_and_b32 v161, 0xffff0000, v164
    v_lshlrev_b32 v162, 16, v165
    v_and_b32 v163, 0xffff0000, v165
L_k3_up:
    s_and_b32 s41, s3, 1
    s_lshl_b32 s41, s41, 10
    v_lshlrev_b32 v30, 4, v1
    v_add_u32 v30, s41, v30
    v_add_u32 v30, %d, v30
    s_cmp_ge_u32 s3, 2
    s_cbranch_scc0 L_k3_gate_wait
    ds_write_b128 v30, v[160:163]
L_k3_gate_wait:
    s_waitcnt lgkmcnt(0)
    s_barrier
    s_cmp_ge_u32 s3, 2
    s_cbranch_scc1 L_end_k3
    ds_read_b128 v[164:167], v30
    s_waitcnt lgkmcnt(0)
''' % (TOPK_LDS + 256))
    for r in range(4): p('v_mul_f32 v%d, v%d, v%d' % (160 + r, 160 + r, 164 + r))
    p('''
    v_cvt_pk_bf16_f32 v160, v160, v161
    v_cvt_pk_bf16_f32 v162, v162, v163
    v_lshrrev_b32 v23, 4, v1
    v_mul_u32_u24 v24, %d, v23          ; 4 rows * 3584 B
    v_and_b32 v25, 15, v1
    v_lshl_add_u32 v24, v25, 1, v24
    v_add_u32 v24, s40, v24
    v_mov_b32 v27, 0x40000000
    v_cmp_gt_u32 vcc, 32, v1
    s_nop 1
    v_cndmask_b32 v24, v27, v24, vcc
    buffer_store_short v160, v24, s[20:23], 0 offen
    buffer_store_short_d16_hi v160, v24, s[20:23], 0 offen offset:3584
    s_mov_b32 s41, 7168
    buffer_store_short v162, v24, s[20:23], s41 offen
    buffer_store_short_d16_hi v162, v24, s[20:23], s41 offen offset:3584
    s_waitcnt vmcnt(0)
L_end_k3:
    s_endpgm
''' % (4 * 3584))
    return p

def build_k4():
    p = Prog()
    p('''
k4_kernel:
    s_cmp_ge_u32 s2, 28
    s_cbranch_scc1 L_end_k4
    s_load_dwordx2 s[4:5], s[0:1], 72
    s_load_dwordx2 s[28:29], s[0:1], 96
    s_load_dwordx2 s[24:25], s[0:1], 112
    v_and_b32 v1, 63, v0
    v_lshrrev_b32 v2, 6, v0
    s_nop 0
    v_readfirstlane_b32 s3, v2
    s_waitcnt lgkmcnt(0)
''')
    p('s_mul_i32 s40, s3, %d' % (448 * 896))
    p('s_add_u32 s4, s4, s40'); p('s_addc_u32 s5, s5, 0')
    srd(p, 8, 4, 448 * 896)
    srd(p, 12, 24, 10752)
    srd(p, 16, 24, 64, str(WS_IDX))
    srd(p, 20, 24, 28672, str(WS_ACT))
    srd(p, 28, 28, 2048 * 896)
    p('''
    s_and_b32 s47, s2, 7
    s_lshr_b32 s41, s2, 3
    s_lshl_b32 s42, s47, 2
    s_mul_i32 s43, s47, 3
    s_add_u32 s43, s43, 4             ; 16 + (x-4)*3 = 3x + 4
    s_cmp_lt_u32 s47, 4
    s_cselect_b32 s47, s42, s43
    s_add_u32 s47, s47, s41           ; column block
    s_lshl_b32 s40, s47, 5              ; column byte offset
    v_lshrrev_b32 v3, 1, v1
    v_mul_u32_u24 v3, 896, v3
    v_and_b32 v4, 1, v1
    v_lshl_add_u32 v3, v4, 4, v3
    v_add_u32 v3, s40, v3
    s_mov_b32 s45, %d
    s_mul_i32 s46, s3, 14336
''' % (32 * 896))
    wstage(p, 8, 3, 14, 46)
    p(';ST 0')
    p('''
    v_and_b32 v4, 7, v1
    v_mul_u32_u24 v22, 3584, v4
    v_lshrrev_b32 v23, 4, v1
    v_lshl_add_u32 v22, v23, 4, v22
    s_mul_i32 s41, s3, 896
    v_add_u32 v22, s41, v22
''')
    for i in range(14):
        p('buffer_load_dwordx4 %s, v22, s[20:23], 0 offen offset:%d' % (vr(32 + 4 * i, 4), 64 * i))
    p('''
    v_lshrrev_b32 v23, 4, v1
    v_and_b32 v23, 1, v23
    v_lshlrev_b32 v24, 4, v23
    buffer_load_dwordx4 v[8:11], v24, s[16:19], 0 offen            ; idx[4kq..]
    buffer_load_dwordx4 v[12:15], v24, s[16:19], 0 offen offset:32 ; sig[4kq..]
    v_and_b32 v25, 15, v1
    v_lshlrev_b32 v26, 2, v25
    s_lshl_b32 s41, s47, 6
    v_add_u32 v26, s41, v26
    s_mov_b32 s42, 8960
    buffer_load_dword v16, v26, s[12:15], s42 offen                ; gb[col]
    v_lshrrev_b32 v28, 4, v1
    v_lshlrev_b32 v28, 3, v28
    v_bfe_u32 v29, v1, 2, 2
    v_add_u32 v28, v28, v29
    v_lshlrev_b32 v28, 5, v28
    v_and_b32 v29, 3, v1
    v_lshl_add_u32 v28, v29, 3, v28
    v_add_u32 v28, s46, v28
    s_waitcnt vmcnt(0)
''')
    p(';ST 1')
    for r in range(4):
        p('v_mul_u32_u24 v%d, 896, v%d' % (17 + r, 8 + r))
    p('v_lshlrev_b32 v25, 1, v25')
    p('v_add_u32 v25, s40, v25')
    for r in range(4):
        p('v_add_u32 v%d, v%d, v25' % (17 + r, 17 + r))
    for r in range(4):
        p('buffer_load_ushort v%d, v%d, s[28:31], 0 offen' % (100 + r, 17 + r))
    tr_frags(p, 28, 104, 14)
    p('s_waitcnt lgkmcnt(0)')
    p(';ST 2')
    for i in range(14):
        c = '0' if i == 0 else 'v[160:163]'
        p('v_mfma_f32_16x16x32_bf16 v[160:163], %s, %s, %s' % (vr(32 + 4 * i, 4), vr(104 + 4 * i, 4), c))
    p('s_nop 7')
    p('''
    v_lshlrev_b32 v30, 4, v1
    s_lshl_b32 s41, s3, 10
    v_add_u32 v30, s41, v30
    ds_write_b128 v30, v[160:163] offset:57344
    s_waitcnt lgkmcnt(0)
    s_barrier
    s_cmp_lg_u32 s3, 0
    s_cbranch_scc1 L_end_k4
    ds_read_b128 v[164:167], v30 offset:58368
    ds_read_b128 v[168:171], v30 offset:59392
    ds_read_b128 v[172:175], v30 offset:60416
    s_waitcnt vmcnt(0) lgkmcnt(0)
''')
    for r in range(4):
        p('v_add_f32 v%d, v%d, v%d' % (160 + r, 160 + r, 164 + r))
        p('v_add_f32 v%d, v%d, v%d' % (168 + r, 168 + r, 172 + r))
    for r in range(4):
        p('v_add_f32 v%d, v%d, v%d' % (160 + r, 160 + r, 168 + r))
    def rnd(a):
        p('v_cvt_pk_bf16_f32 v164, v%d, v%d' % (a, a + 1))
        p('v_cvt_pk_bf16_f32 v165, v%d, v%d' % (a + 2, a + 3))
        p('v_lshlrev_b32 v%d, 16, v164' % a); p('v_and_b32 v%d, 0xffff0000, v164' % (a + 1))
        p('v_lshlrev_b32 v%d, 16, v165' % (a + 2)); p('v_and_b32 v%d, 0xffff0000, v165' % (a + 3))
    rnd(160)
    for r in range(4): p('v_mul_f32 v%d, v%d, v%d' % (160 + r, 160 + r, 12 + r))
    rnd(160)
    for r in range(4):
        p('v_lshlrev_b32 v%d, 16, v%d' % (100 + r, 100 + r))
        p('v_fma_f32 v%d, v%d, v16, v%d' % (160 + r, 160 + r, 100 + r))
    p('v_cvt_pk_bf16_f32 v164, v160, v161')
    p('v_cvt_pk_bf16_f32 v165, v162, v163')
    p('''
    v_mov_b32 v27, 0x40000000
    v_cmp_gt_u32 vcc, 32, v1
    s_nop 1
''')
    for r in range(4): p('v_cndmask_b32 v%d, v27, v%d, vcc' % (17 + r, 17 + r))
    p('''
    buffer_store_short v164, v17, s[28:31], 0 offen
    buffer_store_short_d16_hi v164, v18, s[28:31], 0 offen
    buffer_store_short v165, v19, s[28:31], 0 offen
    buffer_store_short_d16_hi v165, v20, s[28:31], 0 offen
    s_waitcnt vmcnt(0)
L_end_k4:
    s_endpgm
''')
    return p
```

```python
import sys
from asmlib import *
import gen_attn2 as A
import k1, ksmall
def add_stamps(p, k):
    kid = int(k[1])
    q = Prog()
    for i in p.ins:
        if i.text.startswith(';ST '):
            n = int(i.text.split()[1])
            q('s_memrealtime s[%d:%d]' % (80 + 2 * n, 81 + 2 * n))
            q('s_waitcnt lgkmcnt(0)')
            continue
        if i.kind == 'label' and i.text.startswith('L_end_'):
            q('L_st_%s:' % k)
            q("""
    s_memrealtime s[94:95]
    s_load_dwordx2 s[88:89], s[0:1], 112
    s_waitcnt lgkmcnt(0)
    s_mov_b32 s90, 0x10000000
    s_mov_b32 s91, 0x20000
    s_lshl_b32 s3, s2, 5
    s_add_u32 s3, s3, %d
    v_mov_b32 v2, s92
    v_mov_b32 v3, s94
    v_mov_b32 v4, s80
    v_mov_b32 v5, s82
    v_mov_b32 v6, s84
    v_mov_b32 v7, s86
    v_mov_b32 v1, s3
    v_cmp_eq_u32 vcc, 0, v255
    s_and_saveexec_b64 s[4:5], vcc
    s_cbranch_execz L_stx_%s
    buffer_store_dwordx4 v[2:5], v1, s[88:91], 0 offen
    buffer_store_dwordx2 v[6:7], v1, s[88:91], 0 offen offset:16
L_stx_%s:
    s_mov_b64 exec, s[4:5]
    s_waitcnt vmcnt(0)
""" % (0xb000000 + kid * 0x10000, k, k))
        q.ins.append(i)
        if i.kind == 'label' and i.text.endswith('_kernel:'):
            q('s_memrealtime s[92:93]')
            q('v_mov_b32 v255, v0')
    n = 0
    for j, i in enumerate(q.ins):
        if i.kind == 'branch' and 'L_end_' in i.text:
            n += 1
            if n > 1: q.ins[j] = I(i.text.replace('L_end_' + k, 'L_st_' + k))
    return q
def build(o, list_k=('k1', 'k2', 'k3', 'k4')):
    parts = []
    probs = []
    kernels = {'k0': (ksmall.build_k0, 42, 1024, 128), 'k1': (None, 256, 163840, 512), 'k2': (ksmall.build_k2, 256, 0, 256),
               'k3': (ksmall.build_k3, 56, 57344 + 256 + 2048 + 256, 256), 'k4': (ksmall.build_k4, 28, 57344 + 4096, 256)}
    hdr = ''
    for k in list_k:
        hdr += '; @launch kernel=%s_kernel grid=(%d,1,1) block=(256,1,1) lds=%d\n' % (k, kernels[k][1], kernels[k][2])
    hdr += '.amdgcn_target "amdgcn-amd-amdhsa--gfx950"\n.text\n'
    body = ''; kd = ''
    for k in dict.fromkeys(list_k):
        if k == 'k1':
            p, pr = k1.build_k1(o)
        else:
            p = kernels[k][0](); pr = check_hazards(p.ins, k)
        probs += pr
        if getattr(o, 'kst', 0) and k != 'k1':
            p = add_stamps(p, k)
        body += '.globl %s_kernel\n.p2align 8\n.type %s_kernel,@function\n' % (k, k) + p.text()
        nv = 256 if (getattr(o, 'kst', 0) and k != 'k1') else kernels[k][3]
        kd += '.p2align 6' + k1.KD % ('%s_kernel' % k, nv, 102 if k == 'k1' else 96, min(nv, 256))
    return hdr + body + '.section .rodata,"a"\n' + kd, probs
if __name__ == '__main__':
    o = A.Opt()
    o.kgap = 1
    o.dma_gaps = [3, 7, 11, 15, 19, 23, 27, 31, 35, 39, 43, 47, 51, 55, 59, 63]
    o.stamps = 0; o.pf = 1; o.pfd = 4; o.pfmoe = 1; o.pf_kv_early = 0; o.part_flags = ''
    out = sys.argv[1]
    for kv in sys.argv[2:]:
        k, v = kv.split('=')
        try: v = int(v, 0)
        except ValueError:
            if v.startswith('['): v = eval(v)
        setattr(o, k, v)
    txt, probs = build(o)
    for pr in probs[:20]: print(pr)
    print('hazards', len(probs), 'bytes', len(txt))
    open(out, 'w').write(txt)
```

```python
from asmlib import *
import gen_attn2 as A
from gen_attn2 import (vr, ar, BLK, HALF, KBUF, VBASE, SREG, PBUF, NEGM, FR, VK, VV, VOFF, LREG, TMP, VLANE,
                       S_K0, S_K1, S_V0, S_V1, S_DST, S_THR, S_RET, S_CNT, S_W, S_96, S, frag, kread, vread, qk_list, exps, dma,
                       max8, lreg)

WS_MOD = 0
WS_R = 0x4000
WS_IDX = 0x8000
WS_ACT = 0x10000
WS_H2 = 0x100000
WS_PART = 0x400000
WS_STAMP = 0xa000000

H_OFF = 0
MV_OFF = 57344
QSLOT = [98304, 131072, 65536, 32768]
QX = 67584
XR = 0
ST = 131072
WO0 = 135168

S_G, S_QB, S_S, S_QH = 36, 37, 38, 39
S_X = 40
S_WQ = 44
S_WO = 48
S_SO = 52
S_T0, S_T1, S_T2, S_T3 = 60, 61, 62, 63
S_QD = 64
S_QD2 = 32
S_WST = 65
S_PART = 68
S_STAMP = 72

class VmTracker:
    def __init__(self): self.ops = []
    def add(self, tag): self.ops.append(tag)
    def wait(self, tag):
        idx = max(i for i, t in enumerate(self.ops) if t == tag)
        n = len(self.ops) - 1 - idx
        assert n <= 63
        return 's_waitcnt vmcnt(%d)' % n

STAMPS = {1: ['start', 'ln_done', 'qproj', 'qexch', 'attnpro', 'loop', 'oproj', 'end'],
          2: ['start', 'xwait', 'stats', 'modbar', 'hbar', 'ln_done', 'qproj', 'end'],
          4: ['start', 'p_w', 'p_bar', 'p_st', 'stats', 'poll_done', 'modbar', 'end'],
          3: ['start', 'loop', 'e1bar', 'comb', 'e3bar', 'oproj', 'stores', 'end']}
def stamp(p, o, name):
    if o.stamps and name in STAMPS[o.stamps]:
        k = STAMPS[o.stamps].index(name)
        p('s_memrealtime s[%d:%d]' % (S_STAMP + 2 * k, S_STAMP + 2 * k + 1))
        if name in ('xwait', 'stats', 'modbar', 'hbar', 'e1bar', 'comb', 'e3bar', 'p_w', 'p_bar', 'p_st', 'poll_done'): p('s_waitcnt lgkmcnt(0)')

def xreduce(p, r, t, op='v_add_f32'):
    p('v_mov_b32 v%d, v%d' % (t, r))
    p('s_nop 1')
    p('v_permlane16_swap_b32 v%d, v%d' % (r, t))
    p('s_nop 1')
    p('%s v%d, v%d, v%d' % (op, r, r, t))
    p('v_mov_b32 v%d, v%d' % (t, r))
    p('s_nop 1')
    p('v_permlane32_swap_b32 v%d, v%d' % (r, t))
    p('s_nop 1')
    p('%s v%d, v%d, v%d' % (op, r, r, t))

def wq_dma(step, vm, VQ):
    out = []
    slot = QSLOT[step % 4]
    for jj in range(8):
        if jj % 4 == 0:
            out.append('s_add_u32 m0, s%d, %d' % (S_QD2, slot + jj * 1024))
        out.append(('buffer_load_dwordx4 v%d, s[%d:%d], s%d offen offset:%d lds' % (VQ[(jj >> 1) & 1], S_WQ, S_WQ + 3, S_SO + jj, (jj & 3) * 1024), 'wq%d' % step))
    return out

def emit_dma(p, lst, vm, nop=True):
    for s in lst:
        if isinstance(s, tuple):
            p(s[0]); vm.add(s[1])
        else:
            p(s)
            if nop and s.startswith('s_') and 'm0' in s: p('s_nop 0')

def mod_producer(o, p):
    C0, W0, HI, ACC, TT = 60, 76, 132, 148, 156
    for i in range(14): p('v_lshlrev_b32 v%d, 16, v%d' % (C0 + i, C0 + i))
    for i in range(14): p('v_mul_f32 v%d, 0xbfb8aa3b, v%d' % (HI + i, C0 + i))
    for i in range(14): p('v_exp_f32 v%d, v%d' % (HI + i, HI + i))
    for i in range(14): p('v_add_f32 v%d, 1.0, v%d' % (HI + i, HI + i))
    for i in range(14): p('v_rcp_f32 v%d, v%d' % (HI + i, HI + i))
    for i in range(14): p('v_mul_f32 v%d, v%d, v%d' % (C0 + i, C0 + i, HI + i))
    for i in range(14): p('v_cvt_pk_bf16_f32 v%d, v%d, 0' % (C0 + i, C0 + i))
    for i in range(14): p('v_lshlrev_b32 v%d, 16, v%d' % (HI + i, C0 + i))
    for j in range(8): p('v_mov_b32 v%d, 0' % (ACC + j))
    p('s_waitcnt vmcnt(14)')
    stamp(p, o, 'p_w')
    for i in range(14):
        for j in range(8):
            w = W0 + 4 * i + j // 2
            sel = (C0 + i) if j % 2 == 0 else (HI + i)
            p('v_dot2_f32_bf16 v%d, v%d, v%d, v%d' % (ACC + j, w, sel, ACC + j))
    p('s_nop 2')
    regs = [ACC + j for j in range(8)]; temps = [TT + j for j in range(8)]
    for r in regs:
        p('v_add_f32_dpp v%d, v%d, v%d row_ror:8 row_mask:0xf bank_mask:0xf' % (r, r, r))
    for sw in ('v_permlane16_swap_b32', 'v_permlane32_swap_b32'):
        for r, t in zip(regs, temps): p('v_mov_b32 v%d, v%d' % (t, r))
        p('s_nop 1')
        for r, t in zip(regs, temps): p('%s v%d, v%d' % (sw, r, t))
        p('s_nop 1')
        for r, t in zip(regs, temps): p('v_add_f32 v%d, v%d, v%d' % (r, r, t))
    p("""
    v_and_b32 v164, 7, v%d
    s_lshl_b32 s60, s%d, 8
    v_lshlrev_b32 v164, 5, v164
    v_add_u32 v164, s60, v164
    ds_write_b128 v164, v[148:151] offset:%d
    ds_write_b128 v164, v[152:155] offset:%d
    s_waitcnt lgkmcnt(0)
    s_barrier
    ;STAMP p_bar
    s_cmp_lg_u32 s%d, 0
    s_cbranch_scc1 L_prod_done
    v_lshlrev_b32 v164, 2, v%d
    ds_read_b32 v165, v164 offset:%d
    ds_read_b32 v166, v164 offset:%d
    ds_read_b32 v167, v164 offset:%d
    ds_read_b32 v168, v164 offset:%d
    s_mul_i32 s60, s2, 37
    s_lshr_b32 s60, s60, 8          ; segment = wg / 7
    s_waitcnt lgkmcnt(0)
    v_add_f32 v165, v165, v166
    v_add_f32 v167, v167, v168
    v_add_f32 v165, v165, v167
    v_cvt_pk_bf16_f32 v165, v165, 0
    v_lshlrev_b32 v165, 16, v165
    s_cmp_eq_u32 s60, 1
    s_cselect_b32 s61, 1, 0
    s_cmp_eq_u32 s60, 4
    s_cselect_b32 s61, 1, s61
    s_cmp_eq_u32 s61, 0
    s_cbranch_scc1 L_prod_noone
    v_add_f32 v165, 1.0, v165
    v_cvt_pk_bf16_f32 v165, v165, 0
    v_lshlrev_b32 v165, 16, v165
L_prod_noone:
    s_cmp_lt_u32 s60, 2
    s_cbranch_scc0 L_prod_noscale
    v_mul_f32 v165, 0x3db8aa3b, v165      ; fold log2(e)/16 of the attention scores into sa and (1+ca)
L_prod_noscale:
    s_lshl_b32 s61, s2, 8
    v_add_u32 v164, s61, v164
    buffer_store_dword v165, v164, s[24:27], 0 offen sc1
    s_waitcnt vmcnt(0)
    ;STAMP p_st
    s_cmp_lt_u32 s60, 2
    s_cbranch_scc0 L_prod_done
    v_mov_b32 v165, 1
    v_mov_b32 v164, 0
    v_cmp_eq_u32 vcc, 0, v%d
    s_and_saveexec_b64 s[62:63], vcc
    buffer_atomic_add v165, v164, s[88:91], 0 offen sc0 sc1
    s_waitcnt vmcnt(0)
    v_readfirstlane_b32 s60, v165
    s_cmp_eq_u32 s60, 13
    s_cbranch_scc0 L_prod_notlast
    v_mov_b32 v165, 1
    buffer_store_dword v165, v164, s[88:91], 0 offen offset:128 sc1
L_prod_notlast:
    s_mov_b64 exec, s[62:63]
L_prod_done:
""" % (VLANE, S_W, MV_OFF + 4096, MV_OFF + 4096 + 16, S_W, VLANE, MV_OFF + 4096, MV_OFF + 4096 + 256, MV_OFF + 4096 + 512, MV_OFF + 4096 + 768, VLANE))

def prologue(o):
    p = Prog()
    L = VLANE
    vm = VmTracker()
    p("""
    s_cmp_ge_u32 s2, 256
    s_cbranch_scc1 L_end_k1
    s_load_dwordx2 s[40:41], s[0:1], 0
    s_load_dwordx4 s[4:7], s[0:1], 8
    s_load_dwordx4 s[44:47], s[0:1], 24
    s_load_dwordx4 s[64:67], s[0:1], 80
    s_load_dwordx4 s[88:91], s[0:1], 104
    s_load_dwordx4 s[96:99], s[0:1], 56
    s_load_dwordx2 s[100:101], s[0:1], 72
    v_lshrrev_b32 v1, 6, v0
    v_and_b32 v%d, 63, v0
    s_nop 0
    v_readfirstlane_b32 s%d, v1
    ;MAP
    s_lshr_b32 s%d, s%d, 1        ; s (key half)
    s_and_b32 s%d, s%d, 1         ; qh
""" % (L, S_W, S_S, S_W, S_QH, S_W))
    idx = [k for k, i in enumerate(p.ins) if i.text.startswith(';MAP')][0]
    if getattr(o, 'scramble', 0):
        p.ins[idx:idx + 1] = [I('s_lshr_b32 s%d, s2, 5' % S_G), I('s_and_b32 s%d, s2, 31' % S_QB)]
    else:
        p.ins[idx:idx + 1] = [I('s_and_b32 s%d, s2, 7' % S_G), I('s_lshr_b32 s%d, s2, 3' % S_QB)]
    if o.stamps:
        p('s_memrealtime s[%d:%d]' % (S_STAMP, S_STAMP + 1))
    p("""
    v_and_b32 v200, 15, v%d           ; n
    v_lshrrev_b32 v201, 4, v%d        ; kq
    s_lshl_b32 s60, s%d, 4
    v_add_u32 v202, s60, v200
    v_mul_u32_u24 v202, 896, v202
    v_lshl_add_u32 v202, v201, 4, v202
    s_mul_i32 s60, s%d, 57344
    s_waitcnt lgkmcnt(0)
    s_mov_b32 s24, s90
    s_mov_b32 s25, s91
    s_mov_b32 s26, 0x10000000
    s_mov_b32 s27, 0x20000
    s_mov_b32 s90, 256
    s_mov_b32 s91, 0x20000
    s_add_u32 s40, s40, s60
    s_addc_u32 s41, s41, 0
    s_mov_b32 s42, 57344
    s_mov_b32 s43, 0x20000
""" % (L, L, S_W, S_QB))
    p("""
    s_cmp_ge_u32 s2, 42
    s_cbranch_scc1 L_noprod_a
    s_mov_b32 s68, s64
    s_mov_b32 s69, s65
    s_mov_b32 s70, 896
    s_mov_b32 s71, 0x20000
    s_mov_b32 s64, s66
    s_mov_b32 s65, s67
    s_mov_b32 s66, %d
    s_mov_b32 s67, 0x20000
    v_and_b32 v206, 7, v0
    v_lshrrev_b32 v207, 3, v0
    v_mul_u32_u24 v208, 5376, v207
    v_lshl_add_u32 v208, v206, 4, v208
    s_lshl_b32 s60, s2, 7
    v_add_u32 v208, s60, v208
    v_lshlrev_b32 v209, 1, v207
""" % (448 * 5376))
    for i in range(14):
        p('buffer_load_ushort v%d, v209, s[68:71], 0 offen offset:%d' % (60 + i, 64 * i))
    p('s_mov_b32 s60, %d' % (32 * 5376))
    for i in range(14):
        p('buffer_load_dwordx4 %s, v208, s[64:67], 0 offen' % vr(76 + 4 * i, 4))
        if i < 13: p('v_add_u32 v208, s60, v208')
    p('L_noprod_a:')
    for ks in range(14):
        p('buffer_load_dwordx4 %s, v202, s[40:43], 0 offen offset:%d' % (vr(4 * ks, 4), ks * 64)); vm.add('x')
    p("""
    s_cmp_ge_u32 s2, 42
    s_cbranch_scc1 L_noprod_b
    s_waitcnt vmcnt(28)
""")
    mod_producer(o, p)
    p('L_noprod_b:')
    p("""
    s_mov_b32 s48, s46
    s_mov_b32 s49, s47
    s_mul_i32 s60, s%d, 458752
    s_add_u32 s48, s48, s60
    s_addc_u32 s49, s49, 0
    s_mov_b32 s50, 458752
    s_mov_b32 s51, 0x20000
    s_lshl_b32 s60, s%d, 10
    s_add_u32 s44, s44, s60
    s_addc_u32 s45, s45, 0
    s_sub_u32 s46, 3670016, s60
    s_mov_b32 s47, 0x20000
""" % (S_G, S_G))
    if o.pf:
        D = o.pfd
        p("""
    s_lshl_b32 s60, s%d, 20
    s_cmp_lt_u32 s%d, 16
    s_cselect_b32 s92, s4, s6
    s_cselect_b32 s93, s5, s7
    s_add_u32 s92, s92, s60
    s_addc_u32 s93, s93, 0
    s_mov_b32 s94, 0x100000
    s_mov_b32 s95, 0x20000
    s_and_b32 s60, s%d, 15
    s_lshl_b32 s60, s60, 4
    s_lshl_b32 s61, s%d, 2
    s_add_u32 s60, s60, s61            ; line0 = (qb&15)*16 + w*4
    v_and_b32 v206, 3, v%d
    v_add_u32 v206, s60, v206
    v_lshlrev_b32 v206, 7, v206        ; line*128
    v_lshrrev_b32 v207, 2, v%d         ; tile = lane>>2
    v_lshl_add_u32 v207, v207, 15, v206
    v_mov_b32 v208, 0x40000000
    v_cmp_gt_u32 vcc, %d, v%d
    s_nop 1
    v_cndmask_b32 v207, v208, v207, vcc
    v_cmp_gt_u32 vcc, 4, v%d
    v_add_u32 v206, %d, v206
    s_nop 0
    v_cndmask_b32 v%d, v208, v206, vcc
""" % (S_G, S_QB, S_QB, S_W, L, L, 4 * D, L, L, D * 32768, A.VPFA))
        p("""
    s_mul_i32 s60, s%d, 112
    s_mul_i32 s61, s%d, 28
    s_add_u32 s60, s60, s61
    v_add_u32 v206, s60, v%d
    v_lshrrev_b32 v209, 3, v206
    v_lshlrev_b32 v209, 13, v209
    v_and_b32 v210, 7, v206
    v_lshl_add_u32 v209, v210, 7, v209
    v_lshlrev_b32 v206, 7, v206        ; wo prefetch offset = L*128
    v_cmp_gt_u32 vcc, 28, v%d
    s_nop 1
    v_cndmask_b32 v209, v208, v209, vcc
    v_cndmask_b32 v242, v208, v206, vcc
    v_mov_b32 v240, v209
    v_mov_b32 v241, v207
""" % (S_QB, S_W, L, L))
        p("""
    s_mul_i32 s60, s2, 49
    s_mul_i32 s61, s%d, 13
    s_add_u32 s60, s60, s61
    v_add_u32 v206, s60, v%d
    v_min_u32 v206, 12543, v206
    v_lshlrev_b32 v243, 7, v206
""" % (S_W, L))
    VQ = (204, 205)
    p("""
    v_lshlrev_b32 v206, 1, v201       ; 2*rr
    v_xor_b32 v206, v206, v200        ; slot ^ 2rr
    v_lshlrev_b32 v206, 4, v206
    v_lshl_add_u32 v206, v201, 13, v206
    s_lshl_b32 s60, s%d, 8
    v_add_u32 v204, s60, v206
    v_xor_b32 v205, 0x80, v204
    s_lshl_b32 s%d, s%d, 13
""" % (S_W, S_QD2, S_W))
    for jj in range(8):
        p('s_mov_b32 s%d, %d' % (S_SO + jj, jj * 32768 - (jj & 3) * 1024))
    p("""
    s_lshl_b32 s60, s%d, 20
    s_add_u32 s8, s4, s60
    s_addc_u32 s9, s5, 0
    s_sub_u32 s8, s8, 96
    s_subb_u32 s9, s9, 0
    s_mov_b32 s10, %d
    s_mov_b32 s11, 0x20000
    s_add_u32 s12, s8, 4096
    s_addc_u32 s13, s9, 0
    s_mov_b32 s14, %d
    s_mov_b32 s15, 0x20000
    s_add_u32 s16, s6, s60
    s_addc_u32 s17, s7, 0
    s_sub_u32 s16, s16, 96
    s_subb_u32 s17, s17, 0
    s_mov_b32 s18, %d
    s_mov_b32 s19, 0x20000
    s_add_u32 s20, s16, 4096
    s_addc_u32 s21, s17, 0
    s_mov_b32 s22, %d
    s_mov_b32 s23, 0x20000
    s_mov_b32 s%d, 96
    s_mul_i32 s61, s%d, %d
    s_mul_i32 s62, s%d, %d
    s_add_u32 s%d, s61, s62       ; LDS DMA dest base for K/V
    s_mov_b32 s%d, 0x%x
""" % (S_G, (1 << 20) + 96, (1 << 20) + 96 - 4096, (1 << 20) + 96, (1 << 20) + 96 - 4096, S_96, S_S, HALF, S_QH, 8 * BLK, S_DST, S_THR, o.thr))
    XC = 56
    ONE = 210; SELLO = 211; SELHI = 212; ACC = 214
    p('v_mov_b32 v%d, 0x3f803f80' % ONE)
    p('v_mov_b32 v%d, 0x00003f80' % SELLO)
    p('v_mov_b32 v%d, 0x3f800000' % SELHI)
    for i in range(4): p('v_mov_b32 v%d, 0' % (ACC + i))
    p(vm.wait('x'))
    stamp(p, o, 'xwait')
    if o.pf:
        p('buffer_load_dword v253, v240, s[44:47], 0 offen'); vm.add('pf')
    dmas = []
    for st in range(3):
        dmas += wq_dma(st, vm, VQ)
        dmas += ['v_add_u32 v204, 0x40000, v204', 'v_add_u32 v205, 0x40000, v205']
    valu = []
    for i in range(56):
        valu.append('v_dot2_f32_bf16 v%d, v%d, v%d, v%d' % (ACC + i % 4, i, ONE, ACC + i % 4))
    r = Prog()
    r('s_nop 2')
    r('v_add_f32 v%d, v%d, v%d' % (ACC, ACC, ACC + 1))
    r('v_add_f32 v%d, v%d, v%d' % (ACC + 2, ACC + 2, ACC + 3))
    r('v_add_f32 v%d, v%d, v%d' % (ACC, ACC, ACC + 2))
    xreduce(r, ACC, ACC + 1)
    r('v_mul_f32 v%d, 0x%x, v%d' % (ACC, 0xbb124925, ACC))
    valu.append([i.text for i in r.ins])
    for i in range(56):
        valu.append('v_dot2_f32_bf16 v%d, v%d, v%d, v%d' % (XC + 2 * i, i, SELLO, ACC))
        valu.append('v_dot2_f32_bf16 v%d, v%d, v%d, v%d' % (XC + 2 * i + 1, i, SELHI, ACC))
    V2 = 216
    valu.append(['v_mov_b32 v%d, 0' % (V2 + i) for i in range(4)])
    for i in range(56):
        a_ = V2 + 2 * (i % 2)
        valu.append('v_pk_fma_f32 %s, %s, %s, %s' % (vr(a_, 2), vr(XC + 2 * i, 2), vr(XC + 2 * i, 2), vr(a_, 2)))
    di = 0
    for k, v in enumerate(valu):
        if isinstance(v, list):
            for x in v: p(x)
        else: p(v)
        if k % 6 == 5 and di < len(dmas):
            while di < len(dmas):
                d = dmas[di]; di += 1
                if isinstance(d, tuple):
                    p(d[0]); vm.add(d[1]); break
                p(d)
                if 'm0' in d:
                    p('s_nop 0')
    while di < len(dmas):
        d = dmas[di]; di += 1
        if isinstance(d, tuple): p(d[0]); vm.add(d[1])
        else:
            p(d)
            if 'm0' in d: p('s_nop 0')
    p('v_add_f32 v%d, v%d, v%d' % (V2, V2, V2 + 1))
    p('v_add_f32 v%d, v%d, v%d' % (V2 + 2, V2 + 2, V2 + 3))
    p('v_add_f32 v%d, v%d, v%d' % (V2, V2, V2 + 2))
    xreduce(p, V2, V2 + 1)
    p('v_mov_b32 v%d, 0x3727c5ac' % (V2 + 1))
    p('v_fmac_f32 v%d, 0x3b124925, v%d' % (V2 + 1, V2))
    p('v_rsq_f32 v%d, v%d' % (V2, V2 + 1))
    p('s_nop 0')
    p('v_mov_b32 v%d, v%d' % (V2 + 1, V2))
    if o.pf and o.pf_kv_early:
        p('buffer_load_dword v254, v241, s[92:95], 0 offen'); vm.add('pf')
    stamp(p, o, 'stats')
    p("""
    s_cmp_lg_u32 s%d, 0
    s_cbranch_scc1 L_modwait_done
    v_mov_b32 v206, 0
L_poll:
    buffer_load_dword v207, v206, s[88:91], 0 offen offset:128 sc1
    s_waitcnt vmcnt(0)
    v_readfirstlane_b32 s60, v207
    s_cmp_eq_u32 s60, 1
    s_cbranch_scc1 L_poll_done
    s_sleep 8
    s_branch L_poll
L_poll_done:
    ;STAMP poll_done
    v_lshlrev_b32 v206, 4, v%d
    buffer_load_dwordx4 v[168:171], v206, s[24:27], 0 offen sc1
    buffer_load_dwordx4 v[172:175], v206, s[24:27], 0 offen offset:1024 sc1
    buffer_load_dwordx4 v[176:179], v206, s[24:27], 0 offen offset:2048 sc1
    buffer_load_dwordx4 v[180:183], v206, s[24:27], 0 offen offset:3072 sc1
    s_waitcnt vmcnt(0)
    ds_write_b128 v206, v[168:171] offset:%d
    ds_write_b128 v206, v[172:175] offset:%d
    ds_write_b128 v206, v[176:179] offset:%d
    ds_write_b128 v206, v[180:183] offset:%d
    s_waitcnt lgkmcnt(0)
L_modwait_done:
    s_barrier
""" % (S_W, L, MV_OFF, MV_OFF + 1024, MV_OFF + 2048, MV_OFF + 3072))
    stamp(p, o, 'modbar')
    if o.pf and not o.pf_kv_early:
        p('buffer_load_dword v254, v241, s[92:95], 0 offen'); vm.add('pf')
    MVA = 222; HA = 223
    p('v_lshlrev_b32 v%d, 5, v201' % MVA)
    p('v_add_u32 v%d, %d, v%d' % (MVA, MV_OFF, MVA))
    p('s_mul_i32 s60, s%d, 14336' % S_W)
    p('v_lshlrev_b32 v%d, 4, v%d' % (HA, L))
    p('v_add_u32 v%d, s60, v%d' % (HA, HA))
    q = Prog()
    TA = [16, 32, 168, 184]
    def mvread(ks):
        t = TA[ks % 4]
        q('ds_read_b128 %s, v%d offset:%d' % (vr(t, 4), MVA, ks * 128))
        q('ds_read_b128 %s, v%d offset:%d' % (vr(t + 4, 4), MVA, ks * 128 + 16))
        q('ds_read_b128 %s, v%d offset:%d' % (vr(t + 8, 4), MVA, 1792 + ks * 128))
        q('ds_read_b128 %s, v%d offset:%d' % (vr(t + 12, 4), MVA, 1792 + ks * 128 + 16))
    for ks in range(3): mvread(ks)
    for ks in range(14):
        if ks + 3 < 14: mvread(ks + 3)
        t = TA[ks % 4]
        for j in range(4):
            q('v_pk_mul_f32 %s, %s, %s' % (vr(t + 8 + 2 * j, 2), vr(t + 8 + 2 * j, 2), vr(V2, 2)))
        for j in range(4):
            q('v_pk_fma_f32 %s, %s, %s, %s' % (vr(t + 2 * j, 2), vr(XC + 8 * ks + 2 * j, 2), vr(t + 8 + 2 * j, 2), vr(t + 2 * j, 2)))
        hr = 4 * (ks % 4)
        for j in range(4):
            q('v_cvt_pk_bf16_f32 v%d, v%d, v%d' % (hr + j, t + 2 * j, t + 2 * j + 1))
        q('ds_write_b128 v%d, %s offset:%d' % (HA, vr(hr, 4), H_OFF + ks * 1024))
    w, _ = insert_waits(q.ins)
    p.extend(w)
    p('s_waitcnt lgkmcnt(0)')
    p('s_barrier')
    stamp(p, o, 'hbar')
    p('v_lshlrev_b32 v%d, 4, v%d' % (HA, L))
    for st in range(14):
        for qt in range(4):
            f = qt * 14 + st
            p('ds_read_b128 %s, v%d offset:%d' % (ar(4 * f, 4), HA, H_OFF + f * 1024))
    VA = 232
    p("""
    v_bfe_u32 v206, v%d, 2, 2          ; r
    v_and_b32 v207, 1, v201            ; kq&1
    v_lshl_add_u32 v207, v207, 2, v206 ; f = r + 4*(kq&1)
    v_lshlrev_b32 v208, 11, v201       ; 2*kq*1024
    v_lshl_add_u32 v208, v206, 8, v208 ; + r*256
    v_and_b32 v209, 3, v%d             ; c
    v_lshl_add_u32 v208, v209, 3, v208 ; + c*8
    v_add_u32 v208, s%d, v208          ; + w*8192
""" % (L, L, S_QD2))
    for T in range(8):
        p('v_xor_b32 v209, %d, v207' % T)
        p('v_lshl_add_u32 v%d, v209, 5, v208' % (VA + T))
    p('s_waitcnt lgkmcnt(0)')
    p('s_barrier')
    stamp(p, o, 'ln_done')
    return p, vm, VQ, VA

def qproj(o, vm, VQ, VA):
    p = Prog()
    N = 14 * 32
    sc = [[] for _ in range(N)]; mem = [[] for _ in range(N)]; val = [[] for _ in range(N)]
    def aread(n):
        st, T = n // 8, n % 8
        r = FR + 4 * (n % 4)
        off = QSLOT[st % 4]
        return st, T, r, off
    reads = []
    for n in range(14 * 8):
        st, T, r, off = aread(n)
        reads.append(['ds_read_b64_tr_b16 %s, v%d offset:%d' % (vr(r, 2), VA + T, 0),
                      'ds_read_b64_tr_b16 %s, v%d offset:%d' % (vr(r + 2, 2), VA + T, 1024)])
    pre = Prog()
    for T in range(8):
        pre('v_add_u32 v%d, %d, v%d' % (VA + T, QSLOT[0], VA + T))
    pre(vm.wait('wq0'))
    for n in range(3):
        for s in reads[n]: pre(s)
    for n in range(14 * 8):
        st, T = n // 8, n % 8
        g = 4 * (n - 3)
        if n >= 3:
            mem[g] += reads[n]
        if st + 1 < 14:
            d = QSLOT[(st + 1) % 4] - QSLOT[st % 4]
            upd = 'v_add_u32 v%d, %s, v%d' % (VA + T, ('0x%x' % (d & 0xffffffff)), VA + T)
            if n >= 3: val[g + 1].append(upd)
            else: val[n + 1].append(upd)
    for st in range(14):
        base = st * 32
        lst = None
        if st <= 10:
            lst = wq_dma(st + 3, vm, VQ)
            post = ['v_add_u32 v%d, 0x40000, v%d' % (VQ[0], VQ[0]), 'v_add_u32 v%d, 0x40000, v%d' % (VQ[1], VQ[1])]
        elif st >= 12:
            lst = [(s if s.startswith('s_') else (s, 'k%d' % (st - 12))) for s in dma(o, st - 12, 0, True, False)]
            post = ['v_add_u32 v%d, 0x8000, v%d' % (VOFF, VOFF)]
        if lst:
            gi = 0
            gaps = [base + 2 + 4 * i for i in range(8)]
            for s in lst:
                if isinstance(s, tuple):
                    mem[gaps[gi]].append(s); gi += 1
                else:
                    sc[gaps[gi] - 1].append(s)
            for i, s in enumerate(post):
                val[base + 31].append(s)
    p.extend(pre)
    for gidx in range(N):
        st, rem = gidx // 32, gidx % 32
        T, qt = rem // 4, rem % 4
        n = st * 8 + T
        acc = (T * 4 + qt) * 4
        c = '0' if st == 0 else vr(acc, 4)
        m = 'v_mfma_f32_16x16x32_bf16 %s, %s, %s, %s' % (vr(acc, 4), vr(FR + 4 * (n % 4), 4), ar((qt * 14 + st) * 4, 4), c)
        p(m)
        if gidx + 1 < N:
            st2, rem2 = (gidx + 1) // 32, (gidx + 1) % 32
            if rem2 % 4 == 0:
                n2 = st2 * 8 + rem2 // 4
                p('.need v_mfma_f32_16x16x32_bf16 v[0:3], %s, v[0:3], 0' % vr(FR + 4 * (n2 % 4), 4))
        if rem == 20 and st + 1 < 14:
            p(vm.wait('wq%d' % (st + 1)))
        if st == 11 and rem == 31:
            p('s_barrier')
        for s in sc[gidx]: p(s)
        for s in mem[gidx]:
            if isinstance(s, tuple):
                p(s[0]); vm.add(s[1])
            else: p(s)
        for s in val[gidx]: p(s)
    return p

def kv_addresses(o):
    p = Prog()
    L = VLANE
    p('''
    s_mul_i32 s61, s%d, %d
    s_lshl_b32 s62, s%d, 14
    s_lshl_b32 s63, s%d, 13
    s_add_u32 s62, s62, s63
    v_lshlrev_b32 v%d, 4, v%d
    v_add_u32 v%d, s62, v%d
''' % (S_S, HALF, S_S, S_QH, VOFF, L, VOFF, VOFF))
    p('''
    v_and_b32 v240, 7, v%d
    v_mul_u32_u24 v240, %d, v240
    v_bfe_u32 v241, v%d, 3, 1
    v_lshlrev_b32 v241, 9, v241
    v_add_u32 v240, v240, v241
    v_lshrrev_b32 v241, 4, v%d
    v_lshlrev_b32 v241, 4, v241
    v_add_u32 v240, v240, v241
    v_add_u32 v%d, s61, v240
    v_lshrrev_b32 v240, 2, v%d
    v_and_b32 v241, 7, v240
    v_mul_u32_u24 v241, %d, v241
    v_lshrrev_b32 v240, 3, v240
    v_lshlrev_b32 v240, 9, v240
    v_add_u32 v240, v240, v241
    v_and_b32 v241, 3, v%d
    v_lshlrev_b32 v241, 3, v241
    v_add_u32 v240, v240, v241
    v_add_u32 v240, s61, v240
    v_add_u32 v%d, %d, v240
''' % (L, BLK, L, L, VK, L, BLK, L, VV, VBASE))
    return p

def qexchange(o, vm):
    p = Prog()
    L = VLANE
    p('s_nop 7')
    p('s_barrier')
    p('''
    v_and_b32 v200, 15, v%d
    v_lshrrev_b32 v201, 4, v%d
    v_mul_u32_u24 v202, 1040, v200
    v_lshl_add_u32 v202, v201, 3, v202
    s_lshl_b32 s60, s%d, 8
    s_add_u32 s60, s60, %d
    v_add_u32 v202, s60, v202
    s_mov_b32 s61, 0x%x
''' % (L, L, S_W, QX, 0x3db8aa3b))
    q = Prog()
    k = 0
    for T in range(8):
        for qt in range(4):
            a = (T * 4 + qt) * 4
            t = 128 + 2 * (k % 8)
            q('v_cvt_pk_bf16_f32 v%d, v%d, v%d' % (t, a, a + 1))
            q('v_cvt_pk_bf16_f32 v%d, v%d, v%d' % (t + 1, a + 2, a + 3))
            q('ds_write_b64 v202, %s offset:%d' % (vr(t, 2), qt * 16 * 1040 + T * 32))
            k += 1
    p.extend(q)
    p('s_waitcnt lgkmcnt(0)')
    p('s_barrier')
    p('''
    s_mul_i32 s60, s%d, %d
    s_add_u32 s60, s60, %d
    v_mul_u32_u24 v202, 1040, v200
    v_lshl_add_u32 v202, v201, 4, v202
    v_add_u32 v202, s60, v202
''' % (S_QH, 32 * 1040, QX))
    for h in range(2):
        for qt in range(2):
            b = 2 * h + qt
            for ks in range(8):
                p('ds_read_b128 %s, v202 offset:%d' % (vr(32 * b + 4 * ks, 4), qt * 16 * 1040 + h * 512 + ks * 64))
    p(vm.wait('k1'))
    p('s_waitcnt lgkmcnt(0)')
    p('s_barrier')
    return p

def attn_prologue(o):
    p = Prog()
    p('v_add_u32 v%d, 0xffff0000, v%d' % (VOFF, VOFF))
    p('s_nop 0')
    for s in dma(o, 0, 0, False, True, nop=True): p(s)
    p('v_add_u32 v%d, 0x8000, v%d' % (VOFF, VOFF))
    p('''
    s_add_u32 s8, s8, 0x8000
    s_addc_u32 s9, s9, 0
    s_sub_u32 s10, s10, 0x8000
    s_add_u32 s12, s12, 0x8000
    s_addc_u32 s13, s13, 0
    s_sub_u32 s14, s14, 0x8000
''')
    q = Prog()
    qk = qk_list(o, czero=True)
    for n in range(2):
        for s in kread(o, n, 0): q(s)
    for sl in range(64):
        if sl % 8 == 0 and sl // 8 + 1 < 8:
            for s in kread(o, 2 * (sl // 8 + 1), 0) + kread(o, 2 * (sl // 8 + 1) + 1, 0): q(s)
        q(qk[sl])
    w, _ = insert_waits(q.ins)
    p.extend(w)
    p('s_nop 7')
    t = TMP
    for b in range(4):
        max8(p, t + b, b)
    for b in range(4):
        xreduce(p, t + b, t + 4, 'v_max_f32')
    for b in range(4):
        for r in range(4):
            p('v_sub_f32 v%d, 0, v%d' % (NEGM + 4 * b + r, t + b))
        for a in range(2):
            for r in range(4):
                p('v_sub_f32 v%d, v%d, v%d' % (S(a, b) + r, S(a, b) + r, t + b))
    for i in range(4):
        p('v_mov_b32 v%d, 0' % (LREG[1] + i))
    for s in exps(o, 0, 0, 1, 0): p(s)
    for s in exps(o, 1, 0, 1, 0): p(s)
    p('s_waitcnt vmcnt(0) lgkmcnt(0)')
    p('s_barrier')
    for n in range(2):
        for s in kread(o, n, 1): p(s)
    p('s_waitcnt lgkmcnt(0)')
    return p

def attn_loop(o):
    p = Prog()
    first = A.iteration(o, 0, 'f', first_pv=True)
    w0, st0 = insert_waits(first.ins)
    p.extend(w0)
    p('s_mov_b32 s%d, 14' % S_CNT)
    p('.p2align 6')
    p('L_loop:')
    body = Prog()
    body.extend(A.iteration(o, 1, 'a'))
    body.extend(A.iteration(o, 0, 'b'))
    w1, st1 = insert_waits(body.ins, st0)
    w, st2 = insert_waits(body.ins, st1)
    assert st2 == st1 and [i.text for i in w] == [i.text for i in w1], 'not steady'
    loop_ins = w
    p.extend(w)
    p('s_sub_u32 s%d, s%d, 1' % (S_CNT, S_CNT))
    p('s_cmp_lg_u32 s%d, 0' % S_CNT)
    p('s_cbranch_scc1 L_loop')
    tail = Prog()
    ex = []
    if o.pf:
        ex = [(71, 'buffer_load_dword v255, v242, s[48:51], 0 offen')]
    tail.extend(A.iteration(o, 1, 'c', extra_mem=ex))
    ex = []
    if o.pf and o.pfmoe:
        ex = [(71, 'global_load_dword v255, v243, s[96:97]'), (75, 'global_load_dword v255, v243, s[98:99]'), (79, 'global_load_dword v255, v243, s[100:101]')]
    tail.extend(A.iteration(o, 0, 'd', do_dma_k=False, next_k=False, pf_ok=False, extra_mem=ex))
    tail('s_waitcnt vmcnt(%d) lgkmcnt(0)' % len(ex))
    tail('s_barrier')
    tail.extend(A.iteration(o, 1, 'e', do_qk=False, do_dma_k=False, do_dma_v=False, next_k=False))
    w, _ = insert_waits(tail.ins, st1)
    p.extend(w)
    return p, w0, loop_ins, w

def combine(o, s):
    p = Prog()
    L = VLANE
    own = s; oth = 1 - s
    k = 0
    for dt in range(16):
        for qt in range(2):
            b = 2 * oth + qt
            p('ds_write_b128 v200, %s offset:%d' % (ar((dt * 4 + b) * 4, 4), (dt * 2 + qt) * 1024))
    p('s_waitcnt lgkmcnt(0)')
    p('s_barrier')
    stamp(p, o, 'e1bar')
    q = Prog()
    q('ds_read_b128 v[204:207], v203')
    q('ds_read_b128 v[208:211], v203 offset:16')
    for dt in range(16):
        for qt in range(2):
            q('ds_read_b128 %s, v201 offset:%d' % (vr((dt * 2 + qt) * 4, 4), (dt * 2 + qt) * 1024))
    AL = 212; BE = 216
    for qt in range(2):
        b = 2 * own + qt
        mo = 224 + b
        mp = 204 + b
        lo = 228 + b; lp = 208 + b
        t = 220
        q('v_min_f32 v%d, v%d, v%d' % (t, mo, mp))
        q('v_sub_f32 v%d, v%d, v%d' % (t + 1, t, mo))
        q('v_sub_f32 v%d, v%d, v%d' % (t + 2, t, mp))
        q('v_exp_f32 v%d, v%d' % (t + 1, t + 1))
        q('v_exp_f32 v%d, v%d' % (t + 2, t + 2))
        q('s_nop 0')
        q('v_mul_f32 v%d, v%d, v%d' % (t + 3, t + 1, lo))
        q('v_fmac_f32 v%d, v%d, v%d' % (t + 3, t + 2, lp))
        q('v_rcp_f32 v%d, v%d' % (t + 3, t + 3))
        q('s_nop 0')
        q('v_mul_f32 v%d, v%d, v%d' % (AL + 2 * qt, t + 1, t + 3))
        q('v_mul_f32 v%d, v%d, v%d' % (BE + 2 * qt, t + 2, t + 3))
        q('v_mov_b32 v%d, v%d' % (AL + 2 * qt + 1, AL + 2 * qt))
        q('v_mov_b32 v%d, v%d' % (BE + 2 * qt + 1, BE + 2 * qt))
    k = 0
    for i in range(8):
        for qt in range(2):
            b = 2 * own + qt
            for y in range(2):
                dt = 2 * i + y
                rv = (dt * 2 + qt) * 4
                t = 192 + 4 * (k % 2); k += 1
                for r in range(4):
                    q('v_accvgpr_read_b32 v%d, a%d' % (t + r, (dt * 4 + b) * 4 + r))
                q('v_pk_mul_f32 %s, %s, %s' % (vr(rv, 2), vr(rv, 2), vr(BE + 2 * qt, 2)))
                q('v_pk_mul_f32 %s, %s, %s' % (vr(rv + 2, 2), vr(rv + 2, 2), vr(BE + 2 * qt, 2)))
                q('v_pk_fma_f32 %s, %s, %s, %s' % (vr(rv, 2), vr(t, 2), vr(AL + 2 * qt, 2), vr(rv, 2)))
                q('v_pk_fma_f32 %s, %s, %s, %s' % (vr(rv + 2, 2), vr(t + 2, 2), vr(AL + 2 * qt, 2), vr(rv + 2, 2)))
                f = 128 + (i * 2 + qt) * 4 + 2 * y
                q('v_cvt_pk_bf16_f32 v%d, v%d, v%d' % (f, rv, rv + 1))
                q('v_cvt_pk_bf16_f32 v%d, v%d, v%d' % (f + 1, rv + 2, rv + 3))
            q('ds_write_b128 v201, %s offset:%d' % (vr(128 + (i * 2 + qt) * 4, 4), (i * 2 + qt) * 1024))
    w, _ = insert_waits(q.ins)
    p.extend(w)
    return p

def wo_dma(step, slot, VW):
    out = []
    for jj in range(7):
        out.append('s_add_u32 m0, s%d, %d' % (S_T0 + slot, jj * 1024))
        out.append(('buffer_load_dwordx4 v%d, s[%d:%d], s%d offen lds' % (VW + jj, S_WO, S_WO + 3, S_WST), 'wo%d' % step))
    return out

def epilogue(o):
    p = Prog()
    L = VLANE
    vm = VmTracker()
    VW = 232
    p('s_nop 7')
    for b in range(4):
        p('v_mov_b32 v%d, v%d' % (224 + b, NEGM + 4 * b))
        p('v_mov_b32 v%d, v%d' % (228 + b, LREG[1] + b))
    for b in range(4):
        xreduce(p, 228 + b, TMP)
    p('s_mul_i32 s60, s%d, 224' % S_W)
    p('s_mov_b32 s61, 0x124925')
    for jj in range(7):
        p('v_add_u32 v200, %d, v%d' % (64 * jj, L))
        p('v_mul_u32_u24 v201, s61, v200')
        p('v_lshrrev_b32 v201, 24, v201')
        p('v_mul_u32_u24 v202, 14, v201')
        p('v_sub_u32 v202, v200, v202')
        p('v_mul_u32_u24 v201, 896, v201')
        p('v_lshl_add_u32 v201, v202, 4, v201')
        p('v_add_u32 v%d, s60, v201' % (VW + jj))
    p('''
    s_mul_i32 s60, s%d, 7168
    s_add_u32 s60, s60, %d
    s_lshl_b32 s61, s%d, 15
    s_add_u32 s61, s61, 16384
    s_add_u32 s62, s61, 7168
    s_mov_b32 s%d, 0
''' % (S_W, WO0, S_W, S_WST))
    emit_dma(p, wo_dma(0, 0, VW), vm)
    p('s_mov_b32 s%d, 28672' % S_WST)
    p('''
    v_and_b32 v203, 15, v%d
    v_lshlrev_b32 v203, 5, v203         ; n*32
    s_lshl_b32 s63, s%d, 9
    s_add_u32 s63, s63, %d
    v_add_u32 v202, s63, v203           ; own stats address
    s_xor_b32 s63, s%d, 2
    s_lshl_b32 s64, s63, 9
    s_add_u32 s64, s64, %d
    v_add_u32 v203, s64, v203           ; partner stats address
    v_lshlrev_b32 v200, 4, v%d
    s_lshl_b32 s63, s63, 15
    v_add_u32 v201, s63, v200           ; partner XR + lane*16
    s_lshl_b32 s63, s%d, 15
    v_add_u32 v200, s63, v200           ; own XR + lane*16
    s_barrier
    ds_write_b128 v202, v[224:227]
    ds_write_b128 v202, v[228:231] offset:16
    s_cmp_eq_u32 s%d, 0
    s_cbranch_scc0 L_comb1
''' % (L, S_W, ST, S_W, ST, L, S_W, S_S))
    c0 = combine(o, 0); c1 = combine(o, 1)
    p.extend(c0)
    p('s_branch L_combdone')
    p('L_comb1:')
    p.extend(c1)
    p('L_combdone:')
    stamp(p, o, 'comb')
    p('s_waitcnt lgkmcnt(0)')
    p('s_barrier')
    stamp(p, o, 'e3bar')
    emit_dma(p, wo_dma(1, 1, VW), vm)
    p('s_mov_b32 s%d, %d' % (S_WST, 2 * 28672))
    AW = 240
    BW = 244
    p('''
    v_lshrrev_b32 v200, 2, v%d          ; 4kq + r
    v_mul_u32_u24 v200, 224, v200
    v_and_b32 v201, 3, v%d
    v_lshl_add_u32 v200, v201, 3, v200
    v_add_u32 v%d, s60, v200
    v_add_u32 v%d, s61, v200
    v_add_u32 v%d, s62, v200
    v_lshlrev_b32 v200, 4, v%d
''' % (L, L, AW, AW + 1, AW + 2, L))
    for r in range(4):
        p('v_add_u32 v%d, %d, v200' % (BW + r, r * 32768))
    def bread(ks, qtile):
        h, i = ks >> 3, ks & 7
        qh, qt = qtile >> 1, qtile & 1
        reg = qh + 2 * (1 - h)
        return 'ds_read_b128 %s, v%d offset:%d' % (vr(112 + 16 * (ks % 2) + 4 * qtile, 4), BW + reg, (i * 2 + qt) * 1024)
    def aread(n):
        ks, T = n // 7, n % 7
        r = FR + 4 * (n % 4)
        return ['ds_read_b64_tr_b16 %s, v%d offset:%d' % (vr(r + 2 * a, 2), AW + ks % 3, a * 3584 + T * 32) for a in range(2)]
    N = 16 * 28
    sc = [[] for _ in range(N)]; mem = [[] for _ in range(N)]; val = [[] for _ in range(N)]
    pre = Prog()
    pre(vm.wait('wo0'))
    for qtile in range(4): pre(bread(0, qtile))
    for n in range(3):
        for s in aread(n): pre(s)
    for n in range(3, 16 * 7):
        mem[4 * (n - 3)] += aread(n)
    for ks in range(15):
        for qtile in range(4):
            mem[28 * ks + 4 * qtile + 5 + 8].append(bread(ks + 1, qtile))
    for ks in range(14):
        lst = wo_dma(ks + 2, (ks + 2) % 3, VW)
        gaps = [28 * ks + 2 + 4 * i for i in range(7)]
        gi = 0
        for s in lst:
            if isinstance(s, tuple):
                mem[gaps[gi]].append(s); gi += 1
            else:
                sc[gaps[gi] - 1].append(s)
        sc[28 * ks + 27].append('s_add_u32 s%d, s%d, 28672' % (S_WST, S_WST))
    body = Prog()
    body.extend(pre)
    for gidx in range(N):
        ks, rem = gidx // 28, gidx % 28
        T, qt = rem // 4, rem % 4
        n = ks * 7 + T
        acc = (T * 4 + qt) * 4
        c = '0' if ks == 0 else vr(acc, 4)
        body('v_mfma_f32_16x16x32_bf16 %s, %s, %s, %s' % (vr(acc, 4), vr(FR + 4 * (n % 4), 4), vr(112 + 16 * (ks % 2) + 4 * qt, 4), c))
        if gidx + 1 < N:
            ks2, rem2 = (gidx + 1) // 28, (gidx + 1) % 28
            n2 = ks2 * 7 + rem2 // 4
            body('.need v_mfma_f32_16x16x32_bf16 v[0:3], %s, %s, 0' % (vr(FR + 4 * (n2 % 4), 4), vr(112 + 16 * (ks2 % 2) + 4 * (rem2 % 4), 4)))
        if rem == 16 and ks + 1 < 16:
            body(vm.wait('wo%d' % (ks + 1)))
        for s in sc[gidx]: body(s)
        for s in mem[gidx]:
            if isinstance(s, tuple):
                body(s[0]); vm.add(s[1])
            else: body(s)
        for s in val[gidx]: body(s)
    w, _ = insert_waits(body.ins)
    p.extend(w)
    stamp(p, o, 'oproj')
    p('''
    s_mov_b32 s68, s24
    s_mov_b32 s69, s25
    s_lshl_b32 s60, s%d, 11
    s_lshl_b32 s61, s%d, 6
    s_add_u32 s60, s60, s61
    s_mul_i32 s60, s60, 896
    s_add_u32 s60, s60, %d
    s_add_u32 s68, s68, s60
    s_addc_u32 s69, s69, 0
    s_mov_b32 s70, 57344
    s_mov_b32 s71, 0x20000
    v_and_b32 v200, 15, v%d
    v_mul_u32_u24 v200, 912, v200
    v_lshrrev_b32 v201, 4, v%d
    v_lshl_add_u32 v200, v201, 3, v200
    s_mul_i32 s60, s%d, 224
    v_add_u32 v200, s60, v200          ; LDS write address
    v_lshlrev_b32 v201, 4, v%d
    s_mul_i32 s60, s%d, %d
    v_add_u32 v202, s60, v201          ; LDS read address: (16w)*912 + lane*16
    s_mul_i32 s60, s%d, %d
    v_add_u32 v203, s60, v201          ; global offset: (16w)*896 + lane*16
    v_mov_b32 v204, 0x40000000
    v_cmp_gt_u32 vcc, 56, v%d
    s_barrier
    s_nop 0
    v_cndmask_b32 v203, v204, v203, vcc
''' % (S_G, S_QB, WS_PART, L, L, S_W, L, S_W, 16 * 912, S_W, 16 * 896, L))
    k = 0
    for qt in range(4):
        for T in range(7):
            acc = (T * 4 + qt) * 4
            t = 128 + 2 * (k % 16); k += 1
            p('v_cvt_pk_bf16_f32 v%d, v%d, v%d' % (t, acc, acc + 1))
            p('v_cvt_pk_bf16_f32 v%d, v%d, v%d' % (t + 1, acc + 2, acc + 3))
            p('ds_write_b64 v200, %s offset:%d' % (vr(t, 2), qt * 16 * 912 + T * 32))
    p('s_waitcnt lgkmcnt(0)')
    p('s_barrier')
    q = Prog()
    for rr in range(16):
        q('ds_read_b128 %s, v202 offset:%d' % (vr(4 * rr, 4), rr * 912))
    for rr in range(16):
        if rr % 4 == 0 and rr: q('v_add_u32 v203, %d, v203' % (4 * 896))
        q('buffer_store_dwordx4 %s, v203, s[68:71], 0 offen offset:%d%s' % (vr(4 * rr, 4), (rr % 4) * 896, o.part_flags))
    w, _ = insert_waits(q.ins)
    p.extend(w)
    return p

def expand_stamps(p, o):
    q = Prog()
    for i in p.ins:
        if i.text.startswith(';STAMP'):
            stamp(q, o, i.text.split()[1])
        else: q.ins.append(i)
    return q

def build_k1(o):
    p = Prog()
    p('k1_kernel:')
    pro, vm, VQ, VA = prologue(o)
    p.extend(expand_stamps(pro, o))
    p.extend(kv_addresses(o))
    qp = qproj(o, vm, VQ, VA)
    w, _ = insert_waits(qp.ins)
    p.extend(w)
    stamp(p, o, 'qproj')
    p.extend(qexchange(o, vm))
    stamp(p, o, 'qexch')
    if getattr(o, 'dump', '') == 'q':
        p('''
    s_lshl_b32 s60, s2, 2
    s_add_u32 s60, s60, s%d
    s_lshl_b32 s60, s60, 15
    s_add_u32 s60, s60, 0x2000000
    v_lshlrev_b32 v200, 4, v%d
    v_add_u32 v200, s60, v200
''' % (S_W, VLANE))
        for n in range(32):
            if n % 4 == 0 and n: p('v_add_u32 v200, 0x1000, v200')
            p('buffer_store_dwordx4 %s, v200, s[24:27], 0 offen offset:%d' % (vr(4 * n, 4), (n % 4) * 1024))
        p('s_waitcnt vmcnt(0)')
    p.extend(attn_prologue(o))
    stamp(p, o, 'attnpro')
    if o.stamps: p('s_waitcnt lgkmcnt(0)')
    lp, first, loop_ins, tail = attn_loop(o)
    p.extend(lp)
    stamp(p, o, 'loop')
    if getattr(o, 'dump', '') == 'o':
        p('s_nop 7')
        p('''
    s_lshl_b32 s60, s2, 18
    s_lshl_b32 s61, s%d, 16
    s_add_u32 s60, s60, s61
    s_add_u32 s60, s60, 0x2000000
    v_lshlrev_b32 v210, 4, v%d
    v_add_u32 v210, s60, v210
''' % (S_W, VLANE))
        for r4 in range(64):
            if r4 % 4 == 0 and r4: p('v_add_u32 v210, 0x1000, v210')
            p('buffer_store_dwordx4 %s, v210, s[24:27], 0 offen offset:%d' % (ar(4 * r4, 4), (r4 % 4) * 1024))
        p('''
    s_lshl_b32 s60, s2, 2
    s_add_u32 s60, s60, s%d
    s_lshl_b32 s60, s60, 11
    s_add_u32 s60, s60, 0x8000000
    v_lshlrev_b32 v210, 2, v%d
    v_add_u32 v210, s60, v210
''' % (S_W, VLANE))
        for b in range(4):
            p('buffer_store_dword v%d, v210, s[24:27], 0 offen offset:%d' % (NEGM + 4 * b, 256 * b))
            p('buffer_store_dword v%d, v210, s[24:27], 0 offen offset:%d' % (LREG[1] + b, 1024 + 256 * b))
        p('s_waitcnt vmcnt(0)')
    p.extend(epilogue(o))
    if o.stamps:
        stamp(p, o, 'stores')
        p('s_waitcnt vmcnt(0)')
        stamp(p, o, 'end')
        p('s_waitcnt lgkmcnt(0)')
        p('''
    s_lshl_b32 s60, s2, 2
    s_add_u32 s60, s60, s%d
    s_lshl_b32 s60, s60, 6
    s_add_u32 s60, s60, 0x%x
    v_mov_b32 v1, s60
''' % (S_W, WS_STAMP))
        for k in range(8):
            p('v_mov_b32 v%d, s%d' % (2 + k, S_STAMP + 2 * k))
        p('''
    v_cmp_eq_u32 vcc, 0, v%d
    s_and_saveexec_b64 s[60:61], vcc
    s_cbranch_execz L_nostamp
    buffer_store_dwordx4 v[2:5], v1, s[24:27], 0 offen
    buffer_store_dwordx4 v[6:9], v1, s[24:27], 0 offen offset:16
L_nostamp:
    s_mov_b64 exec, s[60:61]
''' % VLANE)
    p('s_waitcnt vmcnt(0)')
    p('L_end_k1:')
    p('s_endpgm')
    for tag, par in (('f', 0), ('a', 1), ('b', 0), ('c', 1), ('d', 0)):
        p('L_rare_%s:' % tag)
        p('s_call_b64 s[%d:%d], L_fb_%d' % (S_RET, S_RET + 1, par))
        p('s_branch L_back_%s' % tag)
    p.extend(A.fallback(o, 0))
    p.extend(A.fallback(o, 1))
    probs = check_hazards(first + loop_ins + loop_ins + tail, 'loop') + check_hazards(p.ins, 'all')
    return p, probs

KD = '''
.amdhsa_kernel %s
  .amdhsa_next_free_vgpr %d
  .amdhsa_next_free_sgpr %d
  .amdhsa_accum_offset %d
  .amdhsa_group_segment_fixed_size 0
  .amdhsa_kernarg_size 120
  .amdhsa_user_sgpr_count 2
  .amdhsa_user_sgpr_kernarg_segment_ptr 1
  .amdhsa_system_sgpr_workgroup_id_x 1
  .amdhsa_float_denorm_mode_32 3
.end_amdhsa_kernel
'''

if __name__ == '__main__':
    import sys
    o = A.Opt()
    o.kgap = 1
    o.dma_gaps = [3, 7, 11, 15, 19, 23, 27, 31, 35, 39, 43, 47, 51, 55, 59, 63]
    o.stamps = 1; o.pf = 1; o.pfd = 4; o.pfmoe = 1; o.pf_kv_early = 0; o.part_flags = ''
    out = sys.argv[1]
    for kv in sys.argv[2:]:
        k, v = kv.split('=')
        try: v = int(v, 0)
        except ValueError:
            if v.startswith('['): v = eval(v)
        setattr(o, k, v)
    p, probs = build_k1(o)
    for pr in probs[:20]: print(pr)
    print('hazards', len(probs), 'instrs', len(p.ins))
    hdr = '''; @launch kernel=k1_kernel grid=(256,1,1) block=(256,1,1) lds=163840
.amdgcn_target "amdgcn-amd-amdhsa--gfx950"
.text
.globl k1_kernel
.p2align 8
.type k1_kernel,@function
'''
    ftr = '.section .rodata,"a"\n.p2align 6' + KD % ('k1_kernel', 512, 102, 256)
    open(out, 'w').write(hdr + p.text() + ftr)
```

```python
import sys
from asmlib import *

class Opt:
    dma = True; dsread = True; valu = True; barrier = True
    bar_slot = 118
    dma_lo = 0; dma_hi = 56
    e64 = False
    nit = 32
    summ = 'add'
    dflag = ''
    chain = 2
    e0lo = 36; e0hi = 76; e1lo = 72; e1hi = 116
    thr = 0x53800000
    kgap = 2
    dma_gaps = [1, 5, 9, 13, 17, 21, 25, 29, 33, 37, 41, 45, 49, 53, 57, 61]
    pf = 0; pf_gap = 67
    even = 1; ehi = 122; vm_valu = 1; hoist = 1

BLK = 1056
HALF = 16 * BLK; KBUF = 2 * HALF; VBASE = 2 * KBUF
SREG = 128
PBUF = [160, 176]
NEGM = 192
FR = 208
VK, VV, VOFF = 224, 225, 226
LREG = [228, 236]
TMP = 244
VLANE = 252
VONE = 253
S_K0, S_K1, S_V0, S_V1 = 8, 12, 16, 20
S_WS = 24
VPFA, VPFD = 227, 253
S_PF = 92
S_DST = 28; S_THR = 29; S_RET = 30; S_CNT = 33; S_W = 34; S_96 = 35

def vr(a, n=1):
    return 'v%d' % a if n == 1 else 'v[%d:%d]' % (a, a + n - 1)
def ar(a, n=1):
    return 'a%d' % a if n == 1 else 'a[%d:%d]' % (a, a + n - 1)
def E(o, op):
    return op + '_e64' if o.e64 else op
def frag(n):
    return FR + 4 * (n % 4)
def kread(o, n, buf):
    a, ks = n // 8, n % 8
    return ['ds_read_b128 %s, v%d offset:%d' % (vr(frag(n), 4), VK, buf * KBUF + a * 8 * BLK + ks * 64)]
def vread(o, dt, buf):
    r = frag(16 + dt)
    return ['ds_read_b64_tr_b16 %s, v%d offset:%d' % (vr(r + 2 * a, 2), VV, buf * KBUF + a * 8 * BLK + dt * 32) for a in range(2)]
def S(a, b): return SREG + 16 * a + 4 * b
def qk_list(o, czero=False):
    L = []
    for a in range(2):
        if o.chain == 2:
            for kp in range(4):
                for b in range(4):
                    for k2 in range(2):
                        ks = 2 * kp + k2
                        c = ('0' if czero else vr(NEGM + 4 * b, 4)) if ks == 0 else vr(S(a, b), 4)
                        L.append('v_mfma_f32_16x16x32_bf16 %s, %s, %s, %s' % (vr(S(a, b), 4), vr(frag(a * 8 + ks), 4), vr(32 * b + 4 * ks, 4), c))
        else:
            for kp in range(4):
                for k2 in range(2):
                    for b in range(4):
                        ks = 2 * kp + k2
                        c = ('0' if czero else vr(NEGM + 4 * b, 4)) if ks == 0 else vr(S(a, b), 4)
                        L.append('v_mfma_f32_16x16x32_bf16 %s, %s, %s, %s' % (vr(S(a, b), 4), vr(frag(a * 8 + ks), 4), vr(32 * b + 4 * ks, 4), c))
    return L
def pv_list(o, pb, first=False):
    L = []
    for dt in range(16):
        for b in range(4):
            O = (dt * 4 + b) * 4
            c = '0' if first else ar(O, 4)
            L.append('v_mfma_f32_16x16x32_bf16 %s, %s, %s, %s' % (ar(O, 4), vr(frag(16 + dt), 4), vr(PBUF[pb] + 4 * b, 4), c))
    return L

def lreg(o, par, b):
    return LREG[par] + (2 * b if o.summ == 'pk' else b)

def exps(o, a, pb, lold, lnew):
    groups = []
    k = 0
    for b in range(4):
        for hp in range(2):
            s = S(a, b) + 2 * hp
            t = TMP + 2 * (k % 4)
            P = PBUF[pb] + 4 * b + 2 * a + hp
            e = ['%s v%d, v%d' % (E(o, 'v_exp_f32'), t, s), '%s v%d, v%d' % (E(o, 'v_exp_f32'), t + 1, s + 1)]
            first = (a == 0 and hp == 0)
            ln = lreg(o, lnew, b); lo = lreg(o, lold, b) if first else ln
            cv = 'v_cvt_pk_bf16_f32 v%d, v%d, v%d' % (P, t, t + 1)
            if o.summ == 'add':
                c = ['%s v%d, v%d, v%d' % (E(o, 'v_add_f32'), ln, lo, t), '%s v%d, v%d, v%d' % (E(o, 'v_add_f32'), ln, ln, t + 1), cv]
            elif o.summ == 'pk':
                c = ['v_pk_add_f32 %s, %s, %s' % (vr(ln, 2), vr(lo, 2), vr(t, 2)), cv]
            else:
                c = [cv, ('dot', 'v_dot2_f32_bf16 v%d, v%d, v%d, v%d' % (ln, P, VONE, lo))]
            groups.append((e, c))
            k += 1
    if o.summ in ('pk', 'dot2'):
        out = []
        prev = None
        for i in range(0, len(groups), 2):
            g0, g1 = groups[i], groups[i + 1]
            out += g0[0] + g1[0]
            if prev: out += prev
            c0 = [x[1] if isinstance(x, tuple) else x for x in g0[1]]; c1 = [x[1] if isinstance(x, tuple) else x for x in g1[1]]
            if o.summ == 'pk': prev = [c0[0], c1[0], c0[1], c1[1]]
            else: prev = [c0[0], c1[0], c0[1], c1[1]]
        out += prev
        return out
    out = []
    pend = []
    for i, (e, c) in enumerate(groups):
        out += e
        out += pend; pend = []
        if i >= 1:
            for x in groups[i - 1][1]:
                if isinstance(x, tuple): pend.append(x[1])
                else: out.append(x)
    out += pend; pend = []
    for x in groups[-1][1]:
        out.append(x[1] if isinstance(x, tuple) else x)
    return out

def dma(o, kbuf, vbuf, do_k=True, do_v=True, nop=False):
    out = []
    grp = []
    if do_k: grp += [(S_K0, kbuf * KBUF), (S_K1, kbuf * KBUF + 4 * BLK)]
    vb = VBASE + vbuf * KBUF if getattr(o, '_vdst', None) is None else o._vdst
    if do_v: grp += [(S_V0, vb), (S_V1, vb + 4 * BLK)]
    for srd, dst in grp:
        out.append('s_add_u32 m0, s%d, %d' % (S_DST, dst) if dst else 's_mov_b32 m0, s%d' % S_DST)
        if nop: out.append('s_nop 0')
        for j in range(4):
            so = ('s%d' % S_96, '64', '32', '0')[j]
            out.append('buffer_load_dwordx4 v%d, s[%d:%d], %s offen offset:%d %s lds' % (VOFF, srd, srd + 3, so, BLK * j, o.dflag))
    return out

def spread(slots, stream, lo, hi):
    n = len(stream)
    for i, s in enumerate(stream):
        slots[lo + (i * (hi - lo + 1)) // n].append(s)

def check(o, par, tag):
    if o.summ == 'pk':
        r = [LREG[par] + i for i in range(8)]
        return ['v_max3_f32 v%d, v%d, v%d, v%d' % (TMP, r[0], r[1], r[2]),
                'v_max3_f32 v%d, v%d, v%d, v%d' % (TMP + 1, r[3], r[4], r[5]),
                'v_max3_f32 v%d, v%d, v%d, v%d' % (TMP, TMP, r[6], r[7]),
                'v_max_f32 v%d, v%d, v%d' % (TMP, TMP, TMP + 1),
                'v_cmp_lt_f32 vcc, s%d, v%d' % (S_THR, TMP)]
    r = [LREG[par] + i for i in range(4)]
    return ['v_max3_f32 v%d, v%d, v%d, v%d' % (TMP, r[0], r[1], r[2]),
            'v_max_f32 v%d, v%d, v%d' % (TMP, TMP, r[3]),
            'v_cmp_lt_f32 vcc, s%d, v%d' % (S_THR, TMP)]

def is_exp(s): return s.startswith('v_exp') or s.startswith('v_pk_') or s.startswith('v_dot2')

def iteration(o, par, tag, do_qk=True, do_dma_k=True, do_dma_v=True, next_k=True, first_pv=False, pf_ok=True, extra_mem=(), vm_left=None, extra_valu=()):
    p = Prog()
    cur = par; nxt = par ^ 1
    N = 128
    sc = [[] for _ in range(N)]
    mem = [[] for _ in range(N)]
    val = [[] for _ in range(N)]
    B = o.bar_slot
    if o.dsread:
        if do_qk:
            for n in range(2, 16):
                i = n // 2
                mem[8 * (i - 1) + (n % 2) * o.kgap] += kread(o, n, nxt)
        for dt in range(16):
            if dt < 2: sl = 56 + 2 * dt + 1
            elif dt < 4: sl = 64 + (dt - 2) * 2
            else: sl = 64 + 4 * (dt - 4) + 4
            mem[sl] += vread(o, dt, cur)
        if next_k:
            mem[B] += kread(o, 0, cur)
            mem[max(B + 1, 120)] += kread(o, 1, cur)
    if o.dma and (do_dma_k or do_dma_v):
        d = dma(o, cur, nxt, do_dma_k, do_dma_v)
        gaps = list(o.dma_gaps)
        gi = 0
        last = None
        for s in d:
            if s.startswith('s_'):
                g = gaps[gi]
                gm = g - 1
                assert last is None or gm >= last
                sc[gm % N].append(s) if gm >= 0 else pre_m0.append(s) if False else sc[max(gm, 0)].append(s)
            else:
                g = gaps[gi]; gi += 1
                while len(mem[g]) >= 1: g += 1;
                mem[g].append(s); last = g
        val[last + 1].append('v_add_u32 v%d, 0x8000, v%d' % (VOFF, VOFF))
    pf = getattr(o, 'pf', 0) and do_dma_v and pf_ok
    if pf:
        g = o.pf_gap
        while len(mem[g]) >= 1: g += 1
        mem[g].append('buffer_load_dword v%d, v%d, s[%d:%d], 0 offen' % (VPFD + par, VPFA, S_PF, S_PF + 3))
        val[g + 1].append('v_add_u32 v%d, 0x8000, v%d' % (VPFA, VPFA))
    for g0, txt in extra_mem:
        g = g0
        while len(mem[g]) >= 1: g += 1
        mem[g].append(txt)
    def cost(g):
        return 4 * len(mem[g]) + sum(8 if is_exp(x) else 4 for x in val[g])
    if o.valu and do_qk:
        stream = [(x, o.e0lo) for x in exps(o, 0, nxt, cur, nxt)] + [(x, o.e1lo) for x in exps(o, 1, nxt, cur, nxt)] + [(x, 0) for x in check(o, nxt, tag)]
        g = o.e0lo
        total = sum(8 if is_exp(x) else 4 for x, _ in stream)
        done = 0
        lo, hi = o.e0lo, o.ehi
        for x, early in stream:
            c = 8 if is_exp(x) else 4
            tgt = lo + int(done * (hi - lo) / total) if o.even else 0
            g = max(g, early, tgt)
            while True:
                lim = 8
                hasvm = any(y.startswith('buffer') for y in mem[g])
                if hasvm and not o.vm_valu: lim = 0 if False else 4
                if cost(g) + c <= lim and g != B: break
                g += 1
            val[g].append(x); done += c
        assert g < N - 1, 'valu overflow %d' % g
        o.last_valu_gap = g
    if extra_valu:
        g = 68
        for x in extra_valu:
            if x.startswith('s_'):
                sc[g].append(x); continue
            while cost(g) + 4 > 8 or g == B: g += 1
            val[g].append(x)
            if cost(g) >= 8: g += 1
        assert g < N - 2
    qk = qk_list(o); pv = pv_list(o, cur, first_pv)
    mf = [(qk[sl] if do_qk else None) if sl < 64 else pv[sl - 64] for sl in range(N)]
    for sl in range(N):
        if mf[sl]: p(mf[sl])
        nx = mf[sl + 1] if sl + 1 < N else None
        if nx and o.hoist: p('.need ' + nx)
        if sl == B and next_k:
            left = (1 if pf else 0) + len([1 for g0, _ in extra_mem]) if vm_left is None else vm_left
            p('s_waitcnt vmcnt(%d) lgkmcnt(0)' % left)
            if o.barrier: p('s_barrier')
        for s in sc[sl]: p(s)
        for s in mem[sl]: p(s)
        for s in val[sl]: p(s)
    if o.valu and do_qk:
        p('s_cbranch_vccnz L_rare_%s' % tag)
        p('L_back_%s:' % tag)
    return p

def xlane_max(p, t):
    p('v_mov_b32 v%d, v%d' % (t + 1, t))
    p('s_nop 1')
    p('v_permlane16_swap_b32 v%d, v%d' % (t, t + 1))
    p('s_nop 1')
    p('v_max_f32 v%d, v%d, v%d' % (t, t, t + 1))
    p('v_mov_b32 v%d, v%d' % (t + 1, t))
    p('s_nop 1')
    p('v_permlane32_swap_b32 v%d, v%d' % (t, t + 1))
    p('s_nop 1')
    p('v_max_f32 v%d, v%d, v%d' % (t, t, t + 1))

def max8(p, t, b):
    p('v_max3_f32 v%d, v%d, v%d, v%d' % (t, S(0, b), S(0, b) + 1, S(0, b) + 2))
    p('v_max3_f32 v%d, v%d, v%d, v%d' % (t, t, S(0, b) + 3, S(1, b)))
    p('v_max3_f32 v%d, v%d, v%d, v%d' % (t, t, S(1, b) + 1, S(1, b) + 2))
    p('v_max_f32 v%d, v%d, v%d' % (t, t, S(1, b) + 3))

def fallback(o, par):
    p = Prog()
    nxt = par ^ 1
    p('L_fb_%d:' % par)
    p('s_nop 7'); p('s_nop 7')
    t = TMP
    for b in range(4):
        max8(p, t, b)
        xlane_max(p, t)
        p('v_max_f32 v%d, 0, v%d' % (t, t))
        for r in range(4):
            p('v_sub_f32 v%d, v%d, v%d' % (NEGM + 4 * b + r, NEGM + 4 * b + r, t))
        p('v_sub_f32 v%d, 0, v%d' % (t + 1, t))
        p('v_exp_f32 v%d, v%d' % (t + 1, t + 1))
        p('s_nop 0')
        lo = lreg(o, par, b); ln = lreg(o, nxt, b)
        p('v_mul_f32 v%d, v%d, v%d' % (ln, lo, t + 1))
        if o.summ == 'pk':
            p('v_mul_f32 v%d, v%d, v%d' % (ln + 1, lo + 1, t + 1))
        for dt in range(16):
            for r in range(4):
                a = (dt * 4 + b) * 4 + r
                tt = t + 2 + r
                p('v_accvgpr_read_b32 v%d, a%d' % (tt, a))
                p('v_mul_f32 v%d, v%d, v%d' % (tt, tt, t + 1))
                p('v_accvgpr_write_b32 a%d, v%d' % (a, tt))
        for a in range(2):
            for hp in range(2):
                s = S(a, b) + 2 * hp
                p('v_sub_f32 v%d, v%d, v%d' % (t + 2, s, t))
                p('v_sub_f32 v%d, v%d, v%d' % (t + 3, s + 1, t))
                p('v_exp_f32 v%d, v%d' % (t + 2, t + 2))
                p('v_exp_f32 v%d, v%d' % (t + 3, t + 3))
                p('s_nop 0')
                p('v_add_f32 v%d, v%d, v%d' % (ln, ln, t + 2))
                p('v_add_f32 v%d, v%d, v%d' % (ln, ln, t + 3))
                p('v_cvt_pk_bf16_f32 v%d, v%d, v%d' % (PBUF[nxt] + 4 * b + 2 * a + hp, t + 2, t + 3))
    p('s_nop 3')
    p('s_setpc_b64 s[%d:%d]' % (S_RET, S_RET + 1))
    return p

def build(o):
    p = Prog()
    name = 'attn_kernel'
    p('''
%s:
    s_cmp_ge_u32 s2, 256
    s_cbranch_scc1 L_end
    s_load_dwordx2 s[4:5], s[0:1], 8
    s_load_dwordx2 s[6:7], s[0:1], 16
    s_load_dwordx2 s[24:25], s[0:1], 112
    v_lshrrev_b32 v1, 6, v0
    v_and_b32 v%d, 63, v0
    s_nop 0
    v_readfirstlane_b32 s%d, v1
    s_and_b32 s36, s2, 7          ; g
    s_lshl_b32 s37, s36, 20       ; g * 1MB
    s_waitcnt lgkmcnt(0)
    s_mov_b32 s26, 0x10000000
    s_mov_b32 s27, 0x20000
    s_mov_b32 s%d, 96
''' % (name, VLANE, S_W, S_96))
    p('''
    s_add_u32 s8, s4, s37
    s_addc_u32 s9, s5, 0
    s_sub_u32 s8, s8, 96
    s_subb_u32 s9, s9, 0
    s_mov_b32 s10, %d
    s_mov_b32 s11, 0x20000
    s_add_u32 s12, s8, 4096
    s_addc_u32 s13, s9, 0
    s_mov_b32 s14, %d
    s_mov_b32 s15, 0x20000
    s_add_u32 s16, s6, s37
    s_addc_u32 s17, s7, 0
    s_sub_u32 s16, s16, 96
    s_subb_u32 s17, s17, 0
    s_mov_b32 s18, %d
    s_mov_b32 s19, 0x20000
    s_add_u32 s20, s16, 4096
    s_addc_u32 s21, s17, 0
    s_mov_b32 s22, %d
    s_mov_b32 s23, 0x20000
''' % ((1 << 20) + 96, (1 << 20) + 96 - 4096, (1 << 20) + 96, (1 << 20) + 96 - 4096))
    p('''
    s_lshr_b32 s38, s%d, 1        ; s = key half
    s_and_b32 s39, s%d, 1         ; qh
    s_mul_i32 s40, s38, %d
    s_mul_i32 s41, s39, %d
    s_add_u32 s%d, s40, s41       ; LDS DMA dest base
    s_mov_b32 s%d, 0x%x
    s_lshl_b32 s42, s38, 14
    s_lshl_b32 s43, s39, 13
    s_add_u32 s42, s42, s43
    v_lshlrev_b32 v%d, 4, v%d
    v_add_u32 v%d, s42, v%d
    v_mov_b32 v%d, 0x3f803f80
''' % (S_W, S_W, HALF, 8 * BLK, S_DST, S_THR, o.thr, VOFF, VLANE, VOFF, VOFF, VONE))
    L = VLANE
    p('''
    v_and_b32 v1, 7, v%d
    v_mul_u32_u24 v1, %d, v1
    v_bfe_u32 v2, v%d, 3, 1
    v_lshlrev_b32 v2, 9, v2
    v_add_u32 v1, v1, v2
    v_lshrrev_b32 v2, 4, v%d
    v_lshlrev_b32 v2, 4, v2
    v_add_u32 v1, v1, v2
    v_add_u32 v%d, s40, v1
    v_lshrrev_b32 v1, 2, v%d         ; mv = lane>>2 (=4G+r)
    v_and_b32 v2, 7, v1
    v_mul_u32_u24 v2, %d, v2
    v_lshrrev_b32 v1, 3, v1
    v_lshlrev_b32 v1, 9, v1
    v_add_u32 v1, v1, v2
    v_and_b32 v2, 3, v%d
    v_lshlrev_b32 v2, 3, v2
    v_add_u32 v1, v1, v2
    v_add_u32 v1, s40, v1
    v_add_u32 v%d, %d, v1
''' % (L, BLK, L, L, VK, L, BLK, L, VV, VBASE))
    for s in dma(o, 0, 0, nop=True): p(s)
    p('v_add_u32 v%d, 0x8000, v%d' % (VOFF, VOFF))
    p('s_nop 0')
    for s in dma(o, 1, 0, True, False, nop=True): p(s)
    p('''
    s_add_u32 s8, s8, 0x8000
    s_addc_u32 s9, s9, 0
    s_sub_u32 s10, s10, 0x8000
    s_add_u32 s12, s12, 0x8000
    s_addc_u32 s13, s13, 0
    s_sub_u32 s14, s14, 0x8000
''')
    p('''
    s_lshl_b32 s44, s2, 1
    s_add_u32 s44, s44, s39
    s_lshl_b32 s44, s44, 15          ; *32 frags*1024 B
    v_lshlrev_b32 v254, 4, v%d
    v_add_u32 v254, s44, v254
''' % L)
    for n in range(32):
        if n % 4 == 0 and n:
            p('v_add_u32 v254, 0x1000, v254')
        p('buffer_load_dwordx4 %s, v254, s[24:27], 0 offen offset:%d' % (vr(4 * n, 4), (n % 4) * 1024))
    p('s_waitcnt vmcnt(0)')
    p('s_barrier')
    q = Prog()
    qk = qk_list(o, czero=True)
    for n in range(2):
        for s in kread(o, n, 0): q(s)
    for sl in range(64):
        if sl % 8 == 0 and sl // 8 + 1 < 8:
            for s in kread(o, 2 * (sl // 8 + 1), 0) + kread(o, 2 * (sl // 8 + 1) + 1, 0): q(s)
        q(qk[sl])
    w, _ = insert_waits(q.ins)
    p.extend(w)
    p('s_nop 7'); p('s_nop 7')
    t = TMP
    for b in range(4):
        max8(p, t, b)
        xlane_max(p, t)
        for r in range(4):
            p('v_sub_f32 v%d, 0, v%d' % (NEGM + 4 * b + r, t))
        for a in range(2):
            for r in range(4):
                p('v_sub_f32 v%d, v%d, v%d' % (S(a, b) + r, S(a, b) + r, t))
    for i in range(8):
        p('v_mov_b32 v%d, 0' % (LREG[1] + i))
    for s in exps(o, 0, 0, 1, 0): p(s)
    for s in exps(o, 1, 0, 1, 0): p(s)
    for r in range(256):
        p('v_accvgpr_write_b32 a%d, 0' % r)
    p('s_waitcnt vmcnt(0) lgkmcnt(0)')
    p('s_barrier')
    for n in range(2):
        for s in kread(o, n, 1): p(s)
    p('s_waitcnt lgkmcnt(0)')
    p('s_memtime s[46:47]')
    p('s_memrealtime s[48:49]')
    p('s_waitcnt lgkmcnt(0)')
    p('s_mov_b32 s%d, %d' % (S_CNT, (o.nit - 2) // 2))
    p('.p2align 6')
    p('L_loop:')
    body = Prog()
    body.extend(iteration(o, 0, 'a'))
    body.extend(iteration(o, 1, 'b'))
    _, st = insert_waits(body.ins)
    w, st2 = insert_waits(body.ins, st)
    assert st2 == st, 'not steady'
    loop_ins = w
    p.extend(w)
    p('s_sub_u32 s%d, s%d, 1' % (S_CNT, S_CNT))
    p('s_cmp_lg_u32 s%d, 0' % S_CNT)
    p('s_cbranch_scc1 L_loop')
    tail = Prog()
    tail.extend(iteration(o, 0, 'c', do_dma_k=False, next_k=False))
    tail('s_waitcnt vmcnt(0) lgkmcnt(0)')
    tail('s_barrier')
    tail.extend(iteration(o, 1, 'd', do_qk=False, do_dma_k=False, do_dma_v=False, next_k=False))
    w, _ = insert_waits(tail.ins, st)
    tail_ins = w
    p.extend(w)
    p('s_nop 7'); p('s_nop 7')
    p('s_memtime s[50:51]')
    p('s_memrealtime s[52:53]')
    p('s_waitcnt lgkmcnt(0)')
    p('''
    s_lshl_b32 s44, s2, 18
    s_lshl_b32 s45, s%d, 16
    s_add_u32 s44, s44, s45
    s_add_u32 s44, s44, 0x2000000
    v_lshlrev_b32 v1, 4, v%d
    v_add_u32 v1, s44, v1
''' % (S_W, L))
    for r4 in range(64):
        if r4 % 4 == 0 and r4:
            p('v_add_u32 v1, 0x1000, v1')
        p('buffer_store_dwordx4 %s, v1, s[24:27], 0 offen offset:%d' % (ar(4 * r4, 4), (r4 % 4) * 1024))
    p('''
    s_lshl_b32 s44, s2, 2
    s_add_u32 s44, s44, s%d
    s_lshl_b32 s44, s44, 11
    s_add_u32 s44, s44, 0x8000000
    v_lshlrev_b32 v1, 2, v%d
    v_add_u32 v1, s44, v1
''' % (S_W, L))
    for b in range(4):
        p('buffer_store_dword v%d, v1, s[24:27], 0 offen offset:%d' % (NEGM + 4 * b, 256 * b))
        lr = lreg(o, 1, b)
        if o.summ == 'pk':
            p('v_add_f32 v%d, v%d, v%d' % (lr, lr, lr + 1))
        p('buffer_store_dword v%d, v1, s[24:27], 0 offen offset:%d' % (lr, 1024 + 256 * b))
    p('''
    s_lshl_b32 s44, s2, 2
    s_add_u32 s44, s44, s%d
    s_lshl_b32 s44, s44, 5
    s_add_u32 s44, s44, 0xa000000
    s_sub_u32 s50, s50, s46
    s_subb_u32 s51, s51, s47
    s_sub_u32 s52, s52, s48
    s_subb_u32 s53, s53, s49
    s_getreg_b32 s54, hwreg(HW_REG_XCC_ID)
    v_mov_b32 v2, s50
    v_mov_b32 v3, s52
    v_mov_b32 v4, s54
    v_mov_b32 v5, s48
    v_mov_b32 v1, s44
    v_cmp_eq_u32 vcc, 0, v%d
    s_and_saveexec_b64 s[56:57], vcc
    s_cbranch_execz L_nostamp
    buffer_store_dwordx4 v[2:5], v1, s[24:27], 0 offen
L_nostamp:
    s_mov_b64 exec, s[56:57]
''' % (S_W, L))
    p('s_waitcnt vmcnt(0)')
    p('L_end:')
    p('s_endpgm')
    if o.valu:
        for tag, par in (('a', 0), ('b', 1), ('c', 0)):
            p('L_rare_%s:' % tag)
            p('s_call_b64 s[%d:%d], L_fb_%d' % (S_RET, S_RET + 1, par))
            p('s_branch L_back_%s' % tag)
        p.extend(fallback(o, 0))
        p.extend(fallback(o, 1))
    probs = check_hazards(loop_ins + loop_ins, 'loop') + check_hazards(loop_ins + tail_ins, 'tail') + check_hazards(p.ins, 'all')
    hdr = '''; @launch grid=(256,1,1) block=(256,1,1) lds=%d
.amdgcn_target "amdgcn-amd-amdhsa--gfx950"
.text
.globl attn_kernel
.p2align 8
.type attn_kernel,@function
''' % (4 * KBUF)
    ftr = '''
.section .rodata,"a"
.p2align 6
.amdhsa_kernel attn_kernel
  .amdhsa_next_free_vgpr 512
  .amdhsa_next_free_sgpr 96
  .amdhsa_accum_offset 256
  .amdhsa_group_segment_fixed_size 0
  .amdhsa_kernarg_size 120
  .amdhsa_user_sgpr_count 2
  .amdhsa_user_sgpr_kernarg_segment_ptr 1
  .amdhsa_system_sgpr_workgroup_id_x 1
  .amdhsa_float_denorm_mode_32 3
.end_amdhsa_kernel
'''
    return hdr + p.text() + ftr, probs, loop_ins

if __name__ == '__main__':
    o = Opt()
    out = sys.argv[1]
    for kv in sys.argv[2:]:
        k, v = kv.split('=')
        try: v = int(v, 0)
        except ValueError:
            if v.startswith('['): v = eval(v)
        setattr(o, k, v)
    txt, probs, loop = build(o)
    for pr in probs[:12]: print(pr)
    n = sum(1 for i in loop if i.kind not in ('label', 'dir'))
    print(out, 'hazards:', len(probs), 'loop instrs', n, 'bytes', sum(size_of(i) for i in loop))
    open(out, 'w').write(txt)
```

```python
from asmlib import *
import gen_attn2 as A
from gen_attn2 import (vr, ar, BLK, HALF, KBUF, VBASE, SREG, PBUF, NEGM, FR, VK, VV, VOFF, LREG, TMP, VLANE,
                       S_K0, S_K1, S_V0, S_V1, S_DST, S_THR, S_RET, S_CNT, S_W, S_96, S, frag, kread, vread, qk_list, exps, dma,
                       max8, lreg)

WS_MOD = 0
WS_R = 0x4000
WS_IDX = 0x8000
WS_ACT = 0x10000
WS_H2 = 0x100000
WS_PART = 0x400000
WS_STAMP = 0xa000000

H_OFF = 0
MV_OFF = 57344
QSLOT = [98304, 131072, 65536, 32768]
QX = 67584
XR = 0
ST = 131072
WO0 = 135168

S_G, S_QB, S_S, S_QH = 36, 37, 38, 39
S_X = 40
S_WQ = 44
S_WO = 48
S_SO = 52
S_T0, S_T1, S_T2, S_T3 = 60, 61, 62, 63
S_QD = 64
S_QD2 = 32
S_WST = 65
S_PART = 68
S_STAMP = 72

class VmTracker:
    def __init__(self): self.ops = []
    def add(self, tag): self.ops.append(tag)
    def wait(self, tag):
        idx = max(i for i, t in enumerate(self.ops) if t == tag)
        n = len(self.ops) - 1 - idx
        assert n <= 63
        return 's_waitcnt vmcnt(%d)' % n

STAMPS = {1: ['start', 'ln_done', 'qproj', 'qexch', 'attnpro', 'loop', 'oproj', 'end'],
          2: ['start', 'xwait', 'stats', 'modbar', 'hbar', 'ln_done', 'qproj', 'end'],
          4: ['start', 'p_w', 'p_bar', 'p_st', 'stats', 'poll_done', 'modbar', 'end'],
          3: ['start', 'loop', 'e1bar', 'comb', 'e3bar', 'oproj', 'stores', 'end']}
def stamp(p, o, name):
    if o.stamps and name in STAMPS[o.stamps]:
        k = STAMPS[o.stamps].index(name)
        p('s_memrealtime s[%d:%d]' % (S_STAMP + 2 * k, S_STAMP + 2 * k + 1))
        if name in ('xwait', 'stats', 'modbar', 'hbar', 'e1bar', 'comb', 'e3bar', 'p_w', 'p_bar', 'p_st', 'poll_done'): p('s_waitcnt lgkmcnt(0)')

def xreduce(p, r, t, op='v_add_f32'):
    p('v_mov_b32 v%d, v%d' % (t, r))
    p('s_nop 1')
    p('v_permlane16_swap_b32 v%d, v%d' % (r, t))
    p('s_nop 1')
    p('%s v%d, v%d, v%d' % (op, r, r, t))
    p('v_mov_b32 v%d, v%d' % (t, r))
    p('s_nop 1')
    p('v_permlane32_swap_b32 v%d, v%d' % (r, t))
    p('s_nop 1')
    p('%s v%d, v%d, v%d' % (op, r, r, t))

def wq_dma(step, vm, VQ):
    out = []
    slot = QSLOT[step % 4]
    for jj in range(8):
        if jj % 4 == 0:
            out.append('s_add_u32 m0, s%d, %d' % (S_QD2, slot + jj * 1024))
        out.append(('buffer_load_dwordx4 v%d, s[%d:%d], s%d offen offset:%d lds' % (VQ[(jj >> 1) & 1], S_WQ, S_WQ + 3, S_SO + jj, (jj & 3) * 1024), 'wq%d' % step))
    return out

def emit_dma(p, lst, vm, nop=True):
    for s in lst:
        if isinstance(s, tuple):
            p(s[0]); vm.add(s[1])
        else:
            p(s)
            if nop and s.startswith('s_') and 'm0' in s: p('s_nop 0')

def mod_producer(o, p):
    C0, W0, HI, ACC, TT = 60, 76, 132, 148, 156
    for i in range(14): p('v_lshlrev_b32 v%d, 16, v%d' % (C0 + i, C0 + i))
    for i in range(14): p('v_mul_f32 v%d, 0xbfb8aa3b, v%d' % (HI + i, C0 + i))
    for i in range(14): p('v_exp_f32 v%d, v%d' % (HI + i, HI + i))
    for i in range(14): p('v_add_f32 v%d, 1.0, v%d' % (HI + i, HI + i))
    for i in range(14): p('v_rcp_f32 v%d, v%d' % (HI + i, HI + i))
    for i in range(14): p('v_mul_f32 v%d, v%d, v%d' % (C0 + i, C0 + i, HI + i))
    for i in range(14): p('v_cvt_pk_bf16_f32 v%d, v%d, 0' % (C0 + i, C0 + i))
    for i in range(14): p('v_lshlrev_b32 v%d, 16, v%d' % (HI + i, C0 + i))
    for j in range(8): p('v_mov_b32 v%d, 0' % (ACC + j))
    p('s_waitcnt vmcnt(14)')
    stamp(p, o, 'p_w')
    for i in range(14):
        for j in range(8):
            w = W0 + 4 * i + j // 2
            sel = (C0 + i) if j % 2 == 0 else (HI + i)
            p('v_dot2_f32_bf16 v%d, v%d, v%d, v%d' % (ACC + j, w, sel, ACC + j))
    p('s_nop 2')
    regs = [ACC + j for j in range(8)]; temps = [TT + j for j in range(8)]
    for r in regs:
        p('v_add_f32_dpp v%d, v%d, v%d row_ror:8 row_mask:0xf bank_mask:0xf' % (r, r, r))
    for sw in ('v_permlane16_swap_b32', 'v_permlane32_swap_b32'):
        for r, t in zip(regs, temps): p('v_mov_b32 v%d, v%d' % (t, r))
        p('s_nop 1')
        for r, t in zip(regs, temps): p('%s v%d, v%d' % (sw, r, t))
        p('s_nop 1')
        for r, t in zip(regs, temps): p('v_add_f32 v%d, v%d, v%d' % (r, r, t))
    p("""
    v_and_b32 v164, 7, v%d
    s_lshl_b32 s60, s%d, 8
    v_lshlrev_b32 v164, 5, v164
    v_add_u32 v164, s60, v164
    ds_write_b128 v164, v[148:151] offset:%d
    ds_write_b128 v164, v[152:155] offset:%d
    s_waitcnt lgkmcnt(0)
    s_barrier
    ;STAMP p_bar
    s_cmp_lg_u32 s%d, 0
    s_cbranch_scc1 L_prod_done
    v_lshlrev_b32 v164, 2, v%d
    ds_read_b32 v165, v164 offset:%d
    ds_read_b32 v166, v164 offset:%d
    ds_read_b32 v167, v164 offset:%d
    ds_read_b32 v168, v164 offset:%d
    s_mul_i32 s60, s2, 37
    s_lshr_b32 s60, s60, 8          ; segment = wg / 7
    s_waitcnt lgkmcnt(0)
    v_add_f32 v165, v165, v166
    v_add_f32 v167, v167, v168
    v_add_f32 v165, v165, v167
    v_cvt_pk_bf16_f32 v165, v165, 0
    v_lshlrev_b32 v165, 16, v165
    s_cmp_eq_u32 s60, 1
    s_cselect_b32 s61, 1, 0
    s_cmp_eq_u32 s60, 4
    s_cselect_b32 s61, 1, s61
    s_cmp_eq_u32 s61, 0
    s_cbranch_scc1 L_prod_noone
    v_add_f32 v165, 1.0, v165
    v_cvt_pk_bf16_f32 v165, v165, 0
    v_lshlrev_b32 v165, 16, v165
L_prod_noone:
    s_cmp_lt_u32 s60, 2
    s_cbranch_scc0 L_prod_noscale
    v_mul_f32 v165, 0x3db8aa3b, v165      ; fold log2(e)/16 of the attention scores into sa and (1+ca)
L_prod_noscale:
    s_lshl_b32 s61, s2, 8
    v_add_u32 v164, s61, v164
    buffer_store_dword v165, v164, s[24:27], 0 offen sc1
    s_waitcnt vmcnt(0)
    ;STAMP p_st
    s_cmp_lt_u32 s60, 2
    s_cbranch_scc0 L_prod_done
    v_mov_b32 v165, 1
    v_mov_b32 v164, 0
    v_cmp_eq_u32 vcc, 0, v%d
    s_and_saveexec_b64 s[62:63], vcc
    buffer_atomic_add v165, v164, s[88:91], 0 offen sc0 sc1
    s_waitcnt vmcnt(0)
    v_readfirstlane_b32 s60, v165
    s_cmp_eq_u32 s60, 13
    s_cbranch_scc0 L_prod_notlast
    v_mov_b32 v165, 1
    buffer_store_dword v165, v164, s[88:91], 0 offen offset:128 sc1
L_prod_notlast:
    s_mov_b64 exec, s[62:63]
L_prod_done:
""" % (VLANE, S_W, MV_OFF + 4096, MV_OFF + 4096 + 16, S_W, VLANE, MV_OFF + 4096, MV_OFF + 4096 + 256, MV_OFF + 4096 + 512, MV_OFF + 4096 + 768, VLANE))

def prologue(o):
    p = Prog()
    L = VLANE
    vm = VmTracker()
    p("""
    s_cmp_ge_u32 s2, 256
    s_cbranch_scc1 L_end_k1
    s_load_dwordx2 s[40:41], s[0:1], 0
    s_load_dwordx4 s[4:7], s[0:1], 8
    s_load_dwordx4 s[44:47], s[0:1], 24
    s_load_dwordx4 s[64:67], s[0:1], 80
    s_load_dwordx4 s[88:91], s[0:1], 104
    s_load_dwordx4 s[96:99], s[0:1], 56
    s_load_dwordx2 s[100:101], s[0:1], 72
    v_lshrrev_b32 v1, 6, v0
    v_and_b32 v%d, 63, v0
    s_nop 0
    v_readfirstlane_b32 s%d, v1
    ;MAP
    s_lshr_b32 s%d, s%d, 1        ; s (key half)
    s_and_b32 s%d, s%d, 1         ; qh
""" % (L, S_W, S_S, S_W, S_QH, S_W))
    idx = [k for k, i in enumerate(p.ins) if i.text.startswith(';MAP')][0]
    if getattr(o, 'scramble', 0):
        p.ins[idx:idx + 1] = [I('s_lshr_b32 s%d, s2, 5' % S_G), I('s_and_b32 s%d, s2, 31' % S_QB)]
    else:
        p.ins[idx:idx + 1] = [I('s_and_b32 s%d, s2, 7' % S_G), I('s_lshr_b32 s%d, s2, 3' % S_QB)]
    if o.stamps:
        p('s_memrealtime s[%d:%d]' % (S_STAMP, S_STAMP + 1))
    p("""
    v_and_b32 v200, 15, v%d           ; n
    v_lshrrev_b32 v201, 4, v%d        ; kq
    s_lshl_b32 s60, s%d, 4
    v_add_u32 v202, s60, v200
    v_mul_u32_u24 v202, 896, v202
    v_lshl_add_u32 v202, v201, 4, v202
    s_mul_i32 s60, s%d, 57344
    s_waitcnt lgkmcnt(0)
    s_mov_b32 s24, s90
    s_mov_b32 s25, s91
    s_mov_b32 s26, 0x10000000
    s_mov_b32 s27, 0x20000
    s_mov_b32 s90, 256
    s_mov_b32 s91, 0x20000
    s_add_u32 s40, s40, s60
    s_addc_u32 s41, s41, 0
    s_mov_b32 s42, 57344
    s_mov_b32 s43, 0x20000
""" % (L, L, S_W, S_QB))
    p("""
    s_cmp_ge_u32 s2, 42
    s_cbranch_scc1 L_noprod_a
    s_mov_b32 s68, s64
    s_mov_b32 s69, s65
    s_mov_b32 s70, 896
    s_mov_b32 s71, 0x20000
    s_mov_b32 s64, s66
    s_mov_b32 s65, s67
    s_mov_b32 s66, %d
    s_mov_b32 s67, 0x20000
    v_and_b32 v206, 7, v0
    v_lshrrev_b32 v207, 3, v0
    v_mul_u32_u24 v208, 5376, v207
    v_lshl_add_u32 v208, v206, 4, v208
    s_lshl_b32 s60, s2, 7
    v_add_u32 v208, s60, v208
    v_lshlrev_b32 v209, 1, v207
""" % (448 * 5376))
    for i in range(14):
        p('buffer_load_ushort v%d, v209, s[68:71], 0 offen offset:%d' % (60 + i, 64 * i))
    p('s_mov_b32 s60, %d' % (32 * 5376))
    for i in range(14):
        p('buffer_load_dwordx4 %s, v208, s[64:67], 0 offen' % vr(76 + 4 * i, 4))
        if i < 13: p('v_add_u32 v208, s60, v208')
    p('L_noprod_a:')
    for ks in range(14):
        p('buffer_load_dwordx4 %s, v202, s[40:43], 0 offen offset:%d' % (vr(4 * ks, 4), ks * 64)); vm.add('x')
    p("""
    s_cmp_ge_u32 s2, 42
    s_cbranch_scc1 L_noprod_b
    s_waitcnt vmcnt(28)
""")
    mod_producer(o, p)
    p('L_noprod_b:')
    p("""
    s_mov_b32 s48, s46
    s_mov_b32 s49, s47
    s_mul_i32 s60, s%d, 458752
    s_add_u32 s48, s48, s60
    s_addc_u32 s49, s49, 0
    s_mov_b32 s50, 458752
    s_mov_b32 s51, 0x20000
    s_lshl_b32 s60, s%d, 10
    s_add_u32 s44, s44, s60
    s_addc_u32 s45, s45, 0
    s_sub_u32 s46, 3670016, s60
    s_mov_b32 s47, 0x20000
""" % (S_G, S_G))
    if o.pf:
        D = o.pfd
        p("""
    s_lshl_b32 s60, s%d, 20
    s_cmp_lt_u32 s%d, 16
    s_cselect_b32 s92, s4, s6
    s_cselect_b32 s93, s5, s7
    s_add_u32 s92, s92, s60
    s_addc_u32 s93, s93, 0
    s_mov_b32 s94, 0x100000
    s_mov_b32 s95, 0x20000
    s_and_b32 s60, s%d, 15
    s_lshl_b32 s60, s60, 4
    s_lshl_b32 s61, s%d, 2
    s_add_u32 s60, s60, s61            ; line0 = (qb&15)*16 + w*4
    v_and_b32 v206, 3, v%d
    v_add_u32 v206, s60, v206
    v_lshlrev_b32 v206, 7, v206        ; line*128
    v_lshrrev_b32 v207, 2, v%d         ; tile = lane>>2
    v_lshl_add_u32 v207, v207, 15, v206
    v_mov_b32 v208, 0x40000000
    v_cmp_gt_u32 vcc, %d, v%d
    s_nop 1
    v_cndmask_b32 v207, v208, v207, vcc
    v_cmp_gt_u32 vcc, 4, v%d
    v_add_u32 v206, %d, v206
    s_nop 0
    v_cndmask_b32 v%d, v208, v206, vcc
""" % (S_G, S_QB, S_QB, S_W, L, L, 4 * D, L, L, D * 32768, A.VPFA))
        p("""
    s_mul_i32 s60, s%d, 112
    s_mul_i32 s61, s%d, 28
    s_add_u32 s60, s60, s61
    v_add_u32 v206, s60, v%d
    v_lshrrev_b32 v209, 3, v206
    v_lshlrev_b32 v209, 13, v209
    v_and_b32 v210, 7, v206
    v_lshl_add_u32 v209, v210, 7, v209
    v_lshlrev_b32 v206, 7, v206        ; wo prefetch offset = L*128
    v_cmp_gt_u32 vcc, 28, v%d
    s_nop 1
    v_cndmask_b32 v209, v208, v209, vcc
    v_cndmask_b32 v242, v208, v206, vcc
    v_mov_b32 v240, v209
    v_mov_b32 v241, v207
""" % (S_QB, S_W, L, L))
        p("""
    s_mul_i32 s60, s2, 49
    s_mul_i32 s61, s%d, 13
    s_add_u32 s60, s60, s61
    v_add_u32 v206, s60, v%d
    v_min_u32 v206, 12543, v206
    v_lshlrev_b32 v243, 7, v206
""" % (S_W, L))
    VQ = (204, 205)
    p("""
    v_lshlrev_b32 v206, 1, v201       ; 2*rr
    v_xor_b32 v206, v206, v200        ; slot ^ 2rr
    v_lshlrev_b32 v206, 4, v206
    v_lshl_add_u32 v206, v201, 13, v206
    s_lshl_b32 s60, s%d, 8
    v_add_u32 v204, s60, v206
    v_xor_b32 v205, 0x80, v204
    s_lshl_b32 s%d, s%d, 13
""" % (S_W, S_QD2, S_W))
    for jj in range(8):
        p('s_mov_b32 s%d, %d' % (S_SO + jj, jj * 32768 - (jj & 3) * 1024))
    p("""
    s_lshl_b32 s60, s%d, 20
    s_add_u32 s8, s4, s60
    s_addc_u32 s9, s5, 0
    s_sub_u32 s8, s8, 96
    s_subb_u32 s9, s9, 0
    s_mov_b32 s10, %d
    s_mov_b32 s11, 0x20000
    s_add_u32 s12, s8, 4096
    s_addc_u32 s13, s9, 0
    s_mov_b32 s14, %d
    s_mov_b32 s15, 0x20000
    s_add_u32 s16, s6, s60
    s_addc_u32 s17, s7, 0
    s_sub_u32 s16, s16, 96
    s_subb_u32 s17, s17, 0
    s_mov_b32 s18, %d
    s_mov_b32 s19, 0x20000
    s_add_u32 s20, s16, 4096
    s_addc_u32 s21, s17, 0
    s_mov_b32 s22, %d
    s_mov_b32 s23, 0x20000
    s_mov_b32 s%d, 96
    s_mul_i32 s61, s%d, %d
    s_mul_i32 s62, s%d, %d
    s_add_u32 s%d, s61, s62       ; LDS DMA dest base for K/V
    s_mov_b32 s%d, 0x%x
""" % (S_G, (1 << 20) + 96, (1 << 20) + 96 - 4096, (1 << 20) + 96, (1 << 20) + 96 - 4096, S_96, S_S, HALF, S_QH, 8 * BLK, S_DST, S_THR, o.thr))
    XC = 56
    ONE = 210; SELLO = 211; SELHI = 212; ACC = 214
    p('v_mov_b32 v%d, 0x3f803f80' % ONE)
    p('v_mov_b32 v%d, 0x00003f80' % SELLO)
    p('v_mov_b32 v%d, 0x3f800000' % SELHI)
    for i in range(4): p('v_mov_b32 v%d, 0' % (ACC + i))
    p(vm.wait('x'))
    stamp(p, o, 'xwait')
    if o.pf:
        p('buffer_load_dword v253, v240, s[44:47], 0 offen'); vm.add('pf')
    dmas = []
    for st in range(3):
        dmas += wq_dma(st, vm, VQ)
        dmas += ['v_add_u32 v204, 0x40000, v204', 'v_add_u32 v205, 0x40000, v205']
    valu = []
    for i in range(56):
        valu.append('v_dot2_f32_bf16 v%d, v%d, v%d, v%d' % (ACC + i % 4, i, ONE, ACC + i % 4))
    r = Prog()
    r('s_nop 2')
    r('v_add_f32 v%d, v%d, v%d' % (ACC, ACC, ACC + 1))
    r('v_add_f32 v%d, v%d, v%d' % (ACC + 2, ACC + 2, ACC + 3))
    r('v_add_f32 v%d, v%d, v%d' % (ACC, ACC, ACC + 2))
    xreduce(r, ACC, ACC + 1)
    r('v_mul_f32 v%d, 0x%x, v%d' % (ACC, 0xbb124925, ACC))
    valu.append([i.text for i in r.ins])
    for i in range(56):
        valu.append('v_dot2_f32_bf16 v%d, v%d, v%d, v%d' % (XC + 2 * i, i, SELLO, ACC))
        valu.append('v_dot2_f32_bf16 v%d, v%d, v%d, v%d' % (XC + 2 * i + 1, i, SELHI, ACC))
    V2 = 216
    valu.append(['v_mov_b32 v%d, 0' % (V2 + i) for i in range(4)])
    for i in range(56):
        a_ = V2 + 2 * (i % 2)
        valu.append('v_pk_fma_f32 %s, %s, %s, %s' % (vr(a_, 2), vr(XC + 2 * i, 2), vr(XC + 2 * i, 2), vr(a_, 2)))
    di = 0
    for k, v in enumerate(valu):
        if isinstance(v, list):
            for x in v: p(x)
        else: p(v)
        if k % 6 == 5 and di < len(dmas):
            while di < len(dmas):
                d = dmas[di]; di += 1
                if isinstance(d, tuple):
                    p(d[0]); vm.add(d[1]); break
                p(d)
                if 'm0' in d:
                    p('s_nop 0')
    while di < len(dmas):
        d = dmas[di]; di += 1
        if isinstance(d, tuple): p(d[0]); vm.add(d[1])
        else:
            p(d)
            if 'm0' in d: p('s_nop 0')
    p('v_add_f32 v%d, v%d, v%d' % (V2, V2, V2 + 1))
    p('v_add_f32 v%d, v%d, v%d' % (V2 + 2, V2 + 2, V2 + 3))
    p('v_add_f32 v%d, v%d, v%d' % (V2, V2, V2 + 2))
    xreduce(p, V2, V2 + 1)
    p('v_mov_b32 v%d, 0x3727c5ac' % (V2 + 1))
    p('v_fmac_f32 v%d, 0x3b124925, v%d' % (V2 + 1, V2))
    p('v_rsq_f32 v%d, v%d' % (V2, V2 + 1))
    p('s_nop 0')
    p('v_mov_b32 v%d, v%d' % (V2 + 1, V2))
    if o.pf and o.pf_kv_early:
        p('buffer_load_dword v254, v241, s[92:95], 0 offen'); vm.add('pf')
    stamp(p, o, 'stats')
    p("""
    s_cmp_lg_u32 s%d, 0
    s_cbranch_scc1 L_modwait_done
    v_mov_b32 v206, 0
L_poll:
    buffer_load_dword v207, v206, s[88:91], 0 offen offset:128 sc1
    s_waitcnt vmcnt(0)
    v_readfirstlane_b32 s60, v207
    s_cmp_eq_u32 s60, 1
    s_cbranch_scc1 L_poll_done
    s_sleep 8
    s_branch L_poll
L_poll_done:
    ;STAMP poll_done
    v_lshlrev_b32 v206, 4, v%d
    buffer_load_dwordx4 v[168:171], v206, s[24:27], 0 offen sc1
    buffer_load_dwordx4 v[172:175], v206, s[24:27], 0 offen offset:1024 sc1
    buffer_load_dwordx4 v[176:179], v206, s[24:27], 0 offen offset:2048 sc1
    buffer_load_dwordx4 v[180:183], v206, s[24:27], 0 offen offset:3072 sc1
    s_waitcnt vmcnt(0)
    ds_write_b128 v206, v[168:171] offset:%d
    ds_write_b128 v206, v[172:175] offset:%d
    ds_write_b128 v206, v[176:179] offset:%d
    ds_write_b128 v206, v[180:183] offset:%d
    s_waitcnt lgkmcnt(0)
L_modwait_done:
    s_barrier
""" % (S_W, L, MV_OFF, MV_OFF + 1024, MV_OFF + 2048, MV_OFF + 3072))
    stamp(p, o, 'modbar')
    if o.pf and not o.pf_kv_early:
        p('buffer_load_dword v254, v241, s[92:95], 0 offen'); vm.add('pf')
    MVA = 222; HA = 223
    p('v_lshlrev_b32 v%d, 5, v201' % MVA)
    p('v_add_u32 v%d, %d, v%d' % (MVA, MV_OFF, MVA))
    p('s_mul_i32 s60, s%d, 14336' % S_W)
    p('v_lshlrev_b32 v%d, 4, v%d' % (HA, L))
    p('v_add_u32 v%d, s60, v%d' % (HA, HA))
    q = Prog()
    TA = [16, 32, 168, 184]
    def mvread(ks):
        t = TA[ks % 4]
        q('ds_read_b128 %s, v%d offset:%d' % (vr(t, 4), MVA, ks * 128))
        q('ds_read_b128 %s, v%d offset:%d' % (vr(t + 4, 4), MVA, ks * 128 + 16))
        q('ds_read_b128 %s, v%d offset:%d' % (vr(t + 8, 4), MVA, 1792 + ks * 128))
        q('ds_read_b128 %s, v%d offset:%d' % (vr(t + 12, 4), MVA, 1792 + ks * 128 + 16))
    for ks in range(3): mvread(ks)
    for ks in range(14):
        if ks + 3 < 14: mvread(ks + 3)
        t = TA[ks % 4]
        for j in range(4):
            q('v_pk_mul_f32 %s, %s, %s' % (vr(t + 8 + 2 * j, 2), vr(t + 8 + 2 * j, 2), vr(V2, 2)))
        for j in range(4):
            q('v_pk_fma_f32 %s, %s, %s, %s' % (vr(t + 2 * j, 2), vr(XC + 8 * ks + 2 * j, 2), vr(t + 8 + 2 * j, 2), vr(t + 2 * j, 2)))
        hr = 4 * (ks % 4)
        for j in range(4):
            q('v_cvt_pk_bf16_f32 v%d, v%d, v%d' % (hr + j, t + 2 * j, t + 2 * j + 1))
        q('ds_write_b128 v%d, %s offset:%d' % (HA, vr(hr, 4), H_OFF + ks * 1024))
    w, _ = insert_waits(q.ins)
    p.extend(w)
    p('s_waitcnt lgkmcnt(0)')
    p('s_barrier')
    stamp(p, o, 'hbar')
    p('v_lshlrev_b32 v%d, 4, v%d' % (HA, L))
    for st in range(14):
        for qt in range(4):
            f = qt * 14 + st
            p('ds_read_b128 %s, v%d offset:%d' % (ar(4 * f, 4), HA, H_OFF + f * 1024))
    VA = 232
    p("""
    v_bfe_u32 v206, v%d, 2, 2          ; r
    v_and_b32 v207, 1, v201            ; kq&1
    v_lshl_add_u32 v207, v207, 2, v206 ; f = r + 4*(kq&1)
    v_lshlrev_b32 v208, 11, v201       ; 2*kq*1024
    v_lshl_add_u32 v208, v206, 8, v208 ; + r*256
    v_and_b32 v209, 3, v%d             ; c
    v_lshl_add_u32 v208, v209, 3, v208 ; + c*8
    v_add_u32 v208, s%d, v208          ; + w*8192
""" % (L, L, S_QD2))
    for T in range(8):
        p('v_xor_b32 v209, %d, v207' % T)
        p('v_lshl_add_u32 v%d, v209, 5, v208' % (VA + T))
    p('s_waitcnt lgkmcnt(0)')
    p('s_barrier')
    stamp(p, o, 'ln_done')
    return p, vm, VQ, VA

def qproj(o, vm, VQ, VA):
    p = Prog()
    N = 14 * 32
    sc = [[] for _ in range(N)]; mem = [[] for _ in range(N)]; val = [[] for _ in range(N)]
    def aread(n):
        st, T = n // 8, n % 8
        r = FR + 4 * (n % 4)
        off = QSLOT[st % 4]
        return st, T, r, off
    reads = []
    for n in range(14 * 8):
        st, T, r, off = aread(n)
        reads.append(['ds_read_b64_tr_b16 %s, v%d offset:%d' % (vr(r, 2), VA + T, 0),
                      'ds_read_b64_tr_b16 %s, v%d offset:%d' % (vr(r + 2, 2), VA + T, 1024)])
    pre = Prog()
    for T in range(8):
        pre('v_add_u32 v%d, %d, v%d' % (VA + T, QSLOT[0], VA + T))
    pre(vm.wait('wq0'))
    for n in range(3):
        for s in reads[n]: pre(s)
    for n in range(14 * 8):
        st, T = n // 8, n % 8
        g = 4 * (n - 3)
        if n >= 3:
            mem[g] += reads[n]
        if st + 1 < 14:
            d = QSLOT[(st + 1) % 4] - QSLOT[st % 4]
            upd = 'v_add_u32 v%d, %s, v%d' % (VA + T, ('0x%x' % (d & 0xffffffff)), VA + T)
            if n >= 3: val[g + 1].append(upd)
            else: val[n + 1].append(upd)
    for st in range(14):
        base = st * 32
        lst = None
        if st <= 10:
            lst = wq_dma(st + 3, vm, VQ)
            post = ['v_add_u32 v%d, 0x40000, v%d' % (VQ[0], VQ[0]), 'v_add_u32 v%d, 0x40000, v%d' % (VQ[1], VQ[1])]
        elif st >= 12:
            lst = [(s if s.startswith('s_') else (s, 'k%d' % (st - 12))) for s in dma(o, st - 12, 0, True, False)]
            post = ['v_add_u32 v%d, 0x8000, v%d' % (VOFF, VOFF)]
        if lst:
            gi = 0
            gaps = [base + 2 + 4 * i for i in range(8)]
            for s in lst:
                if isinstance(s, tuple):
                    mem[gaps[gi]].append(s); gi += 1
                else:
                    sc[gaps[gi] - 1].append(s)
            for i, s in enumerate(post):
                val[base + 31].append(s)
    p.extend(pre)
    for gidx in range(N):
        st, rem = gidx // 32, gidx % 32
        T, qt = rem // 4, rem % 4
        n = st * 8 + T
        acc = (T * 4 + qt) * 4
        c = '0' if st == 0 else vr(acc, 4)
        m = 'v_mfma_f32_16x16x32_bf16 %s, %s, %s, %s' % (vr(acc, 4), vr(FR + 4 * (n % 4), 4), ar((qt * 14 + st) * 4, 4), c)
        p(m)
        if gidx + 1 < N:
            st2, rem2 = (gidx + 1) // 32, (gidx + 1) % 32
            if rem2 % 4 == 0:
                n2 = st2 * 8 + rem2 // 4
                p('.need v_mfma_f32_16x16x32_bf16 v[0:3], %s, v[0:3], 0' % vr(FR + 4 * (n2 % 4), 4))
        if rem == 20 and st + 1 < 14:
            p(vm.wait('wq%d' % (st + 1)))
        if st == 11 and rem == 31:
            p('s_barrier')
        for s in sc[gidx]: p(s)
        for s in mem[gidx]:
            if isinstance(s, tuple):
                p(s[0]); vm.add(s[1])
            else: p(s)
        for s in val[gidx]: p(s)
    return p

def kv_addresses(o):
    p = Prog()
    L = VLANE
    p('''
    s_mul_i32 s61, s%d, %d
    s_lshl_b32 s62, s%d, 14
    s_lshl_b32 s63, s%d, 13
    s_add_u32 s62, s62, s63
    v_lshlrev_b32 v%d, 4, v%d
    v_add_u32 v%d, s62, v%d
''' % (S_S, HALF, S_S, S_QH, VOFF, L, VOFF, VOFF))
    p('''
    v_and_b32 v240, 7, v%d
    v_mul_u32_u24 v240, %d, v240
    v_bfe_u32 v241, v%d, 3, 1
    v_lshlrev_b32 v241, 9, v241
    v_add_u32 v240, v240, v241
    v_lshrrev_b32 v241, 4, v%d
    v_lshlrev_b32 v241, 4, v241
    v_add_u32 v240, v240, v241
    v_add_u32 v%d, s61, v240
    v_lshrrev_b32 v240, 2, v%d
    v_and_b32 v241, 7, v240
    v_mul_u32_u24 v241, %d, v241
    v_lshrrev_b32 v240, 3, v240
    v_lshlrev_b32 v240, 9, v240
    v_add_u32 v240, v240, v241
    v_and_b32 v241, 3, v%d
    v_lshlrev_b32 v241, 3, v241
    v_add_u32 v240, v240, v241
    v_add_u32 v240, s61, v240
    v_add_u32 v%d, %d, v240
''' % (L, BLK, L, L, VK, L, BLK, L, VV, VBASE))
    return p

def qexchange(o, vm):
    p = Prog()
    L = VLANE
    p('s_nop 7')
    p('s_barrier')
    p('''
    v_and_b32 v200, 15, v%d
    v_lshrrev_b32 v201, 4, v%d
    v_mul_u32_u24 v202, 1040, v200
    v_lshl_add_u32 v202, v201, 3, v202
    s_lshl_b32 s60, s%d, 8
    s_add_u32 s60, s60, %d
    v_add_u32 v202, s60, v202
    s_mov_b32 s61, 0x%x
''' % (L, L, S_W, QX, 0x3db8aa3b))
    q = Prog()
    k = 0
    for T in range(8):
        for qt in range(4):
            a = (T * 4 + qt) * 4
            t = 128 + 2 * (k % 8)
            q('v_cvt_pk_bf16_f32 v%d, v%d, v%d' % (t, a, a + 1))
            q('v_cvt_pk_bf16_f32 v%d, v%d, v%d' % (t + 1, a + 2, a + 3))
            q('ds_write_b64 v202, %s offset:%d' % (vr(t, 2), qt * 16 * 1040 + T * 32))
            k += 1
    p.extend(q)
    p('s_waitcnt lgkmcnt(0)')
    p('s_barrier')
    p('''
    s_mul_i32 s60, s%d, %d
    s_add_u32 s60, s60, %d
    v_mul_u32_u24 v202, 1040, v200
    v_lshl_add_u32 v202, v201, 4, v202
    v_add_u32 v202, s60, v202
''' % (S_QH, 32 * 1040, QX))
    for h in range(2):
        for qt in range(2):
            b = 2 * h + qt
            for ks in range(8):
                p('ds_read_b128 %s, v202 offset:%d' % (vr(32 * b + 4 * ks, 4), qt * 16 * 1040 + h * 512 + ks * 64))
    p(vm.wait('k1'))
    p('s_waitcnt lgkmcnt(0)')
    p('s_barrier')
    return p

def attn_prologue(o):
    p = Prog()
    p('v_add_u32 v%d, 0xffff0000, v%d' % (VOFF, VOFF))
    p('s_nop 0')
    for s in dma(o, 0, 0, False, True, nop=True): p(s)
    p('v_add_u32 v%d, 0x8000, v%d' % (VOFF, VOFF))
    p('''
    s_add_u32 s8, s8, 0x8000
    s_addc_u32 s9, s9, 0
    s_sub_u32 s10, s10, 0x8000
    s_add_u32 s12, s12, 0x8000
    s_addc_u32 s13, s13, 0
    s_sub_u32 s14, s14, 0x8000
''')
    q = Prog()
    qk = qk_list(o, czero=True)
    for n in range(2):
        for s in kread(o, n, 0): q(s)
    for sl in range(64):
        if sl % 8 == 0 and sl // 8 + 1 < 8:
            for s in kread(o, 2 * (sl // 8 + 1), 0) + kread(o, 2 * (sl // 8 + 1) + 1, 0): q(s)
        q(qk[sl])
    w, _ = insert_waits(q.ins)
    p.extend(w)
    p('s_nop 7')
    t = TMP
    for b in range(4):
        max8(p, t + b, b)
    for b in range(4):
        xreduce(p, t + b, t + 4, 'v_max_f32')
    for b in range(4):
        for r in range(4):
            p('v_sub_f32 v%d, 0, v%d' % (NEGM + 4 * b + r, t + b))
        for a in range(2):
            for r in range(4):
                p('v_sub_f32 v%d, v%d, v%d' % (S(a, b) + r, S(a, b) + r, t + b))
    for i in range(4):
        p('v_mov_b32 v%d, 0' % (LREG[1] + i))
    for s in exps(o, 0, 0, 1, 0): p(s)
    for s in exps(o, 1, 0, 1, 0): p(s)
    p('s_waitcnt vmcnt(0) lgkmcnt(0)')
    p('s_barrier')
    for n in range(2):
        for s in kread(o, n, 1): p(s)
    p('s_waitcnt lgkmcnt(0)')
    return p

MN, LL = 240, 244
def epi_setup(o):
    L = VLANE
    x = []
    for b in range(4): x.append('v_mov_b32 v%d, v%d' % (MN + b, NEGM + 4 * b))
    for b in range(4): x.append('v_mov_b32 v%d, v%d' % (LL + b, LREG[1] + b))
    for sw in ('v_permlane16_swap_b32', 'v_permlane32_swap_b32'):
        for b in range(4): x.append('v_mov_b32 v%d, v%d' % (248 + b, LL + b))
        for b in range(4): x.append('%s v%d, v%d' % (sw, LL + b, 248 + b))
        for b in range(4): x.append('v_add_f32 v%d, v%d, v%d' % (LL + b, LL + b, 248 + b))
    x += ['v_and_b32 v203, 15, v%d' % L, 'v_lshlrev_b32 v203, 5, v203',
          's_lshl_b32 s63, s%d, 9' % S_W, 's_add_u32 s63, s63, %d' % ST, 'v_add_u32 v202, s63, v203',
          'v_lshlrev_b32 v200, 4, v%d' % L,
          's_xor_b32 s64, s%d, 2' % S_W, 's_lshl_b32 s65, s64, 9', 's_add_u32 s65, s65, %d' % ST, 'v_add_u32 v203, s65, v203',
          's_lshl_b32 s64, s64, 15', 'v_add_u32 v201, s64, v200',
          's_lshl_b32 s66, s%d, 15' % S_W, 'v_add_u32 v200, s66, v200']
    return x

def attn_loop(o):
    p = Prog()
    first = A.iteration(o, 0, 'f', first_pv=True)
    w0, st0 = insert_waits(first.ins)
    p.extend(w0)
    p('s_mov_b32 s%d, 14' % S_CNT)
    p('.p2align 6')
    p('L_loop:')
    body = Prog()
    body.extend(A.iteration(o, 1, 'a'))
    body.extend(A.iteration(o, 0, 'b'))
    w1, st1 = insert_waits(body.ins, st0)
    w, st2 = insert_waits(body.ins, st1)
    assert st2 == st1 and [i.text for i in w] == [i.text for i in w1], 'not steady'
    loop_ins = w
    p.extend(w)
    p('s_sub_u32 s%d, s%d, 1' % (S_CNT, S_CNT))
    p('s_cmp_lg_u32 s%d, 0' % S_CNT)
    p('s_cbranch_scc1 L_loop')
    tail = Prog()
    ex = []
    if o.pf:
        ex = [(71, 'buffer_load_dword v255, v242, s[48:51], 0 offen')]
    tail.extend(A.iteration(o, 1, 'c', extra_mem=ex))
    ex = []
    if o.pf and o.pfmoe:
        ex = [(71, 'global_load_dword v255, v243, s[96:97]'), (75, 'global_load_dword v255, v243, s[98:99]'), (79, 'global_load_dword v255, v243, s[100:101]')]
    tail.extend(A.iteration(o, 0, 'd', do_dma_k=False, next_k=False, pf_ok=False, extra_mem=ex))
    tail('s_waitcnt vmcnt(%d) lgkmcnt(0)' % len(ex))
    tail('s_barrier')
    tail.extend(A.iteration(o, 1, 'e', do_qk=False, do_dma_k=False, do_dma_v=False, next_k=False, extra_valu=epi_setup(o)))
    w, _ = insert_waits(tail.ins, st1)
    p.extend(w)
    return p, w0, loop_ins, w

def combine(o, s, shadow):
    p = Prog()
    own = s; oth = 1 - s
    for dt in range(16):
        for qt in range(2):
            b = 2 * oth + qt
            p('ds_write_b128 v200, %s offset:%d' % (ar((dt * 4 + b) * 4, 4), (dt * 2 + qt) * 1024))
    for dt in range(16):
        for qt in range(2):
            b = 2 * own + qt
            for r in range(4):
                p('v_accvgpr_read_b32 v%d, a%d' % ((dt * 2 + qt) * 4 + r, (dt * 4 + b) * 4 + r))
    p.extend(shadow)
    p('s_waitcnt lgkmcnt(0)')
    p('s_barrier')
    stamp(p, o, 'e1bar')
    q = Prog()
    q('ds_read_b128 v[204:207], v203')
    q('ds_read_b128 v[208:211], v203 offset:16')
    order = [(2 * i + y, qt) for i in range(8) for qt in range(2) for y in range(2)]
    RING = 128
    def rd(k):
        dt, qt = order[k]
        q('ds_read_b128 %s, v201 offset:%d' % (vr(RING + 4 * (k % 8), 4), (dt * 2 + qt) * 1024))
    for k in range(8): rd(k)
    AL = 212; BE = 216
    for qt in range(2):
        b = 2 * own + qt
        mo = MN + b; mp = 204 + b; lo = LL + b; lp = 208 + b
        t = 220
        q('v_min_f32 v%d, v%d, v%d' % (t, mo, mp))
        q('v_sub_f32 v%d, v%d, v%d' % (t + 1, t, mo))
        q('v_sub_f32 v%d, v%d, v%d' % (t + 2, t, mp))
        q('v_exp_f32 v%d, v%d' % (t + 1, t + 1))
        q('v_exp_f32 v%d, v%d' % (t + 2, t + 2))
        q('s_nop 0')
        q('v_mul_f32 v%d, v%d, v%d' % (t + 3, t + 1, lo))
        q('v_fmac_f32 v%d, v%d, v%d' % (t + 3, t + 2, lp))
        q('v_rcp_f32 v%d, v%d' % (t + 3, t + 3))
        q('s_nop 0')
        q('v_mul_f32 v%d, v%d, v%d' % (AL + 2 * qt, t + 1, t + 3))
        q('v_mul_f32 v%d, v%d, v%d' % (BE + 2 * qt, t + 2, t + 3))
        q('v_mov_b32 v%d, v%d' % (AL + 2 * qt + 1, AL + 2 * qt))
        q('v_mov_b32 v%d, v%d' % (BE + 2 * qt + 1, BE + 2 * qt))
    for k in range(32):
        dt, qt = order[k]
        i, y = dt // 2, dt % 2
        rv = RING + 4 * (k % 8)
        ow = (dt * 2 + qt) * 4
        q('v_pk_mul_f32 %s, %s, %s' % (vr(rv, 2), vr(rv, 2), vr(BE + 2 * qt, 2)))
        q('v_pk_mul_f32 %s, %s, %s' % (vr(rv + 2, 2), vr(rv + 2, 2), vr(BE + 2 * qt, 2)))
        q('v_pk_fma_f32 %s, %s, %s, %s' % (vr(ow, 2), vr(ow, 2), vr(AL + 2 * qt, 2), vr(rv, 2)))
        q('v_pk_fma_f32 %s, %s, %s, %s' % (vr(ow + 2, 2), vr(ow + 2, 2), vr(AL + 2 * qt, 2), vr(rv + 2, 2)))
        if k + 8 < 32: rd(k + 8)
        fr = 160 + 4 * ((i * 2 + qt) % 8)
        q('v_cvt_pk_bf16_f32 v%d, v%d, v%d' % (fr + 2 * y, ow, ow + 1))
        q('v_cvt_pk_bf16_f32 v%d, v%d, v%d' % (fr + 2 * y + 1, ow + 2, ow + 3))
        if y == 1:
            q('ds_write_b128 v201, %s offset:%d' % (vr(fr, 4), (i * 2 + qt) * 1024))
    w, _ = insert_waits(q.ins)
    p.extend(w)
    return p

def wo_dma(step, slot, VW):
    out = []
    for jj in range(7):
        out.append('s_add_u32 m0, s%d, %d' % (S_T0 + slot, jj * 1024))
        out.append(('buffer_load_dwordx4 v%d, s[%d:%d], s%d offen lds' % (VW + jj, S_WO, S_WO + 3, S_WST), 'wo%d' % step))
    return out

def epilogue(o):
    p = Prog()
    L = VLANE
    vm = VmTracker()
    VW = 232
    p('s_nop 7')
    p('''
    s_barrier
    ds_write_b128 v202, v[%d:%d]
    ds_write_b128 v202, v[%d:%d] offset:16
''' % (MN, MN + 3, LL, LL + 3))
    sh = Prog()
    sh('s_mul_i32 s60, s%d, 224' % S_W)
    sh('s_mov_b32 s61, 0x124925')
    for jj in range(7):
        sh('v_add_u32 v192, %d, v%d' % (64 * jj, L))
        sh('v_mul_u32_u24 v193, s61, v192')
        sh('v_lshrrev_b32 v193, 24, v193')
        sh('v_mul_u32_u24 v194, 14, v193')
        sh('v_sub_u32 v194, v192, v194')
        sh('v_mul_u32_u24 v193, 896, v193')
        sh('v_lshl_add_u32 v193, v194, 4, v193')
        sh('v_add_u32 v%d, s60, v193' % (VW + jj))
    sh('''
    s_mul_i32 s60, s%d, 7168
    s_add_u32 s60, s60, %d
    s_lshl_b32 s61, s%d, 15
    s_add_u32 s61, s61, 16384
    s_add_u32 s62, s61, 7168
    s_mov_b32 s%d, 0
''' % (S_W, WO0, S_W, S_WST))
    emit_dma(sh, wo_dma(0, 0, VW), vm)
    sh('s_mov_b32 s%d, 28672' % S_WST)
    AW = 224
    BW = 228
    sh('''
    v_lshrrev_b32 v192, 2, v%d          ; 4kq + r
    v_mul_u32_u24 v192, 224, v192
    v_and_b32 v193, 3, v%d
    v_lshl_add_u32 v192, v193, 3, v192
    v_add_u32 v%d, s60, v192
    v_add_u32 v%d, s61, v192
    v_add_u32 v%d, s62, v192
    v_lshlrev_b32 v192, 4, v%d
''' % (L, L, AW, AW + 1, AW + 2, L))
    for r in range(4):
        sh('v_add_u32 v%d, %d, v192' % (BW + r, r * 32768))
    p('s_cmp_eq_u32 s%d, 0' % S_S)
    p('s_cbranch_scc0 L_comb1')
    c0 = combine(o, 0, sh); c1 = combine(o, 1, sh)
    p.extend(c0)
    p('s_branch L_combdone')
    p('L_comb1:')
    p.extend(c1)
    p('L_combdone:')
    stamp(p, o, 'comb')
    p('s_waitcnt lgkmcnt(0)')
    p('s_barrier')
    stamp(p, o, 'e3bar')
    emit_dma(p, wo_dma(1, 1, VW), vm)
    p('s_mov_b32 s%d, %d' % (S_WST, 2 * 28672))
    def bread(ks, qtile):
        h, i = ks >> 3, ks & 7
        qh, qt = qtile >> 1, qtile & 1
        reg = qh + 2 * (1 - h)
        return 'ds_read_b128 %s, v%d offset:%d' % (vr(112 + 16 * (ks % 2) + 4 * qtile, 4), BW + reg, (i * 2 + qt) * 1024)
    def aread(n):
        ks, T = n // 7, n % 7
        r = FR + 4 * (n % 4)
        return ['ds_read_b64_tr_b16 %s, v%d offset:%d' % (vr(r + 2 * a, 2), AW + ks % 3, a * 3584 + T * 32) for a in range(2)]
    N = 16 * 28
    sc = [[] for _ in range(N)]; mem = [[] for _ in range(N)]; val = [[] for _ in range(N)]
    pre = Prog()
    pre(vm.wait('wo0'))
    for qtile in range(4): pre(bread(0, qtile))
    for n in range(3):
        for s in aread(n): pre(s)
    for n in range(3, 16 * 7):
        mem[4 * (n - 3)] += aread(n)
    for ks in range(15):
        for qtile in range(4):
            mem[28 * ks + 4 * qtile + 5 + 8].append(bread(ks + 1, qtile))
    for ks in range(14):
        lst = wo_dma(ks + 2, (ks + 2) % 3, VW)
        gaps = [28 * ks + 2 + 4 * i for i in range(7)]
        gi = 0
        for s in lst:
            if isinstance(s, tuple):
                mem[gaps[gi]].append(s); gi += 1
            else:
                sc[gaps[gi] - 1].append(s)
        sc[28 * ks + 27].append('s_add_u32 s%d, s%d, 28672' % (S_WST, S_WST))
    body = Prog()
    body.extend(pre)
    for gidx in range(N):
        ks, rem = gidx // 28, gidx % 28
        T, qt = rem // 4, rem % 4
        n = ks * 7 + T
        acc = (T * 4 + qt) * 4
        c = '0' if ks == 0 else vr(acc, 4)
        body('v_mfma_f32_16x16x32_bf16 %s, %s, %s, %s' % (vr(acc, 4), vr(FR + 4 * (n % 4), 4), vr(112 + 16 * (ks % 2) + 4 * qt, 4), c))
        if gidx + 1 < N:
            ks2, rem2 = (gidx + 1) // 28, (gidx + 1) % 28
            n2 = ks2 * 7 + rem2 // 4
            body('.need v_mfma_f32_16x16x32_bf16 v[0:3], %s, %s, 0' % (vr(FR + 4 * (n2 % 4), 4), vr(112 + 16 * (ks2 % 2) + 4 * (rem2 % 4), 4)))
        if rem == 16 and ks + 1 < 16:
            body(vm.wait('wo%d' % (ks + 1)))
        for s in sc[gidx]: body(s)
        for s in mem[gidx]:
            if isinstance(s, tuple):
                body(s[0]); vm.add(s[1])
            else: body(s)
        for s in val[gidx]: body(s)
    w, _ = insert_waits(body.ins)
    p.extend(w)
    stamp(p, o, 'oproj')
    p('''
    s_mov_b32 s68, s24
    s_mov_b32 s69, s25
    s_lshl_b32 s60, s%d, 11
    s_lshl_b32 s61, s%d, 6
    s_add_u32 s60, s60, s61
    s_mul_i32 s60, s60, 896
    s_add_u32 s60, s60, %d
    s_add_u32 s68, s68, s60
    s_addc_u32 s69, s69, 0
    s_mov_b32 s70, 57344
    s_mov_b32 s71, 0x20000
    v_and_b32 v200, 15, v%d
    v_mul_u32_u24 v200, 912, v200
    v_lshrrev_b32 v201, 4, v%d
    v_lshl_add_u32 v200, v201, 3, v200
    s_mul_i32 s60, s%d, 224
    v_add_u32 v200, s60, v200          ; LDS write address
    v_lshlrev_b32 v201, 4, v%d
    s_mul_i32 s60, s%d, %d
    v_add_u32 v202, s60, v201          ; LDS read address: (16w)*912 + lane*16
    s_mul_i32 s60, s%d, %d
    v_add_u32 v203, s60, v201          ; global offset: (16w)*896 + lane*16
    v_mov_b32 v204, 0x40000000
    v_cmp_gt_u32 vcc, 56, v%d
    s_barrier
    s_nop 0
    v_cndmask_b32 v203, v204, v203, vcc
''' % (S_G, S_QB, WS_PART, L, L, S_W, L, S_W, 16 * 912, S_W, 16 * 896, L))
    k = 0
    for qt in range(4):
        for T in range(7):
            acc = (T * 4 + qt) * 4
            t = 128 + 2 * (k % 16); k += 1
            p('v_cvt_pk_bf16_f32 v%d, v%d, v%d' % (t, acc, acc + 1))
            p('v_cvt_pk_bf16_f32 v%d, v%d, v%d' % (t + 1, acc + 2, acc + 3))
            p('ds_write_b64 v200, %s offset:%d' % (vr(t, 2), qt * 16 * 912 + T * 32))
    p('s_waitcnt lgkmcnt(0)')
    p('s_barrier')
    q = Prog()
    for rr in range(16):
        q('ds_read_b128 %s, v202 offset:%d' % (vr(4 * rr, 4), rr * 912))
    for rr in range(16):
        if rr % 4 == 0 and rr: q('v_add_u32 v203, %d, v203' % (4 * 896))
        q('buffer_store_dwordx4 %s, v203, s[68:71], 0 offen offset:%d%s' % (vr(4 * rr, 4), (rr % 4) * 896, o.part_flags))
    w, _ = insert_waits(q.ins)
    p.extend(w)
    return p

def expand_stamps(p, o):
    q = Prog()
    for i in p.ins:
        if i.text.startswith(';STAMP'):
            stamp(q, o, i.text.split()[1])
        else: q.ins.append(i)
    return q

def build_k1(o):
    p = Prog()
    p('k1_kernel:')
    pro, vm, VQ, VA = prologue(o)
    p.extend(expand_stamps(pro, o))
    p.extend(kv_addresses(o))
    qp = qproj(o, vm, VQ, VA)
    w, _ = insert_waits(qp.ins)
    p.extend(w)
    stamp(p, o, 'qproj')
    p.extend(qexchange(o, vm))
    stamp(p, o, 'qexch')
    if getattr(o, 'dump', '') == 'q':
        p('''
    s_lshl_b32 s60, s2, 2
    s_add_u32 s60, s60, s%d
    s_lshl_b32 s60, s60, 15
    s_add_u32 s60, s60, 0x2000000
    v_lshlrev_b32 v200, 4, v%d
    v_add_u32 v200, s60, v200
''' % (S_W, VLANE))
        for n in range(32):
            if n % 4 == 0 and n: p('v_add_u32 v200, 0x1000, v200')
            p('buffer_store_dwordx4 %s, v200, s[24:27], 0 offen offset:%d' % (vr(4 * n, 4), (n % 4) * 1024))
        p('s_waitcnt vmcnt(0)')
    p.extend(attn_prologue(o))
    stamp(p, o, 'attnpro')
    if o.stamps: p('s_waitcnt lgkmcnt(0)')
    lp, first, loop_ins, tail = attn_loop(o)
    p.extend(lp)
    stamp(p, o, 'loop')
    if getattr(o, 'dump', '') == 'o':
        p('s_nop 7')
        p('''
    s_lshl_b32 s60, s2, 18
    s_lshl_b32 s61, s%d, 16
    s_add_u32 s60, s60, s61
    s_add_u32 s60, s60, 0x2000000
    v_lshlrev_b32 v210, 4, v%d
    v_add_u32 v210, s60, v210
''' % (S_W, VLANE))
        for r4 in range(64):
            if r4 % 4 == 0 and r4: p('v_add_u32 v210, 0x1000, v210')
            p('buffer_store_dwordx4 %s, v210, s[24:27], 0 offen offset:%d' % (ar(4 * r4, 4), (r4 % 4) * 1024))
        p('''
    s_lshl_b32 s60, s2, 2
    s_add_u32 s60, s60, s%d
    s_lshl_b32 s60, s60, 11
    s_add_u32 s60, s60, 0x8000000
    v_lshlrev_b32 v210, 2, v%d
    v_add_u32 v210, s60, v210
''' % (S_W, VLANE))
        for b in range(4):
            p('buffer_store_dword v%d, v210, s[24:27], 0 offen offset:%d' % (NEGM + 4 * b, 256 * b))
            p('buffer_store_dword v%d, v210, s[24:27], 0 offen offset:%d' % (LREG[1] + b, 1024 + 256 * b))
        p('s_waitcnt vmcnt(0)')
    p.extend(epilogue(o))
    if o.stamps:
        stamp(p, o, 'stores')
        p('s_waitcnt vmcnt(0)')
        stamp(p, o, 'end')
        p('s_waitcnt lgkmcnt(0)')
        p('''
    s_lshl_b32 s60, s2, 2
    s_add_u32 s60, s60, s%d
    s_lshl_b32 s60, s60, 6
    s_add_u32 s60, s60, 0x%x
    v_mov_b32 v1, s60
''' % (S_W, WS_STAMP))
        for k in range(8):
            p('v_mov_b32 v%d, s%d' % (2 + k, S_STAMP + 2 * k))
        p('''
    v_cmp_eq_u32 vcc, 0, v%d
    s_and_saveexec_b64 s[60:61], vcc
    s_cbranch_execz L_nostamp
    buffer_store_dwordx4 v[2:5], v1, s[24:27], 0 offen
    buffer_store_dwordx4 v[6:9], v1, s[24:27], 0 offen offset:16
L_nostamp:
    s_mov_b64 exec, s[60:61]
''' % VLANE)
    p('s_waitcnt vmcnt(0)')
    p('L_end_k1:')
    p('s_endpgm')
    for tag, par in (('f', 0), ('a', 1), ('b', 0), ('c', 1), ('d', 0)):
        p('L_rare_%s:' % tag)
        p('s_call_b64 s[%d:%d], L_fb_%d' % (S_RET, S_RET + 1, par))
        p('s_branch L_back_%s' % tag)
    p.extend(A.fallback(o, 0))
    p.extend(A.fallback(o, 1))
    probs = check_hazards(first + loop_ins + loop_ins + tail, 'loop') + check_hazards(p.ins, 'all')
    return p, probs

KD = '''
.amdhsa_kernel %s
  .amdhsa_next_free_vgpr %d
  .amdhsa_next_free_sgpr %d
  .amdhsa_accum_offset %d
  .amdhsa_group_segment_fixed_size 0
  .amdhsa_kernarg_size 120
  .amdhsa_user_sgpr_count 2
  .amdhsa_user_sgpr_kernarg_segment_ptr 1
  .amdhsa_system_sgpr_workgroup_id_x 1
  .amdhsa_float_denorm_mode_32 3
.end_amdhsa_kernel
'''

if __name__ == '__main__':
    import sys
    o = A.Opt()
    o.kgap = 1
    o.dma_gaps = [3, 7, 11, 15, 19, 23, 27, 31, 35, 39, 43, 47, 51, 55, 59, 63]
    o.stamps = 1; o.pf = 1; o.pfd = 4; o.pfmoe = 1; o.pf_kv_early = 0; o.part_flags = ' sc1'
    out = sys.argv[1]
    for kv in sys.argv[2:]:
        k, v = kv.split('=')
        try: v = int(v, 0)
        except ValueError:
            if v.startswith('['): v = eval(v)
        setattr(o, k, v)
    p, probs = build_k1(o)
    for pr in probs[:20]: print(pr)
    print('hazards', len(probs), 'instrs', len(p.ins))
    hdr = '''; @launch kernel=k1_kernel grid=(256,1,1) block=(256,1,1) lds=163840
.amdgcn_target "amdgcn-amd-amdhsa--gfx950"
.text
.globl k1_kernel
.p2align 8
.type k1_kernel,@function
'''
    ftr = '.section .rodata,"a"\n.p2align 6' + KD % ('k1_kernel', 512, 102, 256)
    open(out, 'w').write(hdr + p.text() + ftr)
```

```python
from asmlib import *
from k1 import WS_MOD, WS_R, WS_IDX, WS_ACT, WS_H2, WS_PART, xreduce
def vr(a, n=1): return 'v%d' % a if n == 1 else 'v[%d:%d]' % (a, a + n - 1)

def srd(p, s, ptr_lo, nbytes, off=None):
    if off is None:
        if s != ptr_lo:
            p('s_mov_b32 s%d, s%d' % (s, ptr_lo)); p('s_mov_b32 s%d, s%d' % (s + 1, ptr_lo + 1))
    else:
        p('s_add_u32 s%d, s%d, %s' % (s, ptr_lo, off)); p('s_addc_u32 s%d, s%d, 0' % (s + 1, ptr_lo + 1))
    p('s_mov_b32 s%d, %s' % (s + 2, nbytes)); p('s_mov_b32 s%d, 0x20000' % (s + 3))

def wave_reduce(p, r, t, op='v_add_f32'):
    for k in (1, 2, 4, 8):
        p('s_nop 1')
        p('%s_dpp v%d, v%d, v%d row_ror:%d row_mask:0xf bank_mask:0xf' % (op, r, r, r, k))
    p('s_nop 0')
    xreduce(p, r, t, op)

def wave_reduce_multi(p, regs, temps, op='v_add_f32'):
    for k in (1, 2, 4, 8):
        if len(regs) < 3: p('s_nop %d' % (2 - len(regs)))
        for r in regs:
            p('%s_dpp v%d, v%d, v%d row_ror:%d row_mask:0xf bank_mask:0xf' % (op, r, r, r, k))
    for sw in ('v_permlane16_swap_b32', 'v_permlane32_swap_b32'):
        p('s_nop 0')
        for r, t in zip(regs, temps): p('v_mov_b32 v%d, v%d' % (t, r))
        p('s_nop 1')
        for r, t in zip(regs, temps): p('%s v%d, v%d' % (sw, r, t))
        p('s_nop 1')
        for r, t in zip(regs, temps): p('%s v%d, v%d, v%d' % (op, r, r, t))

def build_k0():
    p = Prog()
    p('''
k0_kernel:
    s_cmp_ge_u32 s2, 42
    s_cbranch_scc1 L_end_k0
    s_load_dwordx4 s[4:7], s[0:1], 80
    s_load_dwordx2 s[24:25], s[0:1], 112
    v_and_b32 v1, 7, v0            ; cc
    v_lshrrev_b32 v2, 3, v0        ; kg 0..31
    s_waitcnt lgkmcnt(0)
''')
    srd(p, 8, 4, 896)
    srd(p, 12, 6, 448 * 5376)
    srd(p, 24, 24, 10752)
    p('''
    v_mul_u32_u24 v3, 5376, v2
    v_lshl_add_u32 v3, v1, 4, v3
    s_lshl_b32 s16, s2, 7
    v_add_u32 v3, s16, v3
    v_lshlrev_b32 v4, 1, v2        ; c offset
''')
    for i in range(14):
        p('buffer_load_ushort v%d, v4, s[8:11], 0 offen offset:%d' % (10 + i, 64 * i))
    p('s_mov_b32 s17, %d' % (32 * 5376))
    for i in range(14):
        p('buffer_load_dwordx4 %s, v3, s[12:15], 0 offen' % vr(32 + 4 * i, 4))
        if i < 13: p('v_add_u32 v3, s17, v3')
    p('s_waitcnt vmcnt(14)')
    for i in range(14):
        p('v_lshlrev_b32 v%d, 16, v%d' % (10 + i, 10 + i))
    for i in range(14):
        p('v_mul_f32 v%d, 0xbfb8aa3b, v%d' % (96 + i, 10 + i))
    for i in range(14):
        p('v_exp_f32 v%d, v%d' % (96 + i, 96 + i))
    for i in range(14):
        p('v_add_f32 v%d, 1.0, v%d' % (96 + i, 96 + i))
    for i in range(14):
        p('v_rcp_f32 v%d, v%d' % (96 + i, 96 + i))
    for i in range(14):
        p('v_mul_f32 v%d, v%d, v%d' % (10 + i, 10 + i, 96 + i))
    for i in range(14):
        p('v_cvt_pk_bf16_f32 v%d, v%d, 0' % (10 + i, 10 + i))
    for i in range(14):
        p('v_lshlrev_b32 v%d, 16, v%d' % (96 + i, 10 + i))
    for j in range(8): p('v_mov_b32 v%d, 0' % (112 + j))
    p('s_waitcnt vmcnt(0)')
    for i in range(14):
        for j in range(8):
            w = 32 + 4 * i + j // 2
            sel = (10 + i) if j % 2 == 0 else (96 + i)
            p('v_dot2_f32_bf16 v%d, v%d, v%d, v%d' % (112 + j, w, sel, 112 + j))
    p('s_nop 2')
    regs = [112 + j for j in range(8)]; temps = [120 + j for j in range(8)]
    for r in regs:
        p('v_add_f32_dpp v%d, v%d, v%d row_ror:8 row_mask:0xf bank_mask:0xf' % (r, r, r))
    for sw in ('v_permlane16_swap_b32', 'v_permlane32_swap_b32'):
        for r, t in zip(regs, temps): p('v_mov_b32 v%d, v%d' % (t, r))
        p('s_nop 1')
        for r, t in zip(regs, temps): p('%s v%d, v%d' % (sw, r, t))
        p('s_nop 1')
        for r, t in zip(regs, temps): p('v_add_f32 v%d, v%d, v%d' % (r, r, t))
    p('''
    v_lshrrev_b32 v5, 6, v0
    v_lshlrev_b32 v5, 8, v5
    v_lshl_add_u32 v5, v1, 5, v5
    ds_write_b128 v5, v[112:115]
    ds_write_b128 v5, v[116:119] offset:16
    s_waitcnt lgkmcnt(0)
    s_barrier
    v_cmp_gt_u32 vcc, 64, v0
    s_and_saveexec_b64 s[18:19], vcc
    s_cbranch_execz L_k0_done
    v_lshlrev_b32 v5, 2, v0
    ds_read_b32 v6, v5
    ds_read_b32 v7, v5 offset:256
    ds_read_b32 v8, v5 offset:512
    ds_read_b32 v9, v5 offset:768
    s_waitcnt lgkmcnt(0)
    v_add_f32 v6, v6, v7
    v_add_f32 v8, v8, v9
    v_add_f32 v6, v6, v8
    v_cvt_pk_bf16_f32 v6, v6, 0
    v_lshlrev_b32 v6, 16, v6
    s_mul_i32 s20, s2, 37
    s_lshr_b32 s20, s20, 8
    s_cmp_eq_u32 s20, 1
    s_cselect_b32 s21, 1, 0
    s_cmp_eq_u32 s20, 4
    s_cselect_b32 s21, 1, s21
    s_cmp_eq_u32 s21, 0
    s_cbranch_scc1 L_k0_store
    v_add_f32 v6, 1.0, v6
    v_cvt_pk_bf16_f32 v6, v6, 0
    v_lshlrev_b32 v6, 16, v6
L_k0_store:
    s_lshl_b32 s16, s2, 8
    v_add_u32 v5, s16, v5
    buffer_store_dword v6, v5, s[24:27], 0 offen
L_k0_done:
    s_mov_b64 exec, s[18:19]
    s_waitcnt vmcnt(0)
L_end_k0:
    s_endpgm
''')
    return p

PF_MOE = True
def build_k2():
    p = Prog()
    p('''
k2_kernel:
    s_cmp_ge_u32 s2, 256
    s_cbranch_scc1 L_end_k2
    s_load_dwordx2 s[4:5], s[0:1], 0
    s_load_dwordx2 s[6:7], s[0:1], 48
    s_load_dwordx2 s[28:29], s[0:1], 96
    s_load_dwordx2 s[24:25], s[0:1], 112
    s_load_dwordx4 s[44:47], s[0:1], 56
    s_load_dwordx2 s[48:49], s[0:1], 72
    v_and_b32 v1, 63, v0
    v_lshrrev_b32 v2, 6, v0
    s_nop 0
    v_readfirstlane_b32 s3, v2
    s_lshl_b32 s41, s2, 3
    s_lshl_b32 s42, s3, 1
    s_add_u32 s41, s41, s42
    s_mul_i32 s42, s41, 896
    s_waitcnt lgkmcnt(0)
''')
    srd(p, 8, 4, 2048 * 896)
    srd(p, 12, 6, 896)
    srd(p, 16, 24, 8 * 2048 * 896, str(WS_PART))
    srd(p, 20, 24, 2048 * 896, str(WS_H2))
    srd(p, 32, 24, 10752)
    srd(p, 36, 24, 8192, str(WS_R))
    srd(p, 28, 28, 2048 * 896)
    p('''
    v_lshlrev_b32 v3, 4, v1            ; lane*16
    v_lshlrev_b32 v4, 5, v1
    v_mov_b32 v5, 0x40000000
    v_cmp_gt_u32 vcc, 56, v1
    s_nop 1
    v_cndmask_b32 v3, v5, v3, vcc
    v_cndmask_b32 v4, v5, v4, vcc
    v_cndmask_b32 v6, 0, 1.0, vcc
    v_add_u32 v7, s42, v3
''')
    for rr in range(2):
        for g in range(8):
            p('s_mov_b32 s40, %d' % (g * 2048 * 896 + rr * 896) if not (g == 0 and rr == 0) else 's_mov_b32 s40, 0')
            p('buffer_load_dwordx4 %s, v7, s[16:19], s40 offen' % vr(16 + rr * 40 + 4 * g, 4))
        p('buffer_load_dwordx4 %s, v7, s[8:11], 0 offen offset:%d' % (vr(16 + rr * 40 + 32, 4), rr * 896))
    for k, seg in enumerate((2, 3, 4, 5)):
        p('s_mov_b32 s40, %d' % (seg * 1792))
        p('buffer_load_dwordx4 %s, v4, s[32:35], s40 offen' % vr(96 + 8 * k, 4))
        p('buffer_load_dwordx4 %s, v4, s[32:35], s40 offen offset:16' % vr(100 + 8 * k, 4))
    p('buffer_load_dwordx4 v[128:131], v3, s[12:15], 0 offen')
    p('v_mov_b32 v8, 0x00003f80')
    p('v_mov_b32 v9, 0x3f800000')
    ACC = [136, 152]
    for rr in range(2):
        for j in range(8): p('v_mov_b32 v%d, 0' % (ACC[rr] + j))
    for rr in range(2):
        p('s_waitcnt vmcnt(%d)' % (9 + 1 + (9 if rr == 0 else 0)))
        for g in range(8):
            for j in range(8):
                p('v_dot2_f32_bf16 v%d, v%d, v%d, v%d' % (ACC[rr] + j, 16 + rr * 40 + 4 * g + j // 2, 8 + j % 2, ACC[rr] + j))
    p('s_waitcnt vmcnt(0)')
    p(';ST 0')
    if PF_MOE:
        p('''
    s_and_b32 s50, s2, 7               ; x
    s_lshr_b32 s51, s2, 3              ; i
    v_min_u32 v210, 55, v1
    s_cmp_ge_u32 s3, 2
    s_cbranch_scc1 L_k2_pfdown
    s_mul_i32 s52, s50, 448
    s_lshr_b32 s52, s52, 7
    s_mul_i32 s53, s51, 14
    v_lshrrev_b32 v211, 2, v210
    v_add_u32 v211, s53, v211
    v_mul_u32_u24 v211, 3584, v211
    v_and_b32 v212, 3, v210
    v_add_u32 v212, s52, v212
    v_lshl_add_u32 v211, v212, 7, v211
    s_cmp_eq_u32 s3, 0
    s_cselect_b32 s54, s44, s46
    s_cselect_b32 s55, s45, s47
    global_load_dword v213, v211, s[54:55]
    s_branch L_k2_pfdone
L_k2_pfdown:
    s_lshl_b32 s52, s50, 7             ; x<4: byte 128x
    s_mul_i32 s53, s50, 96
    s_add_u32 s53, s53, 128            ; x>=4: 512 + 96(x-4) = 96x + 128
    s_cmp_lt_u32 s50, 4
    s_cselect_b32 s52, s52, s53
    s_and_b32 s53, s3, 1
    s_mul_i32 s53, s53, 95
    s_add_u32 s52, s52, s53
    s_and_b32 s52, s52, 0xffffff80
    s_mul_i32 s53, s51, 56
    v_add_u32 v211, s53, v210
    v_mul_u32_u24 v211, 896, v211
    v_add_u32 v211, s52, v211
    global_load_dword v213, v211, s[48:49]
L_k2_pfdone:
''')
    X1 = [168, 184]
    for rr in range(2):
        xr = 16 + rr * 40 + 32
        for j in range(8):
            p('v_mul_f32 v%d, v%d, v%d' % (ACC[rr] + j, ACC[rr] + j, 96 + j))
        for j in range(8):
            p('v_dot2_f32_bf16 v%d, v%d, v%d, v%d' % (ACC[rr] + j, xr + j // 2, 8 + j % 2, ACC[rr] + j))
    p('s_nop 2')
    for rr in range(2):
        for j in range(0, 8, 2):
            p('v_cvt_pk_bf16_f32 v%d, v%d, v%d' % (200 + rr * 4 + j // 2, ACC[rr] + j, ACC[rr] + j + 1))
    for rr in range(2):
        for j in range(8):
            if j % 2 == 0: p('v_lshlrev_b32 v%d, 16, v%d' % (X1[rr] + j, 200 + rr * 4 + j // 2))
            else: p('v_and_b32 v%d, 0xffff0000, v%d' % (X1[rr] + j, 200 + rr * 4 + j // 2))
    SUM = [10, 11]
    for rr in range(2):
        p('v_add_f32 v%d, v%d, v%d' % (SUM[rr], X1[rr], X1[rr] + 1))
        for j in range(2, 8): p('v_add_f32 v%d, v%d, v%d' % (SUM[rr], SUM[rr], X1[rr] + j))
    wave_reduce_multi(p, SUM, [12, 13])
    XC = [16, 32]
    for rr in range(2):
        p('v_mul_f32 v%d, 0xbb124925, v%d' % (SUM[rr], SUM[rr]))
    for rr in range(2):
        for j in range(8):
            p('v_add_f32 v%d, v%d, v%d' % (XC[rr] + j, X1[rr] + j, SUM[rr]))
    VAR = [12, 13]
    for rr in range(2):
        p('v_mul_f32 v%d, v%d, v%d' % (VAR[rr], XC[rr], XC[rr]))
        for j in range(1, 8): p('v_fmac_f32 v%d, v%d, v%d' % (VAR[rr], XC[rr] + j, XC[rr] + j))
    for rr in range(2):
        p('v_mul_f32 v%d, v%d, v6' % (VAR[rr], VAR[rr]))
    wave_reduce_multi(p, VAR, [14, 15])
    for rr in range(2):
        p('v_mov_b32 v%d, 0x3727c5ac' % (14 + rr))
        p('v_fmac_f32 v%d, 0x3b124925, v%d' % (14 + rr, VAR[rr]))
    for rr in range(2):
        p('v_rsq_f32 v%d, v%d' % (VAR[rr], 14 + rr))
    p('s_nop 0')
    H = [48, 64]
    for rr in range(2):
        for j in range(8):
            p('v_mul_f32 v%d, v%d, v%d' % (XC[rr] + j, XC[rr] + j, VAR[rr]))
        for j in range(8):
            p('v_fma_f32 v%d, v%d, v%d, v%d' % (XC[rr] + j, XC[rr] + j, 112 + j, 104 + j))
        for j in range(0, 8, 2):
            p('v_cvt_pk_bf16_f32 v%d, v%d, v%d' % (H[rr] + j // 2, XC[rr] + j, XC[rr] + j + 1))
    p(';ST 1')
    for rr in range(2):
        p('buffer_store_dwordx4 %s, v7, s[20:23], 0 offen offset:%d' % (vr(H[rr], 4), rr * 896))
    RR = [14, 15]
    for rr in range(2):
        p('v_mov_b32 v%d, 0' % RR[rr])
    for j in range(4):
        for rr in range(2):
            p('v_dot2_f32_bf16 v%d, v%d, v%d, v%d' % (RR[rr], H[rr] + j, 128 + j, RR[rr]))
    for rr in range(2):
        for j in range(8):
            if j % 2 == 0: p('v_lshlrev_b32 v%d, 16, v%d' % (XC[rr] + j, H[rr] + j // 2))
            else: p('v_and_b32 v%d, 0xffff0000, v%d' % (XC[rr] + j, H[rr] + j // 2))
        for j in range(8):
            p('v_fma_f32 v%d, v%d, v%d, v%d' % (XC[rr] + j, XC[rr] + j, 120 + j, X1[rr] + j))
        for j in range(0, 8, 2):
            p('v_cvt_pk_bf16_f32 v%d, v%d, v%d' % (80 + rr * 4 + j // 2, XC[rr] + j, XC[rr] + j + 1))
        p('buffer_store_dwordx4 %s, v7, s[28:31], 0 offen offset:%d' % (vr(80 + rr * 4, 4), rr * 896))
    wave_reduce_multi(p, RR, [12, 13])
    p('''
    v_cvt_pk_bf16_f32 v14, v14, 0
    v_cvt_pk_bf16_f32 v15, v15, 0
    v_lshlrev_b32 v14, 16, v14
    v_lshlrev_b32 v15, 16, v15
    v_cmp_eq_u32 vcc, 1, v1
    s_nop 1
    v_cndmask_b32 v14, v14, v15, vcc
    v_add_u32 v2, s41, v1
    v_lshlrev_b32 v2, 2, v2
    v_cmp_gt_u32 vcc, 2, v1
    s_nop 1
    v_cndmask_b32 v2, v5, v2, vcc
    buffer_store_dword v14, v2, s[36:39], 0 offen
    s_waitcnt vmcnt(0)
L_end_k2:
    s_endpgm
''')
    return p

def sort8(p, K, T):
    net = [(0,1),(2,3),(4,5),(6,7),(0,2),(1,3),(4,6),(5,7),(1,2),(5,6),(0,4),(3,7),(1,5),(2,6),(1,4),(3,6),(2,4),(3,5),(3,4)]
    for a_, b_ in net:
        p('v_max_u32 v%d, v%d, v%d' % (T, K + a_, K + b_))
        p('v_min_u32 v%d, v%d, v%d' % (K + b_, K + a_, K + b_))
        p('v_mov_b32 v%d, v%d' % (K + a_, T))

def row_rounds(p, K, T, RES, MASK):
    for rnd in range(8):
        p('v_mov_b32 v%d, v%d' % (T, K))
        for k in (1, 2, 4, 8):
            p('s_nop 1')
            p('v_max_u32_dpp v%d, v%d, v%d row_ror:%d row_mask:0xf bank_mask:0xf' % (T, T, T, k))
        p('s_nop 0')
        p('v_cmp_eq_u32 vcc, v%d, v%d' % (K, T))
        p('v_cndmask_b32_e64 v%d, v%d, v%d, s[%d:%d]' % (RES, RES, T, MASK + 2 * rnd, MASK + 2 * rnd + 1))
        if rnd < 7:
            p('s_nop 0')
            for j in range(7 - rnd):
                p('v_cndmask_b32 v%d, v%d, v%d, vcc' % (K + j, K + j, K + j + 1))
            p('v_cndmask_b32_e64 v%d, v%d, 0, vcc' % (K + 7 - rnd, K + 7 - rnd))

def top8(p, KEY, T):
    RES = T + 1
    p('v_and_b32 v%d, 7, v1' % T)
    for i in range(8):
        p('v_cmp_eq_u32 s[%d:%d], %d, v%d' % (64 + 2 * i, 65 + 2 * i, i, T))
    sort8(p, KEY, T)
    p('v_mov_b32 v%d, 0' % RES)
    row_rounds(p, KEY, T, RES, 64)
    p('v_lshrrev_b32 v%d, 4, v0' % T)
    p('v_lshlrev_b32 v%d, 5, v%d' % (T, T))
    p('v_and_b32 v%d, 7, v1' % (T + 2))
    p('v_lshl_add_u32 v%d, v%d, 2, v%d' % (T, T + 2, T))
    p('ds_write_b32 v%d, v%d offset:%d' % (T, RES, TOPK_LDS))
    p('s_waitcnt lgkmcnt(0)')
    p('s_barrier')
    p('v_and_b32 v%d, 15, v1' % T)
    p('v_lshlrev_b32 v%d, 5, v%d' % (T, T))
    p('ds_read_b128 %s, v%d offset:%d' % (vr(KEY, 4), T, TOPK_LDS))
    p('ds_read_b128 %s, v%d offset:%d' % (vr(KEY + 4, 4), T, TOPK_LDS + 16))
    p('v_mov_b32 v%d, 0' % RES)
    p('s_waitcnt lgkmcnt(0)')
    row_rounds(p, KEY, T, RES, 64)

TOPK_LDS = 57344

def wstage(p, srd_, voff, nsteps, lds_sgpr):
    p('s_mov_b32 s44, 0')
    for i in range(nsteps):
        p('s_add_u32 m0, s%d, %d' % (lds_sgpr, i * 1024))
        p('s_nop 0')
        p('buffer_load_dwordx4 v%d, s[%d:%d], s44 offen lds' % (voff, srd_, srd_ + 3))
        if i + 1 < nsteps: p('s_add_u32 s44, s44, s45')

def tr_frags(p, addr, dst, nsteps):
    for i in range(nsteps):
        p('ds_read_b64_tr_b16 %s, v%d offset:%d' % (vr(dst + 4 * i, 2), addr, i * 1024))
        p('ds_read_b64_tr_b16 %s, v%d offset:%d' % (vr(dst + 4 * i + 2, 2), addr, i * 1024 + 128))

def build_k3():
    p = Prog()
    p('''
k3_kernel:
    s_cmp_ge_u32 s2, 56
    s_cbranch_scc1 L_end_k3
    s_load_dwordx4 s[4:7], s[0:1], 56
    s_load_dwordx2 s[24:25], s[0:1], 112
    v_and_b32 v1, 63, v0
    v_lshrrev_b32 v2, 6, v0
    s_nop 0
    v_readfirstlane_b32 s3, v2
    s_waitcnt lgkmcnt(0)
    s_cmp_ge_u32 s3, 2
    s_cselect_b32 s4, s6, s4
    s_cselect_b32 s5, s7, s5
''')
    srd(p, 8, 4, 448 * 3584)
    srd(p, 12, 24, 8192, str(WS_R))
    srd(p, 16, 24, 2048 * 896, str(WS_H2))
    srd(p, 20, 24, 28672, str(WS_ACT))
    srd(p, 28, 24, 64, str(WS_IDX))
    p('''
    s_and_b32 s40, s2, 7
    s_mul_i32 s40, s40, 7
    s_lshr_b32 s41, s2, 3
    s_add_u32 s40, s40, s41           ; column block = (wg&7)*7 + (wg>>3): neighbours share an XCD (speed only)
    s_lshl_b32 s40, s40, 6
    s_and_b32 s41, s3, 1
    s_lshl_b32 s41, s41, 5
    s_add_u32 s40, s40, s41
    v_lshrrev_b32 v3, 1, v1
    v_mul_u32_u24 v3, 3584, v3
    v_and_b32 v4, 1, v1
    v_lshl_add_u32 v3, v4, 4, v3
    v_add_u32 v3, s40, v3
    s_mov_b32 s45, %d
    s_mul_i32 s46, s3, 14336
''' % (32 * 3584))
    p('v_lshlrev_b32 v5, 5, v0')
    p('buffer_load_dwordx4 v[8:11], v5, s[12:15], 0 offen')
    p('buffer_load_dwordx4 v[12:15], v5, s[12:15], 0 offen offset:16')
    wstage(p, 8, 3, 14, 46)
    p('v_lshlrev_b32 v6, 3, v0')
    p('v_sub_u32 v6, 2047, v6')
    p('s_waitcnt vmcnt(14)')
    p(';ST 0')
    for j in range(8):
        k = 8 + j
        p('v_ashrrev_i32 v16, 31, v%d' % k)
        p('v_or_b32 v16, 0x80000000, v16')
        p('v_xor_b32 v%d, v%d, v16' % (k, k))
        p('v_and_b32 v%d, 0xffff0000, v%d' % (k, k))
        p('v_subrev_u32 v17, %d, v6' % j)
        p('v_or_b32 v%d, v%d, v17' % (k, k))
    top8(p, 8, 16)
    p(';ST 1')
    p('v_and_b32 v20, 0xffff, v17')
    p('v_sub_u32 v20, 2047, v20')
    p('''
    v_mul_u32_u24 v22, 896, v20
    v_lshrrev_b32 v23, 4, v1
    v_lshl_add_u32 v22, v23, 4, v22
''')
    for i in range(14):
        p('buffer_load_dwordx4 %s, v22, s[16:19], 0 offen offset:%d' % (vr(32 + 4 * i, 4), 64 * i))
    p('''
    s_or_b32 s47, s2, s3
    s_cmp_lg_u32 s47, 0
    s_cbranch_scc1 L_k3_nopub
    v_mov_b32 v24, v17
    v_and_b32 v24, 0xffff0000, v24
    v_ashrrev_i32 v25, 31, v24
    v_not_b32 v25, v25
    v_or_b32 v25, 0x80000000, v25
    v_xor_b32 v24, v24, v25
    v_and_b32 v24, 0xffff0000, v24
    v_mul_f32 v25, 0xbfb8aa3b, v24
    v_exp_f32 v25, v25
    s_nop 0
    v_add_f32 v25, 1.0, v25
    v_rcp_f32 v25, v25
    s_nop 0
    v_cvt_pk_bf16_f32 v25, v25, 0
    v_lshlrev_b32 v25, 16, v25
    v_lshlrev_b32 v26, 2, v1
    v_cmp_gt_u32 vcc, 8, v1
    v_mov_b32 v27, 0x40000000
    s_nop 0
    v_cndmask_b32 v26, v27, v26, vcc
    buffer_store_dword v20, v26, s[28:31], 0 offen
    buffer_store_dword v25, v26, s[28:31], 0 offen offset:32
L_k3_nopub:
''')
    p('''
    v_lshrrev_b32 v28, 4, v1            ; kq
    v_lshlrev_b32 v28, 3, v28           ; 8 kq
    v_bfe_u32 v29, v1, 2, 2             ; r
    v_add_u32 v28, v28, v29
    v_lshlrev_b32 v28, 5, v28           ; row*32
    v_and_b32 v29, 3, v1
    v_lshl_add_u32 v28, v29, 3, v28
    v_add_u32 v28, s46, v28
    s_waitcnt vmcnt(14)
''')
    p(';ST 2')
    tr_frags(p, 28, 96, 14)
    p('s_waitcnt vmcnt(0) lgkmcnt(0)')
    p(';ST 3')
    for i in range(14):
        c = '0' if i == 0 else 'v[160:163]'
        p('v_mfma_f32_16x16x32_bf16 v[160:163], %s, %s, %s' % (vr(32 + 4 * i, 4), vr(96 + 4 * i, 4), c))
    p('s_nop 7')
    p('v_cvt_pk_bf16_f32 v164, v160, v161')
    p('v_cvt_pk_bf16_f32 v165, v162, v163')
    p('''
    v_lshlrev_b32 v160, 16, v164
    v_and_b32 v161, 0xffff0000, v164
    v_lshlrev_b32 v162, 16, v165
    v_and_b32 v163, 0xffff0000, v165
    s_cmp_ge_u32 s3, 2
    s_cbranch_scc1 L_k3_up
''')
    for r in range(4): p('v_mul_f32 v%d, 0xbfb8aa3b, v%d' % (166 + r, 160 + r))
    for r in range(4): p('v_exp_f32 v%d, v%d' % (166 + r, 166 + r))
    for r in range(4): p('v_add_f32 v%d, 1.0, v%d' % (166 + r, 166 + r))
    for r in range(4): p('v_rcp_f32 v%d, v%d' % (166 + r, 166 + r))
    p('s_nop 0')
    for r in range(4): p('v_mul_f32 v%d, v%d, v%d' % (160 + r, 160 + r, 166 + r))
    p('v_cvt_pk_bf16_f32 v164, v160, v161')
    p('v_cvt_pk_bf16_f32 v165, v162, v163')
    p('''
    v_lshlrev_b32 v160, 16, v164
    v_and_b32 v161, 0xffff0000, v164
    v_lshlrev_b32 v162, 16, v165
    v_and_b32 v163, 0xffff0000, v165
L_k3_up:
    s_and_b32 s41, s3, 1
    s_lshl_b32 s41, s41, 10
    v_lshlrev_b32 v30, 4, v1
    v_add_u32 v30, s41, v30
    v_add_u32 v30, %d, v30
    s_cmp_ge_u32 s3, 2
    s_cbranch_scc0 L_k3_gate_wait
    ds_write_b128 v30, v[160:163]
L_k3_gate_wait:
    s_waitcnt lgkmcnt(0)
    s_barrier
    s_cmp_ge_u32 s3, 2
    s_cbranch_scc1 L_end_k3
    ds_read_b128 v[164:167], v30
    s_waitcnt lgkmcnt(0)
''' % (TOPK_LDS + 256))
    for r in range(4): p('v_mul_f32 v%d, v%d, v%d' % (160 + r, 160 + r, 164 + r))
    p('''
    v_cvt_pk_bf16_f32 v160, v160, v161
    v_cvt_pk_bf16_f32 v162, v162, v163
    v_lshrrev_b32 v23, 4, v1
    v_mul_u32_u24 v24, %d, v23          ; 4 rows * 3584 B
    v_and_b32 v25, 15, v1
    v_lshl_add_u32 v24, v25, 1, v24
    v_add_u32 v24, s40, v24
    v_mov_b32 v27, 0x40000000
    v_cmp_gt_u32 vcc, 32, v1
    s_nop 1
    v_cndmask_b32 v24, v27, v24, vcc
    buffer_store_short v160, v24, s[20:23], 0 offen
    buffer_store_short_d16_hi v160, v24, s[20:23], 0 offen offset:3584
    s_mov_b32 s41, 7168
    buffer_store_short v162, v24, s[20:23], s41 offen
    buffer_store_short_d16_hi v162, v24, s[20:23], s41 offen offset:3584
    s_waitcnt vmcnt(0)
L_end_k3:
    s_endpgm
''' % (4 * 3584))
    return p

def build_k4():
    p = Prog()
    p('''
k4_kernel:
    s_cmp_ge_u32 s2, 28
    s_cbranch_scc1 L_end_k4
    s_load_dwordx2 s[4:5], s[0:1], 72
    s_load_dwordx2 s[28:29], s[0:1], 96
    s_load_dwordx2 s[24:25], s[0:1], 112
    v_and_b32 v1, 63, v0
    v_lshrrev_b32 v2, 6, v0
    s_nop 0
    v_readfirstlane_b32 s3, v2
    s_waitcnt lgkmcnt(0)
''')
    p('s_mul_i32 s40, s3, %d' % (448 * 896))
    p('s_add_u32 s4, s4, s40'); p('s_addc_u32 s5, s5, 0')
    srd(p, 8, 4, 448 * 896)
    srd(p, 12, 24, 10752)
    srd(p, 16, 24, 64, str(WS_IDX))
    srd(p, 20, 24, 28672, str(WS_ACT))
    srd(p, 28, 28, 2048 * 896)
    p('''
    s_and_b32 s47, s2, 7
    s_lshr_b32 s41, s2, 3
    s_lshl_b32 s42, s47, 2
    s_mul_i32 s43, s47, 3
    s_add_u32 s43, s43, 4             ; 16 + (x-4)*3 = 3x + 4
    s_cmp_lt_u32 s47, 4
    s_cselect_b32 s47, s42, s43
    s_add_u32 s47, s47, s41           ; column block
    s_lshl_b32 s40, s47, 5              ; column byte offset
    v_lshrrev_b32 v3, 1, v1
    v_mul_u32_u24 v3, 896, v3
    v_and_b32 v4, 1, v1
    v_lshl_add_u32 v3, v4, 4, v3
    v_add_u32 v3, s40, v3
    s_mov_b32 s45, %d
    s_mul_i32 s46, s3, 14336
''' % (32 * 896))
    wstage(p, 8, 3, 14, 46)
    p(';ST 0')
    p('''
    v_and_b32 v4, 7, v1
    v_mul_u32_u24 v22, 3584, v4
    v_lshrrev_b32 v23, 4, v1
    v_lshl_add_u32 v22, v23, 4, v22
    s_mul_i32 s41, s3, 896
    v_add_u32 v22, s41, v22
''')
    for i in range(14):
        p('buffer_load_dwordx4 %s, v22, s[20:23], 0 offen offset:%d' % (vr(32 + 4 * i, 4), 64 * i))
    p('''
    v_lshrrev_b32 v23, 4, v1
    v_and_b32 v23, 1, v23
    v_lshlrev_b32 v24, 4, v23
    buffer_load_dwordx4 v[8:11], v24, s[16:19], 0 offen            ; idx[4kq..]
    buffer_load_dwordx4 v[12:15], v24, s[16:19], 0 offen offset:32 ; sig[4kq..]
    v_and_b32 v25, 15, v1
    v_lshlrev_b32 v26, 2, v25
    s_lshl_b32 s41, s47, 6
    v_add_u32 v26, s41, v26
    s_mov_b32 s42, 8960
    buffer_load_dword v16, v26, s[12:15], s42 offen                ; gb[col]
    v_lshrrev_b32 v28, 4, v1
    v_lshlrev_b32 v28, 3, v28
    v_bfe_u32 v29, v1, 2, 2
    v_add_u32 v28, v28, v29
    v_lshlrev_b32 v28, 5, v28
    v_and_b32 v29, 3, v1
    v_lshl_add_u32 v28, v29, 3, v28
    v_add_u32 v28, s46, v28
    s_waitcnt vmcnt(0)
''')
    p(';ST 1')
    for r in range(4):
        p('v_mul_u32_u24 v%d, 896, v%d' % (17 + r, 8 + r))
    p('v_lshlrev_b32 v25, 1, v25')
    p('v_add_u32 v25, s40, v25')
    for r in range(4):
        p('v_add_u32 v%d, v%d, v25' % (17 + r, 17 + r))
    for r in range(4):
        p('buffer_load_ushort v%d, v%d, s[28:31], 0 offen' % (100 + r, 17 + r))
    tr_frags(p, 28, 104, 14)
    p('s_waitcnt lgkmcnt(0)')
    p(';ST 2')
    for i in range(14):
        c = '0' if i == 0 else 'v[160:163]'
        p('v_mfma_f32_16x16x32_bf16 v[160:163], %s, %s, %s' % (vr(32 + 4 * i, 4), vr(104 + 4 * i, 4), c))
    p('s_nop 7')
    p('''
    v_lshlrev_b32 v30, 4, v1
    s_lshl_b32 s41, s3, 10
    v_add_u32 v30, s41, v30
    ds_write_b128 v30, v[160:163] offset:57344
    s_waitcnt lgkmcnt(0)
    s_barrier
    s_cmp_lg_u32 s3, 0
    s_cbranch_scc1 L_end_k4
    ds_read_b128 v[164:167], v30 offset:58368
    ds_read_b128 v[168:171], v30 offset:59392
    ds_read_b128 v[172:175], v30 offset:60416
    s_waitcnt vmcnt(0) lgkmcnt(0)
''')
    for r in range(4):
        p('v_add_f32 v%d, v%d, v%d' % (160 + r, 160 + r, 164 + r))
        p('v_add_f32 v%d, v%d, v%d' % (168 + r, 168 + r, 172 + r))
    for r in range(4):
        p('v_add_f32 v%d, v%d, v%d' % (160 + r, 160 + r, 168 + r))
    def rnd(a):
        p('v_cvt_pk_bf16_f32 v164, v%d, v%d' % (a, a + 1))
        p('v_cvt_pk_bf16_f32 v165, v%d, v%d' % (a + 2, a + 3))
        p('v_lshlrev_b32 v%d, 16, v164' % a); p('v_and_b32 v%d, 0xffff0000, v164' % (a + 1))
        p('v_lshlrev_b32 v%d, 16, v165' % (a + 2)); p('v_and_b32 v%d, 0xffff0000, v165' % (a + 3))
    rnd(160)
    for r in range(4): p('v_mul_f32 v%d, v%d, v%d' % (160 + r, 160 + r, 12 + r))
    rnd(160)
    for r in range(4):
        p('v_lshlrev_b32 v%d, 16, v%d' % (100 + r, 100 + r))
        p('v_fma_f32 v%d, v%d, v16, v%d' % (160 + r, 160 + r, 100 + r))
    p('v_cvt_pk_bf16_f32 v164, v160, v161')
    p('v_cvt_pk_bf16_f32 v165, v162, v163')
    p('''
    v_mov_b32 v27, 0x40000000
    v_cmp_gt_u32 vcc, 32, v1
    s_nop 1
''')
    for r in range(4): p('v_cndmask_b32 v%d, v27, v%d, vcc' % (17 + r, 17 + r))
    p('''
    buffer_store_short v164, v17, s[28:31], 0 offen
    buffer_store_short_d16_hi v164, v18, s[28:31], 0 offen
    buffer_store_short v165, v19, s[28:31], 0 offen
    buffer_store_short_d16_hi v165, v20, s[28:31], 0 offen
    s_waitcnt vmcnt(0)
L_end_k4:
    s_endpgm
''')
    return p


def keys_and_top8(p):
    p('v_lshlrev_b32 v6, 3, v0')
    p('v_sub_u32 v6, 2047, v6')
    for j in range(8):
        k = 8 + j
        p('v_ashrrev_i32 v16, 31, v%d' % k)
        p('v_or_b32 v16, 0x80000000, v16')
        p('v_xor_b32 v%d, v%d, v16' % (k, k))
        p('v_and_b32 v%d, 0xffff0000, v%d' % (k, k))
        p('v_subrev_u32 v17, %d, v6' % j)
        p('v_or_b32 v%d, v%d, v17' % (k, k))
    top8(p, 8, 16)

K34_FLAGS = False
def build_k34():
    p = Prog()
    p("""
k34_kernel:
    s_cmp_ge_u32 s2, 84
    s_cbranch_scc1 L_end_k34
    s_load_dwordx4 s[4:7], s[0:1], 56
    s_load_dwordx2 s[48:49], s[0:1], 72
    s_load_dwordx4 s[52:55], s[0:1], 96
    s_load_dwordx2 s[24:25], s[0:1], 112
    v_and_b32 v1, 63, v0
    v_lshrrev_b32 v2, 6, v0
    s_nop 0
    v_readfirstlane_b32 s3, v2
    v_lshlrev_b32 v5, 5, v0
    s_waitcnt lgkmcnt(0)
""")
    srd(p, 12, 24, 8192, str(WS_R))
    p('buffer_load_dwordx4 v[8:11], v5, s[12:15], 0 offen')
    p('buffer_load_dwordx4 v[12:15], v5, s[12:15], 0 offen offset:16')
    srd(p, 16, 24, 2048 * 896, str(WS_H2))
    srd(p, 20, 24, 28672, str(WS_ACT))
    srd(p, 56, 54, 256)
    p("""
    s_cmp_ge_u32 s2, 56
    s_cbranch_scc1 L_k34_down
    s_cmp_ge_u32 s3, 2
    s_cselect_b32 s4, s6, s4
    s_cselect_b32 s5, s7, s5
""")
    srd(p, 8, 4, 448 * 3584)
    p("""
    s_and_b32 s40, s2, 7
    s_mul_i32 s40, s40, 7
    s_lshr_b32 s41, s2, 3
    s_add_u32 s40, s40, s41
    s_lshl_b32 s40, s40, 6
    s_and_b32 s41, s3, 1
    s_lshl_b32 s41, s41, 5
    s_add_u32 s40, s40, s41
    v_lshrrev_b32 v3, 1, v1
    v_mul_u32_u24 v3, 3584, v3
    v_and_b32 v4, 1, v1
    v_lshl_add_u32 v3, v4, 4, v3
    v_add_u32 v3, s40, v3
    s_mov_b32 s45, %d
    s_mul_i32 s46, s3, 14336
""" % (32 * 3584))
    wstage(p, 8, 3, 14, 46)
    p('s_waitcnt vmcnt(14)')
    p(';ST 0')
    keys_and_top8(p)
    p(';ST 1')
    p("""
    v_and_b32 v20, 0xffff, v17
    v_sub_u32 v20, 2047, v20
    v_mul_u32_u24 v22, 896, v20
    v_lshrrev_b32 v23, 4, v1
    v_lshl_add_u32 v22, v23, 4, v22
""")
    for i in range(14):
        p('buffer_load_dwordx4 %s, v22, s[16:19], 0 offen offset:%d' % (vr(32 + 4 * i, 4), 64 * i))
    p("""
    v_lshrrev_b32 v28, 4, v1            ; kq
    v_lshlrev_b32 v28, 3, v28           ; 8 kq
    v_bfe_u32 v29, v1, 2, 2             ; r
    v_add_u32 v28, v28, v29
    v_lshlrev_b32 v28, 5, v28           ; row*32
    v_and_b32 v29, 3, v1
    v_lshl_add_u32 v28, v29, 3, v28
    v_add_u32 v28, s46, v28
    s_waitcnt vmcnt(14)
""")
    tr_frags(p, 28, 96, 14)
    p('s_waitcnt vmcnt(0) lgkmcnt(0)')
    p(';ST 2')
    for i in range(14):
        c = '0' if i == 0 else 'v[160:163]'
        p('v_mfma_f32_16x16x32_bf16 v[160:163], %s, %s, %s' % (vr(32 + 4 * i, 4), vr(96 + 4 * i, 4), c))
    p('s_nop 7')
    p("""
    v_cvt_pk_bf16_f32 v164, v160, v161
    v_cvt_pk_bf16_f32 v165, v162, v163
    v_lshlrev_b32 v160, 16, v164
    v_and_b32 v161, 0xffff0000, v164
    v_lshlrev_b32 v162, 16, v165
    v_and_b32 v163, 0xffff0000, v165
    s_and_b32 s41, s3, 1
    s_lshl_b32 s41, s41, 10
    v_lshlrev_b32 v30, 4, v1
    v_add_u32 v30, s41, v30
    v_add_u32 v30, %d, v30
    s_cmp_ge_u32 s3, 2
    s_cbranch_scc0 L_k34_gate
    ds_write_b128 v30, v[160:163]
    s_waitcnt lgkmcnt(0)
    s_barrier
    s_barrier
    s_branch L_st_end_k34
L_k34_gate:
""" % (TOPK_LDS + 512))
    for r in range(4): p('v_mul_f32 v%d, 0xbfb8aa3b, v%d' % (166 + r, 160 + r))
    for r in range(4): p('v_exp_f32 v%d, v%d' % (166 + r, 166 + r))
    for r in range(4): p('v_add_f32 v%d, 1.0, v%d' % (166 + r, 166 + r))
    for r in range(4): p('v_rcp_f32 v%d, v%d' % (166 + r, 166 + r))
    p('s_nop 0')
    for r in range(4): p('v_mul_f32 v%d, v%d, v%d' % (160 + r, 160 + r, 166 + r))
    p("""
    v_cvt_pk_bf16_f32 v164, v160, v161
    v_cvt_pk_bf16_f32 v165, v162, v163
    v_lshlrev_b32 v160, 16, v164
    v_and_b32 v161, 0xffff0000, v164
    v_lshlrev_b32 v162, 16, v165
    v_and_b32 v163, 0xffff0000, v165
    s_waitcnt lgkmcnt(0)
    s_barrier
    ds_read_b128 v[164:167], v30
    s_waitcnt lgkmcnt(0)
""")
    for r in range(4): p('v_mul_f32 v%d, v%d, v%d' % (160 + r, 160 + r, 164 + r))
    for r in range(4): p('v_cvt_pk_bf16_f32 v%d, v%d, 0' % (160 + r, 160 + r))
    p('s_nop 1')
    for r in range(4): p('v_mov_b32_dpp v%d, v%d quad_perm:[1,0,3,2] row_mask:0xf bank_mask:0xf' % (164 + r, 160 + r))
    for r in range(4): p('v_lshl_or_b32 v%d, v%d, 16, v%d' % (160 + r, 164 + r, 160 + r))
    p("""
    v_lshrrev_b32 v23, 4, v1
    v_mul_u32_u24 v24, %d, v23          ; 4 rows * 3584 B
    v_and_b32 v25, 15, v1
    v_lshl_add_u32 v24, v25, 1, v24
    v_add_u32 v24, s40, v24
    v_mov_b32 v27, 0x40000000
    v_and_b32 v25, 0x21, v1             ; lanes >= 32 or odd lanes do not store
    v_cmp_eq_u32 vcc, 0, v25
    s_mov_b32 s41, 7168
    s_nop 0
    v_cndmask_b32 v24, v27, v24, vcc
    buffer_store_dword v160, v24, s[20:23], 0 offen sc1
    buffer_store_dword v161, v24, s[20:23], 0 offen offset:3584 sc1
    buffer_store_dword v162, v24, s[20:23], s41 offen sc1
    buffer_store_dword v163, v24, s[20:23], s41 offen offset:3584 sc1
    s_waitcnt vmcnt(0)
    s_barrier
    s_cmp_lg_u32 s3, 0
    s_cbranch_scc1 L_st_end_k34
    ;FLAGSIG
    s_branch L_st_end_k34
""" % (4 * 3584))
    idx = [k for k, i in enumerate(p.ins) if i.text.startswith(';FLAGSIG')][0]
    if K34_FLAGS:
        sig = """
    s_lshl_b32 s41, s2, 2
    v_mov_b32 v24, s41
    v_mov_b32 v25, 1
    v_cmp_eq_u32 vcc, 0, v1
    s_and_saveexec_b64 s[42:43], vcc
    buffer_store_dword v25, v24, s[56:59], 0 offen sc1
    s_mov_b64 exec, s[42:43]
"""
    else:
        sig = """
    v_mov_b32 v24, 0
    v_mov_b32 v25, 1
    v_cmp_eq_u32 vcc, 0, v1
    s_and_saveexec_b64 s[42:43], vcc
    buffer_atomic_add v25, v24, s[56:59], 0 offen sc0 sc1
    s_waitcnt vmcnt(0)
    v_readfirstlane_b32 s41, v25
    s_cmp_eq_u32 s41, 55
    s_cbranch_scc0 L_k34_notlast
    v_mov_b32 v25, 1
    buffer_store_dword v25, v24, s[56:59], 0 offen offset:128 sc1
L_k34_notlast:
    s_mov_b64 exec, s[42:43]
"""
    t = Prog(); t(sig)
    p.ins[idx:idx + 1] = t.ins
    p('L_k34_down:')
    p('s_sub_u32 s39, s2, 56')
    p('s_mul_i32 s40, s3, %d' % (448 * 896))
    p('s_add_u32 s48, s48, s40'); p('s_addc_u32 s49, s49, 0')
    srd(p, 8, 48, 448 * 896)
    srd(p, 60, 24, 10752)
    srd(p, 28, 52, 2048 * 896)
    p("""
    s_and_b32 s47, s39, 7
    s_lshr_b32 s41, s39, 3
    s_lshl_b32 s42, s47, 2
    s_mul_i32 s43, s47, 3
    s_add_u32 s43, s43, 4
    s_cmp_lt_u32 s47, 4
    s_cselect_b32 s47, s42, s43
    s_add_u32 s47, s47, s41           ; column block
    s_lshl_b32 s40, s47, 5              ; column byte offset
    v_lshrrev_b32 v3, 1, v1
    v_mul_u32_u24 v3, 896, v3
    v_and_b32 v4, 1, v1
    v_lshl_add_u32 v3, v4, 4, v3
    v_add_u32 v3, s40, v3
    s_mov_b32 s45, %d
    s_mul_i32 s46, s3, 14336
    v_and_b32 v25, 15, v1
    v_lshlrev_b32 v26, 2, v25
    s_lshl_b32 s41, s47, 6
    v_add_u32 v26, s41, v26
    s_mov_b32 s42, 8960
    buffer_load_dword v31, v26, s[60:63], s42 offen                ; gb[col]
""" % (32 * 896))
    wstage(p, 8, 3, 14, 46)
    p('s_waitcnt vmcnt(15)')
    keys_and_top8(p)
    p(';ST 0')
    p("""
    v_lshrrev_b32 v23, 4, v1
    v_and_b32 v23, 1, v23
    v_lshlrev_b32 v24, 4, v23
""")
    for r in range(4):
        p('v_add_u32 v21, %d, v24' % (4 * r))
        p('ds_bpermute_b32 v%d, v21, v17' % (8 + r))
    p('s_waitcnt lgkmcnt(0)')
    for r in range(4):
        k = 8 + r
        p('v_and_b32 v%d, 0xffff, v%d' % (17 + r if r else 18, k) if False else 'v_and_b32 v%d, 0xffff, v%d' % (100 + r, k))
        p('v_sub_u32 v%d, 2047, v%d' % (100 + r, 100 + r))
        p('v_mul_u32_u24 v%d, 896, v%d' % (104 + r, 100 + r))
    p('v_lshlrev_b32 v25, 1, v25')
    p('v_add_u32 v25, s40, v25')
    for r in range(4):
        p('v_add_u32 v%d, v%d, v25' % (104 + r, 104 + r))
    for r in range(4):
        p('buffer_load_ushort v%d, v%d, s[28:31], 0 offen' % (108 + r, 104 + r))
    for r in range(4):
        k = 8 + r
        p('v_and_b32 v%d, 0xffff0000, v%d' % (k, k))
        p('v_ashrrev_i32 v16, 31, v%d' % k)
        p('v_not_b32 v16, v16')
        p('v_or_b32 v16, 0x80000000, v16')
        p('v_xor_b32 v%d, v%d, v16' % (k, k))
        p('v_and_b32 v%d, 0xffff0000, v%d' % (k, k))
        p('v_mul_f32 v%d, 0xbfb8aa3b, v%d' % (12 + r, k))
    for r in range(4): p('v_exp_f32 v%d, v%d' % (12 + r, 12 + r))
    p('s_nop 0')
    for r in range(4): p('v_add_f32 v%d, 1.0, v%d' % (12 + r, 12 + r))
    for r in range(4): p('v_rcp_f32 v%d, v%d' % (12 + r, 12 + r))
    p('s_nop 0')
    for r in range(4): p('v_cvt_pk_bf16_f32 v%d, v%d, 0' % (12 + r, 12 + r))
    for r in range(4): p('v_lshlrev_b32 v%d, 16, v%d' % (12 + r, 12 + r))
    p("""
    v_lshrrev_b32 v28, 4, v1
    v_lshlrev_b32 v28, 3, v28
    v_bfe_u32 v29, v1, 2, 2
    v_add_u32 v28, v28, v29
    v_lshlrev_b32 v28, 5, v28
    v_and_b32 v29, 3, v1
    v_lshl_add_u32 v28, v29, 3, v28
    v_add_u32 v28, s46, v28
    v_and_b32 v4, 7, v1
    v_mul_u32_u24 v22, 3584, v4
    v_lshrrev_b32 v23, 4, v1
    v_lshl_add_u32 v22, v23, 4, v22
    s_mul_i32 s41, s3, 896
    v_add_u32 v22, s41, v22
    s_waitcnt vmcnt(4)
""")
    tr_frags(p, 28, 112, 14)
    p(';ST 1')
    p("""
    s_cmp_lg_u32 s3, 0
    s_cbranch_scc1 L_k34_polled
    ;POLL
L_k34_polled:
    s_barrier
""")
    idx = [k for k, i in enumerate(p.ins) if i.text.startswith(';POLL')][0]
    if K34_FLAGS:
        pl = """
    v_lshlrev_b32 v21, 2, v1
    s_mov_b32 s42, -1
    s_mov_b32 s43, 0x00ffffff
L_k34_poll:
    buffer_load_dword v23, v21, s[56:59], 0 offen sc1
    s_waitcnt vmcnt(0)
    v_cmp_eq_u32 vcc, 1, v23
    s_nop 0
    s_and_b64 vcc, vcc, s[42:43]
    s_cmp_eq_u64 vcc, s[42:43]
    s_cbranch_scc1 L_k34_polled
    s_sleep 4
    s_branch L_k34_poll
"""
    else:
        pl = """
    v_mov_b32 v21, 0
L_k34_poll:
    buffer_load_dword v23, v21, s[56:59], 0 offen offset:128 sc1
    s_waitcnt vmcnt(0)
    v_readfirstlane_b32 s41, v23
    s_cmp_eq_u32 s41, 1
    s_cbranch_scc1 L_k34_polled
    s_sleep 4
    s_branch L_k34_poll
"""
    t = Prog(); t(pl)
    p.ins[idx:idx + 1] = t.ins
    p(';ST 2')
    for i in range(14):
        p('buffer_load_dwordx4 %s, v22, s[20:23], 0 offen offset:%d sc1' % (vr(32 + 4 * i, 4), 64 * i))
    p('s_waitcnt vmcnt(0) lgkmcnt(0)')
    for i in range(14):
        c = '0' if i == 0 else 'v[172:175]'
        p('v_mfma_f32_16x16x32_bf16 v[172:175], %s, %s, %s' % (vr(32 + 4 * i, 4), vr(112 + 4 * i, 4), c))
    p('s_nop 7')
    p("""
    v_lshlrev_b32 v30, 4, v1
    s_lshl_b32 s41, s3, 10
    v_add_u32 v30, s41, v30
    ds_write_b128 v30, v[172:175] offset:%d
    s_waitcnt lgkmcnt(0)
    s_barrier
    s_cmp_lg_u32 s3, 0
    s_cbranch_scc1 L_st_end_k34
    ds_read_b128 v[176:179], v30 offset:%d
    ds_read_b128 v[180:183], v30 offset:%d
    ds_read_b128 v[184:187], v30 offset:%d
    s_waitcnt lgkmcnt(0)
""" % (TOPK_LDS + 1024, TOPK_LDS + 2048, TOPK_LDS + 3072, TOPK_LDS + 4096))
    Y = 172
    for r in range(4):
        p('v_add_f32 v%d, v%d, v%d' % (Y + r, Y + r, 176 + r))
        p('v_add_f32 v%d, v%d, v%d' % (180 + r, 180 + r, 184 + r))
    for r in range(4):
        p('v_add_f32 v%d, v%d, v%d' % (Y + r, Y + r, 180 + r))
    def rnd(a):
        p('v_cvt_pk_bf16_f32 v188, v%d, v%d' % (a, a + 1))
        p('v_cvt_pk_bf16_f32 v189, v%d, v%d' % (a + 2, a + 3))
        p('v_lshlrev_b32 v%d, 16, v188' % a); p('v_and_b32 v%d, 0xffff0000, v188' % (a + 1))
        p('v_lshlrev_b32 v%d, 16, v189' % (a + 2)); p('v_and_b32 v%d, 0xffff0000, v189' % (a + 3))
    rnd(Y)
    for r in range(4): p('v_mul_f32 v%d, v%d, v%d' % (Y + r, Y + r, 12 + r))
    rnd(Y)
    for r in range(4):
        p('v_lshlrev_b32 v%d, 16, v%d' % (108 + r, 108 + r))
        p('v_fma_f32 v%d, v%d, v31, v%d' % (Y + r, Y + r, 108 + r))
    p('v_cvt_pk_bf16_f32 v188, v%d, v%d' % (Y, Y + 1))
    p('v_cvt_pk_bf16_f32 v189, v%d, v%d' % (Y + 2, Y + 3))
    p("""
    v_mov_b32 v27, 0x40000000
    v_cmp_gt_u32 vcc, 32, v1
    s_nop 1
""")
    for r in range(4): p('v_cndmask_b32 v%d, v27, v%d, vcc' % (104 + r, 104 + r))
    p("""
    buffer_store_short v188, v104, s[28:31], 0 offen
    buffer_store_short_d16_hi v188, v105, s[28:31], 0 offen
    buffer_store_short v189, v106, s[28:31], 0 offen
    buffer_store_short_d16_hi v189, v107, s[28:31], 0 offen
L_st_end_k34:
L_end_k34:
    s_endpgm
""")
    return p
```

```python
import sys
from asmlib import *
import gen_attn2 as A
import k1, ksmall
def add_stamps(p, k):
    kid = int(k[1])
    q = Prog()
    for j, i in enumerate(p.ins):
        if i.kind == 'branch' and 'L_st_end_' in i.text: p.ins[j] = I(i.text.replace('L_st_end_', 'L_end_'))
    for i in p.ins:
        if i.text.startswith(';ST '):
            n = int(i.text.split()[1])
            q('s_memrealtime s[%d:%d]' % (80 + 2 * n, 81 + 2 * n))
            q('s_waitcnt lgkmcnt(0)')
            continue
        if i.kind == 'label' and i.text.startswith('L_end_'):
            q('L_st_%s:' % k)
            q("""
    s_memrealtime s[94:95]
    s_load_dwordx2 s[88:89], s[0:1], 112
    s_waitcnt lgkmcnt(0)
    s_mov_b32 s90, 0x10000000
    s_mov_b32 s91, 0x20000
    s_lshl_b32 s3, s2, 5
    s_add_u32 s3, s3, %d
    v_mov_b32 v2, s92
    v_mov_b32 v3, s94
    v_mov_b32 v4, s80
    v_mov_b32 v5, s82
    v_mov_b32 v6, s84
    v_mov_b32 v7, s86
    v_mov_b32 v1, s3
    v_cmp_eq_u32 vcc, 0, v255
    s_and_saveexec_b64 s[4:5], vcc
    s_cbranch_execz L_stx_%s
    buffer_store_dwordx4 v[2:5], v1, s[88:91], 0 offen
    buffer_store_dwordx2 v[6:7], v1, s[88:91], 0 offen offset:16
L_stx_%s:
    s_mov_b64 exec, s[4:5]
    s_waitcnt vmcnt(0)
""" % (0xb000000 + kid * 0x10000, k, k))
        q.ins.append(i)
        if i.kind == 'label' and i.text.endswith('_kernel:'):
            q('s_memrealtime s[92:93]')
            q('v_mov_b32 v255, v0')
    n = 0
    for j, i in enumerate(q.ins):
        if i.kind == 'branch' and 'L_end_' in i.text:
            n += 1
            if n > 1: q.ins[j] = I(i.text.replace('L_end_' + k, 'L_st_' + k))
    return q
def build(o, list_k=('k1', 'k2', 'k34')):
    parts = []
    probs = []
    kernels = {'k0': (ksmall.build_k0, 42, 1024, 128), 'k1': (None, 256, 163840, 512), 'k2': (ksmall.build_k2, 256, 0, 256),
               'k3': (ksmall.build_k3, 56, 57344 + 256 + 2048 + 256, 256), 'k4': (ksmall.build_k4, 28, 57344 + 4096, 256),
               'k34': (ksmall.build_k34, 84, 57344 + 5120 + 256, 256)}
    hdr = ''
    for k in list_k:
        hdr += '; @launch kernel=%s_kernel grid=(%d,1,1) block=(256,1,1) lds=%d\n' % (k, kernels[k][1], kernels[k][2])
    hdr += '.amdgcn_target "amdgcn-amd-amdhsa--gfx950"\n.text\n'
    body = ''; kd = ''
    for k in dict.fromkeys(list_k):
        if k == 'k1':
            p, pr = k1.build_k1(o)
        else:
            p = kernels[k][0](); pr = check_hazards(p.ins, k)
        probs += pr
        if getattr(o, 'kst', 0) and k != 'k1':
            p = add_stamps(p, k)
        body += '.globl %s_kernel\n.p2align 8\n.type %s_kernel,@function\n' % (k, k) + p.text()
        nv = 256 if (getattr(o, 'kst', 0) and k != 'k1') else kernels[k][3]
        kd += '.p2align 6' + k1.KD % ('%s_kernel' % k, nv, 102 if k == 'k1' else 96, min(nv, 256))
    return hdr + body + '.section .rodata,"a"\n' + kd, probs
if __name__ == '__main__':
    o = A.Opt()
    o.kgap = 1
    o.dma_gaps = [3, 7, 11, 15, 19, 23, 27, 31, 35, 39, 43, 47, 51, 55, 59, 63]
    o.stamps = 0; o.pf = 1; o.pfd = 4; o.pfmoe = 1; o.pf_kv_early = 0; o.late_dma = 0; o.qcvt = 1; o.fuse_k2 = 1; o.kdma_late = 0; o.part_flags = ' sc1'
    out = sys.argv[1]
    for kv in sys.argv[2:]:
        k, v = kv.split('=')
        try: v = int(v, 0)
        except ValueError:
            if v.startswith('['): v = eval(v)
        setattr(o, k, v)
    ksmall.K2_OUT_FLAGS = getattr(o, 'k2flags', '')
    txt, probs = build(o, ('k1', 'k34') if o.fuse_k2 else ('k1', 'k2', 'k34'))
    for pr in probs[:20]: print(pr)
    print('hazards', len(probs), 'bytes', len(txt))
    open(out, 'w').write(txt)
```

```python
from asmlib import *
import gen_attn2 as A
from gen_attn2 import (vr, ar, BLK, HALF, KBUF, VBASE, SREG, PBUF, NEGM, FR, VK, VV, VOFF, LREG, TMP, VLANE,
                       S_K0, S_K1, S_V0, S_V1, S_DST, S_THR, S_RET, S_CNT, S_W, S_96, S, frag, kread, vread, qk_list, exps, dma,
                       max8, lreg)

WS_MOD = 0
WS_R = 0x4000
WS_IDX = 0x8000
WS_ACT = 0x10000
WS_H2 = 0x100000
WS_PART = 0x400000
WS_CNT = 0x20000
WS_STAMP = 0xa000000

H_OFF = 0
MV_OFF = 57344
QSLOT = [98304, 131072, 65536, 32768]
QX = 67584
XR = 0
ST = 131072
WO0 = 135168

S_G, S_QB, S_S, S_QH = 36, 37, 38, 39
S_X = 40
S_WQ = 44
S_WO = 48
S_SO = 52
S_T0, S_T1, S_T2, S_T3 = 60, 61, 62, 63
S_QD = 64
S_QD2 = 32
S_WST = 65
S_PART = 68
S_STAMP = 72

class VmTracker:
    def __init__(self): self.ops = []
    def add(self, tag): self.ops.append(tag)
    def wait(self, tag):
        idx = max(i for i, t in enumerate(self.ops) if t == tag)
        n = len(self.ops) - 1 - idx
        assert n <= 63
        return 's_waitcnt vmcnt(%d)' % n

STAMPS = {1: ['start', 'ln_done', 'qproj', 'qexch', 'attnpro', 'loop', 'oproj', 'end'],
          2: ['start', 'xwait', 'stats', 'modbar', 'hbar', 'ln_done', 'qproj', 'end'],
          4: ['start', 'p_w', 'p_bar', 'p_st', 'stats', 'poll_done', 'modbar', 'end'],
          5: ['start', 'oproj', 'stores', 'drain', 'grp', 'k2ld', 'k2m', 'end'],
          3: ['start', 'loop', 'e1bar', 'comb', 'e3bar', 'oproj', 'stores', 'end']}
def stamp(p, o, name):
    if o.stamps and name in STAMPS[o.stamps]:
        k = STAMPS[o.stamps].index(name)
        p('s_memrealtime s[%d:%d]' % (S_STAMP + 2 * k, S_STAMP + 2 * k + 1))
        if name in ('xwait', 'stats', 'modbar', 'hbar', 'e1bar', 'comb', 'e3bar', 'p_w', 'p_bar', 'p_st', 'poll_done'): p('s_waitcnt lgkmcnt(0)')

def xreduce(p, r, t, op='v_add_f32'):
    p('v_mov_b32 v%d, v%d' % (t, r))
    p('s_nop 1')
    p('v_permlane16_swap_b32 v%d, v%d' % (r, t))
    p('s_nop 1')
    p('%s v%d, v%d, v%d' % (op, r, r, t))
    p('v_mov_b32 v%d, v%d' % (t, r))
    p('s_nop 1')
    p('v_permlane32_swap_b32 v%d, v%d' % (r, t))
    p('s_nop 1')
    p('%s v%d, v%d, v%d' % (op, r, r, t))

def wq_dma(step, vm, VQ):
    out = []
    slot = QSLOT[step % 4]
    for jj in range(8):
        if jj % 4 == 0:
            out.append('s_add_u32 m0, s%d, %d' % (S_QD2, slot + jj * 1024))
        out.append(('buffer_load_dwordx4 v%d, s[%d:%d], s%d offen offset:%d lds' % (VQ[(jj >> 1) & 1], S_WQ, S_WQ + 3, S_SO + jj, (jj & 3) * 1024), 'wq%d' % step))
    return out

def emit_dma(p, lst, vm, nop=True):
    for s in lst:
        if isinstance(s, tuple):
            p(s[0]); vm.add(s[1])
        else:
            p(s)
            if nop and s.startswith('s_') and 'm0' in s: p('s_nop 0')

def mod_producer(o, p, xloads):
    C0, W0, HI, ACC, TT = 168, 76, 132, 148, 156
    for i in range(14):
        if i % 2 == 0: p('v_lshlrev_b32 v%d, 16, v%d' % (C0 + i, 60 + i // 2))
        else: p('v_and_b32 v%d, 0xffff0000, v%d' % (C0 + i, 60 + i // 2))
    for i in range(14): p('v_mul_f32 v%d, 0xbfb8aa3b, v%d' % (HI + i, C0 + i))
    for i in range(14): p('v_exp_f32 v%d, v%d' % (HI + i, HI + i))
    for i in range(14): p('v_add_f32 v%d, 1.0, v%d' % (HI + i, HI + i))
    for i in range(14): p('v_rcp_f32 v%d, v%d' % (HI + i, HI + i))
    for i in range(14): p('v_mul_f32 v%d, v%d, v%d' % (C0 + i, C0 + i, HI + i))
    for i in range(14): p('v_cvt_pk_bf16_f32 v%d, v%d, 0' % (C0 + i, C0 + i))
    for i in range(14): p('v_lshlrev_b32 v%d, 16, v%d' % (HI + i, C0 + i))
    for j in range(8): p('v_mov_b32 v%d, 0' % (ACC + j))
    p('s_waitcnt vmcnt(0)')
    stamp(p, o, 'p_w')
    p('s_cmp_eq_u32 s%d, 0' % S_W)
    p('s_cbranch_scc1 L_prod_nox1')
    xloads()
    p('L_prod_nox1:')
    for i in range(14):
        for j in range(8):
            w = W0 + 4 * i + j // 2
            sel = (C0 + i) if j % 2 == 0 else (HI + i)
            p('v_dot2_f32_bf16 v%d, v%d, v%d, v%d' % (ACC + j, w, sel, ACC + j))
    p('s_nop 2')
    regs = [ACC + j for j in range(8)]; temps = [TT + j for j in range(8)]
    for r in regs:
        p('v_add_f32_dpp v%d, v%d, v%d row_ror:8 row_mask:0xf bank_mask:0xf' % (r, r, r))
    for sw in ('v_permlane16_swap_b32', 'v_permlane32_swap_b32'):
        for r, t in zip(regs, temps): p('v_mov_b32 v%d, v%d' % (t, r))
        p('s_nop 1')
        for r, t in zip(regs, temps): p('%s v%d, v%d' % (sw, r, t))
        p('s_nop 1')
        for r, t in zip(regs, temps): p('v_add_f32 v%d, v%d, v%d' % (r, r, t))
    p("""
    v_and_b32 v164, 7, v%d
    s_lshl_b32 s60, s%d, 8
    v_lshlrev_b32 v164, 5, v164
    v_add_u32 v164, s60, v164
    ds_write_b128 v164, v[148:151] offset:%d
    ds_write_b128 v164, v[152:155] offset:%d
    s_waitcnt lgkmcnt(0)
    s_barrier
    ;STAMP p_bar
    s_cmp_lg_u32 s%d, 0
    s_cbranch_scc1 L_prod_done
    v_lshlrev_b32 v164, 2, v%d
    ds_read_b32 v165, v164 offset:%d
    ds_read_b32 v166, v164 offset:%d
    ds_read_b32 v167, v164 offset:%d
    ds_read_b32 v168, v164 offset:%d
    s_mul_i32 s60, s2, 37
    s_lshr_b32 s60, s60, 8          ; segment = wg / 7
    s_waitcnt lgkmcnt(0)
    v_add_f32 v165, v165, v166
    v_add_f32 v167, v167, v168
    v_add_f32 v165, v165, v167
    v_cvt_pk_bf16_f32 v165, v165, 0
    v_lshlrev_b32 v165, 16, v165
    s_cmp_eq_u32 s60, 1
    s_cselect_b32 s61, 1, 0
    s_cmp_eq_u32 s60, 4
    s_cselect_b32 s61, 1, s61
    s_cmp_eq_u32 s61, 0
    s_cbranch_scc1 L_prod_noone
    v_add_f32 v165, 1.0, v165
    v_cvt_pk_bf16_f32 v165, v165, 0
    v_lshlrev_b32 v165, 16, v165
L_prod_noone:
    s_cmp_lt_u32 s60, 2
    s_cbranch_scc0 L_prod_noscale
    v_mul_f32 v165, 0x3db8aa3b, v165      ; fold log2(e)/16 of the attention scores into sa and (1+ca)
L_prod_noscale:
    s_lshl_b32 s61, s2, 8
    v_add_u32 v164, s61, v164
    buffer_store_dword v165, v164, s[24:27], 0 offen sc1
    ;ZEROCNT
    s_waitcnt vmcnt(0)
    ;STAMP p_st
    v_mov_b32 v165, 1
    v_mov_b32 v164, 0
    v_cmp_eq_u32 vcc, 0, v%d
    s_and_saveexec_b64 s[62:63], vcc
    s_cmp_lt_u32 s60, 2
    s_cbranch_scc1 L_prod_urgent
    buffer_atomic_add v165, v164, s[88:91], 0 offen offset:64 sc1      ; ga/sb/cb/gb producers: second counter
    s_branch L_prod_notlast
L_prod_urgent:
    buffer_atomic_add v165, v164, s[88:91], 0 offen sc0 sc1
    s_waitcnt vmcnt(0)
    v_readfirstlane_b32 s60, v165
    s_cmp_eq_u32 s60, 13
    s_cbranch_scc0 L_prod_notlast
    v_mov_b32 v165, 1
    buffer_store_dword v165, v164, s[88:91], 0 offen offset:128 sc1
L_prod_notlast:
    s_mov_b64 exec, s[62:63]
L_prod_done:
""" % (VLANE, S_W, MV_OFF + 4096, MV_OFF + 4096 + 16, S_W, VLANE, MV_OFF + 4096, MV_OFF + 4096 + 256, MV_OFF + 4096 + 512, MV_OFF + 4096 + 768, VLANE))

def prologue(o):
    p = Prog()
    L = VLANE
    vm = VmTracker()
    p("""
    s_cmp_ge_u32 s2, 256
    s_cbranch_scc1 L_end_k1
    s_load_dwordx2 s[40:41], s[0:1], 0
    s_load_dwordx4 s[4:7], s[0:1], 8
    s_load_dwordx4 s[44:47], s[0:1], 24
    s_load_dwordx4 s[64:67], s[0:1], 80
    s_load_dwordx4 s[88:91], s[0:1], 104
    s_load_dwordx4 s[96:99], s[0:1], 56
    s_load_dwordx2 s[100:101], s[0:1], 72
    v_lshrrev_b32 v1, 6, v0
    v_and_b32 v%d, 63, v0
    s_nop 0
    v_readfirstlane_b32 s%d, v1
    ;MAP
    s_lshr_b32 s%d, s%d, 1        ; s (key half)
    s_and_b32 s%d, s%d, 1         ; qh
""" % (L, S_W, S_S, S_W, S_QH, S_W))
    idx = [k for k, i in enumerate(p.ins) if i.text.startswith(';MAP')][0]
    if getattr(o, 'scramble', 0):
        p.ins[idx:idx + 1] = [I('s_lshr_b32 s%d, s2, 5' % S_G), I('s_and_b32 s%d, s2, 31' % S_QB)]
    else:
        p.ins[idx:idx + 1] = [I('s_and_b32 s%d, s2, 7' % S_G), I('s_lshr_b32 s%d, s2, 3' % S_QB)]
    if o.stamps:
        p('s_memrealtime s[%d:%d]' % (S_STAMP, S_STAMP + 1))
    p("""
    v_and_b32 v200, 15, v%d           ; n
    v_lshrrev_b32 v201, 4, v%d        ; kq
    s_lshl_b32 s60, s%d, 4
    v_add_u32 v202, s60, v200
    v_mul_u32_u24 v202, 896, v202
    v_lshl_add_u32 v202, v201, 4, v202
    s_mul_i32 s60, s%d, 57344
    s_waitcnt lgkmcnt(0)
    s_mov_b32 s24, s90
    s_mov_b32 s25, s91
    s_mov_b32 s26, 0x10000000
    s_mov_b32 s27, 0x20000
    s_mov_b32 s90, 256
    s_mov_b32 s91, 0x20000
    s_add_u32 s40, s40, s60
    s_addc_u32 s41, s41, 0
    s_mov_b32 s42, 57344
    s_mov_b32 s43, 0x20000
""" % (L, L, S_W, S_QB))
    p("""
    s_cmp_ge_u32 s2, 42
    s_cbranch_scc1 L_noprod_a
    s_mov_b32 s68, s64
    s_mov_b32 s69, s65
    s_mov_b32 s70, 896
    s_mov_b32 s71, 0x20000
    s_mov_b32 s64, s66
    s_mov_b32 s65, s67
    s_mov_b32 s66, %d
    s_mov_b32 s67, 0x20000
    v_and_b32 v206, 7, v0
    v_lshrrev_b32 v207, 3, v0          ; kg : rows 14 kg .. 14 kg + 13
    v_mul_u32_u24 v208, %d, v207
    v_lshl_add_u32 v208, v206, 4, v208
    s_lshl_b32 s60, s2, 7
    v_add_u32 v208, s60, v208
    v_mul_u32_u24 v209, 28, v207
""" % (448 * 5376, 14 * 5376))
    p('s_cmp_lg_u32 s%d, 0' % S_W)
    p('s_cbranch_scc1 L_prod_nox0')
    for ks in range(14):
        p('buffer_load_dwordx4 %s, v202, s[40:43], 0 offen offset:%d' % (vr(4 * ks, 4), ks * 64))
    p('L_prod_nox0:')
    p('buffer_load_dwordx4 v[60:63], v209, s[68:71], 0 offen')
    p('buffer_load_dwordx3 v[64:66], v209, s[68:71], 0 offen offset:16')
    p('s_mov_b32 s60, 5376')
    for i in range(14):
        p('buffer_load_dwordx4 %s, v208, s[64:67], 0 offen' % vr(76 + 4 * i, 4))
        if i < 13: p('v_add_u32 v208, s60, v208')
    p('s_waitcnt vmcnt(14)')
    mod_producer(o, p, lambda: [p('buffer_load_dwordx4 %s, v202, s[40:43], 0 offen offset:%d' % (vr(4 * ks, 4), ks * 64)) for ks in range(14)])
    p('s_branch L_noprod_b')
    p('L_noprod_a:')
    for ks in range(14):
        p('buffer_load_dwordx4 %s, v202, s[40:43], 0 offen offset:%d' % (vr(4 * ks, 4), ks * 64)); vm.add('x')
    p('L_noprod_b:')
    p("""
    s_mov_b32 s48, s46
    s_mov_b32 s49, s47
    s_mul_i32 s60, s%d, 458752
    s_add_u32 s48, s48, s60
    s_addc_u32 s49, s49, 0
    s_mov_b32 s50, 458752
    s_mov_b32 s51, 0x20000
    s_lshl_b32 s60, s%d, 10
    s_add_u32 s44, s44, s60
    s_addc_u32 s45, s45, 0
    s_sub_u32 s46, 3670016, s60
    s_mov_b32 s47, 0x20000
""" % (S_G, S_G))
    if o.pf:
        D = o.pfd
        p("""
    s_lshl_b32 s60, s%d, 20
    s_cmp_lt_u32 s%d, 16
    s_cselect_b32 s92, s4, s6
    s_cselect_b32 s93, s5, s7
    s_add_u32 s92, s92, s60
    s_addc_u32 s93, s93, 0
    s_mov_b32 s94, 0x100000
    s_mov_b32 s95, 0x20000
    s_and_b32 s60, s%d, 15
    s_lshl_b32 s60, s60, 4
    s_lshl_b32 s61, s%d, 2
    s_add_u32 s60, s60, s61            ; line0 = (qb&15)*16 + w*4
    v_and_b32 v206, 3, v%d
    v_add_u32 v206, s60, v206
    v_lshlrev_b32 v206, 7, v206        ; line*128
    v_lshrrev_b32 v207, 2, v%d         ; tile = lane>>2
    v_lshl_add_u32 v207, v207, 15, v206
    v_mov_b32 v208, 0x40000000
    v_cmp_gt_u32 vcc, %d, v%d
    s_nop 1
    v_cndmask_b32 v207, v208, v207, vcc
    v_cmp_gt_u32 vcc, 4, v%d
    v_add_u32 v206, %d, v206
    s_nop 0
    v_cndmask_b32 v%d, v208, v206, vcc
""" % (S_G, S_QB, S_QB, S_W, L, L, 4 * D, L, L, D * 32768, A.VPFA))
        p("""
    s_mul_i32 s60, s%d, 112
    s_mul_i32 s61, s%d, 28
    s_add_u32 s60, s60, s61
    v_add_u32 v206, s60, v%d
    v_lshrrev_b32 v209, 3, v206
    v_lshlrev_b32 v209, 13, v209
    v_and_b32 v210, 7, v206
    v_lshl_add_u32 v209, v210, 7, v209
    v_lshlrev_b32 v206, 7, v206        ; wo prefetch offset = L*128
    v_cmp_gt_u32 vcc, 28, v%d
    s_nop 1
    v_cndmask_b32 v209, v208, v209, vcc
    v_cndmask_b32 v242, v208, v206, vcc
    v_mov_b32 v240, v209
    v_mov_b32 v241, v207
""" % (S_QB, S_W, L, L))
        p("""
    s_mul_i32 s60, s2, 49
    s_mul_i32 s61, s%d, 13
    s_add_u32 s60, s60, s61
    v_add_u32 v206, s60, v%d
    v_min_u32 v206, 12543, v206
    v_lshlrev_b32 v243, 7, v206
""" % (S_W, L))
    VQ = (204, 205)
    p("""
    v_lshlrev_b32 v206, 1, v201       ; 2*rr
    v_xor_b32 v206, v206, v200        ; slot ^ 2rr
    v_lshlrev_b32 v206, 4, v206
    v_lshl_add_u32 v206, v201, 13, v206
    s_lshl_b32 s60, s%d, 8
    v_add_u32 v204, s60, v206
    v_xor_b32 v205, 0x80, v204
    s_lshl_b32 s%d, s%d, 13
""" % (S_W, S_QD2, S_W))
    for jj in range(8):
        p('s_mov_b32 s%d, %d' % (S_SO + jj, jj * 32768 - (jj & 3) * 1024))
    p("""
    s_lshl_b32 s60, s%d, 20
    s_add_u32 s8, s4, s60
    s_addc_u32 s9, s5, 0
    s_sub_u32 s8, s8, 96
    s_subb_u32 s9, s9, 0
    s_mov_b32 s10, %d
    s_mov_b32 s11, 0x20000
    s_add_u32 s12, s8, 4096
    s_addc_u32 s13, s9, 0
    s_mov_b32 s14, %d
    s_mov_b32 s15, 0x20000
    s_add_u32 s16, s6, s60
    s_addc_u32 s17, s7, 0
    s_sub_u32 s16, s16, 96
    s_subb_u32 s17, s17, 0
    s_mov_b32 s18, %d
    s_mov_b32 s19, 0x20000
    s_add_u32 s20, s16, 4096
    s_addc_u32 s21, s17, 0
    s_mov_b32 s22, %d
    s_mov_b32 s23, 0x20000
    s_mov_b32 s%d, 96
    s_mul_i32 s61, s%d, %d
    s_mul_i32 s62, s%d, %d
    s_add_u32 s%d, s61, s62       ; LDS DMA dest base for K/V
    s_mov_b32 s%d, 0x%x
""" % (S_G, (1 << 20) + 96, (1 << 20) + 96 - 4096, (1 << 20) + 96, (1 << 20) + 96 - 4096, S_96, S_S, HALF, S_QH, 8 * BLK, S_DST, S_THR, o.thr))
    XC = 56
    ONE = 210; SELLO = 211; SELHI = 212; ACC = 214
    p('v_mov_b32 v%d, 0x3f803f80' % ONE)
    p('v_mov_b32 v%d, 0x00003f80' % SELLO)
    p('v_mov_b32 v%d, 0x3f800000' % SELHI)
    for i in range(4): p('v_mov_b32 v%d, 0' % (ACC + i))
    p(vm.wait('x'))
    stamp(p, o, 'xwait')
    if o.pf:
        p('buffer_load_dword v253, v240, s[44:47], 0 offen'); vm.add('pf')
    dmas = []
    for st in range(3):
        dmas += wq_dma(st, vm, VQ)
        dmas += ['v_add_u32 v204, 0x40000, v204', 'v_add_u32 v205, 0x40000, v205']
    valu = []
    for i in range(56):
        valu.append('v_dot2_f32_bf16 v%d, v%d, v%d, v%d' % (ACC + i % 4, i, ONE, ACC + i % 4))
    r = Prog()
    r('s_nop 2')
    r('v_add_f32 v%d, v%d, v%d' % (ACC, ACC, ACC + 1))
    r('v_add_f32 v%d, v%d, v%d' % (ACC + 2, ACC + 2, ACC + 3))
    r('v_add_f32 v%d, v%d, v%d' % (ACC, ACC, ACC + 2))
    xreduce(r, ACC, ACC + 1)
    r('v_mul_f32 v%d, 0x%x, v%d' % (ACC, 0xbb124925, ACC))
    valu.append([i.text for i in r.ins])
    for i in range(56):
        valu.append('v_dot2_f32_bf16 v%d, v%d, v%d, v%d' % (XC + 2 * i, i, SELLO, ACC))
        valu.append('v_dot2_f32_bf16 v%d, v%d, v%d, v%d' % (XC + 2 * i + 1, i, SELHI, ACC))
    V2 = 216
    valu.append(['v_mov_b32 v%d, 0' % (V2 + i) for i in range(4)])
    for i in range(56):
        a_ = V2 + 2 * (i % 2)
        valu.append('v_pk_fma_f32 %s, %s, %s, %s' % (vr(a_, 2), vr(XC + 2 * i, 2), vr(XC + 2 * i, 2), vr(a_, 2)))
    late = dmas if o.late_dma else []
    if o.late_dma: dmas = []
    di = 0
    for k, v in enumerate(valu):
        if isinstance(v, list):
            for x in v: p(x)
        else: p(v)
        if k % 6 == 5 and di < len(dmas):
            while di < len(dmas):
                d = dmas[di]; di += 1
                if isinstance(d, tuple):
                    p(d[0]); vm.add(d[1]); break
                p(d)
                if 'm0' in d:
                    p('s_nop 0')
    while di < len(dmas):
        d = dmas[di]; di += 1
        if isinstance(d, tuple): p(d[0]); vm.add(d[1])
        else:
            p(d)
            if 'm0' in d: p('s_nop 0')
    p('v_add_f32 v%d, v%d, v%d' % (V2, V2, V2 + 1))
    p('v_add_f32 v%d, v%d, v%d' % (V2 + 2, V2 + 2, V2 + 3))
    p('v_add_f32 v%d, v%d, v%d' % (V2, V2, V2 + 2))
    xreduce(p, V2, V2 + 1)
    p('v_mov_b32 v%d, 0x3727c5ac' % (V2 + 1))
    p('v_fmac_f32 v%d, 0x3b124925, v%d' % (V2 + 1, V2))
    p('v_rsq_f32 v%d, v%d' % (V2, V2 + 1))
    p('s_nop 0')
    p('v_mov_b32 v%d, v%d' % (V2 + 1, V2))
    if o.pf and o.pf_kv_early:
        p('buffer_load_dword v254, v241, s[92:95], 0 offen'); vm.add('pf')
    for i in range(56):
        p('v_pk_mul_f32 %s, %s, %s' % (vr(XC + 2 * i, 2), vr(XC + 2 * i, 2), vr(V2, 2)))
    stamp(p, o, 'stats')
    p("""
    s_cmp_lg_u32 s%d, 0
    s_cbranch_scc1 L_modwait_done
    v_mov_b32 v206, 0
L_poll:
    buffer_load_dword v207, v206, s[88:91], 0 offen offset:128 sc1
    s_waitcnt vmcnt(0)
    v_readfirstlane_b32 s60, v207
    s_cmp_eq_u32 s60, 1
    s_cbranch_scc1 L_poll_done
    s_sleep 8
    s_branch L_poll
L_poll_done:
    ;STAMP poll_done
    v_lshlrev_b32 v206, 4, v%d
    buffer_load_dwordx4 v[168:171], v206, s[24:27], 0 offen sc1
    buffer_load_dwordx4 v[172:175], v206, s[24:27], 0 offen offset:1024 sc1
    buffer_load_dwordx4 v[176:179], v206, s[24:27], 0 offen offset:2048 sc1
    buffer_load_dwordx4 v[180:183], v206, s[24:27], 0 offen offset:3072 sc1
    s_waitcnt vmcnt(0)
    ds_write_b128 v206, v[168:171] offset:%d
    ds_write_b128 v206, v[172:175] offset:%d
    ds_write_b128 v206, v[176:179] offset:%d
    ds_write_b128 v206, v[180:183] offset:%d
    s_waitcnt lgkmcnt(0)
L_modwait_done:
    s_barrier
""" % (S_W, L, MV_OFF, MV_OFF + 1024, MV_OFF + 2048, MV_OFF + 3072))
    stamp(p, o, 'modbar')
    if o.pf and not o.pf_kv_early:
        p('buffer_load_dword v254, v241, s[92:95], 0 offen'); vm.add('pf')
    MVA = 222; HA = 223
    p('v_lshlrev_b32 v%d, 5, v201' % MVA)
    p('v_add_u32 v%d, %d, v%d' % (MVA, MV_OFF, MVA))
    p('s_mul_i32 s60, s%d, 14336' % S_W)
    p('v_lshlrev_b32 v%d, 4, v%d' % (HA, L))
    p('v_add_u32 v%d, s60, v%d' % (HA, HA))
    q = Prog()
    TA = [16, 32, 168, 184]
    def mvread(ks):
        t = TA[ks % 4]
        q('ds_read_b128 %s, v%d offset:%d' % (vr(t, 4), MVA, ks * 128))
        q('ds_read_b128 %s, v%d offset:%d' % (vr(t + 4, 4), MVA, ks * 128 + 16))
        q('ds_read_b128 %s, v%d offset:%d' % (vr(t + 8, 4), MVA, 1792 + ks * 128))
        q('ds_read_b128 %s, v%d offset:%d' % (vr(t + 12, 4), MVA, 1792 + ks * 128 + 16))
    for ks in range(3): mvread(ks)
    for ks in range(14):
        if ks + 3 < 14: mvread(ks + 3)
        t = TA[ks % 4]
        for j in range(4):
            q('v_pk_fma_f32 %s, %s, %s, %s' % (vr(t + 2 * j, 2), vr(XC + 8 * ks + 2 * j, 2), vr(t + 8 + 2 * j, 2), vr(t + 2 * j, 2)))
        hr = 4 * (ks % 4)
        for j in range(4):
            q('v_cvt_pk_bf16_f32 v%d, v%d, v%d' % (hr + j, t + 2 * j, t + 2 * j + 1))
        q('ds_write_b128 v%d, %s offset:%d' % (HA, vr(hr, 4), H_OFF + ks * 1024))
    w, _ = insert_waits(q.ins)
    li = 0
    cnt = 0
    for ins_ in w:
        p.ins.append(ins_)
        cnt += 1
        if cnt % 9 == 0 and li < len(late):
            while li < len(late):
                d = late[li]; li += 1
                if isinstance(d, tuple):
                    p(d[0]); vm.add(d[1]); break
                p(d)
                if 'm0' in d: p('s_nop 0')
    while li < len(late):
        d = late[li]; li += 1
        if isinstance(d, tuple): p(d[0]); vm.add(d[1])
        else:
            p(d)
            if 'm0' in d: p('s_nop 0')
    p('s_waitcnt lgkmcnt(0)')
    p('s_barrier')
    stamp(p, o, 'hbar')
    p('v_lshlrev_b32 v%d, 4, v%d' % (HA, L))
    for st in range(14):
        for qt in range(4):
            f = qt * 14 + st
            p('ds_read_b128 %s, v%d offset:%d' % (ar(4 * f, 4), HA, H_OFF + f * 1024))
    VA = 232
    p("""
    v_bfe_u32 v206, v%d, 2, 2          ; r
    v_and_b32 v207, 1, v201            ; kq&1
    v_lshl_add_u32 v207, v207, 2, v206 ; f = r + 4*(kq&1)
    v_lshlrev_b32 v208, 11, v201       ; 2*kq*1024
    v_lshl_add_u32 v208, v206, 8, v208 ; + r*256
    v_and_b32 v209, 3, v%d             ; c
    v_lshl_add_u32 v208, v209, 3, v208 ; + c*8
    v_add_u32 v208, s%d, v208          ; + w*8192
""" % (L, L, S_QD2))
    for T in range(8):
        p('v_xor_b32 v209, %d, v207' % T)
        p('v_lshl_add_u32 v%d, v209, 5, v208' % (VA + T))
    p('s_waitcnt lgkmcnt(0)')
    p('s_barrier')
    stamp(p, o, 'ln_done')
    return p, vm, VQ, VA

def qproj(o, vm, VQ, VA):
    p = Prog()
    N = 14 * 32
    sc = [[] for _ in range(N)]; mem = [[] for _ in range(N)]; val = [[] for _ in range(N)]
    def aread(n):
        st, T = n // 8, n % 8
        r = FR + 4 * (n % 4)
        off = QSLOT[st % 4]
        return st, T, r, off
    reads = []
    for n in range(14 * 8):
        st, T, r, off = aread(n)
        reads.append(['ds_read_b64_tr_b16 %s, v%d offset:%d' % (vr(r, 2), VA + T, 0),
                      'ds_read_b64_tr_b16 %s, v%d offset:%d' % (vr(r + 2, 2), VA + T, 1024)])
    pre = Prog()
    for T in range(8):
        pre('v_add_u32 v%d, %d, v%d' % (VA + T, QSLOT[0], VA + T))
    pre(vm.wait('wq0'))
    for n in range(3):
        for s in reads[n]: pre(s)
    for n in range(14 * 8):
        st, T = n // 8, n % 8
        g = 4 * (n - 3)
        if n >= 3:
            mem[g] += reads[n]
        if st + 1 < 14:
            d = QSLOT[(st + 1) % 4] - QSLOT[st % 4]
            upd = 'v_add_u32 v%d, %s, v%d' % (VA + T, ('0x%x' % (d & 0xffffffff)), VA + T)
            if n >= 3: val[g + 1].append(upd)
            else: val[n + 1].append(upd)
    for st in range(14):
        base = st * 32
        lst = None
        if st <= 10:
            lst = wq_dma(st + 3, vm, VQ)
            post = ['v_add_u32 v%d, 0x40000, v%d' % (VQ[0], VQ[0]), 'v_add_u32 v%d, 0x40000, v%d' % (VQ[1], VQ[1])]
        elif st >= 12:
            lst = [(s if s.startswith('s_') else (s, 'k%d' % (st - 12))) for s in dma(o, st - 12, 0, True, False)]
            post = ['v_add_u32 v%d, 0x8000, v%d' % (VOFF, VOFF)]
        if lst:
            gi = 0
            gaps = [base + 2 + 4 * i for i in range(8)]
            for s in lst:
                if isinstance(s, tuple):
                    mem[gaps[gi]].append(s); gi += 1
                else:
                    sc[gaps[gi] - 1].append(s)
            for i, s in enumerate(post):
                val[base + 31].append(s)
    post_cvt = []
    for T in range(8):
        for qt in range(4):
            g = 13 * 32 + T * 4 + qt + 7
            a_ = (T * 4 + qt) * 4; t_ = 128 + 2 * (T * 4 + qt)
            cv = ['v_cvt_pk_bf16_f32 v%d, v%d, v%d' % (t_, a_, a_ + 1), 'v_cvt_pk_bf16_f32 v%d, v%d, v%d' % (t_ + 1, a_ + 2, a_ + 3)]
            placed = False
            if o.qcvt:
                for gg in (g, g + 1, g + 2):
                    if gg < N and len(mem[gg]) == 0 and not val[gg]:
                        val[gg] += cv; placed = True; break
            if not placed: post_cvt += cv
    p.extend(pre)
    for gidx in range(N):
        st, rem = gidx // 32, gidx % 32
        T, qt = rem // 4, rem % 4
        n = st * 8 + T
        acc = (T * 4 + qt) * 4
        c = '0' if st == 0 else vr(acc, 4)
        m = 'v_mfma_f32_16x16x32_bf16 %s, %s, %s, %s' % (vr(acc, 4), vr(FR + 4 * (n % 4), 4), ar((qt * 14 + st) * 4, 4), c)
        p(m)
        if gidx + 1 < N:
            st2, rem2 = (gidx + 1) // 32, (gidx + 1) % 32
            if rem2 % 4 == 0:
                n2 = st2 * 8 + rem2 // 4
                p('.need v_mfma_f32_16x16x32_bf16 v[0:3], %s, v[0:3], 0' % vr(FR + 4 * (n2 % 4), 4))
        if rem == 20 and st + 1 < 14:
            p(vm.wait('wq%d' % (st + 1)))
        if st == 11 and rem == 31:
            p('s_barrier')
        for s in sc[gidx]: p(s)
        for s in mem[gidx]:
            if isinstance(s, tuple):
                p(s[0]); vm.add(s[1])
            else: p(s)
        for s in val[gidx]: p(s)
    p('s_nop 7')
    for x in post_cvt: p(x)
    return p

def kv_addresses(o):
    p = Prog()
    L = VLANE
    p('''
    s_mul_i32 s61, s%d, %d
    s_lshl_b32 s62, s%d, 14
    s_lshl_b32 s63, s%d, 13
    s_add_u32 s62, s62, s63
    v_lshlrev_b32 v%d, 4, v%d
    v_add_u32 v%d, s62, v%d
''' % (S_S, HALF, S_S, S_QH, VOFF, L, VOFF, VOFF))
    p('''
    v_and_b32 v240, 7, v%d
    v_mul_u32_u24 v240, %d, v240
    v_bfe_u32 v241, v%d, 3, 1
    v_lshlrev_b32 v241, 9, v241
    v_add_u32 v240, v240, v241
    v_lshrrev_b32 v241, 4, v%d
    v_lshlrev_b32 v241, 4, v241
    v_add_u32 v240, v240, v241
    v_add_u32 v%d, s61, v240
    v_lshrrev_b32 v240, 2, v%d
    v_and_b32 v241, 7, v240
    v_mul_u32_u24 v241, %d, v241
    v_lshrrev_b32 v240, 3, v240
    v_lshlrev_b32 v240, 9, v240
    v_add_u32 v240, v240, v241
    v_and_b32 v241, 3, v%d
    v_lshlrev_b32 v241, 3, v241
    v_add_u32 v240, v240, v241
    v_add_u32 v240, s61, v240
    v_add_u32 v%d, %d, v240
''' % (L, BLK, L, L, VK, L, BLK, L, VV, VBASE))
    return p

def qexchange(o, vm):
    p = Prog()
    L = VLANE
    p('''
    v_and_b32 v200, 15, v%d
    v_lshrrev_b32 v201, 4, v%d
    v_mul_u32_u24 v202, 1040, v200
    v_lshl_add_u32 v202, v201, 3, v202
    s_lshl_b32 s60, s%d, 8
    s_add_u32 s60, s60, %d
    v_add_u32 v202, s60, v202
    s_mov_b32 s61, 0x%x
''' % (L, L, S_W, QX, 0x3db8aa3b))
    p('s_barrier')
    q = Prog()
    for T in range(8):
        for qt in range(4):
            q('ds_write_b64 v202, %s offset:%d' % (vr(128 + 2 * (T * 4 + qt), 2), qt * 16 * 1040 + T * 32))
    p.extend(q)
    p('s_waitcnt lgkmcnt(0)')
    p('s_barrier')
    p('''
    s_mul_i32 s60, s%d, %d
    s_add_u32 s60, s60, %d
    v_mul_u32_u24 v202, 1040, v200
    v_lshl_add_u32 v202, v201, 4, v202
    v_add_u32 v202, s60, v202
''' % (S_QH, 32 * 1040, QX))
    for h in range(2):
        for qt in range(2):
            b = 2 * h + qt
            for ks in range(8):
                p('ds_read_b128 %s, v202 offset:%d' % (vr(32 * b + 4 * ks, 4), qt * 16 * 1040 + h * 512 + ks * 64))
    p(vm.wait('k1'))
    p('s_waitcnt lgkmcnt(0)')
    p('s_barrier')
    return p

def attn_prologue(o):
    p = Prog()
    p('v_add_u32 v%d, 0xffff0000, v%d' % (VOFF, VOFF))
    p('s_nop 0')
    for s in dma(o, 0, 0, False, True, nop=True): p(s)
    p('v_add_u32 v%d, 0x8000, v%d' % (VOFF, VOFF))
    p('''
    s_add_u32 s8, s8, 0x8000
    s_addc_u32 s9, s9, 0
    s_sub_u32 s10, s10, 0x8000
    s_add_u32 s12, s12, 0x8000
    s_addc_u32 s13, s13, 0
    s_sub_u32 s14, s14, 0x8000
''')
    q = Prog()
    qk = qk_list(o, czero=True)
    for n in range(2):
        for s in kread(o, n, 0): q(s)
    for sl in range(64):
        if sl % 8 == 0 and sl // 8 + 1 < 8:
            for s in kread(o, 2 * (sl // 8 + 1), 0) + kread(o, 2 * (sl // 8 + 1) + 1, 0): q(s)
        q(qk[sl])
    w, _ = insert_waits(q.ins)
    p.extend(w)
    p('s_nop 7')
    t = TMP
    for b in range(4):
        max8(p, t + b, b)
    for b in range(4):
        xreduce(p, t + b, t + 4, 'v_max_f32')
    for b in range(4):
        for r in range(4):
            p('v_sub_f32 v%d, 0, v%d' % (NEGM + 4 * b + r, t + b))
        for a in range(2):
            for r in range(4):
                p('v_sub_f32 v%d, v%d, v%d' % (S(a, b) + r, S(a, b) + r, t + b))
    for i in range(4):
        p('v_mov_b32 v%d, 0' % (LREG[1] + i))
    for s in exps(o, 0, 0, 1, 0): p(s)
    for s in exps(o, 1, 0, 1, 0): p(s)
    p('s_waitcnt vmcnt(0) lgkmcnt(0)')
    p('s_barrier')
    for n in range(2):
        for s in kread(o, n, 1): p(s)
    p('s_waitcnt lgkmcnt(0)')
    return p

MN, LL = 240, 244
def epi_setup(o):
    L = VLANE
    x = []
    for b in range(4): x.append('v_mov_b32 v%d, v%d' % (MN + b, NEGM + 4 * b))
    for b in range(4): x.append('v_mov_b32 v%d, v%d' % (LL + b, LREG[1] + b))
    for sw in ('v_permlane16_swap_b32', 'v_permlane32_swap_b32'):
        for b in range(4): x.append('v_mov_b32 v%d, v%d' % (248 + b, LL + b))
        for b in range(4): x.append('%s v%d, v%d' % (sw, LL + b, 248 + b))
        for b in range(4): x.append('v_add_f32 v%d, v%d, v%d' % (LL + b, LL + b, 248 + b))
    x += ['v_and_b32 v203, 15, v%d' % L, 'v_lshlrev_b32 v203, 5, v203',
          's_lshl_b32 s63, s%d, 9' % S_W, 's_add_u32 s63, s63, %d' % ST, 'v_add_u32 v202, s63, v203',
          'v_lshlrev_b32 v200, 4, v%d' % L,
          's_xor_b32 s64, s%d, 2' % S_W, 's_lshl_b32 s65, s64, 9', 's_add_u32 s65, s65, %d' % ST, 'v_add_u32 v203, s65, v203',
          's_lshl_b32 s64, s64, 15', 'v_add_u32 v201, s64, v200',
          's_lshl_b32 s66, s%d, 15' % S_W, 'v_add_u32 v200, s66, v200']
    return x

def attn_loop(o):
    p = Prog()
    first = A.iteration(o, 0, 'f', first_pv=True)
    w0, st0 = insert_waits(first.ins)
    p.extend(w0)
    p('s_mov_b32 s%d, 14' % S_CNT)
    p('.p2align 6')
    p('L_loop:')
    body = Prog()
    body.extend(A.iteration(o, 1, 'a'))
    body.extend(A.iteration(o, 0, 'b'))
    w1, st1 = insert_waits(body.ins, st0)
    w, st2 = insert_waits(body.ins, st1)
    assert st2 == st1 and [i.text for i in w] == [i.text for i in w1], 'not steady'
    loop_ins = w
    p.extend(w)
    p('s_sub_u32 s%d, s%d, 1' % (S_CNT, S_CNT))
    p('s_cmp_lg_u32 s%d, 0' % S_CNT)
    p('s_cbranch_scc1 L_loop')
    tail = Prog()
    ex = []
    if o.pf:
        ex = [(71, 'buffer_load_dword v255, v242, s[48:51], 0 offen')]
    tail.extend(A.iteration(o, 1, 'c', extra_mem=ex))
    ex = []
    if o.pf and o.pfmoe:
        ex = [(71, 'global_load_dword v255, v243, s[96:97]'), (75, 'global_load_dword v255, v243, s[98:99]'), (79, 'global_load_dword v255, v243, s[100:101]')]
    tail.extend(A.iteration(o, 0, 'd', do_dma_k=False, next_k=False, pf_ok=False, extra_mem=ex))
    tail('s_waitcnt vmcnt(%d) lgkmcnt(0)' % len(ex))
    tail('s_barrier')
    tail.extend(A.iteration(o, 1, 'e', do_qk=False, do_dma_k=False, do_dma_v=False, next_k=False, extra_valu=epi_setup(o)))
    w, _ = insert_waits(tail.ins, st1)
    p.extend(w)
    return p, w0, loop_ins, w

def combine(o, s, shadow):
    p = Prog()
    own = s; oth = 1 - s
    for dt in range(16):
        for qt in range(2):
            b = 2 * oth + qt
            p('ds_write_b128 v200, %s offset:%d' % (ar((dt * 4 + b) * 4, 4), (dt * 2 + qt) * 1024))
    for dt in range(16):
        for qt in range(2):
            b = 2 * own + qt
            for r in range(4):
                p('v_accvgpr_read_b32 v%d, a%d' % ((dt * 2 + qt) * 4 + r, (dt * 4 + b) * 4 + r))
    p.extend(shadow)
    p('s_waitcnt lgkmcnt(0)')
    p('s_barrier')
    stamp(p, o, 'e1bar')
    q = Prog()
    q('ds_read_b128 v[204:207], v203')
    q('ds_read_b128 v[208:211], v203 offset:16')
    order = [(2 * i + y, qt) for i in range(8) for qt in range(2) for y in range(2)]
    RING = 128
    def rd(k):
        dt, qt = order[k]
        q('ds_read_b128 %s, v201 offset:%d' % (vr(RING + 4 * (k % 8), 4), (dt * 2 + qt) * 1024))
    for k in range(8): rd(k)
    AL = 212; BE = 216
    for qt in range(2):
        b = 2 * own + qt
        mo = MN + b; mp = 204 + b; lo = LL + b; lp = 208 + b
        t = 220
        q('v_min_f32 v%d, v%d, v%d' % (t, mo, mp))
        q('v_sub_f32 v%d, v%d, v%d' % (t + 1, t, mo))
        q('v_sub_f32 v%d, v%d, v%d' % (t + 2, t, mp))
        q('v_exp_f32 v%d, v%d' % (t + 1, t + 1))
        q('v_exp_f32 v%d, v%d' % (t + 2, t + 2))
        q('s_nop 0')
        q('v_mul_f32 v%d, v%d, v%d' % (t + 3, t + 1, lo))
        q('v_fmac_f32 v%d, v%d, v%d' % (t + 3, t + 2, lp))
        q('v_rcp_f32 v%d, v%d' % (t + 3, t + 3))
        q('s_nop 0')
        q('v_mul_f32 v%d, v%d, v%d' % (AL + 2 * qt, t + 1, t + 3))
        q('v_mul_f32 v%d, v%d, v%d' % (BE + 2 * qt, t + 2, t + 3))
        q('v_mov_b32 v%d, v%d' % (AL + 2 * qt + 1, AL + 2 * qt))
        q('v_mov_b32 v%d, v%d' % (BE + 2 * qt + 1, BE + 2 * qt))
    for k in range(32):
        dt, qt = order[k]
        i, y = dt // 2, dt % 2
        rv = RING + 4 * (k % 8)
        ow = (dt * 2 + qt) * 4
        q('v_pk_mul_f32 %s, %s, %s' % (vr(rv, 2), vr(rv, 2), vr(BE + 2 * qt, 2)))
        q('v_pk_mul_f32 %s, %s, %s' % (vr(rv + 2, 2), vr(rv + 2, 2), vr(BE + 2 * qt, 2)))
        q('v_pk_fma_f32 %s, %s, %s, %s' % (vr(ow, 2), vr(ow, 2), vr(AL + 2 * qt, 2), vr(rv, 2)))
        q('v_pk_fma_f32 %s, %s, %s, %s' % (vr(ow + 2, 2), vr(ow + 2, 2), vr(AL + 2 * qt, 2), vr(rv + 2, 2)))
        if k + 8 < 32: rd(k + 8)
        fr = 160 + 4 * ((i * 2 + qt) % 8)
        q('v_cvt_pk_bf16_f32 v%d, v%d, v%d' % (fr + 2 * y, ow, ow + 1))
        q('v_cvt_pk_bf16_f32 v%d, v%d, v%d' % (fr + 2 * y + 1, ow + 2, ow + 3))
        if y == 1:
            q('ds_write_b128 v201, %s offset:%d' % (vr(fr, 4), (i * 2 + qt) * 1024))
    w, _ = insert_waits(q.ins)
    p.extend(w)
    return p

def wo_dma(step, slot, VW):
    out = []
    for jj in range(7):
        out.append('s_add_u32 m0, s%d, %d' % (S_T0 + slot, jj * 1024))
        out.append(('buffer_load_dwordx4 v%d, s[%d:%d], s%d offen lds' % (VW + jj, S_WO, S_WO + 3, S_WST), 'wo%d' % step))
    return out

def epilogue(o):
    p = Prog()
    L = VLANE
    vm = VmTracker()
    VW = 232
    p('s_nop 7')
    p('''
    s_barrier
    ds_write_b128 v202, v[%d:%d]
    ds_write_b128 v202, v[%d:%d] offset:16
''' % (MN, MN + 3, LL, LL + 3))
    sh = Prog()
    sh('s_mul_i32 s60, s%d, 224' % S_W)
    sh('s_mov_b32 s61, 0x124925')
    for jj in range(7):
        sh('v_add_u32 v192, %d, v%d' % (64 * jj, L))
        sh('v_mul_u32_u24 v193, s61, v192')
        sh('v_lshrrev_b32 v193, 24, v193')
        sh('v_mul_u32_u24 v194, 14, v193')
        sh('v_sub_u32 v194, v192, v194')
        sh('v_mul_u32_u24 v193, 896, v193')
        sh('v_lshl_add_u32 v193, v194, 4, v193')
        sh('v_add_u32 v%d, s60, v193' % (VW + jj))
    sh('''
    s_mul_i32 s60, s%d, 7168
    s_add_u32 s60, s60, %d
    s_lshl_b32 s61, s%d, 15
    s_add_u32 s61, s61, 16384
    s_add_u32 s62, s61, 7168
    s_mov_b32 s%d, 0
''' % (S_W, WO0, S_W, S_WST))
    emit_dma(sh, wo_dma(0, 0, VW), vm)
    sh('s_mov_b32 s%d, 28672' % S_WST)
    AW = 224
    BW = 228
    sh('''
    v_lshrrev_b32 v192, 2, v%d          ; 4kq + r
    v_mul_u32_u24 v192, 224, v192
    v_and_b32 v193, 3, v%d
    v_lshl_add_u32 v192, v193, 3, v192
    v_add_u32 v%d, s60, v192
    v_add_u32 v%d, s61, v192
    v_add_u32 v%d, s62, v192
    v_lshlrev_b32 v192, 4, v%d
''' % (L, L, AW, AW + 1, AW + 2, L))
    for r in range(4):
        sh('v_add_u32 v%d, %d, v192' % (BW + r, r * 32768))
    p('s_cmp_eq_u32 s%d, 0' % S_S)
    p('s_cbranch_scc0 L_comb1')
    c0 = combine(o, 0, sh); c1 = combine(o, 1, sh)
    p.extend(c0)
    p('s_branch L_combdone')
    p('L_comb1:')
    p.extend(c1)
    p('L_combdone:')
    stamp(p, o, 'comb')
    if o.fuse_k2:
        p('s_load_dwordx2 s[4:5], s[0:1], 48')
        p('s_load_dwordx2 s[6:7], s[0:1], 96')
        p('v_mov_b32 v250, 0')
        p('buffer_load_dword v251, v250, s[88:91], 0 offen offset:64 sc1'); vm.add('chk')
    p('s_waitcnt lgkmcnt(0)')
    p('s_barrier')
    stamp(p, o, 'e3bar')
    emit_dma(p, wo_dma(1, 1, VW), vm)
    p('s_mov_b32 s%d, %d' % (S_WST, 2 * 28672))
    def bread(ks, qtile):
        h, i = ks >> 3, ks & 7
        qh, qt = qtile >> 1, qtile & 1
        reg = qh + 2 * (1 - h)
        return 'ds_read_b128 %s, v%d offset:%d' % (vr(112 + 16 * (ks % 2) + 4 * qtile, 4), BW + reg, (i * 2 + qt) * 1024)
    def aread(n):
        ks, T = n // 7, n % 7
        r = FR + 4 * (n % 4)
        return ['ds_read_b64_tr_b16 %s, v%d offset:%d' % (vr(r + 2 * a, 2), AW + ks % 3, a * 3584 + T * 32) for a in range(2)]
    N = 16 * 28
    sc = [[] for _ in range(N)]; mem = [[] for _ in range(N)]; val = [[] for _ in range(N)]
    pre = Prog()
    pre(vm.wait('wo0'))
    for qtile in range(4): pre(bread(0, qtile))
    for n in range(3):
        for s in aread(n): pre(s)
    for n in range(3, 16 * 7):
        mem[4 * (n - 3)] += aread(n)
    for ks in range(15):
        for qtile in range(4):
            mem[28 * ks + 4 * qtile + 5 + 8].append(bread(ks + 1, qtile))
    for ks in range(14):
        lst = wo_dma(ks + 2, (ks + 2) % 3, VW)
        gaps = [28 * ks + 2 + 4 * i for i in range(7)]
        gi = 0
        for s in lst:
            if isinstance(s, tuple):
                mem[gaps[gi]].append(s); gi += 1
            else:
                sc[gaps[gi] - 1].append(s)
        sc[28 * ks + 27].append('s_add_u32 s%d, s%d, 28672' % (S_WST, S_WST))
    body = Prog()
    body.extend(pre)
    for gidx in range(N):
        ks, rem = gidx // 28, gidx % 28
        T, qt = rem // 4, rem % 4
        n = ks * 7 + T
        acc = (T * 4 + qt) * 4
        c = '0' if ks == 0 else vr(acc, 4)
        body('v_mfma_f32_16x16x32_bf16 %s, %s, %s, %s' % (vr(acc, 4), vr(FR + 4 * (n % 4), 4), vr(112 + 16 * (ks % 2) + 4 * qt, 4), c))
        if gidx + 1 < N:
            ks2, rem2 = (gidx + 1) // 28, (gidx + 1) % 28
            n2 = ks2 * 7 + rem2 // 4
            body('.need v_mfma_f32_16x16x32_bf16 v[0:3], %s, %s, 0' % (vr(FR + 4 * (n2 % 4), 4), vr(112 + 16 * (ks2 % 2) + 4 * (rem2 % 4), 4)))
        if rem == 16 and ks + 1 < 16:
            body(vm.wait('wo%d' % (ks + 1)))
        for s in sc[gidx]: body(s)
        for s in mem[gidx]:
            if isinstance(s, tuple):
                body(s[0]); vm.add(s[1])
            else: body(s)
        for s in val[gidx]: body(s)
    w, _ = insert_waits(body.ins)
    p.extend(w)
    stamp(p, o, 'oproj')
    if o.fuse_k2:
        import ksmall
        p('''
    s_lshl_b32 s56, s%d, 6
    s_lshl_b32 s57, s%d, 3
    s_add_u32 s56, s56, s57
    s_lshl_b32 s58, s%d, 1
    s_add_u32 s56, s56, s58            ; global row0 = 64 qb + 8 g + 2 w
    s_add_u32 s57, s57, s58            ; row within the x tile
    s_mul_i32 s57, s57, 896
    s_mul_i32 s58, s56, 896
    v_lshlrev_b32 v232, 4, v%d
    v_lshlrev_b32 v238, 5, v%d
    v_mov_b32 v234, 0x40000000
    v_cmp_gt_u32 vcc, 56, v%d
    s_nop 1
    v_cndmask_b32 v239, v234, v232, vcc      ; lane*16 or out of range
    v_cndmask_b32 v238, v234, v238, vcc      ; lane*32 or out of range
    v_cndmask_b32 v233, 0, 1.0, vcc
    v_add_u32 v232, s58, v239
    v_add_u32 v235, s57, v239
    v_mov_b32 v236, 0x00003f80
    v_mov_b32 v237, 0x3f800000
''' % (S_QB, S_G, S_W, L, L, L))
        q_ = Prog()
        ksmall.srd(q_, 8, 24, 8 * 2048 * 896, str(WS_PART))
        ksmall.srd(q_, 12, 4, 896)
        ksmall.srd(q_, 16, 6, 2048 * 896)
        ksmall.srd(q_, 20, 24, 2048 * 896, str(WS_H2))
        ksmall.srd(q_, 44, 24, 10752)
        ksmall.srd(q_, 48, 24, 8192, str(WS_R))
        q_('s_lshl_b32 s59, s%d, 7' % S_QB)
        q_('s_add_u32 s59, s59, %d' % WS_CNT)
        ksmall.srd(q_, 52, 24, 128, 's59')
        p.extend(q_)
        p('''
    s_waitcnt vmcnt(0)
    v_readfirstlane_b32 s59, v251
    s_cmp_eq_u32 s59, 28
    s_cbranch_scc1 L_a2ok
L_a2poll:
    buffer_load_dword v251, v250, s[88:91], 0 offen offset:64 sc1
    s_waitcnt vmcnt(0)
    v_readfirstlane_b32 s59, v251
    s_cmp_eq_u32 s59, 28
    s_cbranch_scc1 L_a2ok
    s_sleep 8
    s_branch L_a2poll
L_a2ok:
''')
        for rr in range(2):
            p('buffer_load_dwordx4 %s, v235, s[40:43], 0 offen offset:%d' % (vr(224 + 4 * rr, 4), rr * 896))
        for k_, seg in enumerate((2, 3, 4, 5)):
            p('s_mov_b32 s59, %d' % (seg * 1792))
            p('buffer_load_dwordx4 %s, v238, s[44:47], s59 offen sc1' % vr(160 + 8 * k_, 4))
            p('buffer_load_dwordx4 %s, v238, s[44:47], s59 offen offset:16 sc1' % vr(164 + 8 * k_, 4))
        p('buffer_load_dwordx4 v[192:195], v239, s[12:15], 0 offen')
    p('''
    s_mov_b32 s68, s24
    s_mov_b32 s69, s25
    s_lshl_b32 s60, s%d, 11
    s_lshl_b32 s61, s%d, 6
    s_add_u32 s60, s60, s61
    s_mul_i32 s60, s60, 896
    s_add_u32 s60, s60, %d
    s_add_u32 s68, s68, s60
    s_addc_u32 s69, s69, 0
    s_mov_b32 s70, 57344
    s_mov_b32 s71, 0x20000
    v_and_b32 v200, 15, v%d
    v_mul_u32_u24 v200, 912, v200
    v_lshrrev_b32 v201, 4, v%d
    v_lshl_add_u32 v200, v201, 3, v200
    s_mul_i32 s60, s%d, 224
    v_add_u32 v200, s60, v200          ; LDS write address
    v_lshlrev_b32 v201, 4, v%d
    s_mul_i32 s60, s%d, %d
    v_add_u32 v202, s60, v201          ; LDS read address: (16w)*912 + lane*16
    s_mul_i32 s60, s%d, %d
    v_add_u32 v203, s60, v201          ; global offset: (16w)*896 + lane*16
    v_mov_b32 v204, 0x40000000
    v_cmp_gt_u32 vcc, 56, v%d
    s_barrier
    s_nop 0
    v_cndmask_b32 v203, v204, v203, vcc
''' % (S_G, S_QB, WS_PART, L, L, S_W, L, S_W, 16 * 912, S_W, 16 * 896, L))
    k = 0
    for qt in range(4):
        for T in range(7):
            acc = (T * 4 + qt) * 4
            t = 128 + 2 * (k % 16); k += 1
            p('v_cvt_pk_bf16_f32 v%d, v%d, v%d' % (t, acc, acc + 1))
            p('v_cvt_pk_bf16_f32 v%d, v%d, v%d' % (t + 1, acc + 2, acc + 3))
            p('ds_write_b64 v200, %s offset:%d' % (vr(t, 2), qt * 16 * 912 + T * 32))
    p('s_waitcnt lgkmcnt(0)')
    p('s_barrier')
    q = Prog()
    for rr in range(16):
        q('ds_read_b128 %s, v202 offset:%d' % (vr(4 * rr, 4), rr * 912))
    for rr in range(16):
        if rr % 4 == 0 and rr: q('v_add_u32 v203, %d, v203' % (4 * 896))
        q('buffer_store_dwordx4 %s, v203, s[68:71], 0 offen offset:%d%s' % (vr(4 * rr, 4), (rr % 4) * 896, o.part_flags))
    w, _ = insert_waits(q.ins)
    p.extend(w)
    if o.fuse_k2:
        stamp(p, o, 'stores')
        p('s_waitcnt vmcnt(0)')
        stamp(p, o, 'drain')
        p('''
    s_barrier
    s_cmp_lg_u32 s%d, 0
    s_cbranch_scc1 L_grp_done
    v_mov_b32 v0, 1
    v_mov_b32 v1, 0
    v_cmp_eq_u32 vcc, 0, v%d
    s_and_saveexec_b64 s[60:61], vcc
    buffer_atomic_add v0, v1, s[52:55], 0 offen sc1
    s_mov_b64 exec, s[60:61]
L_grp_poll:
    buffer_load_dword v2, v1, s[52:55], 0 offen sc1
    s_waitcnt vmcnt(0)
    v_readfirstlane_b32 s59, v2
    s_cmp_eq_u32 s59, 8
    s_cbranch_scc1 L_grp_done
    s_sleep 2
    s_branch L_grp_poll
L_grp_done:
    s_barrier
''' % (S_W, L))
        stamp(p, o, 'grp')
        for rr in range(2):
            for g_ in range(8):
                p('s_mov_b32 s59, %d' % (g_ * 2048 * 896 + rr * 896))
                p('buffer_load_dwordx4 %s, v232, s[8:11], s59 offen sc1' % vr(32 * rr + 4 * g_, 4))
        ACC = [64, 72]
        for rr in range(2):
            for j in range(8): p('v_mov_b32 v%d, 0' % (ACC[rr] + j))
        for rr in range(2):
            p('s_waitcnt vmcnt(%d)' % (8 if rr == 0 else 0))
            for g_ in range(8):
                for j in range(8):
                    p('v_dot2_f32_bf16 v%d, v%d, v%d, v%d' % (ACC[rr] + j, 32 * rr + 4 * g_ + j // 2, 236 + j % 2, ACC[rr] + j))
        p('s_nop 2')
        stamp(p, o, 'k2ld')
        ksmall.k2_math(p, [0, 32], [224, 228], 160, 168, 176, 184, 192, ACC, [80, 88], 96, 232, 233, L, 234, 236, 20, 16, 48, 56, 104)
    return p

def expand_stamps(p, o):
    q = Prog()
    for i in p.ins:
        if i.text.startswith(';STAMP'):
            stamp(q, o, i.text.split()[1])
        elif i.text.startswith(';ZEROCNT'):
            if o.fuse_k2:
                q('''
    s_cmp_lg_u32 s2, 0
    s_cbranch_scc1 L_nozero
    v_lshlrev_b32 v166, 7, v%d
    v_add_u32 v166, %d, v166
    v_mov_b32 v167, 0x40000000
    v_cmp_gt_u32 vcc, 32, v%d
    s_nop 1
    v_cndmask_b32 v166, v167, v166, vcc
    v_mov_b32 v167, 0
    buffer_store_dword v167, v166, s[24:27], 0 offen sc1
L_nozero:
''' % (VLANE, WS_CNT, VLANE))
        else: q.ins.append(i)
    return q

def build_k1(o):
    p = Prog()
    p('k1_kernel:')
    pro, vm, VQ, VA = prologue(o)
    p.extend(expand_stamps(pro, o))
    p.extend(kv_addresses(o))
    qp = qproj(o, vm, VQ, VA)
    w, _ = insert_waits(qp.ins)
    p.extend(w)
    stamp(p, o, 'qproj')
    p.extend(qexchange(o, vm))
    stamp(p, o, 'qexch')
    if getattr(o, 'dump', '') == 'q':
        p('''
    s_lshl_b32 s60, s2, 2
    s_add_u32 s60, s60, s%d
    s_lshl_b32 s60, s60, 15
    s_add_u32 s60, s60, 0x2000000
    v_lshlrev_b32 v200, 4, v%d
    v_add_u32 v200, s60, v200
''' % (S_W, VLANE))
        for n in range(32):
            if n % 4 == 0 and n: p('v_add_u32 v200, 0x1000, v200')
            p('buffer_store_dwordx4 %s, v200, s[24:27], 0 offen offset:%d' % (vr(4 * n, 4), (n % 4) * 1024))
        p('s_waitcnt vmcnt(0)')
    p.extend(attn_prologue(o))
    stamp(p, o, 'attnpro')
    if o.stamps: p('s_waitcnt lgkmcnt(0)')
    lp, first, loop_ins, tail = attn_loop(o)
    p.extend(lp)
    stamp(p, o, 'loop')
    if getattr(o, 'dump', '') == 'o':
        p('s_nop 7')
        p('''
    s_lshl_b32 s60, s2, 18
    s_lshl_b32 s61, s%d, 16
    s_add_u32 s60, s60, s61
    s_add_u32 s60, s60, 0x2000000
    v_lshlrev_b32 v210, 4, v%d
    v_add_u32 v210, s60, v210
''' % (S_W, VLANE))
        for r4 in range(64):
            if r4 % 4 == 0 and r4: p('v_add_u32 v210, 0x1000, v210')
            p('buffer_store_dwordx4 %s, v210, s[24:27], 0 offen offset:%d' % (ar(4 * r4, 4), (r4 % 4) * 1024))
        p('''
    s_lshl_b32 s60, s2, 2
    s_add_u32 s60, s60, s%d
    s_lshl_b32 s60, s60, 11
    s_add_u32 s60, s60, 0x8000000
    v_lshlrev_b32 v210, 2, v%d
    v_add_u32 v210, s60, v210
''' % (S_W, VLANE))
        for b in range(4):
            p('buffer_store_dword v%d, v210, s[24:27], 0 offen offset:%d' % (NEGM + 4 * b, 256 * b))
            p('buffer_store_dword v%d, v210, s[24:27], 0 offen offset:%d' % (LREG[1] + b, 1024 + 256 * b))
        p('s_waitcnt vmcnt(0)')
    p.extend(epilogue(o))
    if o.stamps:
        if not o.fuse_k2: stamp(p, o, 'stores')
        stamp(p, o, 'k2m')
        p('s_waitcnt vmcnt(0)')
        stamp(p, o, 'end')
        p('s_waitcnt lgkmcnt(0)')
        p('''
    s_lshl_b32 s60, s2, 2
    s_add_u32 s60, s60, s%d
    s_lshl_b32 s60, s60, 6
    s_add_u32 s60, s60, 0x%x
    v_mov_b32 v1, s60
''' % (S_W, WS_STAMP))
        for k in range(8):
            p('v_mov_b32 v%d, s%d' % (2 + k, S_STAMP + 2 * k))
        p('''
    v_cmp_eq_u32 vcc, 0, v%d
    s_and_saveexec_b64 s[60:61], vcc
    s_cbranch_execz L_nostamp
    buffer_store_dwordx4 v[2:5], v1, s[24:27], 0 offen
    buffer_store_dwordx4 v[6:9], v1, s[24:27], 0 offen offset:16
L_nostamp:
    s_mov_b64 exec, s[60:61]
''' % VLANE)
    p('s_waitcnt vmcnt(0)')
    p('L_end_k1:')
    p('s_endpgm')
    for tag, par in (('f', 0), ('a', 1), ('b', 0), ('c', 1), ('d', 0)):
        p('L_rare_%s:' % tag)
        p('s_call_b64 s[%d:%d], L_fb_%d' % (S_RET, S_RET + 1, par))
        p('s_branch L_back_%s' % tag)
    p.extend(A.fallback(o, 0))
    p.extend(A.fallback(o, 1))
    probs = check_hazards(first + loop_ins + loop_ins + tail, 'loop') + check_hazards(p.ins, 'all')
    return p, probs

KD = '''
.amdhsa_kernel %s
  .amdhsa_next_free_vgpr %d
  .amdhsa_next_free_sgpr %d
  .amdhsa_accum_offset %d
  .amdhsa_group_segment_fixed_size 0
  .amdhsa_kernarg_size 120
  .amdhsa_user_sgpr_count 2
  .amdhsa_user_sgpr_kernarg_segment_ptr 1
  .amdhsa_system_sgpr_workgroup_id_x 1
  .amdhsa_float_denorm_mode_32 3
.end_amdhsa_kernel
'''

if __name__ == '__main__':
    import sys
    o = A.Opt()
    o.kgap = 1
    o.dma_gaps = [3, 7, 11, 15, 19, 23, 27, 31, 35, 39, 43, 47, 51, 55, 59, 63]
    o.stamps = 1; o.pf = 1; o.pfd = 4; o.pfmoe = 1; o.pf_kv_early = 0; o.late_dma = 0; o.qcvt = 1; o.fuse_k2 = 1; o.part_flags = ' sc1'
    out = sys.argv[1]
    for kv in sys.argv[2:]:
        k, v = kv.split('=')
        try: v = int(v, 0)
        except ValueError:
            if v.startswith('['): v = eval(v)
        setattr(o, k, v)
    p, probs = build_k1(o)
    for pr in probs[:20]: print(pr)
    print('hazards', len(probs), 'instrs', len(p.ins))
    hdr = '''; @launch kernel=k1_kernel grid=(256,1,1) block=(256,1,1) lds=163840
.amdgcn_target "amdgcn-amd-amdhsa--gfx950"
.text
.globl k1_kernel
.p2align 8
.type k1_kernel,@function
'''
    ftr = '.section .rodata,"a"\n.p2align 6' + KD % ('k1_kernel', 512, 102, 256)
    open(out, 'w').write(hdr + p.text() + ftr)
```

```python
from asmlib import *
from k1 import WS_MOD, WS_R, WS_IDX, WS_ACT, WS_H2, WS_PART, xreduce
def vr(a, n=1): return 'v%d' % a if n == 1 else 'v[%d:%d]' % (a, a + n - 1)

def srd(p, s, ptr_lo, nbytes, off=None):
    if off is None:
        if s != ptr_lo:
            p('s_mov_b32 s%d, s%d' % (s, ptr_lo)); p('s_mov_b32 s%d, s%d' % (s + 1, ptr_lo + 1))
    else:
        p('s_add_u32 s%d, s%d, %s' % (s, ptr_lo, off)); p('s_addc_u32 s%d, s%d, 0' % (s + 1, ptr_lo + 1))
    p('s_mov_b32 s%d, %s' % (s + 2, nbytes)); p('s_mov_b32 s%d, 0x20000' % (s + 3))

def wave_reduce(p, r, t, op='v_add_f32'):
    for k in (1, 2, 4, 8):
        p('s_nop 1')
        p('%s_dpp v%d, v%d, v%d row_ror:%d row_mask:0xf bank_mask:0xf' % (op, r, r, r, k))
    p('s_nop 0')
    xreduce(p, r, t, op)

def wave_reduce_multi(p, regs, temps, op='v_add_f32'):
    for k in (1, 2, 4, 8):
        if len(regs) < 3: p('s_nop %d' % (2 - len(regs)))
        for r in regs:
            p('%s_dpp v%d, v%d, v%d row_ror:%d row_mask:0xf bank_mask:0xf' % (op, r, r, r, k))
    for sw in ('v_permlane16_swap_b32', 'v_permlane32_swap_b32'):
        p('s_nop 0')
        for r, t in zip(regs, temps): p('v_mov_b32 v%d, v%d' % (t, r))
        p('s_nop 1')
        for r, t in zip(regs, temps): p('%s v%d, v%d' % (sw, r, t))
        p('s_nop 1')
        for r, t in zip(regs, temps): p('%s v%d, v%d, v%d' % (op, r, r, t))

def build_k0():
    p = Prog()
    p('''
k0_kernel:
    s_cmp_ge_u32 s2, 42
    s_cbranch_scc1 L_end_k0
    s_load_dwordx4 s[4:7], s[0:1], 80
    s_load_dwordx2 s[24:25], s[0:1], 112
    v_and_b32 v1, 7, v0            ; cc
    v_lshrrev_b32 v2, 3, v0        ; kg 0..31
    s_waitcnt lgkmcnt(0)
''')
    srd(p, 8, 4, 896)
    srd(p, 12, 6, 448 * 5376)
    srd(p, 24, 24, 10752)
    p('''
    v_mul_u32_u24 v3, 5376, v2
    v_lshl_add_u32 v3, v1, 4, v3
    s_lshl_b32 s16, s2, 7
    v_add_u32 v3, s16, v3
    v_lshlrev_b32 v4, 1, v2        ; c offset
''')
    for i in range(14):
        p('buffer_load_ushort v%d, v4, s[8:11], 0 offen offset:%d' % (10 + i, 64 * i))
    p('s_mov_b32 s17, %d' % (32 * 5376))
    for i in range(14):
        p('buffer_load_dwordx4 %s, v3, s[12:15], 0 offen' % vr(32 + 4 * i, 4))
        if i < 13: p('v_add_u32 v3, s17, v3')
    p('s_waitcnt vmcnt(14)')
    for i in range(14):
        p('v_lshlrev_b32 v%d, 16, v%d' % (10 + i, 10 + i))
    for i in range(14):
        p('v_mul_f32 v%d, 0xbfb8aa3b, v%d' % (96 + i, 10 + i))
    for i in range(14):
        p('v_exp_f32 v%d, v%d' % (96 + i, 96 + i))
    for i in range(14):
        p('v_add_f32 v%d, 1.0, v%d' % (96 + i, 96 + i))
    for i in range(14):
        p('v_rcp_f32 v%d, v%d' % (96 + i, 96 + i))
    for i in range(14):
        p('v_mul_f32 v%d, v%d, v%d' % (10 + i, 10 + i, 96 + i))
    for i in range(14):
        p('v_cvt_pk_bf16_f32 v%d, v%d, 0' % (10 + i, 10 + i))
    for i in range(14):
        p('v_lshlrev_b32 v%d, 16, v%d' % (96 + i, 10 + i))
    for j in range(8): p('v_mov_b32 v%d, 0' % (112 + j))
    p('s_waitcnt vmcnt(0)')
    for i in range(14):
        for j in range(8):
            w = 32 + 4 * i + j // 2
            sel = (10 + i) if j % 2 == 0 else (96 + i)
            p('v_dot2_f32_bf16 v%d, v%d, v%d, v%d' % (112 + j, w, sel, 112 + j))
    p('s_nop 2')
    regs = [112 + j for j in range(8)]; temps = [120 + j for j in range(8)]
    for r in regs:
        p('v_add_f32_dpp v%d, v%d, v%d row_ror:8 row_mask:0xf bank_mask:0xf' % (r, r, r))
    for sw in ('v_permlane16_swap_b32', 'v_permlane32_swap_b32'):
        for r, t in zip(regs, temps): p('v_mov_b32 v%d, v%d' % (t, r))
        p('s_nop 1')
        for r, t in zip(regs, temps): p('%s v%d, v%d' % (sw, r, t))
        p('s_nop 1')
        for r, t in zip(regs, temps): p('v_add_f32 v%d, v%d, v%d' % (r, r, t))
    p('''
    v_lshrrev_b32 v5, 6, v0
    v_lshlrev_b32 v5, 8, v5
    v_lshl_add_u32 v5, v1, 5, v5
    ds_write_b128 v5, v[112:115]
    ds_write_b128 v5, v[116:119] offset:16
    s_waitcnt lgkmcnt(0)
    s_barrier
    v_cmp_gt_u32 vcc, 64, v0
    s_and_saveexec_b64 s[18:19], vcc
    s_cbranch_execz L_k0_done
    v_lshlrev_b32 v5, 2, v0
    ds_read_b32 v6, v5
    ds_read_b32 v7, v5 offset:256
    ds_read_b32 v8, v5 offset:512
    ds_read_b32 v9, v5 offset:768
    s_waitcnt lgkmcnt(0)
    v_add_f32 v6, v6, v7
    v_add_f32 v8, v8, v9
    v_add_f32 v6, v6, v8
    v_cvt_pk_bf16_f32 v6, v6, 0
    v_lshlrev_b32 v6, 16, v6
    s_mul_i32 s20, s2, 37
    s_lshr_b32 s20, s20, 8
    s_cmp_eq_u32 s20, 1
    s_cselect_b32 s21, 1, 0
    s_cmp_eq_u32 s20, 4
    s_cselect_b32 s21, 1, s21
    s_cmp_eq_u32 s21, 0
    s_cbranch_scc1 L_k0_store
    v_add_f32 v6, 1.0, v6
    v_cvt_pk_bf16_f32 v6, v6, 0
    v_lshlrev_b32 v6, 16, v6
L_k0_store:
    s_lshl_b32 s16, s2, 8
    v_add_u32 v5, s16, v5
    buffer_store_dword v6, v5, s[24:27], 0 offen
L_k0_done:
    s_mov_b64 exec, s[18:19]
    s_waitcnt vmcnt(0)
L_end_k0:
    s_endpgm
''')
    return p

PF_MOE = True
def build_k2():
    p = Prog()
    p('''
k2_kernel:
    s_cmp_ge_u32 s2, 256
    s_cbranch_scc1 L_end_k2
    s_load_dwordx2 s[4:5], s[0:1], 0
    s_load_dwordx2 s[6:7], s[0:1], 48
    s_load_dwordx2 s[28:29], s[0:1], 96
    s_load_dwordx2 s[24:25], s[0:1], 112
    s_load_dwordx4 s[44:47], s[0:1], 56
    s_load_dwordx2 s[48:49], s[0:1], 72
    v_and_b32 v1, 63, v0
    v_lshrrev_b32 v2, 6, v0
    s_nop 0
    v_readfirstlane_b32 s3, v2
    s_lshl_b32 s41, s2, 3
    s_lshl_b32 s42, s3, 1
    s_add_u32 s41, s41, s42
    s_mul_i32 s42, s41, 896
    s_waitcnt lgkmcnt(0)
''')
    srd(p, 8, 4, 2048 * 896)
    srd(p, 12, 6, 896)
    srd(p, 16, 24, 8 * 2048 * 896, str(WS_PART))
    srd(p, 20, 24, 2048 * 896, str(WS_H2))
    srd(p, 32, 24, 10752)
    srd(p, 36, 24, 8192, str(WS_R))
    srd(p, 28, 28, 2048 * 896)
    p('''
    v_lshlrev_b32 v3, 4, v1            ; lane*16
    v_lshlrev_b32 v4, 5, v1
    v_mov_b32 v5, 0x40000000
    v_cmp_gt_u32 vcc, 56, v1
    s_nop 1
    v_cndmask_b32 v3, v5, v3, vcc
    v_cndmask_b32 v4, v5, v4, vcc
    v_cndmask_b32 v6, 0, 1.0, vcc
    v_add_u32 v7, s42, v3
''')
    for rr in range(2):
        for g in range(8):
            p('s_mov_b32 s40, %d' % (g * 2048 * 896 + rr * 896) if not (g == 0 and rr == 0) else 's_mov_b32 s40, 0')
            p('buffer_load_dwordx4 %s, v7, s[16:19], s40 offen' % vr(16 + rr * 40 + 4 * g, 4))
        p('buffer_load_dwordx4 %s, v7, s[8:11], 0 offen offset:%d' % (vr(16 + rr * 40 + 32, 4), rr * 896))
    for k, seg in enumerate((2, 3, 4, 5)):
        p('s_mov_b32 s40, %d' % (seg * 1792))
        p('buffer_load_dwordx4 %s, v4, s[32:35], s40 offen' % vr(96 + 8 * k, 4))
        p('buffer_load_dwordx4 %s, v4, s[32:35], s40 offen offset:16' % vr(100 + 8 * k, 4))
    p('buffer_load_dwordx4 v[128:131], v3, s[12:15], 0 offen')
    p('v_mov_b32 v8, 0x00003f80')
    p('v_mov_b32 v9, 0x3f800000')
    ACC = [136, 152]
    for rr in range(2):
        for j in range(8): p('v_mov_b32 v%d, 0' % (ACC[rr] + j))
    for rr in range(2):
        p('s_waitcnt vmcnt(%d)' % (9 + 1 + (9 if rr == 0 else 0)))
        for g in range(8):
            for j in range(8):
                p('v_dot2_f32_bf16 v%d, v%d, v%d, v%d' % (ACC[rr] + j, 16 + rr * 40 + 4 * g + j // 2, 8 + j % 2, ACC[rr] + j))
    p('s_waitcnt vmcnt(0)')
    p(';ST 0')
    if PF_MOE:
        p('''
    s_and_b32 s50, s2, 7               ; x
    s_lshr_b32 s51, s2, 3              ; i
    v_min_u32 v210, 55, v1
    s_cmp_ge_u32 s3, 2
    s_cbranch_scc1 L_k2_pfdown
    s_mul_i32 s52, s50, 448
    s_lshr_b32 s52, s52, 7
    s_mul_i32 s53, s51, 14
    v_lshrrev_b32 v211, 2, v210
    v_add_u32 v211, s53, v211
    v_mul_u32_u24 v211, 3584, v211
    v_and_b32 v212, 3, v210
    v_add_u32 v212, s52, v212
    v_lshl_add_u32 v211, v212, 7, v211
    s_cmp_eq_u32 s3, 0
    s_cselect_b32 s54, s44, s46
    s_cselect_b32 s55, s45, s47
    global_load_dword v213, v211, s[54:55]
    s_branch L_k2_pfdone
L_k2_pfdown:
    s_lshl_b32 s52, s50, 7             ; x<4: byte 128x
    s_mul_i32 s53, s50, 96
    s_add_u32 s53, s53, 128            ; x>=4: 512 + 96(x-4) = 96x + 128
    s_cmp_lt_u32 s50, 4
    s_cselect_b32 s52, s52, s53
    s_and_b32 s53, s3, 1
    s_mul_i32 s53, s53, 95
    s_add_u32 s52, s52, s53
    s_and_b32 s52, s52, 0xffffff80
    s_mul_i32 s53, s51, 56
    v_add_u32 v211, s53, v210
    v_mul_u32_u24 v211, 896, v211
    v_add_u32 v211, s52, v211
    global_load_dword v213, v211, s[48:49]
L_k2_pfdone:
''')
    X1 = [168, 184]
    for rr in range(2):
        xr = 16 + rr * 40 + 32
        for j in range(8):
            p('v_mul_f32 v%d, v%d, v%d' % (ACC[rr] + j, ACC[rr] + j, 96 + j))
        for j in range(8):
            p('v_dot2_f32_bf16 v%d, v%d, v%d, v%d' % (ACC[rr] + j, xr + j // 2, 8 + j % 2, ACC[rr] + j))
    p('s_nop 2')
    for rr in range(2):
        for j in range(0, 8, 2):
            p('v_cvt_pk_bf16_f32 v%d, v%d, v%d' % (200 + rr * 4 + j // 2, ACC[rr] + j, ACC[rr] + j + 1))
    for rr in range(2):
        for j in range(8):
            if j % 2 == 0: p('v_lshlrev_b32 v%d, 16, v%d' % (X1[rr] + j, 200 + rr * 4 + j // 2))
            else: p('v_and_b32 v%d, 0xffff0000, v%d' % (X1[rr] + j, 200 + rr * 4 + j // 2))
    SUM = [10, 11]
    for rr in range(2):
        p('v_add_f32 v%d, v%d, v%d' % (SUM[rr], X1[rr], X1[rr] + 1))
        for j in range(2, 8): p('v_add_f32 v%d, v%d, v%d' % (SUM[rr], SUM[rr], X1[rr] + j))
    wave_reduce_multi(p, SUM, [12, 13])
    XC = [16, 32]
    for rr in range(2):
        p('v_mul_f32 v%d, 0xbb124925, v%d' % (SUM[rr], SUM[rr]))
    for rr in range(2):
        for j in range(8):
            p('v_add_f32 v%d, v%d, v%d' % (XC[rr] + j, X1[rr] + j, SUM[rr]))
    VAR = [12, 13]
    for rr in range(2):
        p('v_mul_f32 v%d, v%d, v%d' % (VAR[rr], XC[rr], XC[rr]))
        for j in range(1, 8): p('v_fmac_f32 v%d, v%d, v%d' % (VAR[rr], XC[rr] + j, XC[rr] + j))
    for rr in range(2):
        p('v_mul_f32 v%d, v%d, v6' % (VAR[rr], VAR[rr]))
    wave_reduce_multi(p, VAR, [14, 15])
    for rr in range(2):
        p('v_mov_b32 v%d, 0x3727c5ac' % (14 + rr))
        p('v_fmac_f32 v%d, 0x3b124925, v%d' % (14 + rr, VAR[rr]))
    for rr in range(2):
        p('v_rsq_f32 v%d, v%d' % (VAR[rr], 14 + rr))
    p('s_nop 0')
    H = [48, 64]
    for rr in range(2):
        for j in range(8):
            p('v_mul_f32 v%d, v%d, v%d' % (XC[rr] + j, XC[rr] + j, VAR[rr]))
        for j in range(8):
            p('v_fma_f32 v%d, v%d, v%d, v%d' % (XC[rr] + j, XC[rr] + j, 112 + j, 104 + j))
        for j in range(0, 8, 2):
            p('v_cvt_pk_bf16_f32 v%d, v%d, v%d' % (H[rr] + j // 2, XC[rr] + j, XC[rr] + j + 1))
    p(';ST 1')
    for rr in range(2):
        p('buffer_store_dwordx4 %s, v7, s[20:23], 0 offen offset:%d' % (vr(H[rr], 4), rr * 896))
    RR = [14, 15]
    for rr in range(2):
        p('v_mov_b32 v%d, 0' % RR[rr])
    for j in range(4):
        for rr in range(2):
            p('v_dot2_f32_bf16 v%d, v%d, v%d, v%d' % (RR[rr], H[rr] + j, 128 + j, RR[rr]))
    for rr in range(2):
        for j in range(8):
            if j % 2 == 0: p('v_lshlrev_b32 v%d, 16, v%d' % (XC[rr] + j, H[rr] + j // 2))
            else: p('v_and_b32 v%d, 0xffff0000, v%d' % (XC[rr] + j, H[rr] + j // 2))
        for j in range(8):
            p('v_fma_f32 v%d, v%d, v%d, v%d' % (XC[rr] + j, XC[rr] + j, 120 + j, X1[rr] + j))
        for j in range(0, 8, 2):
            p('v_cvt_pk_bf16_f32 v%d, v%d, v%d' % (80 + rr * 4 + j // 2, XC[rr] + j, XC[rr] + j + 1))
        p('buffer_store_dwordx4 %s, v7, s[28:31], 0 offen offset:%d' % (vr(80 + rr * 4, 4), rr * 896))
    wave_reduce_multi(p, RR, [12, 13])
    p('''
    v_cvt_pk_bf16_f32 v14, v14, 0
    v_cvt_pk_bf16_f32 v15, v15, 0
    v_lshlrev_b32 v14, 16, v14
    v_lshlrev_b32 v15, 16, v15
    v_cmp_eq_u32 vcc, 1, v1
    s_nop 1
    v_cndmask_b32 v14, v14, v15, vcc
    v_add_u32 v2, s41, v1
    v_lshlrev_b32 v2, 2, v2
    v_cmp_gt_u32 vcc, 2, v1
    s_nop 1
    v_cndmask_b32 v2, v5, v2, vcc
    buffer_store_dword v14, v2, s[36:39], 0 offen
    s_waitcnt vmcnt(0)
L_end_k2:
    s_endpgm
''')
    return p

def sort8(p, K, T):
    net = [(0,1),(2,3),(4,5),(6,7),(0,2),(1,3),(4,6),(5,7),(1,2),(5,6),(0,4),(3,7),(1,5),(2,6),(1,4),(3,6),(2,4),(3,5),(3,4)]
    for a_, b_ in net:
        p('v_max_u32 v%d, v%d, v%d' % (T, K + a_, K + b_))
        p('v_min_u32 v%d, v%d, v%d' % (K + b_, K + a_, K + b_))
        p('v_mov_b32 v%d, v%d' % (K + a_, T))

def row_rounds(p, K, T, RES, MASK):
    for rnd in range(8):
        p('v_mov_b32 v%d, v%d' % (T, K))
        for k in (1, 2, 4, 8):
            p('s_nop 1')
            p('v_max_u32_dpp v%d, v%d, v%d row_ror:%d row_mask:0xf bank_mask:0xf' % (T, T, T, k))
        p('s_nop 0')
        p('v_cmp_eq_u32 vcc, v%d, v%d' % (K, T))
        p('v_cndmask_b32_e64 v%d, v%d, v%d, s[%d:%d]' % (RES, RES, T, MASK + 2 * rnd, MASK + 2 * rnd + 1))
        if rnd < 7:
            p('s_nop 0')
            for j in range(7 - rnd):
                p('v_cndmask_b32 v%d, v%d, v%d, vcc' % (K + j, K + j, K + j + 1))
            p('v_cndmask_b32_e64 v%d, v%d, 0, vcc' % (K + 7 - rnd, K + 7 - rnd))

def top8(p, KEY, T):
    RES = T + 1
    p('v_and_b32 v%d, 7, v1' % T)
    for i in range(8):
        p('v_cmp_eq_u32 s[%d:%d], %d, v%d' % (64 + 2 * i, 65 + 2 * i, i, T))
    sort8(p, KEY, T)
    p('v_mov_b32 v%d, 0' % RES)
    row_rounds(p, KEY, T, RES, 64)
    p('v_lshrrev_b32 v%d, 4, v0' % T)
    p('v_lshlrev_b32 v%d, 5, v%d' % (T, T))
    p('v_and_b32 v%d, 7, v1' % (T + 2))
    p('v_lshl_add_u32 v%d, v%d, 2, v%d' % (T, T + 2, T))
    p('ds_write_b32 v%d, v%d offset:%d' % (T, RES, TOPK_LDS))
    p('s_waitcnt lgkmcnt(0)')
    p('s_barrier')
    p('v_and_b32 v%d, 15, v1' % T)
    p('v_lshlrev_b32 v%d, 5, v%d' % (T, T))
    p('ds_read_b128 %s, v%d offset:%d' % (vr(KEY, 4), T, TOPK_LDS))
    p('ds_read_b128 %s, v%d offset:%d' % (vr(KEY + 4, 4), T, TOPK_LDS + 16))
    p('v_mov_b32 v%d, 0' % RES)
    p('s_waitcnt lgkmcnt(0)')
    row_rounds(p, KEY, T, RES, 64)

TOPK_LDS = 57344

def wstage(p, srd_, voff, nsteps, lds_sgpr):
    p('s_mov_b32 s44, 0')
    for i in range(nsteps):
        p('s_add_u32 m0, s%d, %d' % (lds_sgpr, i * 1024))
        p('s_nop 0')
        p('buffer_load_dwordx4 v%d, s[%d:%d], s44 offen lds' % (voff, srd_, srd_ + 3))
        if i + 1 < nsteps: p('s_add_u32 s44, s44, s45')

def tr_frags(p, addr, dst, nsteps):
    for i in range(nsteps):
        p('ds_read_b64_tr_b16 %s, v%d offset:%d' % (vr(dst + 4 * i, 2), addr, i * 1024))
        p('ds_read_b64_tr_b16 %s, v%d offset:%d' % (vr(dst + 4 * i + 2, 2), addr, i * 1024 + 128))

def build_k3():
    p = Prog()
    p('''
k3_kernel:
    s_cmp_ge_u32 s2, 56
    s_cbranch_scc1 L_end_k3
    s_load_dwordx4 s[4:7], s[0:1], 56
    s_load_dwordx2 s[24:25], s[0:1], 112
    v_and_b32 v1, 63, v0
    v_lshrrev_b32 v2, 6, v0
    s_nop 0
    v_readfirstlane_b32 s3, v2
    s_waitcnt lgkmcnt(0)
    s_cmp_ge_u32 s3, 2
    s_cselect_b32 s4, s6, s4
    s_cselect_b32 s5, s7, s5
''')
    srd(p, 8, 4, 448 * 3584)
    srd(p, 12, 24, 8192, str(WS_R))
    srd(p, 16, 24, 2048 * 896, str(WS_H2))
    srd(p, 20, 24, 28672, str(WS_ACT))
    srd(p, 28, 24, 64, str(WS_IDX))
    p('''
    s_and_b32 s40, s2, 7
    s_mul_i32 s40, s40, 7
    s_lshr_b32 s41, s2, 3
    s_add_u32 s40, s40, s41           ; column block = (wg&7)*7 + (wg>>3): neighbours share an XCD (speed only)
    s_lshl_b32 s40, s40, 6
    s_and_b32 s41, s3, 1
    s_lshl_b32 s41, s41, 5
    s_add_u32 s40, s40, s41
    v_lshrrev_b32 v3, 1, v1
    v_mul_u32_u24 v3, 3584, v3
    v_and_b32 v4, 1, v1
    v_lshl_add_u32 v3, v4, 4, v3
    v_add_u32 v3, s40, v3
    s_mov_b32 s45, %d
    s_mul_i32 s46, s3, 14336
''' % (32 * 3584))
    p('v_lshlrev_b32 v5, 5, v0')
    p('buffer_load_dwordx4 v[8:11], v5, s[12:15], 0 offen')
    p('buffer_load_dwordx4 v[12:15], v5, s[12:15], 0 offen offset:16')
    wstage(p, 8, 3, 14, 46)
    p('v_lshlrev_b32 v6, 3, v0')
    p('v_sub_u32 v6, 2047, v6')
    p('s_waitcnt vmcnt(14)')
    p(';ST 0')
    for j in range(8):
        k = 8 + j
        p('v_ashrrev_i32 v16, 31, v%d' % k)
        p('v_or_b32 v16, 0x80000000, v16')
        p('v_xor_b32 v%d, v%d, v16' % (k, k))
        p('v_and_b32 v%d, 0xffff0000, v%d' % (k, k))
        p('v_subrev_u32 v17, %d, v6' % j)
        p('v_or_b32 v%d, v%d, v17' % (k, k))
    top8(p, 8, 16)
    p(';ST 1')
    p('v_and_b32 v20, 0xffff, v17')
    p('v_sub_u32 v20, 2047, v20')
    p('''
    v_mul_u32_u24 v22, 896, v20
    v_lshrrev_b32 v23, 4, v1
    v_lshl_add_u32 v22, v23, 4, v22
''')
    for i in range(14):
        p('buffer_load_dwordx4 %s, v22, s[16:19], 0 offen offset:%d' % (vr(32 + 4 * i, 4), 64 * i))
    p('''
    s_or_b32 s47, s2, s3
    s_cmp_lg_u32 s47, 0
    s_cbranch_scc1 L_k3_nopub
    v_mov_b32 v24, v17
    v_and_b32 v24, 0xffff0000, v24
    v_ashrrev_i32 v25, 31, v24
    v_not_b32 v25, v25
    v_or_b32 v25, 0x80000000, v25
    v_xor_b32 v24, v24, v25
    v_and_b32 v24, 0xffff0000, v24
    v_mul_f32 v25, 0xbfb8aa3b, v24
    v_exp_f32 v25, v25
    s_nop 0
    v_add_f32 v25, 1.0, v25
    v_rcp_f32 v25, v25
    s_nop 0
    v_cvt_pk_bf16_f32 v25, v25, 0
    v_lshlrev_b32 v25, 16, v25
    v_lshlrev_b32 v26, 2, v1
    v_cmp_gt_u32 vcc, 8, v1
    v_mov_b32 v27, 0x40000000
    s_nop 0
    v_cndmask_b32 v26, v27, v26, vcc
    buffer_store_dword v20, v26, s[28:31], 0 offen
    buffer_store_dword v25, v26, s[28:31], 0 offen offset:32
L_k3_nopub:
''')
    p('''
    v_lshrrev_b32 v28, 4, v1            ; kq
    v_lshlrev_b32 v28, 3, v28           ; 8 kq
    v_bfe_u32 v29, v1, 2, 2             ; r
    v_add_u32 v28, v28, v29
    v_lshlrev_b32 v28, 5, v28           ; row*32
    v_and_b32 v29, 3, v1
    v_lshl_add_u32 v28, v29, 3, v28
    v_add_u32 v28, s46, v28
    s_waitcnt vmcnt(14)
''')
    p(';ST 2')
    tr_frags(p, 28, 96, 14)
    p('s_waitcnt vmcnt(0) lgkmcnt(0)')
    p(';ST 3')
    for i in range(14):
        c = '0' if i == 0 else 'v[160:163]'
        p('v_mfma_f32_16x16x32_bf16 v[160:163], %s, %s, %s' % (vr(32 + 4 * i, 4), vr(96 + 4 * i, 4), c))
    p('s_nop 7')
    p('v_cvt_pk_bf16_f32 v164, v160, v161')
    p('v_cvt_pk_bf16_f32 v165, v162, v163')
    p('''
    v_lshlrev_b32 v160, 16, v164
    v_and_b32 v161, 0xffff0000, v164
    v_lshlrev_b32 v162, 16, v165
    v_and_b32 v163, 0xffff0000, v165
    s_cmp_ge_u32 s3, 2
    s_cbranch_scc1 L_k3_up
''')
    for r in range(4): p('v_mul_f32 v%d, 0xbfb8aa3b, v%d' % (166 + r, 160 + r))
    for r in range(4): p('v_exp_f32 v%d, v%d' % (166 + r, 166 + r))
    for r in range(4): p('v_add_f32 v%d, 1.0, v%d' % (166 + r, 166 + r))
    for r in range(4): p('v_rcp_f32 v%d, v%d' % (166 + r, 166 + r))
    p('s_nop 0')
    for r in range(4): p('v_mul_f32 v%d, v%d, v%d' % (160 + r, 160 + r, 166 + r))
    p('v_cvt_pk_bf16_f32 v164, v160, v161')
    p('v_cvt_pk_bf16_f32 v165, v162, v163')
    p('''
    v_lshlrev_b32 v160, 16, v164
    v_and_b32 v161, 0xffff0000, v164
    v_lshlrev_b32 v162, 16, v165
    v_and_b32 v163, 0xffff0000, v165
L_k3_up:
    s_and_b32 s41, s3, 1
    s_lshl_b32 s41, s41, 10
    v_lshlrev_b32 v30, 4, v1
    v_add_u32 v30, s41, v30
    v_add_u32 v30, %d, v30
    s_cmp_ge_u32 s3, 2
    s_cbranch_scc0 L_k3_gate_wait
    ds_write_b128 v30, v[160:163]
L_k3_gate_wait:
    s_waitcnt lgkmcnt(0)
    s_barrier
    s_cmp_ge_u32 s3, 2
    s_cbranch_scc1 L_end_k3
    ds_read_b128 v[164:167], v30
    s_waitcnt lgkmcnt(0)
''' % (TOPK_LDS + 256))
    for r in range(4): p('v_mul_f32 v%d, v%d, v%d' % (160 + r, 160 + r, 164 + r))
    p('''
    v_cvt_pk_bf16_f32 v160, v160, v161
    v_cvt_pk_bf16_f32 v162, v162, v163
    v_lshrrev_b32 v23, 4, v1
    v_mul_u32_u24 v24, %d, v23          ; 4 rows * 3584 B
    v_and_b32 v25, 15, v1
    v_lshl_add_u32 v24, v25, 1, v24
    v_add_u32 v24, s40, v24
    v_mov_b32 v27, 0x40000000
    v_cmp_gt_u32 vcc, 32, v1
    s_nop 1
    v_cndmask_b32 v24, v27, v24, vcc
    buffer_store_short v160, v24, s[20:23], 0 offen
    buffer_store_short_d16_hi v160, v24, s[20:23], 0 offen offset:3584
    s_mov_b32 s41, 7168
    buffer_store_short v162, v24, s[20:23], s41 offen
    buffer_store_short_d16_hi v162, v24, s[20:23], s41 offen offset:3584
    s_waitcnt vmcnt(0)
L_end_k3:
    s_endpgm
''' % (4 * 3584))
    return p

def build_k4():
    p = Prog()
    p('''
k4_kernel:
    s_cmp_ge_u32 s2, 28
    s_cbranch_scc1 L_end_k4
    s_load_dwordx2 s[4:5], s[0:1], 72
    s_load_dwordx2 s[28:29], s[0:1], 96
    s_load_dwordx2 s[24:25], s[0:1], 112
    v_and_b32 v1, 63, v0
    v_lshrrev_b32 v2, 6, v0
    s_nop 0
    v_readfirstlane_b32 s3, v2
    s_waitcnt lgkmcnt(0)
''')
    p('s_mul_i32 s40, s3, %d' % (448 * 896))
    p('s_add_u32 s4, s4, s40'); p('s_addc_u32 s5, s5, 0')
    srd(p, 8, 4, 448 * 896)
    srd(p, 12, 24, 10752)
    srd(p, 16, 24, 64, str(WS_IDX))
    srd(p, 20, 24, 28672, str(WS_ACT))
    srd(p, 28, 28, 2048 * 896)
    p('''
    s_and_b32 s47, s2, 7
    s_lshr_b32 s41, s2, 3
    s_lshl_b32 s42, s47, 2
    s_mul_i32 s43, s47, 3
    s_add_u32 s43, s43, 4             ; 16 + (x-4)*3 = 3x + 4
    s_cmp_lt_u32 s47, 4
    s_cselect_b32 s47, s42, s43
    s_add_u32 s47, s47, s41           ; column block
    s_lshl_b32 s40, s47, 5              ; column byte offset
    v_lshrrev_b32 v3, 1, v1
    v_mul_u32_u24 v3, 896, v3
    v_and_b32 v4, 1, v1
    v_lshl_add_u32 v3, v4, 4, v3
    v_add_u32 v3, s40, v3
    s_mov_b32 s45, %d
    s_mul_i32 s46, s3, 14336
''' % (32 * 896))
    wstage(p, 8, 3, 14, 46)
    p(';ST 0')
    p('''
    v_and_b32 v4, 7, v1
    v_mul_u32_u24 v22, 3584, v4
    v_lshrrev_b32 v23, 4, v1
    v_lshl_add_u32 v22, v23, 4, v22
    s_mul_i32 s41, s3, 896
    v_add_u32 v22, s41, v22
''')
    for i in range(14):
        p('buffer_load_dwordx4 %s, v22, s[20:23], 0 offen offset:%d' % (vr(32 + 4 * i, 4), 64 * i))
    p('''
    v_lshrrev_b32 v23, 4, v1
    v_and_b32 v23, 1, v23
    v_lshlrev_b32 v24, 4, v23
    buffer_load_dwordx4 v[8:11], v24, s[16:19], 0 offen            ; idx[4kq..]
    buffer_load_dwordx4 v[12:15], v24, s[16:19], 0 offen offset:32 ; sig[4kq..]
    v_and_b32 v25, 15, v1
    v_lshlrev_b32 v26, 2, v25
    s_lshl_b32 s41, s47, 6
    v_add_u32 v26, s41, v26
    s_mov_b32 s42, 8960
    buffer_load_dword v16, v26, s[12:15], s42 offen                ; gb[col]
    v_lshrrev_b32 v28, 4, v1
    v_lshlrev_b32 v28, 3, v28
    v_bfe_u32 v29, v1, 2, 2
    v_add_u32 v28, v28, v29
    v_lshlrev_b32 v28, 5, v28
    v_and_b32 v29, 3, v1
    v_lshl_add_u32 v28, v29, 3, v28
    v_add_u32 v28, s46, v28
    s_waitcnt vmcnt(0)
''')
    p(';ST 1')
    for r in range(4):
        p('v_mul_u32_u24 v%d, 896, v%d' % (17 + r, 8 + r))
    p('v_lshlrev_b32 v25, 1, v25')
    p('v_add_u32 v25, s40, v25')
    for r in range(4):
        p('v_add_u32 v%d, v%d, v25' % (17 + r, 17 + r))
    for r in range(4):
        p('buffer_load_ushort v%d, v%d, s[28:31], 0 offen' % (100 + r, 17 + r))
    tr_frags(p, 28, 104, 14)
    p('s_waitcnt lgkmcnt(0)')
    p(';ST 2')
    for i in range(14):
        c = '0' if i == 0 else 'v[160:163]'
        p('v_mfma_f32_16x16x32_bf16 v[160:163], %s, %s, %s' % (vr(32 + 4 * i, 4), vr(104 + 4 * i, 4), c))
    p('s_nop 7')
    p('''
    v_lshlrev_b32 v30, 4, v1
    s_lshl_b32 s41, s3, 10
    v_add_u32 v30, s41, v30
    ds_write_b128 v30, v[160:163] offset:57344
    s_waitcnt lgkmcnt(0)
    s_barrier
    s_cmp_lg_u32 s3, 0
    s_cbranch_scc1 L_end_k4
    ds_read_b128 v[164:167], v30 offset:58368
    ds_read_b128 v[168:171], v30 offset:59392
    ds_read_b128 v[172:175], v30 offset:60416
    s_waitcnt vmcnt(0) lgkmcnt(0)
''')
    for r in range(4):
        p('v_add_f32 v%d, v%d, v%d' % (160 + r, 160 + r, 164 + r))
        p('v_add_f32 v%d, v%d, v%d' % (168 + r, 168 + r, 172 + r))
    for r in range(4):
        p('v_add_f32 v%d, v%d, v%d' % (160 + r, 160 + r, 168 + r))
    def rnd(a):
        p('v_cvt_pk_bf16_f32 v164, v%d, v%d' % (a, a + 1))
        p('v_cvt_pk_bf16_f32 v165, v%d, v%d' % (a + 2, a + 3))
        p('v_lshlrev_b32 v%d, 16, v164' % a); p('v_and_b32 v%d, 0xffff0000, v164' % (a + 1))
        p('v_lshlrev_b32 v%d, 16, v165' % (a + 2)); p('v_and_b32 v%d, 0xffff0000, v165' % (a + 3))
    rnd(160)
    for r in range(4): p('v_mul_f32 v%d, v%d, v%d' % (160 + r, 160 + r, 12 + r))
    rnd(160)
    for r in range(4):
        p('v_lshlrev_b32 v%d, 16, v%d' % (100 + r, 100 + r))
        p('v_fma_f32 v%d, v%d, v16, v%d' % (160 + r, 160 + r, 100 + r))
    p('v_cvt_pk_bf16_f32 v164, v160, v161')
    p('v_cvt_pk_bf16_f32 v165, v162, v163')
    p('''
    v_mov_b32 v27, 0x40000000
    v_cmp_gt_u32 vcc, 32, v1
    s_nop 1
''')
    for r in range(4): p('v_cndmask_b32 v%d, v27, v%d, vcc' % (17 + r, 17 + r))
    p('''
    buffer_store_short v164, v17, s[28:31], 0 offen
    buffer_store_short_d16_hi v164, v18, s[28:31], 0 offen
    buffer_store_short v165, v19, s[28:31], 0 offen
    buffer_store_short_d16_hi v165, v20, s[28:31], 0 offen
    s_waitcnt vmcnt(0)
L_end_k4:
    s_endpgm
''')
    return p


def keys_and_top8(p):
    p('v_lshlrev_b32 v6, 3, v0')
    p('v_sub_u32 v6, 2047, v6')
    for j in range(8):
        k = 8 + j
        p('v_ashrrev_i32 v16, 31, v%d' % k)
        p('v_or_b32 v16, 0x80000000, v16')
        p('v_xor_b32 v%d, v%d, v16' % (k, k))
        p('v_and_b32 v%d, 0xffff0000, v%d' % (k, k))
        p('v_subrev_u32 v17, %d, v6' % j)
        p('v_or_b32 v%d, v%d, v17' % (k, k))
    top8(p, 8, 16)

K34_FLAGS = False
def build_k34():
    p = Prog()
    p("""
k34_kernel:
    s_cmp_ge_u32 s2, 84
    s_cbranch_scc1 L_end_k34
    s_load_dwordx4 s[4:7], s[0:1], 56
    s_load_dwordx2 s[48:49], s[0:1], 72
    s_load_dwordx4 s[52:55], s[0:1], 96
    s_load_dwordx2 s[24:25], s[0:1], 112
    v_and_b32 v1, 63, v0
    v_lshrrev_b32 v2, 6, v0
    s_nop 0
    v_readfirstlane_b32 s3, v2
    v_lshlrev_b32 v5, 5, v0
    s_waitcnt lgkmcnt(0)
""")
    srd(p, 12, 24, 8192, str(WS_R))
    p('buffer_load_dwordx4 v[8:11], v5, s[12:15], 0 offen')
    p('buffer_load_dwordx4 v[12:15], v5, s[12:15], 0 offen offset:16')
    srd(p, 16, 24, 2048 * 896, str(WS_H2))
    srd(p, 20, 24, 28672, str(WS_ACT))
    srd(p, 56, 54, 256)
    p("""
    s_cmp_ge_u32 s2, 56
    s_cbranch_scc1 L_k34_down
    s_cmp_ge_u32 s3, 2
    s_cselect_b32 s4, s6, s4
    s_cselect_b32 s5, s7, s5
""")
    srd(p, 8, 4, 448 * 3584)
    p("""
    s_and_b32 s40, s2, 7
    s_mul_i32 s40, s40, 7
    s_lshr_b32 s41, s2, 3
    s_add_u32 s40, s40, s41
    s_lshl_b32 s40, s40, 6
    s_and_b32 s41, s3, 1
    s_lshl_b32 s41, s41, 5
    s_add_u32 s40, s40, s41
    v_lshrrev_b32 v3, 1, v1
    v_mul_u32_u24 v3, 3584, v3
    v_and_b32 v4, 1, v1
    v_lshl_add_u32 v3, v4, 4, v3
    v_add_u32 v3, s40, v3
    s_mov_b32 s45, %d
    s_mul_i32 s46, s3, 14336
""" % (32 * 3584))
    wstage(p, 8, 3, 14, 46)
    p('s_waitcnt vmcnt(14)')
    p(';ST 0')
    keys_and_top8(p)
    p(';ST 1')
    p("""
    v_and_b32 v20, 0xffff, v17
    v_sub_u32 v20, 2047, v20
    v_mul_u32_u24 v22, 896, v20
    v_lshrrev_b32 v23, 4, v1
    v_lshl_add_u32 v22, v23, 4, v22
""")
    for i in range(14):
        p('buffer_load_dwordx4 %s, v22, s[16:19], 0 offen offset:%d' % (vr(32 + 4 * i, 4), 64 * i))
    p("""
    v_lshrrev_b32 v28, 4, v1            ; kq
    v_lshlrev_b32 v28, 3, v28           ; 8 kq
    v_bfe_u32 v29, v1, 2, 2             ; r
    v_add_u32 v28, v28, v29
    v_lshlrev_b32 v28, 5, v28           ; row*32
    v_and_b32 v29, 3, v1
    v_lshl_add_u32 v28, v29, 3, v28
    v_add_u32 v28, s46, v28
    s_waitcnt vmcnt(14)
""")
    tr_frags(p, 28, 96, 14)
    p('s_waitcnt vmcnt(0) lgkmcnt(0)')
    p(';ST 2')
    for i in range(14):
        c = '0' if i == 0 else 'v[160:163]'
        p('v_mfma_f32_16x16x32_bf16 v[160:163], %s, %s, %s' % (vr(32 + 4 * i, 4), vr(96 + 4 * i, 4), c))
    p('s_nop 7')
    p("""
    v_cvt_pk_bf16_f32 v164, v160, v161
    v_cvt_pk_bf16_f32 v165, v162, v163
    v_lshlrev_b32 v160, 16, v164
    v_and_b32 v161, 0xffff0000, v164
    v_lshlrev_b32 v162, 16, v165
    v_and_b32 v163, 0xffff0000, v165
    s_and_b32 s41, s3, 1
    s_lshl_b32 s41, s41, 10
    v_lshlrev_b32 v30, 4, v1
    v_add_u32 v30, s41, v30
    v_add_u32 v30, %d, v30
    s_cmp_ge_u32 s3, 2
    s_cbranch_scc0 L_k34_gate
    ds_write_b128 v30, v[160:163]
    s_waitcnt lgkmcnt(0)
    s_barrier
    s_barrier
    s_branch L_st_end_k34
L_k34_gate:
""" % (TOPK_LDS + 512))
    for r in range(4): p('v_mul_f32 v%d, 0xbfb8aa3b, v%d' % (166 + r, 160 + r))
    for r in range(4): p('v_exp_f32 v%d, v%d' % (166 + r, 166 + r))
    for r in range(4): p('v_add_f32 v%d, 1.0, v%d' % (166 + r, 166 + r))
    for r in range(4): p('v_rcp_f32 v%d, v%d' % (166 + r, 166 + r))
    p('s_nop 0')
    for r in range(4): p('v_mul_f32 v%d, v%d, v%d' % (160 + r, 160 + r, 166 + r))
    p("""
    v_cvt_pk_bf16_f32 v164, v160, v161
    v_cvt_pk_bf16_f32 v165, v162, v163
    v_lshlrev_b32 v160, 16, v164
    v_and_b32 v161, 0xffff0000, v164
    v_lshlrev_b32 v162, 16, v165
    v_and_b32 v163, 0xffff0000, v165
    s_waitcnt lgkmcnt(0)
    s_barrier
    ds_read_b128 v[164:167], v30
    s_waitcnt lgkmcnt(0)
""")
    for r in range(4): p('v_mul_f32 v%d, v%d, v%d' % (160 + r, 160 + r, 164 + r))
    for r in range(4): p('v_cvt_pk_bf16_f32 v%d, v%d, 0' % (160 + r, 160 + r))
    p('s_nop 1')
    for r in range(4): p('v_mov_b32_dpp v%d, v%d quad_perm:[1,0,3,2] row_mask:0xf bank_mask:0xf' % (164 + r, 160 + r))
    for r in range(4): p('v_lshl_or_b32 v%d, v%d, 16, v%d' % (160 + r, 164 + r, 160 + r))
    p("""
    v_lshrrev_b32 v23, 4, v1
    v_mul_u32_u24 v24, %d, v23          ; 4 rows * 3584 B
    v_and_b32 v25, 15, v1
    v_lshl_add_u32 v24, v25, 1, v24
    v_add_u32 v24, s40, v24
    v_mov_b32 v27, 0x40000000
    v_and_b32 v25, 0x21, v1             ; lanes >= 32 or odd lanes do not store
    v_cmp_eq_u32 vcc, 0, v25
    s_mov_b32 s41, 7168
    s_nop 0
    v_cndmask_b32 v24, v27, v24, vcc
    buffer_store_dword v160, v24, s[20:23], 0 offen sc1
    buffer_store_dword v161, v24, s[20:23], 0 offen offset:3584 sc1
    buffer_store_dword v162, v24, s[20:23], s41 offen sc1
    buffer_store_dword v163, v24, s[20:23], s41 offen offset:3584 sc1
    s_waitcnt vmcnt(0)
    s_barrier
    s_cmp_lg_u32 s3, 0
    s_cbranch_scc1 L_st_end_k34
    ;FLAGSIG
    s_branch L_st_end_k34
""" % (4 * 3584))
    idx = [k for k, i in enumerate(p.ins) if i.text.startswith(';FLAGSIG')][0]
    if K34_FLAGS:
        sig = """
    s_lshl_b32 s41, s2, 2
    v_mov_b32 v24, s41
    v_mov_b32 v25, 1
    v_cmp_eq_u32 vcc, 0, v1
    s_and_saveexec_b64 s[42:43], vcc
    buffer_store_dword v25, v24, s[56:59], 0 offen sc1
    s_mov_b64 exec, s[42:43]
"""
    else:
        sig = """
    v_mov_b32 v24, 0
    v_mov_b32 v25, 1
    v_cmp_eq_u32 vcc, 0, v1
    s_and_saveexec_b64 s[42:43], vcc
    buffer_atomic_add v25, v24, s[56:59], 0 offen sc0 sc1
    s_waitcnt vmcnt(0)
    v_readfirstlane_b32 s41, v25
    s_cmp_eq_u32 s41, 55
    s_cbranch_scc0 L_k34_notlast
    v_mov_b32 v25, 1
    buffer_store_dword v25, v24, s[56:59], 0 offen offset:128 sc1
L_k34_notlast:
    s_mov_b64 exec, s[42:43]
"""
    t = Prog(); t(sig)
    p.ins[idx:idx + 1] = t.ins
    p('L_k34_down:')
    p('s_sub_u32 s39, s2, 56')
    p('s_mul_i32 s40, s3, %d' % (448 * 896))
    p('s_add_u32 s48, s48, s40'); p('s_addc_u32 s49, s49, 0')
    srd(p, 8, 48, 448 * 896)
    srd(p, 60, 24, 10752)
    srd(p, 28, 52, 2048 * 896)
    p("""
    s_and_b32 s47, s39, 7
    s_lshr_b32 s41, s39, 3
    s_lshl_b32 s42, s47, 2
    s_mul_i32 s43, s47, 3
    s_add_u32 s43, s43, 4
    s_cmp_lt_u32 s47, 4
    s_cselect_b32 s47, s42, s43
    s_add_u32 s47, s47, s41           ; column block
    s_lshl_b32 s40, s47, 5              ; column byte offset
    v_lshrrev_b32 v3, 1, v1
    v_mul_u32_u24 v3, 896, v3
    v_and_b32 v4, 1, v1
    v_lshl_add_u32 v3, v4, 4, v3
    v_add_u32 v3, s40, v3
    s_mov_b32 s45, %d
    s_mul_i32 s46, s3, 14336
    v_and_b32 v25, 15, v1
    v_lshlrev_b32 v26, 2, v25
    s_lshl_b32 s41, s47, 6
    v_add_u32 v26, s41, v26
    s_mov_b32 s42, 8960
    buffer_load_dword v31, v26, s[60:63], s42 offen                ; gb[col]
""" % (32 * 896))
    wstage(p, 8, 3, 14, 46)
    p('s_waitcnt vmcnt(15)')
    keys_and_top8(p)
    p(';ST 0')
    p("""
    v_lshrrev_b32 v23, 4, v1
    v_and_b32 v23, 1, v23
    v_lshlrev_b32 v24, 4, v23
""")
    for r in range(4):
        p('v_add_u32 v21, %d, v24' % (4 * r))
        p('ds_bpermute_b32 v%d, v21, v17' % (8 + r))
    p('s_waitcnt lgkmcnt(0)')
    for r in range(4):
        k = 8 + r
        p('v_and_b32 v%d, 0xffff, v%d' % (17 + r if r else 18, k) if False else 'v_and_b32 v%d, 0xffff, v%d' % (100 + r, k))
        p('v_sub_u32 v%d, 2047, v%d' % (100 + r, 100 + r))
        p('v_mul_u32_u24 v%d, 896, v%d' % (104 + r, 100 + r))
    p('v_lshlrev_b32 v25, 1, v25')
    p('v_add_u32 v25, s40, v25')
    for r in range(4):
        p('v_add_u32 v%d, v%d, v25' % (104 + r, 104 + r))
    for r in range(4):
        p('buffer_load_ushort v%d, v%d, s[28:31], 0 offen' % (108 + r, 104 + r))
    for r in range(4):
        k = 8 + r
        p('v_and_b32 v%d, 0xffff0000, v%d' % (k, k))
        p('v_ashrrev_i32 v16, 31, v%d' % k)
        p('v_not_b32 v16, v16')
        p('v_or_b32 v16, 0x80000000, v16')
        p('v_xor_b32 v%d, v%d, v16' % (k, k))
        p('v_and_b32 v%d, 0xffff0000, v%d' % (k, k))
        p('v_mul_f32 v%d, 0xbfb8aa3b, v%d' % (12 + r, k))
    for r in range(4): p('v_exp_f32 v%d, v%d' % (12 + r, 12 + r))
    p('s_nop 0')
    for r in range(4): p('v_add_f32 v%d, 1.0, v%d' % (12 + r, 12 + r))
    for r in range(4): p('v_rcp_f32 v%d, v%d' % (12 + r, 12 + r))
    p('s_nop 0')
    for r in range(4): p('v_cvt_pk_bf16_f32 v%d, v%d, 0' % (12 + r, 12 + r))
    for r in range(4): p('v_lshlrev_b32 v%d, 16, v%d' % (12 + r, 12 + r))
    p("""
    v_lshrrev_b32 v28, 4, v1
    v_lshlrev_b32 v28, 3, v28
    v_bfe_u32 v29, v1, 2, 2
    v_add_u32 v28, v28, v29
    v_lshlrev_b32 v28, 5, v28
    v_and_b32 v29, 3, v1
    v_lshl_add_u32 v28, v29, 3, v28
    v_add_u32 v28, s46, v28
    v_and_b32 v4, 7, v1
    v_mul_u32_u24 v22, 3584, v4
    v_lshrrev_b32 v23, 4, v1
    v_lshl_add_u32 v22, v23, 4, v22
    s_mul_i32 s41, s3, 896
    v_add_u32 v22, s41, v22
    s_waitcnt vmcnt(4)
""")
    tr_frags(p, 28, 112, 14)
    p(';ST 1')
    p("""
    s_cmp_lg_u32 s3, 0
    s_cbranch_scc1 L_k34_polled
    ;POLL
L_k34_polled:
    s_barrier
""")
    idx = [k for k, i in enumerate(p.ins) if i.text.startswith(';POLL')][0]
    if K34_FLAGS:
        pl = """
    v_lshlrev_b32 v21, 2, v1
    s_mov_b32 s42, -1
    s_mov_b32 s43, 0x00ffffff
L_k34_poll:
    buffer_load_dword v23, v21, s[56:59], 0 offen sc1
    s_waitcnt vmcnt(0)
    v_cmp_eq_u32 vcc, 1, v23
    s_nop 0
    s_and_b64 vcc, vcc, s[42:43]
    s_cmp_eq_u64 vcc, s[42:43]
    s_cbranch_scc1 L_k34_polled
    s_sleep 4
    s_branch L_k34_poll
"""
    else:
        pl = """
    v_mov_b32 v21, 0
L_k34_poll:
    buffer_load_dword v23, v21, s[56:59], 0 offen offset:128 sc1
    s_waitcnt vmcnt(0)
    v_readfirstlane_b32 s41, v23
    s_cmp_eq_u32 s41, 1
    s_cbranch_scc1 L_k34_polled
    s_sleep 4
    s_branch L_k34_poll
"""
    t = Prog(); t(pl)
    p.ins[idx:idx + 1] = t.ins
    p(';ST 2')
    for i in range(14):
        p('buffer_load_dwordx4 %s, v22, s[20:23], 0 offen offset:%d sc1' % (vr(32 + 4 * i, 4), 64 * i))
    p('s_waitcnt vmcnt(0) lgkmcnt(0)')
    for i in range(14):
        c = '0' if i == 0 else 'v[172:175]'
        p('v_mfma_f32_16x16x32_bf16 v[172:175], %s, %s, %s' % (vr(32 + 4 * i, 4), vr(112 + 4 * i, 4), c))
    p('s_nop 7')
    p("""
    v_lshlrev_b32 v30, 4, v1
    s_lshl_b32 s41, s3, 10
    v_add_u32 v30, s41, v30
    ds_write_b128 v30, v[172:175] offset:%d
    s_waitcnt lgkmcnt(0)
    s_barrier
    s_cmp_lg_u32 s3, 0
    s_cbranch_scc1 L_st_end_k34
    ds_read_b128 v[176:179], v30 offset:%d
    ds_read_b128 v[180:183], v30 offset:%d
    ds_read_b128 v[184:187], v30 offset:%d
    s_waitcnt lgkmcnt(0)
""" % (TOPK_LDS + 1024, TOPK_LDS + 2048, TOPK_LDS + 3072, TOPK_LDS + 4096))
    Y = 172
    for r in range(4):
        p('v_add_f32 v%d, v%d, v%d' % (Y + r, Y + r, 176 + r))
        p('v_add_f32 v%d, v%d, v%d' % (180 + r, 180 + r, 184 + r))
    for r in range(4):
        p('v_add_f32 v%d, v%d, v%d' % (Y + r, Y + r, 180 + r))
    def rnd(a):
        p('v_cvt_pk_bf16_f32 v188, v%d, v%d' % (a, a + 1))
        p('v_cvt_pk_bf16_f32 v189, v%d, v%d' % (a + 2, a + 3))
        p('v_lshlrev_b32 v%d, 16, v188' % a); p('v_and_b32 v%d, 0xffff0000, v188' % (a + 1))
        p('v_lshlrev_b32 v%d, 16, v189' % (a + 2)); p('v_and_b32 v%d, 0xffff0000, v189' % (a + 3))
    rnd(Y)
    for r in range(4): p('v_mul_f32 v%d, v%d, v%d' % (Y + r, Y + r, 12 + r))
    rnd(Y)
    for r in range(4):
        p('v_lshlrev_b32 v%d, 16, v%d' % (108 + r, 108 + r))
        p('v_fma_f32 v%d, v%d, v31, v%d' % (Y + r, Y + r, 108 + r))
    p('v_cvt_pk_bf16_f32 v188, v%d, v%d' % (Y, Y + 1))
    p('v_cvt_pk_bf16_f32 v189, v%d, v%d' % (Y + 2, Y + 3))
    p("""
    v_mov_b32 v27, 0x40000000
    v_cmp_gt_u32 vcc, 32, v1
    s_nop 1
""")
    for r in range(4): p('v_cndmask_b32 v%d, v27, v%d, vcc' % (104 + r, 104 + r))
    p("""
    buffer_store_short v188, v104, s[28:31], 0 offen
    buffer_store_short_d16_hi v188, v105, s[28:31], 0 offen
    buffer_store_short v189, v106, s[28:31], 0 offen
    buffer_store_short_d16_hi v189, v107, s[28:31], 0 offen
L_st_end_k34:
L_end_k34:
    s_endpgm
""")
    return p


K2_OUT_FLAGS = ''
def k2_math(p, P0, XR, GA, S2, A2, GB, WR, ACC, X1, PK, VOUT, VMASK, VLANE_, VBIG, SEL, srd_h2, srd_out, srd_r, s_row0, T):
    for rr in range(2):
        for j in range(8):
            p('v_mul_f32 v%d, v%d, v%d' % (ACC[rr] + j, ACC[rr] + j, GA + j))
        for j in range(8):
            p('v_dot2_f32_bf16 v%d, v%d, v%d, v%d' % (ACC[rr] + j, XR[rr] + j // 2, SEL + j % 2, ACC[rr] + j))
    p('s_nop 2')
    for rr in range(2):
        for j in range(0, 8, 2):
            p('v_cvt_pk_bf16_f32 v%d, v%d, v%d' % (PK + rr * 4 + j // 2, ACC[rr] + j, ACC[rr] + j + 1))
    for rr in range(2):
        for j in range(8):
            if j % 2 == 0: p('v_lshlrev_b32 v%d, 16, v%d' % (X1[rr] + j, PK + rr * 4 + j // 2))
            else: p('v_and_b32 v%d, 0xffff0000, v%d' % (X1[rr] + j, PK + rr * 4 + j // 2))
    SUM = [T, T + 1]
    for rr in range(2):
        p('v_add_f32 v%d, v%d, v%d' % (SUM[rr], X1[rr], X1[rr] + 1))
        for j in range(2, 8): p('v_add_f32 v%d, v%d, v%d' % (SUM[rr], SUM[rr], X1[rr] + j))
    wave_reduce_multi(p, SUM, [T + 2, T + 3])
    XC = ACC
    for rr in range(2):
        p('v_mul_f32 v%d, 0xbb124925, v%d' % (SUM[rr], SUM[rr]))
    for rr in range(2):
        for j in range(8):
            p('v_add_f32 v%d, v%d, v%d' % (XC[rr] + j, X1[rr] + j, SUM[rr]))
    VAR = [T + 2, T + 3]
    for rr in range(2):
        p('v_mul_f32 v%d, v%d, v%d' % (VAR[rr], XC[rr], XC[rr]))
        for j in range(1, 8): p('v_fmac_f32 v%d, v%d, v%d' % (VAR[rr], XC[rr] + j, XC[rr] + j))
    for rr in range(2):
        p('v_mul_f32 v%d, v%d, v%d' % (VAR[rr], VAR[rr], VMASK))
    wave_reduce_multi(p, VAR, [T + 4, T + 5])
    for rr in range(2):
        p('v_mov_b32 v%d, 0x3727c5ac' % (T + 4 + rr))
        p('v_fmac_f32 v%d, 0x3b124925, v%d' % (T + 4 + rr, VAR[rr]))
    for rr in range(2):
        p('v_rsq_f32 v%d, v%d' % (VAR[rr], T + 4 + rr))
    p('s_nop 0')
    H = [PK, PK + 4]
    for rr in range(2):
        for j in range(8):
            p('v_mul_f32 v%d, v%d, v%d' % (XC[rr] + j, XC[rr] + j, VAR[rr]))
        for j in range(8):
            p('v_fma_f32 v%d, v%d, v%d, v%d' % (XC[rr] + j, XC[rr] + j, A2 + j, S2 + j))
        for j in range(0, 8, 2):
            p('v_cvt_pk_bf16_f32 v%d, v%d, v%d' % (H[rr] + j // 2, XC[rr] + j, XC[rr] + j + 1))
    for rr in range(2):
        p('buffer_store_dwordx4 %s, v%d, s[%d:%d], 0 offen offset:%d%s' % (vr(H[rr], 4), VOUT, srd_h2, srd_h2 + 3, rr * 896, K2_OUT_FLAGS))
    RR = [T + 4, T + 5]
    for rr in range(2):
        p('v_mov_b32 v%d, 0' % RR[rr])
    for j in range(4):
        for rr in range(2):
            p('v_dot2_f32_bf16 v%d, v%d, v%d, v%d' % (RR[rr], H[rr] + j, WR + j, RR[rr]))
    OUTR = [P0[0], P0[0] + 4]
    for rr in range(2):
        for j in range(8):
            if j % 2 == 0: p('v_lshlrev_b32 v%d, 16, v%d' % (XC[rr] + j, H[rr] + j // 2))
            else: p('v_and_b32 v%d, 0xffff0000, v%d' % (XC[rr] + j, H[rr] + j // 2))
        for j in range(8):
            p('v_fma_f32 v%d, v%d, v%d, v%d' % (XC[rr] + j, XC[rr] + j, GB + j, X1[rr] + j))
        for j in range(0, 8, 2):
            p('v_cvt_pk_bf16_f32 v%d, v%d, v%d' % (OUTR[rr] + j // 2, XC[rr] + j, XC[rr] + j + 1))
        p('buffer_store_dwordx4 %s, v%d, s[%d:%d], 0 offen offset:%d%s' % (vr(OUTR[rr], 4), VOUT, srd_out, srd_out + 3, rr * 896, K2_OUT_FLAGS))
    wave_reduce_multi(p, RR, [T, T + 1])
    p("""
    v_cvt_pk_bf16_f32 v%d, v%d, 0
    v_cvt_pk_bf16_f32 v%d, v%d, 0
    v_lshlrev_b32 v%d, 16, v%d
    v_lshlrev_b32 v%d, 16, v%d
    v_cmp_eq_u32 vcc, 1, v%d
    s_nop 1
    v_cndmask_b32 v%d, v%d, v%d, vcc
    v_add_u32 v%d, s%d, v%d
    v_lshlrev_b32 v%d, 2, v%d
    v_cmp_gt_u32 vcc, 2, v%d
    s_nop 1
    v_cndmask_b32 v%d, v%d, v%d, vcc
    buffer_store_dword v%d, v%d, s[%d:%d], 0 offen%s
""" % (RR[0], RR[0], RR[1], RR[1], RR[0], RR[0], RR[1], RR[1], VLANE_, RR[0], RR[0], RR[1],
       T, s_row0, VLANE_, T, T, VLANE_, T, VBIG, T, RR[0], T, srd_r, srd_r + 3, K2_OUT_FLAGS))
```

```python
from asmlib import *
import gen_attn2 as A
from gen_attn2 import (vr, ar, BLK, HALF, KBUF, VBASE, SREG, PBUF, NEGM, FR, VK, VV, VOFF, LREG, TMP, VLANE,
                       S_K0, S_K1, S_V0, S_V1, S_DST, S_THR, S_RET, S_CNT, S_W, S_96, S, frag, kread, vread, qk_list, exps, dma,
                       max8, lreg)

WS_MOD = 0
WS_R = 0x4000
WS_IDX = 0x8000
WS_ACT = 0x10000
WS_H2 = 0x100000
WS_PART = 0x400000
WS_CNT = 0x20000
WS_STAMP = 0xa000000

H_OFF = 0
MV_OFF = 57344
QSLOT = [98304, 131072, 65536, 32768]
QX = 67584
XR = 0
ST = 131072
VEC = 59392
WO0 = 135168

S_G, S_QB, S_S, S_QH = 36, 37, 38, 39
S_X = 40
S_WQ = 44
S_WO = 48
S_SO = 52
S_T0, S_T1, S_T2, S_T3 = 60, 61, 62, 63
S_QD = 64
S_QD2 = 32
S_WST = 65
S_PART = 68
S_STAMP = 72

class VmTracker:
    def __init__(self): self.ops = []
    def add(self, tag): self.ops.append(tag)
    def wait(self, tag):
        idx = max(i for i, t in enumerate(self.ops) if t == tag)
        n = len(self.ops) - 1 - idx
        assert n <= 63
        return 's_waitcnt vmcnt(%d)' % n

STAMPS = {1: ['start', 'ln_done', 'qproj', 'qexch', 'attnpro', 'loop', 'oproj', 'end'],
          2: ['start', 'xwait', 'stats', 'modbar', 'hbar', 'ln_done', 'qproj', 'end'],
          4: ['start', 'p_w', 'p_bar', 'p_st', 'stats', 'poll_done', 'modbar', 'end'],
          5: ['start', 'oproj', 'stores', 'drain', 'grp', 'k2ld', 'k2m', 'end'],
          3: ['start', 'loop', 'e1bar', 'comb', 'e3bar', 'oproj', 'stores', 'end']}
def stamp(p, o, name):
    if o.stamps and name in STAMPS[o.stamps]:
        k = STAMPS[o.stamps].index(name)
        p('s_memrealtime s[%d:%d]' % (S_STAMP + 2 * k, S_STAMP + 2 * k + 1))
        if name in ('xwait', 'stats', 'modbar', 'hbar', 'e1bar', 'comb', 'e3bar', 'p_w', 'p_bar', 'p_st', 'poll_done'): p('s_waitcnt lgkmcnt(0)')

def xreduce(p, r, t, op='v_add_f32'):
    p('v_mov_b32 v%d, v%d' % (t, r))
    p('s_nop 1')
    p('v_permlane16_swap_b32 v%d, v%d' % (r, t))
    p('s_nop 1')
    p('%s v%d, v%d, v%d' % (op, r, r, t))
    p('v_mov_b32 v%d, v%d' % (t, r))
    p('s_nop 1')
    p('v_permlane32_swap_b32 v%d, v%d' % (r, t))
    p('s_nop 1')
    p('%s v%d, v%d, v%d' % (op, r, r, t))

def wq_dma(step, vm, VQ):
    out = []
    slot = QSLOT[step % 4]
    for jj in range(8):
        if jj % 4 == 0:
            out.append('s_add_u32 m0, s%d, %d' % (S_QD2, slot + jj * 1024))
        out.append(('buffer_load_dwordx4 v%d, s[%d:%d], s%d offen offset:%d lds' % (VQ[(jj >> 1) & 1], S_WQ, S_WQ + 3, S_SO + jj, (jj & 3) * 1024), 'wq%d' % step))
    return out

def emit_dma(p, lst, vm, nop=True):
    for s in lst:
        if isinstance(s, tuple):
            p(s[0]); vm.add(s[1])
        else:
            p(s)
            if nop and s.startswith('s_') and 'm0' in s: p('s_nop 0')

WS_MODP = 0x30000
WS_MODP2 = 0x38000

def mod_dot(o, p, NI, cunpack, wname):
    C0, W0, HI, ACC, TT = 168, 76, 132, 148, 156
    cunpack(C0)
    for i in range(NI): p('v_mul_f32 v%d, 0xbfb8aa3b, v%d' % (HI + i, C0 + i))
    for i in range(NI): p('v_exp_f32 v%d, v%d' % (HI + i, HI + i))
    p('s_nop 0')
    for i in range(NI): p('v_add_f32 v%d, 1.0, v%d' % (HI + i, HI + i))
    for i in range(NI): p('v_rcp_f32 v%d, v%d' % (HI + i, HI + i))
    p('s_nop 0')
    for i in range(NI): p('v_mul_f32 v%d, v%d, v%d' % (C0 + i, C0 + i, HI + i))
    for i in range(NI): p('v_cvt_pk_bf16_f32 v%d, v%d, 0' % (C0 + i, C0 + i))
    for i in range(NI): p('v_lshlrev_b32 v%d, 16, v%d' % (HI + i, C0 + i))
    for j in range(8): p('v_mov_b32 v%d, 0' % (ACC + j))
    wname()
    for i in range(NI):
        for j in range(8):
            w = W0 + 4 * i + j // 2
            sel = (C0 + i) if j % 2 == 0 else (HI + i)
            p('v_dot2_f32_bf16 v%d, v%d, v%d, v%d' % (ACC + j, w, sel, ACC + j))
    p('s_nop 2')
    regs = [ACC + j for j in range(8)]; temps = [TT + j for j in range(8)]
    for r in regs:
        p('v_add_f32_dpp v%d, v%d, v%d row_ror:8 row_mask:0xf bank_mask:0xf' % (r, r, r))
    for sw in ('v_permlane16_swap_b32', 'v_permlane32_swap_b32'):
        for r, t in zip(regs, temps): p('v_mov_b32 v%d, v%d' % (t, r))
        p('s_nop 1')
        for r, t in zip(regs, temps): p('%s v%d, v%d' % (sw, r, t))
        p('s_nop 1')
        for r, t in zip(regs, temps): p('v_add_f32 v%d, v%d, v%d' % (r, r, t))

def mod_wgsum(p, tag):
    B_ = MV_OFF + 4096
    p("""
    v_and_b32 v164, 7, v%d
    s_lshl_b32 s60, s%d, 8
    v_lshlrev_b32 v164, 5, v164
    v_add_u32 v164, s60, v164
    ds_write_b128 v164, v[148:151] offset:%d
    ds_write_b128 v164, v[152:155] offset:%d
    s_waitcnt lgkmcnt(0)
    s_barrier
    ;STAMP p_bar
    s_cmp_lg_u32 s%d, 0
    s_cbranch_scc1 L_prod_done_%s
    v_lshlrev_b32 v164, 2, v%d
    ds_read_b32 v165, v164 offset:%d
    ds_read_b32 v166, v164 offset:%d
    ds_read_b32 v167, v164 offset:%d
    ds_read_b32 v168, v164 offset:%d
    s_waitcnt lgkmcnt(0)
    v_add_f32 v165, v165, v166
    v_add_f32 v167, v167, v168
    v_add_f32 v165, v165, v167
""" % (VLANE, S_W, B_, B_ + 16, S_W, tag, VLANE, B_, B_ + 256, B_ + 512, B_ + 768))

def producer(o, p, xloads):
    p("""
    s_cmp_ge_u32 s2, 56
    s_cbranch_scc1 L_prod_late
    s_mul_i32 s57, s2, 74
    s_lshr_b32 s57, s57, 10            ; ks = j / 14
    s_mul_i32 s58, s57, 14
    s_sub_u32 s58, s2, s58             ; cb = j %% 14
    s_mul_i32 s56, s57, 3584
    s_lshl_b32 s59, s58, 8
    s_add_u32 s56, s56, s59
    s_add_u32 s56, s56, %d             ; partial store offset
    s_branch L_prod_map
L_prod_late:
    s_sub_u32 s59, s2, 56
    s_mul_i32 s57, s59, 147
    s_lshr_b32 s57, s57, 12            ; ks = j' / 28
    s_mul_i32 s58, s57, 28
    s_sub_u32 s58, s59, s58            ; cb' = j' %% 28
    s_mul_i32 s56, s57, 7168
    s_lshl_b32 s59, s58, 8
    s_add_u32 s56, s56, s59
    s_add_u32 s56, s56, %d
    s_add_u32 s58, s58, 14
L_prod_map:
    s_mul_i32 s62, s57, 112
    s_mul_i32 s63, s%d, 28
    s_add_u32 s62, s62, s63            ; first row of this wave
    v_and_b32 v206, 7, v%d             ; cc
    v_lshrrev_b32 v207, 3, v%d         ; kg
    v_add_u32 v209, s62, v207          ; row (i = 0)
    v_mul_u32_u24 v208, 5376, v209
    v_lshl_add_u32 v208, v206, 4, v208
    s_lshl_b32 s63, s58, 7
    v_add_u32 v208, s63, v208
    v_lshlrev_b32 v209, 1, v209
    v_mov_b32 v210, 0x40000000
    v_cmp_gt_u32 vcc, 4, v207          ; i = 3 valid only for kg < 4
    s_nop 1
    v_cndmask_b32 v211, v210, v209, vcc
    v_cndmask_b32 v212, v210, v208, vcc
    s_mov_b32 s63, %d
""" % (WS_MODP, WS_MODP2, S_W, VLANE, VLANE, 8 * 5376))
    for i in range(3): p('buffer_load_ushort v%d, v209, s[68:71], 0 offen offset:%d' % (60 + i, 16 * i))
    p('buffer_load_ushort v63, v211, s[68:71], 0 offen offset:48')
    for i in range(3):
        p('buffer_load_dwordx4 %s, v208, s[64:67], 0 offen' % vr(76 + 4 * i, 4))
        p('v_add_u32 v208, s63, v208')
        p('v_add_u32 v212, s63, v212')
    p('buffer_load_dwordx4 v[88:91], v212, s[64:67], 0 offen')
    xloads()
    p('s_waitcnt vmcnt(18)')
    def cun(C0):
        for i in range(4): p('v_lshlrev_b32 v%d, 16, v%d' % (C0 + i, 60 + i))
    def wwait():
        p('s_waitcnt vmcnt(14)')
        stamp(p, o, 'p_w')
    mod_dot(o, p, 4, cun, wwait)
    mod_wgsum(p, 'u')
    p("""
    v_add_u32 v164, s56, v164
    buffer_store_dword v165, v164, s[24:27], 0 offen sc1
    s_cmp_ge_u32 s2, 56
    s_cbranch_scc1 L_prod_done_u       ; late producers signal after the modulation barrier
    ;ZEROCNT
    s_waitcnt vmcnt(0)
    ;STAMP p_st
    v_mov_b32 v165, 1
    v_mov_b32 v164, 0
    v_cmp_eq_u32 vcc, 0, v%d
    s_and_saveexec_b64 s[62:63], vcc
    buffer_atomic_add v165, v164, s[88:91], 0 offen sc0 sc1
    s_waitcnt vmcnt(0)
    v_readfirstlane_b32 s60, v165
    s_cmp_eq_u32 s60, 55
    s_cbranch_scc0 L_prod_notlast
    v_mov_b32 v165, 1
    buffer_store_dword v165, v164, s[88:91], 0 offen offset:128 sc1
L_prod_notlast:
    s_mov_b64 exec, s[62:63]
L_prod_done_u:
""" % VLANE)

def prologue(o):
    p = Prog()
    L = VLANE
    vm = VmTracker()
    p("""
    s_cmp_ge_u32 s2, 256
    s_cbranch_scc1 L_end_k1
    s_load_dwordx2 s[40:41], s[0:1], 0
    s_load_dwordx4 s[4:7], s[0:1], 8
    s_load_dwordx4 s[44:47], s[0:1], 24
    s_load_dwordx4 s[64:67], s[0:1], 80
    s_load_dwordx4 s[88:91], s[0:1], 104
    s_load_dwordx4 s[96:99], s[0:1], 56
    s_load_dwordx2 s[100:101], s[0:1], 72
    v_lshrrev_b32 v1, 6, v0
    v_and_b32 v%d, 63, v0
    s_nop 0
    v_readfirstlane_b32 s%d, v1
    ;MAP
    s_lshr_b32 s%d, s%d, 1        ; s (key half)
    s_and_b32 s%d, s%d, 1         ; qh
""" % (L, S_W, S_S, S_W, S_QH, S_W))
    idx = [k for k, i in enumerate(p.ins) if i.text.startswith(';MAP')][0]
    if getattr(o, 'scramble', 0):
        p.ins[idx:idx + 1] = [I('s_lshr_b32 s%d, s2, 5' % S_G), I('s_and_b32 s%d, s2, 31' % S_QB)]
    else:
        p.ins[idx:idx + 1] = [I('s_and_b32 s%d, s2, 7' % S_G), I('s_lshr_b32 s%d, s2, 3' % S_QB)]
    if o.stamps:
        p('s_memrealtime s[%d:%d]' % (S_STAMP, S_STAMP + 1))
    p("""
    v_and_b32 v200, 15, v%d           ; n
    v_lshrrev_b32 v201, 4, v%d        ; kq
    s_lshl_b32 s60, s%d, 4
    v_add_u32 v202, s60, v200
    v_mul_u32_u24 v202, 896, v202
    v_lshl_add_u32 v202, v201, 4, v202
    s_mul_i32 s60, s%d, 57344
    s_waitcnt lgkmcnt(0)
    s_mov_b32 s24, s90
    s_mov_b32 s25, s91
    s_mov_b32 s26, 0x10000000
    s_mov_b32 s27, 0x20000
    s_mov_b32 s90, 256
    s_mov_b32 s91, 0x20000
    s_add_u32 s40, s40, s60
    s_addc_u32 s41, s41, 0
    s_mov_b32 s42, 57344
    s_mov_b32 s43, 0x20000
""" % (L, L, S_W, S_QB))
    def xl():
        for ks in range(14):
            p('buffer_load_dwordx4 %s, v202, s[40:43], 0 offen offset:%d' % (vr(4 * ks, 4), ks * 64))
    p("""
    s_cmp_ge_u32 s2, 168
    s_cbranch_scc1 L_noprod_a
    s_mov_b32 s68, s64
    s_mov_b32 s69, s65
    s_mov_b32 s70, 896
    s_mov_b32 s71, 0x20000
    s_mov_b32 s64, s66
    s_mov_b32 s65, s67
    s_mov_b32 s66, %d
    s_mov_b32 s67, 0x20000
""" % (448 * 5376))
    producer(o, p, xl)
    p('s_branch L_noprod_b')
    p('L_noprod_a:')
    for ks in range(14):
        p('buffer_load_dwordx4 %s, v202, s[40:43], 0 offen offset:%d' % (vr(4 * ks, 4), ks * 64)); vm.add('x')
    p('L_noprod_b:')
    p("""
    s_mov_b32 s48, s46
    s_mov_b32 s49, s47
    s_mul_i32 s60, s%d, 458752
    s_add_u32 s48, s48, s60
    s_addc_u32 s49, s49, 0
    s_mov_b32 s50, 458752
    s_mov_b32 s51, 0x20000
    s_lshl_b32 s60, s%d, 10
    s_add_u32 s44, s44, s60
    s_addc_u32 s45, s45, 0
    s_sub_u32 s46, 3670016, s60
    s_mov_b32 s47, 0x20000
""" % (S_G, S_G))
    if o.pf:
        D = o.pfd
        p("""
    s_lshl_b32 s60, s%d, 20
    s_cmp_lt_u32 s%d, 16
    s_cselect_b32 s92, s4, s6
    s_cselect_b32 s93, s5, s7
    s_add_u32 s92, s92, s60
    s_addc_u32 s93, s93, 0
    s_mov_b32 s94, 0x100000
    s_mov_b32 s95, 0x20000
    s_and_b32 s60, s%d, 15
    s_lshl_b32 s60, s60, 4
    s_lshl_b32 s61, s%d, 2
    s_add_u32 s60, s60, s61            ; line0 = (qb&15)*16 + w*4
    v_and_b32 v206, 3, v%d
    v_add_u32 v206, s60, v206
    v_lshlrev_b32 v206, 7, v206        ; line*128
    v_lshrrev_b32 v207, 2, v%d         ; tile = lane>>2
    v_lshl_add_u32 v207, v207, 15, v206
    v_mov_b32 v208, 0x40000000
    v_cmp_gt_u32 vcc, %d, v%d
    s_nop 1
    v_cndmask_b32 v207, v208, v207, vcc
    v_cmp_gt_u32 vcc, 4, v%d
    v_add_u32 v206, %d, v206
    s_nop 0
    v_cndmask_b32 v%d, v208, v206, vcc
""" % (S_G, S_QB, S_QB, S_W, L, L, 4 * D, L, L, D * 32768, A.VPFA))
        p("""
    s_mul_i32 s60, s%d, 112
    s_mul_i32 s61, s%d, 28
    s_add_u32 s60, s60, s61
    v_add_u32 v206, s60, v%d
    v_lshrrev_b32 v209, 3, v206
    v_lshlrev_b32 v209, 13, v209
    v_and_b32 v210, 7, v206
    v_lshl_add_u32 v209, v210, 7, v209
    v_lshlrev_b32 v206, 7, v206        ; wo prefetch offset = L*128
    v_cmp_gt_u32 vcc, 28, v%d
    s_nop 1
    v_cndmask_b32 v209, v208, v209, vcc
    v_cndmask_b32 v242, v208, v206, vcc
    v_mov_b32 v240, v209
    v_mov_b32 v241, v207
""" % (S_QB, S_W, L, L))
        p("""
    s_mul_i32 s60, s2, 49
    s_mul_i32 s61, s%d, 13
    s_add_u32 s60, s60, s61
    v_add_u32 v206, s60, v%d
    v_min_u32 v206, 12543, v206
    v_lshlrev_b32 v243, 7, v206
""" % (S_W, L))
    VQ = (204, 205)
    p("""
    v_lshlrev_b32 v206, 1, v201       ; 2*rr
    v_xor_b32 v206, v206, v200        ; slot ^ 2rr
    v_lshlrev_b32 v206, 4, v206
    v_lshl_add_u32 v206, v201, 13, v206
    s_lshl_b32 s60, s%d, 8
    v_add_u32 v204, s60, v206
    v_xor_b32 v205, 0x80, v204
    s_lshl_b32 s%d, s%d, 13
""" % (S_W, S_QD2, S_W))
    for jj in range(8):
        p('s_mov_b32 s%d, %d' % (S_SO + jj, jj * 32768 - (jj & 3) * 1024))
    p("""
    s_lshl_b32 s60, s%d, 20
    s_add_u32 s8, s4, s60
    s_addc_u32 s9, s5, 0
    s_sub_u32 s8, s8, 96
    s_subb_u32 s9, s9, 0
    s_mov_b32 s10, %d
    s_mov_b32 s11, 0x20000
    s_add_u32 s12, s8, 4096
    s_addc_u32 s13, s9, 0
    s_mov_b32 s14, %d
    s_mov_b32 s15, 0x20000
    s_add_u32 s16, s6, s60
    s_addc_u32 s17, s7, 0
    s_sub_u32 s16, s16, 96
    s_subb_u32 s17, s17, 0
    s_mov_b32 s18, %d
    s_mov_b32 s19, 0x20000
    s_add_u32 s20, s16, 4096
    s_addc_u32 s21, s17, 0
    s_mov_b32 s22, %d
    s_mov_b32 s23, 0x20000
    s_mov_b32 s%d, 96
    s_mul_i32 s61, s%d, %d
    s_mul_i32 s62, s%d, %d
    s_add_u32 s%d, s61, s62       ; LDS DMA dest base for K/V
    s_mov_b32 s%d, 0x%x
""" % (S_G, (1 << 20) + 96, (1 << 20) + 96 - 4096, (1 << 20) + 96, (1 << 20) + 96 - 4096, S_96, S_S, HALF, S_QH, 8 * BLK, S_DST, S_THR, o.thr))
    XC = 56
    ONE = 210; SELLO = 211; SELHI = 212; ACC = 214
    p('v_mov_b32 v%d, 0x3f803f80' % ONE)
    p('v_mov_b32 v%d, 0x00003f80' % SELLO)
    p('v_mov_b32 v%d, 0x3f800000' % SELHI)
    for i in range(4): p('v_mov_b32 v%d, 0' % (ACC + i))
    p(vm.wait('x'))
    stamp(p, o, 'xwait')
    if o.pf:
        p('buffer_load_dword v253, v240, s[44:47], 0 offen'); vm.add('pf')
    dmas = []
    for st in range(3):
        dmas += wq_dma(st, vm, VQ)
        dmas += ['v_add_u32 v204, 0x40000, v204', 'v_add_u32 v205, 0x40000, v205']
    valu = []
    for i in range(56):
        valu.append('v_dot2_f32_bf16 v%d, v%d, v%d, v%d' % (ACC + i % 4, i, ONE, ACC + i % 4))
    r = Prog()
    r('s_nop 2')
    r('v_add_f32 v%d, v%d, v%d' % (ACC, ACC, ACC + 1))
    r('v_add_f32 v%d, v%d, v%d' % (ACC + 2, ACC + 2, ACC + 3))
    r('v_add_f32 v%d, v%d, v%d' % (ACC, ACC, ACC + 2))
    xreduce(r, ACC, ACC + 1)
    r('v_mul_f32 v%d, 0x%x, v%d' % (ACC, 0xbb124925, ACC))
    valu.append([i.text for i in r.ins])
    for i in range(56):
        valu.append('v_dot2_f32_bf16 v%d, v%d, v%d, v%d' % (XC + 2 * i, i, SELLO, ACC))
        valu.append('v_dot2_f32_bf16 v%d, v%d, v%d, v%d' % (XC + 2 * i + 1, i, SELHI, ACC))
    V2 = 216
    valu.append(['v_mov_b32 v%d, 0' % (V2 + i) for i in range(4)])
    for i in range(56):
        a_ = V2 + 2 * (i % 2)
        valu.append('v_pk_fma_f32 %s, %s, %s, %s' % (vr(a_, 2), vr(XC + 2 * i, 2), vr(XC + 2 * i, 2), vr(a_, 2)))
    late = dmas if o.late_dma else []
    if o.late_dma: dmas = []
    di = 0
    for k, v in enumerate(valu):
        if isinstance(v, list):
            for x in v: p(x)
        else: p(v)
        if k % 6 == 5 and di < len(dmas):
            while di < len(dmas):
                d = dmas[di]; di += 1
                if isinstance(d, tuple):
                    p(d[0]); vm.add(d[1]); break
                p(d)
                if 'm0' in d:
                    p('s_nop 0')
    while di < len(dmas):
        d = dmas[di]; di += 1
        if isinstance(d, tuple): p(d[0]); vm.add(d[1])
        else:
            p(d)
            if 'm0' in d: p('s_nop 0')
    p('v_add_f32 v%d, v%d, v%d' % (V2, V2, V2 + 1))
    p('v_add_f32 v%d, v%d, v%d' % (V2 + 2, V2 + 2, V2 + 3))
    p('v_add_f32 v%d, v%d, v%d' % (V2, V2, V2 + 2))
    xreduce(p, V2, V2 + 1)
    p('v_mov_b32 v%d, 0x3727c5ac' % (V2 + 1))
    p('v_fmac_f32 v%d, 0x3b124925, v%d' % (V2 + 1, V2))
    p('v_rsq_f32 v%d, v%d' % (V2, V2 + 1))
    p('s_nop 0')
    p('v_mov_b32 v%d, v%d' % (V2 + 1, V2))
    if o.pf and o.pf_kv_early:
        p('buffer_load_dword v254, v241, s[92:95], 0 offen'); vm.add('pf')
    for i in range(56):
        p('v_pk_mul_f32 %s, %s, %s' % (vr(XC + 2 * i, 2), vr(XC + 2 * i, 2), vr(V2, 2)))
    stamp(p, o, 'stats')
    p("""
    s_cmp_lg_u32 s%d, 0
    s_cbranch_scc1 L_modwait_done
    v_mov_b32 v206, 0
L_poll:
    buffer_load_dword v207, v206, s[88:91], 0 offen offset:128 sc1
    s_waitcnt vmcnt(0)
    v_readfirstlane_b32 s60, v207
    s_cmp_eq_u32 s60, 1
    s_cbranch_scc1 L_poll_done
    s_sleep 8
    s_branch L_poll
L_poll_done:
    ;STAMP poll_done
L_modwait_done:
    s_barrier
""" % S_W)
    p("""
    v_lshlrev_b32 v206, 4, v%d
    s_lshl_b32 s60, s%d, 10
    v_add_u32 v206, s60, v206
    v_add_u32 v207, %d, v206
""" % (L, S_W, WS_MODP))
    for k_ in range(4):
        if k_: p('v_add_u32 v207, 3584, v207')
        p('buffer_load_dwordx4 %s, v207, s[24:27], 0 offen sc1' % vr(168 + 4 * k_, 4))
    p("""
    s_lshl_b32 s60, s%d, 8
    v_lshl_add_u32 v208, v%d, 2, s60
    v_cmp_le_u32 vcc, 448, v208
    s_waitcnt vmcnt(0)
""" % (S_W, L))
    for r in range(4):
        p('v_add_f32 v%d, v%d, v%d' % (168 + r, 168 + r, 172 + r))
        p('v_add_f32 v%d, v%d, v%d' % (176 + r, 176 + r, 180 + r))
    for r in range(4): p('v_add_f32 v%d, v%d, v%d' % (168 + r, 168 + r, 176 + r))
    for r in range(4): p('v_cvt_pk_bf16_f32 v%d, v%d, 0' % (168 + r, 168 + r))
    for r in range(4): p('v_lshlrev_b32 v%d, 16, v%d' % (168 + r, 168 + r))
    for r in range(4): p('v_add_f32 v%d, 1.0, v%d' % (172 + r, 168 + r))
    for r in range(4): p('v_cvt_pk_bf16_f32 v%d, v%d, 0' % (172 + r, 172 + r))
    for r in range(4): p('v_lshlrev_b32 v%d, 16, v%d' % (172 + r, 172 + r))
    for r in range(4): p('v_cndmask_b32 v%d, v%d, v%d, vcc' % (168 + r, 168 + r, 172 + r))
    for r in range(4): p('v_mul_f32 v%d, 0x3db8aa3b, v%d' % (168 + r, 168 + r))
    p('ds_write_b128 v206, v[168:171] offset:%d' % MV_OFF)
    p('s_waitcnt lgkmcnt(0)')
    p('s_barrier')
    p("""
    s_cmp_lt_u32 s2, 56
    s_cbranch_scc1 L_noa2
    s_cmp_ge_u32 s2, 168
    s_cbranch_scc1 L_noa2
    s_cmp_lg_u32 s%d, 0
    s_cbranch_scc1 L_noa2
    v_mov_b32 v209, 1
    v_mov_b32 v208, 0
    v_cmp_eq_u32 vcc, 0, v%d
    s_and_saveexec_b64 s[62:63], vcc
    buffer_atomic_add v209, v208, s[88:91], 0 offen offset:64 sc1
    s_mov_b64 exec, s[62:63]
L_noa2:
""" % (S_W, L))
    stamp(p, o, 'modbar')
    if o.pf and not o.pf_kv_early:
        p('buffer_load_dword v254, v241, s[92:95], 0 offen'); vm.add('pf')
    MVA = 222; HA = 223
    p('v_lshlrev_b32 v%d, 5, v201' % MVA)
    p('v_add_u32 v%d, %d, v%d' % (MVA, MV_OFF, MVA))
    p('s_mul_i32 s60, s%d, 14336' % S_W)
    p('v_lshlrev_b32 v%d, 4, v%d' % (HA, L))
    p('v_add_u32 v%d, s60, v%d' % (HA, HA))
    q = Prog()
    TA = [16, 32, 168, 184]
    def mvread(ks):
        t = TA[ks % 4]
        q('ds_read_b128 %s, v%d offset:%d' % (vr(t, 4), MVA, ks * 128))
        q('ds_read_b128 %s, v%d offset:%d' % (vr(t + 4, 4), MVA, ks * 128 + 16))
        q('ds_read_b128 %s, v%d offset:%d' % (vr(t + 8, 4), MVA, 1792 + ks * 128))
        q('ds_read_b128 %s, v%d offset:%d' % (vr(t + 12, 4), MVA, 1792 + ks * 128 + 16))
    for ks in range(3): mvread(ks)
    for ks in range(14):
        if ks + 3 < 14: mvread(ks + 3)
        t = TA[ks % 4]
        for j in range(4):
            q('v_pk_fma_f32 %s, %s, %s, %s' % (vr(t + 2 * j, 2), vr(XC + 8 * ks + 2 * j, 2), vr(t + 8 + 2 * j, 2), vr(t + 2 * j, 2)))
        hr = 4 * (ks % 4)
        for j in range(4):
            q('v_cvt_pk_bf16_f32 v%d, v%d, v%d' % (hr + j, t + 2 * j, t + 2 * j + 1))
        q('ds_write_b128 v%d, %s offset:%d' % (HA, vr(hr, 4), H_OFF + ks * 1024))
    w, _ = insert_waits(q.ins)
    li = 0
    cnt = 0
    for ins_ in w:
        p.ins.append(ins_)
        cnt += 1
        if cnt % 9 == 0 and li < len(late):
            while li < len(late):
                d = late[li]; li += 1
                if isinstance(d, tuple):
                    p(d[0]); vm.add(d[1]); break
                p(d)
                if 'm0' in d: p('s_nop 0')
    while li < len(late):
        d = late[li]; li += 1
        if isinstance(d, tuple): p(d[0]); vm.add(d[1])
        else:
            p(d)
            if 'm0' in d: p('s_nop 0')
    p('s_waitcnt lgkmcnt(0)')
    p('s_barrier')
    stamp(p, o, 'hbar')
    p('v_lshlrev_b32 v%d, 4, v%d' % (HA, L))
    for st in range(14):
        for qt in range(4):
            f = qt * 14 + st
            p('ds_read_b128 %s, v%d offset:%d' % (ar(4 * f, 4), HA, H_OFF + f * 1024))
    VA = 232
    p("""
    v_bfe_u32 v206, v%d, 2, 2          ; r
    v_and_b32 v207, 1, v201            ; kq&1
    v_lshl_add_u32 v207, v207, 2, v206 ; f = r + 4*(kq&1)
    v_lshlrev_b32 v208, 11, v201       ; 2*kq*1024
    v_lshl_add_u32 v208, v206, 8, v208 ; + r*256
    v_and_b32 v209, 3, v%d             ; c
    v_lshl_add_u32 v208, v209, 3, v208 ; + c*8
    v_add_u32 v208, s%d, v208          ; + w*8192
""" % (L, L, S_QD2))
    for T in range(8):
        p('v_xor_b32 v209, %d, v207' % T)
        p('v_lshl_add_u32 v%d, v209, 5, v208' % (VA + T))
    p('s_waitcnt lgkmcnt(0)')
    p('s_barrier')
    stamp(p, o, 'ln_done')
    return p, vm, VQ, VA

def qproj(o, vm, VQ, VA):
    p = Prog()
    N = 14 * 32
    sc = [[] for _ in range(N)]; mem = [[] for _ in range(N)]; val = [[] for _ in range(N)]
    def aread(n):
        st, T = n // 8, n % 8
        r = FR + 4 * (n % 4)
        off = QSLOT[st % 4]
        return st, T, r, off
    reads = []
    for n in range(14 * 8):
        st, T, r, off = aread(n)
        reads.append(['ds_read_b64_tr_b16 %s, v%d offset:%d' % (vr(r, 2), VA + T, 0),
                      'ds_read_b64_tr_b16 %s, v%d offset:%d' % (vr(r + 2, 2), VA + T, 1024)])
    pre = Prog()
    for T in range(8):
        pre('v_add_u32 v%d, %d, v%d' % (VA + T, QSLOT[0], VA + T))
    pre(vm.wait('wq0'))
    for n in range(3):
        for s in reads[n]: pre(s)
    for n in range(14 * 8):
        st, T = n // 8, n % 8
        g = 4 * (n - 3)
        if n >= 3:
            mem[g] += reads[n]
        if st + 1 < 14:
            d = QSLOT[(st + 1) % 4] - QSLOT[st % 4]
            upd = 'v_add_u32 v%d, %s, v%d' % (VA + T, ('0x%x' % (d & 0xffffffff)), VA + T)
            if n >= 3: val[g + 1].append(upd)
            else: val[n + 1].append(upd)
    for st in range(14):
        base = st * 32
        lst = None
        if st <= 10:
            lst = wq_dma(st + 3, vm, VQ)
            post = ['v_add_u32 v%d, 0x40000, v%d' % (VQ[0], VQ[0]), 'v_add_u32 v%d, 0x40000, v%d' % (VQ[1], VQ[1])]
        elif st >= 12 and not o.kdma_late:
            lst = [(s if s.startswith('s_') else (s, 'k%d' % (st - 12))) for s in dma(o, st - 12, 0, True, False)]
            post = ['v_add_u32 v%d, 0x8000, v%d' % (VOFF, VOFF)]
        if lst:
            gi = 0
            gaps = [base + 2 + 4 * i for i in range(8)]
            for s in lst:
                if isinstance(s, tuple):
                    mem[gaps[gi]].append(s); gi += 1
                else:
                    sc[gaps[gi] - 1].append(s)
            for i, s in enumerate(post):
                val[base + 31].append(s)
    post_cvt = []
    for T in range(8):
        for qt in range(4):
            g = 13 * 32 + T * 4 + qt + 7
            a_ = (T * 4 + qt) * 4; t_ = 128 + 2 * (T * 4 + qt)
            cv = ['v_cvt_pk_bf16_f32 v%d, v%d, v%d' % (t_, a_, a_ + 1), 'v_cvt_pk_bf16_f32 v%d, v%d, v%d' % (t_ + 1, a_ + 2, a_ + 3)]
            placed = False
            if o.qcvt:
                for gg in (g, g + 1, g + 2):
                    if gg < N and len(mem[gg]) == 0 and not val[gg]:
                        val[gg] += cv; placed = True; break
            if not placed: post_cvt += cv
    p.extend(pre)
    for gidx in range(N):
        st, rem = gidx // 32, gidx % 32
        T, qt = rem // 4, rem % 4
        n = st * 8 + T
        acc = (T * 4 + qt) * 4
        c = '0' if st == 0 else vr(acc, 4)
        m = 'v_mfma_f32_16x16x32_bf16 %s, %s, %s, %s' % (vr(acc, 4), vr(FR + 4 * (n % 4), 4), ar((qt * 14 + st) * 4, 4), c)
        p(m)
        if gidx + 1 < N:
            st2, rem2 = (gidx + 1) // 32, (gidx + 1) % 32
            if rem2 % 4 == 0:
                n2 = st2 * 8 + rem2 // 4
                p('.need v_mfma_f32_16x16x32_bf16 v[0:3], %s, v[0:3], 0' % vr(FR + 4 * (n2 % 4), 4))
        if rem == 20 and st + 1 < 14:
            p(vm.wait('wq%d' % (st + 1)))
        if st == 11 and rem == 31 and not o.kdma_late:
            p('s_barrier')
        for s in sc[gidx]: p(s)
        for s in mem[gidx]:
            if isinstance(s, tuple):
                p(s[0]); vm.add(s[1])
            else: p(s)
        for s in val[gidx]: p(s)
    p('s_nop 7')
    for x in post_cvt: p(x)
    return p

def kv_addresses(o):
    p = Prog()
    L = VLANE
    p('''
    s_mul_i32 s61, s%d, %d
    s_lshl_b32 s62, s%d, 14
    s_lshl_b32 s63, s%d, 13
    s_add_u32 s62, s62, s63
    v_lshlrev_b32 v%d, 4, v%d
    v_add_u32 v%d, s62, v%d
''' % (S_S, HALF, S_S, S_QH, VOFF, L, VOFF, VOFF))
    p('''
    v_and_b32 v240, 7, v%d
    v_mul_u32_u24 v240, %d, v240
    v_bfe_u32 v241, v%d, 3, 1
    v_lshlrev_b32 v241, 9, v241
    v_add_u32 v240, v240, v241
    v_lshrrev_b32 v241, 4, v%d
    v_lshlrev_b32 v241, 4, v241
    v_add_u32 v240, v240, v241
    v_add_u32 v%d, s61, v240
    v_lshrrev_b32 v240, 2, v%d
    v_and_b32 v241, 7, v240
    v_mul_u32_u24 v241, %d, v241
    v_lshrrev_b32 v240, 3, v240
    v_lshlrev_b32 v240, 9, v240
    v_add_u32 v240, v240, v241
    v_and_b32 v241, 3, v%d
    v_lshlrev_b32 v241, 3, v241
    v_add_u32 v240, v240, v241
    v_add_u32 v240, s61, v240
    v_add_u32 v%d, %d, v240
''' % (L, BLK, L, L, VK, L, BLK, L, VV, VBASE))
    return p

def qexchange(o, vm):
    p = Prog()
    L = VLANE
    p('''
    v_and_b32 v200, 15, v%d
    v_lshrrev_b32 v201, 4, v%d
    v_mul_u32_u24 v202, 1040, v200
    v_lshl_add_u32 v202, v201, 3, v202
    s_lshl_b32 s60, s%d, 8
    s_add_u32 s60, s60, %d
    v_add_u32 v202, s60, v202
    s_mov_b32 s61, 0x%x
''' % (L, L, S_W, QX, 0x3db8aa3b))
    p('s_barrier')
    if o.kdma_late:
        for kb in range(2):
            for s_ in dma(o, kb, 0, True, False, nop=True):
                p(s_)
                if s_.startswith('buffer'): vm.add('k%d' % kb)
            p('v_add_u32 v%d, 0x8000, v%d' % (VOFF, VOFF))
    q = Prog()
    for T in range(8):
        for qt in range(4):
            q('ds_write_b64 v202, %s offset:%d' % (vr(128 + 2 * (T * 4 + qt), 2), qt * 16 * 1040 + T * 32))
    p.extend(q)
    p('s_waitcnt lgkmcnt(0)')
    p('s_barrier')
    p('''
    s_mul_i32 s60, s%d, %d
    s_add_u32 s60, s60, %d
    v_mul_u32_u24 v202, 1040, v200
    v_lshl_add_u32 v202, v201, 4, v202
    v_add_u32 v202, s60, v202
''' % (S_QH, 32 * 1040, QX))
    for h in range(2):
        for qt in range(2):
            b = 2 * h + qt
            for ks in range(8):
                p('ds_read_b128 %s, v202 offset:%d' % (vr(32 * b + 4 * ks, 4), qt * 16 * 1040 + h * 512 + ks * 64))
    p(vm.wait('k0' if o.kdma_late else 'k1'))
    p('s_waitcnt lgkmcnt(0)')
    p('s_barrier')
    return p

def attn_prologue(o):
    p = Prog()
    p('v_add_u32 v%d, 0xffff0000, v%d' % (VOFF, VOFF))
    p('s_nop 0')
    for s in dma(o, 0, 0, False, True, nop=True): p(s)
    p('v_add_u32 v%d, 0x8000, v%d' % (VOFF, VOFF))
    p('''
    s_add_u32 s8, s8, 0x8000
    s_addc_u32 s9, s9, 0
    s_sub_u32 s10, s10, 0x8000
    s_add_u32 s12, s12, 0x8000
    s_addc_u32 s13, s13, 0
    s_sub_u32 s14, s14, 0x8000
''')
    q = Prog()
    qk = qk_list(o, czero=True)
    for n in range(2):
        for s in kread(o, n, 0): q(s)
    for sl in range(64):
        if sl % 8 == 0 and sl // 8 + 1 < 8:
            for s in kread(o, 2 * (sl // 8 + 1), 0) + kread(o, 2 * (sl // 8 + 1) + 1, 0): q(s)
        q(qk[sl])
    w, _ = insert_waits(q.ins)
    p.extend(w)
    p('s_nop 7')
    t = TMP
    for b in range(4):
        max8(p, t + b, b)
    for b in range(4):
        xreduce(p, t + b, t + 4, 'v_max_f32')
    for b in range(4):
        for r in range(4):
            p('v_sub_f32 v%d, 0, v%d' % (NEGM + 4 * b + r, t + b))
        for a in range(2):
            for r in range(4):
                p('v_sub_f32 v%d, v%d, v%d' % (S(a, b) + r, S(a, b) + r, t + b))
    for i in range(4):
        p('v_mov_b32 v%d, 0' % (LREG[1] + i))
    for s in exps(o, 0, 0, 1, 0): p(s)
    for s in exps(o, 1, 0, 1, 0): p(s)
    p('s_waitcnt vmcnt(0) lgkmcnt(0)')
    p('s_barrier')
    for n in range(2):
        for s in kread(o, n, 1): p(s)
    p('s_waitcnt lgkmcnt(0)')
    return p

MN, LL = 240, 244
def epi_setup(o):
    L = VLANE
    x = []
    for b in range(4): x.append('v_mov_b32 v%d, v%d' % (MN + b, NEGM + 4 * b))
    for b in range(4): x.append('v_mov_b32 v%d, v%d' % (LL + b, LREG[1] + b))
    for sw in ('v_permlane16_swap_b32', 'v_permlane32_swap_b32'):
        for b in range(4): x.append('v_mov_b32 v%d, v%d' % (248 + b, LL + b))
        for b in range(4): x.append('%s v%d, v%d' % (sw, LL + b, 248 + b))
        for b in range(4): x.append('v_add_f32 v%d, v%d, v%d' % (LL + b, LL + b, 248 + b))
    x += ['v_and_b32 v203, 15, v%d' % L, 'v_lshlrev_b32 v203, 5, v203',
          's_lshl_b32 s63, s%d, 9' % S_W, 's_add_u32 s63, s63, %d' % ST, 'v_add_u32 v202, s63, v203',
          'v_lshlrev_b32 v200, 4, v%d' % L,
          's_xor_b32 s64, s%d, 2' % S_W, 's_lshl_b32 s65, s64, 9', 's_add_u32 s65, s65, %d' % ST, 'v_add_u32 v203, s65, v203',
          's_lshl_b32 s64, s64, 15', 'v_add_u32 v201, s64, v200',
          's_lshl_b32 s66, s%d, 15' % S_W, 'v_add_u32 v200, s66, v200']
    return x

def attn_loop(o):
    p = Prog()
    first = A.iteration(o, 0, 'f', first_pv=True)
    w0, st0 = insert_waits(first.ins)
    p.extend(w0)
    p('s_mov_b32 s%d, 14' % S_CNT)
    p('.p2align 6')
    p('L_loop:')
    body = Prog()
    body.extend(A.iteration(o, 1, 'a'))
    body.extend(A.iteration(o, 0, 'b'))
    w1, st1 = insert_waits(body.ins, st0)
    w, st2 = insert_waits(body.ins, st1)
    assert st2 == st1 and [i.text for i in w] == [i.text for i in w1], 'not steady'
    loop_ins = w
    p.extend(w)
    p('s_sub_u32 s%d, s%d, 1' % (S_CNT, S_CNT))
    p('s_cmp_lg_u32 s%d, 0' % S_CNT)
    p('s_cbranch_scc1 L_loop')
    tail = Prog()
    ex = []
    if o.pf:
        ex = [(71, 'buffer_load_dword v255, v242, s[48:51], 0 offen')]
    tail.extend(A.iteration(o, 1, 'c', extra_mem=ex))
    ex = []
    if o.pf and o.pfmoe:
        ex = [(71, 'global_load_dword v255, v243, s[96:97]'), (75, 'global_load_dword v255, v243, s[98:99]'), (79, 'global_load_dword v255, v243, s[100:101]')]
    tail.extend(A.iteration(o, 0, 'd', do_dma_k=False, next_k=False, pf_ok=False, extra_mem=ex))
    tail('s_waitcnt vmcnt(%d) lgkmcnt(0)' % len(ex))
    tail('s_barrier')
    tail.extend(A.iteration(o, 1, 'e', do_qk=False, do_dma_k=False, do_dma_v=False, next_k=False, extra_valu=epi_setup(o)))
    w, _ = insert_waits(tail.ins, st1)
    p.extend(w)
    return p, w0, loop_ins, w

def combine(o, s, shadow):
    p = Prog()
    own = s; oth = 1 - s
    for dt in range(16):
        for qt in range(2):
            b = 2 * oth + qt
            p('ds_write_b128 v200, %s offset:%d' % (ar((dt * 4 + b) * 4, 4), (dt * 2 + qt) * 1024))
    for dt in range(16):
        for qt in range(2):
            b = 2 * own + qt
            for r in range(4):
                p('v_accvgpr_read_b32 v%d, a%d' % ((dt * 2 + qt) * 4 + r, (dt * 4 + b) * 4 + r))
    p.extend(shadow)
    p('s_waitcnt lgkmcnt(0)')
    p('s_barrier')
    stamp(p, o, 'e1bar')
    q = Prog()
    q('ds_read_b128 v[204:207], v203')
    q('ds_read_b128 v[208:211], v203 offset:16')
    order = [(2 * i + y, qt) for i in range(8) for qt in range(2) for y in range(2)]
    RING = 128
    def rd(k):
        dt, qt = order[k]
        q('ds_read_b128 %s, v201 offset:%d' % (vr(RING + 4 * (k % 8), 4), (dt * 2 + qt) * 1024))
    for k in range(8): rd(k)
    AL = 212; BE = 216
    for qt in range(2):
        b = 2 * own + qt
        mo = MN + b; mp = 204 + b; lo = LL + b; lp = 208 + b
        t = 220
        q('v_min_f32 v%d, v%d, v%d' % (t, mo, mp))
        q('v_sub_f32 v%d, v%d, v%d' % (t + 1, t, mo))
        q('v_sub_f32 v%d, v%d, v%d' % (t + 2, t, mp))
        q('v_exp_f32 v%d, v%d' % (t + 1, t + 1))
        q('v_exp_f32 v%d, v%d' % (t + 2, t + 2))
        q('s_nop 0')
        q('v_mul_f32 v%d, v%d, v%d' % (t + 3, t + 1, lo))
        q('v_fmac_f32 v%d, v%d, v%d' % (t + 3, t + 2, lp))
        q('v_rcp_f32 v%d, v%d' % (t + 3, t + 3))
        q('s_nop 0')
        q('v_mul_f32 v%d, v%d, v%d' % (AL + 2 * qt, t + 1, t + 3))
        q('v_mul_f32 v%d, v%d, v%d' % (BE + 2 * qt, t + 2, t + 3))
        q('v_mov_b32 v%d, v%d' % (AL + 2 * qt + 1, AL + 2 * qt))
        q('v_mov_b32 v%d, v%d' % (BE + 2 * qt + 1, BE + 2 * qt))
    for k in range(32):
        dt, qt = order[k]
        i, y = dt // 2, dt % 2
        rv = RING + 4 * (k % 8)
        ow = (dt * 2 + qt) * 4
        q('v_pk_mul_f32 %s, %s, %s' % (vr(rv, 2), vr(rv, 2), vr(BE + 2 * qt, 2)))
        q('v_pk_mul_f32 %s, %s, %s' % (vr(rv + 2, 2), vr(rv + 2, 2), vr(BE + 2 * qt, 2)))
        q('v_pk_fma_f32 %s, %s, %s, %s' % (vr(ow, 2), vr(ow, 2), vr(AL + 2 * qt, 2), vr(rv, 2)))
        q('v_pk_fma_f32 %s, %s, %s, %s' % (vr(ow + 2, 2), vr(ow + 2, 2), vr(AL + 2 * qt, 2), vr(rv + 2, 2)))
        if k + 8 < 32: rd(k + 8)
        fr = 160 + 4 * ((i * 2 + qt) % 8)
        q('v_cvt_pk_bf16_f32 v%d, v%d, v%d' % (fr + 2 * y, ow, ow + 1))
        q('v_cvt_pk_bf16_f32 v%d, v%d, v%d' % (fr + 2 * y + 1, ow + 2, ow + 3))
        if y == 1:
            q('ds_write_b128 v201, %s offset:%d' % (vr(fr, 4), (i * 2 + qt) * 1024))
    w, _ = insert_waits(q.ins)
    p.extend(w)
    return p

def wo_dma(step, slot, VW):
    out = []
    for jj in range(7):
        out.append('s_add_u32 m0, s%d, %d' % (S_T0 + slot, jj * 1024))
        out.append(('buffer_load_dwordx4 v%d, s[%d:%d], s%d offen lds' % (VW + jj, S_WO, S_WO + 3, S_WST), 'wo%d' % step))
    return out

def epilogue(o):
    p = Prog()
    L = VLANE
    vm = VmTracker()
    VW = 232
    p('s_nop 7')
    p('''
    s_barrier
    ds_write_b128 v202, v[%d:%d]
    ds_write_b128 v202, v[%d:%d] offset:16
''' % (MN, MN + 3, LL, LL + 3))
    sh = Prog()
    sh('s_mul_i32 s60, s%d, 224' % S_W)
    sh('s_mov_b32 s61, 0x124925')
    for jj in range(7):
        sh('v_add_u32 v192, %d, v%d' % (64 * jj, L))
        sh('v_mul_u32_u24 v193, s61, v192')
        sh('v_lshrrev_b32 v193, 24, v193')
        sh('v_mul_u32_u24 v194, 14, v193')
        sh('v_sub_u32 v194, v192, v194')
        sh('v_mul_u32_u24 v193, 896, v193')
        sh('v_lshl_add_u32 v193, v194, 4, v193')
        sh('v_add_u32 v%d, s60, v193' % (VW + jj))
    sh('''
    s_mul_i32 s60, s%d, 7168
    s_add_u32 s60, s60, %d
    s_lshl_b32 s61, s%d, 15
    s_add_u32 s61, s61, 16384
    s_add_u32 s62, s61, 7168
    s_mov_b32 s%d, 0
''' % (S_W, WO0, S_W, S_WST))
    emit_dma(sh, wo_dma(0, 0, VW), vm)
    sh('s_mov_b32 s%d, 28672' % S_WST)
    AW = 224
    BW = 228
    sh('''
    v_lshrrev_b32 v192, 2, v%d          ; 4kq + r
    v_mul_u32_u24 v192, 224, v192
    v_and_b32 v193, 3, v%d
    v_lshl_add_u32 v192, v193, 3, v192
    v_add_u32 v%d, s60, v192
    v_add_u32 v%d, s61, v192
    v_add_u32 v%d, s62, v192
    v_lshlrev_b32 v192, 4, v%d
''' % (L, L, AW, AW + 1, AW + 2, L))
    for r in range(4):
        sh('v_add_u32 v%d, %d, v192' % (BW + r, r * 32768))
    p('s_cmp_eq_u32 s%d, 0' % S_S)
    p('s_cbranch_scc0 L_comb1')
    c0 = combine(o, 0, sh); c1 = combine(o, 1, sh)
    p.extend(c0)
    p('s_branch L_combdone')
    p('L_comb1:')
    p.extend(c1)
    p('L_combdone:')
    stamp(p, o, 'comb')
    if o.fuse_k2:
        p('s_load_dwordx2 s[4:5], s[0:1], 48')
        p('s_load_dwordx2 s[6:7], s[0:1], 96')
        p('v_mov_b32 v250, 0')
        p('buffer_load_dword v251, v250, s[88:91], 0 offen offset:64 sc1'); vm.add('chk')
    p('s_waitcnt lgkmcnt(0)')
    p('s_barrier')
    stamp(p, o, 'e3bar')
    emit_dma(p, wo_dma(1, 1, VW), vm)
    p('s_mov_b32 s%d, %d' % (S_WST, 2 * 28672))
    def bread(ks, qtile):
        h, i = ks >> 3, ks & 7
        qh, qt = qtile >> 1, qtile & 1
        reg = qh + 2 * (1 - h)
        return 'ds_read_b128 %s, v%d offset:%d' % (vr(112 + 16 * (ks % 2) + 4 * qtile, 4), BW + reg, (i * 2 + qt) * 1024)
    def aread(n):
        ks, T = n // 7, n % 7
        r = FR + 4 * (n % 4)
        return ['ds_read_b64_tr_b16 %s, v%d offset:%d' % (vr(r + 2 * a, 2), AW + ks % 3, a * 3584 + T * 32) for a in range(2)]
    N = 16 * 28
    sc = [[] for _ in range(N)]; mem = [[] for _ in range(N)]; val = [[] for _ in range(N)]
    pre = Prog()
    pre(vm.wait('wo0'))
    for qtile in range(4): pre(bread(0, qtile))
    for n in range(3):
        for s in aread(n): pre(s)
    for n in range(3, 16 * 7):
        mem[4 * (n - 3)] += aread(n)
    for ks in range(15):
        for qtile in range(4):
            mem[28 * ks + 4 * qtile + 5 + 8].append(bread(ks + 1, qtile))
    for ks in range(14):
        lst = wo_dma(ks + 2, (ks + 2) % 3, VW)
        gaps = [28 * ks + 2 + 4 * i for i in range(7)]
        gi = 0
        for s in lst:
            if isinstance(s, tuple):
                mem[gaps[gi]].append(s); gi += 1
            else:
                sc[gaps[gi] - 1].append(s)
        sc[28 * ks + 27].append('s_add_u32 s%d, s%d, 28672' % (S_WST, S_WST))
    body = Prog()
    body.extend(pre)
    for gidx in range(N):
        ks, rem = gidx // 28, gidx % 28
        T, qt = rem // 4, rem % 4
        n = ks * 7 + T
        acc = (T * 4 + qt) * 4
        c = '0' if ks == 0 else vr(acc, 4)
        body('v_mfma_f32_16x16x32_bf16 %s, %s, %s, %s' % (vr(acc, 4), vr(FR + 4 * (n % 4), 4), vr(112 + 16 * (ks % 2) + 4 * qt, 4), c))
        if gidx + 1 < N:
            ks2, rem2 = (gidx + 1) // 28, (gidx + 1) % 28
            n2 = ks2 * 7 + rem2 // 4
            body('.need v_mfma_f32_16x16x32_bf16 v[0:3], %s, %s, 0' % (vr(FR + 4 * (n2 % 4), 4), vr(112 + 16 * (ks2 % 2) + 4 * (rem2 % 4), 4)))
        if rem == 16 and ks + 1 < 16:
            body(vm.wait('wo%d' % (ks + 1)))
        for s in sc[gidx]: body(s)
        for s in mem[gidx]:
            if isinstance(s, tuple):
                body(s[0]); vm.add(s[1])
            else: body(s)
        for s in val[gidx]: body(s)
    w, _ = insert_waits(body.ins)
    p.extend(w)
    stamp(p, o, 'oproj')
    if o.fuse_k2:
        import ksmall
        p('''
    s_lshl_b32 s56, s%d, 6
    s_lshl_b32 s57, s%d, 3
    s_add_u32 s56, s56, s57
    s_lshl_b32 s58, s%d, 1
    s_add_u32 s56, s56, s58            ; global row0 = 64 qb + 8 g + 2 w
    s_add_u32 s57, s57, s58            ; row within the x tile
    s_mul_i32 s57, s57, 896
    s_mul_i32 s58, s56, 896
    v_lshlrev_b32 v232, 4, v%d
    v_lshlrev_b32 v238, 5, v%d
    v_mov_b32 v234, 0x40000000
    v_cmp_gt_u32 vcc, 56, v%d
    s_nop 1
    v_cndmask_b32 v239, v234, v232, vcc      ; lane*16 or out of range
    v_cndmask_b32 v238, v234, v238, vcc      ; lane*32 or out of range
    v_cndmask_b32 v233, 0, 1.0, vcc
    v_add_u32 v232, s58, v239
    v_add_u32 v235, s57, v239
    v_mov_b32 v236, 0x00003f80
    v_mov_b32 v237, 0x3f800000
''' % (S_QB, S_G, S_W, L, L, L))
        q_ = Prog()
        ksmall.srd(q_, 8, 24, 8 * 2048 * 896, str(WS_PART))
        ksmall.srd(q_, 12, 4, 896)
        ksmall.srd(q_, 16, 6, 2048 * 896)
        ksmall.srd(q_, 20, 24, 2048 * 896, str(WS_H2))
        ksmall.srd(q_, 44, 24, 10752)
        ksmall.srd(q_, 48, 24, 8192, str(WS_R))
        q_('s_lshl_b32 s59, s%d, 7' % S_QB)
        q_('s_add_u32 s59, s59, %d' % WS_CNT)
        ksmall.srd(q_, 52, 24, 128, 's59')
        p.extend(q_)
        p('''
    s_waitcnt vmcnt(0)
    v_readfirstlane_b32 s59, v251
    s_cmp_eq_u32 s59, 112
    s_cbranch_scc1 L_a2ok
L_a2poll:
    buffer_load_dword v251, v250, s[88:91], 0 offen offset:64 sc1
    s_waitcnt vmcnt(0)
    v_readfirstlane_b32 s59, v251
    s_cmp_eq_u32 s59, 112
    s_cbranch_scc1 L_a2ok
    s_sleep 8
    s_branch L_a2poll
L_a2ok:
''')
        for rr in range(2):
            p('buffer_load_dwordx4 %s, v235, s[40:43], 0 offen offset:%d' % (vr(224 + 4 * rr, 4), rr * 896))
        p('s_lshl_b32 s59, s%d, 10' % S_W)
        p('v_lshlrev_b32 v240, 4, v%d' % L)
        p('v_add_u32 v240, s59, v240')
        p('v_add_u32 v241, %d, v240' % WS_MODP2)
        for k_ in range(4):
            for i_ in range(2):
                p('s_mov_b32 s59, %d' % (k_ * 7168 + i_ * 4096))
                p('buffer_load_dwordx4 %s, v241, s[24:27], s59 offen sc1' % vr(160 + 8 * k_ + 4 * i_, 4))
        p('buffer_load_dwordx4 v[192:195], v239, s[12:15], 0 offen')
    p('''
    s_mov_b32 s68, s24
    s_mov_b32 s69, s25
    s_lshl_b32 s60, s%d, 11
    s_lshl_b32 s61, s%d, 6
    s_add_u32 s60, s60, s61
    s_mul_i32 s60, s60, 896
    s_add_u32 s60, s60, %d
    s_add_u32 s68, s68, s60
    s_addc_u32 s69, s69, 0
    s_mov_b32 s70, 57344
    s_mov_b32 s71, 0x20000
    v_and_b32 v200, 15, v%d
    v_mul_u32_u24 v200, 912, v200
    v_lshrrev_b32 v201, 4, v%d
    v_lshl_add_u32 v200, v201, 3, v200
    s_mul_i32 s60, s%d, 224
    v_add_u32 v200, s60, v200          ; LDS write address
    v_lshlrev_b32 v201, 4, v%d
    s_mul_i32 s60, s%d, %d
    v_add_u32 v202, s60, v201          ; LDS read address: (16w)*912 + lane*16
    s_mul_i32 s60, s%d, %d
    v_add_u32 v203, s60, v201          ; global offset: (16w)*896 + lane*16
    v_mov_b32 v204, 0x40000000
    v_cmp_gt_u32 vcc, 56, v%d
    s_barrier
    s_nop 0
    v_cndmask_b32 v203, v204, v203, vcc
''' % (S_G, S_QB, WS_PART, L, L, S_W, L, S_W, 16 * 912, S_W, 16 * 896, L))
    k = 0
    for qt in range(4):
        for T in range(7):
            acc = (T * 4 + qt) * 4
            t = 128 + 2 * (k % 16); k += 1
            p('v_cvt_pk_bf16_f32 v%d, v%d, v%d' % (t, acc, acc + 1))
            p('v_cvt_pk_bf16_f32 v%d, v%d, v%d' % (t + 1, acc + 2, acc + 3))
            p('ds_write_b64 v200, %s offset:%d' % (vr(t, 2), qt * 16 * 912 + T * 32))
    p('s_waitcnt lgkmcnt(0)')
    p('s_barrier')
    q = Prog()
    for rr in range(16):
        q('ds_read_b128 %s, v202 offset:%d' % (vr(4 * rr, 4), rr * 912))
    for rr in range(16):
        if rr % 4 == 0 and rr: q('v_add_u32 v203, %d, v203' % (4 * 896))
        q('buffer_store_dwordx4 %s, v203, s[68:71], 0 offen offset:%d%s' % (vr(4 * rr, 4), (rr % 4) * 896, o.part_flags))
    w, _ = insert_waits(q.ins)
    p.extend(w)
    if o.fuse_k2:
        stamp(p, o, 'stores')
        p('s_waitcnt vmcnt(0)')
        stamp(p, o, 'drain')
        for i_ in range(2):
            for r in range(4):
                p('v_add_f32 v%d, v%d, v%d' % (160 + 4 * i_ + r, 160 + 4 * i_ + r, 168 + 4 * i_ + r))
                p('v_add_f32 v%d, v%d, v%d' % (176 + 4 * i_ + r, 176 + 4 * i_ + r, 184 + 4 * i_ + r))
        for k_ in range(8): p('v_add_f32 v%d, v%d, v%d' % (160 + k_, 160 + k_, 176 + k_))
        for k_ in range(8): p('v_cvt_pk_bf16_f32 v%d, v%d, 0' % (160 + k_, 160 + k_))
        for k_ in range(8): p('v_lshlrev_b32 v%d, 16, v%d' % (160 + k_, 160 + k_))
        for k_ in range(8): p('v_add_f32 v%d, 1.0, v%d' % (168 + k_, 160 + k_))
        for k_ in range(8): p('v_cvt_pk_bf16_f32 v%d, v%d, 0' % (168 + k_, 168 + k_))
        for k_ in range(8): p('v_lshlrev_b32 v%d, 16, v%d' % (168 + k_, 168 + k_))
        p('v_lshrrev_b32 v242, 2, v240')
        for i_ in range(2):
            p('v_add_u32 v243, %d, v242' % ((1024 * i_ - 896) & 0xffffffff))
            p('v_cmp_gt_u32 vcc, 448, v243')
            p('s_nop 1')
            for r in range(4): p('v_cndmask_b32 v%d, v%d, v%d, vcc' % (160 + 4 * i_ + r, 160 + 4 * i_ + r, 168 + 4 * i_ + r))
        p('ds_write_b128 v240, v[160:163] offset:%d' % VEC)
        p('ds_write_b128 v240, v[164:167] offset:%d' % (VEC + 4096))
        p('s_cmp_lg_u32 s2, 0')
        p('s_cbranch_scc1 L_novecpub')
        p('s_mov_b32 s59, 3584')
        p('buffer_store_dwordx4 v[160:163], v240, s[24:27], s59 offen')
        p('s_mov_b32 s59, 7680')
        p('buffer_store_dwordx4 v[164:167], v240, s[24:27], s59 offen')
        p('L_novecpub:')
        p('s_waitcnt lgkmcnt(0)')
        p('''
    s_barrier
    s_cmp_lg_u32 s%d, 0
    s_cbranch_scc1 L_grp_done
    v_mov_b32 v0, 1
    v_mov_b32 v1, 0
    v_cmp_eq_u32 vcc, 0, v%d
    s_and_saveexec_b64 s[60:61], vcc
    buffer_atomic_add v0, v1, s[52:55], 0 offen sc1
    s_mov_b64 exec, s[60:61]
L_grp_poll:
    buffer_load_dword v2, v1, s[52:55], 0 offen sc1
    s_waitcnt vmcnt(0)
    v_readfirstlane_b32 s59, v2
    s_cmp_eq_u32 s59, 8
    s_cbranch_scc1 L_grp_done
    s_sleep 2
    s_branch L_grp_poll
L_grp_done:
    s_barrier
''' % (S_W, L))
        stamp(p, o, 'grp')
        for rr in range(2):
            for g_ in range(8):
                p('s_mov_b32 s59, %d' % (g_ * 2048 * 896 + rr * 896))
                p('buffer_load_dwordx4 %s, v232, s[8:11], s59 offen sc1' % vr(32 * rr + 4 * g_, 4))
        p('v_min_u32 v240, 55, v%d' % L)
        p('v_lshlrev_b32 v240, 5, v240')
        for k_ in range(4):
            p('ds_read_b128 %s, v240 offset:%d' % (vr(160 + 8 * k_, 4), VEC + k_ * 1792))
            p('ds_read_b128 %s, v240 offset:%d' % (vr(164 + 8 * k_, 4), VEC + k_ * 1792 + 16))
        ACC = [64, 72]
        for rr in range(2):
            for j in range(8): p('v_mov_b32 v%d, 0' % (ACC[rr] + j))
        for rr in range(2):
            p('s_waitcnt vmcnt(%d)' % (8 if rr == 0 else 0))
            for g_ in range(8):
                for j in range(8):
                    p('v_dot2_f32_bf16 v%d, v%d, v%d, v%d' % (ACC[rr] + j, 32 * rr + 4 * g_ + j // 2, 236 + j % 2, ACC[rr] + j))
        p('s_waitcnt lgkmcnt(0)')
        p('s_nop 2')
        stamp(p, o, 'k2ld')
        ksmall.k2_math(p, [0, 32], [224, 228], 160, 168, 176, 184, 192, ACC, [80, 88], 96, 232, 233, L, 234, 236, 20, 16, 48, 56, 104)
    return p

def expand_stamps(p, o):
    q = Prog()
    for i in p.ins:
        if i.text.startswith(';STAMP'):
            stamp(q, o, i.text.split()[1])
        elif i.text.startswith(';ZEROCNT'):
            if o.fuse_k2:
                q('''
    s_cmp_lg_u32 s2, 0
    s_cbranch_scc1 L_nozero
    v_lshlrev_b32 v166, 7, v%d
    v_add_u32 v166, %d, v166
    v_mov_b32 v167, 0x40000000
    v_cmp_gt_u32 vcc, 40, v%d
    s_nop 1
    v_cndmask_b32 v166, v167, v166, vcc
    v_mov_b32 v167, 0
    buffer_store_dword v167, v166, s[24:27], 0 offen sc1
L_nozero:
''' % (VLANE, WS_CNT, VLANE))
        else: q.ins.append(i)
    return q

def build_k1(o):
    p = Prog()
    p('k1_kernel:')
    pro, vm, VQ, VA = prologue(o)
    p.extend(expand_stamps(pro, o))
    p.extend(kv_addresses(o))
    qp = qproj(o, vm, VQ, VA)
    w, _ = insert_waits(qp.ins)
    p.extend(w)
    stamp(p, o, 'qproj')
    p.extend(qexchange(o, vm))
    stamp(p, o, 'qexch')
    if getattr(o, 'dump', '') == 'q':
        p('''
    s_lshl_b32 s60, s2, 2
    s_add_u32 s60, s60, s%d
    s_lshl_b32 s60, s60, 15
    s_add_u32 s60, s60, 0x2000000
    v_lshlrev_b32 v200, 4, v%d
    v_add_u32 v200, s60, v200
''' % (S_W, VLANE))
        for n in range(32):
            if n % 4 == 0 and n: p('v_add_u32 v200, 0x1000, v200')
            p('buffer_store_dwordx4 %s, v200, s[24:27], 0 offen offset:%d' % (vr(4 * n, 4), (n % 4) * 1024))
        p('s_waitcnt vmcnt(0)')
    p.extend(attn_prologue(o))
    stamp(p, o, 'attnpro')
    if o.stamps: p('s_waitcnt lgkmcnt(0)')
    lp, first, loop_ins, tail = attn_loop(o)
    p.extend(lp)
    stamp(p, o, 'loop')
    if getattr(o, 'dump', '') == 'o':
        p('s_nop 7')
        p('''
    s_lshl_b32 s60, s2, 18
    s_lshl_b32 s61, s%d, 16
    s_add_u32 s60, s60, s61
    s_add_u32 s60, s60, 0x2000000
    v_lshlrev_b32 v210, 4, v%d
    v_add_u32 v210, s60, v210
''' % (S_W, VLANE))
        for r4 in range(64):
            if r4 % 4 == 0 and r4: p('v_add_u32 v210, 0x1000, v210')
            p('buffer_store_dwordx4 %s, v210, s[24:27], 0 offen offset:%d' % (ar(4 * r4, 4), (r4 % 4) * 1024))
        p('''
    s_lshl_b32 s60, s2, 2
    s_add_u32 s60, s60, s%d
    s_lshl_b32 s60, s60, 11
    s_add_u32 s60, s60, 0x8000000
    v_lshlrev_b32 v210, 2, v%d
    v_add_u32 v210, s60, v210
''' % (S_W, VLANE))
        for b in range(4):
            p('buffer_store_dword v%d, v210, s[24:27], 0 offen offset:%d' % (NEGM + 4 * b, 256 * b))
            p('buffer_store_dword v%d, v210, s[24:27], 0 offen offset:%d' % (LREG[1] + b, 1024 + 256 * b))
        p('s_waitcnt vmcnt(0)')
    p.extend(epilogue(o))
    if o.stamps:
        if not o.fuse_k2: stamp(p, o, 'stores')
        stamp(p, o, 'k2m')
        p('s_waitcnt vmcnt(0)')
        stamp(p, o, 'end')
        p('s_waitcnt lgkmcnt(0)')
        p('''
    s_lshl_b32 s60, s2, 2
    s_add_u32 s60, s60, s%d
    s_lshl_b32 s60, s60, 6
    s_add_u32 s60, s60, 0x%x
    v_mov_b32 v1, s60
''' % (S_W, WS_STAMP))
        for k in range(8):
            p('v_mov_b32 v%d, s%d' % (2 + k, S_STAMP + 2 * k))
        p('''
    v_cmp_eq_u32 vcc, 0, v%d
    s_and_saveexec_b64 s[60:61], vcc
    s_cbranch_execz L_nostamp
    buffer_store_dwordx4 v[2:5], v1, s[24:27], 0 offen
    buffer_store_dwordx4 v[6:9], v1, s[24:27], 0 offen offset:16
L_nostamp:
    s_mov_b64 exec, s[60:61]
''' % VLANE)
    p('s_waitcnt vmcnt(0)')
    p('L_end_k1:')
    p('s_endpgm')
    for tag, par in (('f', 0), ('a', 1), ('b', 0), ('c', 1), ('d', 0)):
        p('L_rare_%s:' % tag)
        p('s_call_b64 s[%d:%d], L_fb_%d' % (S_RET, S_RET + 1, par))
        p('s_branch L_back_%s' % tag)
    p.extend(A.fallback(o, 0))
    p.extend(A.fallback(o, 1))
    probs = check_hazards(first + loop_ins + loop_ins + tail, 'loop') + check_hazards(p.ins, 'all')
    return p, probs

KD = '''
.amdhsa_kernel %s
  .amdhsa_next_free_vgpr %d
  .amdhsa_next_free_sgpr %d
  .amdhsa_accum_offset %d
  .amdhsa_group_segment_fixed_size 0
  .amdhsa_kernarg_size 120
  .amdhsa_user_sgpr_count 2
  .amdhsa_user_sgpr_kernarg_segment_ptr 1
  .amdhsa_system_sgpr_workgroup_id_x 1
  .amdhsa_float_denorm_mode_32 3
.end_amdhsa_kernel
'''

if __name__ == '__main__':
    import sys
    o = A.Opt()
    o.kgap = 1
    o.dma_gaps = [3, 7, 11, 15, 19, 23, 27, 31, 35, 39, 43, 47, 51, 55, 59, 63]
    o.stamps = 1; o.pf = 1; o.pfd = 4; o.pfmoe = 1; o.pf_kv_early = 0; o.late_dma = 0; o.qcvt = 1; o.fuse_k2 = 1; o.kdma_late = 0; o.part_flags = ' sc1'
    out = sys.argv[1]
    for kv in sys.argv[2:]:
        k, v = kv.split('=')
        try: v = int(v, 0)
        except ValueError:
            if v.startswith('['): v = eval(v)
        setattr(o, k, v)
    p, probs = build_k1(o)
    for pr in probs[:20]: print(pr)
    print('hazards', len(probs), 'instrs', len(p.ins))
    hdr = '''; @launch kernel=k1_kernel grid=(256,1,1) block=(256,1,1) lds=163840
.amdgcn_target "amdgcn-amd-amdhsa--gfx950"
.text
.globl k1_kernel
.p2align 8
.type k1_kernel,@function
'''
    ftr = '.section .rodata,"a"\n.p2align 6' + KD % ('k1_kernel', 512, 102, 256)
    open(out, 'w').write(hdr + p.text() + ftr)
```

```python
from asmlib import *
from k1 import WS_CNT, WS_MOD, WS_R, WS_IDX, WS_ACT, WS_H2, WS_PART, xreduce
def vr(a, n=1): return 'v%d' % a if n == 1 else 'v[%d:%d]' % (a, a + n - 1)

def srd(p, s, ptr_lo, nbytes, off=None):
    if off is None:
        if s != ptr_lo:
            p('s_mov_b32 s%d, s%d' % (s, ptr_lo)); p('s_mov_b32 s%d, s%d' % (s + 1, ptr_lo + 1))
    else:
        p('s_add_u32 s%d, s%d, %s' % (s, ptr_lo, off)); p('s_addc_u32 s%d, s%d, 0' % (s + 1, ptr_lo + 1))
    p('s_mov_b32 s%d, %s' % (s + 2, nbytes)); p('s_mov_b32 s%d, 0x20000' % (s + 3))

def wave_reduce(p, r, t, op='v_add_f32'):
    for k in (1, 2, 4, 8):
        p('s_nop 1')
        p('%s_dpp v%d, v%d, v%d row_ror:%d row_mask:0xf bank_mask:0xf' % (op, r, r, r, k))
    p('s_nop 0')
    xreduce(p, r, t, op)

def wave_reduce_multi(p, regs, temps, op='v_add_f32'):
    for k in (1, 2, 4, 8):
        if len(regs) < 3: p('s_nop %d' % (2 - len(regs)))
        for r in regs:
            p('%s_dpp v%d, v%d, v%d row_ror:%d row_mask:0xf bank_mask:0xf' % (op, r, r, r, k))
    for sw in ('v_permlane16_swap_b32', 'v_permlane32_swap_b32'):
        p('s_nop 0')
        for r, t in zip(regs, temps): p('v_mov_b32 v%d, v%d' % (t, r))
        p('s_nop 1')
        for r, t in zip(regs, temps): p('%s v%d, v%d' % (sw, r, t))
        p('s_nop 1')
        for r, t in zip(regs, temps): p('%s v%d, v%d, v%d' % (op, r, r, t))

def build_k0():
    p = Prog()
    p('''
k0_kernel:
    s_cmp_ge_u32 s2, 42
    s_cbranch_scc1 L_end_k0
    s_load_dwordx4 s[4:7], s[0:1], 80
    s_load_dwordx2 s[24:25], s[0:1], 112
    v_and_b32 v1, 7, v0            ; cc
    v_lshrrev_b32 v2, 3, v0        ; kg 0..31
    s_waitcnt lgkmcnt(0)
''')
    srd(p, 8, 4, 896)
    srd(p, 12, 6, 448 * 5376)
    srd(p, 24, 24, 10752)
    p('''
    v_mul_u32_u24 v3, 5376, v2
    v_lshl_add_u32 v3, v1, 4, v3
    s_lshl_b32 s16, s2, 7
    v_add_u32 v3, s16, v3
    v_lshlrev_b32 v4, 1, v2        ; c offset
''')
    for i in range(14):
        p('buffer_load_ushort v%d, v4, s[8:11], 0 offen offset:%d' % (10 + i, 64 * i))
    p('s_mov_b32 s17, %d' % (32 * 5376))
    for i in range(14):
        p('buffer_load_dwordx4 %s, v3, s[12:15], 0 offen' % vr(32 + 4 * i, 4))
        if i < 13: p('v_add_u32 v3, s17, v3')
    p('s_waitcnt vmcnt(14)')
    for i in range(14):
        p('v_lshlrev_b32 v%d, 16, v%d' % (10 + i, 10 + i))
    for i in range(14):
        p('v_mul_f32 v%d, 0xbfb8aa3b, v%d' % (96 + i, 10 + i))
    for i in range(14):
        p('v_exp_f32 v%d, v%d' % (96 + i, 96 + i))
    for i in range(14):
        p('v_add_f32 v%d, 1.0, v%d' % (96 + i, 96 + i))
    for i in range(14):
        p('v_rcp_f32 v%d, v%d' % (96 + i, 96 + i))
    for i in range(14):
        p('v_mul_f32 v%d, v%d, v%d' % (10 + i, 10 + i, 96 + i))
    for i in range(14):
        p('v_cvt_pk_bf16_f32 v%d, v%d, 0' % (10 + i, 10 + i))
    for i in range(14):
        p('v_lshlrev_b32 v%d, 16, v%d' % (96 + i, 10 + i))
    for j in range(8): p('v_mov_b32 v%d, 0' % (112 + j))
    p('s_waitcnt vmcnt(0)')
    for i in range(14):
        for j in range(8):
            w = 32 + 4 * i + j // 2
            sel = (10 + i) if j % 2 == 0 else (96 + i)
            p('v_dot2_f32_bf16 v%d, v%d, v%d, v%d' % (112 + j, w, sel, 112 + j))
    p('s_nop 2')
    regs = [112 + j for j in range(8)]; temps = [120 + j for j in range(8)]
    for r in regs:
        p('v_add_f32_dpp v%d, v%d, v%d row_ror:8 row_mask:0xf bank_mask:0xf' % (r, r, r))
    for sw in ('v_permlane16_swap_b32', 'v_permlane32_swap_b32'):
        for r, t in zip(regs, temps): p('v_mov_b32 v%d, v%d' % (t, r))
        p('s_nop 1')
        for r, t in zip(regs, temps): p('%s v%d, v%d' % (sw, r, t))
        p('s_nop 1')
        for r, t in zip(regs, temps): p('v_add_f32 v%d, v%d, v%d' % (r, r, t))
    p('''
    v_lshrrev_b32 v5, 6, v0
    v_lshlrev_b32 v5, 8, v5
    v_lshl_add_u32 v5, v1, 5, v5
    ds_write_b128 v5, v[112:115]
    ds_write_b128 v5, v[116:119] offset:16
    s_waitcnt lgkmcnt(0)
    s_barrier
    v_cmp_gt_u32 vcc, 64, v0
    s_and_saveexec_b64 s[18:19], vcc
    s_cbranch_execz L_k0_done
    v_lshlrev_b32 v5, 2, v0
    ds_read_b32 v6, v5
    ds_read_b32 v7, v5 offset:256
    ds_read_b32 v8, v5 offset:512
    ds_read_b32 v9, v5 offset:768
    s_waitcnt lgkmcnt(0)
    v_add_f32 v6, v6, v7
    v_add_f32 v8, v8, v9
    v_add_f32 v6, v6, v8
    v_cvt_pk_bf16_f32 v6, v6, 0
    v_lshlrev_b32 v6, 16, v6
    s_mul_i32 s20, s2, 37
    s_lshr_b32 s20, s20, 8
    s_cmp_eq_u32 s20, 1
    s_cselect_b32 s21, 1, 0
    s_cmp_eq_u32 s20, 4
    s_cselect_b32 s21, 1, s21
    s_cmp_eq_u32 s21, 0
    s_cbranch_scc1 L_k0_store
    v_add_f32 v6, 1.0, v6
    v_cvt_pk_bf16_f32 v6, v6, 0
    v_lshlrev_b32 v6, 16, v6
L_k0_store:
    s_lshl_b32 s16, s2, 8
    v_add_u32 v5, s16, v5
    buffer_store_dword v6, v5, s[24:27], 0 offen
L_k0_done:
    s_mov_b64 exec, s[18:19]
    s_waitcnt vmcnt(0)
L_end_k0:
    s_endpgm
''')
    return p

PF_MOE = True
def build_k2():
    p = Prog()
    p('''
k2_kernel:
    s_cmp_ge_u32 s2, 256
    s_cbranch_scc1 L_end_k2
    s_load_dwordx2 s[4:5], s[0:1], 0
    s_load_dwordx2 s[6:7], s[0:1], 48
    s_load_dwordx2 s[28:29], s[0:1], 96
    s_load_dwordx2 s[24:25], s[0:1], 112
    s_load_dwordx4 s[44:47], s[0:1], 56
    s_load_dwordx2 s[48:49], s[0:1], 72
    v_and_b32 v1, 63, v0
    v_lshrrev_b32 v2, 6, v0
    s_nop 0
    v_readfirstlane_b32 s3, v2
    s_lshl_b32 s41, s2, 3
    s_lshl_b32 s42, s3, 1
    s_add_u32 s41, s41, s42
    s_mul_i32 s42, s41, 896
    s_waitcnt lgkmcnt(0)
''')
    srd(p, 8, 4, 2048 * 896)
    srd(p, 12, 6, 896)
    srd(p, 16, 24, 8 * 2048 * 896, str(WS_PART))
    srd(p, 20, 24, 2048 * 896, str(WS_H2))
    srd(p, 32, 24, 10752)
    srd(p, 36, 24, 8192, str(WS_R))
    srd(p, 28, 28, 2048 * 896)
    p('''
    v_lshlrev_b32 v3, 4, v1            ; lane*16
    v_lshlrev_b32 v4, 5, v1
    v_mov_b32 v5, 0x40000000
    v_cmp_gt_u32 vcc, 56, v1
    s_nop 1
    v_cndmask_b32 v3, v5, v3, vcc
    v_cndmask_b32 v4, v5, v4, vcc
    v_cndmask_b32 v6, 0, 1.0, vcc
    v_add_u32 v7, s42, v3
''')
    for rr in range(2):
        for g in range(8):
            p('s_mov_b32 s40, %d' % (g * 2048 * 896 + rr * 896) if not (g == 0 and rr == 0) else 's_mov_b32 s40, 0')
            p('buffer_load_dwordx4 %s, v7, s[16:19], s40 offen' % vr(16 + rr * 40 + 4 * g, 4))
        p('buffer_load_dwordx4 %s, v7, s[8:11], 0 offen offset:%d' % (vr(16 + rr * 40 + 32, 4), rr * 896))
    for k, seg in enumerate((2, 3, 4, 5)):
        p('s_mov_b32 s40, %d' % (seg * 1792))
        p('buffer_load_dwordx4 %s, v4, s[32:35], s40 offen' % vr(96 + 8 * k, 4))
        p('buffer_load_dwordx4 %s, v4, s[32:35], s40 offen offset:16' % vr(100 + 8 * k, 4))
    p('buffer_load_dwordx4 v[128:131], v3, s[12:15], 0 offen')
    p('v_mov_b32 v8, 0x00003f80')
    p('v_mov_b32 v9, 0x3f800000')
    ACC = [136, 152]
    for rr in range(2):
        for j in range(8): p('v_mov_b32 v%d, 0' % (ACC[rr] + j))
    for rr in range(2):
        p('s_waitcnt vmcnt(%d)' % (9 + 1 + (9 if rr == 0 else 0)))
        for g in range(8):
            for j in range(8):
                p('v_dot2_f32_bf16 v%d, v%d, v%d, v%d' % (ACC[rr] + j, 16 + rr * 40 + 4 * g + j // 2, 8 + j % 2, ACC[rr] + j))
    p('s_waitcnt vmcnt(0)')
    p(';ST 0')
    if PF_MOE:
        p('''
    s_and_b32 s50, s2, 7               ; x
    s_lshr_b32 s51, s2, 3              ; i
    v_min_u32 v210, 55, v1
    s_cmp_ge_u32 s3, 2
    s_cbranch_scc1 L_k2_pfdown
    s_mul_i32 s52, s50, 448
    s_lshr_b32 s52, s52, 7
    s_mul_i32 s53, s51, 14
    v_lshrrev_b32 v211, 2, v210
    v_add_u32 v211, s53, v211
    v_mul_u32_u24 v211, 3584, v211
    v_and_b32 v212, 3, v210
    v_add_u32 v212, s52, v212
    v_lshl_add_u32 v211, v212, 7, v211
    s_cmp_eq_u32 s3, 0
    s_cselect_b32 s54, s44, s46
    s_cselect_b32 s55, s45, s47
    global_load_dword v213, v211, s[54:55]
    s_branch L_k2_pfdone
L_k2_pfdown:
    s_lshl_b32 s52, s50, 7             ; x<4: byte 128x
    s_mul_i32 s53, s50, 96
    s_add_u32 s53, s53, 128            ; x>=4: 512 + 96(x-4) = 96x + 128
    s_cmp_lt_u32 s50, 4
    s_cselect_b32 s52, s52, s53
    s_and_b32 s53, s3, 1
    s_mul_i32 s53, s53, 95
    s_add_u32 s52, s52, s53
    s_and_b32 s52, s52, 0xffffff80
    s_mul_i32 s53, s51, 56
    v_add_u32 v211, s53, v210
    v_mul_u32_u24 v211, 896, v211
    v_add_u32 v211, s52, v211
    global_load_dword v213, v211, s[48:49]
L_k2_pfdone:
''')
    X1 = [168, 184]
    for rr in range(2):
        xr = 16 + rr * 40 + 32
        for j in range(8):
            p('v_mul_f32 v%d, v%d, v%d' % (ACC[rr] + j, ACC[rr] + j, 96 + j))
        for j in range(8):
            p('v_dot2_f32_bf16 v%d, v%d, v%d, v%d' % (ACC[rr] + j, xr + j // 2, 8 + j % 2, ACC[rr] + j))
    p('s_nop 2')
    for rr in range(2):
        for j in range(0, 8, 2):
            p('v_cvt_pk_bf16_f32 v%d, v%d, v%d' % (200 + rr * 4 + j // 2, ACC[rr] + j, ACC[rr] + j + 1))
    for rr in range(2):
        for j in range(8):
            if j % 2 == 0: p('v_lshlrev_b32 v%d, 16, v%d' % (X1[rr] + j, 200 + rr * 4 + j // 2))
            else: p('v_and_b32 v%d, 0xffff0000, v%d' % (X1[rr] + j, 200 + rr * 4 + j // 2))
    SUM = [10, 11]
    for rr in range(2):
        p('v_add_f32 v%d, v%d, v%d' % (SUM[rr], X1[rr], X1[rr] + 1))
        for j in range(2, 8): p('v_add_f32 v%d, v%d, v%d' % (SUM[rr], SUM[rr], X1[rr] + j))
    wave_reduce_multi(p, SUM, [12, 13])
    XC = [16, 32]
    for rr in range(2):
        p('v_mul_f32 v%d, 0xbb124925, v%d' % (SUM[rr], SUM[rr]))
    for rr in range(2):
        for j in range(8):
            p('v_add_f32 v%d, v%d, v%d' % (XC[rr] + j, X1[rr] + j, SUM[rr]))
    VAR = [12, 13]
    for rr in range(2):
        p('v_mul_f32 v%d, v%d, v%d' % (VAR[rr], XC[rr], XC[rr]))
        for j in range(1, 8): p('v_fmac_f32 v%d, v%d, v%d' % (VAR[rr], XC[rr] + j, XC[rr] + j))
    for rr in range(2):
        p('v_mul_f32 v%d, v%d, v6' % (VAR[rr], VAR[rr]))
    wave_reduce_multi(p, VAR, [14, 15])
    for rr in range(2):
        p('v_mov_b32 v%d, 0x3727c5ac' % (14 + rr))
        p('v_fmac_f32 v%d, 0x3b124925, v%d' % (14 + rr, VAR[rr]))
    for rr in range(2):
        p('v_rsq_f32 v%d, v%d' % (VAR[rr], 14 + rr))
    p('s_nop 0')
    H = [48, 64]
    for rr in range(2):
        for j in range(8):
            p('v_mul_f32 v%d, v%d, v%d' % (XC[rr] + j, XC[rr] + j, VAR[rr]))
        for j in range(8):
            p('v_fma_f32 v%d, v%d, v%d, v%d' % (XC[rr] + j, XC[rr] + j, 112 + j, 104 + j))
        for j in range(0, 8, 2):
            p('v_cvt_pk_bf16_f32 v%d, v%d, v%d' % (H[rr] + j // 2, XC[rr] + j, XC[rr] + j + 1))
    p(';ST 1')
    for rr in range(2):
        p('buffer_store_dwordx4 %s, v7, s[20:23], 0 offen offset:%d' % (vr(H[rr], 4), rr * 896))
    RR = [14, 15]
    for rr in range(2):
        p('v_mov_b32 v%d, 0' % RR[rr])
    for j in range(4):
        for rr in range(2):
            p('v_dot2_f32_bf16 v%d, v%d, v%d, v%d' % (RR[rr], H[rr] + j, 128 + j, RR[rr]))
    for rr in range(2):
        for j in range(8):
            if j % 2 == 0: p('v_lshlrev_b32 v%d, 16, v%d' % (XC[rr] + j, H[rr] + j // 2))
            else: p('v_and_b32 v%d, 0xffff0000, v%d' % (XC[rr] + j, H[rr] + j // 2))
        for j in range(8):
            p('v_fma_f32 v%d, v%d, v%d, v%d' % (XC[rr] + j, XC[rr] + j, 120 + j, X1[rr] + j))
        for j in range(0, 8, 2):
            p('v_cvt_pk_bf16_f32 v%d, v%d, v%d' % (80 + rr * 4 + j // 2, XC[rr] + j, XC[rr] + j + 1))
        p('buffer_store_dwordx4 %s, v7, s[28:31], 0 offen offset:%d' % (vr(80 + rr * 4, 4), rr * 896))
    wave_reduce_multi(p, RR, [12, 13])
    p('''
    v_cvt_pk_bf16_f32 v14, v14, 0
    v_cvt_pk_bf16_f32 v15, v15, 0
    v_lshlrev_b32 v14, 16, v14
    v_lshlrev_b32 v15, 16, v15
    v_cmp_eq_u32 vcc, 1, v1
    s_nop 1
    v_cndmask_b32 v14, v14, v15, vcc
    v_add_u32 v2, s41, v1
    v_lshlrev_b32 v2, 2, v2
    v_cmp_gt_u32 vcc, 2, v1
    s_nop 1
    v_cndmask_b32 v2, v5, v2, vcc
    buffer_store_dword v14, v2, s[36:39], 0 offen
    s_waitcnt vmcnt(0)
L_end_k2:
    s_endpgm
''')
    return p

def sort8(p, K, T):
    net = [(0,1),(2,3),(4,5),(6,7),(0,2),(1,3),(4,6),(5,7),(1,2),(5,6),(0,4),(3,7),(1,5),(2,6),(1,4),(3,6),(2,4),(3,5),(3,4)]
    for a_, b_ in net:
        p('v_max_u32 v%d, v%d, v%d' % (T, K + a_, K + b_))
        p('v_min_u32 v%d, v%d, v%d' % (K + b_, K + a_, K + b_))
        p('v_mov_b32 v%d, v%d' % (K + a_, T))

def row_rounds(p, K, T, RES, MASK):
    pend = []
    for rnd in range(8):
        p('v_mov_b32 v%d, v%d' % (T, K))
        for k in (1, 2, 4, 8):
            fill = pend[:2]; pend = pend[2:]
            for x in fill: p(x)
            if len(fill) < 2: p('s_nop %d' % (1 - len(fill)))
            p('v_max_u32_dpp v%d, v%d, v%d row_ror:%d row_mask:0xf bank_mask:0xf' % (T, T, T, k))
        for x in pend: p(x)
        pend = []
        p('v_cndmask_b32_e64 v%d, v%d, v%d, s[%d:%d]' % (RES, RES, T, MASK + 2 * rnd, MASK + 2 * rnd + 1))
        if rnd < 7:
            p('v_cmp_eq_u32 vcc, v%d, v%d' % (K, T))
            p('s_nop 1')
            sh = ['v_cndmask_b32 v%d, v%d, v%d, vcc' % (K + j, K + j, K + j + 1) for j in range(7 - rnd)]
            p(sh[0])
            pend = sh[1:]

def top8(p, KEY, T):
    RES = T + 1
    p('v_and_b32 v%d, 7, v1' % T)
    for i in range(8):
        p('v_cmp_eq_u32 s[%d:%d], %d, v%d' % (64 + 2 * i, 65 + 2 * i, i, T))
    sort8(p, KEY, T)
    p('v_mov_b32 v%d, 0' % RES)
    row_rounds(p, KEY, T, RES, 64)
    p('v_lshrrev_b32 v%d, 4, v0' % T)
    p('v_lshlrev_b32 v%d, 5, v%d' % (T, T))
    p('v_and_b32 v%d, 7, v1' % (T + 2))
    p('v_lshl_add_u32 v%d, v%d, 2, v%d' % (T, T + 2, T))
    p('ds_write_b32 v%d, v%d offset:%d' % (T, RES, TOPK_LDS))
    p('s_waitcnt lgkmcnt(0)')
    p('s_barrier')
    p('v_and_b32 v%d, 15, v1' % T)
    p('v_lshlrev_b32 v%d, 5, v%d' % (T, T))
    p('ds_read_b128 %s, v%d offset:%d' % (vr(KEY, 4), T, TOPK_LDS))
    p('ds_read_b128 %s, v%d offset:%d' % (vr(KEY + 4, 4), T, TOPK_LDS + 16))
    p('v_mov_b32 v%d, 0' % RES)
    p('s_waitcnt lgkmcnt(0)')
    row_rounds(p, KEY, T, RES, 64)

TOPK_LDS = 57344

def wstage(p, srd_, voff, nsteps, lds_sgpr):
    p('s_mov_b32 s44, 0')
    for i in range(nsteps):
        p('s_add_u32 m0, s%d, %d' % (lds_sgpr, i * 1024))
        p('s_nop 0')
        p('buffer_load_dwordx4 v%d, s[%d:%d], s44 offen lds' % (voff, srd_, srd_ + 3))
        if i + 1 < nsteps: p('s_add_u32 s44, s44, s45')

def tr_frags(p, addr, dst, nsteps):
    for i in range(nsteps):
        p('ds_read_b64_tr_b16 %s, v%d offset:%d' % (vr(dst + 4 * i, 2), addr, i * 1024))
        p('ds_read_b64_tr_b16 %s, v%d offset:%d' % (vr(dst + 4 * i + 2, 2), addr, i * 1024 + 128))

def build_k3():
    p = Prog()
    p('''
k3_kernel:
    s_cmp_ge_u32 s2, 56
    s_cbranch_scc1 L_end_k3
    s_load_dwordx4 s[4:7], s[0:1], 56
    s_load_dwordx2 s[24:25], s[0:1], 112
    v_and_b32 v1, 63, v0
    v_lshrrev_b32 v2, 6, v0
    s_nop 0
    v_readfirstlane_b32 s3, v2
    s_waitcnt lgkmcnt(0)
    s_cmp_ge_u32 s3, 2
    s_cselect_b32 s4, s6, s4
    s_cselect_b32 s5, s7, s5
''')
    srd(p, 8, 4, 448 * 3584)
    srd(p, 12, 24, 8192, str(WS_R))
    srd(p, 16, 24, 2048 * 896, str(WS_H2))
    srd(p, 20, 24, 28672, str(WS_ACT))
    srd(p, 28, 24, 64, str(WS_IDX))
    p('''
    s_and_b32 s40, s2, 7
    s_mul_i32 s40, s40, 7
    s_lshr_b32 s41, s2, 3
    s_add_u32 s40, s40, s41           ; column block = (wg&7)*7 + (wg>>3): neighbours share an XCD (speed only)
    s_lshl_b32 s40, s40, 6
    s_and_b32 s41, s3, 1
    s_lshl_b32 s41, s41, 5
    s_add_u32 s40, s40, s41
    v_lshrrev_b32 v3, 1, v1
    v_mul_u32_u24 v3, 3584, v3
    v_and_b32 v4, 1, v1
    v_lshl_add_u32 v3, v4, 4, v3
    v_add_u32 v3, s40, v3
    s_mov_b32 s45, %d
    s_mul_i32 s46, s3, 14336
''' % (32 * 3584))
    p('v_lshlrev_b32 v5, 5, v0')
    p('buffer_load_dwordx4 v[8:11], v5, s[12:15], 0 offen')
    p('buffer_load_dwordx4 v[12:15], v5, s[12:15], 0 offen offset:16')
    wstage(p, 8, 3, 14, 46)
    p('v_lshlrev_b32 v6, 3, v0')
    p('v_sub_u32 v6, 2047, v6')
    p('s_waitcnt vmcnt(14)')
    p(';ST 0')
    for j in range(8):
        k = 8 + j
        p('v_ashrrev_i32 v16, 31, v%d' % k)
        p('v_or_b32 v16, 0x80000000, v16')
        p('v_xor_b32 v%d, v%d, v16' % (k, k))
        p('v_and_b32 v%d, 0xffff0000, v%d' % (k, k))
        p('v_subrev_u32 v17, %d, v6' % j)
        p('v_or_b32 v%d, v%d, v17' % (k, k))
    top8(p, 8, 16)
    p(';ST 1')
    p('v_and_b32 v20, 0xffff, v17')
    p('v_sub_u32 v20, 2047, v20')
    p('''
    v_mul_u32_u24 v22, 896, v20
    v_lshrrev_b32 v23, 4, v1
    v_lshl_add_u32 v22, v23, 4, v22
''')
    for i in range(14):
        p('buffer_load_dwordx4 %s, v22, s[16:19], 0 offen offset:%d' % (vr(32 + 4 * i, 4), 64 * i))
    p('''
    s_or_b32 s47, s2, s3
    s_cmp_lg_u32 s47, 0
    s_cbranch_scc1 L_k3_nopub
    v_mov_b32 v24, v17
    v_and_b32 v24, 0xffff0000, v24
    v_ashrrev_i32 v25, 31, v24
    v_not_b32 v25, v25
    v_or_b32 v25, 0x80000000, v25
    v_xor_b32 v24, v24, v25
    v_and_b32 v24, 0xffff0000, v24
    v_mul_f32 v25, 0xbfb8aa3b, v24
    v_exp_f32 v25, v25
    s_nop 0
    v_add_f32 v25, 1.0, v25
    v_rcp_f32 v25, v25
    s_nop 0
    v_cvt_pk_bf16_f32 v25, v25, 0
    v_lshlrev_b32 v25, 16, v25
    v_lshlrev_b32 v26, 2, v1
    v_cmp_gt_u32 vcc, 8, v1
    v_mov_b32 v27, 0x40000000
    s_nop 0
    v_cndmask_b32 v26, v27, v26, vcc
    buffer_store_dword v20, v26, s[28:31], 0 offen
    buffer_store_dword v25, v26, s[28:31], 0 offen offset:32
L_k3_nopub:
''')
    p('''
    v_lshrrev_b32 v28, 4, v1            ; kq
    v_lshlrev_b32 v28, 3, v28           ; 8 kq
    v_bfe_u32 v29, v1, 2, 2             ; r
    v_add_u32 v28, v28, v29
    v_lshlrev_b32 v28, 5, v28           ; row*32
    v_and_b32 v29, 3, v1
    v_lshl_add_u32 v28, v29, 3, v28
    v_add_u32 v28, s46, v28
    s_waitcnt vmcnt(14)
''')
    p(';ST 2')
    tr_frags(p, 28, 96, 14)
    p('s_waitcnt vmcnt(0) lgkmcnt(0)')
    p(';ST 3')
    for i in range(14):
        c = '0' if i == 0 else 'v[160:163]'
        p('v_mfma_f32_16x16x32_bf16 v[160:163], %s, %s, %s' % (vr(32 + 4 * i, 4), vr(96 + 4 * i, 4), c))
    p('s_nop 7')
    p('v_cvt_pk_bf16_f32 v164, v160, v161')
    p('v_cvt_pk_bf16_f32 v165, v162, v163')
    p('''
    v_lshlrev_b32 v160, 16, v164
    v_and_b32 v161, 0xffff0000, v164
    v_lshlrev_b32 v162, 16, v165
    v_and_b32 v163, 0xffff0000, v165
    s_cmp_ge_u32 s3, 2
    s_cbranch_scc1 L_k3_up
''')
    for r in range(4): p('v_mul_f32 v%d, 0xbfb8aa3b, v%d' % (166 + r, 160 + r))
    for r in range(4): p('v_exp_f32 v%d, v%d' % (166 + r, 166 + r))
    for r in range(4): p('v_add_f32 v%d, 1.0, v%d' % (166 + r, 166 + r))
    for r in range(4): p('v_rcp_f32 v%d, v%d' % (166 + r, 166 + r))
    p('s_nop 0')
    for r in range(4): p('v_mul_f32 v%d, v%d, v%d' % (160 + r, 160 + r, 166 + r))
    p('v_cvt_pk_bf16_f32 v164, v160, v161')
    p('v_cvt_pk_bf16_f32 v165, v162, v163')
    p('''
    v_lshlrev_b32 v160, 16, v164
    v_and_b32 v161, 0xffff0000, v164
    v_lshlrev_b32 v162, 16, v165
    v_and_b32 v163, 0xffff0000, v165
L_k3_up:
    s_and_b32 s41, s3, 1
    s_lshl_b32 s41, s41, 10
    v_lshlrev_b32 v30, 4, v1
    v_add_u32 v30, s41, v30
    v_add_u32 v30, %d, v30
    s_cmp_ge_u32 s3, 2
    s_cbranch_scc0 L_k3_gate_wait
    ds_write_b128 v30, v[160:163]
L_k3_gate_wait:
    s_waitcnt lgkmcnt(0)
    s_barrier
    s_cmp_ge_u32 s3, 2
    s_cbranch_scc1 L_end_k3
    ds_read_b128 v[164:167], v30
    s_waitcnt lgkmcnt(0)
''' % (TOPK_LDS + 256))
    for r in range(4): p('v_mul_f32 v%d, v%d, v%d' % (160 + r, 160 + r, 164 + r))
    p('''
    v_cvt_pk_bf16_f32 v160, v160, v161
    v_cvt_pk_bf16_f32 v162, v162, v163
    v_lshrrev_b32 v23, 4, v1
    v_mul_u32_u24 v24, %d, v23          ; 4 rows * 3584 B
    v_and_b32 v25, 15, v1
    v_lshl_add_u32 v24, v25, 1, v24
    v_add_u32 v24, s40, v24
    v_mov_b32 v27, 0x40000000
    v_cmp_gt_u32 vcc, 32, v1
    s_nop 1
    v_cndmask_b32 v24, v27, v24, vcc
    buffer_store_short v160, v24, s[20:23], 0 offen
    buffer_store_short_d16_hi v160, v24, s[20:23], 0 offen offset:3584
    s_mov_b32 s41, 7168
    buffer_store_short v162, v24, s[20:23], s41 offen
    buffer_store_short_d16_hi v162, v24, s[20:23], s41 offen offset:3584
    s_waitcnt vmcnt(0)
L_end_k3:
    s_endpgm
''' % (4 * 3584))
    return p

def build_k4():
    p = Prog()
    p('''
k4_kernel:
    s_cmp_ge_u32 s2, 28
    s_cbranch_scc1 L_end_k4
    s_load_dwordx2 s[4:5], s[0:1], 72
    s_load_dwordx2 s[28:29], s[0:1], 96
    s_load_dwordx2 s[24:25], s[0:1], 112
    v_and_b32 v1, 63, v0
    v_lshrrev_b32 v2, 6, v0
    s_nop 0
    v_readfirstlane_b32 s3, v2
    s_waitcnt lgkmcnt(0)
''')
    p('s_mul_i32 s40, s3, %d' % (448 * 896))
    p('s_add_u32 s4, s4, s40'); p('s_addc_u32 s5, s5, 0')
    srd(p, 8, 4, 448 * 896)
    srd(p, 12, 24, 10752)
    srd(p, 16, 24, 64, str(WS_IDX))
    srd(p, 20, 24, 28672, str(WS_ACT))
    srd(p, 28, 28, 2048 * 896)
    p('''
    s_and_b32 s47, s2, 7
    s_lshr_b32 s41, s2, 3
    s_lshl_b32 s42, s47, 2
    s_mul_i32 s43, s47, 3
    s_add_u32 s43, s43, 4             ; 16 + (x-4)*3 = 3x + 4
    s_cmp_lt_u32 s47, 4
    s_cselect_b32 s47, s42, s43
    s_add_u32 s47, s47, s41           ; column block
    s_lshl_b32 s40, s47, 5              ; column byte offset
    v_lshrrev_b32 v3, 1, v1
    v_mul_u32_u24 v3, 896, v3
    v_and_b32 v4, 1, v1
    v_lshl_add_u32 v3, v4, 4, v3
    v_add_u32 v3, s40, v3
    s_mov_b32 s45, %d
    s_mul_i32 s46, s3, 14336
''' % (32 * 896))
    wstage(p, 8, 3, 14, 46)
    p(';ST 0')
    p('''
    v_and_b32 v4, 7, v1
    v_mul_u32_u24 v22, 3584, v4
    v_lshrrev_b32 v23, 4, v1
    v_lshl_add_u32 v22, v23, 4, v22
    s_mul_i32 s41, s3, 896
    v_add_u32 v22, s41, v22
''')
    for i in range(14):
        p('buffer_load_dwordx4 %s, v22, s[20:23], 0 offen offset:%d' % (vr(32 + 4 * i, 4), 64 * i))
    p('''
    v_lshrrev_b32 v23, 4, v1
    v_and_b32 v23, 1, v23
    v_lshlrev_b32 v24, 4, v23
    buffer_load_dwordx4 v[8:11], v24, s[16:19], 0 offen            ; idx[4kq..]
    buffer_load_dwordx4 v[12:15], v24, s[16:19], 0 offen offset:32 ; sig[4kq..]
    v_and_b32 v25, 15, v1
    v_lshlrev_b32 v26, 2, v25
    s_lshl_b32 s41, s47, 6
    v_add_u32 v26, s41, v26
    s_mov_b32 s42, 8960
    buffer_load_dword v16, v26, s[12:15], s42 offen                ; gb[col]
    v_lshrrev_b32 v28, 4, v1
    v_lshlrev_b32 v28, 3, v28
    v_bfe_u32 v29, v1, 2, 2
    v_add_u32 v28, v28, v29
    v_lshlrev_b32 v28, 5, v28
    v_and_b32 v29, 3, v1
    v_lshl_add_u32 v28, v29, 3, v28
    v_add_u32 v28, s46, v28
    s_waitcnt vmcnt(0)
''')
    p(';ST 1')
    for r in range(4):
        p('v_mul_u32_u24 v%d, 896, v%d' % (17 + r, 8 + r))
    p('v_lshlrev_b32 v25, 1, v25')
    p('v_add_u32 v25, s40, v25')
    for r in range(4):
        p('v_add_u32 v%d, v%d, v25' % (17 + r, 17 + r))
    for r in range(4):
        p('buffer_load_ushort v%d, v%d, s[28:31], 0 offen' % (100 + r, 17 + r))
    tr_frags(p, 28, 104, 14)
    p('s_waitcnt lgkmcnt(0)')
    p(';ST 2')
    for i in range(14):
        c = '0' if i == 0 else 'v[160:163]'
        p('v_mfma_f32_16x16x32_bf16 v[160:163], %s, %s, %s' % (vr(32 + 4 * i, 4), vr(104 + 4 * i, 4), c))
    p('s_nop 7')
    p('''
    v_lshlrev_b32 v30, 4, v1
    s_lshl_b32 s41, s3, 10
    v_add_u32 v30, s41, v30
    ds_write_b128 v30, v[160:163] offset:57344
    s_waitcnt lgkmcnt(0)
    s_barrier
    s_cmp_lg_u32 s3, 0
    s_cbranch_scc1 L_end_k4
    ds_read_b128 v[164:167], v30 offset:58368
    ds_read_b128 v[168:171], v30 offset:59392
    ds_read_b128 v[172:175], v30 offset:60416
    s_waitcnt vmcnt(0) lgkmcnt(0)
''')
    for r in range(4):
        p('v_add_f32 v%d, v%d, v%d' % (160 + r, 160 + r, 164 + r))
        p('v_add_f32 v%d, v%d, v%d' % (168 + r, 168 + r, 172 + r))
    for r in range(4):
        p('v_add_f32 v%d, v%d, v%d' % (160 + r, 160 + r, 168 + r))
    def rnd(a):
        p('v_cvt_pk_bf16_f32 v164, v%d, v%d' % (a, a + 1))
        p('v_cvt_pk_bf16_f32 v165, v%d, v%d' % (a + 2, a + 3))
        p('v_lshlrev_b32 v%d, 16, v164' % a); p('v_and_b32 v%d, 0xffff0000, v164' % (a + 1))
        p('v_lshlrev_b32 v%d, 16, v165' % (a + 2)); p('v_and_b32 v%d, 0xffff0000, v165' % (a + 3))
    rnd(160)
    for r in range(4): p('v_mul_f32 v%d, v%d, v%d' % (160 + r, 160 + r, 12 + r))
    rnd(160)
    for r in range(4):
        p('v_lshlrev_b32 v%d, 16, v%d' % (100 + r, 100 + r))
        p('v_fma_f32 v%d, v%d, v16, v%d' % (160 + r, 160 + r, 100 + r))
    p('v_cvt_pk_bf16_f32 v164, v160, v161')
    p('v_cvt_pk_bf16_f32 v165, v162, v163')
    p('''
    v_mov_b32 v27, 0x40000000
    v_cmp_gt_u32 vcc, 32, v1
    s_nop 1
''')
    for r in range(4): p('v_cndmask_b32 v%d, v27, v%d, vcc' % (17 + r, 17 + r))
    p('''
    buffer_store_short v164, v17, s[28:31], 0 offen
    buffer_store_short_d16_hi v164, v18, s[28:31], 0 offen
    buffer_store_short v165, v19, s[28:31], 0 offen
    buffer_store_short_d16_hi v165, v20, s[28:31], 0 offen
    s_waitcnt vmcnt(0)
L_end_k4:
    s_endpgm
''')
    return p


def keys_and_top8(p):
    top8(p, 8, 16)

K34_FLAGS = False
def build_k34():
    p = Prog()
    p("""
k34_kernel:
    s_cmp_ge_u32 s2, 84
    s_cbranch_scc1 L_end_k34
    s_load_dwordx4 s[4:7], s[0:1], 56
    s_load_dwordx2 s[48:49], s[0:1], 72
    s_load_dwordx4 s[52:55], s[0:1], 96
    s_load_dwordx2 s[24:25], s[0:1], 112
    v_and_b32 v1, 63, v0
    v_lshrrev_b32 v2, 6, v0
    s_nop 0
    v_readfirstlane_b32 s3, v2
    v_lshlrev_b32 v5, 5, v0
    s_waitcnt lgkmcnt(0)
""")
    srd(p, 12, 24, 8192, str(WS_R))
    p('buffer_load_dwordx4 v[8:11], v5, s[12:15], 0 offen')
    p('buffer_load_dwordx4 v[12:15], v5, s[12:15], 0 offen offset:16')
    srd(p, 16, 24, 2048 * 896, str(WS_H2))
    srd(p, 20, 24, 28672, str(WS_ACT))
    srd(p, 56, 54, 256)
    p("""
    s_cmp_ge_u32 s2, 56
    s_cbranch_scc1 L_k34_down
    s_cmp_ge_u32 s3, 2
    s_cselect_b32 s4, s6, s4
    s_cselect_b32 s5, s7, s5
""")
    srd(p, 8, 4, 448 * 3584)
    p("""
    s_and_b32 s40, s2, 7
    s_mul_i32 s40, s40, 7
    s_lshr_b32 s41, s2, 3
    s_add_u32 s40, s40, s41
    s_lshl_b32 s40, s40, 6
    s_and_b32 s41, s3, 1
    s_lshl_b32 s41, s41, 5
    s_add_u32 s40, s40, s41
    v_lshrrev_b32 v3, 1, v1
    v_mul_u32_u24 v3, 3584, v3
    v_and_b32 v4, 1, v1
    v_lshl_add_u32 v3, v4, 4, v3
    v_add_u32 v3, s40, v3
    s_mov_b32 s45, %d
    s_mul_i32 s46, s3, 14336
""" % (32 * 3584))
    wstage(p, 8, 3, 14, 46)
    p('s_waitcnt vmcnt(14)')
    p(';ST 0')
    keys_and_top8(p)
    p(';ST 1')
    p("""
    v_and_b32 v20, 0xffff, v17
    v_sub_u32 v20, 2047, v20
    v_mul_u32_u24 v22, 896, v20
    v_lshrrev_b32 v23, 4, v1
    v_lshl_add_u32 v22, v23, 4, v22
""")
    for i in range(14):
        p('buffer_load_dwordx4 %s, v22, s[16:19], 0 offen offset:%d' % (vr(32 + 4 * i, 4), 64 * i))
    p("""
    v_lshrrev_b32 v28, 4, v1            ; kq
    v_lshlrev_b32 v28, 3, v28           ; 8 kq
    v_bfe_u32 v29, v1, 2, 2             ; r
    v_add_u32 v28, v28, v29
    v_lshlrev_b32 v28, 5, v28           ; row*32
    v_and_b32 v29, 3, v1
    v_lshl_add_u32 v28, v29, 3, v28
    v_add_u32 v28, s46, v28
    s_waitcnt vmcnt(14)
""")
    tr_frags(p, 28, 96, 14)
    p('s_waitcnt vmcnt(0) lgkmcnt(0)')
    p(';ST 2')
    for i in range(14):
        c = '0' if i == 0 else 'v[160:163]'
        p('v_mfma_f32_16x16x32_bf16 v[160:163], %s, %s, %s' % (vr(32 + 4 * i, 4), vr(96 + 4 * i, 4), c))
    p('s_nop 7')
    p("""
    v_cvt_pk_bf16_f32 v164, v160, v161
    v_cvt_pk_bf16_f32 v165, v162, v163
    v_lshlrev_b32 v160, 16, v164
    v_and_b32 v161, 0xffff0000, v164
    v_lshlrev_b32 v162, 16, v165
    v_and_b32 v163, 0xffff0000, v165
    s_and_b32 s41, s3, 1
    s_lshl_b32 s41, s41, 10
    v_lshlrev_b32 v30, 4, v1
    v_add_u32 v30, s41, v30
    v_add_u32 v30, %d, v30
    s_cmp_ge_u32 s3, 2
    s_cbranch_scc0 L_k34_gate
    ds_write_b128 v30, v[160:163]
    s_waitcnt lgkmcnt(0)
    s_barrier
    s_barrier
    s_branch L_st_end_k34
L_k34_gate:
""" % (TOPK_LDS + 512))
    for r in range(4): p('v_mul_f32 v%d, 0xbfb8aa3b, v%d' % (166 + r, 160 + r))
    for r in range(4): p('v_exp_f32 v%d, v%d' % (166 + r, 166 + r))
    for r in range(4): p('v_add_f32 v%d, 1.0, v%d' % (166 + r, 166 + r))
    for r in range(4): p('v_rcp_f32 v%d, v%d' % (166 + r, 166 + r))
    p('s_nop 0')
    for r in range(4): p('v_mul_f32 v%d, v%d, v%d' % (160 + r, 160 + r, 166 + r))
    p("""
    v_cvt_pk_bf16_f32 v164, v160, v161
    v_cvt_pk_bf16_f32 v165, v162, v163
    v_lshlrev_b32 v160, 16, v164
    v_and_b32 v161, 0xffff0000, v164
    v_lshlrev_b32 v162, 16, v165
    v_and_b32 v163, 0xffff0000, v165
    s_waitcnt lgkmcnt(0)
    s_barrier
    ds_read_b128 v[164:167], v30
    s_waitcnt lgkmcnt(0)
""")
    for r in range(4): p('v_mul_f32 v%d, v%d, v%d' % (160 + r, 160 + r, 164 + r))
    for r in range(4): p('v_cvt_pk_bf16_f32 v%d, v%d, 0' % (160 + r, 160 + r))
    p('s_nop 1')
    for r in range(4): p('v_mov_b32_dpp v%d, v%d quad_perm:[1,0,3,2] row_mask:0xf bank_mask:0xf' % (164 + r, 160 + r))
    for r in range(4): p('v_lshl_or_b32 v%d, v%d, 16, v%d' % (160 + r, 164 + r, 160 + r))
    p("""
    v_lshrrev_b32 v23, 4, v1
    v_mul_u32_u24 v24, %d, v23          ; 4 rows * 3584 B
    v_and_b32 v25, 15, v1
    v_lshl_add_u32 v24, v25, 1, v24
    v_add_u32 v24, s40, v24
    v_mov_b32 v27, 0x40000000
    v_and_b32 v25, 0x21, v1             ; lanes >= 32 or odd lanes do not store
    v_cmp_eq_u32 vcc, 0, v25
    s_mov_b32 s41, 7168
    s_nop 0
    v_cndmask_b32 v24, v27, v24, vcc
    buffer_store_dword v160, v24, s[20:23], 0 offen sc1
    buffer_store_dword v161, v24, s[20:23], 0 offen offset:3584 sc1
    buffer_store_dword v162, v24, s[20:23], s41 offen sc1
    buffer_store_dword v163, v24, s[20:23], s41 offen offset:3584 sc1
    s_waitcnt vmcnt(0)
    s_barrier
    s_cmp_lg_u32 s3, 0
    s_cbranch_scc1 L_st_end_k34
    ;FLAGSIG
    s_branch L_st_end_k34
""" % (4 * 3584))
    idx = [k for k, i in enumerate(p.ins) if i.text.startswith(';FLAGSIG')][0]
    sig = """
    v_mov_b32 v24, 0
    v_mov_b32 v25, 1
    v_cmp_eq_u32 vcc, 0, v1
    s_and_saveexec_b64 s[42:43], vcc
    buffer_atomic_add v25, v24, s[56:59], 0 offen sc0 sc1
    s_waitcnt vmcnt(0)
    v_readfirstlane_b32 s41, v25
    s_cmp_eq_u32 s41, 55
    s_cbranch_scc0 L_k34_notlast
    v_mov_b32 v25, 1
    buffer_store_dword v25, v24, s[56:59], 0 offen offset:128 sc1
L_k34_notlast:
    s_mov_b64 exec, s[42:43]
"""
    t = Prog(); t(sig)
    p.ins[idx:idx + 1] = t.ins
    p('L_k34_down:')
    p('s_sub_u32 s39, s2, 56')
    p('s_mul_i32 s40, s3, %d' % (448 * 896))
    p('s_add_u32 s48, s48, s40'); p('s_addc_u32 s49, s49, 0')
    srd(p, 8, 48, 448 * 896)
    srd(p, 60, 24, 10752)
    srd(p, 28, 52, 2048 * 896)
    p("""
    s_and_b32 s47, s39, 7
    s_lshr_b32 s41, s39, 3
    s_lshl_b32 s42, s47, 2
    s_mul_i32 s43, s47, 3
    s_add_u32 s43, s43, 4
    s_cmp_lt_u32 s47, 4
    s_cselect_b32 s47, s42, s43
    s_add_u32 s47, s47, s41           ; column block
    s_lshl_b32 s40, s47, 5              ; column byte offset
    v_lshrrev_b32 v3, 1, v1
    v_mul_u32_u24 v3, 896, v3
    v_and_b32 v4, 1, v1
    v_lshl_add_u32 v3, v4, 4, v3
    v_add_u32 v3, s40, v3
    s_mov_b32 s45, %d
    s_mul_i32 s46, s3, 14336
    v_and_b32 v25, 15, v1
    v_lshlrev_b32 v26, 2, v25
    s_lshl_b32 s41, s47, 6
    v_add_u32 v26, s41, v26
    s_mov_b32 s42, 8960
    buffer_load_dword v31, v26, s[60:63], s42 offen                ; gb[col]
""" % (32 * 896))
    wstage(p, 8, 3, 14, 46)
    p('s_waitcnt vmcnt(15)')
    keys_and_top8(p)
    p(';ST 0')
    p("""
    v_lshrrev_b32 v23, 4, v1
    v_and_b32 v23, 1, v23
    v_lshlrev_b32 v24, 4, v23
""")
    for r in range(4):
        p('v_add_u32 v21, %d, v24' % (4 * r))
        p('ds_bpermute_b32 v%d, v21, v17' % (8 + r))
    p('s_waitcnt lgkmcnt(0)')
    for r in range(4):
        k = 8 + r
        p('v_and_b32 v%d, 0xffff, v%d' % (17 + r if r else 18, k) if False else 'v_and_b32 v%d, 0xffff, v%d' % (100 + r, k))
        p('v_sub_u32 v%d, 2047, v%d' % (100 + r, 100 + r))
        p('v_mul_u32_u24 v%d, 896, v%d' % (104 + r, 100 + r))
    p('v_lshlrev_b32 v25, 1, v25')
    p('v_add_u32 v25, s40, v25')
    for r in range(4):
        p('v_add_u32 v%d, v%d, v25' % (104 + r, 104 + r))
    for r in range(4):
        p('buffer_load_ushort v%d, v%d, s[28:31], 0 offen' % (108 + r, 104 + r))
    for r in range(4):
        k = 8 + r
        p('v_and_b32 v%d, 0xffff0000, v%d' % (k, k))
        p('v_ashrrev_i32 v16, 31, v%d' % k)
        p('v_not_b32 v16, v16')
        p('v_or_b32 v16, 0x80000000, v16')
        p('v_xor_b32 v%d, v%d, v16' % (k, k))
        p('v_and_b32 v%d, 0xffff0000, v%d' % (k, k))
        p('v_mul_f32 v%d, 0xbfb8aa3b, v%d' % (12 + r, k))
    for r in range(4): p('v_exp_f32 v%d, v%d' % (12 + r, 12 + r))
    p('s_nop 0')
    for r in range(4): p('v_add_f32 v%d, 1.0, v%d' % (12 + r, 12 + r))
    for r in range(4): p('v_rcp_f32 v%d, v%d' % (12 + r, 12 + r))
    p('s_nop 0')
    for r in range(4): p('v_cvt_pk_bf16_f32 v%d, v%d, 0' % (12 + r, 12 + r))
    for r in range(4): p('v_lshlrev_b32 v%d, 16, v%d' % (12 + r, 12 + r))
    p("""
    v_lshrrev_b32 v28, 4, v1
    v_lshlrev_b32 v28, 3, v28
    v_bfe_u32 v29, v1, 2, 2
    v_add_u32 v28, v28, v29
    v_lshlrev_b32 v28, 5, v28
    v_and_b32 v29, 3, v1
    v_lshl_add_u32 v28, v29, 3, v28
    v_add_u32 v28, s46, v28
    v_and_b32 v4, 7, v1
    v_mul_u32_u24 v22, 3584, v4
    v_lshrrev_b32 v23, 4, v1
    v_lshl_add_u32 v22, v23, 4, v22
    s_mul_i32 s41, s3, 896
    v_add_u32 v22, s41, v22
    s_waitcnt vmcnt(4)
""")
    tr_frags(p, 28, 112, 14)
    p(';ST 1')
    p("""
    s_cmp_lg_u32 s3, 0
    s_cbranch_scc1 L_k34_polled
    v_mov_b32 v21, 0
L_k34_poll:
    buffer_load_dword v23, v21, s[56:59], 0 offen offset:128 sc1
    s_waitcnt vmcnt(0)
    v_readfirstlane_b32 s41, v23
    s_cmp_eq_u32 s41, 1
    s_cbranch_scc1 L_k34_polled
    s_sleep 4
    s_branch L_k34_poll
L_k34_polled:
    s_barrier
""")
    p(';ST 2')
    for i in range(14):
        p('buffer_load_dwordx4 %s, v22, s[20:23], 0 offen offset:%d sc1' % (vr(32 + 4 * i, 4), 64 * i))
    p('s_waitcnt lgkmcnt(0)')
    for i in range(14):
        if i % 2 == 0: p('s_waitcnt vmcnt(%d)' % (12 - i))
        acc = 'v[172:175]' if i % 2 == 0 else 'v[176:179]'
        c = '0' if i < 2 else acc
        p('v_mfma_f32_16x16x32_bf16 %s, %s, %s, %s' % (acc, vr(32 + 4 * i, 4), vr(112 + 4 * i, 4), c))
    p('s_nop 7')
    for r in range(4): p('v_add_f32 v%d, v%d, v%d' % (172 + r, 172 + r, 176 + r))
    p('s_nop 7')
    p("""
    v_lshlrev_b32 v30, 4, v1
    s_lshl_b32 s41, s3, 10
    v_add_u32 v30, s41, v30
    ds_write_b128 v30, v[172:175] offset:%d
    s_waitcnt lgkmcnt(0)
    s_barrier
    s_cmp_lg_u32 s3, 0
    s_cbranch_scc1 L_st_end_k34
    ds_read_b128 v[176:179], v30 offset:%d
    ds_read_b128 v[180:183], v30 offset:%d
    ds_read_b128 v[184:187], v30 offset:%d
    s_waitcnt lgkmcnt(0)
""" % (TOPK_LDS + 1024, TOPK_LDS + 2048, TOPK_LDS + 3072, TOPK_LDS + 4096))
    Y = 172
    for r in range(4):
        p('v_add_f32 v%d, v%d, v%d' % (Y + r, Y + r, 176 + r))
        p('v_add_f32 v%d, v%d, v%d' % (180 + r, 180 + r, 184 + r))
    for r in range(4):
        p('v_add_f32 v%d, v%d, v%d' % (Y + r, Y + r, 180 + r))
    def rnd(a):
        p('v_cvt_pk_bf16_f32 v188, v%d, v%d' % (a, a + 1))
        p('v_cvt_pk_bf16_f32 v189, v%d, v%d' % (a + 2, a + 3))
        p('v_lshlrev_b32 v%d, 16, v188' % a); p('v_and_b32 v%d, 0xffff0000, v188' % (a + 1))
        p('v_lshlrev_b32 v%d, 16, v189' % (a + 2)); p('v_and_b32 v%d, 0xffff0000, v189' % (a + 3))
    rnd(Y)
    for r in range(4): p('v_mul_f32 v%d, v%d, v%d' % (Y + r, Y + r, 12 + r))
    rnd(Y)
    for r in range(4):
        p('v_lshlrev_b32 v%d, 16, v%d' % (108 + r, 108 + r))
        p('v_fma_f32 v%d, v%d, v31, v%d' % (Y + r, Y + r, 108 + r))
    p('v_cvt_pk_bf16_f32 v188, v%d, v%d' % (Y, Y + 1))
    p('v_cvt_pk_bf16_f32 v189, v%d, v%d' % (Y + 2, Y + 3))
    p("""
    v_mov_b32 v27, 0x40000000
    v_cmp_gt_u32 vcc, 32, v1
    s_nop 1
""")
    for r in range(4): p('v_cndmask_b32 v%d, v27, v%d, vcc' % (104 + r, 104 + r))
    p("""
    buffer_store_short v188, v104, s[28:31], 0 offen
    buffer_store_short_d16_hi v188, v105, s[28:31], 0 offen
    buffer_store_short v189, v106, s[28:31], 0 offen
    buffer_store_short_d16_hi v189, v107, s[28:31], 0 offen
L_st_end_k34:
L_end_k34:
    s_endpgm
""")
    return p


K2_OUT_FLAGS = ''
def k2_math(p, P0, XR, GA, S2, A2, GB, WR, ACC, X1, PK, VOUT, VMASK, VLANE_, VBIG, SEL, srd_h2, srd_out, srd_r, s_row0, T):
    for rr in range(2):
        for j in range(8):
            p('v_mul_f32 v%d, v%d, v%d' % (ACC[rr] + j, ACC[rr] + j, GA + j))
        for j in range(8):
            p('v_dot2_f32_bf16 v%d, v%d, v%d, v%d' % (ACC[rr] + j, XR[rr] + j // 2, SEL + j % 2, ACC[rr] + j))
    p('s_nop 2')
    for rr in range(2):
        for j in range(0, 8, 2):
            p('v_cvt_pk_bf16_f32 v%d, v%d, v%d' % (PK + rr * 4 + j // 2, ACC[rr] + j, ACC[rr] + j + 1))
    for rr in range(2):
        for j in range(8):
            if j % 2 == 0: p('v_lshlrev_b32 v%d, 16, v%d' % (X1[rr] + j, PK + rr * 4 + j // 2))
            else: p('v_and_b32 v%d, 0xffff0000, v%d' % (X1[rr] + j, PK + rr * 4 + j // 2))
    SUM = [T, T + 1]
    for rr in range(2):
        p('v_add_f32 v%d, v%d, v%d' % (SUM[rr], X1[rr], X1[rr] + 1))
        for j in range(2, 8): p('v_add_f32 v%d, v%d, v%d' % (SUM[rr], SUM[rr], X1[rr] + j))
    wave_reduce_multi(p, SUM, [T + 2, T + 3])
    XC = ACC
    for rr in range(2):
        p('v_mul_f32 v%d, 0xbb124925, v%d' % (SUM[rr], SUM[rr]))
    for rr in range(2):
        for j in range(8):
            p('v_add_f32 v%d, v%d, v%d' % (XC[rr] + j, X1[rr] + j, SUM[rr]))
    VAR = [T + 2, T + 3]
    for rr in range(2):
        p('v_mul_f32 v%d, v%d, v%d' % (VAR[rr], XC[rr], XC[rr]))
        for j in range(1, 8): p('v_fmac_f32 v%d, v%d, v%d' % (VAR[rr], XC[rr] + j, XC[rr] + j))
    for rr in range(2):
        p('v_mul_f32 v%d, v%d, v%d' % (VAR[rr], VAR[rr], VMASK))
    wave_reduce_multi(p, VAR, [T + 4, T + 5])
    for rr in range(2):
        p('v_mov_b32 v%d, 0x3727c5ac' % (T + 4 + rr))
        p('v_fmac_f32 v%d, 0x3b124925, v%d' % (T + 4 + rr, VAR[rr]))
    for rr in range(2):
        p('v_rsq_f32 v%d, v%d' % (VAR[rr], T + 4 + rr))
    p('s_nop 0')
    H = [PK, PK + 4]
    for rr in range(2):
        for j in range(8):
            p('v_mul_f32 v%d, v%d, v%d' % (XC[rr] + j, XC[rr] + j, VAR[rr]))
        for j in range(8):
            p('v_fma_f32 v%d, v%d, v%d, v%d' % (XC[rr] + j, XC[rr] + j, A2 + j, S2 + j))
        for j in range(0, 8, 2):
            p('v_cvt_pk_bf16_f32 v%d, v%d, v%d' % (H[rr] + j // 2, XC[rr] + j, XC[rr] + j + 1))
    for rr in range(2):
        p('buffer_store_dwordx4 %s, v%d, s[%d:%d], 0 offen offset:%d%s' % (vr(H[rr], 4), VOUT, srd_h2, srd_h2 + 3, rr * 896, K2_OUT_FLAGS))
    RR = [T + 4, T + 5]
    for rr in range(2):
        p('v_mov_b32 v%d, 0' % RR[rr])
    for j in range(4):
        for rr in range(2):
            p('v_dot2_f32_bf16 v%d, v%d, v%d, v%d' % (RR[rr], H[rr] + j, WR + j, RR[rr]))
    OUTR = [P0[0], P0[0] + 4]
    for rr in range(2):
        for j in range(8):
            if j % 2 == 0: p('v_lshlrev_b32 v%d, 16, v%d' % (XC[rr] + j, H[rr] + j // 2))
            else: p('v_and_b32 v%d, 0xffff0000, v%d' % (XC[rr] + j, H[rr] + j // 2))
        for j in range(8):
            p('v_fma_f32 v%d, v%d, v%d, v%d' % (XC[rr] + j, XC[rr] + j, GB + j, X1[rr] + j))
        for j in range(0, 8, 2):
            p('v_cvt_pk_bf16_f32 v%d, v%d, v%d' % (OUTR[rr] + j // 2, XC[rr] + j, XC[rr] + j + 1))
        p('buffer_store_dwordx4 %s, v%d, s[%d:%d], 0 offen offset:%d%s' % (vr(OUTR[rr], 4), VOUT, srd_out, srd_out + 3, rr * 896, K2_OUT_FLAGS))
    wave_reduce_multi(p, RR, [T, T + 1])
    p("""
    v_cvt_pk_bf16_f32 v%d, v%d, 0
    v_cvt_pk_bf16_f32 v%d, v%d, 0
    v_cmp_eq_u32 vcc, 1, v%d
    s_nop 1
    v_cndmask_b32 v%d, v%d, v%d, vcc
    v_lshlrev_b32 v%d, 16, v%d            ; r rounded to bf16 (row0 in lane 0, row1 in lane 1)
    v_ashrrev_i32 v%d, 31, v%d
    v_or_b32 v%d, 0x80000000, v%d
    v_xor_b32 v%d, v%d, v%d               ; order-preserving integer image
    v_and_b32 v%d, 0xffff0000, v%d
    v_add_u32 v%d, s%d, v%d               ; row index
    v_sub_u32 v%d, 2047, v%d
    v_or_b32 v%d, v%d, v%d                ; key = image | (2047 - row): unique, ties go to the lower row
    v_lshlrev_b32 v%d, 2, v%d
    v_cmp_gt_u32 vcc, 2, v%d
    s_nop 1
    v_cndmask_b32 v%d, v%d, v%d, vcc
    buffer_store_dword v%d, v%d, s[%d:%d], 0 offen%s
""" % (RR[0], RR[0], RR[1], RR[1], VLANE_, RR[0], RR[0], RR[1], RR[0], RR[0],
       RR[1], RR[0], RR[1], RR[1], RR[0], RR[0], RR[1], RR[0], RR[0],
       T, s_row0, VLANE_, T + 1, T, RR[0], RR[0], T + 1, T, T, VLANE_, T, VBIG, T, RR[0], T, srd_r, srd_r + 3, K2_OUT_FLAGS))
```

```python
from asmlib import *
import gen_attn2 as A
from gen_attn2 import (vr, ar, BLK, HALF, KBUF, VBASE, SREG, PBUF, NEGM, FR, VK, VV, VOFF, LREG, TMP, VLANE,
                       S_K0, S_K1, S_V0, S_V1, S_DST, S_THR, S_RET, S_CNT, S_W, S_96, S, frag, kread, vread, qk_list, exps, dma,
                       max8, lreg)

WS_MOD = 0
WS_R = 0x4000
WS_IDX = 0x8000
WS_ACT = 0x10000
WS_H2 = 0x100000
WS_PART = 0x400000
WS_CNT = 0x20000
WS_STAMP = 0xa000000

H_OFF = 0
MV_OFF = 57344
QSLOT = [98304, 131072, 65536, 32768]
QX = 67584
XR = 0
ST = 131072
KEYL = 68608
VEC = 59392
WO0 = 135168

S_G, S_QB, S_S, S_QH = 36, 37, 38, 39
S_X = 40
S_WQ = 44
S_WO = 48
S_SO = 52
S_T0, S_T1, S_T2, S_T3 = 60, 61, 62, 63
S_QD = 64
S_QD2 = 32
S_WST = 65
S_PART = 68
S_STAMP = 72

class VmTracker:
    def __init__(self): self.ops = []
    def add(self, tag): self.ops.append(tag)
    def wait(self, tag):
        idx = max(i for i, t in enumerate(self.ops) if t == tag)
        n = len(self.ops) - 1 - idx
        assert n <= 63
        return 's_waitcnt vmcnt(%d)' % n

STAMPS = {1: ['start', 'ln_done', 'qproj', 'qexch', 'attnpro', 'loop', 'oproj', 'end'],
          2: ['start', 'xwait', 'stats', 'modbar', 'hbar', 'ln_done', 'qproj', 'end'],
          4: ['start', 'p_w', 'p_bar', 'p_st', 'stats', 'poll_done', 'modbar', 'end'],
          5: ['start', 'oproj', 'stores', 'drain', 'grp', 'k2ld', 'k2m', 'end'],
          6: ['start', 'oproj', 'grp', 'k2ld', 'k2m', 'keys', 'x', 'end'],
          3: ['start', 'loop', 'e1bar', 'comb', 'e3bar', 'oproj', 'stores', 'end']}
def stamp(p, o, name):
    if o.stamps and name in STAMPS[o.stamps]:
        k = STAMPS[o.stamps].index(name)
        p('s_memrealtime s[%d:%d]' % (S_STAMP + 2 * k, S_STAMP + 2 * k + 1))
        if name in ('xwait', 'stats', 'modbar', 'hbar', 'e1bar', 'comb', 'e3bar', 'p_w', 'p_bar', 'p_st', 'poll_done'): p('s_waitcnt lgkmcnt(0)')

def xreduce(p, r, t, op='v_add_f32'):
    p('v_mov_b32 v%d, v%d' % (t, r))
    p('s_nop 1')
    p('v_permlane16_swap_b32 v%d, v%d' % (r, t))
    p('s_nop 1')
    p('%s v%d, v%d, v%d' % (op, r, r, t))
    p('v_mov_b32 v%d, v%d' % (t, r))
    p('s_nop 1')
    p('v_permlane32_swap_b32 v%d, v%d' % (r, t))
    p('s_nop 1')
    p('%s v%d, v%d, v%d' % (op, r, r, t))

def wq_dma(step, vm, VQ):
    out = []
    slot = QSLOT[step % 4]
    for jj in range(8):
        if jj % 4 == 0:
            out.append('s_add_u32 m0, s%d, %d' % (S_QD2, slot + jj * 1024))
        out.append(('buffer_load_dwordx4 v%d, s[%d:%d], s%d offen offset:%d lds' % (VQ[(jj >> 1) & 1], S_WQ, S_WQ + 3, S_SO + jj, (jj & 3) * 1024), 'wq%d' % step))
    return out

def emit_dma(p, lst, vm, nop=True):
    for s in lst:
        if isinstance(s, tuple):
            p(s[0]); vm.add(s[1])
        else:
            p(s)
            if nop and s.startswith('s_') and 'm0' in s: p('s_nop 0')

WS_MODP = 0x30000
WS_MODP2 = 0x38000

def mod_dot(o, p, NI, cunpack, wname):
    C0, W0, HI, ACC, TT = 168, 76, 132, 148, 156
    cunpack(C0)
    for i in range(NI): p('v_mul_f32 v%d, 0xbfb8aa3b, v%d' % (HI + i, C0 + i))
    for i in range(NI): p('v_exp_f32 v%d, v%d' % (HI + i, HI + i))
    p('s_nop 0')
    for i in range(NI): p('v_add_f32 v%d, 1.0, v%d' % (HI + i, HI + i))
    for i in range(NI): p('v_rcp_f32 v%d, v%d' % (HI + i, HI + i))
    p('s_nop 0')
    for i in range(NI): p('v_mul_f32 v%d, v%d, v%d' % (C0 + i, C0 + i, HI + i))
    for i in range(NI): p('v_cvt_pk_bf16_f32 v%d, v%d, 0' % (C0 + i, C0 + i))
    for i in range(NI): p('v_lshlrev_b32 v%d, 16, v%d' % (HI + i, C0 + i))
    for j in range(8): p('v_mov_b32 v%d, 0' % (ACC + j))
    wname()
    for i in range(NI):
        for j in range(8):
            w = W0 + 4 * i + j // 2
            sel = (C0 + i) if j % 2 == 0 else (HI + i)
            p('v_dot2_f32_bf16 v%d, v%d, v%d, v%d' % (ACC + j, w, sel, ACC + j))
    p('s_nop 2')
    regs = [ACC + j for j in range(8)]; temps = [TT + j for j in range(8)]
    for r in regs:
        p('v_add_f32_dpp v%d, v%d, v%d row_ror:8 row_mask:0xf bank_mask:0xf' % (r, r, r))
    for sw in ('v_permlane16_swap_b32', 'v_permlane32_swap_b32'):
        for r, t in zip(regs, temps): p('v_mov_b32 v%d, v%d' % (t, r))
        p('s_nop 1')
        for r, t in zip(regs, temps): p('%s v%d, v%d' % (sw, r, t))
        p('s_nop 1')
        for r, t in zip(regs, temps): p('v_add_f32 v%d, v%d, v%d' % (r, r, t))

def mod_wgsum(p, tag):
    B_ = MV_OFF + 4096
    p("""
    v_and_b32 v164, 7, v%d
    s_lshl_b32 s60, s%d, 8
    v_lshlrev_b32 v164, 5, v164
    v_add_u32 v164, s60, v164
    ds_write_b128 v164, v[148:151] offset:%d
    ds_write_b128 v164, v[152:155] offset:%d
    s_waitcnt lgkmcnt(0)
    s_barrier
    ;STAMP p_bar
    s_cmp_lg_u32 s%d, 0
    s_cbranch_scc1 L_prod_done_%s
    v_lshlrev_b32 v164, 2, v%d
    ds_read_b32 v165, v164 offset:%d
    ds_read_b32 v166, v164 offset:%d
    ds_read_b32 v167, v164 offset:%d
    ds_read_b32 v168, v164 offset:%d
    s_waitcnt lgkmcnt(0)
    v_add_f32 v165, v165, v166
    v_add_f32 v167, v167, v168
    v_add_f32 v165, v165, v167
""" % (VLANE, S_W, B_, B_ + 16, S_W, tag, VLANE, B_, B_ + 256, B_ + 512, B_ + 768))

def producer(o, p, xloads):
    p("""
    s_cmp_ge_u32 s2, 56
    s_cbranch_scc1 L_prod_late
    s_mul_i32 s57, s2, 74
    s_lshr_b32 s57, s57, 10            ; ks = j / 14
    s_mul_i32 s58, s57, 14
    s_sub_u32 s58, s2, s58             ; cb = j %% 14
    s_mul_i32 s56, s57, 3584
    s_lshl_b32 s59, s58, 8
    s_add_u32 s56, s56, s59
    s_add_u32 s56, s56, %d             ; partial store offset
    s_branch L_prod_map
L_prod_late:
    s_sub_u32 s59, s2, 56
    s_mul_i32 s57, s59, 147
    s_lshr_b32 s57, s57, 12            ; ks = j' / 28
    s_mul_i32 s58, s57, 28
    s_sub_u32 s58, s59, s58            ; cb' = j' %% 28
    s_mul_i32 s56, s57, 7168
    s_lshl_b32 s59, s58, 8
    s_add_u32 s56, s56, s59
    s_add_u32 s56, s56, %d
    s_add_u32 s58, s58, 14
L_prod_map:
    s_mul_i32 s62, s57, 112
    s_mul_i32 s63, s%d, 28
    s_add_u32 s62, s62, s63            ; first row of this wave
    v_and_b32 v206, 7, v%d             ; cc
    v_lshrrev_b32 v207, 3, v%d         ; kg
    v_add_u32 v209, s62, v207          ; row (i = 0)
    v_mul_u32_u24 v208, 5376, v209
    v_lshl_add_u32 v208, v206, 4, v208
    s_lshl_b32 s63, s58, 7
    v_add_u32 v208, s63, v208
    v_lshlrev_b32 v209, 1, v209
    v_mov_b32 v210, 0x40000000
    v_cmp_gt_u32 vcc, 4, v207          ; i = 3 valid only for kg < 4
    s_nop 1
    v_cndmask_b32 v211, v210, v209, vcc
    v_cndmask_b32 v212, v210, v208, vcc
    s_mov_b32 s63, %d
""" % (WS_MODP, WS_MODP2, S_W, VLANE, VLANE, 8 * 5376))
    for i in range(3): p('buffer_load_ushort v%d, v209, s[68:71], 0 offen offset:%d' % (60 + i, 16 * i))
    p('buffer_load_ushort v63, v211, s[68:71], 0 offen offset:48')
    for i in range(3):
        p('buffer_load_dwordx4 %s, v208, s[64:67], 0 offen' % vr(76 + 4 * i, 4))
        p('v_add_u32 v208, s63, v208')
        p('v_add_u32 v212, s63, v212')
    p('buffer_load_dwordx4 v[88:91], v212, s[64:67], 0 offen')
    xloads()
    p('s_waitcnt vmcnt(18)')
    def cun(C0):
        for i in range(4): p('v_lshlrev_b32 v%d, 16, v%d' % (C0 + i, 60 + i))
    def wwait():
        p('s_waitcnt vmcnt(14)')
        stamp(p, o, 'p_w')
    mod_dot(o, p, 4, cun, wwait)
    mod_wgsum(p, 'u')
    p("""
    v_add_u32 v164, s56, v164
    buffer_store_dword v165, v164, s[24:27], 0 offen sc1
    s_cmp_ge_u32 s2, 56
    s_cbranch_scc1 L_prod_done_u       ; late producers signal after the modulation barrier
    ;ZEROCNT
    s_waitcnt vmcnt(0)
    ;STAMP p_st
    v_mov_b32 v165, 1
    v_mov_b32 v164, 0
    v_cmp_eq_u32 vcc, 0, v%d
    s_and_saveexec_b64 s[62:63], vcc
    buffer_atomic_add v165, v164, s[88:91], 0 offen sc0 sc1
    s_waitcnt vmcnt(0)
    v_readfirstlane_b32 s60, v165
    s_cmp_eq_u32 s60, 55
    s_cbranch_scc0 L_prod_notlast
    v_mov_b32 v165, 1
    buffer_store_dword v165, v164, s[88:91], 0 offen offset:128 sc1
L_prod_notlast:
    s_mov_b64 exec, s[62:63]
L_prod_done_u:
""" % VLANE)

def prologue(o):
    p = Prog()
    L = VLANE
    vm = VmTracker()
    p("""
    s_cmp_ge_u32 s2, 256
    s_cbranch_scc1 L_end_k1
    s_load_dwordx2 s[40:41], s[0:1], 0
    s_load_dwordx4 s[4:7], s[0:1], 8
    s_load_dwordx4 s[44:47], s[0:1], 24
    s_load_dwordx4 s[64:67], s[0:1], 80
    s_load_dwordx4 s[88:91], s[0:1], 104
    s_load_dwordx4 s[96:99], s[0:1], 56
    s_load_dwordx2 s[100:101], s[0:1], 72
    v_lshrrev_b32 v1, 6, v0
    v_and_b32 v%d, 63, v0
    s_nop 0
    v_readfirstlane_b32 s%d, v1
    ;MAP
    s_lshr_b32 s%d, s%d, 1        ; s (key half)
    s_and_b32 s%d, s%d, 1         ; qh
""" % (L, S_W, S_S, S_W, S_QH, S_W))
    idx = [k for k, i in enumerate(p.ins) if i.text.startswith(';MAP')][0]
    if getattr(o, 'scramble', 0):
        p.ins[idx:idx + 1] = [I('s_lshr_b32 s%d, s2, 5' % S_G), I('s_and_b32 s%d, s2, 31' % S_QB)]
    else:
        p.ins[idx:idx + 1] = [I('s_and_b32 s%d, s2, 7' % S_G), I('s_lshr_b32 s%d, s2, 3' % S_QB)]
    if o.stamps:
        p('s_memrealtime s[%d:%d]' % (S_STAMP, S_STAMP + 1))
    p("""
    v_and_b32 v200, 15, v%d           ; n
    v_lshrrev_b32 v201, 4, v%d        ; kq
    s_lshl_b32 s60, s%d, 4
    v_add_u32 v202, s60, v200
    v_mul_u32_u24 v202, 896, v202
    v_lshl_add_u32 v202, v201, 4, v202
    s_mul_i32 s60, s%d, 57344
    s_waitcnt lgkmcnt(0)
    s_mov_b32 s24, s90
    s_mov_b32 s25, s91
    s_mov_b32 s26, 0x10000000
    s_mov_b32 s27, 0x20000
    s_mov_b32 s90, 256
    s_mov_b32 s91, 0x20000
    s_add_u32 s40, s40, s60
    s_addc_u32 s41, s41, 0
    s_mov_b32 s42, 57344
    s_mov_b32 s43, 0x20000
""" % (L, L, S_W, S_QB))
    def xl():
        for ks in range(14):
            p('buffer_load_dwordx4 %s, v202, s[40:43], 0 offen offset:%d' % (vr(4 * ks, 4), ks * 64))
    p("""
    s_cmp_ge_u32 s2, 168
    s_cbranch_scc1 L_noprod_a
    s_mov_b32 s68, s64
    s_mov_b32 s69, s65
    s_mov_b32 s70, 896
    s_mov_b32 s71, 0x20000
    s_mov_b32 s64, s66
    s_mov_b32 s65, s67
    s_mov_b32 s66, %d
    s_mov_b32 s67, 0x20000
""" % (448 * 5376))
    producer(o, p, xl)
    p('s_branch L_noprod_b')
    p('L_noprod_a:')
    for ks in range(14):
        p('buffer_load_dwordx4 %s, v202, s[40:43], 0 offen offset:%d' % (vr(4 * ks, 4), ks * 64)); vm.add('x')
    p('L_noprod_b:')
    if not o.one: p("""
    s_cmp_lg_u32 s2, 200
    s_cbranch_scc1 L_noactfill
    v_lshlrev_b32 v206, 4, v%d
    s_lshl_b32 s60, s%d, 10
    s_add_u32 s60, s60, %d
    v_add_u32 v206, s60, v206
    v_mov_b32 v208, -1
    v_mov_b32 v209, -1
    v_mov_b32 v210, -1
    v_mov_b32 v211, -1
""" % (L, S_W, WS_ACT))
    for i_ in range(7 if not o.one else 0):
        p('s_mov_b32 s60, %d' % (i_ * 4096))
        p('buffer_store_dwordx4 v[208:211], v206, s[24:27], s60 offen')
    if not o.one: p('L_noactfill:')
    p("""
    s_mov_b32 s48, s46
    s_mov_b32 s49, s47
    s_mul_i32 s60, s%d, 458752
    s_add_u32 s48, s48, s60
    s_addc_u32 s49, s49, 0
    s_mov_b32 s50, 458752
    s_mov_b32 s51, 0x20000
    s_lshl_b32 s60, s%d, 10
    s_add_u32 s44, s44, s60
    s_addc_u32 s45, s45, 0
    s_sub_u32 s46, 3670016, s60
    s_mov_b32 s47, 0x20000
""" % (S_G, S_G))
    if o.pf:
        D = o.pfd
        p("""
    s_lshl_b32 s60, s%d, 20
    s_cmp_lt_u32 s%d, 16
    s_cselect_b32 s92, s4, s6
    s_cselect_b32 s93, s5, s7
    s_add_u32 s92, s92, s60
    s_addc_u32 s93, s93, 0
    s_mov_b32 s94, 0x100000
    s_mov_b32 s95, 0x20000
    s_and_b32 s60, s%d, 15
    s_lshl_b32 s60, s60, 4
    s_lshl_b32 s61, s%d, 2
    s_add_u32 s60, s60, s61            ; line0 = (qb&15)*16 + w*4
    v_and_b32 v206, 3, v%d
    v_add_u32 v206, s60, v206
    v_lshlrev_b32 v206, 7, v206        ; line*128
    v_lshrrev_b32 v207, 2, v%d         ; tile = lane>>2
    v_lshl_add_u32 v207, v207, 15, v206
    v_mov_b32 v208, 0x40000000
    v_cmp_gt_u32 vcc, %d, v%d
    s_nop 1
    v_cndmask_b32 v207, v208, v207, vcc
    v_cmp_gt_u32 vcc, 4, v%d
    v_add_u32 v206, %d, v206
    s_nop 0
    v_cndmask_b32 v%d, v208, v206, vcc
""" % (S_G, S_QB, S_QB, S_W, L, L, 4 * D, L, L, D * 32768, A.VPFA))
        p("""
    s_mul_i32 s60, s%d, 112
    s_mul_i32 s61, s%d, 28
    s_add_u32 s60, s60, s61
    v_add_u32 v206, s60, v%d
    v_lshrrev_b32 v209, 3, v206
    v_lshlrev_b32 v209, 13, v209
    v_and_b32 v210, 7, v206
    v_lshl_add_u32 v209, v210, 7, v209
    v_lshlrev_b32 v206, 7, v206        ; wo prefetch offset = L*128
    v_cmp_gt_u32 vcc, 28, v%d
    s_nop 1
    v_cndmask_b32 v209, v208, v209, vcc
    v_cndmask_b32 v242, v208, v206, vcc
    v_mov_b32 v240, v209
    v_mov_b32 v241, v207
""" % (S_QB, S_W, L, L))
        p("""
    s_mul_i32 s60, s2, 49
    s_mul_i32 s61, s%d, 13
    s_add_u32 s60, s60, s61
    v_add_u32 v206, s60, v%d
    v_min_u32 v206, 12543, v206
    v_lshlrev_b32 v243, 7, v206
""" % (S_W, L))
    VQ = (204, 205)
    p("""
    v_lshlrev_b32 v206, 1, v201       ; 2*rr
    v_xor_b32 v206, v206, v200        ; slot ^ 2rr
    v_lshlrev_b32 v206, 4, v206
    v_lshl_add_u32 v206, v201, 13, v206
    s_lshl_b32 s60, s%d, 8
    v_add_u32 v204, s60, v206
    v_xor_b32 v205, 0x80, v204
    s_lshl_b32 s%d, s%d, 13
""" % (S_W, S_QD2, S_W))
    for jj in range(8):
        p('s_mov_b32 s%d, %d' % (S_SO + jj, jj * 32768 - (jj & 3) * 1024))
    p("""
    s_lshl_b32 s60, s%d, 20
    s_add_u32 s8, s4, s60
    s_addc_u32 s9, s5, 0
    s_sub_u32 s8, s8, 96
    s_subb_u32 s9, s9, 0
    s_mov_b32 s10, %d
    s_mov_b32 s11, 0x20000
    s_add_u32 s12, s8, 4096
    s_addc_u32 s13, s9, 0
    s_mov_b32 s14, %d
    s_mov_b32 s15, 0x20000
    s_add_u32 s16, s6, s60
    s_addc_u32 s17, s7, 0
    s_sub_u32 s16, s16, 96
    s_subb_u32 s17, s17, 0
    s_mov_b32 s18, %d
    s_mov_b32 s19, 0x20000
    s_add_u32 s20, s16, 4096
    s_addc_u32 s21, s17, 0
    s_mov_b32 s22, %d
    s_mov_b32 s23, 0x20000
    s_mov_b32 s%d, 96
    s_mul_i32 s61, s%d, %d
    s_mul_i32 s62, s%d, %d
    s_add_u32 s%d, s61, s62       ; LDS DMA dest base for K/V
    s_mov_b32 s%d, 0x%x
""" % (S_G, (1 << 20) + 96, (1 << 20) + 96 - 4096, (1 << 20) + 96, (1 << 20) + 96 - 4096, S_96, S_S, HALF, S_QH, 8 * BLK, S_DST, S_THR, o.thr))
    XC = 56
    ONE = 210; SELLO = 211; SELHI = 212; ACC = 214
    p('v_mov_b32 v%d, 0x3f803f80' % ONE)
    p('v_mov_b32 v%d, 0x00003f80' % SELLO)
    p('v_mov_b32 v%d, 0x3f800000' % SELHI)
    for i in range(4): p('v_mov_b32 v%d, 0' % (ACC + i))
    p(vm.wait('x'))
    stamp(p, o, 'xwait')
    if o.pf:
        p('buffer_load_dword v253, v240, s[44:47], 0 offen'); vm.add('pf')
    dmas = []
    for st in range(3):
        dmas += wq_dma(st, vm, VQ)
        dmas += ['v_add_u32 v204, 0x40000, v204', 'v_add_u32 v205, 0x40000, v205']
    valu = []
    for i in range(56):
        valu.append('v_dot2_f32_bf16 v%d, v%d, v%d, v%d' % (ACC + i % 4, i, ONE, ACC + i % 4))
    r = Prog()
    r('s_nop 2')
    r('v_add_f32 v%d, v%d, v%d' % (ACC, ACC, ACC + 1))
    r('v_add_f32 v%d, v%d, v%d' % (ACC + 2, ACC + 2, ACC + 3))
    r('v_add_f32 v%d, v%d, v%d' % (ACC, ACC, ACC + 2))
    xreduce(r, ACC, ACC + 1)
    r('v_mul_f32 v%d, 0x%x, v%d' % (ACC, 0xbb124925, ACC))
    valu.append([i.text for i in r.ins])
    for i in range(56):
        valu.append('v_dot2_f32_bf16 v%d, v%d, v%d, v%d' % (XC + 2 * i, i, SELLO, ACC))
        valu.append('v_dot2_f32_bf16 v%d, v%d, v%d, v%d' % (XC + 2 * i + 1, i, SELHI, ACC))
    V2 = 216
    valu.append(['v_mov_b32 v%d, 0' % (V2 + i) for i in range(4)])
    for i in range(56):
        a_ = V2 + 2 * (i % 2)
        valu.append('v_pk_fma_f32 %s, %s, %s, %s' % (vr(a_, 2), vr(XC + 2 * i, 2), vr(XC + 2 * i, 2), vr(a_, 2)))
    late = dmas if o.late_dma else []
    if o.late_dma: dmas = []
    di = 0
    for k, v in enumerate(valu):
        if isinstance(v, list):
            for x in v: p(x)
        else: p(v)
        if k % 6 == 5 and di < len(dmas):
            while di < len(dmas):
                d = dmas[di]; di += 1
                if isinstance(d, tuple):
                    p(d[0]); vm.add(d[1]); break
                p(d)
                if 'm0' in d:
                    p('s_nop 0')
    while di < len(dmas):
        d = dmas[di]; di += 1
        if isinstance(d, tuple): p(d[0]); vm.add(d[1])
        else:
            p(d)
            if 'm0' in d: p('s_nop 0')
    p('v_add_f32 v%d, v%d, v%d' % (V2, V2, V2 + 1))
    p('v_add_f32 v%d, v%d, v%d' % (V2 + 2, V2 + 2, V2 + 3))
    p('v_add_f32 v%d, v%d, v%d' % (V2, V2, V2 + 2))
    xreduce(p, V2, V2 + 1)
    p('v_mov_b32 v%d, 0x3727c5ac' % (V2 + 1))
    p('v_fmac_f32 v%d, 0x3b124925, v%d' % (V2 + 1, V2))
    p('v_rsq_f32 v%d, v%d' % (V2, V2 + 1))
    p('s_nop 0')
    p('v_mov_b32 v%d, v%d' % (V2 + 1, V2))
    if o.pf and o.pf_kv_early:
        p('buffer_load_dword v254, v241, s[92:95], 0 offen'); vm.add('pf')
    for i in range(56):
        p('v_pk_mul_f32 %s, %s, %s' % (vr(XC + 2 * i, 2), vr(XC + 2 * i, 2), vr(V2, 2)))
    stamp(p, o, 'stats')
    p("""
    s_cmp_lg_u32 s%d, 0
    s_cbranch_scc1 L_modwait_done
    v_mov_b32 v206, 0
L_poll:
    buffer_load_dword v207, v206, s[88:91], 0 offen offset:128 sc1
    s_waitcnt vmcnt(0)
    v_readfirstlane_b32 s60, v207
    s_cmp_eq_u32 s60, 1
    s_cbranch_scc1 L_poll_done
    s_sleep 8
    s_branch L_poll
L_poll_done:
    ;STAMP poll_done
L_modwait_done:
    s_barrier
""" % S_W)
    p("""
    v_lshlrev_b32 v206, 4, v%d
    s_lshl_b32 s60, s%d, 10
    v_add_u32 v206, s60, v206
    v_add_u32 v207, %d, v206
""" % (L, S_W, WS_MODP))
    for k_ in range(4):
        if k_: p('v_add_u32 v207, 3584, v207')
        p('buffer_load_dwordx4 %s, v207, s[24:27], 0 offen sc1' % vr(168 + 4 * k_, 4))
    p("""
    s_lshl_b32 s60, s%d, 8
    v_lshl_add_u32 v208, v%d, 2, s60
    v_cmp_le_u32 vcc, 448, v208
    s_waitcnt vmcnt(0)
""" % (S_W, L))
    for r in range(4):
        p('v_add_f32 v%d, v%d, v%d' % (168 + r, 168 + r, 172 + r))
        p('v_add_f32 v%d, v%d, v%d' % (176 + r, 176 + r, 180 + r))
    for r in range(4): p('v_add_f32 v%d, v%d, v%d' % (168 + r, 168 + r, 176 + r))
    for r in range(4): p('v_cvt_pk_bf16_f32 v%d, v%d, 0' % (168 + r, 168 + r))
    for r in range(4): p('v_lshlrev_b32 v%d, 16, v%d' % (168 + r, 168 + r))
    for r in range(4): p('v_add_f32 v%d, 1.0, v%d' % (172 + r, 168 + r))
    for r in range(4): p('v_cvt_pk_bf16_f32 v%d, v%d, 0' % (172 + r, 172 + r))
    for r in range(4): p('v_lshlrev_b32 v%d, 16, v%d' % (172 + r, 172 + r))
    for r in range(4): p('v_cndmask_b32 v%d, v%d, v%d, vcc' % (168 + r, 168 + r, 172 + r))
    for r in range(4): p('v_mul_f32 v%d, 0x3db8aa3b, v%d' % (168 + r, 168 + r))
    p('ds_write_b128 v206, v[168:171] offset:%d' % MV_OFF)
    p('s_waitcnt lgkmcnt(0)')
    p('s_barrier')
    p("""
    s_cmp_lt_u32 s2, 56
    s_cbranch_scc1 L_noa2
    s_cmp_ge_u32 s2, 168
    s_cbranch_scc1 L_noa2
    s_cmp_lg_u32 s%d, 0
    s_cbranch_scc1 L_noa2
    v_mov_b32 v209, 1
    v_mov_b32 v208, 0
    v_cmp_eq_u32 vcc, 0, v%d
    s_and_saveexec_b64 s[62:63], vcc
    buffer_atomic_add v209, v208, s[88:91], 0 offen offset:64 sc1
    s_mov_b64 exec, s[62:63]
L_noa2:
""" % (S_W, L))
    stamp(p, o, 'modbar')
    if o.pf and not o.pf_kv_early:
        p('buffer_load_dword v254, v241, s[92:95], 0 offen'); vm.add('pf')
    MVA = 222; HA = 223
    p('v_lshlrev_b32 v%d, 5, v201' % MVA)
    p('v_add_u32 v%d, %d, v%d' % (MVA, MV_OFF, MVA))
    p('s_mul_i32 s60, s%d, 14336' % S_W)
    p('v_lshlrev_b32 v%d, 4, v%d' % (HA, L))
    p('v_add_u32 v%d, s60, v%d' % (HA, HA))
    q = Prog()
    TA = [16, 32, 168, 184]
    def mvread(ks):
        t = TA[ks % 4]
        q('ds_read_b128 %s, v%d offset:%d' % (vr(t, 4), MVA, ks * 128))
        q('ds_read_b128 %s, v%d offset:%d' % (vr(t + 4, 4), MVA, ks * 128 + 16))
        q('ds_read_b128 %s, v%d offset:%d' % (vr(t + 8, 4), MVA, 1792 + ks * 128))
        q('ds_read_b128 %s, v%d offset:%d' % (vr(t + 12, 4), MVA, 1792 + ks * 128 + 16))
    for ks in range(3): mvread(ks)
    for ks in range(14):
        if ks + 3 < 14: mvread(ks + 3)
        t = TA[ks % 4]
        for j in range(4):
            q('v_pk_fma_f32 %s, %s, %s, %s' % (vr(t + 2 * j, 2), vr(XC + 8 * ks + 2 * j, 2), vr(t + 8 + 2 * j, 2), vr(t + 2 * j, 2)))
        hr = 4 * (ks % 4)
        for j in range(4):
            q('v_cvt_pk_bf16_f32 v%d, v%d, v%d' % (hr + j, t + 2 * j, t + 2 * j + 1))
        q('ds_write_b128 v%d, %s offset:%d' % (HA, vr(hr, 4), H_OFF + ks * 1024))
    w, _ = insert_waits(q.ins)
    li = 0
    cnt = 0
    for ins_ in w:
        p.ins.append(ins_)
        cnt += 1
        if cnt % 9 == 0 and li < len(late):
            while li < len(late):
                d = late[li]; li += 1
                if isinstance(d, tuple):
                    p(d[0]); vm.add(d[1]); break
                p(d)
                if 'm0' in d: p('s_nop 0')
    while li < len(late):
        d = late[li]; li += 1
        if isinstance(d, tuple): p(d[0]); vm.add(d[1])
        else:
            p(d)
            if 'm0' in d: p('s_nop 0')
    p('s_waitcnt lgkmcnt(0)')
    p('s_barrier')
    stamp(p, o, 'hbar')
    p('v_lshlrev_b32 v%d, 4, v%d' % (HA, L))
    for st in range(14):
        for qt in range(4):
            f = qt * 14 + st
            p('ds_read_b128 %s, v%d offset:%d' % (ar(4 * f, 4), HA, H_OFF + f * 1024))
    VA = 232
    p("""
    v_bfe_u32 v206, v%d, 2, 2          ; r
    v_and_b32 v207, 1, v201            ; kq&1
    v_lshl_add_u32 v207, v207, 2, v206 ; f = r + 4*(kq&1)
    v_lshlrev_b32 v208, 11, v201       ; 2*kq*1024
    v_lshl_add_u32 v208, v206, 8, v208 ; + r*256
    v_and_b32 v209, 3, v%d             ; c
    v_lshl_add_u32 v208, v209, 3, v208 ; + c*8
    v_add_u32 v208, s%d, v208          ; + w*8192
""" % (L, L, S_QD2))
    for T in range(8):
        p('v_xor_b32 v209, %d, v207' % T)
        p('v_lshl_add_u32 v%d, v209, 5, v208' % (VA + T))
    p('s_waitcnt lgkmcnt(0)')
    p('s_barrier')
    stamp(p, o, 'ln_done')
    return p, vm, VQ, VA

def qproj(o, vm, VQ, VA):
    p = Prog()
    N = 14 * 32
    sc = [[] for _ in range(N)]; mem = [[] for _ in range(N)]; val = [[] for _ in range(N)]
    def aread(n):
        st, T = n // 8, n % 8
        r = FR + 4 * (n % 4)
        off = QSLOT[st % 4]
        return st, T, r, off
    reads = []
    for n in range(14 * 8):
        st, T, r, off = aread(n)
        reads.append(['ds_read_b64_tr_b16 %s, v%d offset:%d' % (vr(r, 2), VA + T, 0),
                      'ds_read_b64_tr_b16 %s, v%d offset:%d' % (vr(r + 2, 2), VA + T, 1024)])
    pre = Prog()
    for T in range(8):
        pre('v_add_u32 v%d, %d, v%d' % (VA + T, QSLOT[0], VA + T))
    pre(vm.wait('wq0'))
    for n in range(3):
        for s in reads[n]: pre(s)
    for n in range(14 * 8):
        st, T = n // 8, n % 8
        g = 4 * (n - 3)
        if n >= 3:
            mem[g] += reads[n]
        if st + 1 < 14:
            d = QSLOT[(st + 1) % 4] - QSLOT[st % 4]
            upd = 'v_add_u32 v%d, %s, v%d' % (VA + T, ('0x%x' % (d & 0xffffffff)), VA + T)
            if n >= 3: val[g + 1].append(upd)
            else: val[n + 1].append(upd)
    for st in range(14):
        base = st * 32
        lst = None
        if st <= 10:
            lst = wq_dma(st + 3, vm, VQ)
            post = ['v_add_u32 v%d, 0x40000, v%d' % (VQ[0], VQ[0]), 'v_add_u32 v%d, 0x40000, v%d' % (VQ[1], VQ[1])]
        elif st >= 12 and not o.kdma_late:
            lst = [(s if s.startswith('s_') else (s, 'k%d' % (st - 12))) for s in dma(o, st - 12, 0, True, False)]
            post = ['v_add_u32 v%d, 0x8000, v%d' % (VOFF, VOFF)]
        if lst:
            gi = 0
            gaps = [base + 2 + 4 * i for i in range(8)]
            for s in lst:
                if isinstance(s, tuple):
                    mem[gaps[gi]].append(s); gi += 1
                else:
                    sc[gaps[gi] - 1].append(s)
            for i, s in enumerate(post):
                val[base + 31].append(s)
    post_cvt = []
    for T in range(8):
        for qt in range(4):
            g = 13 * 32 + T * 4 + qt + 7
            a_ = (T * 4 + qt) * 4; t_ = 128 + 2 * (T * 4 + qt)
            cv = ['v_cvt_pk_bf16_f32 v%d, v%d, v%d' % (t_, a_, a_ + 1), 'v_cvt_pk_bf16_f32 v%d, v%d, v%d' % (t_ + 1, a_ + 2, a_ + 3)]
            placed = False
            if o.qcvt:
                for gg in (g, g + 1, g + 2):
                    if gg < N and len(mem[gg]) == 0 and not val[gg]:
                        val[gg] += cv; placed = True; break
            if not placed: post_cvt += cv
    p.extend(pre)
    for gidx in range(N):
        st, rem = gidx // 32, gidx % 32
        T, qt = rem // 4, rem % 4
        n = st * 8 + T
        acc = (T * 4 + qt) * 4
        c = '0' if st == 0 else vr(acc, 4)
        m = 'v_mfma_f32_16x16x32_bf16 %s, %s, %s, %s' % (vr(acc, 4), vr(FR + 4 * (n % 4), 4), ar((qt * 14 + st) * 4, 4), c)
        p(m)
        if gidx + 1 < N:
            st2, rem2 = (gidx + 1) // 32, (gidx + 1) % 32
            if rem2 % 4 == 0:
                n2 = st2 * 8 + rem2 // 4
                p('.need v_mfma_f32_16x16x32_bf16 v[0:3], %s, v[0:3], 0' % vr(FR + 4 * (n2 % 4), 4))
        if rem == 20 and st + 1 < 14:
            p(vm.wait('wq%d' % (st + 1)))
        if st == 11 and rem == 31 and not o.kdma_late:
            p('s_barrier')
        for s in sc[gidx]: p(s)
        for s in mem[gidx]:
            if isinstance(s, tuple):
                p(s[0]); vm.add(s[1])
            else: p(s)
        for s in val[gidx]: p(s)
    p('s_nop 7')
    for x in post_cvt: p(x)
    return p

def kv_addresses(o):
    p = Prog()
    L = VLANE
    p('''
    s_mul_i32 s61, s%d, %d
    s_lshl_b32 s62, s%d, 14
    s_lshl_b32 s63, s%d, 13
    s_add_u32 s62, s62, s63
    v_lshlrev_b32 v%d, 4, v%d
    v_add_u32 v%d, s62, v%d
''' % (S_S, HALF, S_S, S_QH, VOFF, L, VOFF, VOFF))
    p('''
    v_and_b32 v240, 7, v%d
    v_mul_u32_u24 v240, %d, v240
    v_bfe_u32 v241, v%d, 3, 1
    v_lshlrev_b32 v241, 9, v241
    v_add_u32 v240, v240, v241
    v_lshrrev_b32 v241, 4, v%d
    v_lshlrev_b32 v241, 4, v241
    v_add_u32 v240, v240, v241
    v_add_u32 v%d, s61, v240
    v_lshrrev_b32 v240, 2, v%d
    v_and_b32 v241, 7, v240
    v_mul_u32_u24 v241, %d, v241
    v_lshrrev_b32 v240, 3, v240
    v_lshlrev_b32 v240, 9, v240
    v_add_u32 v240, v240, v241
    v_and_b32 v241, 3, v%d
    v_lshlrev_b32 v241, 3, v241
    v_add_u32 v240, v240, v241
    v_add_u32 v240, s61, v240
    v_add_u32 v%d, %d, v240
''' % (L, BLK, L, L, VK, L, BLK, L, VV, VBASE))
    return p

def qexchange(o, vm):
    p = Prog()
    L = VLANE
    p('''
    v_and_b32 v200, 15, v%d
    v_lshrrev_b32 v201, 4, v%d
    v_mul_u32_u24 v202, 1040, v200
    v_lshl_add_u32 v202, v201, 3, v202
    s_lshl_b32 s60, s%d, 8
    s_add_u32 s60, s60, %d
    v_add_u32 v202, s60, v202
    s_mov_b32 s61, 0x%x
''' % (L, L, S_W, QX, 0x3db8aa3b))
    p('s_barrier')
    if o.kdma_late:
        for kb in range(2):
            for s_ in dma(o, kb, 0, True, False, nop=True):
                p(s_)
                if s_.startswith('buffer'): vm.add('k%d' % kb)
            p('v_add_u32 v%d, 0x8000, v%d' % (VOFF, VOFF))
    q = Prog()
    for T in range(8):
        for qt in range(4):
            q('ds_write_b64 v202, %s offset:%d' % (vr(128 + 2 * (T * 4 + qt), 2), qt * 16 * 1040 + T * 32))
    p.extend(q)
    p('s_waitcnt lgkmcnt(0)')
    p('s_barrier')
    p('''
    s_mul_i32 s60, s%d, %d
    s_add_u32 s60, s60, %d
    v_mul_u32_u24 v202, 1040, v200
    v_lshl_add_u32 v202, v201, 4, v202
    v_add_u32 v202, s60, v202
''' % (S_QH, 32 * 1040, QX))
    for h in range(2):
        for qt in range(2):
            b = 2 * h + qt
            for ks in range(8):
                p('ds_read_b128 %s, v202 offset:%d' % (vr(32 * b + 4 * ks, 4), qt * 16 * 1040 + h * 512 + ks * 64))
    p(vm.wait('k0' if o.kdma_late else 'k1'))
    p('s_waitcnt lgkmcnt(0)')
    p('s_barrier')
    return p

def attn_prologue(o):
    p = Prog()
    p('v_add_u32 v%d, 0xffff0000, v%d' % (VOFF, VOFF))
    p('s_nop 0')
    for s in dma(o, 0, 0, False, True, nop=True): p(s)
    p('v_add_u32 v%d, 0x8000, v%d' % (VOFF, VOFF))
    p('''
    s_add_u32 s8, s8, 0x8000
    s_addc_u32 s9, s9, 0
    s_sub_u32 s10, s10, 0x8000
    s_add_u32 s12, s12, 0x8000
    s_addc_u32 s13, s13, 0
    s_sub_u32 s14, s14, 0x8000
''')
    q = Prog()
    qk = qk_list(o, czero=True)
    for n in range(2):
        for s in kread(o, n, 0): q(s)
    for sl in range(64):
        if sl % 8 == 0 and sl // 8 + 1 < 8:
            for s in kread(o, 2 * (sl // 8 + 1), 0) + kread(o, 2 * (sl // 8 + 1) + 1, 0): q(s)
        q(qk[sl])
    w, _ = insert_waits(q.ins)
    p.extend(w)
    p('s_nop 7')
    t = TMP
    for b in range(4):
        max8(p, t + b, b)
    for b in range(4):
        xreduce(p, t + b, t + 4, 'v_max_f32')
    for b in range(4):
        for r in range(4):
            p('v_sub_f32 v%d, 0, v%d' % (NEGM + 4 * b + r, t + b))
        for a in range(2):
            for r in range(4):
                p('v_sub_f32 v%d, v%d, v%d' % (S(a, b) + r, S(a, b) + r, t + b))
    for i in range(4):
        p('v_mov_b32 v%d, 0' % (LREG[1] + i))
    for s in exps(o, 0, 0, 1, 0): p(s)
    for s in exps(o, 1, 0, 1, 0): p(s)
    p('s_waitcnt vmcnt(0) lgkmcnt(0)')
    p('s_barrier')
    for n in range(2):
        for s in kread(o, n, 1): p(s)
    p('s_waitcnt lgkmcnt(0)')
    return p

MN, LL = 240, 244
def epi_setup(o):
    L = VLANE
    x = []
    for b in range(4): x.append('v_mov_b32 v%d, v%d' % (MN + b, NEGM + 4 * b))
    for b in range(4): x.append('v_mov_b32 v%d, v%d' % (LL + b, LREG[1] + b))
    for sw in ('v_permlane16_swap_b32', 'v_permlane32_swap_b32'):
        for b in range(4): x.append('v_mov_b32 v%d, v%d' % (248 + b, LL + b))
        for b in range(4): x.append('%s v%d, v%d' % (sw, LL + b, 248 + b))
        for b in range(4): x.append('v_add_f32 v%d, v%d, v%d' % (LL + b, LL + b, 248 + b))
    x += ['v_and_b32 v203, 15, v%d' % L, 'v_lshlrev_b32 v203, 5, v203',
          's_lshl_b32 s63, s%d, 9' % S_W, 's_add_u32 s63, s63, %d' % ST, 'v_add_u32 v202, s63, v203',
          'v_lshlrev_b32 v200, 4, v%d' % L,
          's_xor_b32 s64, s%d, 2' % S_W, 's_lshl_b32 s65, s64, 9', 's_add_u32 s65, s65, %d' % ST, 'v_add_u32 v203, s65, v203',
          's_lshl_b32 s64, s64, 15', 'v_add_u32 v201, s64, v200',
          's_lshl_b32 s66, s%d, 15' % S_W, 'v_add_u32 v200, s66, v200']
    return x

def attn_loop(o):
    p = Prog()
    first = A.iteration(o, 0, 'f', first_pv=True)
    w0, st0 = insert_waits(first.ins)
    p.extend(w0)
    p('s_mov_b32 s%d, 14' % S_CNT)
    p('.p2align 6')
    p('L_loop:')
    body = Prog()
    body.extend(A.iteration(o, 1, 'a'))
    body.extend(A.iteration(o, 0, 'b'))
    w1, st1 = insert_waits(body.ins, st0)
    w, st2 = insert_waits(body.ins, st1)
    assert st2 == st1 and [i.text for i in w] == [i.text for i in w1], 'not steady'
    loop_ins = w
    p.extend(w)
    p('s_sub_u32 s%d, s%d, 1' % (S_CNT, S_CNT))
    p('s_cmp_lg_u32 s%d, 0' % S_CNT)
    p('s_cbranch_scc1 L_loop')
    tail = Prog()
    ex = []
    if o.pf:
        ex = [(71, 'buffer_load_dword v255, v242, s[48:51], 0 offen')]
    tail.extend(A.iteration(o, 1, 'c', extra_mem=ex))
    ex = []
    if o.pf and o.pfmoe:
        ex = [(71, 'global_load_dword v255, v243, s[96:97]'), (75, 'global_load_dword v255, v243, s[98:99]'), (79, 'global_load_dword v255, v243, s[100:101]')]
    tail.extend(A.iteration(o, 0, 'd', do_dma_k=False, next_k=False, pf_ok=False, extra_mem=ex))
    tail('s_waitcnt vmcnt(%d) lgkmcnt(0)' % len(ex))
    tail('s_barrier')
    tail.extend(A.iteration(o, 1, 'e', do_qk=False, do_dma_k=False, do_dma_v=False, next_k=False, extra_valu=epi_setup(o)))
    w, _ = insert_waits(tail.ins, st1)
    p.extend(w)
    return p, w0, loop_ins, w

def combine(o, s, shadow):
    p = Prog()
    own = s; oth = 1 - s
    for dt in range(16):
        for qt in range(2):
            b = 2 * oth + qt
            p('ds_write_b128 v200, %s offset:%d' % (ar((dt * 4 + b) * 4, 4), (dt * 2 + qt) * 1024))
    for dt in range(16):
        for qt in range(2):
            b = 2 * own + qt
            for r in range(4):
                p('v_accvgpr_read_b32 v%d, a%d' % ((dt * 2 + qt) * 4 + r, (dt * 4 + b) * 4 + r))
    p.extend(shadow)
    p('s_waitcnt lgkmcnt(0)')
    p('s_barrier')
    stamp(p, o, 'e1bar')
    q = Prog()
    q('ds_read_b128 v[204:207], v203')
    q('ds_read_b128 v[208:211], v203 offset:16')
    order = [(2 * i + y, qt) for i in range(8) for qt in range(2) for y in range(2)]
    RING = 128
    def rd(k):
        dt, qt = order[k]
        q('ds_read_b128 %s, v201 offset:%d' % (vr(RING + 4 * (k % 8), 4), (dt * 2 + qt) * 1024))
    for k in range(8): rd(k)
    AL = 212; BE = 216
    for qt in range(2):
        b = 2 * own + qt
        mo = MN + b; mp = 204 + b; lo = LL + b; lp = 208 + b
        t = 220
        q('v_min_f32 v%d, v%d, v%d' % (t, mo, mp))
        q('v_sub_f32 v%d, v%d, v%d' % (t + 1, t, mo))
        q('v_sub_f32 v%d, v%d, v%d' % (t + 2, t, mp))
        q('v_exp_f32 v%d, v%d' % (t + 1, t + 1))
        q('v_exp_f32 v%d, v%d' % (t + 2, t + 2))
        q('s_nop 0')
        q('v_mul_f32 v%d, v%d, v%d' % (t + 3, t + 1, lo))
        q('v_fmac_f32 v%d, v%d, v%d' % (t + 3, t + 2, lp))
        q('v_rcp_f32 v%d, v%d' % (t + 3, t + 3))
        q('s_nop 0')
        q('v_mul_f32 v%d, v%d, v%d' % (AL + 2 * qt, t + 1, t + 3))
        q('v_mul_f32 v%d, v%d, v%d' % (BE + 2 * qt, t + 2, t + 3))
        q('v_mov_b32 v%d, v%d' % (AL + 2 * qt + 1, AL + 2 * qt))
        q('v_mov_b32 v%d, v%d' % (BE + 2 * qt + 1, BE + 2 * qt))
    for k in range(32):
        dt, qt = order[k]
        i, y = dt // 2, dt % 2
        rv = RING + 4 * (k % 8)
        ow = (dt * 2 + qt) * 4
        q('v_pk_mul_f32 %s, %s, %s' % (vr(rv, 2), vr(rv, 2), vr(BE + 2 * qt, 2)))
        q('v_pk_mul_f32 %s, %s, %s' % (vr(rv + 2, 2), vr(rv + 2, 2), vr(BE + 2 * qt, 2)))
        q('v_pk_fma_f32 %s, %s, %s, %s' % (vr(ow, 2), vr(ow, 2), vr(AL + 2 * qt, 2), vr(rv, 2)))
        q('v_pk_fma_f32 %s, %s, %s, %s' % (vr(ow + 2, 2), vr(ow + 2, 2), vr(AL + 2 * qt, 2), vr(rv + 2, 2)))
        if k + 8 < 32: rd(k + 8)
        fr = 160 + 4 * ((i * 2 + qt) % 8)
        q('v_cvt_pk_bf16_f32 v%d, v%d, v%d' % (fr + 2 * y, ow, ow + 1))
        q('v_cvt_pk_bf16_f32 v%d, v%d, v%d' % (fr + 2 * y + 1, ow + 2, ow + 3))
        if y == 1:
            q('ds_write_b128 v201, %s offset:%d' % (vr(fr, 4), (i * 2 + qt) * 1024))
    w, _ = insert_waits(q.ins)
    p.extend(w)
    return p

def wo_dma(step, slot, VW):
    out = []
    for jj in range(7):
        out.append('s_add_u32 m0, s%d, %d' % (S_T0 + slot, jj * 1024))
        out.append(('buffer_load_dwordx4 v%d, s[%d:%d], s%d offen lds' % (VW + jj, S_WO, S_WO + 3, S_WST), 'wo%d' % step))
    return out

def epilogue(o):
    p = Prog()
    L = VLANE
    vm = VmTracker()
    VW = 232
    p('s_nop 7')
    p('''
    s_barrier
    ds_write_b128 v202, v[%d:%d]
    ds_write_b128 v202, v[%d:%d] offset:16
''' % (MN, MN + 3, LL, LL + 3))
    sh = Prog()
    sh('s_mul_i32 s60, s%d, 224' % S_W)
    sh('s_mov_b32 s61, 0x124925')
    for jj in range(7):
        sh('v_add_u32 v192, %d, v%d' % (64 * jj, L))
        sh('v_mul_u32_u24 v193, s61, v192')
        sh('v_lshrrev_b32 v193, 24, v193')
        sh('v_mul_u32_u24 v194, 14, v193')
        sh('v_sub_u32 v194, v192, v194')
        sh('v_mul_u32_u24 v193, 896, v193')
        sh('v_lshl_add_u32 v193, v194, 4, v193')
        sh('v_add_u32 v%d, s60, v193' % (VW + jj))
    sh('''
    s_mul_i32 s60, s%d, 7168
    s_add_u32 s60, s60, %d
    s_lshl_b32 s61, s%d, 15
    s_add_u32 s61, s61, 16384
    s_add_u32 s62, s61, 7168
    s_mov_b32 s%d, 0
''' % (S_W, WO0, S_W, S_WST))
    emit_dma(sh, wo_dma(0, 0, VW), vm)
    sh('s_mov_b32 s%d, 28672' % S_WST)
    AW = 224
    BW = 228
    sh('''
    v_lshrrev_b32 v192, 2, v%d          ; 4kq + r
    v_mul_u32_u24 v192, 224, v192
    v_and_b32 v193, 3, v%d
    v_lshl_add_u32 v192, v193, 3, v192
    v_add_u32 v%d, s60, v192
    v_add_u32 v%d, s61, v192
    v_add_u32 v%d, s62, v192
    v_lshlrev_b32 v192, 4, v%d
''' % (L, L, AW, AW + 1, AW + 2, L))
    for r in range(4):
        sh('v_add_u32 v%d, %d, v192' % (BW + r, r * 32768))
    p('s_cmp_eq_u32 s%d, 0' % S_S)
    p('s_cbranch_scc0 L_comb1')
    c0 = combine(o, 0, sh); c1 = combine(o, 1, sh)
    p.extend(c0)
    p('s_branch L_combdone')
    p('L_comb1:')
    p.extend(c1)
    p('L_combdone:')
    stamp(p, o, 'comb')
    if o.fuse_k2:
        p('s_load_dwordx2 s[4:5], s[0:1], 48')
        p('s_load_dwordx2 s[6:7], s[0:1], 96')
        if o.one:
            p('s_load_dwordx4 s[28:31], s[0:1], 56')
            p('s_load_dwordx2 s[32:33], s[0:1], 72')
        p('v_mov_b32 v250, 0')
        p('buffer_load_dword v251, v250, s[88:91], 0 offen offset:64 sc1'); vm.add('chk')
    p('s_waitcnt lgkmcnt(0)')
    p('s_barrier')
    stamp(p, o, 'e3bar')
    emit_dma(p, wo_dma(1, 1, VW), vm)
    p('s_mov_b32 s%d, %d' % (S_WST, 2 * 28672))
    def bread(ks, qtile):
        h, i = ks >> 3, ks & 7
        qh, qt = qtile >> 1, qtile & 1
        reg = qh + 2 * (1 - h)
        return 'ds_read_b128 %s, v%d offset:%d' % (vr(112 + 16 * (ks % 2) + 4 * qtile, 4), BW + reg, (i * 2 + qt) * 1024)
    def aread(n):
        ks, T = n // 7, n % 7
        r = FR + 4 * (n % 4)
        return ['ds_read_b64_tr_b16 %s, v%d offset:%d' % (vr(r + 2 * a, 2), AW + ks % 3, a * 3584 + T * 32) for a in range(2)]
    N = 16 * 28
    sc = [[] for _ in range(N)]; mem = [[] for _ in range(N)]; val = [[] for _ in range(N)]
    pre = Prog()
    pre(vm.wait('wo0'))
    for qtile in range(4): pre(bread(0, qtile))
    for n in range(3):
        for s in aread(n): pre(s)
    for n in range(3, 16 * 7):
        mem[4 * (n - 3)] += aread(n)
    for ks in range(15):
        for qtile in range(4):
            mem[28 * ks + 4 * qtile + 5 + 8].append(bread(ks + 1, qtile))
    for ks in range(14):
        lst = wo_dma(ks + 2, (ks + 2) % 3, VW)
        gaps = [28 * ks + 2 + 4 * i for i in range(7)]
        gi = 0
        for s in lst:
            if isinstance(s, tuple):
                mem[gaps[gi]].append(s); gi += 1
            else:
                sc[gaps[gi] - 1].append(s)
        sc[28 * ks + 27].append('s_add_u32 s%d, s%d, 28672' % (S_WST, S_WST))
    import ksmall
    hs = Prog(); hv = []
    hs('''
    s_lshl_b32 s56, s%d, 6
    s_lshl_b32 s57, s%d, 3
    s_add_u32 s56, s56, s57
    s_lshl_b32 s58, s%d, 1
    s_add_u32 s56, s56, s58
    s_add_u32 s57, s57, s58
    s_mul_i32 s57, s57, 896
    s_mul_i32 s58, s56, 896
''' % (S_QB, S_G, S_W))
    ksmall.srd(hs, 8, 24, 8 * 2048 * 896, str(WS_PART))
    ksmall.srd(hs, 12, 4, 896)
    ksmall.srd(hs, 16, 6, 2048 * 896)
    ksmall.srd(hs, 20, 24, 2048 * 896, str(WS_H2))
    ksmall.srd(hs, 96, 24, 8192, str(WS_R))
    hs('s_lshl_b32 s63, s%d, 7' % S_QB)
    hs('s_add_u32 s63, s63, %d' % WS_CNT)
    ksmall.srd(hs, 52, 24, 128, 's63')
    hs('''
    s_lshl_b32 s63, s%d, 11
    s_lshl_b32 s64, s%d, 6
    s_add_u32 s63, s63, s64
    s_mul_i32 s63, s63, 896
    s_add_u32 s63, s63, %d
    s_add_u32 s68, s24, s63
    s_addc_u32 s69, s25, 0
    s_mov_b32 s70, 57344
    s_mov_b32 s71, 0x20000
    s_mul_i32 s63, s%d, 224
    s_mul_i32 s64, s%d, %d
    s_mul_i32 s66, s%d, %d
    s_lshl_b32 s67, s%d, 10
''' % (S_G, S_QB, WS_PART, S_W, S_W, 16 * 912, S_W, 16 * 896, S_W))
    chunks = []
    for ins_ in hs.ins:
        if ins_.op == 's_addc_u32': chunks[-1].append(ins_.text)
        else: chunks.append([ins_.text])
    g = 28 * 12 + 1
    for ch in chunks:
        while len(sc[g]) + len(ch) > 3: g += 1
        sc[g] += ch
    assert g < 28 * 13
    hv = [
        'v_lshlrev_b32 v198, 4, v%d' % L, 'v_lshlrev_b32 v199, 4, v%d' % L, 'v_mov_b32 v194, 0x40000000',
        'v_cmp_gt_u32 vcc, 56, v%d' % L, 'v_mov_b32 v196, 0x00003f80', 'v_mov_b32 v197, 0x3f800000',
        'v_cndmask_b32 v198, v194, v198, vcc', 'v_cndmask_b32 v193, 0, 1.0, vcc',
        'v_add_u32 v192, s58, v198', 'v_add_u32 v195, s57, v198',
        'v_add_u32 v199, s67, v199', 'v_add_u32 v205, %d, v199' % WS_MODP2,
        'v_and_b32 v200, 15, v%d' % L, 'v_mul_u32_u24 v200, 912, v200', 'v_lshrrev_b32 v201, 4, v%d' % L,
        'v_lshl_add_u32 v200, v201, 3, v200', 'v_add_u32 v200, s63, v200',
        'v_lshlrev_b32 v201, 4, v%d' % L, 'v_add_u32 v202, s64, v201', 'v_add_u32 v203, s66, v201',
        'v_cndmask_b32 v203, v194, v203, vcc']
    g = 28 * 13 + 1
    for x in hv:
        while len(mem[g]) or len(val[g]) >= 2: g += 1
        val[g].append(x)
    a2g = 28 * 14 + 17
    assert g < a2g
    sc[a2g].append('.a2check')
    lds_ = [('buffer_load_dwordx4 %s, v195, s[40:43], 0 offen offset:%d' % (vr(144 + 4 * rr, 4), rr * 896)) for rr in range(2)]
    for k_ in range(4):
        for i_ in range(2):
            lds_.append(('s_mov_b32 s59, %d' % (k_ * 7168 + i_ * 4096), 'buffer_load_dwordx4 %s, v205, s[24:27], s59 offen sc1' % vr(160 + 8 * k_ + 4 * i_, 4)))
    lds_.append('buffer_load_dwordx4 v[152:155], v198, s[12:15], 0 offen')
    g = a2g + 1
    for x in lds_:
        while len(mem[g]): g += 1
        if isinstance(x, tuple):
            sc[g].append(x[0]); mem[g].append((x[1], 'tail'))
        else: mem[g].append((x, 'tail'))
        g += 2
    assert g < N + 2, g
    body = Prog()
    body.extend(pre)
    for gidx in range(N):
        ks, rem = gidx // 28, gidx % 28
        T, qt = rem // 4, rem % 4
        n = ks * 7 + T
        acc = (T * 4 + qt) * 4
        c = '0' if ks == 0 else vr(acc, 4)
        body('v_mfma_f32_16x16x32_bf16 %s, %s, %s, %s' % (vr(acc, 4), vr(FR + 4 * (n % 4), 4), vr(112 + 16 * (ks % 2) + 4 * qt, 4), c))
        if gidx + 1 < N:
            ks2, rem2 = (gidx + 1) // 28, (gidx + 1) % 28
            n2 = ks2 * 7 + rem2 // 4
            body('.need v_mfma_f32_16x16x32_bf16 v[0:3], %s, %s, 0' % (vr(FR + 4 * (n2 % 4), 4), vr(112 + 16 * (ks2 % 2) + 4 * (rem2 % 4), 4)))
        if rem == 16 and ks + 1 < 16:
            body(vm.wait('wo%d' % (ks + 1)))
        for s in sc[gidx]:
            if s == '.a2check':
                body('v_readfirstlane_b32 s59, v251')
                body('s_cmp_eq_u32 s59, 112')
                body('s_cbranch_scc0 L_a2rare')
                body('L_a2ok:')
            else: body(s)
        for s in mem[gidx]:
            if isinstance(s, tuple):
                body(s[0]); vm.add(s[1])
            else: body(s)
        for s in val[gidx]: body(s)
    w, _ = insert_waits(body.ins)
    p.extend(w)
    stamp(p, o, 'oproj')
    p('s_nop 7')
    p('s_barrier')
    k = 0
    for qt in range(4):
        for T in range(7):
            acc = (T * 4 + qt) * 4
            t = 112 + 2 * (k % 16); k += 1
            p('v_cvt_pk_bf16_f32 v%d, v%d, v%d' % (t, acc, acc + 1))
            p('v_cvt_pk_bf16_f32 v%d, v%d, v%d' % (t + 1, acc + 2, acc + 3))
            p('ds_write_b64 v200, %s offset:%d' % (vr(t, 2), qt * 16 * 912 + T * 32))
    p('s_waitcnt lgkmcnt(0)')
    p('s_barrier')
    q = Prog()
    for rr in range(16):
        q('ds_read_b128 %s, v202 offset:%d' % (vr(4 * rr, 4), rr * 912))
    for rr in range(16):
        if rr % 4 == 0 and rr: q('v_add_u32 v203, %d, v203' % (4 * 896))
        q('buffer_store_dwordx4 %s, v203, s[68:71], 0 offen offset:%d%s' % (vr(4 * rr, 4), (rr % 4) * 896, o.part_flags))
    w, _ = insert_waits(q.ins)
    p.extend(w)
    stamp(p, o, 'stores')
    p('s_waitcnt vmcnt(16)')
    for i_ in range(2):
        for r in range(4):
            p('v_add_f32 v%d, v%d, v%d' % (160 + 4 * i_ + r, 160 + 4 * i_ + r, 168 + 4 * i_ + r))
            p('v_add_f32 v%d, v%d, v%d' % (176 + 4 * i_ + r, 176 + 4 * i_ + r, 184 + 4 * i_ + r))
    for k_ in range(8): p('v_add_f32 v%d, v%d, v%d' % (160 + k_, 160 + k_, 176 + k_))
    for k_ in range(8): p('v_cvt_pk_bf16_f32 v%d, v%d, 0' % (160 + k_, 160 + k_))
    for k_ in range(8): p('v_lshlrev_b32 v%d, 16, v%d' % (160 + k_, 160 + k_))
    for k_ in range(8): p('v_add_f32 v%d, 1.0, v%d' % (168 + k_, 160 + k_))
    for k_ in range(8): p('v_cvt_pk_bf16_f32 v%d, v%d, 0' % (168 + k_, 168 + k_))
    for k_ in range(8): p('v_lshlrev_b32 v%d, 16, v%d' % (168 + k_, 168 + k_))
    p('v_lshrrev_b32 v242, 2, v199')
    for i_ in range(2):
        p('v_add_u32 v243, %d, v242' % ((1024 * i_ - 896) & 0xffffffff))
        p('v_cmp_gt_u32 vcc, 448, v243')
        p('s_nop 1')
        for r in range(4): p('v_cndmask_b32 v%d, v%d, v%d, vcc' % (160 + 4 * i_ + r, 160 + 4 * i_ + r, 168 + 4 * i_ + r))
    p('ds_write_b128 v199, v[160:163] offset:%d' % VEC)
    p('ds_write_b128 v199, v[164:167] offset:%d' % (VEC + 4096))
    if not o.one:
        p('s_cmp_lg_u32 s2, 0')
        p('s_cbranch_scc1 L_novecpub')
        p('s_mov_b32 s59, 3584')
        p('buffer_store_dwordx4 v[160:163], v199, s[24:27], s59 offen')
        p('s_mov_b32 s59, 7680')
        p('buffer_store_dwordx4 v[164:167], v199, s[24:27], s59 offen')
        p('L_novecpub:')
    p('''
    s_lshl_b32 s63, s%d, 3
    s_lshl_b32 s64, s%d, 1
    s_add_u32 s63, s63, s64
    s_mul_i32 s63, s63, 912
    v_min_u32 v240, 55, v%d
    v_lshlrev_b32 v241, 4, v240
    v_add_u32 v241, s63, v241
    v_lshlrev_b32 v240, 5, v240
''' % (S_G, S_W, L))
    for j in range(1, 8):
        p('s_add_u32 s%d, s%d, %d' % (72 - 72 + 76 + j if False else 59, S_G, j))
        p('s_and_b32 s59, s59, 7')
        p('s_mul_i32 s%d, s59, %d' % (24 + 0 if False else GOFF + j, 2048 * 896))
    p('s_waitcnt vmcnt(0) lgkmcnt(0)')
    stamp(p, o, 'drain')
    p('''
    s_barrier
    s_cmp_lg_u32 s%d, 0
    s_cbranch_scc1 L_grp_done
    v_mov_b32 v0, 1
    v_mov_b32 v1, 0
    v_cmp_eq_u32 vcc, 0, v%d
    s_and_saveexec_b64 s[60:61], vcc
    buffer_atomic_add v0, v1, s[52:55], 0 offen sc1
    s_mov_b64 exec, s[60:61]
L_grp_poll:
    buffer_load_dword v2, v1, s[52:55], 0 offen sc1
    s_waitcnt vmcnt(0)
    v_readfirstlane_b32 s59, v2
    s_cmp_eq_u32 s59, 8
    s_cbranch_scc1 L_grp_done
    s_sleep 2
    s_branch L_grp_poll
L_grp_done:
    s_barrier
''' % (S_W, L))
    stamp(p, o, 'grp')
    for rr in range(2):
        for j in range(1, 8):
            p('buffer_load_dwordx4 %s, v192, s[8:11], s%d offen offset:%d sc1' % (vr(32 * rr + 4 * j, 4), GOFF + j, rr * 896))
    for rr in range(2):
        p('ds_read_b128 %s, v241 offset:%d' % (vr(32 * rr, 4), rr * 912))
    for k_ in range(4):
        p('ds_read_b128 %s, v240 offset:%d' % (vr(160 + 8 * k_, 4), VEC + k_ * 1792))
        p('ds_read_b128 %s, v240 offset:%d' % (vr(164 + 8 * k_, 4), VEC + k_ * 1792 + 16))
    ACC = [64, 72]
    for rr in range(2):
        for j in range(8): p('v_mov_b32 v%d, 0' % (ACC[rr] + j))
    p('v_cmp_gt_u32 vcc, 56, v%d' % L)
    p('s_waitcnt lgkmcnt(0)')
    p('s_nop 0')
    for rr in range(2):
        for r in range(4): p('v_cndmask_b32_e64 v%d, 0, v%d, vcc' % (32 * rr + r, 32 * rr + r))
    for rr in range(2):
        p('s_waitcnt vmcnt(%d)' % (7 if rr == 0 else 0))
        for g_ in range(8):
            for j in range(8):
                p('v_dot2_f32_bf16 v%d, v%d, v%d, v%d' % (ACC[rr] + j, 32 * rr + 4 * g_ + j // 2, 196 + j % 2, ACC[rr] + j))
    p('s_nop 2')
    stamp(p, o, 'k2ld')
    if not o.one:
        ksmall.k2_math(p, [0, 32], [144, 148], 160, 168, 176, 184, 152, ACC, [80, 88], 96, 192, 193, L, 194, 196, 20, 16, 96, 56, 104)
        return p
    ksmall.K2_H_FLAGS = ' sc1'; ksmall.K2_OUT_FLAGS = ' sc1'
    kr = ksmall.k2_math(p, [0, 32], [144, 148], 160, 168, 176, 184, 152, ACC, [80, 88], 96, 192, 193, L, 194, 196, 20, 16, 96, 56, 104, key_in_reg=True)
    stamp(p, o, 'k2m')
    p('''
    s_lshl_b32 s59, s%d, 3
    s_add_u32 s59, s59, %d
    v_lshl_add_u32 v104, v%d, 2, s59
    v_cmp_gt_u32 vcc, 2, v%d
    s_and_saveexec_b64 s[60:61], vcc
    ds_write_b32 v104, v%d
    s_mov_b64 exec, s[60:61]
    s_cmp_ge_u32 s2, 84
    s_cbranch_scc1 L_norole_a
    s_barrier
''' % (S_W, KEYL, L, L, kr))
    return_marker = True
    ksmall.moe_pre(p, S_W, L)
    p('''
    s_waitcnt vmcnt(14) lgkmcnt(0)
    s_branch L_role_b
L_norole_a:
    s_waitcnt vmcnt(0) lgkmcnt(0)
L_role_b:
    s_barrier
    s_cmp_lg_u32 s%d, 0
    s_cbranch_scc1 L_key_done
    v_lshlrev_b32 v104, 2, v%d
    v_add_u32 v107, %d, v104
    ds_read_b32 v105, v107
    s_lshr_b32 s59, s56, 3
    s_lshl_b32 s59, s59, 5             ; first row of the workgroup * 4  (row0 = 8*k + 0 for wave 0)
    v_add_u32 v104, s59, v104
    v_mov_b32 v106, 0x40000000
    v_cmp_gt_u32 vcc, 8, v%d
    s_waitcnt lgkmcnt(0)
    s_nop 0
    v_cndmask_b32 v104, v106, v104, vcc
    buffer_store_dword v105, v104, s[96:99], 0 offen sc1
L_key_done:
''' % (S_W, L, KEYL, L))
    if o.stamps: dump_stamps(p, o, 'A')
    p('s_cmp_ge_u32 s2, 84')
    p('s_cbranch_scc1 L_st_end_k34')
    ksmall.moe_main(p, S_W, L, VEC)
    p('L_st_end_k34:')
    return p

GOFF = 43

def a2rare():
    p = Prog()
    p('''
L_a2rare:
    buffer_load_dword v251, v250, s[88:91], 0 offen offset:64 sc1
    s_waitcnt vmcnt(0)
    v_readfirstlane_b32 s59, v251
    s_cmp_eq_u32 s59, 112
    s_cbranch_scc1 L_a2ok
    s_sleep 8
    s_branch L_a2rare
''')
    return p

def expand_stamps(p, o):
    q = Prog()
    for i in p.ins:
        if i.text.startswith(';STAMP'):
            stamp(q, o, i.text.split()[1])
        elif i.text.startswith(';ZEROCNT'):
            q('''
    s_cmp_lg_u32 s2, 0
    s_cbranch_scc1 L_nozero
    v_lshlrev_b32 v166, 7, v%d
    v_add_u32 v166, %d, v166
    v_mov_b32 v167, 0x40000000
    v_cmp_gt_u32 vcc, 40, v%d
    s_nop 1
    v_cndmask_b32 v166, v167, v166, vcc
    v_mov_b32 v167, 0
    buffer_store_dword v167, v166, s[24:27], 0 offen sc1
L_nozero:
''' % (VLANE, WS_CNT, VLANE))
            if o.one:
                q('''
    v_mov_b32 v156, -1
    v_mov_b32 v157, -1
    v_mov_b32 v158, -1
    v_mov_b32 v159, -1
    v_lshlrev_b32 v166, 4, v%d
    s_lshl_b32 s60, s2, 9
    s_add_u32 s60, s60, %d
    v_add_u32 v160, s60, v166
    v_mov_b32 v167, 0x40000000
    v_cmp_gt_u32 vcc, 32, v%d
    s_lshl_b32 s60, s2, 8
    s_add_u32 s60, s60, %d
    v_cndmask_b32 v160, v167, v160, vcc
    v_add_u32 v161, s60, v166
    v_cmp_gt_u32 vcc, 16, v%d
    buffer_store_dwordx4 v[156:159], v160, s[24:27], 0 offen sc1
    s_cmp_ge_u32 s2, 32
    s_cbranch_scc1 L_nokeyfill
    v_cndmask_b32 v161, v167, v161, vcc
    buffer_store_dwordx4 v[156:159], v161, s[24:27], 0 offen sc1
L_nokeyfill:
''' % (VLANE, WS_ACT, VLANE, WS_R, VLANE))
        else: q.ins.append(i)
    return q

def dump_stamps(p, o, tag):
    p('s_waitcnt vmcnt(0)')
    stamp(p, o, 'end')
    p('s_waitcnt lgkmcnt(0)')
    p('''
    s_lshl_b32 s60, s2, 2
    s_add_u32 s60, s60, s%d
    s_lshl_b32 s60, s60, 6
    s_add_u32 s60, s60, 0x%x
    v_mov_b32 v201, s60
''' % (S_W, WS_STAMP))
    for k in range(8):
        p('v_mov_b32 v%d, s%d' % (202 + k, S_STAMP + 2 * k))
    p('''
    v_cmp_eq_u32 vcc, 0, v%d
    s_and_saveexec_b64 s[60:61], vcc
    s_cbranch_execz L_nostamp%s
    buffer_store_dwordx4 v[202:205], v201, s[24:27], 0 offen
    buffer_store_dwordx4 v[206:209], v201, s[24:27], 0 offen offset:16
L_nostamp%s:
    s_mov_b64 exec, s[60:61]
''' % (VLANE, tag, tag))

def build_k1(o):
    p = Prog()
    p('k1_kernel:')
    pro, vm, VQ, VA = prologue(o)
    p.extend(expand_stamps(pro, o))
    p.extend(kv_addresses(o))
    qp = qproj(o, vm, VQ, VA)
    w, _ = insert_waits(qp.ins)
    p.extend(w)
    stamp(p, o, 'qproj')
    p.extend(qexchange(o, vm))
    stamp(p, o, 'qexch')
    if getattr(o, 'dump', '') == 'q':
        p('''
    s_lshl_b32 s60, s2, 2
    s_add_u32 s60, s60, s%d
    s_lshl_b32 s60, s60, 15
    s_add_u32 s60, s60, 0x2000000
    v_lshlrev_b32 v200, 4, v%d
    v_add_u32 v200, s60, v200
''' % (S_W, VLANE))
        for n in range(32):
            if n % 4 == 0 and n: p('v_add_u32 v200, 0x1000, v200')
            p('buffer_store_dwordx4 %s, v200, s[24:27], 0 offen offset:%d' % (vr(4 * n, 4), (n % 4) * 1024))
        p('s_waitcnt vmcnt(0)')
    p.extend(attn_prologue(o))
    stamp(p, o, 'attnpro')
    if o.stamps: p('s_waitcnt lgkmcnt(0)')
    lp, first, loop_ins, tail = attn_loop(o)
    p.extend(lp)
    stamp(p, o, 'loop')
    if getattr(o, 'dump', '') == 'o':
        p('s_nop 7')
        p('''
    s_lshl_b32 s60, s2, 18
    s_lshl_b32 s61, s%d, 16
    s_add_u32 s60, s60, s61
    s_add_u32 s60, s60, 0x2000000
    v_lshlrev_b32 v210, 4, v%d
    v_add_u32 v210, s60, v210
''' % (S_W, VLANE))
        for r4 in range(64):
            if r4 % 4 == 0 and r4: p('v_add_u32 v210, 0x1000, v210')
            p('buffer_store_dwordx4 %s, v210, s[24:27], 0 offen offset:%d' % (ar(4 * r4, 4), (r4 % 4) * 1024))
        p('''
    s_lshl_b32 s60, s2, 2
    s_add_u32 s60, s60, s%d
    s_lshl_b32 s60, s60, 11
    s_add_u32 s60, s60, 0x8000000
    v_lshlrev_b32 v210, 2, v%d
    v_add_u32 v210, s60, v210
''' % (S_W, VLANE))
        for b in range(4):
            p('buffer_store_dword v%d, v210, s[24:27], 0 offen offset:%d' % (NEGM + 4 * b, 256 * b))
            p('buffer_store_dword v%d, v210, s[24:27], 0 offen offset:%d' % (LREG[1] + b, 1024 + 256 * b))
        p('s_waitcnt vmcnt(0)')
    p.extend(epilogue(o))
    if o.stamps and not o.one:
        stamp(p, o, 'k2m')
        dump_stamps(p, o, '')
    if o.stamps and o.one:
        p('s_waitcnt vmcnt(0)')
        p('s_memrealtime s[72:73]')
        p('s_waitcnt lgkmcnt(0)')
        p('''
    s_lshl_b32 s60, s2, 5
    s_add_u32 s60, s60, 0xb030000
    v_mov_b32 v1, s60
    v_mov_b32 v2, s72
    v_mov_b32 v3, s72
    v_cmp_eq_u32 vcc, 0, v%d
    s_and_saveexec_b64 s[60:61], vcc
    s_cbranch_execz L_nostamp2
    buffer_store_dwordx2 v[2:3], v1, s[24:27], 0 offen
L_nostamp2:
    s_mov_b64 exec, s[60:61]
''' % VLANE)
    p('s_waitcnt vmcnt(0)')
    p('L_end_k1:')
    p('s_endpgm')
    for tag, par in (('f', 0), ('a', 1), ('b', 0), ('c', 1), ('d', 0)):
        p('L_rare_%s:' % tag)
        p('s_call_b64 s[%d:%d], L_fb_%d' % (S_RET, S_RET + 1, par))
        p('s_branch L_back_%s' % tag)
    p.extend(a2rare())
    p.extend(A.fallback(o, 0))
    p.extend(A.fallback(o, 1))
    probs = check_hazards(first + loop_ins + loop_ins + tail, 'loop') + check_hazards(p.ins, 'all')
    return p, probs

KD = '''
.amdhsa_kernel %s
  .amdhsa_next_free_vgpr %d
  .amdhsa_next_free_sgpr %d
  .amdhsa_accum_offset %d
  .amdhsa_group_segment_fixed_size 0
  .amdhsa_kernarg_size 120
  .amdhsa_user_sgpr_count 2
  .amdhsa_user_sgpr_kernarg_segment_ptr 1
  .amdhsa_system_sgpr_workgroup_id_x 1
  .amdhsa_float_denorm_mode_32 3
.end_amdhsa_kernel
'''

if __name__ == '__main__':
    import sys
    o = A.Opt()
    o.kgap = 1
    o.dma_gaps = [3, 7, 11, 15, 19, 23, 27, 31, 35, 39, 43, 47, 51, 55, 59, 63]
    o.stamps = 1; o.pf = 1; o.pfd = 4; o.pfmoe = 1; o.pf_kv_early = 0; o.late_dma = 0; o.qcvt = 1; o.fuse_k2 = 1; o.kdma_late = 0; o.one = 1; o.part_flags = ' sc1'
    out = sys.argv[1]
    for kv in sys.argv[2:]:
        k, v = kv.split('=')
        try: v = int(v, 0)
        except ValueError:
            if v.startswith('['): v = eval(v)
        setattr(o, k, v)
    p, probs = build_k1(o)
    for pr in probs[:20]: print(pr)
    print('hazards', len(probs), 'instrs', len(p.ins))
    hdr = '''; @launch kernel=k1_kernel grid=(256,1,1) block=(256,1,1) lds=163840
.amdgcn_target "amdgcn-amd-amdhsa--gfx950"
.text
.globl k1_kernel
.p2align 8
.type k1_kernel,@function
'''
    ftr = '.section .rodata,"a"\n.p2align 6' + KD % ('k1_kernel', 512, 102, 256)
    open(out, 'w').write(hdr + p.text() + ftr)
```

```python
from asmlib import *
from k1 import WS_CNT, WS_MOD, WS_R, WS_IDX, WS_ACT, WS_H2, WS_PART, xreduce
def vr(a, n=1): return 'v%d' % a if n == 1 else 'v[%d:%d]' % (a, a + n - 1)

def srd(p, s, ptr_lo, nbytes, off=None):
    if off is None:
        if s != ptr_lo:
            p('s_mov_b32 s%d, s%d' % (s, ptr_lo)); p('s_mov_b32 s%d, s%d' % (s + 1, ptr_lo + 1))
    else:
        p('s_add_u32 s%d, s%d, %s' % (s, ptr_lo, off)); p('s_addc_u32 s%d, s%d, 0' % (s + 1, ptr_lo + 1))
    p('s_mov_b32 s%d, %s' % (s + 2, nbytes)); p('s_mov_b32 s%d, 0x20000' % (s + 3))

def wave_reduce(p, r, t, op='v_add_f32'):
    for k in (1, 2, 4, 8):
        p('s_nop 1')
        p('%s_dpp v%d, v%d, v%d row_ror:%d row_mask:0xf bank_mask:0xf' % (op, r, r, r, k))
    p('s_nop 0')
    xreduce(p, r, t, op)

def wave_reduce_multi(p, regs, temps, op='v_add_f32'):
    for k in (1, 2, 4, 8):
        if len(regs) < 3: p('s_nop %d' % (2 - len(regs)))
        for r in regs:
            p('%s_dpp v%d, v%d, v%d row_ror:%d row_mask:0xf bank_mask:0xf' % (op, r, r, r, k))
    for sw in ('v_permlane16_swap_b32', 'v_permlane32_swap_b32'):
        p('s_nop 0')
        for r, t in zip(regs, temps): p('v_mov_b32 v%d, v%d' % (t, r))
        p('s_nop 1')
        for r, t in zip(regs, temps): p('%s v%d, v%d' % (sw, r, t))
        p('s_nop 1')
        for r, t in zip(regs, temps): p('%s v%d, v%d, v%d' % (op, r, r, t))

def build_k0():
    p = Prog()
    p('''
k0_kernel:
    s_cmp_ge_u32 s2, 42
    s_cbranch_scc1 L_end_k0
    s_load_dwordx4 s[4:7], s[0:1], 80
    s_load_dwordx2 s[24:25], s[0:1], 112
    v_and_b32 v1, 7, v0            ; cc
    v_lshrrev_b32 v2, 3, v0        ; kg 0..31
    s_waitcnt lgkmcnt(0)
''')
    srd(p, 8, 4, 896)
    srd(p, 12, 6, 448 * 5376)
    srd(p, 24, 24, 10752)
    p('''
    v_mul_u32_u24 v3, 5376, v2
    v_lshl_add_u32 v3, v1, 4, v3
    s_lshl_b32 s16, s2, 7
    v_add_u32 v3, s16, v3
    v_lshlrev_b32 v4, 1, v2        ; c offset
''')
    for i in range(14):
        p('buffer_load_ushort v%d, v4, s[8:11], 0 offen offset:%d' % (10 + i, 64 * i))
    p('s_mov_b32 s17, %d' % (32 * 5376))
    for i in range(14):
        p('buffer_load_dwordx4 %s, v3, s[12:15], 0 offen' % vr(32 + 4 * i, 4))
        if i < 13: p('v_add_u32 v3, s17, v3')
    p('s_waitcnt vmcnt(14)')
    for i in range(14):
        p('v_lshlrev_b32 v%d, 16, v%d' % (10 + i, 10 + i))
    for i in range(14):
        p('v_mul_f32 v%d, 0xbfb8aa3b, v%d' % (96 + i, 10 + i))
    for i in range(14):
        p('v_exp_f32 v%d, v%d' % (96 + i, 96 + i))
    for i in range(14):
        p('v_add_f32 v%d, 1.0, v%d' % (96 + i, 96 + i))
    for i in range(14):
        p('v_rcp_f32 v%d, v%d' % (96 + i, 96 + i))
    for i in range(14):
        p('v_mul_f32 v%d, v%d, v%d' % (10 + i, 10 + i, 96 + i))
    for i in range(14):
        p('v_cvt_pk_bf16_f32 v%d, v%d, 0' % (10 + i, 10 + i))
    for i in range(14):
        p('v_lshlrev_b32 v%d, 16, v%d' % (96 + i, 10 + i))
    for j in range(8): p('v_mov_b32 v%d, 0' % (112 + j))
    p('s_waitcnt vmcnt(0)')
    for i in range(14):
        for j in range(8):
            w = 32 + 4 * i + j // 2
            sel = (10 + i) if j % 2 == 0 else (96 + i)
            p('v_dot2_f32_bf16 v%d, v%d, v%d, v%d' % (112 + j, w, sel, 112 + j))
    p('s_nop 2')
    regs = [112 + j for j in range(8)]; temps = [120 + j for j in range(8)]
    for r in regs:
        p('v_add_f32_dpp v%d, v%d, v%d row_ror:8 row_mask:0xf bank_mask:0xf' % (r, r, r))
    for sw in ('v_permlane16_swap_b32', 'v_permlane32_swap_b32'):
        for r, t in zip(regs, temps): p('v_mov_b32 v%d, v%d' % (t, r))
        p('s_nop 1')
        for r, t in zip(regs, temps): p('%s v%d, v%d' % (sw, r, t))
        p('s_nop 1')
        for r, t in zip(regs, temps): p('v_add_f32 v%d, v%d, v%d' % (r, r, t))
    p('''
    v_lshrrev_b32 v5, 6, v0
    v_lshlrev_b32 v5, 8, v5
    v_lshl_add_u32 v5, v1, 5, v5
    ds_write_b128 v5, v[112:115]
    ds_write_b128 v5, v[116:119] offset:16
    s_waitcnt lgkmcnt(0)
    s_barrier
    v_cmp_gt_u32 vcc, 64, v0
    s_and_saveexec_b64 s[18:19], vcc
    s_cbranch_execz L_k0_done
    v_lshlrev_b32 v5, 2, v0
    ds_read_b32 v6, v5
    ds_read_b32 v7, v5 offset:256
    ds_read_b32 v8, v5 offset:512
    ds_read_b32 v9, v5 offset:768
    s_waitcnt lgkmcnt(0)
    v_add_f32 v6, v6, v7
    v_add_f32 v8, v8, v9
    v_add_f32 v6, v6, v8
    v_cvt_pk_bf16_f32 v6, v6, 0
    v_lshlrev_b32 v6, 16, v6
    s_mul_i32 s20, s2, 37
    s_lshr_b32 s20, s20, 8
    s_cmp_eq_u32 s20, 1
    s_cselect_b32 s21, 1, 0
    s_cmp_eq_u32 s20, 4
    s_cselect_b32 s21, 1, s21
    s_cmp_eq_u32 s21, 0
    s_cbranch_scc1 L_k0_store
    v_add_f32 v6, 1.0, v6
    v_cvt_pk_bf16_f32 v6, v6, 0
    v_lshlrev_b32 v6, 16, v6
L_k0_store:
    s_lshl_b32 s16, s2, 8
    v_add_u32 v5, s16, v5
    buffer_store_dword v6, v5, s[24:27], 0 offen
L_k0_done:
    s_mov_b64 exec, s[18:19]
    s_waitcnt vmcnt(0)
L_end_k0:
    s_endpgm
''')
    return p

PF_MOE = True
def build_k2():
    p = Prog()
    p('''
k2_kernel:
    s_cmp_ge_u32 s2, 256
    s_cbranch_scc1 L_end_k2
    s_load_dwordx2 s[4:5], s[0:1], 0
    s_load_dwordx2 s[6:7], s[0:1], 48
    s_load_dwordx2 s[28:29], s[0:1], 96
    s_load_dwordx2 s[24:25], s[0:1], 112
    s_load_dwordx4 s[44:47], s[0:1], 56
    s_load_dwordx2 s[48:49], s[0:1], 72
    v_and_b32 v1, 63, v0
    v_lshrrev_b32 v2, 6, v0
    s_nop 0
    v_readfirstlane_b32 s3, v2
    s_lshl_b32 s41, s2, 3
    s_lshl_b32 s42, s3, 1
    s_add_u32 s41, s41, s42
    s_mul_i32 s42, s41, 896
    s_waitcnt lgkmcnt(0)
''')
    srd(p, 8, 4, 2048 * 896)
    srd(p, 12, 6, 896)
    srd(p, 16, 24, 8 * 2048 * 896, str(WS_PART))
    srd(p, 20, 24, 2048 * 896, str(WS_H2))
    srd(p, 32, 24, 10752)
    srd(p, 36, 24, 8192, str(WS_R))
    srd(p, 28, 28, 2048 * 896)
    p('''
    v_lshlrev_b32 v3, 4, v1            ; lane*16
    v_lshlrev_b32 v4, 5, v1
    v_mov_b32 v5, 0x40000000
    v_cmp_gt_u32 vcc, 56, v1
    s_nop 1
    v_cndmask_b32 v3, v5, v3, vcc
    v_cndmask_b32 v4, v5, v4, vcc
    v_cndmask_b32 v6, 0, 1.0, vcc
    v_add_u32 v7, s42, v3
''')
    for rr in range(2):
        for g in range(8):
            p('s_mov_b32 s40, %d' % (g * 2048 * 896 + rr * 896) if not (g == 0 and rr == 0) else 's_mov_b32 s40, 0')
            p('buffer_load_dwordx4 %s, v7, s[16:19], s40 offen' % vr(16 + rr * 40 + 4 * g, 4))
        p('buffer_load_dwordx4 %s, v7, s[8:11], 0 offen offset:%d' % (vr(16 + rr * 40 + 32, 4), rr * 896))
    for k, seg in enumerate((2, 3, 4, 5)):
        p('s_mov_b32 s40, %d' % (seg * 1792))
        p('buffer_load_dwordx4 %s, v4, s[32:35], s40 offen' % vr(96 + 8 * k, 4))
        p('buffer_load_dwordx4 %s, v4, s[32:35], s40 offen offset:16' % vr(100 + 8 * k, 4))
    p('buffer_load_dwordx4 v[128:131], v3, s[12:15], 0 offen')
    p('v_mov_b32 v8, 0x00003f80')
    p('v_mov_b32 v9, 0x3f800000')
    ACC = [136, 152]
    for rr in range(2):
        for j in range(8): p('v_mov_b32 v%d, 0' % (ACC[rr] + j))
    for rr in range(2):
        p('s_waitcnt vmcnt(%d)' % (9 + 1 + (9 if rr == 0 else 0)))
        for g in range(8):
            for j in range(8):
                p('v_dot2_f32_bf16 v%d, v%d, v%d, v%d' % (ACC[rr] + j, 16 + rr * 40 + 4 * g + j // 2, 8 + j % 2, ACC[rr] + j))
    p('s_waitcnt vmcnt(0)')
    p(';ST 0')
    if PF_MOE:
        p('''
    s_and_b32 s50, s2, 7               ; x
    s_lshr_b32 s51, s2, 3              ; i
    v_min_u32 v210, 55, v1
    s_cmp_ge_u32 s3, 2
    s_cbranch_scc1 L_k2_pfdown
    s_mul_i32 s52, s50, 448
    s_lshr_b32 s52, s52, 7
    s_mul_i32 s53, s51, 14
    v_lshrrev_b32 v211, 2, v210
    v_add_u32 v211, s53, v211
    v_mul_u32_u24 v211, 3584, v211
    v_and_b32 v212, 3, v210
    v_add_u32 v212, s52, v212
    v_lshl_add_u32 v211, v212, 7, v211
    s_cmp_eq_u32 s3, 0
    s_cselect_b32 s54, s44, s46
    s_cselect_b32 s55, s45, s47
    global_load_dword v213, v211, s[54:55]
    s_branch L_k2_pfdone
L_k2_pfdown:
    s_lshl_b32 s52, s50, 7             ; x<4: byte 128x
    s_mul_i32 s53, s50, 96
    s_add_u32 s53, s53, 128            ; x>=4: 512 + 96(x-4) = 96x + 128
    s_cmp_lt_u32 s50, 4
    s_cselect_b32 s52, s52, s53
    s_and_b32 s53, s3, 1
    s_mul_i32 s53, s53, 95
    s_add_u32 s52, s52, s53
    s_and_b32 s52, s52, 0xffffff80
    s_mul_i32 s53, s51, 56
    v_add_u32 v211, s53, v210
    v_mul_u32_u24 v211, 896, v211
    v_add_u32 v211, s52, v211
    global_load_dword v213, v211, s[48:49]
L_k2_pfdone:
''')
    X1 = [168, 184]
    for rr in range(2):
        xr = 16 + rr * 40 + 32
        for j in range(8):
            p('v_mul_f32 v%d, v%d, v%d' % (ACC[rr] + j, ACC[rr] + j, 96 + j))
        for j in range(8):
            p('v_dot2_f32_bf16 v%d, v%d, v%d, v%d' % (ACC[rr] + j, xr + j // 2, 8 + j % 2, ACC[rr] + j))
    p('s_nop 2')
    for rr in range(2):
        for j in range(0, 8, 2):
            p('v_cvt_pk_bf16_f32 v%d, v%d, v%d' % (200 + rr * 4 + j // 2, ACC[rr] + j, ACC[rr] + j + 1))
    for rr in range(2):
        for j in range(8):
            if j % 2 == 0: p('v_lshlrev_b32 v%d, 16, v%d' % (X1[rr] + j, 200 + rr * 4 + j // 2))
            else: p('v_and_b32 v%d, 0xffff0000, v%d' % (X1[rr] + j, 200 + rr * 4 + j // 2))
    SUM = [10, 11]
    for rr in range(2):
        p('v_add_f32 v%d, v%d, v%d' % (SUM[rr], X1[rr], X1[rr] + 1))
        for j in range(2, 8): p('v_add_f32 v%d, v%d, v%d' % (SUM[rr], SUM[rr], X1[rr] + j))
    wave_reduce_multi(p, SUM, [12, 13])
    XC = [16, 32]
    for rr in range(2):
        p('v_mul_f32 v%d, 0xbb124925, v%d' % (SUM[rr], SUM[rr]))
    for rr in range(2):
        for j in range(8):
            p('v_add_f32 v%d, v%d, v%d' % (XC[rr] + j, X1[rr] + j, SUM[rr]))
    VAR = [12, 13]
    for rr in range(2):
        p('v_mul_f32 v%d, v%d, v%d' % (VAR[rr], XC[rr], XC[rr]))
        for j in range(1, 8): p('v_fmac_f32 v%d, v%d, v%d' % (VAR[rr], XC[rr] + j, XC[rr] + j))
    for rr in range(2):
        p('v_mul_f32 v%d, v%d, v6' % (VAR[rr], VAR[rr]))
    wave_reduce_multi(p, VAR, [14, 15])
    for rr in range(2):
        p('v_mov_b32 v%d, 0x3727c5ac' % (14 + rr))
        p('v_fmac_f32 v%d, 0x3b124925, v%d' % (14 + rr, VAR[rr]))
    for rr in range(2):
        p('v_rsq_f32 v%d, v%d' % (VAR[rr], 14 + rr))
    p('s_nop 0')
    H = [48, 64]
    for rr in range(2):
        for j in range(8):
            p('v_mul_f32 v%d, v%d, v%d' % (XC[rr] + j, XC[rr] + j, VAR[rr]))
        for j in range(8):
            p('v_fma_f32 v%d, v%d, v%d, v%d' % (XC[rr] + j, XC[rr] + j, 112 + j, 104 + j))
        for j in range(0, 8, 2):
            p('v_cvt_pk_bf16_f32 v%d, v%d, v%d' % (H[rr] + j // 2, XC[rr] + j, XC[rr] + j + 1))
    p(';ST 1')
    for rr in range(2):
        p('buffer_store_dwordx4 %s, v7, s[20:23], 0 offen offset:%d' % (vr(H[rr], 4), rr * 896))
    RR = [14, 15]
    for rr in range(2):
        p('v_mov_b32 v%d, 0' % RR[rr])
    for j in range(4):
        for rr in range(2):
            p('v_dot2_f32_bf16 v%d, v%d, v%d, v%d' % (RR[rr], H[rr] + j, 128 + j, RR[rr]))
    for rr in range(2):
        for j in range(8):
            if j % 2 == 0: p('v_lshlrev_b32 v%d, 16, v%d' % (XC[rr] + j, H[rr] + j // 2))
            else: p('v_and_b32 v%d, 0xffff0000, v%d' % (XC[rr] + j, H[rr] + j // 2))
        for j in range(8):
            p('v_fma_f32 v%d, v%d, v%d, v%d' % (XC[rr] + j, XC[rr] + j, 120 + j, X1[rr] + j))
        for j in range(0, 8, 2):
            p('v_cvt_pk_bf16_f32 v%d, v%d, v%d' % (80 + rr * 4 + j // 2, XC[rr] + j, XC[rr] + j + 1))
        p('buffer_store_dwordx4 %s, v7, s[28:31], 0 offen offset:%d' % (vr(80 + rr * 4, 4), rr * 896))
    wave_reduce_multi(p, RR, [12, 13])
    p('''
    v_cvt_pk_bf16_f32 v14, v14, 0
    v_cvt_pk_bf16_f32 v15, v15, 0
    v_lshlrev_b32 v14, 16, v14
    v_lshlrev_b32 v15, 16, v15
    v_cmp_eq_u32 vcc, 1, v1
    s_nop 1
    v_cndmask_b32 v14, v14, v15, vcc
    v_add_u32 v2, s41, v1
    v_lshlrev_b32 v2, 2, v2
    v_cmp_gt_u32 vcc, 2, v1
    s_nop 1
    v_cndmask_b32 v2, v5, v2, vcc
    buffer_store_dword v14, v2, s[36:39], 0 offen
    s_waitcnt vmcnt(0)
L_end_k2:
    s_endpgm
''')
    return p

def sort8(p, K, T):
    net = [(0,1),(2,3),(4,5),(6,7),(0,2),(1,3),(4,6),(5,7),(1,2),(5,6),(0,4),(3,7),(1,5),(2,6),(1,4),(3,6),(2,4),(3,5),(3,4)]
    for a_, b_ in net:
        p('v_max_u32 v%d, v%d, v%d' % (T, K + a_, K + b_))
        p('v_min_u32 v%d, v%d, v%d' % (K + b_, K + a_, K + b_))
        p('v_mov_b32 v%d, v%d' % (K + a_, T))

def row_rounds(p, K, T, RES, MASK):
    pend = []
    for rnd in range(8):
        p('v_mov_b32 v%d, v%d' % (T, K))
        for k in (1, 2, 4, 8):
            fill = pend[:2]; pend = pend[2:]
            for x in fill: p(x)
            if len(fill) < 2: p('s_nop %d' % (1 - len(fill)))
            p('v_max_u32_dpp v%d, v%d, v%d row_ror:%d row_mask:0xf bank_mask:0xf' % (T, T, T, k))
        for x in pend: p(x)
        pend = []
        p('v_cndmask_b32_e64 v%d, v%d, v%d, s[%d:%d]' % (RES, RES, T, MASK + 2 * rnd, MASK + 2 * rnd + 1))
        if rnd < 7:
            p('v_cmp_eq_u32 vcc, v%d, v%d' % (K, T))
            p('s_nop 1')
            sh = ['v_cndmask_b32 v%d, v%d, v%d, vcc' % (K + j, K + j, K + j + 1) for j in range(7 - rnd)]
            p(sh[0])
            pend = sh[1:]

def top8(p, KEY, T):
    RES = T + 1
    p('v_and_b32 v%d, 7, v1' % T)
    for i in range(8):
        p('v_cmp_eq_u32 s[%d:%d], %d, v%d' % (64 + 2 * i, 65 + 2 * i, i, T))
    sort8(p, KEY, T)
    p('v_mov_b32 v%d, 0' % RES)
    row_rounds(p, KEY, T, RES, 64)
    p('v_lshrrev_b32 v%d, 4, v0' % T)
    p('v_lshlrev_b32 v%d, 5, v%d' % (T, T))
    p('v_and_b32 v%d, 7, v1' % (T + 2))
    p('v_lshl_add_u32 v%d, v%d, 2, v%d' % (T, T + 2, T))
    p('ds_write_b32 v%d, v%d offset:%d' % (T, RES, TOPK_LDS))
    p('s_waitcnt lgkmcnt(0)')
    p('s_barrier')
    p('v_and_b32 v%d, 15, v1' % T)
    p('v_lshlrev_b32 v%d, 5, v%d' % (T, T))
    p('ds_read_b128 %s, v%d offset:%d' % (vr(KEY, 4), T, TOPK_LDS))
    p('ds_read_b128 %s, v%d offset:%d' % (vr(KEY + 4, 4), T, TOPK_LDS + 16))
    p('v_mov_b32 v%d, 0' % RES)
    p('s_waitcnt lgkmcnt(0)')
    row_rounds(p, KEY, T, RES, 64)

TOPK_LDS = 57344

def wstage(p, srd_, voff, nsteps, lds_sgpr):
    p('s_mov_b32 s44, 0')
    for i in range(nsteps):
        p('s_add_u32 m0, s%d, %d' % (lds_sgpr, i * 1024))
        p('s_nop 0')
        p('buffer_load_dwordx4 v%d, s[%d:%d], s44 offen lds' % (voff, srd_, srd_ + 3))
        if i + 1 < nsteps: p('s_add_u32 s44, s44, s45')

def tr_frags(p, addr, dst, nsteps):
    for i in range(nsteps):
        p('ds_read_b64_tr_b16 %s, v%d offset:%d' % (vr(dst + 4 * i, 2), addr, i * 1024))
        p('ds_read_b64_tr_b16 %s, v%d offset:%d' % (vr(dst + 4 * i + 2, 2), addr, i * 1024 + 128))

def build_k3():
    p = Prog()
    p('''
k3_kernel:
    s_cmp_ge_u32 s2, 56
    s_cbranch_scc1 L_end_k3
    s_load_dwordx4 s[4:7], s[0:1], 56
    s_load_dwordx2 s[24:25], s[0:1], 112
    v_and_b32 v1, 63, v0
    v_lshrrev_b32 v2, 6, v0
    s_nop 0
    v_readfirstlane_b32 s3, v2
    s_waitcnt lgkmcnt(0)
    s_cmp_ge_u32 s3, 2
    s_cselect_b32 s4, s6, s4
    s_cselect_b32 s5, s7, s5
''')
    srd(p, 8, 4, 448 * 3584)
    srd(p, 12, 24, 8192, str(WS_R))
    srd(p, 16, 24, 2048 * 896, str(WS_H2))
    srd(p, 20, 24, 28672, str(WS_ACT))
    srd(p, 28, 24, 64, str(WS_IDX))
    p('''
    s_and_b32 s40, s2, 7
    s_mul_i32 s40, s40, 7
    s_lshr_b32 s41, s2, 3
    s_add_u32 s40, s40, s41           ; column block = (wg&7)*7 + (wg>>3): neighbours share an XCD (speed only)
    s_lshl_b32 s40, s40, 6
    s_and_b32 s41, s3, 1
    s_lshl_b32 s41, s41, 5
    s_add_u32 s40, s40, s41
    v_lshrrev_b32 v3, 1, v1
    v_mul_u32_u24 v3, 3584, v3
    v_and_b32 v4, 1, v1
    v_lshl_add_u32 v3, v4, 4, v3
    v_add_u32 v3, s40, v3
    s_mov_b32 s45, %d
    s_mul_i32 s46, s3, 14336
''' % (32 * 3584))
    p('v_lshlrev_b32 v5, 5, v0')
    p('buffer_load_dwordx4 v[8:11], v5, s[12:15], 0 offen')
    p('buffer_load_dwordx4 v[12:15], v5, s[12:15], 0 offen offset:16')
    wstage(p, 8, 3, 14, 46)
    p('v_lshlrev_b32 v6, 3, v0')
    p('v_sub_u32 v6, 2047, v6')
    p('s_waitcnt vmcnt(14)')
    p(';ST 0')
    for j in range(8):
        k = 8 + j
        p('v_ashrrev_i32 v16, 31, v%d' % k)
        p('v_or_b32 v16, 0x80000000, v16')
        p('v_xor_b32 v%d, v%d, v16' % (k, k))
        p('v_and_b32 v%d, 0xffff0000, v%d' % (k, k))
        p('v_subrev_u32 v17, %d, v6' % j)
        p('v_or_b32 v%d, v%d, v17' % (k, k))
    top8(p, 8, 16)
    p(';ST 1')
    p('v_and_b32 v20, 0xffff, v17')
    p('v_sub_u32 v20, 2047, v20')
    p('''
    v_mul_u32_u24 v22, 896, v20
    v_lshrrev_b32 v23, 4, v1
    v_lshl_add_u32 v22, v23, 4, v22
''')
    for i in range(14):
        p('buffer_load_dwordx4 %s, v22, s[16:19], 0 offen offset:%d' % (vr(32 + 4 * i, 4), 64 * i))
    p('''
    s_or_b32 s47, s2, s3
    s_cmp_lg_u32 s47, 0
    s_cbranch_scc1 L_k3_nopub
    v_mov_b32 v24, v17
    v_and_b32 v24, 0xffff0000, v24
    v_ashrrev_i32 v25, 31, v24
    v_not_b32 v25, v25
    v_or_b32 v25, 0x80000000, v25
    v_xor_b32 v24, v24, v25
    v_and_b32 v24, 0xffff0000, v24
    v_mul_f32 v25, 0xbfb8aa3b, v24
    v_exp_f32 v25, v25
    s_nop 0
    v_add_f32 v25, 1.0, v25
    v_rcp_f32 v25, v25
    s_nop 0
    v_cvt_pk_bf16_f32 v25, v25, 0
    v_lshlrev_b32 v25, 16, v25
    v_lshlrev_b32 v26, 2, v1
    v_cmp_gt_u32 vcc, 8, v1
    v_mov_b32 v27, 0x40000000
    s_nop 0
    v_cndmask_b32 v26, v27, v26, vcc
    buffer_store_dword v20, v26, s[28:31], 0 offen
    buffer_store_dword v25, v26, s[28:31], 0 offen offset:32
L_k3_nopub:
''')
    p('''
    v_lshrrev_b32 v28, 4, v1            ; kq
    v_lshlrev_b32 v28, 3, v28           ; 8 kq
    v_bfe_u32 v29, v1, 2, 2             ; r
    v_add_u32 v28, v28, v29
    v_lshlrev_b32 v28, 5, v28           ; row*32
    v_and_b32 v29, 3, v1
    v_lshl_add_u32 v28, v29, 3, v28
    v_add_u32 v28, s46, v28
    s_waitcnt vmcnt(14)
''')
    p(';ST 2')
    tr_frags(p, 28, 96, 14)
    p('s_waitcnt vmcnt(0) lgkmcnt(0)')
    p(';ST 3')
    for i in range(14):
        c = '0' if i == 0 else 'v[160:163]'
        p('v_mfma_f32_16x16x32_bf16 v[160:163], %s, %s, %s' % (vr(32 + 4 * i, 4), vr(96 + 4 * i, 4), c))
    p('s_nop 7')
    p('v_cvt_pk_bf16_f32 v164, v160, v161')
    p('v_cvt_pk_bf16_f32 v165, v162, v163')
    p('''
    v_lshlrev_b32 v160, 16, v164
    v_and_b32 v161, 0xffff0000, v164
    v_lshlrev_b32 v162, 16, v165
    v_and_b32 v163, 0xffff0000, v165
    s_cmp_ge_u32 s3, 2
    s_cbranch_scc1 L_k3_up
''')
    for r in range(4): p('v_mul_f32 v%d, 0xbfb8aa3b, v%d' % (166 + r, 160 + r))
    for r in range(4): p('v_exp_f32 v%d, v%d' % (166 + r, 166 + r))
    for r in range(4): p('v_add_f32 v%d, 1.0, v%d' % (166 + r, 166 + r))
    for r in range(4): p('v_rcp_f32 v%d, v%d' % (166 + r, 166 + r))
    p('s_nop 0')
    for r in range(4): p('v_mul_f32 v%d, v%d, v%d' % (160 + r, 160 + r, 166 + r))
    p('v_cvt_pk_bf16_f32 v164, v160, v161')
    p('v_cvt_pk_bf16_f32 v165, v162, v163')
    p('''
    v_lshlrev_b32 v160, 16, v164
    v_and_b32 v161, 0xffff0000, v164
    v_lshlrev_b32 v162, 16, v165
    v_and_b32 v163, 0xffff0000, v165
L_k3_up:
    s_and_b32 s41, s3, 1
    s_lshl_b32 s41, s41, 10
    v_lshlrev_b32 v30, 4, v1
    v_add_u32 v30, s41, v30
    v_add_u32 v30, %d, v30
    s_cmp_ge_u32 s3, 2
    s_cbranch_scc0 L_k3_gate_wait
    ds_write_b128 v30, v[160:163]
L_k3_gate_wait:
    s_waitcnt lgkmcnt(0)
    s_barrier
    s_cmp_ge_u32 s3, 2
    s_cbranch_scc1 L_end_k3
    ds_read_b128 v[164:167], v30
    s_waitcnt lgkmcnt(0)
''' % (TOPK_LDS + 256))
    for r in range(4): p('v_mul_f32 v%d, v%d, v%d' % (160 + r, 160 + r, 164 + r))
    p('''
    v_cvt_pk_bf16_f32 v160, v160, v161
    v_cvt_pk_bf16_f32 v162, v162, v163
    v_lshrrev_b32 v23, 4, v1
    v_mul_u32_u24 v24, %d, v23          ; 4 rows * 3584 B
    v_and_b32 v25, 15, v1
    v_lshl_add_u32 v24, v25, 1, v24
    v_add_u32 v24, s40, v24
    v_mov_b32 v27, 0x40000000
    v_cmp_gt_u32 vcc, 32, v1
    s_nop 1
    v_cndmask_b32 v24, v27, v24, vcc
    buffer_store_short v160, v24, s[20:23], 0 offen
    buffer_store_short_d16_hi v160, v24, s[20:23], 0 offen offset:3584
    s_mov_b32 s41, 7168
    buffer_store_short v162, v24, s[20:23], s41 offen
    buffer_store_short_d16_hi v162, v24, s[20:23], s41 offen offset:3584
    s_waitcnt vmcnt(0)
L_end_k3:
    s_endpgm
''' % (4 * 3584))
    return p

def build_k4():
    p = Prog()
    p('''
k4_kernel:
    s_cmp_ge_u32 s2, 28
    s_cbranch_scc1 L_end_k4
    s_load_dwordx2 s[4:5], s[0:1], 72
    s_load_dwordx2 s[28:29], s[0:1], 96
    s_load_dwordx2 s[24:25], s[0:1], 112
    v_and_b32 v1, 63, v0
    v_lshrrev_b32 v2, 6, v0
    s_nop 0
    v_readfirstlane_b32 s3, v2
    s_waitcnt lgkmcnt(0)
''')
    p('s_mul_i32 s40, s3, %d' % (448 * 896))
    p('s_add_u32 s4, s4, s40'); p('s_addc_u32 s5, s5, 0')
    srd(p, 8, 4, 448 * 896)
    srd(p, 12, 24, 10752)
    srd(p, 16, 24, 64, str(WS_IDX))
    srd(p, 20, 24, 28672, str(WS_ACT))
    srd(p, 28, 28, 2048 * 896)
    p('''
    s_and_b32 s47, s2, 7
    s_lshr_b32 s41, s2, 3
    s_lshl_b32 s42, s47, 2
    s_mul_i32 s43, s47, 3
    s_add_u32 s43, s43, 4             ; 16 + (x-4)*3 = 3x + 4
    s_cmp_lt_u32 s47, 4
    s_cselect_b32 s47, s42, s43
    s_add_u32 s47, s47, s41           ; column block
    s_lshl_b32 s40, s47, 5              ; column byte offset
    v_lshrrev_b32 v3, 1, v1
    v_mul_u32_u24 v3, 896, v3
    v_and_b32 v4, 1, v1
    v_lshl_add_u32 v3, v4, 4, v3
    v_add_u32 v3, s40, v3
    s_mov_b32 s45, %d
    s_mul_i32 s46, s3, 14336
''' % (32 * 896))
    wstage(p, 8, 3, 14, 46)
    p(';ST 0')
    p('''
    v_and_b32 v4, 7, v1
    v_mul_u32_u24 v22, 3584, v4
    v_lshrrev_b32 v23, 4, v1
    v_lshl_add_u32 v22, v23, 4, v22
    s_mul_i32 s41, s3, 896
    v_add_u32 v22, s41, v22
''')
    for i in range(14):
        p('buffer_load_dwordx4 %s, v22, s[20:23], 0 offen offset:%d' % (vr(32 + 4 * i, 4), 64 * i))
    p('''
    v_lshrrev_b32 v23, 4, v1
    v_and_b32 v23, 1, v23
    v_lshlrev_b32 v24, 4, v23
    buffer_load_dwordx4 v[8:11], v24, s[16:19], 0 offen            ; idx[4kq..]
    buffer_load_dwordx4 v[12:15], v24, s[16:19], 0 offen offset:32 ; sig[4kq..]
    v_and_b32 v25, 15, v1
    v_lshlrev_b32 v26, 2, v25
    s_lshl_b32 s41, s47, 6
    v_add_u32 v26, s41, v26
    s_mov_b32 s42, 8960
    buffer_load_dword v16, v26, s[12:15], s42 offen                ; gb[col]
    v_lshrrev_b32 v28, 4, v1
    v_lshlrev_b32 v28, 3, v28
    v_bfe_u32 v29, v1, 2, 2
    v_add_u32 v28, v28, v29
    v_lshlrev_b32 v28, 5, v28
    v_and_b32 v29, 3, v1
    v_lshl_add_u32 v28, v29, 3, v28
    v_add_u32 v28, s46, v28
    s_waitcnt vmcnt(0)
''')
    p(';ST 1')
    for r in range(4):
        p('v_mul_u32_u24 v%d, 896, v%d' % (17 + r, 8 + r))
    p('v_lshlrev_b32 v25, 1, v25')
    p('v_add_u32 v25, s40, v25')
    for r in range(4):
        p('v_add_u32 v%d, v%d, v25' % (17 + r, 17 + r))
    for r in range(4):
        p('buffer_load_ushort v%d, v%d, s[28:31], 0 offen' % (100 + r, 17 + r))
    tr_frags(p, 28, 104, 14)
    p('s_waitcnt lgkmcnt(0)')
    p(';ST 2')
    for i in range(14):
        c = '0' if i == 0 else 'v[160:163]'
        p('v_mfma_f32_16x16x32_bf16 v[160:163], %s, %s, %s' % (vr(32 + 4 * i, 4), vr(104 + 4 * i, 4), c))
    p('s_nop 7')
    p('''
    v_lshlrev_b32 v30, 4, v1
    s_lshl_b32 s41, s3, 10
    v_add_u32 v30, s41, v30
    ds_write_b128 v30, v[160:163] offset:57344
    s_waitcnt lgkmcnt(0)
    s_barrier
    s_cmp_lg_u32 s3, 0
    s_cbranch_scc1 L_end_k4
    ds_read_b128 v[164:167], v30 offset:58368
    ds_read_b128 v[168:171], v30 offset:59392
    ds_read_b128 v[172:175], v30 offset:60416
    s_waitcnt vmcnt(0) lgkmcnt(0)
''')
    for r in range(4):
        p('v_add_f32 v%d, v%d, v%d' % (160 + r, 160 + r, 164 + r))
        p('v_add_f32 v%d, v%d, v%d' % (168 + r, 168 + r, 172 + r))
    for r in range(4):
        p('v_add_f32 v%d, v%d, v%d' % (160 + r, 160 + r, 168 + r))
    def rnd(a):
        p('v_cvt_pk_bf16_f32 v164, v%d, v%d' % (a, a + 1))
        p('v_cvt_pk_bf16_f32 v165, v%d, v%d' % (a + 2, a + 3))
        p('v_lshlrev_b32 v%d, 16, v164' % a); p('v_and_b32 v%d, 0xffff0000, v164' % (a + 1))
        p('v_lshlrev_b32 v%d, 16, v165' % (a + 2)); p('v_and_b32 v%d, 0xffff0000, v165' % (a + 3))
    rnd(160)
    for r in range(4): p('v_mul_f32 v%d, v%d, v%d' % (160 + r, 160 + r, 12 + r))
    rnd(160)
    for r in range(4):
        p('v_lshlrev_b32 v%d, 16, v%d' % (100 + r, 100 + r))
        p('v_fma_f32 v%d, v%d, v16, v%d' % (160 + r, 160 + r, 100 + r))
    p('v_cvt_pk_bf16_f32 v164, v160, v161')
    p('v_cvt_pk_bf16_f32 v165, v162, v163')
    p('''
    v_mov_b32 v27, 0x40000000
    v_cmp_gt_u32 vcc, 32, v1
    s_nop 1
''')
    for r in range(4): p('v_cndmask_b32 v%d, v27, v%d, vcc' % (17 + r, 17 + r))
    p('''
    buffer_store_short v164, v17, s[28:31], 0 offen
    buffer_store_short_d16_hi v164, v18, s[28:31], 0 offen
    buffer_store_short v165, v19, s[28:31], 0 offen
    buffer_store_short_d16_hi v165, v20, s[28:31], 0 offen
    s_waitcnt vmcnt(0)
L_end_k4:
    s_endpgm
''')
    return p


def keys_and_top8(p):
    top8(p, 8, 16)

K34_FLAGS = False
K34_DIRECT = False
K34_SENT = True
K34_ANY = False
K34_PSLEEP = 8
K34_SLEEP = 4
def g_main(p, emb):
    keys_and_top8(p)
    p(';ST 1')
    p("""
    v_and_b32 v20, 0xffff, v17
    v_sub_u32 v20, 2047, v20
    v_mul_u32_u24 v22, 896, v20
    v_lshrrev_b32 v23, 4, v1
    v_lshl_add_u32 v22, v23, 4, v22
""")
    for i in range(14):
        p('buffer_load_dwordx4 %s, v22, s[16:19], 0 offen offset:%d%s' % (vr(32 + 4 * i, 4), 64 * i, ' sc1' if emb else ''))
    p("""
    v_lshrrev_b32 v28, 4, v1            ; kq
    v_lshlrev_b32 v28, 3, v28           ; 8 kq
    v_bfe_u32 v29, v1, 2, 2             ; r
    v_add_u32 v28, v28, v29
    v_lshlrev_b32 v28, 5, v28           ; row*32
    v_and_b32 v29, 3, v1
    v_lshl_add_u32 v28, v29, 3, v28
    v_add_u32 v28, s46, v28
    s_waitcnt vmcnt(14)
""")
    tr_frags(p, 28, 96, 14)
    p('s_waitcnt vmcnt(0) lgkmcnt(0)')
    p(';ST 2')
    for i in range(14):
        c = '0' if i == 0 else 'v[160:163]'
        p('v_mfma_f32_16x16x32_bf16 v[160:163], %s, %s, %s' % (vr(32 + 4 * i, 4), vr(96 + 4 * i, 4), c))
    p('s_nop 7')
    p("""
    v_cvt_pk_bf16_f32 v164, v160, v161
    v_cvt_pk_bf16_f32 v165, v162, v163
    v_lshlrev_b32 v160, 16, v164
    v_and_b32 v161, 0xffff0000, v164
    v_lshlrev_b32 v162, 16, v165
    v_and_b32 v163, 0xffff0000, v165
    s_and_b32 s41, s3, 1
    s_lshl_b32 s41, s41, 10
    v_lshlrev_b32 v30, 4, v1
    v_add_u32 v30, s41, v30
    v_add_u32 v30, %d, v30
    s_cmp_ge_u32 s3, 2
    s_cbranch_scc0 L_k34_gate
    ds_write_b128 v30, v[160:163]
    s_waitcnt lgkmcnt(0)
    s_barrier
    %s
    s_branch L_st_end_k34
L_k34_gate:
""" % (TOPK_LDS + 512, 's_nop 0' if K34_SENT else 's_barrier'))
    for r in range(4): p('v_mul_f32 v%d, 0xbfb8aa3b, v%d' % (166 + r, 160 + r))
    for r in range(4): p('v_exp_f32 v%d, v%d' % (166 + r, 166 + r))
    for r in range(4): p('v_add_f32 v%d, 1.0, v%d' % (166 + r, 166 + r))
    for r in range(4): p('v_rcp_f32 v%d, v%d' % (166 + r, 166 + r))
    p('s_nop 0')
    for r in range(4): p('v_mul_f32 v%d, v%d, v%d' % (160 + r, 160 + r, 166 + r))
    p("""
    v_cvt_pk_bf16_f32 v164, v160, v161
    v_cvt_pk_bf16_f32 v165, v162, v163
    v_lshlrev_b32 v160, 16, v164
    v_and_b32 v161, 0xffff0000, v164
    v_lshlrev_b32 v162, 16, v165
    v_and_b32 v163, 0xffff0000, v165
    s_waitcnt lgkmcnt(0)
    s_barrier
    ds_read_b128 v[164:167], v30
    s_waitcnt lgkmcnt(0)
""")
    for r in range(4): p('v_mul_f32 v%d, v%d, v%d' % (160 + r, 160 + r, 164 + r))
    for r in range(4): p('v_cvt_pk_bf16_f32 v%d, v%d, 0' % (160 + r, 160 + r))
    p('s_nop 1')
    for r in range(4): p('v_mov_b32_dpp v%d, v%d quad_perm:[1,0,3,2] row_mask:0xf bank_mask:0xf' % (164 + r, 160 + r))
    for r in range(4): p('v_lshl_or_b32 v%d, v%d, 16, v%d' % (160 + r, 164 + r, 160 + r))
    if K34_SENT:
        p('v_mov_b32 v168, 0x7fff7fff')
        for r in range(4):
            p('v_cmp_eq_u32 vcc, -1, v%d' % (160 + r))
            p('s_nop 1')
            p('v_cndmask_b32 v%d, v%d, v168, vcc' % (160 + r, 160 + r))
    p("""
    v_lshrrev_b32 v23, 4, v1
    v_mul_u32_u24 v24, %d, v23          ; 4 rows * 3584 B
    v_and_b32 v25, 15, v1
    v_lshl_add_u32 v24, v25, 1, v24
    v_add_u32 v24, s40, v24
    v_mov_b32 v27, 0x40000000
    v_and_b32 v25, 0x21, v1             ; lanes >= 32 or odd lanes do not store
    v_cmp_eq_u32 vcc, 0, v25
    s_mov_b32 s41, 7168
    s_nop 0
    v_cndmask_b32 v24, v27, v24, vcc
    buffer_store_dword v160, v24, s[20:23], 0 offen sc1
    buffer_store_dword v161, v24, s[20:23], 0 offen offset:3584 sc1
    buffer_store_dword v162, v24, s[20:23], s41 offen sc1
    buffer_store_dword v163, v24, s[20:23], s41 offen offset:3584 sc1
    ;SENTEXIT
    s_waitcnt vmcnt(0)
    s_barrier
    s_cmp_lg_u32 s3, 0
    s_cbranch_scc1 L_st_end_k34
    ;FLAGSIG
    s_branch L_st_end_k34
""" % (4 * 3584))
    if K34_SENT:
        i0 = [k for k, i in enumerate(p.ins) if i.text.startswith(';SENTEXIT')][0]
        p.ins[i0:i0 + 1] = [I('s_branch L_st_end_k34')]
    idx = [k for k, i in enumerate(p.ins) if i.text.startswith(';FLAGSIG')][0]
    sig = """
    v_mov_b32 v24, 0
    v_mov_b32 v25, 1
    v_cmp_eq_u32 vcc, 0, v1
    s_and_saveexec_b64 s[42:43], vcc
    buffer_atomic_add v25, v24, s[56:59], 0 offen sc0 sc1
    s_waitcnt vmcnt(0)
    v_readfirstlane_b32 s41, v25
    s_cmp_eq_u32 s41, 55
    s_cbranch_scc0 L_k34_notlast
    v_mov_b32 v25, 1
    buffer_store_dword v25, v24, s[56:59], 0 offen offset:128 sc1
L_k34_notlast:
    s_mov_b64 exec, s[42:43]
"""
    if K34_DIRECT:
        sig = """
    v_mov_b32 v24, 0
    v_mov_b32 v25, 1
    v_cmp_eq_u32 vcc, 0, v1
    s_and_saveexec_b64 s[42:43], vcc
    buffer_atomic_add v25, v24, s[56:59], 0 offen sc1
    s_mov_b64 exec, s[42:43]
"""
    t = Prog(); t(sig)
    p.ins[idx:idx + 1] = t.ins

def d_main(p, emb):
    keys_and_top8(p)
    p(';ST 0')
    p("""
    v_lshrrev_b32 v23, 4, v1
    v_and_b32 v23, 1, v23
    v_lshlrev_b32 v24, 4, v23
""")
    for r in range(4):
        p('v_add_u32 v21, %d, v24' % (4 * r))
        p('ds_bpermute_b32 v%d, v21, v17' % (8 + r))
    p('s_waitcnt lgkmcnt(0)')
    for r in range(4):
        k = 8 + r
        p('v_and_b32 v%d, 0xffff, v%d' % (17 + r if r else 18, k) if False else 'v_and_b32 v%d, 0xffff, v%d' % (100 + r, k))
        p('v_sub_u32 v%d, 2047, v%d' % (100 + r, 100 + r))
        p('v_mul_u32_u24 v%d, 896, v%d' % (104 + r, 100 + r))
    p('v_lshlrev_b32 v25, 1, v25')
    p('v_add_u32 v25, s40, v25')
    for r in range(4):
        p('v_add_u32 v%d, v%d, v25' % (104 + r, 104 + r))
    for r in range(4):
        p('buffer_load_ushort v%d, v%d, s[28:31], 0 offen%s' % (108 + r, 104 + r, ' sc1' if emb else ''))
    for r in range(4):
        k = 8 + r
        p('v_and_b32 v%d, 0xffff0000, v%d' % (k, k))
        p('v_ashrrev_i32 v16, 31, v%d' % k)
        p('v_not_b32 v16, v16')
        p('v_or_b32 v16, 0x80000000, v16')
        p('v_xor_b32 v%d, v%d, v16' % (k, k))
        p('v_and_b32 v%d, 0xffff0000, v%d' % (k, k))
        p('v_mul_f32 v%d, 0xbfb8aa3b, v%d' % (12 + r, k))
    for r in range(4): p('v_exp_f32 v%d, v%d' % (12 + r, 12 + r))
    p('s_nop 0')
    for r in range(4): p('v_add_f32 v%d, 1.0, v%d' % (12 + r, 12 + r))
    for r in range(4): p('v_rcp_f32 v%d, v%d' % (12 + r, 12 + r))
    p('s_nop 0')
    for r in range(4): p('v_cvt_pk_bf16_f32 v%d, v%d, 0' % (12 + r, 12 + r))
    for r in range(4): p('v_lshlrev_b32 v%d, 16, v%d' % (12 + r, 12 + r))
    p("""
    v_lshrrev_b32 v28, 4, v1
    v_lshlrev_b32 v28, 3, v28
    v_bfe_u32 v29, v1, 2, 2
    v_add_u32 v28, v28, v29
    v_lshlrev_b32 v28, 5, v28
    v_and_b32 v29, 3, v1
    v_lshl_add_u32 v28, v29, 3, v28
    v_add_u32 v28, s46, v28
    v_and_b32 v4, 7, v1
    v_mul_u32_u24 v22, 3584, v4
    v_lshrrev_b32 v23, 4, v1
    v_lshl_add_u32 v22, v23, 4, v22
    s_mul_i32 s41, s3, 896
    v_add_u32 v22, s41, v22
    s_waitcnt vmcnt(4)
""")
    tr_frags(p, 28, 112, 14)
    p(';ST 1')
    if K34_SENT:
        p('''
    v_lshlrev_b32 v21, 6, v1
    s_mul_i32 s41, s3, 896
    s_add_u32 s41, s41, %d
    v_add_u32 v21, s41, v21
    v_mov_b32 v23, 0x40000000
    v_cmp_gt_u32 vcc, 14, v1
    s_nop 1
    v_cndmask_b32 v21, v23, v21, vcc
L_k34_prepoll:
    buffer_load_dword v23, v21, s[20:23], 0 offen sc1
    s_waitcnt vmcnt(0)
    v_cmp_eq_u32 vcc, -1, v23
    %s
    s_sleep %d
    s_branch L_k34_prepoll
''' % (7 * 3584, ('s_nop 0\n    s_cbranch_vccz L_k34_poll' if not K34_ANY else 's_nop 0\n    s_cmp_lg_u32 vcc_lo, 0x3fff\n    s_cbranch_scc1 L_k34_poll'), K34_PSLEEP))
        p('L_k34_poll:')
        for i in range(14):
            p('buffer_load_dwordx4 %s, v22, s[20:23], 0 offen offset:%d sc1' % (vr(32 + 4 * i, 4), 64 * i))
        p('s_waitcnt vmcnt(0)')
        p('v_max3_u32 v21, v32, v33, v34')
        for k in range(35, 87, 2):
            p('v_max3_u32 v21, v21, v%d, v%d' % (k, k + 1))
        p('v_max_u32 v21, v21, v87')
        p('v_cmp_eq_u32 vcc, -1, v21')
        p('s_nop 0')
        p('s_cbranch_vccz L_k34_polled')
        p('s_sleep %d' % K34_SLEEP)
        p('s_branch L_k34_poll')
        p('L_k34_polled:')
        p(';ST 2')
    else:
        p("""
        s_cmp_lg_u32 s3, 0
        s_cbranch_scc1 L_k34_polled
        v_mov_b32 v21, 0
    L_k34_poll:
        buffer_load_dword v23, v21, s[56:59], 0 offen offset:%d sc1
        s_waitcnt vmcnt(0)
        v_readfirstlane_b32 s41, v23
        s_cmp_eq_u32 s41, %d
        s_cbranch_scc1 L_k34_polled
        s_sleep %d
        s_branch L_k34_poll
    L_k34_polled:
        s_barrier
    """ % ((0, 56, K34_SLEEP) if K34_DIRECT else (128, 1, K34_SLEEP)))
        p(';ST 2')
        for i in range(14):
            p('buffer_load_dwordx4 %s, v22, s[20:23], 0 offen offset:%d sc1' % (vr(32 + 4 * i, 4), 64 * i))
    p('s_waitcnt lgkmcnt(0)')
    for i in range(14):
        if i % 2 == 0 and not K34_SENT: p('s_waitcnt vmcnt(%d)' % (12 - i))
        acc = 'v[172:175]' if i % 2 == 0 else 'v[176:179]'
        c = '0' if i < 2 else acc
        p('v_mfma_f32_16x16x32_bf16 %s, %s, %s, %s' % (acc, vr(32 + 4 * i, 4), vr(112 + 4 * i, 4), c))
    p('s_nop 7')
    for r in range(4): p('v_add_f32 v%d, v%d, v%d' % (172 + r, 172 + r, 176 + r))
    p('s_nop 7')
    p("""
    v_lshlrev_b32 v30, 4, v1
    s_lshl_b32 s41, s3, 10
    v_add_u32 v30, s41, v30
    ds_write_b128 v30, v[172:175] offset:%d
    s_waitcnt lgkmcnt(0)
    s_barrier
    s_cmp_lg_u32 s3, 0
    s_cbranch_scc1 L_st_end_k34
    ds_read_b128 v[176:179], v30 offset:%d
    ds_read_b128 v[180:183], v30 offset:%d
    ds_read_b128 v[184:187], v30 offset:%d
    s_waitcnt lgkmcnt(0)
""" % (TOPK_LDS + 1024, TOPK_LDS + 2048, TOPK_LDS + 3072, TOPK_LDS + 4096))
    Y = 172
    for r in range(4):
        p('v_add_f32 v%d, v%d, v%d' % (Y + r, Y + r, 176 + r))
        p('v_add_f32 v%d, v%d, v%d' % (180 + r, 180 + r, 184 + r))
    for r in range(4):
        p('v_add_f32 v%d, v%d, v%d' % (Y + r, Y + r, 180 + r))
    def rnd(a):
        p('v_cvt_pk_bf16_f32 v188, v%d, v%d' % (a, a + 1))
        p('v_cvt_pk_bf16_f32 v189, v%d, v%d' % (a + 2, a + 3))
        p('v_lshlrev_b32 v%d, 16, v188' % a); p('v_and_b32 v%d, 0xffff0000, v188' % (a + 1))
        p('v_lshlrev_b32 v%d, 16, v189' % (a + 2)); p('v_and_b32 v%d, 0xffff0000, v189' % (a + 3))
    rnd(Y)
    for r in range(4): p('v_mul_f32 v%d, v%d, v%d' % (Y + r, Y + r, 12 + r))
    rnd(Y)
    for r in range(4):
        p('v_lshlrev_b32 v%d, 16, v%d' % (108 + r, 108 + r))
        p('v_fma_f32 v%d, v%d, v31, v%d' % (Y + r, Y + r, 108 + r))
    p('v_cvt_pk_bf16_f32 v188, v%d, v%d' % (Y, Y + 1))
    p('v_cvt_pk_bf16_f32 v189, v%d, v%d' % (Y + 2, Y + 3))
    p("""
    v_mov_b32 v27, 0x40000000
    v_cmp_gt_u32 vcc, 32, v1
    s_nop 1
""")
    for r in range(4): p('v_cndmask_b32 v%d, v27, v%d, vcc' % (104 + r, 104 + r))
    p("""
    buffer_store_short v188, v104, s[28:31], 0 offen
    buffer_store_short_d16_hi v188, v105, s[28:31], 0 offen
    buffer_store_short v189, v106, s[28:31], 0 offen
    buffer_store_short_d16_hi v189, v107, s[28:31], 0 offen
""")

def build_k34():
    p = Prog()
    p("""
k34_kernel:
    s_cmp_ge_u32 s2, 84
    s_cbranch_scc1 L_end_k34
    s_load_dwordx4 s[4:7], s[0:1], 56
    s_load_dwordx2 s[48:49], s[0:1], 72
    s_load_dwordx4 s[52:55], s[0:1], 96
    s_load_dwordx2 s[24:25], s[0:1], 112
    v_and_b32 v1, 63, v0
    v_lshrrev_b32 v2, 6, v0
    s_nop 0
    v_readfirstlane_b32 s3, v2
    v_lshlrev_b32 v5, 5, v0
    s_waitcnt lgkmcnt(0)
""")
    srd(p, 12, 24, 8192, str(WS_R))
    p('buffer_load_dwordx4 v[8:11], v5, s[12:15], 0 offen')
    p('buffer_load_dwordx4 v[12:15], v5, s[12:15], 0 offen offset:16')
    srd(p, 16, 24, 2048 * 896, str(WS_H2))
    srd(p, 20, 24, 28672, str(WS_ACT))
    srd(p, 56, 54, 256)
    p("""
    s_cmp_ge_u32 s2, 56
    s_cbranch_scc1 L_k34_down
    s_cmp_ge_u32 s3, 2
    s_cselect_b32 s4, s6, s4
    s_cselect_b32 s5, s7, s5
""")
    srd(p, 8, 4, 448 * 3584)
    p("""
    s_and_b32 s40, s2, 7
    s_mul_i32 s40, s40, 7
    s_lshr_b32 s41, s2, 3
    s_add_u32 s40, s40, s41
    s_lshl_b32 s40, s40, 6
    s_and_b32 s41, s3, 1
    s_lshl_b32 s41, s41, 5
    s_add_u32 s40, s40, s41
    v_lshrrev_b32 v3, 1, v1
    v_mul_u32_u24 v3, 3584, v3
    v_and_b32 v4, 1, v1
    v_lshl_add_u32 v3, v4, 4, v3
    v_add_u32 v3, s40, v3
    s_mov_b32 s45, %d
    s_mul_i32 s46, s3, 14336
""" % (32 * 3584))
    wstage(p, 8, 3, 14, 46)
    p('s_waitcnt vmcnt(14)')
    p(';ST 0')
    g_main(p, False)
    p('L_k34_down:')
    p('s_sub_u32 s39, s2, 56')
    p('s_mul_i32 s40, s3, %d' % (448 * 896))
    p('s_add_u32 s48, s48, s40'); p('s_addc_u32 s49, s49, 0')
    srd(p, 8, 48, 448 * 896)
    srd(p, 60, 24, 10752)
    srd(p, 28, 52, 2048 * 896)
    p("""
    s_and_b32 s47, s39, 7
    s_lshr_b32 s41, s39, 3
    s_lshl_b32 s42, s47, 2
    s_mul_i32 s43, s47, 3
    s_add_u32 s43, s43, 4
    s_cmp_lt_u32 s47, 4
    s_cselect_b32 s47, s42, s43
    s_add_u32 s47, s47, s41           ; column block
    s_lshl_b32 s40, s47, 5              ; column byte offset
    v_lshrrev_b32 v3, 1, v1
    v_mul_u32_u24 v3, 896, v3
    v_and_b32 v4, 1, v1
    v_lshl_add_u32 v3, v4, 4, v3
    v_add_u32 v3, s40, v3
    s_mov_b32 s45, %d
    s_mul_i32 s46, s3, 14336
    v_and_b32 v25, 15, v1
    v_lshlrev_b32 v26, 2, v25
    s_lshl_b32 s41, s47, 6
    v_add_u32 v26, s41, v26
    s_mov_b32 s42, 8960
    buffer_load_dword v31, v26, s[60:63], s42 offen                ; gb[col]
""" % (32 * 896))
    wstage(p, 8, 3, 14, 46)
    p('s_waitcnt vmcnt(15)')
    d_main(p, False)
    p("""
L_st_end_k34:
L_end_k34:
    s_endpgm
""")
    return p


K2_OUT_FLAGS = ''
K2_H_FLAGS = ''
K2_R_FLAGS = ''
def k2_math(p, P0, XR, GA, S2, A2, GB, WR, ACC, X1, PK, VOUT, VMASK, VLANE_, VBIG, SEL, srd_h2, srd_out, srd_r, s_row0, T, key_in_reg=False):
    for rr in range(2):
        for j in range(8):
            p('v_mul_f32 v%d, v%d, v%d' % (ACC[rr] + j, ACC[rr] + j, GA + j))
        for j in range(8):
            p('v_dot2_f32_bf16 v%d, v%d, v%d, v%d' % (ACC[rr] + j, XR[rr] + j // 2, SEL + j % 2, ACC[rr] + j))
    p('s_nop 2')
    for rr in range(2):
        for j in range(0, 8, 2):
            p('v_cvt_pk_bf16_f32 v%d, v%d, v%d' % (PK + rr * 4 + j // 2, ACC[rr] + j, ACC[rr] + j + 1))
    for rr in range(2):
        for j in range(8):
            if j % 2 == 0: p('v_lshlrev_b32 v%d, 16, v%d' % (X1[rr] + j, PK + rr * 4 + j // 2))
            else: p('v_and_b32 v%d, 0xffff0000, v%d' % (X1[rr] + j, PK + rr * 4 + j // 2))
    SUM = [T, T + 1]
    for rr in range(2):
        p('v_add_f32 v%d, v%d, v%d' % (SUM[rr], X1[rr], X1[rr] + 1))
        for j in range(2, 8): p('v_add_f32 v%d, v%d, v%d' % (SUM[rr], SUM[rr], X1[rr] + j))
    wave_reduce_multi(p, SUM, [T + 2, T + 3])
    XC = ACC
    for rr in range(2):
        p('v_mul_f32 v%d, 0xbb124925, v%d' % (SUM[rr], SUM[rr]))
    for rr in range(2):
        for j in range(8):
            p('v_add_f32 v%d, v%d, v%d' % (XC[rr] + j, X1[rr] + j, SUM[rr]))
    VAR = [T + 2, T + 3]
    for rr in range(2):
        p('v_mul_f32 v%d, v%d, v%d' % (VAR[rr], XC[rr], XC[rr]))
        for j in range(1, 8): p('v_fmac_f32 v%d, v%d, v%d' % (VAR[rr], XC[rr] + j, XC[rr] + j))
    for rr in range(2):
        p('v_mul_f32 v%d, v%d, v%d' % (VAR[rr], VAR[rr], VMASK))
    wave_reduce_multi(p, VAR, [T + 4, T + 5])
    for rr in range(2):
        p('v_mov_b32 v%d, 0x3727c5ac' % (T + 4 + rr))
        p('v_fmac_f32 v%d, 0x3b124925, v%d' % (T + 4 + rr, VAR[rr]))
    for rr in range(2):
        p('v_rsq_f32 v%d, v%d' % (VAR[rr], T + 4 + rr))
    p('s_nop 0')
    H = [PK, PK + 4]
    for rr in range(2):
        for j in range(8):
            p('v_mul_f32 v%d, v%d, v%d' % (XC[rr] + j, XC[rr] + j, VAR[rr]))
        for j in range(8):
            p('v_fma_f32 v%d, v%d, v%d, v%d' % (XC[rr] + j, XC[rr] + j, A2 + j, S2 + j))
        for j in range(0, 8, 2):
            p('v_cvt_pk_bf16_f32 v%d, v%d, v%d' % (H[rr] + j // 2, XC[rr] + j, XC[rr] + j + 1))
    for rr in range(2):
        p('buffer_store_dwordx4 %s, v%d, s[%d:%d], 0 offen offset:%d%s' % (vr(H[rr], 4), VOUT, srd_h2, srd_h2 + 3, rr * 896, K2_H_FLAGS))
    RR = [T + 4, T + 5]
    for rr in range(2):
        p('v_mov_b32 v%d, 0' % RR[rr])
    for j in range(4):
        for rr in range(2):
            p('v_dot2_f32_bf16 v%d, v%d, v%d, v%d' % (RR[rr], H[rr] + j, WR + j, RR[rr]))
    OUTR = [P0[0], P0[0] + 4]
    for rr in range(2):
        for j in range(8):
            if j % 2 == 0: p('v_lshlrev_b32 v%d, 16, v%d' % (XC[rr] + j, H[rr] + j // 2))
            else: p('v_and_b32 v%d, 0xffff0000, v%d' % (XC[rr] + j, H[rr] + j // 2))
        for j in range(8):
            p('v_fma_f32 v%d, v%d, v%d, v%d' % (XC[rr] + j, XC[rr] + j, GB + j, X1[rr] + j))
        for j in range(0, 8, 2):
            p('v_cvt_pk_bf16_f32 v%d, v%d, v%d' % (OUTR[rr] + j // 2, XC[rr] + j, XC[rr] + j + 1))
        p('buffer_store_dwordx4 %s, v%d, s[%d:%d], 0 offen offset:%d%s' % (vr(OUTR[rr], 4), VOUT, srd_out, srd_out + 3, rr * 896, K2_OUT_FLAGS))
    wave_reduce_multi(p, RR, [T, T + 1])
    p("""
    v_cvt_pk_bf16_f32 v%d, v%d, 0
    v_cvt_pk_bf16_f32 v%d, v%d, 0
    v_cmp_eq_u32 vcc, 1, v%d
    s_nop 1
    v_cndmask_b32 v%d, v%d, v%d, vcc
    v_lshlrev_b32 v%d, 16, v%d            ; r rounded to bf16 (row0 in lane 0, row1 in lane 1)
    v_ashrrev_i32 v%d, 31, v%d
    v_or_b32 v%d, 0x80000000, v%d
    v_xor_b32 v%d, v%d, v%d               ; order-preserving integer image
    v_and_b32 v%d, 0xffff0000, v%d
    v_add_u32 v%d, s%d, v%d               ; row index
    v_sub_u32 v%d, 2047, v%d
    v_or_b32 v%d, v%d, v%d                ; key = image | (2047 - row): unique, ties go to the lower row
""" % (RR[0], RR[0], RR[1], RR[1], VLANE_, RR[0], RR[0], RR[1], RR[0], RR[0],
       RR[1], RR[0], RR[1], RR[1], RR[0], RR[0], RR[1], RR[0], RR[0],
       T, s_row0, VLANE_, T + 1, T, RR[0], RR[0], T + 1))
    if key_in_reg:
        return RR[0]
    p("""
    v_lshlrev_b32 v%d, 2, v%d
    v_cmp_gt_u32 vcc, 2, v%d
    s_nop 1
    v_cndmask_b32 v%d, v%d, v%d, vcc
    buffer_store_dword v%d, v%d, s[%d:%d], 0 offen%s
""" % (T, T, VLANE_, T, VBIG, T, RR[0], T, srd_r, srd_r + 3, K2_R_FLAGS))


def moe_pre(p, SW, VL):
    p("""
    s_cmp_ge_u32 s2, 56
    s_cbranch_scc1 L_moe_pre_d
    s_cmp_ge_u32 s%d, 2
    s_cselect_b32 s64, s30, s28
    s_cselect_b32 s65, s31, s29          ; waves 0,1: gate ; waves 2,3: up
    s_mov_b32 s66, %d
    s_mov_b32 s67, 0x20000
    s_and_b32 s40, s2, 7
    s_mul_i32 s40, s40, 7
    s_lshr_b32 s41, s2, 3
    s_add_u32 s40, s40, s41
    s_lshl_b32 s40, s40, 6
    s_and_b32 s41, s%d, 1
    s_lshl_b32 s41, s41, 5
    s_add_u32 s40, s40, s41
    v_lshrrev_b32 v210, 1, v%d
    v_mul_u32_u24 v210, 3584, v210
    s_mov_b32 s45, %d
    s_branch L_moe_pre_go
L_moe_pre_d:
    s_sub_u32 s39, s2, 56
    s_mul_i32 s40, s%d, %d
    s_add_u32 s64, s32, s40
    s_addc_u32 s65, s33, 0
    s_mov_b32 s66, %d
    s_mov_b32 s67, 0x20000
    s_and_b32 s47, s39, 7
    s_lshr_b32 s41, s39, 3
    s_lshl_b32 s42, s47, 2
    s_mul_i32 s43, s47, 3
    s_add_u32 s43, s43, 4
    s_cmp_lt_u32 s47, 4
    s_cselect_b32 s47, s42, s43
    s_add_u32 s47, s47, s41           ; column block
    s_lshl_b32 s40, s47, 5              ; column byte offset
    v_lshrrev_b32 v210, 1, v%d
    v_mul_u32_u24 v210, 896, v210
    s_mov_b32 s45, %d
L_moe_pre_go:
    v_and_b32 v211, 1, v%d
    v_lshl_add_u32 v210, v211, 4, v210
    v_add_u32 v210, s40, v210
    s_mul_i32 s46, s%d, 14336
""" % (SW, 448 * 3584, SW, VL, 32 * 3584, SW, 448 * 896, 448 * 896, VL, 32 * 896, VL, SW))
    wstage(p, 64, 210, 14, 46)

def moe_main(p, SW, VL, VEC):
    p("""
    s_mov_b32 s3, s%d
    v_mov_b32 v1, v%d
    s_lshl_b32 s41, s3, 6
    v_add_u32 v0, s41, v1
    v_lshlrev_b32 v5, 5, v0
    s_mov_b32 s28, s16
    s_mov_b32 s29, s17
    s_mov_b32 s30, s18
    s_mov_b32 s31, s19
    s_mov_b32 s16, s20
    s_mov_b32 s17, s21
    s_mov_b32 s18, s22
    s_mov_b32 s19, s23
""" % (SW, VL))
    srd(p, 20, 24, 28672, str(WS_ACT))
    p("""
L_keys_poll:
    buffer_load_dwordx4 v[8:11], v5, s[96:99], 0 offen sc1
    buffer_load_dwordx4 v[12:15], v5, s[96:99], 0 offen offset:16 sc1
    s_waitcnt vmcnt(0)
    v_max3_u32 v16, v8, v9, v10
    v_max3_u32 v16, v16, v11, v12
    v_max3_u32 v16, v16, v13, v14
    v_max_u32 v16, v16, v15
    v_cmp_eq_u32 vcc, -1, v16
    s_nop 0
    s_cbranch_vccz L_keys_ok
    s_sleep 8
    s_branch L_keys_poll
L_keys_ok:
    s_cmp_ge_u32 s2, 56
    s_cbranch_scc1 L_moe_d
""")
    g_main(p, True)
    p('L_moe_d:')
    p("""
    v_and_b32 v25, 15, v1
    s_lshl_b32 s41, s47, 6
    v_lshl_add_u32 v26, v25, 2, s41
    v_add_u32 v26, %d, v26
    ds_read_b32 v31, v26
    s_waitcnt lgkmcnt(0)
""" % (VEC + 1344 * 4))
    d_main(p, True)
```

```python
import sys
from asmlib import *
import gen_attn2 as A
import k1, ksmall
def add_stamps(p, k):
    kid = int(k[1])
    q = Prog()
    for j, i in enumerate(p.ins):
        if i.kind == 'branch' and 'L_st_end_' in i.text: p.ins[j] = I(i.text.replace('L_st_end_', 'L_end_'))
    for i in p.ins:
        if i.text.startswith(';ST '):
            n = int(i.text.split()[1])
            q('s_memrealtime s[%d:%d]' % (80 + 2 * n, 81 + 2 * n))
            q('s_waitcnt lgkmcnt(0)')
            continue
        if i.kind == 'label' and i.text.startswith('L_end_'):
            q('L_st_%s:' % k)
            q("""
    s_memrealtime s[94:95]
    s_load_dwordx2 s[88:89], s[0:1], 112
    s_waitcnt lgkmcnt(0)
    s_mov_b32 s90, 0x10000000
    s_mov_b32 s91, 0x20000
    s_lshl_b32 s3, s2, 5
    s_add_u32 s3, s3, %d
    v_mov_b32 v2, s92
    v_mov_b32 v3, s94
    v_mov_b32 v4, s80
    v_mov_b32 v5, s82
    v_mov_b32 v6, s84
    v_mov_b32 v7, s86
    v_mov_b32 v1, s3
    v_cmp_eq_u32 vcc, 0, v255
    s_and_saveexec_b64 s[4:5], vcc
    s_cbranch_execz L_stx_%s
    buffer_store_dwordx4 v[2:5], v1, s[88:91], 0 offen
    buffer_store_dwordx2 v[6:7], v1, s[88:91], 0 offen offset:16
L_stx_%s:
    s_mov_b64 exec, s[4:5]
    s_waitcnt vmcnt(0)
""" % (0xb000000 + kid * 0x10000, k, k))
        q.ins.append(i)
        if i.kind == 'label' and i.text.endswith('_kernel:'):
            q('s_memrealtime s[92:93]')
            q('v_mov_b32 v255, v0')
    n = 0
    for j, i in enumerate(q.ins):
        if i.kind == 'branch' and 'L_end_' in i.text:
            n += 1
            if n > 1: q.ins[j] = I(i.text.replace('L_end_' + k, 'L_st_' + k))
    return q
def build(o, list_k=('k1', 'k2', 'k34')):
    parts = []
    probs = []
    kernels = {'k0': (ksmall.build_k0, 42, 1024, 128), 'k1': (None, 256, 163840, 512), 'k2': (ksmall.build_k2, 256, 0, 256),
               'k3': (ksmall.build_k3, 56, 57344 + 256 + 2048 + 256, 256), 'k4': (ksmall.build_k4, 28, 57344 + 4096, 256),
               'k34': (ksmall.build_k34, 84, 57344 + 5120 + 256, 256)}
    hdr = ''
    for k in list_k:
        hdr += '; @launch kernel=%s_kernel grid=(%d,1,1) block=(256,1,1) lds=%d\n' % (k, kernels[k][1], kernels[k][2])
    hdr += '.amdgcn_target "amdgcn-amd-amdhsa--gfx950"\n.text\n'
    body = ''; kd = ''
    for k in dict.fromkeys(list_k):
        if k == 'k1':
            p, pr = k1.build_k1(o)
        else:
            p = kernels[k][0](); pr = check_hazards(p.ins, k)
        probs += pr
        if getattr(o, 'kst', 0) and k != 'k1':
            p = add_stamps(p, k)
        body += '.globl %s_kernel\n.p2align 8\n.type %s_kernel,@function\n' % (k, k) + p.text()
        nv = 256 if (getattr(o, 'kst', 0) and k != 'k1') else kernels[k][3]
        kd += '.p2align 6' + k1.KD % ('%s_kernel' % k, nv, 102 if k == 'k1' else 96, min(nv, 256))
    return hdr + body + '.section .rodata,"a"\n' + kd, probs
if __name__ == '__main__':
    o = A.Opt()
    o.kgap = 1
    o.dma_gaps = [3, 7, 11, 15, 19, 23, 27, 31, 35, 39, 43, 47, 51, 55, 59, 63]
    o.stamps = 0; o.pf = 1; o.pfd = 4; o.pfmoe = 1; o.pf_kv_early = 0; o.late_dma = 0; o.qcvt = 1; o.fuse_k2 = 1; o.kdma_late = 0; o.one = 1; o.esend = 0; o.part_flags = ' sc1'
    out = sys.argv[1]
    for kv in sys.argv[2:]:
        k, v = kv.split('=')
        try: v = int(v, 0)
        except ValueError:
            if v.startswith('['): v = eval(v)
        setattr(o, k, v)
    ksmall.K34_DIRECT = getattr(o, 'k34direct', 0); ksmall.K34_SLEEP = getattr(o, 'k34sleep', 4)
    ksmall.K34_SENT = getattr(o, 'k34sent', 1)
    ksmall.K34_PSLEEP = getattr(o, 'k34ps', 8)
    ksmall.K34_ANY = getattr(o, 'k34any', 0)
    ksmall.KEY_SLEEP0 = getattr(o, 'ks0', 16); ksmall.KEY_SLEEP = getattr(o, 'ks', 8); ksmall.MOE_INTERLEAVE = getattr(o, 'weave', 1)
    ksmall.MOE_EARLY = getattr(o, 'early', 0)
    ksmall.MOE_AFTERPUB = getattr(o, 'afterpub', 0)
    ksmall.K2_OUT_FLAGS = getattr(o, 'k2o', ''); ksmall.K2_H_FLAGS = getattr(o, 'k2h', ''); ksmall.K2_R_FLAGS = getattr(o, 'k2r', '')
    txt, probs = build(o, ('k1',) if o.one else ('k1', 'k34'))
    for pr in probs[:20]: print(pr)
    if o.one and getattr(o, 'plain', 1):
        NAME = 'adaLN_cond__gqa_block_cached__moe_arch_mod__prompt_kernel'
        txt = txt.replace('; @launch kernel=k1_kernel grid', '; @launch grid').replace('k1_kernel', NAME)
    print('hazards', len(probs), 'bytes', len(txt))
    open(out, 'w').write(txt)
```

```python
from asmlib import *
import gen_attn2 as A
from gen_attn2 import (vr, ar, BLK, HALF, KBUF, VBASE, SREG, PBUF, NEGM, FR, VK, VV, VOFF, LREG, TMP, VLANE,
                       S_K0, S_K1, S_V0, S_V1, S_DST, S_THR, S_RET, S_CNT, S_W, S_96, S, frag, kread, vread, qk_list, exps, dma,
                       max8, lreg)

WS_MOD = 0
WS_R = 0x4000
WS_IDX = 0x8000
WS_ACT = 0x10000
WS_H2 = 0x100000
WS_PART = 0x400000
WS_CNT = 0x20000
WS_STAMP = 0xa000000

H_OFF = 0
MV_OFF = 57344
QSLOT = [98304, 131072, 65536, 32768]
QX = 67584
XR = 0
ST = 131072
KEYL = 68608
VEC = 59392
WO0 = 135168

S_G, S_QB, S_S, S_QH = 36, 37, 38, 39
S_X = 40
S_WQ = 44
S_WO = 48
S_SO = 52
S_T0, S_T1, S_T2, S_T3 = 60, 61, 62, 63
S_QD = 64
S_QD2 = 32
S_WST = 65
S_PART = 68
S_STAMP = 72

class VmTracker:
    def __init__(self): self.ops = []
    def add(self, tag): self.ops.append(tag)
    def wait(self, tag):
        idx = max(i for i, t in enumerate(self.ops) if t == tag)
        n = len(self.ops) - 1 - idx
        assert n <= 63
        return 's_waitcnt vmcnt(%d)' % n

STAMPS = {1: ['start', 'ln_done', 'qproj', 'qexch', 'attnpro', 'loop', 'oproj', 'end'],
          2: ['start', 'xwait', 'stats', 'modbar', 'hbar', 'ln_done', 'qproj', 'end'],
          4: ['start', 'p_w', 'p_bar', 'p_st', 'stats', 'poll_done', 'modbar', 'end'],
          5: ['start', 'oproj', 'stores', 'drain', 'grp', 'k2ld', 'k2m', 'end'],
          6: ['start', 'k2ld', 'k2m', 'pub', 'kpoll', 'top8', 'gath', 'end'],
          3: ['start', 'loop', 'e1bar', 'comb', 'e3bar', 'oproj', 'stores', 'end']}
def stamp(p, o, name):
    if o.stamps and name in STAMPS[o.stamps]:
        k = STAMPS[o.stamps].index(name)
        p('s_memrealtime s[%d:%d]' % (S_STAMP + 2 * k, S_STAMP + 2 * k + 1))
        if name in ('xwait', 'stats', 'modbar', 'hbar', 'e1bar', 'comb', 'e3bar', 'p_w', 'p_bar', 'p_st', 'poll_done', 'pub', 'kpoll', 'top8', 'gath', 'k2m'): p('s_waitcnt lgkmcnt(0)')

def xreduce(p, r, t, op='v_add_f32'):
    p('v_mov_b32 v%d, v%d' % (t, r))
    p('s_nop 1')
    p('v_permlane16_swap_b32 v%d, v%d' % (r, t))
    p('s_nop 1')
    p('%s v%d, v%d, v%d' % (op, r, r, t))
    p('v_mov_b32 v%d, v%d' % (t, r))
    p('s_nop 1')
    p('v_permlane32_swap_b32 v%d, v%d' % (r, t))
    p('s_nop 1')
    p('%s v%d, v%d, v%d' % (op, r, r, t))

def wq_dma(step, vm, VQ):
    out = []
    slot = QSLOT[step % 4]
    for jj in range(8):
        if jj % 4 == 0:
            out.append('s_add_u32 m0, s%d, %d' % (S_QD2, slot + jj * 1024))
        out.append(('buffer_load_dwordx4 v%d, s[%d:%d], s%d offen offset:%d lds' % (VQ[(jj >> 1) & 1], S_WQ, S_WQ + 3, S_SO + jj, (jj & 3) * 1024), 'wq%d' % step))
    return out

def emit_dma(p, lst, vm, nop=True):
    for s in lst:
        if isinstance(s, tuple):
            p(s[0]); vm.add(s[1])
        else:
            p(s)
            if nop and s.startswith('s_') and 'm0' in s: p('s_nop 0')

WS_MODP = 0x30000
WS_MODP2 = 0x38000

def mod_dot(o, p, NI, cunpack, wname):
    C0, W0, HI, ACC, TT = 168, 76, 132, 148, 156
    cunpack(C0)
    for i in range(NI): p('v_mul_f32 v%d, 0xbfb8aa3b, v%d' % (HI + i, C0 + i))
    for i in range(NI): p('v_exp_f32 v%d, v%d' % (HI + i, HI + i))
    p('s_nop 0')
    for i in range(NI): p('v_add_f32 v%d, 1.0, v%d' % (HI + i, HI + i))
    for i in range(NI): p('v_rcp_f32 v%d, v%d' % (HI + i, HI + i))
    p('s_nop 0')
    for i in range(NI): p('v_mul_f32 v%d, v%d, v%d' % (C0 + i, C0 + i, HI + i))
    for i in range(NI): p('v_cvt_pk_bf16_f32 v%d, v%d, 0' % (C0 + i, C0 + i))
    for i in range(NI): p('v_lshlrev_b32 v%d, 16, v%d' % (HI + i, C0 + i))
    for j in range(8): p('v_mov_b32 v%d, 0' % (ACC + j))
    wname()
    for i in range(NI):
        for j in range(8):
            w = W0 + 4 * i + j // 2
            sel = (C0 + i) if j % 2 == 0 else (HI + i)
            p('v_dot2_f32_bf16 v%d, v%d, v%d, v%d' % (ACC + j, w, sel, ACC + j))
    p('s_nop 2')
    regs = [ACC + j for j in range(8)]; temps = [TT + j for j in range(8)]
    for r in regs:
        p('v_add_f32_dpp v%d, v%d, v%d row_ror:8 row_mask:0xf bank_mask:0xf' % (r, r, r))
    for sw in ('v_permlane16_swap_b32', 'v_permlane32_swap_b32'):
        for r, t in zip(regs, temps): p('v_mov_b32 v%d, v%d' % (t, r))
        p('s_nop 1')
        for r, t in zip(regs, temps): p('%s v%d, v%d' % (sw, r, t))
        p('s_nop 1')
        for r, t in zip(regs, temps): p('v_add_f32 v%d, v%d, v%d' % (r, r, t))

def mod_wgsum(p, tag):
    B_ = MV_OFF + 4096
    p("""
    v_and_b32 v164, 7, v%d
    s_lshl_b32 s60, s%d, 8
    v_lshlrev_b32 v164, 5, v164
    v_add_u32 v164, s60, v164
    ds_write_b128 v164, v[148:151] offset:%d
    ds_write_b128 v164, v[152:155] offset:%d
    s_waitcnt lgkmcnt(0)
    s_barrier
    ;STAMP p_bar
    s_cmp_lg_u32 s%d, 0
    s_cbranch_scc1 L_prod_done_%s
    v_lshlrev_b32 v164, 2, v%d
    ds_read_b32 v165, v164 offset:%d
    ds_read_b32 v166, v164 offset:%d
    ds_read_b32 v167, v164 offset:%d
    ds_read_b32 v168, v164 offset:%d
    s_waitcnt lgkmcnt(0)
    v_add_f32 v165, v165, v166
    v_add_f32 v167, v167, v168
    v_add_f32 v165, v165, v167
""" % (VLANE, S_W, B_, B_ + 16, S_W, tag, VLANE, B_, B_ + 256, B_ + 512, B_ + 768))

def producer(o, p, xloads):
    p("""
    s_cmp_ge_u32 s2, 56
    s_cbranch_scc1 L_prod_late
    s_mul_i32 s57, s2, 74
    s_lshr_b32 s57, s57, 10            ; ks = j / 14
    s_mul_i32 s58, s57, 14
    s_sub_u32 s58, s2, s58             ; cb = j %% 14
    s_mul_i32 s56, s57, 3584
    s_lshl_b32 s59, s58, 8
    s_add_u32 s56, s56, s59
    s_add_u32 s56, s56, %d             ; partial store offset
    s_branch L_prod_map
L_prod_late:
    s_sub_u32 s59, s2, 56
    s_mul_i32 s57, s59, 147
    s_lshr_b32 s57, s57, 12            ; ks = j' / 28
    s_mul_i32 s58, s57, 28
    s_sub_u32 s58, s59, s58            ; cb' = j' %% 28
    s_mul_i32 s56, s57, 7168
    s_lshl_b32 s59, s58, 8
    s_add_u32 s56, s56, s59
    s_add_u32 s56, s56, %d
    s_add_u32 s58, s58, 14
L_prod_map:
    s_mul_i32 s62, s57, 112
    s_mul_i32 s63, s%d, 28
    s_add_u32 s62, s62, s63            ; first row of this wave
    v_and_b32 v206, 7, v%d             ; cc
    v_lshrrev_b32 v207, 3, v%d         ; kg
    v_add_u32 v209, s62, v207          ; row (i = 0)
    v_mul_u32_u24 v208, 5376, v209
    v_lshl_add_u32 v208, v206, 4, v208
    s_lshl_b32 s63, s58, 7
    v_add_u32 v208, s63, v208
    v_lshlrev_b32 v209, 1, v209
    v_mov_b32 v210, 0x40000000
    v_cmp_gt_u32 vcc, 4, v207          ; i = 3 valid only for kg < 4
    s_nop 1
    v_cndmask_b32 v211, v210, v209, vcc
    v_cndmask_b32 v212, v210, v208, vcc
    s_mov_b32 s63, %d
""" % (WS_MODP, WS_MODP2, S_W, VLANE, VLANE, 8 * 5376))
    for i in range(3): p('buffer_load_ushort v%d, v209, s[68:71], 0 offen offset:%d' % (60 + i, 16 * i))
    p('buffer_load_ushort v63, v211, s[68:71], 0 offen offset:48')
    for i in range(3):
        p('buffer_load_dwordx4 %s, v208, s[64:67], 0 offen' % vr(76 + 4 * i, 4))
        p('v_add_u32 v208, s63, v208')
        p('v_add_u32 v212, s63, v212')
    p('buffer_load_dwordx4 v[88:91], v212, s[64:67], 0 offen')
    xloads()
    p('s_waitcnt vmcnt(18)')
    def cun(C0):
        for i in range(4): p('v_lshlrev_b32 v%d, 16, v%d' % (C0 + i, 60 + i))
    def wwait():
        p('s_waitcnt vmcnt(14)')
        stamp(p, o, 'p_w')
    mod_dot(o, p, 4, cun, wwait)
    mod_wgsum(p, 'u')
    p("""
    v_add_u32 v164, s56, v164
    buffer_store_dword v165, v164, s[24:27], 0 offen sc1
    s_cmp_ge_u32 s2, 56
    s_cbranch_scc1 L_prod_done_u       ; late producers signal after the modulation barrier
    ;ZEROCNT
    s_waitcnt vmcnt(0)
    ;STAMP p_st
    v_mov_b32 v165, 1
    v_mov_b32 v164, 0
    v_cmp_eq_u32 vcc, 0, v%d
    s_and_saveexec_b64 s[62:63], vcc
    buffer_atomic_add v165, v164, s[88:91], 0 offen sc0 sc1
    s_waitcnt vmcnt(0)
    v_readfirstlane_b32 s60, v165
    s_cmp_eq_u32 s60, 55
    s_cbranch_scc0 L_prod_notlast
    v_mov_b32 v165, 1
    buffer_store_dword v165, v164, s[88:91], 0 offen offset:128 sc1
L_prod_notlast:
    s_mov_b64 exec, s[62:63]
L_prod_done_u:
""" % VLANE)

def prologue(o):
    p = Prog()
    L = VLANE
    vm = VmTracker()
    p("""
    s_cmp_ge_u32 s2, 256
    s_cbranch_scc1 L_end_k1
    s_load_dwordx2 s[40:41], s[0:1], 0
    s_load_dwordx4 s[4:7], s[0:1], 8
    s_load_dwordx4 s[44:47], s[0:1], 24
    s_load_dwordx4 s[64:67], s[0:1], 80
    s_load_dwordx4 s[88:91], s[0:1], 104
    s_load_dwordx4 s[96:99], s[0:1], 56
    s_load_dwordx2 s[100:101], s[0:1], 72
    v_lshrrev_b32 v1, 6, v0
    v_and_b32 v%d, 63, v0
    s_nop 0
    v_readfirstlane_b32 s%d, v1
    ;MAP
    s_lshr_b32 s%d, s%d, 1        ; s (key half)
    s_and_b32 s%d, s%d, 1         ; qh
""" % (L, S_W, S_S, S_W, S_QH, S_W))
    idx = [k for k, i in enumerate(p.ins) if i.text.startswith(';MAP')][0]
    if getattr(o, 'scramble', 0):
        p.ins[idx:idx + 1] = [I('s_lshr_b32 s%d, s2, 5' % S_G), I('s_and_b32 s%d, s2, 31' % S_QB)]
    else:
        p.ins[idx:idx + 1] = [I('s_and_b32 s%d, s2, 7' % S_G), I('s_lshr_b32 s%d, s2, 3' % S_QB)]
    if o.stamps:
        p('s_memrealtime s[%d:%d]' % (S_STAMP, S_STAMP + 1))
    p("""
    v_and_b32 v200, 15, v%d           ; n
    v_lshrrev_b32 v201, 4, v%d        ; kq
    s_lshl_b32 s60, s%d, 4
    v_add_u32 v202, s60, v200
    v_mul_u32_u24 v202, 896, v202
    v_lshl_add_u32 v202, v201, 4, v202
    s_mul_i32 s60, s%d, 57344
    s_waitcnt lgkmcnt(0)
    s_mov_b32 s24, s90
    s_mov_b32 s25, s91
    s_mov_b32 s26, 0x10000000
    s_mov_b32 s27, 0x20000
    s_mov_b32 s90, 256
    s_mov_b32 s91, 0x20000
    s_add_u32 s40, s40, s60
    s_addc_u32 s41, s41, 0
    s_mov_b32 s42, 57344
    s_mov_b32 s43, 0x20000
""" % (L, L, S_W, S_QB))
    def xl():
        for ks in range(14):
            p('buffer_load_dwordx4 %s, v202, s[40:43], 0 offen offset:%d' % (vr(4 * ks, 4), ks * 64))
    p("""
    s_cmp_ge_u32 s2, 168
    s_cbranch_scc1 L_noprod_a
    s_mov_b32 s68, s64
    s_mov_b32 s69, s65
    s_mov_b32 s70, 896
    s_mov_b32 s71, 0x20000
    s_mov_b32 s64, s66
    s_mov_b32 s65, s67
    s_mov_b32 s66, %d
    s_mov_b32 s67, 0x20000
""" % (448 * 5376))
    producer(o, p, xl)
    p('s_branch L_noprod_b')
    p('L_noprod_a:')
    for ks in range(14):
        p('buffer_load_dwordx4 %s, v202, s[40:43], 0 offen offset:%d' % (vr(4 * ks, 4), ks * 64)); vm.add('x')
    p('L_noprod_b:')
    if not o.one: p("""
    s_cmp_lg_u32 s2, 200
    s_cbranch_scc1 L_noactfill
    v_lshlrev_b32 v206, 4, v%d
    s_lshl_b32 s60, s%d, 10
    s_add_u32 s60, s60, %d
    v_add_u32 v206, s60, v206
    v_mov_b32 v208, -1
    v_mov_b32 v209, -1
    v_mov_b32 v210, -1
    v_mov_b32 v211, -1
""" % (L, S_W, WS_ACT))
    for i_ in range(7 if not o.one else 0):
        p('s_mov_b32 s60, %d' % (i_ * 4096))
        p('buffer_store_dwordx4 v[208:211], v206, s[24:27], s60 offen')
    if not o.one: p('L_noactfill:')
    p("""
    s_mov_b32 s48, s46
    s_mov_b32 s49, s47
    s_mul_i32 s60, s%d, 458752
    s_add_u32 s48, s48, s60
    s_addc_u32 s49, s49, 0
    s_mov_b32 s50, 458752
    s_mov_b32 s51, 0x20000
    s_lshl_b32 s60, s%d, 10
    s_add_u32 s44, s44, s60
    s_addc_u32 s45, s45, 0
    s_sub_u32 s46, 3670016, s60
    s_mov_b32 s47, 0x20000
""" % (S_G, S_G))
    if o.pf:
        D = o.pfd
        p("""
    s_lshl_b32 s60, s%d, 20
    s_cmp_lt_u32 s%d, 16
    s_cselect_b32 s92, s4, s6
    s_cselect_b32 s93, s5, s7
    s_add_u32 s92, s92, s60
    s_addc_u32 s93, s93, 0
    s_mov_b32 s94, 0x100000
    s_mov_b32 s95, 0x20000
    s_and_b32 s60, s%d, 15
    s_lshl_b32 s60, s60, 4
    s_lshl_b32 s61, s%d, 2
    s_add_u32 s60, s60, s61            ; line0 = (qb&15)*16 + w*4
    v_and_b32 v206, 3, v%d
    v_add_u32 v206, s60, v206
    v_lshlrev_b32 v206, 7, v206        ; line*128
    v_lshrrev_b32 v207, 2, v%d         ; tile = lane>>2
    v_lshl_add_u32 v207, v207, 15, v206
    v_mov_b32 v208, 0x40000000
    v_cmp_gt_u32 vcc, %d, v%d
    s_nop 1
    v_cndmask_b32 v207, v208, v207, vcc
    v_cmp_gt_u32 vcc, 4, v%d
    v_add_u32 v206, %d, v206
    s_nop 0
    v_cndmask_b32 v%d, v208, v206, vcc
""" % (S_G, S_QB, S_QB, S_W, L, L, 4 * D, L, L, D * 32768, A.VPFA))
        p("""
    s_mul_i32 s60, s%d, 112
    s_mul_i32 s61, s%d, 28
    s_add_u32 s60, s60, s61
    v_add_u32 v206, s60, v%d
    v_lshrrev_b32 v209, 3, v206
    v_lshlrev_b32 v209, 13, v209
    v_and_b32 v210, 7, v206
    v_lshl_add_u32 v209, v210, 7, v209
    v_lshlrev_b32 v206, 7, v206        ; wo prefetch offset = L*128
    v_cmp_gt_u32 vcc, 28, v%d
    s_nop 1
    v_cndmask_b32 v209, v208, v209, vcc
    v_cndmask_b32 v242, v208, v206, vcc
    v_mov_b32 v240, v209
    v_mov_b32 v241, v207
""" % (S_QB, S_W, L, L))
        p("""
    s_mul_i32 s60, s2, 49
    s_mul_i32 s61, s%d, 13
    s_add_u32 s60, s60, s61
    v_add_u32 v206, s60, v%d
    v_min_u32 v206, 12543, v206
    v_lshlrev_b32 v243, 7, v206
""" % (S_W, L))
    VQ = (204, 205)
    p("""
    v_lshlrev_b32 v206, 1, v201       ; 2*rr
    v_xor_b32 v206, v206, v200        ; slot ^ 2rr
    v_lshlrev_b32 v206, 4, v206
    v_lshl_add_u32 v206, v201, 13, v206
    s_lshl_b32 s60, s%d, 8
    v_add_u32 v204, s60, v206
    v_xor_b32 v205, 0x80, v204
    s_lshl_b32 s%d, s%d, 13
""" % (S_W, S_QD2, S_W))
    for jj in range(8):
        p('s_mov_b32 s%d, %d' % (S_SO + jj, jj * 32768 - (jj & 3) * 1024))
    p("""
    s_lshl_b32 s60, s%d, 20
    s_add_u32 s8, s4, s60
    s_addc_u32 s9, s5, 0
    s_sub_u32 s8, s8, 96
    s_subb_u32 s9, s9, 0
    s_mov_b32 s10, %d
    s_mov_b32 s11, 0x20000
    s_add_u32 s12, s8, 4096
    s_addc_u32 s13, s9, 0
    s_mov_b32 s14, %d
    s_mov_b32 s15, 0x20000
    s_add_u32 s16, s6, s60
    s_addc_u32 s17, s7, 0
    s_sub_u32 s16, s16, 96
    s_subb_u32 s17, s17, 0
    s_mov_b32 s18, %d
    s_mov_b32 s19, 0x20000
    s_add_u32 s20, s16, 4096
    s_addc_u32 s21, s17, 0
    s_mov_b32 s22, %d
    s_mov_b32 s23, 0x20000
    s_mov_b32 s%d, 96
    s_mul_i32 s61, s%d, %d
    s_mul_i32 s62, s%d, %d
    s_add_u32 s%d, s61, s62       ; LDS DMA dest base for K/V
    s_mov_b32 s%d, 0x%x
""" % (S_G, (1 << 20) + 96, (1 << 20) + 96 - 4096, (1 << 20) + 96, (1 << 20) + 96 - 4096, S_96, S_S, HALF, S_QH, 8 * BLK, S_DST, S_THR, o.thr))
    XC = 56
    ONE = 210; SELLO = 211; SELHI = 212; ACC = 214
    p('v_mov_b32 v%d, 0x3f803f80' % ONE)
    p('v_mov_b32 v%d, 0x00003f80' % SELLO)
    p('v_mov_b32 v%d, 0x3f800000' % SELHI)
    for i in range(4): p('v_mov_b32 v%d, 0' % (ACC + i))
    p(vm.wait('x'))
    stamp(p, o, 'xwait')
    if o.pf:
        p('buffer_load_dword v253, v240, s[44:47], 0 offen'); vm.add('pf')
    dmas = []
    for st in range(3):
        dmas += wq_dma(st, vm, VQ)
        dmas += ['v_add_u32 v204, 0x40000, v204', 'v_add_u32 v205, 0x40000, v205']
    valu = []
    for i in range(56):
        valu.append('v_dot2_f32_bf16 v%d, v%d, v%d, v%d' % (ACC + i % 4, i, ONE, ACC + i % 4))
    r = Prog()
    r('s_nop 2')
    r('v_add_f32 v%d, v%d, v%d' % (ACC, ACC, ACC + 1))
    r('v_add_f32 v%d, v%d, v%d' % (ACC + 2, ACC + 2, ACC + 3))
    r('v_add_f32 v%d, v%d, v%d' % (ACC, ACC, ACC + 2))
    xreduce(r, ACC, ACC + 1)
    r('v_mul_f32 v%d, 0x%x, v%d' % (ACC, 0xbb124925, ACC))
    valu.append([i.text for i in r.ins])
    for i in range(56):
        valu.append('v_dot2_f32_bf16 v%d, v%d, v%d, v%d' % (XC + 2 * i, i, SELLO, ACC))
        valu.append('v_dot2_f32_bf16 v%d, v%d, v%d, v%d' % (XC + 2 * i + 1, i, SELHI, ACC))
    V2 = 216
    valu.append(['v_mov_b32 v%d, 0' % (V2 + i) for i in range(4)])
    for i in range(56):
        a_ = V2 + 2 * (i % 2)
        valu.append('v_pk_fma_f32 %s, %s, %s, %s' % (vr(a_, 2), vr(XC + 2 * i, 2), vr(XC + 2 * i, 2), vr(a_, 2)))
    late = dmas if o.late_dma else []
    if o.late_dma: dmas = []
    di = 0
    for k, v in enumerate(valu):
        if isinstance(v, list):
            for x in v: p(x)
        else: p(v)
        if k % 6 == 5 and di < len(dmas):
            while di < len(dmas):
                d = dmas[di]; di += 1
                if isinstance(d, tuple):
                    p(d[0]); vm.add(d[1]); break
                p(d)
                if 'm0' in d:
                    p('s_nop 0')
    while di < len(dmas):
        d = dmas[di]; di += 1
        if isinstance(d, tuple): p(d[0]); vm.add(d[1])
        else:
            p(d)
            if 'm0' in d: p('s_nop 0')
    p('v_add_f32 v%d, v%d, v%d' % (V2, V2, V2 + 1))
    p('v_add_f32 v%d, v%d, v%d' % (V2 + 2, V2 + 2, V2 + 3))
    p('v_add_f32 v%d, v%d, v%d' % (V2, V2, V2 + 2))
    xreduce(p, V2, V2 + 1)
    p('v_mov_b32 v%d, 0x3727c5ac' % (V2 + 1))
    p('v_fmac_f32 v%d, 0x3b124925, v%d' % (V2 + 1, V2))
    p('v_rsq_f32 v%d, v%d' % (V2, V2 + 1))
    p('s_nop 0')
    p('v_mov_b32 v%d, v%d' % (V2 + 1, V2))
    if o.pf and o.pf_kv_early:
        p('buffer_load_dword v254, v241, s[92:95], 0 offen'); vm.add('pf')
    for i in range(56):
        p('v_pk_mul_f32 %s, %s, %s' % (vr(XC + 2 * i, 2), vr(XC + 2 * i, 2), vr(V2, 2)))
    stamp(p, o, 'stats')
    p("""
    s_cmp_lg_u32 s%d, 0
    s_cbranch_scc1 L_modwait_done
    v_mov_b32 v206, 0
L_poll:
    buffer_load_dword v207, v206, s[88:91], 0 offen offset:128 sc1
    s_waitcnt vmcnt(0)
    v_readfirstlane_b32 s60, v207
    s_cmp_eq_u32 s60, 1
    s_cbranch_scc1 L_poll_done
    s_sleep 8
    s_branch L_poll
L_poll_done:
    ;STAMP poll_done
L_modwait_done:
    s_barrier
""" % S_W)
    p("""
    v_lshlrev_b32 v206, 4, v%d
    s_lshl_b32 s60, s%d, 10
    v_add_u32 v206, s60, v206
    v_add_u32 v207, %d, v206
""" % (L, S_W, WS_MODP))
    for k_ in range(4):
        if k_: p('v_add_u32 v207, 3584, v207')
        p('buffer_load_dwordx4 %s, v207, s[24:27], 0 offen sc1' % vr(168 + 4 * k_, 4))
    p("""
    s_lshl_b32 s60, s%d, 8
    v_lshl_add_u32 v208, v%d, 2, s60
    v_cmp_le_u32 vcc, 448, v208
    s_waitcnt vmcnt(0)
""" % (S_W, L))
    for r in range(4):
        p('v_add_f32 v%d, v%d, v%d' % (168 + r, 168 + r, 172 + r))
        p('v_add_f32 v%d, v%d, v%d' % (176 + r, 176 + r, 180 + r))
    for r in range(4): p('v_add_f32 v%d, v%d, v%d' % (168 + r, 168 + r, 176 + r))
    for r in range(4): p('v_cvt_pk_bf16_f32 v%d, v%d, 0' % (168 + r, 168 + r))
    for r in range(4): p('v_lshlrev_b32 v%d, 16, v%d' % (168 + r, 168 + r))
    for r in range(4): p('v_add_f32 v%d, 1.0, v%d' % (172 + r, 168 + r))
    for r in range(4): p('v_cvt_pk_bf16_f32 v%d, v%d, 0' % (172 + r, 172 + r))
    for r in range(4): p('v_lshlrev_b32 v%d, 16, v%d' % (172 + r, 172 + r))
    for r in range(4): p('v_cndmask_b32 v%d, v%d, v%d, vcc' % (168 + r, 168 + r, 172 + r))
    for r in range(4): p('v_mul_f32 v%d, 0x3db8aa3b, v%d' % (168 + r, 168 + r))
    p('ds_write_b128 v206, v[168:171] offset:%d' % MV_OFF)
    p('s_waitcnt lgkmcnt(0)')
    p('s_barrier')
    p("""
    s_cmp_lt_u32 s2, 56
    s_cbranch_scc1 L_noa2
    s_cmp_ge_u32 s2, 168
    s_cbranch_scc1 L_noa2
    s_cmp_lg_u32 s%d, 0
    s_cbranch_scc1 L_noa2
    v_mov_b32 v209, 1
    v_mov_b32 v208, 0
    v_cmp_eq_u32 vcc, 0, v%d
    s_and_saveexec_b64 s[62:63], vcc
    buffer_atomic_add v209, v208, s[88:91], 0 offen offset:64 sc1
    s_mov_b64 exec, s[62:63]
L_noa2:
""" % (S_W, L))
    stamp(p, o, 'modbar')
    if o.pf and not o.pf_kv_early:
        p('buffer_load_dword v254, v241, s[92:95], 0 offen'); vm.add('pf')
    MVA = 222; HA = 223
    p('v_lshlrev_b32 v%d, 5, v201' % MVA)
    p('v_add_u32 v%d, %d, v%d' % (MVA, MV_OFF, MVA))
    p('s_mul_i32 s60, s%d, 14336' % S_W)
    p('v_lshlrev_b32 v%d, 4, v%d' % (HA, L))
    p('v_add_u32 v%d, s60, v%d' % (HA, HA))
    q = Prog()
    TA = [16, 32, 168, 184]
    def mvread(ks):
        t = TA[ks % 4]
        q('ds_read_b128 %s, v%d offset:%d' % (vr(t, 4), MVA, ks * 128))
        q('ds_read_b128 %s, v%d offset:%d' % (vr(t + 4, 4), MVA, ks * 128 + 16))
        q('ds_read_b128 %s, v%d offset:%d' % (vr(t + 8, 4), MVA, 1792 + ks * 128))
        q('ds_read_b128 %s, v%d offset:%d' % (vr(t + 12, 4), MVA, 1792 + ks * 128 + 16))
    for ks in range(3): mvread(ks)
    for ks in range(14):
        if ks + 3 < 14: mvread(ks + 3)
        t = TA[ks % 4]
        for j in range(4):
            q('v_pk_fma_f32 %s, %s, %s, %s' % (vr(t + 2 * j, 2), vr(XC + 8 * ks + 2 * j, 2), vr(t + 8 + 2 * j, 2), vr(t + 2 * j, 2)))
        hr = 4 * (ks % 4)
        for j in range(4):
            q('v_cvt_pk_bf16_f32 v%d, v%d, v%d' % (hr + j, t + 2 * j, t + 2 * j + 1))
        q('ds_write_b128 v%d, %s offset:%d' % (HA, vr(hr, 4), H_OFF + ks * 1024))
    w, _ = insert_waits(q.ins)
    li = 0
    cnt = 0
    for ins_ in w:
        p.ins.append(ins_)
        cnt += 1
        if cnt % 9 == 0 and li < len(late):
            while li < len(late):
                d = late[li]; li += 1
                if isinstance(d, tuple):
                    p(d[0]); vm.add(d[1]); break
                p(d)
                if 'm0' in d: p('s_nop 0')
    while li < len(late):
        d = late[li]; li += 1
        if isinstance(d, tuple): p(d[0]); vm.add(d[1])
        else:
            p(d)
            if 'm0' in d: p('s_nop 0')
    p('s_waitcnt lgkmcnt(0)')
    p('s_barrier')
    stamp(p, o, 'hbar')
    p('v_lshlrev_b32 v%d, 4, v%d' % (HA, L))
    for st in range(14):
        for qt in range(4):
            f = qt * 14 + st
            p('ds_read_b128 %s, v%d offset:%d' % (ar(4 * f, 4), HA, H_OFF + f * 1024))
    VA = 232
    p("""
    v_bfe_u32 v206, v%d, 2, 2          ; r
    v_and_b32 v207, 1, v201            ; kq&1
    v_lshl_add_u32 v207, v207, 2, v206 ; f = r + 4*(kq&1)
    v_lshlrev_b32 v208, 11, v201       ; 2*kq*1024
    v_lshl_add_u32 v208, v206, 8, v208 ; + r*256
    v_and_b32 v209, 3, v%d             ; c
    v_lshl_add_u32 v208, v209, 3, v208 ; + c*8
    v_add_u32 v208, s%d, v208          ; + w*8192
""" % (L, L, S_QD2))
    for T in range(8):
        p('v_xor_b32 v209, %d, v207' % T)
        p('v_lshl_add_u32 v%d, v209, 5, v208' % (VA + T))
    p('s_waitcnt lgkmcnt(0)')
    p('s_barrier')
    stamp(p, o, 'ln_done')
    return p, vm, VQ, VA

def qproj(o, vm, VQ, VA):
    p = Prog()
    N = 14 * 32
    sc = [[] for _ in range(N)]; mem = [[] for _ in range(N)]; val = [[] for _ in range(N)]
    def aread(n):
        st, T = n // 8, n % 8
        r = FR + 4 * (n % 4)
        off = QSLOT[st % 4]
        return st, T, r, off
    reads = []
    for n in range(14 * 8):
        st, T, r, off = aread(n)
        reads.append(['ds_read_b64_tr_b16 %s, v%d offset:%d' % (vr(r, 2), VA + T, 0),
                      'ds_read_b64_tr_b16 %s, v%d offset:%d' % (vr(r + 2, 2), VA + T, 1024)])
    pre = Prog()
    for T in range(8):
        pre('v_add_u32 v%d, %d, v%d' % (VA + T, QSLOT[0], VA + T))
    pre(vm.wait('wq0'))
    for n in range(3):
        for s in reads[n]: pre(s)
    for n in range(14 * 8):
        st, T = n // 8, n % 8
        g = 4 * (n - 3)
        if n >= 3:
            mem[g] += reads[n]
        if st + 1 < 14:
            d = QSLOT[(st + 1) % 4] - QSLOT[st % 4]
            upd = 'v_add_u32 v%d, %s, v%d' % (VA + T, ('0x%x' % (d & 0xffffffff)), VA + T)
            if n >= 3: val[g + 1].append(upd)
            else: val[n + 1].append(upd)
    for st in range(14):
        base = st * 32
        lst = None
        if st <= 10:
            lst = wq_dma(st + 3, vm, VQ)
            post = ['v_add_u32 v%d, 0x40000, v%d' % (VQ[0], VQ[0]), 'v_add_u32 v%d, 0x40000, v%d' % (VQ[1], VQ[1])]
        elif st >= 12 and not o.kdma_late:
            lst = [(s if s.startswith('s_') else (s, 'k%d' % (st - 12))) for s in dma(o, st - 12, 0, True, False)]
            post = ['v_add_u32 v%d, 0x8000, v%d' % (VOFF, VOFF)]
        if lst:
            gi = 0
            gaps = [base + 2 + 4 * i for i in range(8)]
            for s in lst:
                if isinstance(s, tuple):
                    mem[gaps[gi]].append(s); gi += 1
                else:
                    sc[gaps[gi] - 1].append(s)
            for i, s in enumerate(post):
                val[base + 31].append(s)
    post_cvt = []
    for T in range(8):
        for qt in range(4):
            g = 13 * 32 + T * 4 + qt + 7
            a_ = (T * 4 + qt) * 4; t_ = 128 + 2 * (T * 4 + qt)
            cv = ['v_cvt_pk_bf16_f32 v%d, v%d, v%d' % (t_, a_, a_ + 1), 'v_cvt_pk_bf16_f32 v%d, v%d, v%d' % (t_ + 1, a_ + 2, a_ + 3)]
            placed = False
            if o.qcvt:
                for gg in (g, g + 1, g + 2):
                    if gg < N and len(mem[gg]) == 0 and not val[gg]:
                        val[gg] += cv; placed = True; break
            if not placed: post_cvt += cv
    p.extend(pre)
    for gidx in range(N):
        st, rem = gidx // 32, gidx % 32
        T, qt = rem // 4, rem % 4
        n = st * 8 + T
        acc = (T * 4 + qt) * 4
        c = '0' if st == 0 else vr(acc, 4)
        m = 'v_mfma_f32_16x16x32_bf16 %s, %s, %s, %s' % (vr(acc, 4), vr(FR + 4 * (n % 4), 4), ar((qt * 14 + st) * 4, 4), c)
        p(m)
        if gidx + 1 < N:
            st2, rem2 = (gidx + 1) // 32, (gidx + 1) % 32
            if rem2 % 4 == 0:
                n2 = st2 * 8 + rem2 // 4
                p('.need v_mfma_f32_16x16x32_bf16 v[0:3], %s, v[0:3], 0' % vr(FR + 4 * (n2 % 4), 4))
        if rem == 20 and st + 1 < 14:
            p(vm.wait('wq%d' % (st + 1)))
        if st == 11 and rem == 31 and not o.kdma_late:
            p('s_barrier')
        for s in sc[gidx]: p(s)
        for s in mem[gidx]:
            if isinstance(s, tuple):
                p(s[0]); vm.add(s[1])
            else: p(s)
        for s in val[gidx]: p(s)
    p('s_nop 7')
    for x in post_cvt: p(x)
    return p

def kv_addresses(o):
    p = Prog()
    L = VLANE
    p('''
    s_mul_i32 s61, s%d, %d
    s_lshl_b32 s62, s%d, 14
    s_lshl_b32 s63, s%d, 13
    s_add_u32 s62, s62, s63
    v_lshlrev_b32 v%d, 4, v%d
    v_add_u32 v%d, s62, v%d
''' % (S_S, HALF, S_S, S_QH, VOFF, L, VOFF, VOFF))
    p('''
    v_and_b32 v240, 7, v%d
    v_mul_u32_u24 v240, %d, v240
    v_bfe_u32 v241, v%d, 3, 1
    v_lshlrev_b32 v241, 9, v241
    v_add_u32 v240, v240, v241
    v_lshrrev_b32 v241, 4, v%d
    v_lshlrev_b32 v241, 4, v241
    v_add_u32 v240, v240, v241
    v_add_u32 v%d, s61, v240
    v_lshrrev_b32 v240, 2, v%d
    v_and_b32 v241, 7, v240
    v_mul_u32_u24 v241, %d, v241
    v_lshrrev_b32 v240, 3, v240
    v_lshlrev_b32 v240, 9, v240
    v_add_u32 v240, v240, v241
    v_and_b32 v241, 3, v%d
    v_lshlrev_b32 v241, 3, v241
    v_add_u32 v240, v240, v241
    v_add_u32 v240, s61, v240
    v_add_u32 v%d, %d, v240
''' % (L, BLK, L, L, VK, L, BLK, L, VV, VBASE))
    return p

def qexchange(o, vm):
    p = Prog()
    L = VLANE
    p('''
    v_and_b32 v200, 15, v%d
    v_lshrrev_b32 v201, 4, v%d
    v_mul_u32_u24 v202, 1040, v200
    v_lshl_add_u32 v202, v201, 3, v202
    s_lshl_b32 s60, s%d, 8
    s_add_u32 s60, s60, %d
    v_add_u32 v202, s60, v202
    s_mov_b32 s61, 0x%x
''' % (L, L, S_W, QX, 0x3db8aa3b))
    p('s_barrier')
    if o.kdma_late:
        for kb in range(2):
            for s_ in dma(o, kb, 0, True, False, nop=True):
                p(s_)
                if s_.startswith('buffer'): vm.add('k%d' % kb)
            p('v_add_u32 v%d, 0x8000, v%d' % (VOFF, VOFF))
    q = Prog()
    for T in range(8):
        for qt in range(4):
            q('ds_write_b64 v202, %s offset:%d' % (vr(128 + 2 * (T * 4 + qt), 2), qt * 16 * 1040 + T * 32))
    p.extend(q)
    p('s_waitcnt lgkmcnt(0)')
    p('s_barrier')
    p('''
    s_mul_i32 s60, s%d, %d
    s_add_u32 s60, s60, %d
    v_mul_u32_u24 v202, 1040, v200
    v_lshl_add_u32 v202, v201, 4, v202
    v_add_u32 v202, s60, v202
''' % (S_QH, 32 * 1040, QX))
    for h in range(2):
        for qt in range(2):
            b = 2 * h + qt
            for ks in range(8):
                p('ds_read_b128 %s, v202 offset:%d' % (vr(32 * b + 4 * ks, 4), qt * 16 * 1040 + h * 512 + ks * 64))
    p(vm.wait('k0' if o.kdma_late else 'k1'))
    p('s_waitcnt lgkmcnt(0)')
    p('s_barrier')
    return p

def attn_prologue(o):
    p = Prog()
    p('v_add_u32 v%d, 0xffff0000, v%d' % (VOFF, VOFF))
    p('s_nop 0')
    for s in dma(o, 0, 0, False, True, nop=True): p(s)
    p('v_add_u32 v%d, 0x8000, v%d' % (VOFF, VOFF))
    p('''
    s_add_u32 s8, s8, 0x8000
    s_addc_u32 s9, s9, 0
    s_sub_u32 s10, s10, 0x8000
    s_add_u32 s12, s12, 0x8000
    s_addc_u32 s13, s13, 0
    s_sub_u32 s14, s14, 0x8000
''')
    q = Prog()
    qk = qk_list(o, czero=True)
    for n in range(2):
        for s in kread(o, n, 0): q(s)
    for sl in range(64):
        if sl % 8 == 0 and sl // 8 + 1 < 8:
            for s in kread(o, 2 * (sl // 8 + 1), 0) + kread(o, 2 * (sl // 8 + 1) + 1, 0): q(s)
        q(qk[sl])
    w, _ = insert_waits(q.ins)
    p.extend(w)
    p('s_nop 7')
    t = TMP
    for b in range(4):
        max8(p, t + b, b)
    for b in range(4):
        xreduce(p, t + b, t + 4, 'v_max_f32')
    for b in range(4):
        for r in range(4):
            p('v_sub_f32 v%d, 0, v%d' % (NEGM + 4 * b + r, t + b))
        for a in range(2):
            for r in range(4):
                p('v_sub_f32 v%d, v%d, v%d' % (S(a, b) + r, S(a, b) + r, t + b))
    for i in range(4):
        p('v_mov_b32 v%d, 0' % (LREG[1] + i))
    for s in exps(o, 0, 0, 1, 0): p(s)
    for s in exps(o, 1, 0, 1, 0): p(s)
    p('s_waitcnt vmcnt(0) lgkmcnt(0)')
    p('s_barrier')
    for n in range(2):
        for s in kread(o, n, 1): p(s)
    p('s_waitcnt lgkmcnt(0)')
    return p

MN, LL = 240, 244
def epi_setup(o):
    L = VLANE
    x = []
    for b in range(4): x.append('v_mov_b32 v%d, v%d' % (MN + b, NEGM + 4 * b))
    for b in range(4): x.append('v_mov_b32 v%d, v%d' % (LL + b, LREG[1] + b))
    for sw in ('v_permlane16_swap_b32', 'v_permlane32_swap_b32'):
        for b in range(4): x.append('v_mov_b32 v%d, v%d' % (248 + b, LL + b))
        for b in range(4): x.append('%s v%d, v%d' % (sw, LL + b, 248 + b))
        for b in range(4): x.append('v_add_f32 v%d, v%d, v%d' % (LL + b, LL + b, 248 + b))
    x += ['v_and_b32 v203, 15, v%d' % L, 'v_lshlrev_b32 v203, 5, v203',
          's_lshl_b32 s63, s%d, 9' % S_W, 's_add_u32 s63, s63, %d' % ST, 'v_add_u32 v202, s63, v203',
          'v_lshlrev_b32 v200, 4, v%d' % L,
          's_xor_b32 s64, s%d, 2' % S_W, 's_lshl_b32 s65, s64, 9', 's_add_u32 s65, s65, %d' % ST, 'v_add_u32 v203, s65, v203',
          's_lshl_b32 s64, s64, 15', 'v_add_u32 v201, s64, v200',
          's_lshl_b32 s66, s%d, 15' % S_W, 'v_add_u32 v200, s66, v200']
    return x

def attn_loop(o):
    p = Prog()
    first = A.iteration(o, 0, 'f', first_pv=True)
    w0, st0 = insert_waits(first.ins)
    p.extend(w0)
    p('s_mov_b32 s%d, 14' % S_CNT)
    p('.p2align 6')
    p('L_loop:')
    body = Prog()
    body.extend(A.iteration(o, 1, 'a'))
    body.extend(A.iteration(o, 0, 'b'))
    w1, st1 = insert_waits(body.ins, st0)
    w, st2 = insert_waits(body.ins, st1)
    assert st2 == st1 and [i.text for i in w] == [i.text for i in w1], 'not steady'
    loop_ins = w
    p.extend(w)
    p('s_sub_u32 s%d, s%d, 1' % (S_CNT, S_CNT))
    p('s_cmp_lg_u32 s%d, 0' % S_CNT)
    p('s_cbranch_scc1 L_loop')
    tail = Prog()
    ex = []
    if o.pf:
        ex = [(71, 'buffer_load_dword v255, v242, s[48:51], 0 offen')]
    tail.extend(A.iteration(o, 1, 'c', extra_mem=ex))
    ex = []
    if o.pf and o.pfmoe:
        ex = [(71, 'global_load_dword v255, v243, s[96:97]'), (75, 'global_load_dword v255, v243, s[98:99]'), (79, 'global_load_dword v255, v243, s[100:101]')]
    tail.extend(A.iteration(o, 0, 'd', do_dma_k=False, next_k=False, pf_ok=False, extra_mem=ex))
    tail('s_waitcnt vmcnt(%d) lgkmcnt(0)' % len(ex))
    tail('s_barrier')
    tail.extend(A.iteration(o, 1, 'e', do_qk=False, do_dma_k=False, do_dma_v=False, next_k=False, extra_valu=epi_setup(o)))
    w, _ = insert_waits(tail.ins, st1)
    p.extend(w)
    return p, w0, loop_ins, w

def combine(o, s, shadow):
    p = Prog()
    own = s; oth = 1 - s
    for dt in range(16):
        for qt in range(2):
            b = 2 * oth + qt
            p('ds_write_b128 v200, %s offset:%d' % (ar((dt * 4 + b) * 4, 4), (dt * 2 + qt) * 1024))
    for dt in range(16):
        for qt in range(2):
            b = 2 * own + qt
            for r in range(4):
                p('v_accvgpr_read_b32 v%d, a%d' % ((dt * 2 + qt) * 4 + r, (dt * 4 + b) * 4 + r))
    p.extend(shadow)
    p('s_waitcnt lgkmcnt(0)')
    p('s_barrier')
    stamp(p, o, 'e1bar')
    q = Prog()
    q('ds_read_b128 v[204:207], v203')
    q('ds_read_b128 v[208:211], v203 offset:16')
    order = [(2 * i + y, qt) for i in range(8) for qt in range(2) for y in range(2)]
    RING = 128
    def rd(k):
        dt, qt = order[k]
        q('ds_read_b128 %s, v201 offset:%d' % (vr(RING + 4 * (k % 8), 4), (dt * 2 + qt) * 1024))
    for k in range(8): rd(k)
    AL = 212; BE = 216
    for qt in range(2):
        b = 2 * own + qt
        mo = MN + b; mp = 204 + b; lo = LL + b; lp = 208 + b
        t = 220
        q('v_min_f32 v%d, v%d, v%d' % (t, mo, mp))
        q('v_sub_f32 v%d, v%d, v%d' % (t + 1, t, mo))
        q('v_sub_f32 v%d, v%d, v%d' % (t + 2, t, mp))
        q('v_exp_f32 v%d, v%d' % (t + 1, t + 1))
        q('v_exp_f32 v%d, v%d' % (t + 2, t + 2))
        q('s_nop 0')
        q('v_mul_f32 v%d, v%d, v%d' % (t + 3, t + 1, lo))
        q('v_fmac_f32 v%d, v%d, v%d' % (t + 3, t + 2, lp))
        q('v_rcp_f32 v%d, v%d' % (t + 3, t + 3))
        q('s_nop 0')
        q('v_mul_f32 v%d, v%d, v%d' % (AL + 2 * qt, t + 1, t + 3))
        q('v_mul_f32 v%d, v%d, v%d' % (BE + 2 * qt, t + 2, t + 3))
        q('v_mov_b32 v%d, v%d' % (AL + 2 * qt + 1, AL + 2 * qt))
        q('v_mov_b32 v%d, v%d' % (BE + 2 * qt + 1, BE + 2 * qt))
    for k in range(32):
        dt, qt = order[k]
        i, y = dt // 2, dt % 2
        rv = RING + 4 * (k % 8)
        ow = (dt * 2 + qt) * 4
        q('v_pk_mul_f32 %s, %s, %s' % (vr(rv, 2), vr(rv, 2), vr(BE + 2 * qt, 2)))
        q('v_pk_mul_f32 %s, %s, %s' % (vr(rv + 2, 2), vr(rv + 2, 2), vr(BE + 2 * qt, 2)))
        q('v_pk_fma_f32 %s, %s, %s, %s' % (vr(ow, 2), vr(ow, 2), vr(AL + 2 * qt, 2), vr(rv, 2)))
        q('v_pk_fma_f32 %s, %s, %s, %s' % (vr(ow + 2, 2), vr(ow + 2, 2), vr(AL + 2 * qt, 2), vr(rv + 2, 2)))
        if k + 8 < 32: rd(k + 8)
        fr = 160 + 4 * ((i * 2 + qt) % 8)
        q('v_cvt_pk_bf16_f32 v%d, v%d, v%d' % (fr + 2 * y, ow, ow + 1))
        q('v_cvt_pk_bf16_f32 v%d, v%d, v%d' % (fr + 2 * y + 1, ow + 2, ow + 3))
        if y == 1:
            q('ds_write_b128 v201, %s offset:%d' % (vr(fr, 4), (i * 2 + qt) * 1024))
    w, _ = insert_waits(q.ins)
    p.extend(w)
    return p

def wo_dma(step, slot, VW):
    out = []
    for jj in range(7):
        out.append('s_add_u32 m0, s%d, %d' % (S_T0 + slot, jj * 1024))
        out.append(('buffer_load_dwordx4 v%d, s[%d:%d], s%d offen lds' % (VW + jj, S_WO, S_WO + 3, S_WST), 'wo%d' % step))
    return out

def epilogue(o):
    p = Prog()
    L = VLANE
    vm = VmTracker()
    VW = 232
    p('s_nop 7')
    p('''
    s_barrier
    ds_write_b128 v202, v[%d:%d]
    ds_write_b128 v202, v[%d:%d] offset:16
''' % (MN, MN + 3, LL, LL + 3))
    sh = Prog()
    sh('s_mul_i32 s60, s%d, 224' % S_W)
    sh('s_mov_b32 s61, 0x124925')
    for jj in range(7):
        sh('v_add_u32 v192, %d, v%d' % (64 * jj, L))
        sh('v_mul_u32_u24 v193, s61, v192')
        sh('v_lshrrev_b32 v193, 24, v193')
        sh('v_mul_u32_u24 v194, 14, v193')
        sh('v_sub_u32 v194, v192, v194')
        sh('v_mul_u32_u24 v193, 896, v193')
        sh('v_lshl_add_u32 v193, v194, 4, v193')
        sh('v_add_u32 v%d, s60, v193' % (VW + jj))
    sh('''
    s_mul_i32 s60, s%d, 7168
    s_add_u32 s60, s60, %d
    s_lshl_b32 s61, s%d, 15
    s_add_u32 s61, s61, 16384
    s_add_u32 s62, s61, 7168
    s_mov_b32 s%d, 0
''' % (S_W, WO0, S_W, S_WST))
    emit_dma(sh, wo_dma(0, 0, VW), vm)
    sh('s_mov_b32 s%d, 28672' % S_WST)
    AW = 224
    BW = 228
    sh('''
    v_lshrrev_b32 v192, 2, v%d          ; 4kq + r
    v_mul_u32_u24 v192, 224, v192
    v_and_b32 v193, 3, v%d
    v_lshl_add_u32 v192, v193, 3, v192
    v_add_u32 v%d, s60, v192
    v_add_u32 v%d, s61, v192
    v_add_u32 v%d, s62, v192
    v_lshlrev_b32 v192, 4, v%d
''' % (L, L, AW, AW + 1, AW + 2, L))
    for r in range(4):
        sh('v_add_u32 v%d, %d, v192' % (BW + r, r * 32768))
    p('s_cmp_eq_u32 s%d, 0' % S_S)
    p('s_cbranch_scc0 L_comb1')
    c0 = combine(o, 0, sh); c1 = combine(o, 1, sh)
    p.extend(c0)
    p('s_branch L_combdone')
    p('L_comb1:')
    p.extend(c1)
    p('L_combdone:')
    stamp(p, o, 'comb')
    if o.fuse_k2:
        p('s_load_dwordx2 s[4:5], s[0:1], 48')
        p('s_load_dwordx2 s[6:7], s[0:1], 96')
        if o.one:
            p('s_load_dwordx4 s[28:31], s[0:1], 56')
            p('s_load_dwordx2 s[32:33], s[0:1], 72')
        p('v_mov_b32 v250, 0')
        p('buffer_load_dword v251, v250, s[88:91], 0 offen offset:64 sc1'); vm.add('chk')
    p('s_waitcnt lgkmcnt(0)')
    p('s_barrier')
    stamp(p, o, 'e3bar')
    emit_dma(p, wo_dma(1, 1, VW), vm)
    p('s_mov_b32 s%d, %d' % (S_WST, 2 * 28672))
    def bread(ks, qtile):
        h, i = ks >> 3, ks & 7
        qh, qt = qtile >> 1, qtile & 1
        reg = qh + 2 * (1 - h)
        return 'ds_read_b128 %s, v%d offset:%d' % (vr(112 + 16 * (ks % 2) + 4 * qtile, 4), BW + reg, (i * 2 + qt) * 1024)
    def aread(n):
        ks, T = n // 7, n % 7
        r = FR + 4 * (n % 4)
        return ['ds_read_b64_tr_b16 %s, v%d offset:%d' % (vr(r + 2 * a, 2), AW + ks % 3, a * 3584 + T * 32) for a in range(2)]
    N = 16 * 28
    sc = [[] for _ in range(N)]; mem = [[] for _ in range(N)]; val = [[] for _ in range(N)]
    pre = Prog()
    pre(vm.wait('wo0'))
    for qtile in range(4): pre(bread(0, qtile))
    for n in range(3):
        for s in aread(n): pre(s)
    for n in range(3, 16 * 7):
        mem[4 * (n - 3)] += aread(n)
    for ks in range(15):
        for qtile in range(4):
            mem[28 * ks + 4 * qtile + 5 + 8].append(bread(ks + 1, qtile))
    for ks in range(14):
        lst = wo_dma(ks + 2, (ks + 2) % 3, VW)
        gaps = [28 * ks + 2 + 4 * i for i in range(7)]
        gi = 0
        for s in lst:
            if isinstance(s, tuple):
                mem[gaps[gi]].append(s); gi += 1
            else:
                sc[gaps[gi] - 1].append(s)
        sc[28 * ks + 27].append('s_add_u32 s%d, s%d, 28672' % (S_WST, S_WST))
    import ksmall
    hs = Prog(); hv = []
    hs('''
    s_lshl_b32 s56, s%d, 6
    s_lshl_b32 s57, s%d, 3
    s_add_u32 s56, s56, s57
    s_lshl_b32 s58, s%d, 1
    s_add_u32 s56, s56, s58
    s_add_u32 s57, s57, s58
    s_mul_i32 s57, s57, 896
    s_mul_i32 s58, s56, 896
''' % (S_QB, S_G, S_W))
    ksmall.srd(hs, 8, 24, 8 * 2048 * 896, str(WS_PART))
    ksmall.srd(hs, 12, 4, 896)
    ksmall.srd(hs, 16, 6, 2048 * 896)
    ksmall.srd(hs, 20, 24, 2048 * 896, str(WS_H2))
    ksmall.srd(hs, 96, 24, 8192, str(WS_R))
    hs('s_lshl_b32 s63, s%d, 7' % S_QB)
    hs('s_add_u32 s63, s63, %d' % WS_CNT)
    ksmall.srd(hs, 52, 24, 128, 's63')
    hs('''
    s_lshl_b32 s63, s%d, 11
    s_lshl_b32 s64, s%d, 6
    s_add_u32 s63, s63, s64
    s_mul_i32 s63, s63, 896
    s_add_u32 s63, s63, %d
    s_add_u32 s68, s24, s63
    s_addc_u32 s69, s25, 0
    s_mov_b32 s70, 57344
    s_mov_b32 s71, 0x20000
    s_mul_i32 s63, s%d, 224
    s_mul_i32 s64, s%d, %d
    s_mul_i32 s66, s%d, %d
    s_lshl_b32 s67, s%d, 10
''' % (S_G, S_QB, WS_PART, S_W, S_W, 16 * 912, S_W, 16 * 896, S_W))
    chunks = []
    for ins_ in hs.ins:
        if ins_.op == 's_addc_u32': chunks[-1].append(ins_.text)
        else: chunks.append([ins_.text])
    g = 28 * 12 + 1
    for ch in chunks:
        while len(sc[g]) + len(ch) > 3: g += 1
        sc[g] += ch
    assert g < 28 * 13
    hv = [
        'v_lshlrev_b32 v198, 4, v%d' % L, 'v_lshlrev_b32 v199, 4, v%d' % L, 'v_mov_b32 v194, 0x40000000',
        'v_cmp_gt_u32 vcc, 56, v%d' % L, 'v_mov_b32 v196, 0x00003f80', 'v_mov_b32 v197, 0x3f800000',
        'v_cndmask_b32 v198, v194, v198, vcc', 'v_cndmask_b32 v193, 0, 1.0, vcc',
        'v_add_u32 v192, s58, v198', 'v_add_u32 v195, s57, v198',
        'v_add_u32 v199, s67, v199', 'v_add_u32 v205, %d, v199' % WS_MODP2,
        'v_and_b32 v200, 15, v%d' % L, 'v_mul_u32_u24 v200, 912, v200', 'v_lshrrev_b32 v201, 4, v%d' % L,
        'v_lshl_add_u32 v200, v201, 3, v200', 'v_add_u32 v200, s63, v200',
        'v_lshlrev_b32 v201, 4, v%d' % L, 'v_add_u32 v202, s64, v201', 'v_add_u32 v203, s66, v201',
        'v_cndmask_b32 v203, v194, v203, vcc']
    g = 28 * 13 + 1
    for x in hv:
        while len(mem[g]) or len(val[g]) >= 2: g += 1
        val[g].append(x)
    a2g = 28 * 14 + 17
    assert g < a2g
    sc[a2g].append('.a2check')
    lds_ = [('buffer_load_dwordx4 %s, v195, s[40:43], 0 offen offset:%d' % (vr(144 + 4 * rr, 4), rr * 896)) for rr in range(2)]
    for k_ in range(4):
        for i_ in range(2):
            lds_.append(('s_mov_b32 s59, %d' % (k_ * 7168 + i_ * 4096), 'buffer_load_dwordx4 %s, v205, s[24:27], s59 offen sc1' % vr(160 + 8 * k_ + 4 * i_, 4)))
    lds_.append('buffer_load_dwordx4 v[152:155], v198, s[12:15], 0 offen')
    g = a2g + 1
    for x in lds_:
        while len(mem[g]): g += 1
        if isinstance(x, tuple):
            sc[g].append(x[0]); mem[g].append((x[1], 'tail'))
        else: mem[g].append((x, 'tail'))
        g += 2
    assert g < N + 2, g
    body = Prog()
    body.extend(pre)
    for gidx in range(N):
        ks, rem = gidx // 28, gidx % 28
        T, qt = rem // 4, rem % 4
        n = ks * 7 + T
        acc = (T * 4 + qt) * 4
        c = '0' if ks == 0 else vr(acc, 4)
        body('v_mfma_f32_16x16x32_bf16 %s, %s, %s, %s' % (vr(acc, 4), vr(FR + 4 * (n % 4), 4), vr(112 + 16 * (ks % 2) + 4 * qt, 4), c))
        if gidx + 1 < N:
            ks2, rem2 = (gidx + 1) // 28, (gidx + 1) % 28
            n2 = ks2 * 7 + rem2 // 4
            body('.need v_mfma_f32_16x16x32_bf16 v[0:3], %s, %s, 0' % (vr(FR + 4 * (n2 % 4), 4), vr(112 + 16 * (ks2 % 2) + 4 * (rem2 % 4), 4)))
        if rem == 16 and ks + 1 < 16:
            body(vm.wait('wo%d' % (ks + 1)))
        for s in sc[gidx]:
            if s == '.a2check':
                body('v_readfirstlane_b32 s59, v251')
                body('s_cmp_eq_u32 s59, 112')
                body('s_cbranch_scc0 L_a2rare')
                body('L_a2ok:')
            else: body(s)
        for s in mem[gidx]:
            if isinstance(s, tuple):
                body(s[0]); vm.add(s[1])
            else: body(s)
        for s in val[gidx]: body(s)
    w, _ = insert_waits(body.ins)
    p.extend(w)
    stamp(p, o, 'oproj')
    p('s_nop 7')
    p('s_barrier')
    k = 0
    for qt in range(4):
        for T in range(7):
            acc = (T * 4 + qt) * 4
            t = 112 + 2 * (k % 16); k += 1
            p('v_cvt_pk_bf16_f32 v%d, v%d, v%d' % (t, acc, acc + 1))
            p('v_cvt_pk_bf16_f32 v%d, v%d, v%d' % (t + 1, acc + 2, acc + 3))
            p('ds_write_b64 v200, %s offset:%d' % (vr(t, 2), qt * 16 * 912 + T * 32))
    p('s_waitcnt lgkmcnt(0)')
    p('s_barrier')
    q = Prog()
    for rr in range(16):
        q('ds_read_b128 %s, v202 offset:%d' % (vr(4 * rr, 4), rr * 912))
    for rr in range(16):
        if rr % 4 == 0 and rr: q('v_add_u32 v203, %d, v203' % (4 * 896))
        q('buffer_store_dwordx4 %s, v203, s[68:71], 0 offen offset:%d%s' % (vr(4 * rr, 4), (rr % 4) * 896, o.part_flags))
    w, _ = insert_waits(q.ins)
    p.extend(w)
    stamp(p, o, 'stores')
    p('s_waitcnt vmcnt(16)')
    for i_ in range(2):
        for r in range(4):
            p('v_add_f32 v%d, v%d, v%d' % (160 + 4 * i_ + r, 160 + 4 * i_ + r, 168 + 4 * i_ + r))
            p('v_add_f32 v%d, v%d, v%d' % (176 + 4 * i_ + r, 176 + 4 * i_ + r, 184 + 4 * i_ + r))
    for k_ in range(8): p('v_add_f32 v%d, v%d, v%d' % (160 + k_, 160 + k_, 176 + k_))
    for k_ in range(8): p('v_cvt_pk_bf16_f32 v%d, v%d, 0' % (160 + k_, 160 + k_))
    for k_ in range(8): p('v_lshlrev_b32 v%d, 16, v%d' % (160 + k_, 160 + k_))
    for k_ in range(8): p('v_add_f32 v%d, 1.0, v%d' % (168 + k_, 160 + k_))
    for k_ in range(8): p('v_cvt_pk_bf16_f32 v%d, v%d, 0' % (168 + k_, 168 + k_))
    for k_ in range(8): p('v_lshlrev_b32 v%d, 16, v%d' % (168 + k_, 168 + k_))
    p('v_lshrrev_b32 v242, 2, v199')
    for i_ in range(2):
        p('v_add_u32 v243, %d, v242' % ((1024 * i_ - 896) & 0xffffffff))
        p('v_cmp_gt_u32 vcc, 448, v243')
        p('s_nop 1')
        for r in range(4): p('v_cndmask_b32 v%d, v%d, v%d, vcc' % (160 + 4 * i_ + r, 160 + 4 * i_ + r, 168 + 4 * i_ + r))
    p('ds_write_b128 v199, v[160:163] offset:%d' % VEC)
    p('ds_write_b128 v199, v[164:167] offset:%d' % (VEC + 4096))
    if not o.one:
        p('s_cmp_lg_u32 s2, 0')
        p('s_cbranch_scc1 L_novecpub')
        p('s_mov_b32 s59, 3584')
        p('buffer_store_dwordx4 v[160:163], v199, s[24:27], s59 offen')
        p('s_mov_b32 s59, 7680')
        p('buffer_store_dwordx4 v[164:167], v199, s[24:27], s59 offen')
        p('L_novecpub:')
    p('''
    s_lshl_b32 s63, s%d, 3
    s_lshl_b32 s64, s%d, 1
    s_add_u32 s63, s63, s64
    s_mul_i32 s63, s63, 912
    v_min_u32 v240, 55, v%d
    v_lshlrev_b32 v241, 4, v240
    v_add_u32 v241, s63, v241
    v_lshlrev_b32 v240, 5, v240
''' % (S_G, S_W, L))
    for j in range(1, 8):
        p('s_add_u32 s%d, s%d, %d' % (72 - 72 + 76 + j if False else 59, S_G, j))
        p('s_and_b32 s59, s59, 7')
        p('s_mul_i32 s%d, s59, %d' % (24 + 0 if False else GOFF + j, 2048 * 896))
    p('s_waitcnt vmcnt(0) lgkmcnt(0)')
    stamp(p, o, 'drain')
    p('''
    s_barrier
    s_cmp_lg_u32 s%d, 0
    s_cbranch_scc1 L_grp_done
    v_mov_b32 v0, 1
    v_mov_b32 v1, 0
    v_cmp_eq_u32 vcc, 0, v%d
    s_and_saveexec_b64 s[60:61], vcc
    buffer_atomic_add v0, v1, s[52:55], 0 offen sc1
    s_mov_b64 exec, s[60:61]
L_grp_poll:
    buffer_load_dword v2, v1, s[52:55], 0 offen sc1
    s_waitcnt vmcnt(0)
    v_readfirstlane_b32 s59, v2
    s_cmp_eq_u32 s59, 8
    s_cbranch_scc1 L_grp_done
    s_sleep 2
    s_branch L_grp_poll
L_grp_done:
    s_barrier
''' % (S_W, L))
    stamp(p, o, 'grp')
    for rr in range(2):
        for j in range(1, 8):
            p('buffer_load_dwordx4 %s, v192, s[8:11], s%d offen offset:%d sc1' % (vr(32 * rr + 4 * j, 4), GOFF + j, rr * 896))
    for rr in range(2):
        p('ds_read_b128 %s, v241 offset:%d' % (vr(32 * rr, 4), rr * 912))
    for k_ in range(4):
        p('ds_read_b128 %s, v240 offset:%d' % (vr(160 + 8 * k_, 4), VEC + k_ * 1792))
        p('ds_read_b128 %s, v240 offset:%d' % (vr(164 + 8 * k_, 4), VEC + k_ * 1792 + 16))
    ACC = [64, 72]
    for rr in range(2):
        for j in range(8): p('v_mov_b32 v%d, 0' % (ACC[rr] + j))
    p('v_cmp_gt_u32 vcc, 56, v%d' % L)
    p('s_waitcnt lgkmcnt(0)')
    p('s_nop 0')
    for rr in range(2):
        for r in range(4): p('v_cndmask_b32_e64 v%d, 0, v%d, vcc' % (32 * rr + r, 32 * rr + r))
    for rr in range(2):
        p('s_waitcnt vmcnt(%d)' % (7 if rr == 0 else 0))
        for g_ in range(8):
            for j in range(8):
                p('v_dot2_f32_bf16 v%d, v%d, v%d, v%d' % (ACC[rr] + j, 32 * rr + 4 * g_ + j // 2, 196 + j % 2, ACC[rr] + j))
    p('s_nop 2')
    stamp(p, o, 'k2ld')
    if not o.one:
        ksmall.k2_math(p, [0, 32], [144, 148], 160, 168, 176, 184, 152, ACC, [80, 88], 96, 192, 193, L, 194, 196, 20, 16, 96, 56, 104)
        return p
    ksmall.K2_H_FLAGS = ' sc1'; ksmall.K2_OUT_FLAGS = ' sc1'
    kr = ksmall.k2_math(p, [0, 32], [144, 148], 160, 168, 176, 184, 152, ACC, [80, 88], 96, 192, 193, L, 194, 196, 20, 16, 96, 56, 104, key_in_reg=True)
    stamp(p, o, 'k2m')
    p('''
    s_lshl_b32 s59, s%d, 3
    s_add_u32 s59, s59, %d
    v_lshl_add_u32 v104, v%d, 2, s59
    v_cmp_gt_u32 vcc, 2, v%d
    s_and_saveexec_b64 s[60:61], vcc
    ds_write_b32 v104, v%d
    s_mov_b64 exec, s[60:61]
    s_waitcnt vmcnt(0) lgkmcnt(0)
''' % (S_W, KEYL, L, L, kr))
    p('''
    s_barrier
    s_cmp_lg_u32 s%d, 0
    s_cbranch_scc1 L_key_done
    v_lshlrev_b32 v104, 2, v%d
    v_add_u32 v107, %d, v104
    ds_read_b32 v105, v107
    s_lshr_b32 s59, s56, 3
    s_lshl_b32 s59, s59, 5             ; first row of the workgroup * 4  (row0 = 8*k + 0 for wave 0)
    v_add_u32 v104, s59, v104
    v_mov_b32 v106, 0x40000000
    v_cmp_gt_u32 vcc, 8, v%d
    s_waitcnt lgkmcnt(0)
    s_nop 0
    v_cndmask_b32 v104, v106, v104, vcc
    buffer_store_dword v105, v104, s[96:99], 0 offen sc1
L_key_done:
''' % (S_W, L, KEYL, L))
    stamp(p, o, 'pub')
    p('s_cmp_ge_u32 s2, 84')
    p('s_cbranch_scc1 L_st_end_k34')
    ksmall.moe_main(p, S_W, L, VEC, lambda n: stamp(p, o, n))
    p('L_st_end_k34:')
    return p

GOFF = 43

def a2rare():
    p = Prog()
    p('''
L_a2rare:
    buffer_load_dword v251, v250, s[88:91], 0 offen offset:64 sc1
    s_waitcnt vmcnt(0)
    v_readfirstlane_b32 s59, v251
    s_cmp_eq_u32 s59, 112
    s_cbranch_scc1 L_a2ok
    s_sleep 8
    s_branch L_a2rare
''')
    return p

def expand_stamps(p, o):
    q = Prog()
    for i in p.ins:
        if i.text.startswith(';STAMP'):
            stamp(q, o, i.text.split()[1])
        elif i.text.startswith(';ZEROCNT'):
            q('''
    s_cmp_lg_u32 s2, 0
    s_cbranch_scc1 L_nozero
    v_lshlrev_b32 v166, 7, v%d
    v_add_u32 v166, %d, v166
    v_mov_b32 v167, 0x40000000
    v_cmp_gt_u32 vcc, 40, v%d
    s_nop 1
    v_cndmask_b32 v166, v167, v166, vcc
    v_mov_b32 v167, 0
    buffer_store_dword v167, v166, s[24:27], 0 offen sc1
L_nozero:
''' % (VLANE, WS_CNT, VLANE))
            if o.one:
                q('''
    v_mov_b32 v156, -1
    v_mov_b32 v157, -1
    v_mov_b32 v158, -1
    v_mov_b32 v159, -1
    v_lshlrev_b32 v166, 4, v%d
    s_lshl_b32 s60, s2, 9
    s_add_u32 s60, s60, %d
    v_add_u32 v160, s60, v166
    v_mov_b32 v167, 0x40000000
    v_cmp_gt_u32 vcc, 32, v%d
    s_lshl_b32 s60, s2, 8
    s_add_u32 s60, s60, %d
    v_cndmask_b32 v160, v167, v160, vcc
    v_add_u32 v161, s60, v166
    v_cmp_gt_u32 vcc, 16, v%d
    buffer_store_dwordx4 v[156:159], v160, s[24:27], 0 offen sc1
    s_cmp_ge_u32 s2, 32
    s_cbranch_scc1 L_nokeyfill
    v_cndmask_b32 v161, v167, v161, vcc
    buffer_store_dwordx4 v[156:159], v161, s[24:27], 0 offen sc1
L_nokeyfill:
''' % (VLANE, WS_ACT, VLANE, WS_R, VLANE))
        else: q.ins.append(i)
    return q

def dump_stamps(p, o, tag):
    p('s_waitcnt vmcnt(0)')
    stamp(p, o, 'end')
    p('s_waitcnt lgkmcnt(0)')
    p('''
    s_lshl_b32 s60, s2, 2
    s_add_u32 s60, s60, s%d
    s_lshl_b32 s60, s60, 6
    s_add_u32 s60, s60, 0x%x
    v_mov_b32 v201, s60
''' % (S_W, WS_STAMP))
    for k in range(8):
        p('v_mov_b32 v%d, s%d' % (202 + k, S_STAMP + 2 * k))
    p('''
    v_cmp_eq_u32 vcc, 0, v%d
    s_and_saveexec_b64 s[60:61], vcc
    s_cbranch_execz L_nostamp%s
    buffer_store_dwordx4 v[202:205], v201, s[24:27], 0 offen
    buffer_store_dwordx4 v[206:209], v201, s[24:27], 0 offen offset:16
L_nostamp%s:
    s_mov_b64 exec, s[60:61]
''' % (VLANE, tag, tag))

def build_k1(o):
    p = Prog()
    p('k1_kernel:')
    pro, vm, VQ, VA = prologue(o)
    p.extend(expand_stamps(pro, o))
    p.extend(kv_addresses(o))
    qp = qproj(o, vm, VQ, VA)
    w, _ = insert_waits(qp.ins)
    p.extend(w)
    stamp(p, o, 'qproj')
    p.extend(qexchange(o, vm))
    stamp(p, o, 'qexch')
    if getattr(o, 'dump', '') == 'q':
        p('''
    s_lshl_b32 s60, s2, 2
    s_add_u32 s60, s60, s%d
    s_lshl_b32 s60, s60, 15
    s_add_u32 s60, s60, 0x2000000
    v_lshlrev_b32 v200, 4, v%d
    v_add_u32 v200, s60, v200
''' % (S_W, VLANE))
        for n in range(32):
            if n % 4 == 0 and n: p('v_add_u32 v200, 0x1000, v200')
            p('buffer_store_dwordx4 %s, v200, s[24:27], 0 offen offset:%d' % (vr(4 * n, 4), (n % 4) * 1024))
        p('s_waitcnt vmcnt(0)')
    p.extend(attn_prologue(o))
    stamp(p, o, 'attnpro')
    if o.stamps: p('s_waitcnt lgkmcnt(0)')
    lp, first, loop_ins, tail = attn_loop(o)
    p.extend(lp)
    stamp(p, o, 'loop')
    if getattr(o, 'dump', '') == 'o':
        p('s_nop 7')
        p('''
    s_lshl_b32 s60, s2, 18
    s_lshl_b32 s61, s%d, 16
    s_add_u32 s60, s60, s61
    s_add_u32 s60, s60, 0x2000000
    v_lshlrev_b32 v210, 4, v%d
    v_add_u32 v210, s60, v210
''' % (S_W, VLANE))
        for r4 in range(64):
            if r4 % 4 == 0 and r4: p('v_add_u32 v210, 0x1000, v210')
            p('buffer_store_dwordx4 %s, v210, s[24:27], 0 offen offset:%d' % (ar(4 * r4, 4), (r4 % 4) * 1024))
        p('''
    s_lshl_b32 s60, s2, 2
    s_add_u32 s60, s60, s%d
    s_lshl_b32 s60, s60, 11
    s_add_u32 s60, s60, 0x8000000
    v_lshlrev_b32 v210, 2, v%d
    v_add_u32 v210, s60, v210
''' % (S_W, VLANE))
        for b in range(4):
            p('buffer_store_dword v%d, v210, s[24:27], 0 offen offset:%d' % (NEGM + 4 * b, 256 * b))
            p('buffer_store_dword v%d, v210, s[24:27], 0 offen offset:%d' % (LREG[1] + b, 1024 + 256 * b))
        p('s_waitcnt vmcnt(0)')
    p.extend(epilogue(o))
    if o.stamps and not o.one:
        stamp(p, o, 'k2m')
        dump_stamps(p, o, '')
    if o.stamps and o.one:
        dump_stamps(p, o, 'B')
    p('s_waitcnt vmcnt(0)')
    p('L_end_k1:')
    p('s_endpgm')
    for tag, par in (('f', 0), ('a', 1), ('b', 0), ('c', 1), ('d', 0)):
        p('L_rare_%s:' % tag)
        p('s_call_b64 s[%d:%d], L_fb_%d' % (S_RET, S_RET + 1, par))
        p('s_branch L_back_%s' % tag)
    p.extend(a2rare())
    p.extend(A.fallback(o, 0))
    p.extend(A.fallback(o, 1))
    probs = check_hazards(first + loop_ins + loop_ins + tail, 'loop') + check_hazards(p.ins, 'all')
    return p, probs

KD = '''
.amdhsa_kernel %s
  .amdhsa_next_free_vgpr %d
  .amdhsa_next_free_sgpr %d
  .amdhsa_accum_offset %d
  .amdhsa_group_segment_fixed_size 0
  .amdhsa_kernarg_size 120
  .amdhsa_user_sgpr_count 2
  .amdhsa_user_sgpr_kernarg_segment_ptr 1
  .amdhsa_system_sgpr_workgroup_id_x 1
  .amdhsa_float_denorm_mode_32 3
.end_amdhsa_kernel
'''

if __name__ == '__main__':
    import sys
    o = A.Opt()
    o.kgap = 1
    o.dma_gaps = [3, 7, 11, 15, 19, 23, 27, 31, 35, 39, 43, 47, 51, 55, 59, 63]
    o.stamps = 1; o.pf = 1; o.pfd = 4; o.pfmoe = 1; o.pf_kv_early = 0; o.late_dma = 0; o.qcvt = 1; o.fuse_k2 = 1; o.kdma_late = 0; o.one = 1; o.part_flags = ' sc1'
    out = sys.argv[1]
    for kv in sys.argv[2:]:
        k, v = kv.split('=')
        try: v = int(v, 0)
        except ValueError:
            if v.startswith('['): v = eval(v)
        setattr(o, k, v)
    p, probs = build_k1(o)
    for pr in probs[:20]: print(pr)
    print('hazards', len(probs), 'instrs', len(p.ins))
    hdr = '''; @launch kernel=k1_kernel grid=(256,1,1) block=(256,1,1) lds=163840
.amdgcn_target "amdgcn-amd-amdhsa--gfx950"
.text
.globl k1_kernel
.p2align 8
.type k1_kernel,@function
'''
    ftr = '.section .rodata,"a"\n.p2align 6' + KD % ('k1_kernel', 512, 102, 256)
    open(out, 'w').write(hdr + p.text() + ftr)
```

```python
from asmlib import *
from k1 import WS_CNT, WS_MOD, WS_R, WS_IDX, WS_ACT, WS_H2, WS_PART, xreduce
def vr(a, n=1): return 'v%d' % a if n == 1 else 'v[%d:%d]' % (a, a + n - 1)

def srd(p, s, ptr_lo, nbytes, off=None):
    if off is None:
        if s != ptr_lo:
            p('s_mov_b32 s%d, s%d' % (s, ptr_lo)); p('s_mov_b32 s%d, s%d' % (s + 1, ptr_lo + 1))
    else:
        p('s_add_u32 s%d, s%d, %s' % (s, ptr_lo, off)); p('s_addc_u32 s%d, s%d, 0' % (s + 1, ptr_lo + 1))
    p('s_mov_b32 s%d, %s' % (s + 2, nbytes)); p('s_mov_b32 s%d, 0x20000' % (s + 3))

def wave_reduce(p, r, t, op='v_add_f32'):
    for k in (1, 2, 4, 8):
        p('s_nop 1')
        p('%s_dpp v%d, v%d, v%d row_ror:%d row_mask:0xf bank_mask:0xf' % (op, r, r, r, k))
    p('s_nop 0')
    xreduce(p, r, t, op)

def wave_reduce_multi(p, regs, temps, op='v_add_f32'):
    for k in (1, 2, 4, 8):
        if len(regs) < 3: p('s_nop %d' % (2 - len(regs)))
        for r in regs:
            p('%s_dpp v%d, v%d, v%d row_ror:%d row_mask:0xf bank_mask:0xf' % (op, r, r, r, k))
    for sw in ('v_permlane16_swap_b32', 'v_permlane32_swap_b32'):
        p('s_nop 0')
        for r, t in zip(regs, temps): p('v_mov_b32 v%d, v%d' % (t, r))
        p('s_nop 1')
        for r, t in zip(regs, temps): p('%s v%d, v%d' % (sw, r, t))
        p('s_nop 1')
        for r, t in zip(regs, temps): p('%s v%d, v%d, v%d' % (op, r, r, t))

def build_k0():
    p = Prog()
    p('''
k0_kernel:
    s_cmp_ge_u32 s2, 42
    s_cbranch_scc1 L_end_k0
    s_load_dwordx4 s[4:7], s[0:1], 80
    s_load_dwordx2 s[24:25], s[0:1], 112
    v_and_b32 v1, 7, v0            ; cc
    v_lshrrev_b32 v2, 3, v0        ; kg 0..31
    s_waitcnt lgkmcnt(0)
''')
    srd(p, 8, 4, 896)
    srd(p, 12, 6, 448 * 5376)
    srd(p, 24, 24, 10752)
    p('''
    v_mul_u32_u24 v3, 5376, v2
    v_lshl_add_u32 v3, v1, 4, v3
    s_lshl_b32 s16, s2, 7
    v_add_u32 v3, s16, v3
    v_lshlrev_b32 v4, 1, v2        ; c offset
''')
    for i in range(14):
        p('buffer_load_ushort v%d, v4, s[8:11], 0 offen offset:%d' % (10 + i, 64 * i))
    p('s_mov_b32 s17, %d' % (32 * 5376))
    for i in range(14):
        p('buffer_load_dwordx4 %s, v3, s[12:15], 0 offen' % vr(32 + 4 * i, 4))
        if i < 13: p('v_add_u32 v3, s17, v3')
    p('s_waitcnt vmcnt(14)')
    for i in range(14):
        p('v_lshlrev_b32 v%d, 16, v%d' % (10 + i, 10 + i))
    for i in range(14):
        p('v_mul_f32 v%d, 0xbfb8aa3b, v%d' % (96 + i, 10 + i))
    for i in range(14):
        p('v_exp_f32 v%d, v%d' % (96 + i, 96 + i))
    for i in range(14):
        p('v_add_f32 v%d, 1.0, v%d' % (96 + i, 96 + i))
    for i in range(14):
        p('v_rcp_f32 v%d, v%d' % (96 + i, 96 + i))
    for i in range(14):
        p('v_mul_f32 v%d, v%d, v%d' % (10 + i, 10 + i, 96 + i))
    for i in range(14):
        p('v_cvt_pk_bf16_f32 v%d, v%d, 0' % (10 + i, 10 + i))
    for i in range(14):
        p('v_lshlrev_b32 v%d, 16, v%d' % (96 + i, 10 + i))
    for j in range(8): p('v_mov_b32 v%d, 0' % (112 + j))
    p('s_waitcnt vmcnt(0)')
    for i in range(14):
        for j in range(8):
            w = 32 + 4 * i + j // 2
            sel = (10 + i) if j % 2 == 0 else (96 + i)
            p('v_dot2_f32_bf16 v%d, v%d, v%d, v%d' % (112 + j, w, sel, 112 + j))
    p('s_nop 2')
    regs = [112 + j for j in range(8)]; temps = [120 + j for j in range(8)]
    for r in regs:
        p('v_add_f32_dpp v%d, v%d, v%d row_ror:8 row_mask:0xf bank_mask:0xf' % (r, r, r))
    for sw in ('v_permlane16_swap_b32', 'v_permlane32_swap_b32'):
        for r, t in zip(regs, temps): p('v_mov_b32 v%d, v%d' % (t, r))
        p('s_nop 1')
        for r, t in zip(regs, temps): p('%s v%d, v%d' % (sw, r, t))
        p('s_nop 1')
        for r, t in zip(regs, temps): p('v_add_f32 v%d, v%d, v%d' % (r, r, t))
    p('''
    v_lshrrev_b32 v5, 6, v0
    v_lshlrev_b32 v5, 8, v5
    v_lshl_add_u32 v5, v1, 5, v5
    ds_write_b128 v5, v[112:115]
    ds_write_b128 v5, v[116:119] offset:16
    s_waitcnt lgkmcnt(0)
    s_barrier
    v_cmp_gt_u32 vcc, 64, v0
    s_and_saveexec_b64 s[18:19], vcc
    s_cbranch_execz L_k0_done
    v_lshlrev_b32 v5, 2, v0
    ds_read_b32 v6, v5
    ds_read_b32 v7, v5 offset:256
    ds_read_b32 v8, v5 offset:512
    ds_read_b32 v9, v5 offset:768
    s_waitcnt lgkmcnt(0)
    v_add_f32 v6, v6, v7
    v_add_f32 v8, v8, v9
    v_add_f32 v6, v6, v8
    v_cvt_pk_bf16_f32 v6, v6, 0
    v_lshlrev_b32 v6, 16, v6
    s_mul_i32 s20, s2, 37
    s_lshr_b32 s20, s20, 8
    s_cmp_eq_u32 s20, 1
    s_cselect_b32 s21, 1, 0
    s_cmp_eq_u32 s20, 4
    s_cselect_b32 s21, 1, s21
    s_cmp_eq_u32 s21, 0
    s_cbranch_scc1 L_k0_store
    v_add_f32 v6, 1.0, v6
    v_cvt_pk_bf16_f32 v6, v6, 0
    v_lshlrev_b32 v6, 16, v6
L_k0_store:
    s_lshl_b32 s16, s2, 8
    v_add_u32 v5, s16, v5
    buffer_store_dword v6, v5, s[24:27], 0 offen
L_k0_done:
    s_mov_b64 exec, s[18:19]
    s_waitcnt vmcnt(0)
L_end_k0:
    s_endpgm
''')
    return p

PF_MOE = True
def build_k2():
    p = Prog()
    p('''
k2_kernel:
    s_cmp_ge_u32 s2, 256
    s_cbranch_scc1 L_end_k2
    s_load_dwordx2 s[4:5], s[0:1], 0
    s_load_dwordx2 s[6:7], s[0:1], 48
    s_load_dwordx2 s[28:29], s[0:1], 96
    s_load_dwordx2 s[24:25], s[0:1], 112
    s_load_dwordx4 s[44:47], s[0:1], 56
    s_load_dwordx2 s[48:49], s[0:1], 72
    v_and_b32 v1, 63, v0
    v_lshrrev_b32 v2, 6, v0
    s_nop 0
    v_readfirstlane_b32 s3, v2
    s_lshl_b32 s41, s2, 3
    s_lshl_b32 s42, s3, 1
    s_add_u32 s41, s41, s42
    s_mul_i32 s42, s41, 896
    s_waitcnt lgkmcnt(0)
''')
    srd(p, 8, 4, 2048 * 896)
    srd(p, 12, 6, 896)
    srd(p, 16, 24, 8 * 2048 * 896, str(WS_PART))
    srd(p, 20, 24, 2048 * 896, str(WS_H2))
    srd(p, 32, 24, 10752)
    srd(p, 36, 24, 8192, str(WS_R))
    srd(p, 28, 28, 2048 * 896)
    p('''
    v_lshlrev_b32 v3, 4, v1            ; lane*16
    v_lshlrev_b32 v4, 5, v1
    v_mov_b32 v5, 0x40000000
    v_cmp_gt_u32 vcc, 56, v1
    s_nop 1
    v_cndmask_b32 v3, v5, v3, vcc
    v_cndmask_b32 v4, v5, v4, vcc
    v_cndmask_b32 v6, 0, 1.0, vcc
    v_add_u32 v7, s42, v3
''')
    for rr in range(2):
        for g in range(8):
            p('s_mov_b32 s40, %d' % (g * 2048 * 896 + rr * 896) if not (g == 0 and rr == 0) else 's_mov_b32 s40, 0')
            p('buffer_load_dwordx4 %s, v7, s[16:19], s40 offen' % vr(16 + rr * 40 + 4 * g, 4))
        p('buffer_load_dwordx4 %s, v7, s[8:11], 0 offen offset:%d' % (vr(16 + rr * 40 + 32, 4), rr * 896))
    for k, seg in enumerate((2, 3, 4, 5)):
        p('s_mov_b32 s40, %d' % (seg * 1792))
        p('buffer_load_dwordx4 %s, v4, s[32:35], s40 offen' % vr(96 + 8 * k, 4))
        p('buffer_load_dwordx4 %s, v4, s[32:35], s40 offen offset:16' % vr(100 + 8 * k, 4))
    p('buffer_load_dwordx4 v[128:131], v3, s[12:15], 0 offen')
    p('v_mov_b32 v8, 0x00003f80')
    p('v_mov_b32 v9, 0x3f800000')
    ACC = [136, 152]
    for rr in range(2):
        for j in range(8): p('v_mov_b32 v%d, 0' % (ACC[rr] + j))
    for rr in range(2):
        p('s_waitcnt vmcnt(%d)' % (9 + 1 + (9 if rr == 0 else 0)))
        for g in range(8):
            for j in range(8):
                p('v_dot2_f32_bf16 v%d, v%d, v%d, v%d' % (ACC[rr] + j, 16 + rr * 40 + 4 * g + j // 2, 8 + j % 2, ACC[rr] + j))
    p('s_waitcnt vmcnt(0)')
    p(';ST 0')
    if PF_MOE:
        p('''
    s_and_b32 s50, s2, 7               ; x
    s_lshr_b32 s51, s2, 3              ; i
    v_min_u32 v210, 55, v1
    s_cmp_ge_u32 s3, 2
    s_cbranch_scc1 L_k2_pfdown
    s_mul_i32 s52, s50, 448
    s_lshr_b32 s52, s52, 7
    s_mul_i32 s53, s51, 14
    v_lshrrev_b32 v211, 2, v210
    v_add_u32 v211, s53, v211
    v_mul_u32_u24 v211, 3584, v211
    v_and_b32 v212, 3, v210
    v_add_u32 v212, s52, v212
    v_lshl_add_u32 v211, v212, 7, v211
    s_cmp_eq_u32 s3, 0
    s_cselect_b32 s54, s44, s46
    s_cselect_b32 s55, s45, s47
    global_load_dword v213, v211, s[54:55]
    s_branch L_k2_pfdone
L_k2_pfdown:
    s_lshl_b32 s52, s50, 7             ; x<4: byte 128x
    s_mul_i32 s53, s50, 96
    s_add_u32 s53, s53, 128            ; x>=4: 512 + 96(x-4) = 96x + 128
    s_cmp_lt_u32 s50, 4
    s_cselect_b32 s52, s52, s53
    s_and_b32 s53, s3, 1
    s_mul_i32 s53, s53, 95
    s_add_u32 s52, s52, s53
    s_and_b32 s52, s52, 0xffffff80
    s_mul_i32 s53, s51, 56
    v_add_u32 v211, s53, v210
    v_mul_u32_u24 v211, 896, v211
    v_add_u32 v211, s52, v211
    global_load_dword v213, v211, s[48:49]
L_k2_pfdone:
''')
    X1 = [168, 184]
    for rr in range(2):
        xr = 16 + rr * 40 + 32
        for j in range(8):
            p('v_mul_f32 v%d, v%d, v%d' % (ACC[rr] + j, ACC[rr] + j, 96 + j))
        for j in range(8):
            p('v_dot2_f32_bf16 v%d, v%d, v%d, v%d' % (ACC[rr] + j, xr + j // 2, 8 + j % 2, ACC[rr] + j))
    p('s_nop 2')
    for rr in range(2):
        for j in range(0, 8, 2):
            p('v_cvt_pk_bf16_f32 v%d, v%d, v%d' % (200 + rr * 4 + j // 2, ACC[rr] + j, ACC[rr] + j + 1))
    for rr in range(2):
        for j in range(8):
            if j % 2 == 0: p('v_lshlrev_b32 v%d, 16, v%d' % (X1[rr] + j, 200 + rr * 4 + j // 2))
            else: p('v_and_b32 v%d, 0xffff0000, v%d' % (X1[rr] + j, 200 + rr * 4 + j // 2))
    SUM = [10, 11]
    for rr in range(2):
        p('v_add_f32 v%d, v%d, v%d' % (SUM[rr], X1[rr], X1[rr] + 1))
        for j in range(2, 8): p('v_add_f32 v%d, v%d, v%d' % (SUM[rr], SUM[rr], X1[rr] + j))
    wave_reduce_multi(p, SUM, [12, 13])
    XC = [16, 32]
    for rr in range(2):
        p('v_mul_f32 v%d, 0xbb124925, v%d' % (SUM[rr], SUM[rr]))
    for rr in range(2):
        for j in range(8):
            p('v_add_f32 v%d, v%d, v%d' % (XC[rr] + j, X1[rr] + j, SUM[rr]))
    VAR = [12, 13]
    for rr in range(2):
        p('v_mul_f32 v%d, v%d, v%d' % (VAR[rr], XC[rr], XC[rr]))
        for j in range(1, 8): p('v_fmac_f32 v%d, v%d, v%d' % (VAR[rr], XC[rr] + j, XC[rr] + j))
    for rr in range(2):
        p('v_mul_f32 v%d, v%d, v6' % (VAR[rr], VAR[rr]))
    wave_reduce_multi(p, VAR, [14, 15])
    for rr in range(2):
        p('v_mov_b32 v%d, 0x3727c5ac' % (14 + rr))
        p('v_fmac_f32 v%d, 0x3b124925, v%d' % (14 + rr, VAR[rr]))
    for rr in range(2):
        p('v_rsq_f32 v%d, v%d' % (VAR[rr], 14 + rr))
    p('s_nop 0')
    H = [48, 64]
    for rr in range(2):
        for j in range(8):
            p('v_mul_f32 v%d, v%d, v%d' % (XC[rr] + j, XC[rr] + j, VAR[rr]))
        for j in range(8):
            p('v_fma_f32 v%d, v%d, v%d, v%d' % (XC[rr] + j, XC[rr] + j, 112 + j, 104 + j))
        for j in range(0, 8, 2):
            p('v_cvt_pk_bf16_f32 v%d, v%d, v%d' % (H[rr] + j // 2, XC[rr] + j, XC[rr] + j + 1))
    p(';ST 1')
    for rr in range(2):
        p('buffer_store_dwordx4 %s, v7, s[20:23], 0 offen offset:%d' % (vr(H[rr], 4), rr * 896))
    RR = [14, 15]
    for rr in range(2):
        p('v_mov_b32 v%d, 0' % RR[rr])
    for j in range(4):
        for rr in range(2):
            p('v_dot2_f32_bf16 v%d, v%d, v%d, v%d' % (RR[rr], H[rr] + j, 128 + j, RR[rr]))
    for rr in range(2):
        for j in range(8):
            if j % 2 == 0: p('v_lshlrev_b32 v%d, 16, v%d' % (XC[rr] + j, H[rr] + j // 2))
            else: p('v_and_b32 v%d, 0xffff0000, v%d' % (XC[rr] + j, H[rr] + j // 2))
        for j in range(8):
            p('v_fma_f32 v%d, v%d, v%d, v%d' % (XC[rr] + j, XC[rr] + j, 120 + j, X1[rr] + j))
        for j in range(0, 8, 2):
            p('v_cvt_pk_bf16_f32 v%d, v%d, v%d' % (80 + rr * 4 + j // 2, XC[rr] + j, XC[rr] + j + 1))
        p('buffer_store_dwordx4 %s, v7, s[28:31], 0 offen offset:%d' % (vr(80 + rr * 4, 4), rr * 896))
    wave_reduce_multi(p, RR, [12, 13])
    p('''
    v_cvt_pk_bf16_f32 v14, v14, 0
    v_cvt_pk_bf16_f32 v15, v15, 0
    v_lshlrev_b32 v14, 16, v14
    v_lshlrev_b32 v15, 16, v15
    v_cmp_eq_u32 vcc, 1, v1
    s_nop 1
    v_cndmask_b32 v14, v14, v15, vcc
    v_add_u32 v2, s41, v1
    v_lshlrev_b32 v2, 2, v2
    v_cmp_gt_u32 vcc, 2, v1
    s_nop 1
    v_cndmask_b32 v2, v5, v2, vcc
    buffer_store_dword v14, v2, s[36:39], 0 offen
    s_waitcnt vmcnt(0)
L_end_k2:
    s_endpgm
''')
    return p

def sort8(p, K, T):
    net = [(0,1),(2,3),(4,5),(6,7),(0,2),(1,3),(4,6),(5,7),(1,2),(5,6),(0,4),(3,7),(1,5),(2,6),(1,4),(3,6),(2,4),(3,5),(3,4)]
    for a_, b_ in net:
        p('v_max_u32 v%d, v%d, v%d' % (T, K + a_, K + b_))
        p('v_min_u32 v%d, v%d, v%d' % (K + b_, K + a_, K + b_))
        p('v_mov_b32 v%d, v%d' % (K + a_, T))

def row_rounds(p, K, T, RES, MASK):
    pend = []
    for rnd in range(8):
        p('v_mov_b32 v%d, v%d' % (T, K))
        for k in (1, 2, 4, 8):
            fill = pend[:2]; pend = pend[2:]
            for x in fill: p(x)
            if len(fill) < 2: p('s_nop %d' % (1 - len(fill)))
            p('v_max_u32_dpp v%d, v%d, v%d row_ror:%d row_mask:0xf bank_mask:0xf' % (T, T, T, k))
        for x in pend: p(x)
        pend = []
        p('v_cndmask_b32_e64 v%d, v%d, v%d, s[%d:%d]' % (RES, RES, T, MASK + 2 * rnd, MASK + 2 * rnd + 1))
        if rnd < 7:
            p('v_cmp_eq_u32 vcc, v%d, v%d' % (K, T))
            p('s_nop 1')
            sh = ['v_cndmask_b32 v%d, v%d, v%d, vcc' % (K + j, K + j, K + j + 1) for j in range(7 - rnd)]
            p(sh[0])
            pend = sh[1:]

TOP8_MASK = 64
def top8(p, KEY, T):
    RES = T + 1
    p('v_and_b32 v%d, 7, v1' % T)
    for i in range(8):
        p('v_cmp_eq_u32 s[%d:%d], %d, v%d' % (TOP8_MASK + 2 * i, TOP8_MASK + 1 + 2 * i, i, T))
    sort8(p, KEY, T)
    p('v_mov_b32 v%d, 0' % RES)
    row_rounds(p, KEY, T, RES, TOP8_MASK)
    p('v_lshrrev_b32 v%d, 4, v0' % T)
    p('v_lshlrev_b32 v%d, 5, v%d' % (T, T))
    p('v_and_b32 v%d, 7, v1' % (T + 2))
    p('v_lshl_add_u32 v%d, v%d, 2, v%d' % (T, T + 2, T))
    p('ds_write_b32 v%d, v%d offset:%d' % (T, RES, TOPK_LDS))
    p('s_waitcnt lgkmcnt(0)')
    p('s_barrier')
    p('v_and_b32 v%d, 15, v1' % T)
    p('v_lshlrev_b32 v%d, 5, v%d' % (T, T))
    p('ds_read_b128 %s, v%d offset:%d' % (vr(KEY, 4), T, TOPK_LDS))
    p('ds_read_b128 %s, v%d offset:%d' % (vr(KEY + 4, 4), T, TOPK_LDS + 16))
    p('v_mov_b32 v%d, 0' % RES)
    p('s_waitcnt lgkmcnt(0)')
    row_rounds(p, KEY, T, RES, TOP8_MASK)

TOPK_LDS = 57344

def wstage(p, srd_, voff, nsteps, lds_sgpr):
    p('s_mov_b32 s44, 0')
    for i in range(nsteps):
        p('s_add_u32 m0, s%d, %d' % (lds_sgpr, i * 1024))
        p('s_nop 0')
        p('buffer_load_dwordx4 v%d, s[%d:%d], s44 offen lds' % (voff, srd_, srd_ + 3))
        if i + 1 < nsteps: p('s_add_u32 s44, s44, s45')

def tr_frags(p, addr, dst, nsteps):
    for i in range(nsteps):
        p('ds_read_b64_tr_b16 %s, v%d offset:%d' % (vr(dst + 4 * i, 2), addr, i * 1024))
        p('ds_read_b64_tr_b16 %s, v%d offset:%d' % (vr(dst + 4 * i + 2, 2), addr, i * 1024 + 128))

def build_k3():
    p = Prog()
    p('''
k3_kernel:
    s_cmp_ge_u32 s2, 56
    s_cbranch_scc1 L_end_k3
    s_load_dwordx4 s[4:7], s[0:1], 56
    s_load_dwordx2 s[24:25], s[0:1], 112
    v_and_b32 v1, 63, v0
    v_lshrrev_b32 v2, 6, v0
    s_nop 0
    v_readfirstlane_b32 s3, v2
    s_waitcnt lgkmcnt(0)
    s_cmp_ge_u32 s3, 2
    s_cselect_b32 s4, s6, s4
    s_cselect_b32 s5, s7, s5
''')
    srd(p, 8, 4, 448 * 3584)
    srd(p, 12, 24, 8192, str(WS_R))
    srd(p, 16, 24, 2048 * 896, str(WS_H2))
    srd(p, 20, 24, 28672, str(WS_ACT))
    srd(p, 28, 24, 64, str(WS_IDX))
    p('''
    s_and_b32 s40, s2, 7
    s_mul_i32 s40, s40, 7
    s_lshr_b32 s41, s2, 3
    s_add_u32 s40, s40, s41           ; column block = (wg&7)*7 + (wg>>3): neighbours share an XCD (speed only)
    s_lshl_b32 s40, s40, 6
    s_and_b32 s41, s3, 1
    s_lshl_b32 s41, s41, 5
    s_add_u32 s40, s40, s41
    v_lshrrev_b32 v3, 1, v1
    v_mul_u32_u24 v3, 3584, v3
    v_and_b32 v4, 1, v1
    v_lshl_add_u32 v3, v4, 4, v3
    v_add_u32 v3, s40, v3
    s_mov_b32 s45, %d
    s_mul_i32 s46, s3, 14336
''' % (32 * 3584))
    p('v_lshlrev_b32 v5, 5, v0')
    p('buffer_load_dwordx4 v[8:11], v5, s[12:15], 0 offen')
    p('buffer_load_dwordx4 v[12:15], v5, s[12:15], 0 offen offset:16')
    wstage(p, 8, 3, 14, 46)
    p('v_lshlrev_b32 v6, 3, v0')
    p('v_sub_u32 v6, 2047, v6')
    p('s_waitcnt vmcnt(14)')
    p(';ST 0')
    for j in range(8):
        k = 8 + j
        p('v_ashrrev_i32 v16, 31, v%d' % k)
        p('v_or_b32 v16, 0x80000000, v16')
        p('v_xor_b32 v%d, v%d, v16' % (k, k))
        p('v_and_b32 v%d, 0xffff0000, v%d' % (k, k))
        p('v_subrev_u32 v17, %d, v6' % j)
        p('v_or_b32 v%d, v%d, v17' % (k, k))
    top8(p, 8, 16)
    p(';ST 1')
    p('v_and_b32 v20, 0xffff, v17')
    p('v_sub_u32 v20, 2047, v20')
    p('''
    v_mul_u32_u24 v22, 896, v20
    v_lshrrev_b32 v23, 4, v1
    v_lshl_add_u32 v22, v23, 4, v22
''')
    for i in range(14):
        p('buffer_load_dwordx4 %s, v22, s[16:19], 0 offen offset:%d' % (vr(32 + 4 * i, 4), 64 * i))
    p('''
    s_or_b32 s47, s2, s3
    s_cmp_lg_u32 s47, 0
    s_cbranch_scc1 L_k3_nopub
    v_mov_b32 v24, v17
    v_and_b32 v24, 0xffff0000, v24
    v_ashrrev_i32 v25, 31, v24
    v_not_b32 v25, v25
    v_or_b32 v25, 0x80000000, v25
    v_xor_b32 v24, v24, v25
    v_and_b32 v24, 0xffff0000, v24
    v_mul_f32 v25, 0xbfb8aa3b, v24
    v_exp_f32 v25, v25
    s_nop 0
    v_add_f32 v25, 1.0, v25
    v_rcp_f32 v25, v25
    s_nop 0
    v_cvt_pk_bf16_f32 v25, v25, 0
    v_lshlrev_b32 v25, 16, v25
    v_lshlrev_b32 v26, 2, v1
    v_cmp_gt_u32 vcc, 8, v1
    v_mov_b32 v27, 0x40000000
    s_nop 0
    v_cndmask_b32 v26, v27, v26, vcc
    buffer_store_dword v20, v26, s[28:31], 0 offen
    buffer_store_dword v25, v26, s[28:31], 0 offen offset:32
L_k3_nopub:
''')
    p('''
    v_lshrrev_b32 v28, 4, v1            ; kq
    v_lshlrev_b32 v28, 3, v28           ; 8 kq
    v_bfe_u32 v29, v1, 2, 2             ; r
    v_add_u32 v28, v28, v29
    v_lshlrev_b32 v28, 5, v28           ; row*32
    v_and_b32 v29, 3, v1
    v_lshl_add_u32 v28, v29, 3, v28
    v_add_u32 v28, s46, v28
    s_waitcnt vmcnt(14)
''')
    p(';ST 2')
    tr_frags(p, 28, 96, 14)
    p('s_waitcnt vmcnt(0) lgkmcnt(0)')
    p(';ST 3')
    for i in range(14):
        c = '0' if i == 0 else 'v[160:163]'
        p('v_mfma_f32_16x16x32_bf16 v[160:163], %s, %s, %s' % (vr(32 + 4 * i, 4), vr(96 + 4 * i, 4), c))
    p('s_nop 7')
    p('v_cvt_pk_bf16_f32 v164, v160, v161')
    p('v_cvt_pk_bf16_f32 v165, v162, v163')
    p('''
    v_lshlrev_b32 v160, 16, v164
    v_and_b32 v161, 0xffff0000, v164
    v_lshlrev_b32 v162, 16, v165
    v_and_b32 v163, 0xffff0000, v165
    s_cmp_ge_u32 s3, 2
    s_cbranch_scc1 L_k3_up
''')
    for r in range(4): p('v_mul_f32 v%d, 0xbfb8aa3b, v%d' % (166 + r, 160 + r))
    for r in range(4): p('v_exp_f32 v%d, v%d' % (166 + r, 166 + r))
    for r in range(4): p('v_add_f32 v%d, 1.0, v%d' % (166 + r, 166 + r))
    for r in range(4): p('v_rcp_f32 v%d, v%d' % (166 + r, 166 + r))
    p('s_nop 0')
    for r in range(4): p('v_mul_f32 v%d, v%d, v%d' % (160 + r, 160 + r, 166 + r))
    p('v_cvt_pk_bf16_f32 v164, v160, v161')
    p('v_cvt_pk_bf16_f32 v165, v162, v163')
    p('''
    v_lshlrev_b32 v160, 16, v164
    v_and_b32 v161, 0xffff0000, v164
    v_lshlrev_b32 v162, 16, v165
    v_and_b32 v163, 0xffff0000, v165
L_k3_up:
    s_and_b32 s41, s3, 1
    s_lshl_b32 s41, s41, 10
    v_lshlrev_b32 v30, 4, v1
    v_add_u32 v30, s41, v30
    v_add_u32 v30, %d, v30
    s_cmp_ge_u32 s3, 2
    s_cbranch_scc0 L_k3_gate_wait
    ds_write_b128 v30, v[160:163]
L_k3_gate_wait:
    s_waitcnt lgkmcnt(0)
    s_barrier
    s_cmp_ge_u32 s3, 2
    s_cbranch_scc1 L_end_k3
    ds_read_b128 v[164:167], v30
    s_waitcnt lgkmcnt(0)
''' % (TOPK_LDS + 256))
    for r in range(4): p('v_mul_f32 v%d, v%d, v%d' % (160 + r, 160 + r, 164 + r))
    p('''
    v_cvt_pk_bf16_f32 v160, v160, v161
    v_cvt_pk_bf16_f32 v162, v162, v163
    v_lshrrev_b32 v23, 4, v1
    v_mul_u32_u24 v24, %d, v23          ; 4 rows * 3584 B
    v_and_b32 v25, 15, v1
    v_lshl_add_u32 v24, v25, 1, v24
    v_add_u32 v24, s40, v24
    v_mov_b32 v27, 0x40000000
    v_cmp_gt_u32 vcc, 32, v1
    s_nop 1
    v_cndmask_b32 v24, v27, v24, vcc
    buffer_store_short v160, v24, s[20:23], 0 offen
    buffer_store_short_d16_hi v160, v24, s[20:23], 0 offen offset:3584
    s_mov_b32 s41, 7168
    buffer_store_short v162, v24, s[20:23], s41 offen
    buffer_store_short_d16_hi v162, v24, s[20:23], s41 offen offset:3584
    s_waitcnt vmcnt(0)
L_end_k3:
    s_endpgm
''' % (4 * 3584))
    return p

def build_k4():
    p = Prog()
    p('''
k4_kernel:
    s_cmp_ge_u32 s2, 28
    s_cbranch_scc1 L_end_k4
    s_load_dwordx2 s[4:5], s[0:1], 72
    s_load_dwordx2 s[28:29], s[0:1], 96
    s_load_dwordx2 s[24:25], s[0:1], 112
    v_and_b32 v1, 63, v0
    v_lshrrev_b32 v2, 6, v0
    s_nop 0
    v_readfirstlane_b32 s3, v2
    s_waitcnt lgkmcnt(0)
''')
    p('s_mul_i32 s40, s3, %d' % (448 * 896))
    p('s_add_u32 s4, s4, s40'); p('s_addc_u32 s5, s5, 0')
    srd(p, 8, 4, 448 * 896)
    srd(p, 12, 24, 10752)
    srd(p, 16, 24, 64, str(WS_IDX))
    srd(p, 20, 24, 28672, str(WS_ACT))
    srd(p, 28, 28, 2048 * 896)
    p('''
    s_and_b32 s47, s2, 7
    s_lshr_b32 s41, s2, 3
    s_lshl_b32 s42, s47, 2
    s_mul_i32 s43, s47, 3
    s_add_u32 s43, s43, 4             ; 16 + (x-4)*3 = 3x + 4
    s_cmp_lt_u32 s47, 4
    s_cselect_b32 s47, s42, s43
    s_add_u32 s47, s47, s41           ; column block
    s_lshl_b32 s40, s47, 5              ; column byte offset
    v_lshrrev_b32 v3, 1, v1
    v_mul_u32_u24 v3, 896, v3
    v_and_b32 v4, 1, v1
    v_lshl_add_u32 v3, v4, 4, v3
    v_add_u32 v3, s40, v3
    s_mov_b32 s45, %d
    s_mul_i32 s46, s3, 14336
''' % (32 * 896))
    wstage(p, 8, 3, 14, 46)
    p(';ST 0')
    p('''
    v_and_b32 v4, 7, v1
    v_mul_u32_u24 v22, 3584, v4
    v_lshrrev_b32 v23, 4, v1
    v_lshl_add_u32 v22, v23, 4, v22
    s_mul_i32 s41, s3, 896
    v_add_u32 v22, s41, v22
''')
    for i in range(14):
        p('buffer_load_dwordx4 %s, v22, s[20:23], 0 offen offset:%d' % (vr(32 + 4 * i, 4), 64 * i))
    p('''
    v_lshrrev_b32 v23, 4, v1
    v_and_b32 v23, 1, v23
    v_lshlrev_b32 v24, 4, v23
    buffer_load_dwordx4 v[8:11], v24, s[16:19], 0 offen            ; idx[4kq..]
    buffer_load_dwordx4 v[12:15], v24, s[16:19], 0 offen offset:32 ; sig[4kq..]
    v_and_b32 v25, 15, v1
    v_lshlrev_b32 v26, 2, v25
    s_lshl_b32 s41, s47, 6
    v_add_u32 v26, s41, v26
    s_mov_b32 s42, 8960
    buffer_load_dword v16, v26, s[12:15], s42 offen                ; gb[col]
    v_lshrrev_b32 v28, 4, v1
    v_lshlrev_b32 v28, 3, v28
    v_bfe_u32 v29, v1, 2, 2
    v_add_u32 v28, v28, v29
    v_lshlrev_b32 v28, 5, v28
    v_and_b32 v29, 3, v1
    v_lshl_add_u32 v28, v29, 3, v28
    v_add_u32 v28, s46, v28
    s_waitcnt vmcnt(0)
''')
    p(';ST 1')
    for r in range(4):
        p('v_mul_u32_u24 v%d, 896, v%d' % (17 + r, 8 + r))
    p('v_lshlrev_b32 v25, 1, v25')
    p('v_add_u32 v25, s40, v25')
    for r in range(4):
        p('v_add_u32 v%d, v%d, v25' % (17 + r, 17 + r))
    for r in range(4):
        p('buffer_load_ushort v%d, v%d, s[28:31], 0 offen' % (100 + r, 17 + r))
    tr_frags(p, 28, 104, 14)
    p('s_waitcnt lgkmcnt(0)')
    p(';ST 2')
    for i in range(14):
        c = '0' if i == 0 else 'v[160:163]'
        p('v_mfma_f32_16x16x32_bf16 v[160:163], %s, %s, %s' % (vr(32 + 4 * i, 4), vr(104 + 4 * i, 4), c))
    p('s_nop 7')
    p('''
    v_lshlrev_b32 v30, 4, v1
    s_lshl_b32 s41, s3, 10
    v_add_u32 v30, s41, v30
    ds_write_b128 v30, v[160:163] offset:57344
    s_waitcnt lgkmcnt(0)
    s_barrier
    s_cmp_lg_u32 s3, 0
    s_cbranch_scc1 L_end_k4
    ds_read_b128 v[164:167], v30 offset:58368
    ds_read_b128 v[168:171], v30 offset:59392
    ds_read_b128 v[172:175], v30 offset:60416
    s_waitcnt vmcnt(0) lgkmcnt(0)
''')
    for r in range(4):
        p('v_add_f32 v%d, v%d, v%d' % (160 + r, 160 + r, 164 + r))
        p('v_add_f32 v%d, v%d, v%d' % (168 + r, 168 + r, 172 + r))
    for r in range(4):
        p('v_add_f32 v%d, v%d, v%d' % (160 + r, 160 + r, 168 + r))
    def rnd(a):
        p('v_cvt_pk_bf16_f32 v164, v%d, v%d' % (a, a + 1))
        p('v_cvt_pk_bf16_f32 v165, v%d, v%d' % (a + 2, a + 3))
        p('v_lshlrev_b32 v%d, 16, v164' % a); p('v_and_b32 v%d, 0xffff0000, v164' % (a + 1))
        p('v_lshlrev_b32 v%d, 16, v165' % (a + 2)); p('v_and_b32 v%d, 0xffff0000, v165' % (a + 3))
    rnd(160)
    for r in range(4): p('v_mul_f32 v%d, v%d, v%d' % (160 + r, 160 + r, 12 + r))
    rnd(160)
    for r in range(4):
        p('v_lshlrev_b32 v%d, 16, v%d' % (100 + r, 100 + r))
        p('v_fma_f32 v%d, v%d, v16, v%d' % (160 + r, 160 + r, 100 + r))
    p('v_cvt_pk_bf16_f32 v164, v160, v161')
    p('v_cvt_pk_bf16_f32 v165, v162, v163')
    p('''
    v_mov_b32 v27, 0x40000000
    v_cmp_gt_u32 vcc, 32, v1
    s_nop 1
''')
    for r in range(4): p('v_cndmask_b32 v%d, v27, v%d, vcc' % (17 + r, 17 + r))
    p('''
    buffer_store_short v164, v17, s[28:31], 0 offen
    buffer_store_short_d16_hi v164, v18, s[28:31], 0 offen
    buffer_store_short v165, v19, s[28:31], 0 offen
    buffer_store_short_d16_hi v165, v20, s[28:31], 0 offen
    s_waitcnt vmcnt(0)
L_end_k4:
    s_endpgm
''')
    return p


def keys_and_top8(p):
    top8(p, 8, 16)

K34_FLAGS = False
K34_DIRECT = False
K34_SENT = True
K34_ANY = False
K34_PSLEEP = 8
K34_SLEEP = 4
def g_main(p, emb):
    keys_and_top8(p)
    p(';ST 1')
    p("""
    v_and_b32 v20, 0xffff, v17
    v_sub_u32 v20, 2047, v20
    v_mul_u32_u24 v22, 896, v20
    v_lshrrev_b32 v23, 4, v1
    v_lshl_add_u32 v22, v23, 4, v22
""")
    for i in range(14):
        p('buffer_load_dwordx4 %s, v22, s[16:19], 0 offen offset:%d%s' % (vr(32 + 4 * i, 4), 64 * i, ' sc1' if emb else ''))
    p("""
    v_lshrrev_b32 v28, 4, v1            ; kq
    v_lshlrev_b32 v28, 3, v28           ; 8 kq
    v_bfe_u32 v29, v1, 2, 2             ; r
    v_add_u32 v28, v28, v29
    v_lshlrev_b32 v28, 5, v28           ; row*32
    v_and_b32 v29, 3, v1
    v_lshl_add_u32 v28, v29, 3, v28
    v_add_u32 v28, s46, v28
    s_waitcnt vmcnt(14)
""")
    tr_frags(p, 28, 96, 14)
    p('s_waitcnt vmcnt(0) lgkmcnt(0)')
    p(';ST 2')
    for i in range(14):
        c = '0' if i == 0 else 'v[160:163]'
        p('v_mfma_f32_16x16x32_bf16 v[160:163], %s, %s, %s' % (vr(32 + 4 * i, 4), vr(96 + 4 * i, 4), c))
    p('s_nop 7')
    p("""
    v_cvt_pk_bf16_f32 v164, v160, v161
    v_cvt_pk_bf16_f32 v165, v162, v163
    v_lshlrev_b32 v160, 16, v164
    v_and_b32 v161, 0xffff0000, v164
    v_lshlrev_b32 v162, 16, v165
    v_and_b32 v163, 0xffff0000, v165
    s_and_b32 s41, s3, 1
    s_lshl_b32 s41, s41, 10
    v_lshlrev_b32 v30, 4, v1
    v_add_u32 v30, s41, v30
    v_add_u32 v30, %d, v30
    s_cmp_ge_u32 s3, 2
    s_cbranch_scc0 L_k34_gate
    ds_write_b128 v30, v[160:163]
    s_waitcnt lgkmcnt(0)
    s_barrier
    %s
    s_branch L_st_end_k34
L_k34_gate:
""" % (TOPK_LDS + 512, 's_nop 0' if K34_SENT else 's_barrier'))
    for r in range(4): p('v_mul_f32 v%d, 0xbfb8aa3b, v%d' % (166 + r, 160 + r))
    for r in range(4): p('v_exp_f32 v%d, v%d' % (166 + r, 166 + r))
    for r in range(4): p('v_add_f32 v%d, 1.0, v%d' % (166 + r, 166 + r))
    for r in range(4): p('v_rcp_f32 v%d, v%d' % (166 + r, 166 + r))
    p('s_nop 0')
    for r in range(4): p('v_mul_f32 v%d, v%d, v%d' % (160 + r, 160 + r, 166 + r))
    p("""
    v_cvt_pk_bf16_f32 v164, v160, v161
    v_cvt_pk_bf16_f32 v165, v162, v163
    v_lshlrev_b32 v160, 16, v164
    v_and_b32 v161, 0xffff0000, v164
    v_lshlrev_b32 v162, 16, v165
    v_and_b32 v163, 0xffff0000, v165
    s_waitcnt lgkmcnt(0)
    s_barrier
    ds_read_b128 v[164:167], v30
    s_waitcnt lgkmcnt(0)
""")
    for r in range(4): p('v_mul_f32 v%d, v%d, v%d' % (160 + r, 160 + r, 164 + r))
    for r in range(4): p('v_cvt_pk_bf16_f32 v%d, v%d, 0' % (160 + r, 160 + r))
    p('s_nop 1')
    for r in range(4): p('v_mov_b32_dpp v%d, v%d quad_perm:[1,0,3,2] row_mask:0xf bank_mask:0xf' % (164 + r, 160 + r))
    for r in range(4): p('v_lshl_or_b32 v%d, v%d, 16, v%d' % (160 + r, 164 + r, 160 + r))
    if K34_SENT:
        p('v_mov_b32 v168, 0x7fff7fff')
        for r in range(4):
            p('v_cmp_eq_u32 vcc, -1, v%d' % (160 + r))
            p('s_nop 1')
            p('v_cndmask_b32 v%d, v%d, v168, vcc' % (160 + r, 160 + r))
    p("""
    v_lshrrev_b32 v23, 4, v1
    v_mul_u32_u24 v24, %d, v23          ; 4 rows * 3584 B
    v_and_b32 v25, 15, v1
    v_lshl_add_u32 v24, v25, 1, v24
    v_add_u32 v24, s40, v24
    v_mov_b32 v27, 0x40000000
    v_and_b32 v25, 0x21, v1             ; lanes >= 32 or odd lanes do not store
    v_cmp_eq_u32 vcc, 0, v25
    s_mov_b32 s41, 7168
    s_nop 0
    v_cndmask_b32 v24, v27, v24, vcc
    buffer_store_dword v160, v24, s[20:23], 0 offen sc1
    buffer_store_dword v161, v24, s[20:23], 0 offen offset:3584 sc1
    buffer_store_dword v162, v24, s[20:23], s41 offen sc1
    buffer_store_dword v163, v24, s[20:23], s41 offen offset:3584 sc1
    ;SENTEXIT
    s_waitcnt vmcnt(0)
    s_barrier
    s_cmp_lg_u32 s3, 0
    s_cbranch_scc1 L_st_end_k34
    ;FLAGSIG
    s_branch L_st_end_k34
""" % (4 * 3584))
    if K34_SENT:
        i0 = [k for k, i in enumerate(p.ins) if i.text.startswith(';SENTEXIT')][0]
        p.ins[i0:i0 + 1] = [I('s_branch L_st_end_k34')]
    idx = [k for k, i in enumerate(p.ins) if i.text.startswith(';FLAGSIG')][0]
    sig = """
    v_mov_b32 v24, 0
    v_mov_b32 v25, 1
    v_cmp_eq_u32 vcc, 0, v1
    s_and_saveexec_b64 s[42:43], vcc
    buffer_atomic_add v25, v24, s[56:59], 0 offen sc0 sc1
    s_waitcnt vmcnt(0)
    v_readfirstlane_b32 s41, v25
    s_cmp_eq_u32 s41, 55
    s_cbranch_scc0 L_k34_notlast
    v_mov_b32 v25, 1
    buffer_store_dword v25, v24, s[56:59], 0 offen offset:128 sc1
L_k34_notlast:
    s_mov_b64 exec, s[42:43]
"""
    if K34_DIRECT:
        sig = """
    v_mov_b32 v24, 0
    v_mov_b32 v25, 1
    v_cmp_eq_u32 vcc, 0, v1
    s_and_saveexec_b64 s[42:43], vcc
    buffer_atomic_add v25, v24, s[56:59], 0 offen sc1
    s_mov_b64 exec, s[42:43]
"""
    t = Prog(); t(sig)
    p.ins[idx:idx + 1] = t.ins

def d_main(p, emb):
    keys_and_top8(p)
    p(';ST 0')
    p("""
    v_lshrrev_b32 v23, 4, v1
    v_and_b32 v23, 1, v23
    v_lshlrev_b32 v24, 4, v23
""")
    for r in range(4):
        p('v_add_u32 v21, %d, v24' % (4 * r))
        p('ds_bpermute_b32 v%d, v21, v17' % (8 + r))
    p('s_waitcnt lgkmcnt(0)')
    for r in range(4):
        k = 8 + r
        p('v_and_b32 v%d, 0xffff, v%d' % (17 + r if r else 18, k) if False else 'v_and_b32 v%d, 0xffff, v%d' % (100 + r, k))
        p('v_sub_u32 v%d, 2047, v%d' % (100 + r, 100 + r))
        p('v_mul_u32_u24 v%d, 896, v%d' % (104 + r, 100 + r))
    p('v_lshlrev_b32 v25, 1, v25')
    p('v_add_u32 v25, s40, v25')
    for r in range(4):
        p('v_add_u32 v%d, v%d, v25' % (104 + r, 104 + r))
    for r in range(4):
        p('buffer_load_ushort v%d, v%d, s[28:31], 0 offen%s' % (108 + r, 104 + r, ' sc1' if emb else ''))
    for r in range(4):
        k = 8 + r
        p('v_and_b32 v%d, 0xffff0000, v%d' % (k, k))
        p('v_ashrrev_i32 v16, 31, v%d' % k)
        p('v_not_b32 v16, v16')
        p('v_or_b32 v16, 0x80000000, v16')
        p('v_xor_b32 v%d, v%d, v16' % (k, k))
        p('v_and_b32 v%d, 0xffff0000, v%d' % (k, k))
        p('v_mul_f32 v%d, 0xbfb8aa3b, v%d' % (12 + r, k))
    for r in range(4): p('v_exp_f32 v%d, v%d' % (12 + r, 12 + r))
    p('s_nop 0')
    for r in range(4): p('v_add_f32 v%d, 1.0, v%d' % (12 + r, 12 + r))
    for r in range(4): p('v_rcp_f32 v%d, v%d' % (12 + r, 12 + r))
    p('s_nop 0')
    for r in range(4): p('v_cvt_pk_bf16_f32 v%d, v%d, 0' % (12 + r, 12 + r))
    for r in range(4): p('v_lshlrev_b32 v%d, 16, v%d' % (12 + r, 12 + r))
    p("""
    v_lshrrev_b32 v28, 4, v1
    v_lshlrev_b32 v28, 3, v28
    v_bfe_u32 v29, v1, 2, 2
    v_add_u32 v28, v28, v29
    v_lshlrev_b32 v28, 5, v28
    v_and_b32 v29, 3, v1
    v_lshl_add_u32 v28, v29, 3, v28
    v_add_u32 v28, s46, v28
    v_and_b32 v4, 7, v1
    v_mul_u32_u24 v22, 3584, v4
    v_lshrrev_b32 v23, 4, v1
    v_lshl_add_u32 v22, v23, 4, v22
    s_mul_i32 s41, s3, 896
    v_add_u32 v22, s41, v22
    s_waitcnt vmcnt(4)
""")
    tr_frags(p, 28, 112, 14)
    p(';ST 1')
    if K34_SENT:
        p('''
    v_lshlrev_b32 v21, 6, v1
    s_mul_i32 s41, s3, 896
    s_add_u32 s41, s41, %d
    v_add_u32 v21, s41, v21
    v_mov_b32 v23, 0x40000000
    v_cmp_gt_u32 vcc, 14, v1
    s_nop 1
    v_cndmask_b32 v21, v23, v21, vcc
L_k34_prepoll:
    buffer_load_dword v23, v21, s[20:23], 0 offen sc1
    s_waitcnt vmcnt(0)
    v_cmp_eq_u32 vcc, -1, v23
    %s
    s_sleep %d
    s_branch L_k34_prepoll
''' % (7 * 3584, ('s_nop 0\n    s_cbranch_vccz L_k34_poll' if not K34_ANY else 's_nop 0\n    s_cmp_lg_u32 vcc_lo, 0x3fff\n    s_cbranch_scc1 L_k34_poll'), K34_PSLEEP))
        p('L_k34_poll:')
        for i in range(14):
            p('buffer_load_dwordx4 %s, v22, s[20:23], 0 offen offset:%d sc1' % (vr(32 + 4 * i, 4), 64 * i))
        p('s_waitcnt vmcnt(0)')
        p('v_max3_u32 v21, v32, v33, v34')
        for k in range(35, 87, 2):
            p('v_max3_u32 v21, v21, v%d, v%d' % (k, k + 1))
        p('v_max_u32 v21, v21, v87')
        p('v_cmp_eq_u32 vcc, -1, v21')
        p('s_nop 0')
        p('s_cbranch_vccz L_k34_polled')
        p('s_sleep %d' % K34_SLEEP)
        p('s_branch L_k34_poll')
        p('L_k34_polled:')
        p(';ST 2')
    else:
        p("""
        s_cmp_lg_u32 s3, 0
        s_cbranch_scc1 L_k34_polled
        v_mov_b32 v21, 0
    L_k34_poll:
        buffer_load_dword v23, v21, s[56:59], 0 offen offset:%d sc1
        s_waitcnt vmcnt(0)
        v_readfirstlane_b32 s41, v23
        s_cmp_eq_u32 s41, %d
        s_cbranch_scc1 L_k34_polled
        s_sleep %d
        s_branch L_k34_poll
    L_k34_polled:
        s_barrier
    """ % ((0, 56, K34_SLEEP) if K34_DIRECT else (128, 1, K34_SLEEP)))
        p(';ST 2')
        for i in range(14):
            p('buffer_load_dwordx4 %s, v22, s[20:23], 0 offen offset:%d sc1' % (vr(32 + 4 * i, 4), 64 * i))
    p('s_waitcnt lgkmcnt(0)')
    for i in range(14):
        if i % 2 == 0 and not K34_SENT: p('s_waitcnt vmcnt(%d)' % (12 - i))
        acc = 'v[172:175]' if i % 2 == 0 else 'v[176:179]'
        c = '0' if i < 2 else acc
        p('v_mfma_f32_16x16x32_bf16 %s, %s, %s, %s' % (acc, vr(32 + 4 * i, 4), vr(112 + 4 * i, 4), c))
    p('s_nop 7')
    for r in range(4): p('v_add_f32 v%d, v%d, v%d' % (172 + r, 172 + r, 176 + r))
    p('s_nop 7')
    p("""
    v_lshlrev_b32 v30, 4, v1
    s_lshl_b32 s41, s3, 10
    v_add_u32 v30, s41, v30
    ds_write_b128 v30, v[172:175] offset:%d
    s_waitcnt lgkmcnt(0)
    s_barrier
    s_cmp_lg_u32 s3, 0
    s_cbranch_scc1 L_st_end_k34
    ds_read_b128 v[176:179], v30 offset:%d
    ds_read_b128 v[180:183], v30 offset:%d
    ds_read_b128 v[184:187], v30 offset:%d
    s_waitcnt lgkmcnt(0)
""" % (TOPK_LDS + 1024, TOPK_LDS + 2048, TOPK_LDS + 3072, TOPK_LDS + 4096))
    Y = 172
    for r in range(4):
        p('v_add_f32 v%d, v%d, v%d' % (Y + r, Y + r, 176 + r))
        p('v_add_f32 v%d, v%d, v%d' % (180 + r, 180 + r, 184 + r))
    for r in range(4):
        p('v_add_f32 v%d, v%d, v%d' % (Y + r, Y + r, 180 + r))
    def rnd(a):
        p('v_cvt_pk_bf16_f32 v188, v%d, v%d' % (a, a + 1))
        p('v_cvt_pk_bf16_f32 v189, v%d, v%d' % (a + 2, a + 3))
        p('v_lshlrev_b32 v%d, 16, v188' % a); p('v_and_b32 v%d, 0xffff0000, v188' % (a + 1))
        p('v_lshlrev_b32 v%d, 16, v189' % (a + 2)); p('v_and_b32 v%d, 0xffff0000, v189' % (a + 3))
    rnd(Y)
    for r in range(4): p('v_mul_f32 v%d, v%d, v%d' % (Y + r, Y + r, 12 + r))
    rnd(Y)
    for r in range(4):
        p('v_lshlrev_b32 v%d, 16, v%d' % (108 + r, 108 + r))
        p('v_fma_f32 v%d, v%d, v31, v%d' % (Y + r, Y + r, 108 + r))
    p('v_cvt_pk_bf16_f32 v188, v%d, v%d' % (Y, Y + 1))
    p('v_cvt_pk_bf16_f32 v189, v%d, v%d' % (Y + 2, Y + 3))
    p("""
    v_mov_b32 v27, 0x40000000
    v_cmp_gt_u32 vcc, 32, v1
    s_nop 1
""")
    for r in range(4): p('v_cndmask_b32 v%d, v27, v%d, vcc' % (104 + r, 104 + r))
    p("""
    buffer_store_short v188, v104, s[28:31], 0 offen
    buffer_store_short_d16_hi v188, v105, s[28:31], 0 offen
    buffer_store_short v189, v106, s[28:31], 0 offen
    buffer_store_short_d16_hi v189, v107, s[28:31], 0 offen
""")

def build_k34():
    p = Prog()
    p("""
k34_kernel:
    s_cmp_ge_u32 s2, 84
    s_cbranch_scc1 L_end_k34
    s_load_dwordx4 s[4:7], s[0:1], 56
    s_load_dwordx2 s[48:49], s[0:1], 72
    s_load_dwordx4 s[52:55], s[0:1], 96
    s_load_dwordx2 s[24:25], s[0:1], 112
    v_and_b32 v1, 63, v0
    v_lshrrev_b32 v2, 6, v0
    s_nop 0
    v_readfirstlane_b32 s3, v2
    v_lshlrev_b32 v5, 5, v0
    s_waitcnt lgkmcnt(0)
""")
    srd(p, 12, 24, 8192, str(WS_R))
    p('buffer_load_dwordx4 v[8:11], v5, s[12:15], 0 offen')
    p('buffer_load_dwordx4 v[12:15], v5, s[12:15], 0 offen offset:16')
    srd(p, 16, 24, 2048 * 896, str(WS_H2))
    srd(p, 20, 24, 28672, str(WS_ACT))
    srd(p, 56, 54, 256)
    p("""
    s_cmp_ge_u32 s2, 56
    s_cbranch_scc1 L_k34_down
    s_cmp_ge_u32 s3, 2
    s_cselect_b32 s4, s6, s4
    s_cselect_b32 s5, s7, s5
""")
    srd(p, 8, 4, 448 * 3584)
    p("""
    s_and_b32 s40, s2, 7
    s_mul_i32 s40, s40, 7
    s_lshr_b32 s41, s2, 3
    s_add_u32 s40, s40, s41
    s_lshl_b32 s40, s40, 6
    s_and_b32 s41, s3, 1
    s_lshl_b32 s41, s41, 5
    s_add_u32 s40, s40, s41
    v_lshrrev_b32 v3, 1, v1
    v_mul_u32_u24 v3, 3584, v3
    v_and_b32 v4, 1, v1
    v_lshl_add_u32 v3, v4, 4, v3
    v_add_u32 v3, s40, v3
    s_mov_b32 s45, %d
    s_mul_i32 s46, s3, 14336
""" % (32 * 3584))
    wstage(p, 8, 3, 14, 46)
    p('s_waitcnt vmcnt(14)')
    p(';ST 0')
    g_main(p, False)
    p('L_k34_down:')
    p('s_sub_u32 s39, s2, 56')
    p('s_mul_i32 s40, s3, %d' % (448 * 896))
    p('s_add_u32 s48, s48, s40'); p('s_addc_u32 s49, s49, 0')
    srd(p, 8, 48, 448 * 896)
    srd(p, 60, 24, 10752)
    srd(p, 28, 52, 2048 * 896)
    p("""
    s_and_b32 s47, s39, 7
    s_lshr_b32 s41, s39, 3
    s_lshl_b32 s42, s47, 2
    s_mul_i32 s43, s47, 3
    s_add_u32 s43, s43, 4
    s_cmp_lt_u32 s47, 4
    s_cselect_b32 s47, s42, s43
    s_add_u32 s47, s47, s41           ; column block
    s_lshl_b32 s40, s47, 5              ; column byte offset
    v_lshrrev_b32 v3, 1, v1
    v_mul_u32_u24 v3, 896, v3
    v_and_b32 v4, 1, v1
    v_lshl_add_u32 v3, v4, 4, v3
    v_add_u32 v3, s40, v3
    s_mov_b32 s45, %d
    s_mul_i32 s46, s3, 14336
    v_and_b32 v25, 15, v1
    v_lshlrev_b32 v26, 2, v25
    s_lshl_b32 s41, s47, 6
    v_add_u32 v26, s41, v26
    s_mov_b32 s42, 8960
    buffer_load_dword v31, v26, s[60:63], s42 offen                ; gb[col]
""" % (32 * 896))
    wstage(p, 8, 3, 14, 46)
    p('s_waitcnt vmcnt(15)')
    d_main(p, False)
    p("""
L_st_end_k34:
L_end_k34:
    s_endpgm
""")
    return p


K2_OUT_FLAGS = ''
K2_H_FLAGS = ''
K2_R_FLAGS = ''
def k2_math(p, P0, XR, GA, S2, A2, GB, WR, ACC, X1, PK, VOUT, VMASK, VLANE_, VBIG, SEL, srd_h2, srd_out, srd_r, s_row0, T, key_in_reg=False):
    for rr in range(2):
        for j in range(8):
            p('v_mul_f32 v%d, v%d, v%d' % (ACC[rr] + j, ACC[rr] + j, GA + j))
        for j in range(8):
            p('v_dot2_f32_bf16 v%d, v%d, v%d, v%d' % (ACC[rr] + j, XR[rr] + j // 2, SEL + j % 2, ACC[rr] + j))
    p('s_nop 2')
    for rr in range(2):
        for j in range(0, 8, 2):
            p('v_cvt_pk_bf16_f32 v%d, v%d, v%d' % (PK + rr * 4 + j // 2, ACC[rr] + j, ACC[rr] + j + 1))
    for rr in range(2):
        for j in range(8):
            if j % 2 == 0: p('v_lshlrev_b32 v%d, 16, v%d' % (X1[rr] + j, PK + rr * 4 + j // 2))
            else: p('v_and_b32 v%d, 0xffff0000, v%d' % (X1[rr] + j, PK + rr * 4 + j // 2))
    SUM = [T, T + 1]
    for rr in range(2):
        p('v_add_f32 v%d, v%d, v%d' % (SUM[rr], X1[rr], X1[rr] + 1))
        for j in range(2, 8): p('v_add_f32 v%d, v%d, v%d' % (SUM[rr], SUM[rr], X1[rr] + j))
    wave_reduce_multi(p, SUM, [T + 2, T + 3])
    XC = ACC
    for rr in range(2):
        p('v_mul_f32 v%d, 0xbb124925, v%d' % (SUM[rr], SUM[rr]))
    for rr in range(2):
        for j in range(8):
            p('v_add_f32 v%d, v%d, v%d' % (XC[rr] + j, X1[rr] + j, SUM[rr]))
    VAR = [T + 2, T + 3]
    for rr in range(2):
        p('v_mul_f32 v%d, v%d, v%d' % (VAR[rr], XC[rr], XC[rr]))
        for j in range(1, 8): p('v_fmac_f32 v%d, v%d, v%d' % (VAR[rr], XC[rr] + j, XC[rr] + j))
    for rr in range(2):
        p('v_mul_f32 v%d, v%d, v%d' % (VAR[rr], VAR[rr], VMASK))
    wave_reduce_multi(p, VAR, [T + 4, T + 5])
    for rr in range(2):
        p('v_mov_b32 v%d, 0x3727c5ac' % (T + 4 + rr))
        p('v_fmac_f32 v%d, 0x3b124925, v%d' % (T + 4 + rr, VAR[rr]))
    for rr in range(2):
        p('v_rsq_f32 v%d, v%d' % (VAR[rr], T + 4 + rr))
    p('s_nop 0')
    H = [PK, PK + 4]
    for rr in range(2):
        for j in range(8):
            p('v_mul_f32 v%d, v%d, v%d' % (XC[rr] + j, XC[rr] + j, VAR[rr]))
        for j in range(8):
            p('v_fma_f32 v%d, v%d, v%d, v%d' % (XC[rr] + j, XC[rr] + j, A2 + j, S2 + j))
        for j in range(0, 8, 2):
            p('v_cvt_pk_bf16_f32 v%d, v%d, v%d' % (H[rr] + j // 2, XC[rr] + j, XC[rr] + j + 1))
    for rr in range(2):
        p('buffer_store_dwordx4 %s, v%d, s[%d:%d], 0 offen offset:%d%s' % (vr(H[rr], 4), VOUT, srd_h2, srd_h2 + 3, rr * 896, K2_H_FLAGS))
    RR = [T + 4, T + 5]
    for rr in range(2):
        p('v_mov_b32 v%d, 0' % RR[rr])
    for j in range(4):
        for rr in range(2):
            p('v_dot2_f32_bf16 v%d, v%d, v%d, v%d' % (RR[rr], H[rr] + j, WR + j, RR[rr]))
    OUTR = [P0[0], P0[0] + 4]
    for rr in range(2):
        for j in range(8):
            if j % 2 == 0: p('v_lshlrev_b32 v%d, 16, v%d' % (XC[rr] + j, H[rr] + j // 2))
            else: p('v_and_b32 v%d, 0xffff0000, v%d' % (XC[rr] + j, H[rr] + j // 2))
        for j in range(8):
            p('v_fma_f32 v%d, v%d, v%d, v%d' % (XC[rr] + j, XC[rr] + j, GB + j, X1[rr] + j))
        for j in range(0, 8, 2):
            p('v_cvt_pk_bf16_f32 v%d, v%d, v%d' % (OUTR[rr] + j // 2, XC[rr] + j, XC[rr] + j + 1))
        p('buffer_store_dwordx4 %s, v%d, s[%d:%d], 0 offen offset:%d%s' % (vr(OUTR[rr], 4), VOUT, srd_out, srd_out + 3, rr * 896, K2_OUT_FLAGS))
    wave_reduce_multi(p, RR, [T, T + 1])
    p("""
    v_cvt_pk_bf16_f32 v%d, v%d, 0
    v_cvt_pk_bf16_f32 v%d, v%d, 0
    v_cmp_eq_u32 vcc, 1, v%d
    s_nop 1
    v_cndmask_b32 v%d, v%d, v%d, vcc
    v_lshlrev_b32 v%d, 16, v%d            ; r rounded to bf16 (row0 in lane 0, row1 in lane 1)
    v_ashrrev_i32 v%d, 31, v%d
    v_or_b32 v%d, 0x80000000, v%d
    v_xor_b32 v%d, v%d, v%d               ; order-preserving integer image
    v_and_b32 v%d, 0xffff0000, v%d
    v_add_u32 v%d, s%d, v%d               ; row index
    v_sub_u32 v%d, 2047, v%d
    v_or_b32 v%d, v%d, v%d                ; key = image | (2047 - row): unique, ties go to the lower row
""" % (RR[0], RR[0], RR[1], RR[1], VLANE_, RR[0], RR[0], RR[1], RR[0], RR[0],
       RR[1], RR[0], RR[1], RR[1], RR[0], RR[0], RR[1], RR[0], RR[0],
       T, s_row0, VLANE_, T + 1, T, RR[0], RR[0], T + 1))
    if key_in_reg:
        return RR[0]
    p("""
    v_lshlrev_b32 v%d, 2, v%d
    v_cmp_gt_u32 vcc, 2, v%d
    s_nop 1
    v_cndmask_b32 v%d, v%d, v%d, vcc
    buffer_store_dword v%d, v%d, s[%d:%d], 0 offen%s
""" % (T, T, VLANE_, T, VBIG, T, RR[0], T, srd_r, srd_r + 3, K2_R_FLAGS))


KEY_SLEEP0 = 16
KEY_SLEEP = 8
MOE_INTERLEAVE = True
def moe_pre(p, SW, VL):
    p("""
    s_cmp_ge_u32 s2, 56
    s_cbranch_scc1 L_moe_pre_d
    s_cmp_ge_u32 s%d, 2
    s_cselect_b32 s64, s30, s28
    s_cselect_b32 s65, s31, s29          ; waves 0,1: gate ; waves 2,3: up
    s_mov_b32 s66, %d
    s_mov_b32 s67, 0x20000
    s_and_b32 s40, s2, 7
    s_mul_i32 s40, s40, 7
    s_lshr_b32 s41, s2, 3
    s_add_u32 s40, s40, s41
    s_lshl_b32 s40, s40, 6
    s_and_b32 s41, s%d, 1
    s_lshl_b32 s41, s41, 5
    s_add_u32 s40, s40, s41
    v_lshrrev_b32 v210, 1, v%d
    v_mul_u32_u24 v210, 3584, v210
    s_mov_b32 s45, %d
    s_branch L_moe_pre_go
L_moe_pre_d:
    s_sub_u32 s39, s2, 56
    s_mul_i32 s40, s%d, %d
    s_add_u32 s64, s32, s40
    s_addc_u32 s65, s33, 0
    s_mov_b32 s66, %d
    s_mov_b32 s67, 0x20000
    s_and_b32 s47, s39, 7
    s_lshr_b32 s41, s39, 3
    s_lshl_b32 s42, s47, 2
    s_mul_i32 s43, s47, 3
    s_add_u32 s43, s43, 4
    s_cmp_lt_u32 s47, 4
    s_cselect_b32 s47, s42, s43
    s_add_u32 s47, s47, s41           ; column block
    s_lshl_b32 s40, s47, 5              ; column byte offset
    v_lshrrev_b32 v210, 1, v%d
    v_mul_u32_u24 v210, 896, v210
    s_mov_b32 s45, %d
L_moe_pre_go:
    v_and_b32 v211, 1, v%d
    v_lshl_add_u32 v210, v211, 4, v210
    v_add_u32 v210, s40, v210
    s_mul_i32 s46, s%d, 14336
""" % (SW, 448 * 3584, SW, VL, 32 * 3584, SW, 448 * 896, 448 * 896, VL, 32 * 896, VL, SW))
    wstage(p, 64, 210, 14, 46)

def moe_main(p, SW, VL, VEC, st=lambda n: None):
    p("""
    s_mov_b32 s3, s%d
    v_mov_b32 v1, v%d
    s_lshl_b32 s41, s3, 6
    v_add_u32 v0, s41, v1
    v_lshlrev_b32 v5, 5, v0
""" % (SW, VL))
    p('s_sleep %d' % KEY_SLEEP0)
    p("""
L_keys_poll:
    buffer_load_dwordx4 v[8:11], v5, s[96:99], 0 offen sc1
    buffer_load_dwordx4 v[12:15], v5, s[96:99], 0 offen offset:16 sc1
    s_waitcnt vmcnt(0)
    v_max3_u32 v16, v8, v9, v10
    v_max3_u32 v16, v16, v11, v12
    v_max3_u32 v16, v16, v13, v14
    v_max_u32 v16, v16, v15
    v_cmp_eq_u32 vcc, -1, v16
    s_nop 0
    s_cbranch_vccz L_keys_ok
    s_sleep %d
    s_branch L_keys_poll
L_keys_ok:
""" % KEY_SLEEP)
    st('kpoll')
    pre = Prog()
    moe_pre(pre, SW, VL)
    cut = [k for k, i in enumerate(pre.ins) if i.text.startswith('s_mov_b32 s44, 0')][0]
    dma_items = pre.ins[cut:] if MOE_INTERLEAVE else []
    p.extend(pre.ins[:cut] if MOE_INTERLEAVE else pre.ins)
    p("""
    s_mov_b32 s28, s16
    s_mov_b32 s29, s17
    s_mov_b32 s30, s18
    s_mov_b32 s31, s19
    s_mov_b32 s16, s20
    s_mov_b32 s17, s21
    s_mov_b32 s18, s22
    s_mov_b32 s19, s23
""")
    srd(p, 20, 24, 28672, str(WS_ACT))
    p('s_cmp_ge_u32 s2, 56')
    p('s_cbranch_scc1 L_moe_d')
    global TOP8_MASK
    TOP8_MASK = 48
    def weave(q, endmark):
        items = []
        cur = []
        for i in dma_items:
            cur.append(i)
            if i.kind == 'vmem': items.append(cur); cur = []
        if cur and items: items[-1] += cur
        end = [k for k, i in enumerate(q.ins) if i.text.startswith(endmark)][0]
        out = []
        step = max(1, (end - 4) // (len(items) + 1)) if items else 1 << 30
        n = 0
        for k, i in enumerate(q.ins):
            out.append(i)
            if k < end and items and n < len(items) and k >= (n + 1) * step and i.text.startswith('v_max_u32_dpp'):
                out += items[n]; n += 1
            if k == end - 1:
                while n < len(items): out += items[n]; n += 1
        return out
    q = Prog()
    g_main(q, True)
    for i in weave(q, ';ST 1'):
        if i.text.startswith(';ST 1'): st('top8')
        elif i.text.startswith(';ST 2'): st('gath')
        else: p.ins.append(i)
    p('L_moe_d:')
    p("""
    v_and_b32 v25, 15, v1
    s_lshl_b32 s41, s47, 6
    v_lshl_add_u32 v26, v25, 2, s41
    v_add_u32 v26, %d, v26
    ds_read_b32 v31, v26
    s_waitcnt lgkmcnt(0)
""" % (VEC + 1344 * 4))
    q = Prog()
    d_main(q, True)
    for i in weave(q, ';ST 0'):
        if i.text.startswith(';ST 0'): st('top8')
        elif i.text.startswith(';ST 2'): st('gath')
        else: p.ins.append(i)
    TOP8_MASK = 64
```

```python
from asmlib import *
import gen_attn2 as A
from gen_attn2 import (vr, ar, BLK, HALF, KBUF, VBASE, SREG, PBUF, NEGM, FR, VK, VV, VOFF, LREG, TMP, VLANE,
                       S_K0, S_K1, S_V0, S_V1, S_DST, S_THR, S_RET, S_CNT, S_W, S_96, S, frag, kread, vread, qk_list, exps, dma,
                       max8, lreg)

WS_MOD = 0
WS_R = 0x4000
WS_IDX = 0x8000
WS_ACT = 0x10000
WS_H2 = 0x100000
WS_PART = 0x400000
WS_CNT = 0x20000
WS_STAMP = 0xa000000

H_OFF = 0
MV_OFF = 57344
QSLOT = [98304, 131072, 65536, 32768]
QX = 67584
XR = 0
ST = 131072
KEYL = 68608
VEC = 59392
WO0 = 135168

S_G, S_QB, S_S, S_QH = 36, 37, 38, 39
S_X = 40
S_WQ = 44
S_WO = 48
S_SO = 52
S_T0, S_T1, S_T2, S_T3 = 60, 61, 62, 63
S_QD = 64
S_QD2 = 32
S_WST = 65
S_PART = 68
S_STAMP = 72

class VmTracker:
    def __init__(self): self.ops = []
    def add(self, tag): self.ops.append(tag)
    def wait(self, tag):
        idx = max(i for i, t in enumerate(self.ops) if t == tag)
        n = len(self.ops) - 1 - idx
        assert n <= 63
        return 's_waitcnt vmcnt(%d)' % n

STAMPS = {1: ['start', 'ln_done', 'qproj', 'qexch', 'attnpro', 'loop', 'oproj', 'end'],
          2: ['start', 'xwait', 'stats', 'modbar', 'hbar', 'ln_done', 'qproj', 'end'],
          4: ['start', 'p_w', 'p_bar', 'p_st', 'stats', 'poll_done', 'modbar', 'end'],
          5: ['start', 'oproj', 'stores', 'drain', 'grp', 'k2ld', 'k2m', 'end'],
          6: ['start', 'k2ld', 'k2m', 'pub', 'kpoll', 'top8', 'gath', 'end'],
          3: ['start', 'loop', 'e1bar', 'comb', 'e3bar', 'oproj', 'stores', 'end']}
def stamp(p, o, name):
    if o.stamps and name in STAMPS[o.stamps]:
        k = STAMPS[o.stamps].index(name)
        p('s_memrealtime s[%d:%d]' % (S_STAMP + 2 * k, S_STAMP + 2 * k + 1))
        if name in ('xwait', 'stats', 'modbar', 'hbar', 'e1bar', 'comb', 'e3bar', 'p_w', 'p_bar', 'p_st', 'poll_done', 'pub', 'kpoll', 'top8', 'gath', 'k2m'): p('s_waitcnt lgkmcnt(0)')

def xreduce(p, r, t, op='v_add_f32'):
    p('v_mov_b32 v%d, v%d' % (t, r))
    p('s_nop 1')
    p('v_permlane16_swap_b32 v%d, v%d' % (r, t))
    p('s_nop 1')
    p('%s v%d, v%d, v%d' % (op, r, r, t))
    p('v_mov_b32 v%d, v%d' % (t, r))
    p('s_nop 1')
    p('v_permlane32_swap_b32 v%d, v%d' % (r, t))
    p('s_nop 1')
    p('%s v%d, v%d, v%d' % (op, r, r, t))

def wq_dma(step, vm, VQ):
    out = []
    slot = QSLOT[step % 4]
    for jj in range(8):
        if jj % 4 == 0:
            out.append('s_add_u32 m0, s%d, %d' % (S_QD2, slot + jj * 1024))
        out.append(('buffer_load_dwordx4 v%d, s[%d:%d], s%d offen offset:%d lds' % (VQ[(jj >> 1) & 1], S_WQ, S_WQ + 3, S_SO + jj, (jj & 3) * 1024), 'wq%d' % step))
    return out

def emit_dma(p, lst, vm, nop=True):
    for s in lst:
        if isinstance(s, tuple):
            p(s[0]); vm.add(s[1])
        else:
            p(s)
            if nop and s.startswith('s_') and 'm0' in s: p('s_nop 0')

WS_MODP = 0x30000
WS_MODP2 = 0x38000

def mod_dot(o, p, NI, cunpack, wname):
    C0, W0, HI, ACC, TT = 168, 76, 132, 148, 156
    cunpack(C0)
    for i in range(NI): p('v_mul_f32 v%d, 0xbfb8aa3b, v%d' % (HI + i, C0 + i))
    for i in range(NI): p('v_exp_f32 v%d, v%d' % (HI + i, HI + i))
    p('s_nop 0')
    for i in range(NI): p('v_add_f32 v%d, 1.0, v%d' % (HI + i, HI + i))
    for i in range(NI): p('v_rcp_f32 v%d, v%d' % (HI + i, HI + i))
    p('s_nop 0')
    for i in range(NI): p('v_mul_f32 v%d, v%d, v%d' % (C0 + i, C0 + i, HI + i))
    for i in range(NI): p('v_cvt_pk_bf16_f32 v%d, v%d, 0' % (C0 + i, C0 + i))
    for i in range(NI): p('v_lshlrev_b32 v%d, 16, v%d' % (HI + i, C0 + i))
    for j in range(8): p('v_mov_b32 v%d, 0' % (ACC + j))
    wname()
    for i in range(NI):
        for j in range(8):
            w = W0 + 4 * i + j // 2
            sel = (C0 + i) if j % 2 == 0 else (HI + i)
            p('v_dot2_f32_bf16 v%d, v%d, v%d, v%d' % (ACC + j, w, sel, ACC + j))
    p('s_nop 2')
    regs = [ACC + j for j in range(8)]; temps = [TT + j for j in range(8)]
    for r in regs:
        p('v_add_f32_dpp v%d, v%d, v%d row_ror:8 row_mask:0xf bank_mask:0xf' % (r, r, r))
    for sw in ('v_permlane16_swap_b32', 'v_permlane32_swap_b32'):
        for r, t in zip(regs, temps): p('v_mov_b32 v%d, v%d' % (t, r))
        p('s_nop 1')
        for r, t in zip(regs, temps): p('%s v%d, v%d' % (sw, r, t))
        p('s_nop 1')
        for r, t in zip(regs, temps): p('v_add_f32 v%d, v%d, v%d' % (r, r, t))

def mod_wgsum(p, tag):
    B_ = MV_OFF + 4096
    p("""
    v_and_b32 v164, 7, v%d
    s_lshl_b32 s60, s%d, 8
    v_lshlrev_b32 v164, 5, v164
    v_add_u32 v164, s60, v164
    ds_write_b128 v164, v[148:151] offset:%d
    ds_write_b128 v164, v[152:155] offset:%d
    s_waitcnt lgkmcnt(0)
    s_barrier
    ;STAMP p_bar
    s_cmp_lg_u32 s%d, 0
    s_cbranch_scc1 L_prod_done_%s
    v_lshlrev_b32 v164, 2, v%d
    ds_read_b32 v165, v164 offset:%d
    ds_read_b32 v166, v164 offset:%d
    ds_read_b32 v167, v164 offset:%d
    ds_read_b32 v168, v164 offset:%d
    s_waitcnt lgkmcnt(0)
    v_add_f32 v165, v165, v166
    v_add_f32 v167, v167, v168
    v_add_f32 v165, v165, v167
""" % (VLANE, S_W, B_, B_ + 16, S_W, tag, VLANE, B_, B_ + 256, B_ + 512, B_ + 768))

def producer(o, p, xloads):
    p("""
    s_cmp_ge_u32 s2, 56
    s_cbranch_scc1 L_prod_late
    s_mul_i32 s57, s2, 74
    s_lshr_b32 s57, s57, 10            ; ks = j / 14
    s_mul_i32 s58, s57, 14
    s_sub_u32 s58, s2, s58             ; cb = j %% 14
    s_mul_i32 s56, s57, 3584
    s_lshl_b32 s59, s58, 8
    s_add_u32 s56, s56, s59
    s_add_u32 s56, s56, %d             ; partial store offset
    s_branch L_prod_map
L_prod_late:
    s_sub_u32 s59, s2, 56
    s_mul_i32 s57, s59, 147
    s_lshr_b32 s57, s57, 12            ; ks = j' / 28
    s_mul_i32 s58, s57, 28
    s_sub_u32 s58, s59, s58            ; cb' = j' %% 28
    s_mul_i32 s56, s57, 7168
    s_lshl_b32 s59, s58, 8
    s_add_u32 s56, s56, s59
    s_add_u32 s56, s56, %d
    s_add_u32 s58, s58, 14
L_prod_map:
    s_mul_i32 s62, s57, 112
    s_mul_i32 s63, s%d, 28
    s_add_u32 s62, s62, s63            ; first row of this wave
    v_and_b32 v206, 7, v%d             ; cc
    v_lshrrev_b32 v207, 3, v%d         ; kg
    v_add_u32 v209, s62, v207          ; row (i = 0)
    v_mul_u32_u24 v208, 5376, v209
    v_lshl_add_u32 v208, v206, 4, v208
    s_lshl_b32 s63, s58, 7
    v_add_u32 v208, s63, v208
    v_lshlrev_b32 v209, 1, v209
    v_mov_b32 v210, 0x40000000
    v_cmp_gt_u32 vcc, 4, v207          ; i = 3 valid only for kg < 4
    s_nop 1
    v_cndmask_b32 v211, v210, v209, vcc
    v_cndmask_b32 v212, v210, v208, vcc
    s_mov_b32 s63, %d
""" % (WS_MODP, WS_MODP2, S_W, VLANE, VLANE, 8 * 5376))
    for i in range(3): p('buffer_load_ushort v%d, v209, s[68:71], 0 offen offset:%d' % (60 + i, 16 * i))
    p('buffer_load_ushort v63, v211, s[68:71], 0 offen offset:48')
    for i in range(3):
        p('buffer_load_dwordx4 %s, v208, s[64:67], 0 offen' % vr(76 + 4 * i, 4))
        p('v_add_u32 v208, s63, v208')
        p('v_add_u32 v212, s63, v212')
    p('buffer_load_dwordx4 v[88:91], v212, s[64:67], 0 offen')
    xloads()
    p('s_waitcnt vmcnt(18)')
    def cun(C0):
        for i in range(4): p('v_lshlrev_b32 v%d, 16, v%d' % (C0 + i, 60 + i))
    def wwait():
        p('s_waitcnt vmcnt(14)')
        stamp(p, o, 'p_w')
    mod_dot(o, p, 4, cun, wwait)
    mod_wgsum(p, 'u')
    p("""
    v_add_u32 v164, s56, v164
    buffer_store_dword v165, v164, s[24:27], 0 offen sc1
    s_cmp_ge_u32 s2, 56
    s_cbranch_scc1 L_prod_done_u       ; late producers signal after the modulation barrier
    ;ZEROCNT
    s_waitcnt vmcnt(0)
    ;STAMP p_st
    v_mov_b32 v165, 1
    v_mov_b32 v164, 0
    v_cmp_eq_u32 vcc, 0, v%d
    s_and_saveexec_b64 s[62:63], vcc
    buffer_atomic_add v165, v164, s[88:91], 0 offen sc0 sc1
    s_waitcnt vmcnt(0)
    v_readfirstlane_b32 s60, v165
    s_cmp_eq_u32 s60, 55
    s_cbranch_scc0 L_prod_notlast
    v_mov_b32 v165, 1
    buffer_store_dword v165, v164, s[88:91], 0 offen offset:128 sc1
L_prod_notlast:
    s_mov_b64 exec, s[62:63]
L_prod_done_u:
""" % VLANE)

def prologue(o):
    p = Prog()
    L = VLANE
    vm = VmTracker()
    p("""
    s_cmp_ge_u32 s2, 256
    s_cbranch_scc1 L_end_k1
    s_load_dwordx2 s[40:41], s[0:1], 0
    s_load_dwordx4 s[4:7], s[0:1], 8
    s_load_dwordx4 s[44:47], s[0:1], 24
    s_load_dwordx4 s[64:67], s[0:1], 80
    s_load_dwordx4 s[88:91], s[0:1], 104
    s_load_dwordx4 s[96:99], s[0:1], 56
    s_load_dwordx2 s[100:101], s[0:1], 72
    v_lshrrev_b32 v1, 6, v0
    v_and_b32 v%d, 63, v0
    s_nop 0
    v_readfirstlane_b32 s%d, v1
    ;MAP
    s_lshr_b32 s%d, s%d, 1        ; s (key half)
    s_and_b32 s%d, s%d, 1         ; qh
""" % (L, S_W, S_S, S_W, S_QH, S_W))
    idx = [k for k, i in enumerate(p.ins) if i.text.startswith(';MAP')][0]
    if getattr(o, 'scramble', 0):
        p.ins[idx:idx + 1] = [I('s_lshr_b32 s%d, s2, 5' % S_G), I('s_and_b32 s%d, s2, 31' % S_QB)]
    else:
        p.ins[idx:idx + 1] = [I('s_and_b32 s%d, s2, 7' % S_G), I('s_lshr_b32 s%d, s2, 3' % S_QB)]
    if o.stamps:
        p('s_memrealtime s[%d:%d]' % (S_STAMP, S_STAMP + 1))
    p("""
    v_and_b32 v200, 15, v%d           ; n
    v_lshrrev_b32 v201, 4, v%d        ; kq
    s_lshl_b32 s60, s%d, 4
    v_add_u32 v202, s60, v200
    v_mul_u32_u24 v202, 896, v202
    v_lshl_add_u32 v202, v201, 4, v202
    s_mul_i32 s60, s%d, 57344
    s_waitcnt lgkmcnt(0)
    s_mov_b32 s24, s90
    s_mov_b32 s25, s91
    s_mov_b32 s26, 0x10000000
    s_mov_b32 s27, 0x20000
    s_mov_b32 s90, 256
    s_mov_b32 s91, 0x20000
    s_add_u32 s40, s40, s60
    s_addc_u32 s41, s41, 0
    s_mov_b32 s42, 57344
    s_mov_b32 s43, 0x20000
""" % (L, L, S_W, S_QB))
    def xl():
        for ks in range(14):
            p('buffer_load_dwordx4 %s, v202, s[40:43], 0 offen offset:%d' % (vr(4 * ks, 4), ks * 64))
    p("""
    s_cmp_ge_u32 s2, 168
    s_cbranch_scc1 L_noprod_a
    s_mov_b32 s68, s64
    s_mov_b32 s69, s65
    s_mov_b32 s70, 896
    s_mov_b32 s71, 0x20000
    s_mov_b32 s64, s66
    s_mov_b32 s65, s67
    s_mov_b32 s66, %d
    s_mov_b32 s67, 0x20000
""" % (448 * 5376))
    producer(o, p, xl)
    p('s_branch L_noprod_b')
    p('L_noprod_a:')
    for ks in range(14):
        p('buffer_load_dwordx4 %s, v202, s[40:43], 0 offen offset:%d' % (vr(4 * ks, 4), ks * 64)); vm.add('x')
    p('L_noprod_b:')
    if not o.one: p("""
    s_cmp_lg_u32 s2, 200
    s_cbranch_scc1 L_noactfill
    v_lshlrev_b32 v206, 4, v%d
    s_lshl_b32 s60, s%d, 10
    s_add_u32 s60, s60, %d
    v_add_u32 v206, s60, v206
    v_mov_b32 v208, -1
    v_mov_b32 v209, -1
    v_mov_b32 v210, -1
    v_mov_b32 v211, -1
""" % (L, S_W, WS_ACT))
    for i_ in range(7 if not o.one else 0):
        p('s_mov_b32 s60, %d' % (i_ * 4096))
        p('buffer_store_dwordx4 v[208:211], v206, s[24:27], s60 offen')
    if not o.one: p('L_noactfill:')
    p("""
    s_mov_b32 s48, s46
    s_mov_b32 s49, s47
    s_mul_i32 s60, s%d, 458752
    s_add_u32 s48, s48, s60
    s_addc_u32 s49, s49, 0
    s_mov_b32 s50, 458752
    s_mov_b32 s51, 0x20000
    s_lshl_b32 s60, s%d, 10
    s_add_u32 s44, s44, s60
    s_addc_u32 s45, s45, 0
    s_sub_u32 s46, 3670016, s60
    s_mov_b32 s47, 0x20000
""" % (S_G, S_G))
    if o.pf:
        D = o.pfd
        p("""
    s_lshl_b32 s60, s%d, 20
    s_cmp_lt_u32 s%d, 16
    s_cselect_b32 s92, s4, s6
    s_cselect_b32 s93, s5, s7
    s_add_u32 s92, s92, s60
    s_addc_u32 s93, s93, 0
    s_mov_b32 s94, 0x100000
    s_mov_b32 s95, 0x20000
    s_and_b32 s60, s%d, 15
    s_lshl_b32 s60, s60, 4
    s_lshl_b32 s61, s%d, 2
    s_add_u32 s60, s60, s61            ; line0 = (qb&15)*16 + w*4
    v_and_b32 v206, 3, v%d
    v_add_u32 v206, s60, v206
    v_lshlrev_b32 v206, 7, v206        ; line*128
    v_lshrrev_b32 v207, 2, v%d         ; tile = lane>>2
    v_lshl_add_u32 v207, v207, 15, v206
    v_mov_b32 v208, 0x40000000
    v_cmp_gt_u32 vcc, %d, v%d
    s_nop 1
    v_cndmask_b32 v207, v208, v207, vcc
    v_cmp_gt_u32 vcc, 4, v%d
    v_add_u32 v206, %d, v206
    s_nop 0
    v_cndmask_b32 v%d, v208, v206, vcc
""" % (S_G, S_QB, S_QB, S_W, L, L, 4 * D, L, L, D * 32768, A.VPFA))
        p("""
    s_mul_i32 s60, s%d, 112
    s_mul_i32 s61, s%d, 28
    s_add_u32 s60, s60, s61
    v_add_u32 v206, s60, v%d
    v_lshrrev_b32 v209, 3, v206
    v_lshlrev_b32 v209, 13, v209
    v_and_b32 v210, 7, v206
    v_lshl_add_u32 v209, v210, 7, v209
    v_lshlrev_b32 v206, 7, v206        ; wo prefetch offset = L*128
    v_cmp_gt_u32 vcc, 28, v%d
    s_nop 1
    v_cndmask_b32 v209, v208, v209, vcc
    v_cndmask_b32 v242, v208, v206, vcc
    v_mov_b32 v240, v209
    v_mov_b32 v241, v207
""" % (S_QB, S_W, L, L))
        p("""
    s_mul_i32 s60, s2, 49
    s_mul_i32 s61, s%d, 13
    s_add_u32 s60, s60, s61
    v_add_u32 v206, s60, v%d
    v_min_u32 v206, 12543, v206
    v_lshlrev_b32 v243, 7, v206
""" % (S_W, L))
    VQ = (204, 205)
    p("""
    v_lshlrev_b32 v206, 1, v201       ; 2*rr
    v_xor_b32 v206, v206, v200        ; slot ^ 2rr
    v_lshlrev_b32 v206, 4, v206
    v_lshl_add_u32 v206, v201, 13, v206
    s_lshl_b32 s60, s%d, 8
    v_add_u32 v204, s60, v206
    v_xor_b32 v205, 0x80, v204
    s_lshl_b32 s%d, s%d, 13
""" % (S_W, S_QD2, S_W))
    for jj in range(8):
        p('s_mov_b32 s%d, %d' % (S_SO + jj, jj * 32768 - (jj & 3) * 1024))
    p("""
    s_lshl_b32 s60, s%d, 20
    s_add_u32 s8, s4, s60
    s_addc_u32 s9, s5, 0
    s_sub_u32 s8, s8, 96
    s_subb_u32 s9, s9, 0
    s_mov_b32 s10, %d
    s_mov_b32 s11, 0x20000
    s_add_u32 s12, s8, 4096
    s_addc_u32 s13, s9, 0
    s_mov_b32 s14, %d
    s_mov_b32 s15, 0x20000
    s_add_u32 s16, s6, s60
    s_addc_u32 s17, s7, 0
    s_sub_u32 s16, s16, 96
    s_subb_u32 s17, s17, 0
    s_mov_b32 s18, %d
    s_mov_b32 s19, 0x20000
    s_add_u32 s20, s16, 4096
    s_addc_u32 s21, s17, 0
    s_mov_b32 s22, %d
    s_mov_b32 s23, 0x20000
    s_mov_b32 s%d, 96
    s_mul_i32 s61, s%d, %d
    s_mul_i32 s62, s%d, %d
    s_add_u32 s%d, s61, s62       ; LDS DMA dest base for K/V
    s_mov_b32 s%d, 0x%x
""" % (S_G, (1 << 20) + 96, (1 << 20) + 96 - 4096, (1 << 20) + 96, (1 << 20) + 96 - 4096, S_96, S_S, HALF, S_QH, 8 * BLK, S_DST, S_THR, o.thr))
    XC = 56
    ONE = 210; SELLO = 211; SELHI = 212; ACC = 214
    p('v_mov_b32 v%d, 0x3f803f80' % ONE)
    p('v_mov_b32 v%d, 0x00003f80' % SELLO)
    p('v_mov_b32 v%d, 0x3f800000' % SELHI)
    for i in range(4): p('v_mov_b32 v%d, 0' % (ACC + i))
    p(vm.wait('x'))
    stamp(p, o, 'xwait')
    if o.pf:
        p('buffer_load_dword v253, v240, s[44:47], 0 offen'); vm.add('pf')
    dmas = []
    for st in range(3):
        dmas += wq_dma(st, vm, VQ)
        dmas += ['v_add_u32 v204, 0x40000, v204', 'v_add_u32 v205, 0x40000, v205']
    valu = []
    for i in range(56):
        valu.append('v_dot2_f32_bf16 v%d, v%d, v%d, v%d' % (ACC + i % 4, i, ONE, ACC + i % 4))
    r = Prog()
    r('s_nop 2')
    r('v_add_f32 v%d, v%d, v%d' % (ACC, ACC, ACC + 1))
    r('v_add_f32 v%d, v%d, v%d' % (ACC + 2, ACC + 2, ACC + 3))
    r('v_add_f32 v%d, v%d, v%d' % (ACC, ACC, ACC + 2))
    xreduce(r, ACC, ACC + 1)
    r('v_mul_f32 v%d, 0x%x, v%d' % (ACC, 0xbb124925, ACC))
    valu.append([i.text for i in r.ins])
    for i in range(56):
        valu.append('v_dot2_f32_bf16 v%d, v%d, v%d, v%d' % (XC + 2 * i, i, SELLO, ACC))
        valu.append('v_dot2_f32_bf16 v%d, v%d, v%d, v%d' % (XC + 2 * i + 1, i, SELHI, ACC))
    V2 = 216
    valu.append(['v_mov_b32 v%d, 0' % (V2 + i) for i in range(4)])
    for i in range(56):
        a_ = V2 + 2 * (i % 2)
        valu.append('v_pk_fma_f32 %s, %s, %s, %s' % (vr(a_, 2), vr(XC + 2 * i, 2), vr(XC + 2 * i, 2), vr(a_, 2)))
    late = dmas if o.late_dma else []
    if o.late_dma: dmas = []
    di = 0
    for k, v in enumerate(valu):
        if isinstance(v, list):
            for x in v: p(x)
        else: p(v)
        if k % 6 == 5 and di < len(dmas):
            while di < len(dmas):
                d = dmas[di]; di += 1
                if isinstance(d, tuple):
                    p(d[0]); vm.add(d[1]); break
                p(d)
                if 'm0' in d:
                    p('s_nop 0')
    while di < len(dmas):
        d = dmas[di]; di += 1
        if isinstance(d, tuple): p(d[0]); vm.add(d[1])
        else:
            p(d)
            if 'm0' in d: p('s_nop 0')
    p('v_add_f32 v%d, v%d, v%d' % (V2, V2, V2 + 1))
    p('v_add_f32 v%d, v%d, v%d' % (V2 + 2, V2 + 2, V2 + 3))
    p('v_add_f32 v%d, v%d, v%d' % (V2, V2, V2 + 2))
    xreduce(p, V2, V2 + 1)
    p('v_mov_b32 v%d, 0x3727c5ac' % (V2 + 1))
    p('v_fmac_f32 v%d, 0x3b124925, v%d' % (V2 + 1, V2))
    p('v_rsq_f32 v%d, v%d' % (V2, V2 + 1))
    p('s_nop 0')
    p('v_mov_b32 v%d, v%d' % (V2 + 1, V2))
    if o.pf and o.pf_kv_early:
        p('buffer_load_dword v254, v241, s[92:95], 0 offen'); vm.add('pf')
    for i in range(56):
        p('v_pk_mul_f32 %s, %s, %s' % (vr(XC + 2 * i, 2), vr(XC + 2 * i, 2), vr(V2, 2)))
    stamp(p, o, 'stats')
    p("""
    s_cmp_lg_u32 s%d, 0
    s_cbranch_scc1 L_modwait_done
    v_mov_b32 v206, 0
L_poll:
    buffer_load_dword v207, v206, s[88:91], 0 offen offset:128 sc1
    s_waitcnt vmcnt(0)
    v_readfirstlane_b32 s60, v207
    s_cmp_eq_u32 s60, 1
    s_cbranch_scc1 L_poll_done
    s_sleep %d
    s_branch L_poll
L_poll_done:
    ;STAMP poll_done
L_modwait_done:
    s_barrier
""" % (S_W, getattr(o, 'msleep', 8)))
    p("""
    v_lshlrev_b32 v206, 4, v%d
    s_lshl_b32 s60, s%d, 10
    v_add_u32 v206, s60, v206
    v_add_u32 v207, %d, v206
""" % (L, S_W, WS_MODP))
    for k_ in range(4):
        if k_: p('v_add_u32 v207, 3584, v207')
        p('buffer_load_dwordx4 %s, v207, s[24:27], 0 offen sc1' % vr(168 + 4 * k_, 4))
    p("""
    s_lshl_b32 s60, s%d, 8
    v_lshl_add_u32 v208, v%d, 2, s60
    v_cmp_le_u32 vcc, 448, v208
    s_waitcnt vmcnt(0)
""" % (S_W, L))
    for r in range(4):
        p('v_add_f32 v%d, v%d, v%d' % (168 + r, 168 + r, 172 + r))
        p('v_add_f32 v%d, v%d, v%d' % (176 + r, 176 + r, 180 + r))
    for r in range(4): p('v_add_f32 v%d, v%d, v%d' % (168 + r, 168 + r, 176 + r))
    for r in range(4): p('v_cvt_pk_bf16_f32 v%d, v%d, 0' % (168 + r, 168 + r))
    for r in range(4): p('v_lshlrev_b32 v%d, 16, v%d' % (168 + r, 168 + r))
    for r in range(4): p('v_add_f32 v%d, 1.0, v%d' % (172 + r, 168 + r))
    for r in range(4): p('v_cvt_pk_bf16_f32 v%d, v%d, 0' % (172 + r, 172 + r))
    for r in range(4): p('v_lshlrev_b32 v%d, 16, v%d' % (172 + r, 172 + r))
    for r in range(4): p('v_cndmask_b32 v%d, v%d, v%d, vcc' % (168 + r, 168 + r, 172 + r))
    for r in range(4): p('v_mul_f32 v%d, 0x3db8aa3b, v%d' % (168 + r, 168 + r))
    p('ds_write_b128 v206, v[168:171] offset:%d' % MV_OFF)
    p('s_waitcnt lgkmcnt(0)')
    p('s_barrier')
    p("""
    s_cmp_lt_u32 s2, 56
    s_cbranch_scc1 L_noa2
    s_cmp_ge_u32 s2, 168
    s_cbranch_scc1 L_noa2
    s_cmp_lg_u32 s%d, 0
    s_cbranch_scc1 L_noa2
    v_mov_b32 v209, 1
    v_mov_b32 v208, 0
    v_cmp_eq_u32 vcc, 0, v%d
    s_and_saveexec_b64 s[62:63], vcc
    buffer_atomic_add v209, v208, s[88:91], 0 offen offset:64 sc1
    s_mov_b64 exec, s[62:63]
L_noa2:
""" % (S_W, L))
    stamp(p, o, 'modbar')
    if o.pf and not o.pf_kv_early:
        p('buffer_load_dword v254, v241, s[92:95], 0 offen'); vm.add('pf')
    MVA = 222; HA = 223
    p('v_lshlrev_b32 v%d, 5, v201' % MVA)
    p('v_add_u32 v%d, %d, v%d' % (MVA, MV_OFF, MVA))
    p('s_mul_i32 s60, s%d, 14336' % S_W)
    p('v_lshlrev_b32 v%d, 4, v%d' % (HA, L))
    p('v_add_u32 v%d, s60, v%d' % (HA, HA))
    q = Prog()
    TA = [16, 32, 168, 184] if getattr(o, 'mvdeep', 0) == 0 else [16, 32, 168, 184, 224, 240]
    NT = len(TA)
    def mvread(ks):
        t = TA[ks % NT]
        q('ds_read_b128 %s, v%d offset:%d' % (vr(t, 4), MVA, ks * 128))
        q('ds_read_b128 %s, v%d offset:%d' % (vr(t + 4, 4), MVA, ks * 128 + 16))
        q('ds_read_b128 %s, v%d offset:%d' % (vr(t + 8, 4), MVA, 1792 + ks * 128))
        q('ds_read_b128 %s, v%d offset:%d' % (vr(t + 12, 4), MVA, 1792 + ks * 128 + 16))
    for ks in range(NT - 1): mvread(ks)
    for ks in range(14):
        if ks + NT - 1 < 14: mvread(ks + NT - 1)
        t = TA[ks % NT]
        for j in range(4):
            q('v_pk_fma_f32 %s, %s, %s, %s' % (vr(t + 2 * j, 2), vr(XC + 8 * ks + 2 * j, 2), vr(t + 8 + 2 * j, 2), vr(t + 2 * j, 2)))
        hr = 4 * (ks % 4)
        for j in range(4):
            q('v_cvt_pk_bf16_f32 v%d, v%d, v%d' % (hr + j, t + 2 * j, t + 2 * j + 1))
        q('ds_write_b128 v%d, %s offset:%d' % (HA, vr(hr, 4), H_OFF + ks * 1024))
    w, _ = insert_waits(q.ins)
    li = 0
    cnt = 0
    for ins_ in w:
        p.ins.append(ins_)
        cnt += 1
        if cnt % 9 == 0 and li < len(late):
            while li < len(late):
                d = late[li]; li += 1
                if isinstance(d, tuple):
                    p(d[0]); vm.add(d[1]); break
                p(d)
                if 'm0' in d: p('s_nop 0')
    while li < len(late):
        d = late[li]; li += 1
        if isinstance(d, tuple): p(d[0]); vm.add(d[1])
        else:
            p(d)
            if 'm0' in d: p('s_nop 0')
    p('s_waitcnt lgkmcnt(0)')
    p('s_barrier')
    stamp(p, o, 'hbar')
    p('v_lshlrev_b32 v%d, 4, v%d' % (HA, L))
    for st in range(14):
        for qt in range(4):
            f = qt * 14 + st
            p('ds_read_b128 %s, v%d offset:%d' % (ar(4 * f, 4), HA, H_OFF + f * 1024))
    VA = 232
    p("""
    v_bfe_u32 v206, v%d, 2, 2          ; r
    v_and_b32 v207, 1, v201            ; kq&1
    v_lshl_add_u32 v207, v207, 2, v206 ; f = r + 4*(kq&1)
    v_lshlrev_b32 v208, 11, v201       ; 2*kq*1024
    v_lshl_add_u32 v208, v206, 8, v208 ; + r*256
    v_and_b32 v209, 3, v%d             ; c
    v_lshl_add_u32 v208, v209, 3, v208 ; + c*8
    v_add_u32 v208, s%d, v208          ; + w*8192
""" % (L, L, S_QD2))
    for T in range(8):
        p('v_xor_b32 v209, %d, v207' % T)
        p('v_lshl_add_u32 v%d, v209, 5, v208' % (VA + T))
    p('s_waitcnt lgkmcnt(0)')
    p('s_barrier')
    stamp(p, o, 'ln_done')
    return p, vm, VQ, VA

def qproj(o, vm, VQ, VA):
    p = Prog()
    N = 14 * 32
    sc = [[] for _ in range(N)]; mem = [[] for _ in range(N)]; val = [[] for _ in range(N)]
    def aread(n):
        st, T = n // 8, n % 8
        r = FR + 4 * (n % 4)
        off = QSLOT[st % 4]
        return st, T, r, off
    reads = []
    for n in range(14 * 8):
        st, T, r, off = aread(n)
        reads.append(['ds_read_b64_tr_b16 %s, v%d offset:%d' % (vr(r, 2), VA + T, 0),
                      'ds_read_b64_tr_b16 %s, v%d offset:%d' % (vr(r + 2, 2), VA + T, 1024)])
    pre = Prog()
    for T in range(8):
        pre('v_add_u32 v%d, %d, v%d' % (VA + T, QSLOT[0], VA + T))
    pre(vm.wait('wq0'))
    for n in range(3):
        for s in reads[n]: pre(s)
    for n in range(14 * 8):
        st, T = n // 8, n % 8
        g = 4 * (n - 3)
        if n >= 3:
            mem[g] += reads[n]
        if st + 1 < 14:
            d = QSLOT[(st + 1) % 4] - QSLOT[st % 4]
            upd = 'v_add_u32 v%d, %s, v%d' % (VA + T, ('0x%x' % (d & 0xffffffff)), VA + T)
            if n >= 3: val[g + 1].append(upd)
            else: val[n + 1].append(upd)
    for st in range(14):
        base = st * 32
        lst = None
        if st <= 10:
            lst = wq_dma(st + 3, vm, VQ)
            post = ['v_add_u32 v%d, 0x40000, v%d' % (VQ[0], VQ[0]), 'v_add_u32 v%d, 0x40000, v%d' % (VQ[1], VQ[1])]
        elif st >= 12 and not o.kdma_late:
            lst = [(s if s.startswith('s_') else (s, 'k%d' % (st - 12))) for s in dma(o, st - 12, 0, True, False)]
            post = ['v_add_u32 v%d, 0x8000, v%d' % (VOFF, VOFF)]
        if lst:
            gi = 0
            gaps = [base + 2 + 4 * i for i in range(8)]
            for s in lst:
                if isinstance(s, tuple):
                    mem[gaps[gi]].append(s); gi += 1
                else:
                    sc[gaps[gi] - 1].append(s)
            for i, s in enumerate(post):
                val[base + 31].append(s)
    post_cvt = []
    for T in range(8):
        for qt in range(4):
            g = 13 * 32 + T * 4 + qt + 7
            a_ = (T * 4 + qt) * 4; t_ = 128 + 2 * (T * 4 + qt)
            cv = ['v_cvt_pk_bf16_f32 v%d, v%d, v%d' % (t_, a_, a_ + 1), 'v_cvt_pk_bf16_f32 v%d, v%d, v%d' % (t_ + 1, a_ + 2, a_ + 3)]
            placed = False
            if o.qcvt:
                for gg in (g, g + 1, g + 2):
                    if gg < N and len(mem[gg]) == 0 and not val[gg]:
                        val[gg] += cv; placed = True; break
            if not placed: post_cvt += cv
    p.extend(pre)
    for gidx in range(N):
        st, rem = gidx // 32, gidx % 32
        T, qt = rem // 4, rem % 4
        n = st * 8 + T
        acc = (T * 4 + qt) * 4
        c = '0' if st == 0 else vr(acc, 4)
        m = 'v_mfma_f32_16x16x32_bf16 %s, %s, %s, %s' % (vr(acc, 4), vr(FR + 4 * (n % 4), 4), ar((qt * 14 + st) * 4, 4), c)
        p(m)
        if gidx + 1 < N:
            st2, rem2 = (gidx + 1) // 32, (gidx + 1) % 32
            if rem2 % 4 == 0:
                n2 = st2 * 8 + rem2 // 4
                p('.need v_mfma_f32_16x16x32_bf16 v[0:3], %s, v[0:3], 0' % vr(FR + 4 * (n2 % 4), 4))
        if rem == 20 and st + 1 < 14:
            p(vm.wait('wq%d' % (st + 1)))
        if st == 11 and rem == 31 and not o.kdma_late:
            p('s_barrier')
        for s in sc[gidx]: p(s)
        for s in mem[gidx]:
            if isinstance(s, tuple):
                p(s[0]); vm.add(s[1])
            else: p(s)
        for s in val[gidx]: p(s)
    p('s_nop 7')
    for x in post_cvt: p(x)
    return p

def kv_addresses(o):
    p = Prog()
    L = VLANE
    p('''
    s_mul_i32 s61, s%d, %d
    s_lshl_b32 s62, s%d, 14
    s_lshl_b32 s63, s%d, 13
    s_add_u32 s62, s62, s63
    v_lshlrev_b32 v%d, 4, v%d
    v_add_u32 v%d, s62, v%d
''' % (S_S, HALF, S_S, S_QH, VOFF, L, VOFF, VOFF))
    p('''
    v_and_b32 v240, 7, v%d
    v_mul_u32_u24 v240, %d, v240
    v_bfe_u32 v241, v%d, 3, 1
    v_lshlrev_b32 v241, 9, v241
    v_add_u32 v240, v240, v241
    v_lshrrev_b32 v241, 4, v%d
    v_lshlrev_b32 v241, 4, v241
    v_add_u32 v240, v240, v241
    v_add_u32 v%d, s61, v240
    v_lshrrev_b32 v240, 2, v%d
    v_and_b32 v241, 7, v240
    v_mul_u32_u24 v241, %d, v241
    v_lshrrev_b32 v240, 3, v240
    v_lshlrev_b32 v240, 9, v240
    v_add_u32 v240, v240, v241
    v_and_b32 v241, 3, v%d
    v_lshlrev_b32 v241, 3, v241
    v_add_u32 v240, v240, v241
    v_add_u32 v240, s61, v240
    v_add_u32 v%d, %d, v240
''' % (L, BLK, L, L, VK, L, BLK, L, VV, VBASE))
    return p

def qexchange(o, vm):
    p = Prog()
    L = VLANE
    p('''
    v_and_b32 v200, 15, v%d
    v_lshrrev_b32 v201, 4, v%d
    v_mul_u32_u24 v202, 1040, v200
    v_lshl_add_u32 v202, v201, 3, v202
    s_lshl_b32 s60, s%d, 8
    s_add_u32 s60, s60, %d
    v_add_u32 v202, s60, v202
    s_mov_b32 s61, 0x%x
''' % (L, L, S_W, QX, 0x3db8aa3b))
    p('s_barrier')
    if o.kdma_late:
        for kb in range(2):
            for s_ in dma(o, kb, 0, True, False, nop=True):
                p(s_)
                if s_.startswith('buffer'): vm.add('k%d' % kb)
            p('v_add_u32 v%d, 0x8000, v%d' % (VOFF, VOFF))
    q = Prog()
    for T in range(8):
        for qt in range(4):
            q('ds_write_b64 v202, %s offset:%d' % (vr(128 + 2 * (T * 4 + qt), 2), qt * 16 * 1040 + T * 32))
    p.extend(q)
    p('s_waitcnt lgkmcnt(0)')
    p('s_barrier')
    p('''
    s_mul_i32 s60, s%d, %d
    s_add_u32 s60, s60, %d
    v_mul_u32_u24 v202, 1040, v200
    v_lshl_add_u32 v202, v201, 4, v202
    v_add_u32 v202, s60, v202
''' % (S_QH, 32 * 1040, QX))
    for h in range(2):
        for qt in range(2):
            b = 2 * h + qt
            for ks in range(8):
                p('ds_read_b128 %s, v202 offset:%d' % (vr(32 * b + 4 * ks, 4), qt * 16 * 1040 + h * 512 + ks * 64))
    p(vm.wait('k0' if o.kdma_late else 'k1'))
    p('s_waitcnt lgkmcnt(0)')
    p('s_barrier')
    return p

def attn_prologue(o):
    p = Prog()
    p('v_add_u32 v%d, 0xffff0000, v%d' % (VOFF, VOFF))
    p('s_nop 0')
    for s in dma(o, 0, 0, False, True, nop=True): p(s)
    p('v_add_u32 v%d, 0x8000, v%d' % (VOFF, VOFF))
    p('''
    s_add_u32 s8, s8, 0x8000
    s_addc_u32 s9, s9, 0
    s_sub_u32 s10, s10, 0x8000
    s_add_u32 s12, s12, 0x8000
    s_addc_u32 s13, s13, 0
    s_sub_u32 s14, s14, 0x8000
''')
    q = Prog()
    qk = qk_list(o, czero=True)
    for n in range(2):
        for s in kread(o, n, 0): q(s)
    for sl in range(64):
        if sl % 8 == 0 and sl // 8 + 1 < 8:
            for s in kread(o, 2 * (sl // 8 + 1), 0) + kread(o, 2 * (sl // 8 + 1) + 1, 0): q(s)
        q(qk[sl])
    w, _ = insert_waits(q.ins)
    p.extend(w)
    p('s_nop 7')
    t = TMP
    for b in range(4):
        max8(p, t + b, b)
    for b in range(4):
        xreduce(p, t + b, t + 4, 'v_max_f32')
    for b in range(4):
        for r in range(4):
            p('v_sub_f32 v%d, 0, v%d' % (NEGM + 4 * b + r, t + b))
        for a in range(2):
            for r in range(4):
                p('v_sub_f32 v%d, v%d, v%d' % (S(a, b) + r, S(a, b) + r, t + b))
    for i in range(4):
        p('v_mov_b32 v%d, 0' % (LREG[1] + i))
    for s in exps(o, 0, 0, 1, 0): p(s)
    for s in exps(o, 1, 0, 1, 0): p(s)
    p('s_waitcnt vmcnt(0) lgkmcnt(0)')
    p('s_barrier')
    for n in range(2):
        for s in kread(o, n, 1): p(s)
    p('s_waitcnt lgkmcnt(0)')
    return p

XR0E, XRSE, STE, WO0E = 33792, 31744, 160768, 4096
MN, LL = 240, 244
def epi_setup(o):
    L = VLANE
    x = []
    for b in range(4): x.append('v_mov_b32 v%d, v%d' % (MN + b, NEGM + 4 * b))
    for b in range(4): x.append('v_mov_b32 v%d, v%d' % (LL + b, LREG[1] + b))
    for sw in ('v_permlane16_swap_b32', 'v_permlane32_swap_b32'):
        for b in range(4): x.append('v_mov_b32 v%d, v%d' % (248 + b, LL + b))
        for b in range(4): x.append('%s v%d, v%d' % (sw, LL + b, 248 + b))
        for b in range(4): x.append('v_add_f32 v%d, v%d, v%d' % (LL + b, LL + b, 248 + b))
    if o.esend:
        a_ = ['v_and_b32 v203, 15, v%d' % L, 'v_lshlrev_b32 v203, 5, v203',
              's_lshl_b32 s63, s%d, 9' % S_W, 's_add_u32 s63, s63, %d' % STE, 'v_add_u32 v202, s63, v203',
              'v_lshlrev_b32 v199, 4, v%d' % L,
              's_xor_b32 s64, s%d, 2' % S_W, 's_lshl_b32 s65, s64, 9', 's_add_u32 s65, s65, %d' % STE, 'v_add_u32 v203, s65, v203',
              's_mul_i32 s66, s64, %d' % XRSE, 's_add_u32 s66, s66, %d' % XR0E, 'v_add_u32 v201, s66, v199',
              's_mul_i32 s67, s%d, %d' % (S_W, XRSE), 's_add_u32 s67, s67, %d' % XR0E, 'v_add_u32 v200, s67, v199',
              's_lshl_b32 s63, s%d, 10' % S_W, 'v_add_u32 v198, s63, v199',
              's_lshl_b32 s64, s64, 10', 'v_add_u32 v199, s64, v199']
        return x[:8], a_, x[8:]
    x += ['v_and_b32 v203, 15, v%d' % L, 'v_lshlrev_b32 v203, 5, v203',
          's_lshl_b32 s63, s%d, 9' % S_W, 's_add_u32 s63, s63, %d' % ST, 'v_add_u32 v202, s63, v203',
          'v_lshlrev_b32 v200, 4, v%d' % L,
          's_xor_b32 s64, s%d, 2' % S_W, 's_lshl_b32 s65, s64, 9', 's_add_u32 s65, s65, %d' % ST, 'v_add_u32 v203, s65, v203',
          's_lshl_b32 s64, s64, 15', 'v_add_u32 v201, s64, v200',
          's_lshl_b32 s66, s%d, 15' % S_W, 'v_add_u32 v200, s66, v200']
    return x

def last_iteration(o, s_):
    p = Prog()
    own = s_; oth = 1 - s_
    N = 128
    sc = [[] for _ in range(N + 8)]; mem = [[] for _ in range(N + 8)]; val = [[] for _ in range(N + 8)]
    p('v_add_u32 v%d, 0x%x, v%d' % (VV, (-(VBASE + KBUF)) & 0xffffffff, VV))
    for dt in range(2):
        for x in vread(o, dt, 1): p(x)
    for dt in range(2, 16):
        sl = 64 + (dt - 2) * 2 if dt < 4 else 64 + 4 * (dt - 4) + 4
        mem[sl] += vread(o, dt, 1)
    cp, adr, red = epi_setup(o)
    def cost(g): return 4 * len(mem[g]) + 4 * len(val[g])
    g = 64
    def place(x, g0, lim=8):
        g_ = g0
        while cost(g_) + 4 > lim: g_ += 1
        val[g_].append(x); return g_
    for x in cp + adr:
        if x.startswith('s_'): sc[g].append(x)
        else: g = place(x, g)
    gadr = g + 1
    for dt in range(16):
        for qt in range(2):
            if (dt, qt) != (15, 1):
                g0 = max(64 + 4 * dt + 2 * oth + qt + 6, gadr)
                while len(mem[g0]) and g0 < N + 6: g0 += 1
                mem[g0].append('ds_write_b128 v200, %s offset:%d' % (ar((dt * 4 + 2 * oth + qt) * 4, 4), (dt * 2 + qt) * 1024))
    g = gadr
    for x in red: g = place(x, g, 12)
    for dt in range(16):
        for qt in range(2):
            g0 = max(64 + 4 * dt + 2 * own + qt + 6, g)
            for r in range(4):
                g0 = place('v_accvgpr_read_b32 v%d, a%d' % ((dt * 2 + qt) * 4 + r, (dt * 4 + 2 * own + qt) * 4 + r), min(g0, N + 6), 16)
            g = g0
    pv = A.pv_list(o, 1)
    for sl in range(64, N):
        p(pv[sl - 64])
        if sl + 1 < N: p('.need ' + pv[sl + 1 - 64])
        for x in sc[sl]: p(x)
        for x in mem[sl]: p(x)
        for x in val[sl]: p(x)
    p('s_nop 7')
    for sl in range(N, N + 8):
        for x in sc[sl] + mem[sl] + val[sl]: p(x)
    return p

def attn_loop(o):
    p = Prog()
    first = A.iteration(o, 0, 'f', first_pv=True)
    w0, st0 = insert_waits(first.ins)
    p.extend(w0)
    p('s_mov_b32 s%d, 14' % S_CNT)
    p('.p2align 6')
    p('L_loop:')
    body = Prog()
    body.extend(A.iteration(o, 1, 'a'))
    body.extend(A.iteration(o, 0, 'b'))
    w1, st1 = insert_waits(body.ins, st0)
    w, st2 = insert_waits(body.ins, st1)
    assert st2 == st1 and [i.text for i in w] == [i.text for i in w1], 'not steady'
    loop_ins = w
    p.extend(w)
    p('s_sub_u32 s%d, s%d, 1' % (S_CNT, S_CNT))
    p('s_cmp_lg_u32 s%d, 0' % S_CNT)
    p('s_cbranch_scc1 L_loop')
    tail = Prog()
    ex = []
    if o.pf:
        ex = [(71, 'buffer_load_dword v255, v242, s[48:51], 0 offen')]
    tail.extend(A.iteration(o, 1, 'c', extra_mem=ex))
    ex = []
    if o.pf and o.pfmoe:
        ex = [(71, 'global_load_dword v255, v243, s[96:97]'), (75, 'global_load_dword v255, v243, s[98:99]'), (79, 'global_load_dword v255, v243, s[100:101]')]
    if o.esend: o._vdst = 0
    tail.extend(A.iteration(o, 0, 'd', do_dma_k=False, next_k=False, pf_ok=False, extra_mem=ex))
    o._vdst = None
    tail('s_waitcnt vmcnt(%d) lgkmcnt(0)' % len(ex))
    tail('s_barrier')
    if not o.esend:
        tail.extend(A.iteration(o, 1, 'e', do_qk=False, do_dma_k=False, do_dma_v=False, next_k=False, extra_valu=epi_setup(o)))
    w, stt = insert_waits(tail.ins, st1)
    p.extend(w)
    if o.esend:
        p('s_cmp_eq_u32 s%d, 0' % S_S)
        p('s_cbranch_scc0 L_last1')
        w0_, _ = insert_waits(last_iteration(o, 0).ins); p.extend(w0_)
        p('s_branch L_lastdone')
        p('L_last1:')
        w1_, _ = insert_waits(last_iteration(o, 1).ins); p.extend(w1_)
        p('L_lastdone:')
        w = w + w0_
    return p, w0, loop_ins, w

def combine(o, s, shadow):
    p = Prog()
    own = s; oth = 1 - s
    wr = []; rd_ = []
    for dt in range(16):
        for qt in range(2):
            wr.append('ds_write_b128 v200, %s offset:%d' % (ar((dt * 4 + 2 * oth + qt) * 4, 4), (dt * 2 + qt) * 1024))
            rd_.append(['v_accvgpr_read_b32 v%d, a%d' % ((dt * 2 + qt) * 4 + r, (dt * 4 + 2 * own + qt) * 4 + r) for r in range(4)])
    if o.esend:
        p('ds_write_b128 v198, %s' % ar((15 * 4 + 2 * oth + 1) * 4, 4))
    elif getattr(o, 'e1mix', 1):
        sh_ = list(shadow.ins); shadow = Prog()
        per = (len(sh_) + 31) // 32
        for k in range(32):
            p(wr[k])
            for x in rd_[k]: p(x)
            chunk = sh_[k * per:(k + 1) * per]
            p.extend(chunk)
    else:
        for x in wr: p(x)
        for g_ in rd_:
            for x in g_: p(x)
    p.extend(shadow)
    p('s_waitcnt lgkmcnt(0)')
    p('s_barrier')
    stamp(p, o, 'e1bar')
    q = Prog()
    q('ds_read_b128 v[204:207], v203')
    q('ds_read_b128 v[208:211], v203 offset:16')
    order = [(2 * i + y, qt) for i in range(8) for qt in range(2) for y in range(2)]
    RING = 128
    def rd(k):
        dt, qt = order[k]
        if o.esend and (dt, qt) == (15, 1): q('ds_read_b128 %s, v199' % vr(RING + 4 * (k % 8), 4))
        else: q('ds_read_b128 %s, v201 offset:%d' % (vr(RING + 4 * (k % 8), 4), (dt * 2 + qt) * 1024))
    for k in range(8): rd(k)
    AL = 212; BE = 216
    for qt in range(2):
        b = 2 * own + qt
        mo = MN + b; mp = 204 + b; lo = LL + b; lp = 208 + b
        t = 220
        q('v_min_f32 v%d, v%d, v%d' % (t, mo, mp))
        q('v_sub_f32 v%d, v%d, v%d' % (t + 1, t, mo))
        q('v_sub_f32 v%d, v%d, v%d' % (t + 2, t, mp))
        q('v_exp_f32 v%d, v%d' % (t + 1, t + 1))
        q('v_exp_f32 v%d, v%d' % (t + 2, t + 2))
        q('s_nop 0')
        q('v_mul_f32 v%d, v%d, v%d' % (t + 3, t + 1, lo))
        q('v_fmac_f32 v%d, v%d, v%d' % (t + 3, t + 2, lp))
        q('v_rcp_f32 v%d, v%d' % (t + 3, t + 3))
        q('s_nop 0')
        q('v_mul_f32 v%d, v%d, v%d' % (AL + 2 * qt, t + 1, t + 3))
        q('v_mul_f32 v%d, v%d, v%d' % (BE + 2 * qt, t + 2, t + 3))
        q('v_mov_b32 v%d, v%d' % (AL + 2 * qt + 1, AL + 2 * qt))
        q('v_mov_b32 v%d, v%d' % (BE + 2 * qt + 1, BE + 2 * qt))
    for k in range(32):
        dt, qt = order[k]
        i, y = dt // 2, dt % 2
        rv = RING + 4 * (k % 8)
        ow = (dt * 2 + qt) * 4
        q('v_pk_mul_f32 %s, %s, %s' % (vr(rv, 2), vr(rv, 2), vr(BE + 2 * qt, 2)))
        q('v_pk_mul_f32 %s, %s, %s' % (vr(rv + 2, 2), vr(rv + 2, 2), vr(BE + 2 * qt, 2)))
        q('v_pk_fma_f32 %s, %s, %s, %s' % (vr(ow, 2), vr(ow, 2), vr(AL + 2 * qt, 2), vr(rv, 2)))
        q('v_pk_fma_f32 %s, %s, %s, %s' % (vr(ow + 2, 2), vr(ow + 2, 2), vr(AL + 2 * qt, 2), vr(rv + 2, 2)))
        if k + 8 < 32: rd(k + 8)
        fr = 160 + 4 * ((i * 2 + qt) % 8)
        q('v_cvt_pk_bf16_f32 v%d, v%d, v%d' % (fr + 2 * y, ow, ow + 1))
        q('v_cvt_pk_bf16_f32 v%d, v%d, v%d' % (fr + 2 * y + 1, ow + 2, ow + 3))
        if y == 1:
            q('ds_write_b128 v201, %s offset:%d' % (vr(fr, 4), (i * 2 + qt) * 1024))
    w, _ = insert_waits(q.ins)
    p.extend(w)
    return p

def wo_dma(step, slot, VW):
    out = []
    for jj in range(7):
        out.append('s_add_u32 m0, s%d, %d' % (S_T0 + slot, jj * 1024))
        out.append(('buffer_load_dwordx4 v%d, s[%d:%d], s%d offen lds' % (VW + jj, S_WO, S_WO + 3, S_WST), 'wo%d' % step))
    return out

def epilogue(o):
    p = Prog()
    L = VLANE
    vm = VmTracker()
    VW = 232
    p('s_nop 7')
    p('''
    s_barrier
    ds_write_b128 v202, v[%d:%d]
    ds_write_b128 v202, v[%d:%d] offset:16
''' % (MN, MN + 3, LL, LL + 3))
    sh = Prog()
    sh('s_mul_i32 s60, s%d, 224' % S_W)
    sh('s_mov_b32 s61, 0x124925')
    for jj in range(7):
        sh('v_add_u32 v192, %d, v%d' % (64 * jj, L))
        sh('v_mul_u32_u24 v193, s61, v192')
        sh('v_lshrrev_b32 v193, 24, v193')
        sh('v_mul_u32_u24 v194, 14, v193')
        sh('v_sub_u32 v194, v192, v194')
        sh('v_mul_u32_u24 v193, 896, v193')
        sh('v_lshl_add_u32 v193, v194, 4, v193')
        sh('v_add_u32 v%d, s60, v193' % (VW + jj))
    sh('''
    s_mul_i32 s60, s%d, 7168
    s_add_u32 s60, s60, %d
    s_mul_i32 s61, s%d, %d
    s_add_u32 s61, s61, %d
    s_add_u32 s62, s61, 7168
    s_mov_b32 s%d, 0
''' % (S_W, WO0E if o.esend else WO0, S_W, XRSE if o.esend else 32768, (XR0E if o.esend else 0) + 16384, S_WST))
    emit_dma(sh, wo_dma(0, 0, VW), vm)
    sh('s_mov_b32 s%d, 28672' % S_WST)
    AW = 224
    BW = 228
    sh('''
    v_lshrrev_b32 v192, 2, v%d          ; 4kq + r
    v_mul_u32_u24 v192, 224, v192
    v_and_b32 v193, 3, v%d
    v_lshl_add_u32 v192, v193, 3, v192
    v_add_u32 v%d, s60, v192
    v_add_u32 v%d, s61, v192
    v_add_u32 v%d, s62, v192
    v_lshlrev_b32 v192, 4, v%d
''' % (L, L, AW, AW + 1, AW + 2, L))
    for r in range(4):
        sh('v_add_u32 v%d, %d, v192' % (BW + r, (XR0E + r * XRSE) if o.esend else r * 32768))
    p('s_cmp_eq_u32 s%d, 0' % S_S)
    p('s_cbranch_scc0 L_comb1')
    c0 = combine(o, 0, sh); c1 = combine(o, 1, sh)
    p.extend(c0)
    p('s_branch L_combdone')
    p('L_comb1:')
    p.extend(c1)
    p('L_combdone:')
    stamp(p, o, 'comb')
    if o.fuse_k2:
        p('s_load_dwordx2 s[4:5], s[0:1], 48')
        p('s_load_dwordx2 s[6:7], s[0:1], 96')
        if o.one:
            p('s_load_dwordx4 s[28:31], s[0:1], 56')
            p('s_load_dwordx2 s[32:33], s[0:1], 72')
        p('v_mov_b32 v250, 0')
        p('buffer_load_dword v251, v250, s[88:91], 0 offen offset:64 sc1'); vm.add('chk')
    p('s_waitcnt lgkmcnt(0)')
    p('s_barrier')
    stamp(p, o, 'e3bar')
    emit_dma(p, wo_dma(1, 1, VW), vm)
    p('s_mov_b32 s%d, %d' % (S_WST, 2 * 28672))
    def bread(ks, qtile):
        h, i = ks >> 3, ks & 7
        qh, qt = qtile >> 1, qtile & 1
        reg = qh + 2 * (1 - h)
        return 'ds_read_b128 %s, v%d offset:%d' % (vr(112 + 16 * (ks % 2) + 4 * qtile, 4), BW + reg, (i * 2 + qt) * 1024)
    def aread(n):
        ks, T = n // 7, n % 7
        r = FR + 4 * (n % 4)
        return ['ds_read_b64_tr_b16 %s, v%d offset:%d' % (vr(r + 2 * a, 2), AW + ks % 3, a * 3584 + T * 32) for a in range(2)]
    N = 16 * 28
    sc = [[] for _ in range(N)]; mem = [[] for _ in range(N)]; val = [[] for _ in range(N)]
    pre = Prog()
    pre(vm.wait('wo0'))
    for qtile in range(4): pre(bread(0, qtile))
    for n in range(3):
        for s in aread(n): pre(s)
    for n in range(3, 16 * 7):
        mem[4 * (n - 3)] += aread(n)
    for ks in range(15):
        for qtile in range(4):
            mem[28 * ks + 4 * qtile + 5 + 8].append(bread(ks + 1, qtile))
    for ks in range(14):
        lst = wo_dma(ks + 2, (ks + 2) % 3, VW)
        gaps = [28 * ks + 2 + 4 * i for i in range(7)]
        gi = 0
        for s in lst:
            if isinstance(s, tuple):
                mem[gaps[gi]].append(s); gi += 1
            else:
                sc[gaps[gi] - 1].append(s)
        sc[28 * ks + 27].append('s_add_u32 s%d, s%d, 28672' % (S_WST, S_WST))
    import ksmall
    hs = Prog(); hv = []
    hs('''
    s_lshl_b32 s56, s%d, 6
    s_lshl_b32 s57, s%d, 3
    s_add_u32 s56, s56, s57
    s_lshl_b32 s58, s%d, 1
    s_add_u32 s56, s56, s58
    s_add_u32 s57, s57, s58
    s_mul_i32 s57, s57, 896
    s_mul_i32 s58, s56, 896
''' % (S_QB, S_G, S_W))
    ksmall.srd(hs, 8, 24, 8 * 2048 * 896, str(WS_PART))
    ksmall.srd(hs, 12, 4, 896)
    ksmall.srd(hs, 16, 6, 2048 * 896)
    ksmall.srd(hs, 20, 24, 2048 * 896, str(WS_H2))
    ksmall.srd(hs, 96, 24, 8192, str(WS_R))
    hs('s_lshl_b32 s63, s%d, 7' % S_QB)
    hs('s_add_u32 s63, s63, %d' % WS_CNT)
    ksmall.srd(hs, 52, 24, 128, 's63')
    hs('''
    s_lshl_b32 s63, s%d, 11
    s_lshl_b32 s64, s%d, 6
    s_add_u32 s63, s63, s64
    s_mul_i32 s63, s63, 896
    s_add_u32 s63, s63, %d
    s_add_u32 s68, s24, s63
    s_addc_u32 s69, s25, 0
    s_mov_b32 s70, 57344
    s_mov_b32 s71, 0x20000
    s_mul_i32 s63, s%d, 224
    s_mul_i32 s64, s%d, %d
    s_mul_i32 s66, s%d, %d
    s_lshl_b32 s67, s%d, 10
''' % (S_G, S_QB, WS_PART, S_W, S_W, 16 * 912, S_W, 16 * 896, S_W))
    chunks = []
    for ins_ in hs.ins:
        if ins_.op == 's_addc_u32': chunks[-1].append(ins_.text)
        else: chunks.append([ins_.text])
    g = 28 * 12 + 1
    for ch in chunks:
        while len(sc[g]) + len(ch) > 3: g += 1
        sc[g] += ch
    assert g < 28 * 13
    hv = [
        'v_lshlrev_b32 v198, 4, v%d' % L, 'v_lshlrev_b32 v199, 4, v%d' % L, 'v_mov_b32 v194, 0x40000000',
        'v_cmp_gt_u32 vcc, 56, v%d' % L, 'v_mov_b32 v196, 0x00003f80', 'v_mov_b32 v197, 0x3f800000',
        'v_cndmask_b32 v198, v194, v198, vcc', 'v_cndmask_b32 v193, 0, 1.0, vcc',
        'v_add_u32 v192, s58, v198', 'v_add_u32 v195, s57, v198',
        'v_add_u32 v199, s67, v199', 'v_add_u32 v205, %d, v199' % WS_MODP2,
        'v_and_b32 v200, 15, v%d' % L, 'v_mul_u32_u24 v200, 912, v200', 'v_lshrrev_b32 v201, 4, v%d' % L,
        'v_lshl_add_u32 v200, v201, 3, v200', 'v_add_u32 v200, s63, v200',
        'v_lshlrev_b32 v201, 4, v%d' % L, 'v_add_u32 v202, s64, v201', 'v_add_u32 v203, s66, v201',
        'v_cndmask_b32 v203, v194, v203, vcc']
    g = 28 * 13 + 1
    for x in hv:
        while len(mem[g]) or len(val[g]) >= 2: g += 1
        val[g].append(x)
    a2g = 28 * 14 + 17
    assert g < a2g
    sc[a2g].append('.a2check')
    lds_ = [('buffer_load_dwordx4 %s, v195, s[40:43], 0 offen offset:%d' % (vr(144 + 4 * rr, 4), rr * 896)) for rr in range(2)]
    for k_ in range(4):
        for i_ in range(2):
            lds_.append(('s_mov_b32 s59, %d' % (k_ * 7168 + i_ * 4096), 'buffer_load_dwordx4 %s, v205, s[24:27], s59 offen sc1' % vr(160 + 8 * k_ + 4 * i_, 4)))
    lds_.append('buffer_load_dwordx4 v[152:155], v198, s[12:15], 0 offen')
    g = a2g + 1
    for x in lds_:
        while len(mem[g]): g += 1
        if isinstance(x, tuple):
            sc[g].append(x[0]); mem[g].append((x[1], 'tail'))
        else: mem[g].append((x, 'tail'))
        g += 2
    assert g < N + 2, g
    body = Prog()
    body.extend(pre)
    for gidx in range(N):
        ks, rem = gidx // 28, gidx % 28
        T, qt = rem // 4, rem % 4
        n = ks * 7 + T
        acc = (T * 4 + qt) * 4
        c = '0' if ks == 0 else vr(acc, 4)
        body('v_mfma_f32_16x16x32_bf16 %s, %s, %s, %s' % (vr(acc, 4), vr(FR + 4 * (n % 4), 4), vr(112 + 16 * (ks % 2) + 4 * qt, 4), c))
        if gidx + 1 < N:
            ks2, rem2 = (gidx + 1) // 28, (gidx + 1) % 28
            n2 = ks2 * 7 + rem2 // 4
            body('.need v_mfma_f32_16x16x32_bf16 v[0:3], %s, %s, 0' % (vr(FR + 4 * (n2 % 4), 4), vr(112 + 16 * (ks2 % 2) + 4 * (rem2 % 4), 4)))
        if rem == 16 and ks + 1 < 16:
            body(vm.wait('wo%d' % (ks + 1)))
        for s in sc[gidx]:
            if s == '.a2check':
                body('v_readfirstlane_b32 s59, v251')
                body('s_cmp_eq_u32 s59, 112')
                body('s_cbranch_scc0 L_a2rare')
                body('L_a2ok:')
            else: body(s)
        for s in mem[gidx]:
            if isinstance(s, tuple):
                body(s[0]); vm.add(s[1])
            else: body(s)
        for s in val[gidx]: body(s)
    w, _ = insert_waits(body.ins)
    p.extend(w)
    stamp(p, o, 'oproj')
    p('s_nop 7')
    p('s_barrier')
    k = 0
    for qt in range(4):
        for T in range(7):
            acc = (T * 4 + qt) * 4
            t = 112 + 2 * (k % 16); k += 1
            p('v_cvt_pk_bf16_f32 v%d, v%d, v%d' % (t, acc, acc + 1))
            p('v_cvt_pk_bf16_f32 v%d, v%d, v%d' % (t + 1, acc + 2, acc + 3))
            p('ds_write_b64 v200, %s offset:%d' % (vr(t, 2), qt * 16 * 912 + T * 32))
    p('s_waitcnt lgkmcnt(0)')
    p('s_barrier')
    q = Prog()
    for rr in range(16):
        q('ds_read_b128 %s, v202 offset:%d' % (vr(4 * rr, 4), rr * 912))
    for rr in range(16):
        if rr % 4 == 0 and rr: q('v_add_u32 v203, %d, v203' % (4 * 896))
        q('buffer_store_dwordx4 %s, v203, s[68:71], 0 offen offset:%d%s' % (vr(4 * rr, 4), (rr % 4) * 896, o.part_flags))
    w, _ = insert_waits(q.ins)
    p.extend(w)
    stamp(p, o, 'stores')
    p('s_waitcnt vmcnt(16)')
    for i_ in range(2):
        for r in range(4):
            p('v_add_f32 v%d, v%d, v%d' % (160 + 4 * i_ + r, 160 + 4 * i_ + r, 168 + 4 * i_ + r))
            p('v_add_f32 v%d, v%d, v%d' % (176 + 4 * i_ + r, 176 + 4 * i_ + r, 184 + 4 * i_ + r))
    for k_ in range(8): p('v_add_f32 v%d, v%d, v%d' % (160 + k_, 160 + k_, 176 + k_))
    for k_ in range(8): p('v_cvt_pk_bf16_f32 v%d, v%d, 0' % (160 + k_, 160 + k_))
    for k_ in range(8): p('v_lshlrev_b32 v%d, 16, v%d' % (160 + k_, 160 + k_))
    for k_ in range(8): p('v_add_f32 v%d, 1.0, v%d' % (168 + k_, 160 + k_))
    for k_ in range(8): p('v_cvt_pk_bf16_f32 v%d, v%d, 0' % (168 + k_, 168 + k_))
    for k_ in range(8): p('v_lshlrev_b32 v%d, 16, v%d' % (168 + k_, 168 + k_))
    p('v_lshrrev_b32 v242, 2, v199')
    for i_ in range(2):
        p('v_add_u32 v243, %d, v242' % ((1024 * i_ - 896) & 0xffffffff))
        p('v_cmp_gt_u32 vcc, 448, v243')
        p('s_nop 1')
        for r in range(4): p('v_cndmask_b32 v%d, v%d, v%d, vcc' % (160 + 4 * i_ + r, 160 + 4 * i_ + r, 168 + 4 * i_ + r))
    p('ds_write_b128 v199, v[160:163] offset:%d' % VEC)
    p('ds_write_b128 v199, v[164:167] offset:%d' % (VEC + 4096))
    if not o.one:
        p('s_cmp_lg_u32 s2, 0')
        p('s_cbranch_scc1 L_novecpub')
        p('s_mov_b32 s59, 3584')
        p('buffer_store_dwordx4 v[160:163], v199, s[24:27], s59 offen')
        p('s_mov_b32 s59, 7680')
        p('buffer_store_dwordx4 v[164:167], v199, s[24:27], s59 offen')
        p('L_novecpub:')
    p('''
    s_lshl_b32 s63, s%d, 3
    s_lshl_b32 s64, s%d, 1
    s_add_u32 s63, s63, s64
    s_mul_i32 s63, s63, 912
    v_min_u32 v240, 55, v%d
    v_lshlrev_b32 v241, 4, v240
    v_add_u32 v241, s63, v241
    v_lshlrev_b32 v240, 5, v240
''' % (S_G, S_W, L))
    for j in range(1, 8):
        p('s_add_u32 s%d, s%d, %d' % (72 - 72 + 76 + j if False else 59, S_G, j))
        p('s_and_b32 s59, s59, 7')
        p('s_mul_i32 s%d, s59, %d' % (24 + 0 if False else GOFF + j, 2048 * 896))
    if o.one and ksmall.MOE_EARLY:
        ksmall.moe_stage_early(p, S_W, L)
        p('s_waitcnt lgkmcnt(0)')
    else:
        p('s_waitcnt vmcnt(0) lgkmcnt(0)')
    stamp(p, o, 'drain')
    p('''
    s_barrier
    s_cmp_lg_u32 s%d, 0
    s_cbranch_scc1 L_grp_done
    v_mov_b32 v0, 1
    v_mov_b32 v1, 0
    v_cmp_eq_u32 vcc, 0, v%d
    s_and_saveexec_b64 s[60:61], vcc
    buffer_atomic_add v0, v1, s[52:55], 0 offen sc1
    s_mov_b64 exec, s[60:61]
L_grp_poll:
    buffer_load_dword v2, v1, s[52:55], 0 offen sc1
    s_waitcnt vmcnt(0)
    v_readfirstlane_b32 s59, v2
    s_cmp_eq_u32 s59, 8
    s_cbranch_scc1 L_grp_done
    s_sleep 2
    s_branch L_grp_poll
L_grp_done:
    s_barrier
''' % (S_W, L))
    stamp(p, o, 'grp')
    for rr in range(2):
        for j in range(1, 8):
            p('buffer_load_dwordx4 %s, v192, s[8:11], s%d offen offset:%d sc1' % (vr(32 * rr + 4 * j, 4), GOFF + j, rr * 896))
    for rr in range(2):
        p('ds_read_b128 %s, v241 offset:%d' % (vr(32 * rr, 4), rr * 912))
    for k_ in range(4):
        p('ds_read_b128 %s, v240 offset:%d' % (vr(160 + 8 * k_, 4), VEC + k_ * 1792))
        p('ds_read_b128 %s, v240 offset:%d' % (vr(164 + 8 * k_, 4), VEC + k_ * 1792 + 16))
    ACC = [64, 72]
    for rr in range(2):
        for j in range(8): p('v_mov_b32 v%d, 0' % (ACC[rr] + j))
    p('v_cmp_gt_u32 vcc, 56, v%d' % L)
    p('s_waitcnt lgkmcnt(0)')
    p('s_nop 0')
    for rr in range(2):
        for r in range(4): p('v_cndmask_b32_e64 v%d, 0, v%d, vcc' % (32 * rr + r, 32 * rr + r))
    for rr in range(2):
        p('s_waitcnt vmcnt(%d)' % (7 if rr == 0 else 0))
        for g_ in range(8):
            for j in range(8):
                p('v_dot2_f32_bf16 v%d, v%d, v%d, v%d' % (ACC[rr] + j, 32 * rr + 4 * g_ + j // 2, 196 + j % 2, ACC[rr] + j))
    p('s_nop 2')
    stamp(p, o, 'k2ld')
    if not o.one:
        ksmall.k2_math(p, [0, 32], [144, 148], 160, 168, 176, 184, 152, ACC, [80, 88], 96, 192, 193, L, 194, 196, 20, 16, 96, 56, 104)
        return p
    ksmall.K2_H_FLAGS = ' sc1'; ksmall.K2_OUT_FLAGS = ' sc1'
    kr = ksmall.k2_math(p, [0, 32], [144, 148], 160, 168, 176, 184, 152, ACC, [80, 88], 96, 192, 193, L, 194, 196, 20, 16, 96, 56, 104, key_in_reg=True)
    stamp(p, o, 'k2m')
    p('''
    s_lshl_b32 s59, s%d, 3
    s_add_u32 s59, s59, %d
    v_lshl_add_u32 v104, v%d, 2, s59
    v_cmp_gt_u32 vcc, 2, v%d
    s_and_saveexec_b64 s[60:61], vcc
    ds_write_b32 v104, v%d
    s_mov_b64 exec, s[60:61]
    s_waitcnt vmcnt(0) lgkmcnt(0)
''' % (S_W, KEYL, L, L, kr))
    p('''
    s_barrier
    s_cmp_lg_u32 s%d, 0
    s_cbranch_scc1 L_key_done
    v_lshlrev_b32 v104, 2, v%d
    v_add_u32 v107, %d, v104
    ds_read_b32 v105, v107
    s_lshr_b32 s59, s56, 3
    s_lshl_b32 s59, s59, 5             ; first row of the workgroup * 4  (row0 = 8*k + 0 for wave 0)
    v_add_u32 v104, s59, v104
    v_mov_b32 v106, 0x40000000
    v_cmp_gt_u32 vcc, 8, v%d
    s_waitcnt lgkmcnt(0)
    s_nop 0
    v_cndmask_b32 v104, v106, v104, vcc
    buffer_store_dword v105, v104, s[96:99], 0 offen sc1
L_key_done:
''' % (S_W, L, KEYL, L))
    stamp(p, o, 'pub')
    p('s_cmp_ge_u32 s2, 84')
    p('s_cbranch_scc1 L_st_end_k34')
    ksmall.moe_main(p, S_W, L, VEC, lambda n: stamp(p, o, n))
    p('L_st_end_k34:')
    return p

GOFF = 43

def a2rare():
    p = Prog()
    p('''
L_a2rare:
    buffer_load_dword v251, v250, s[88:91], 0 offen offset:64 sc1
    s_waitcnt vmcnt(0)
    v_readfirstlane_b32 s59, v251
    s_cmp_eq_u32 s59, 112
    s_cbranch_scc1 L_a2ok
    s_sleep 8
    s_branch L_a2rare
''')
    return p

def expand_stamps(p, o):
    q = Prog()
    for i in p.ins:
        if i.text.startswith(';STAMP'):
            stamp(q, o, i.text.split()[1])
        elif i.text.startswith(';ZEROCNT'):
            q('''
    s_cmp_lg_u32 s2, 0
    s_cbranch_scc1 L_nozero
    v_lshlrev_b32 v166, 7, v%d
    v_add_u32 v166, %d, v166
    v_mov_b32 v167, 0x40000000
    v_cmp_gt_u32 vcc, 40, v%d
    s_nop 1
    v_cndmask_b32 v166, v167, v166, vcc
    v_mov_b32 v167, 0
    buffer_store_dword v167, v166, s[24:27], 0 offen sc1
L_nozero:
''' % (VLANE, WS_CNT, VLANE))
            if o.one:
                q('''
    v_mov_b32 v156, -1
    v_mov_b32 v157, -1
    v_mov_b32 v158, -1
    v_mov_b32 v159, -1
    v_lshlrev_b32 v166, 4, v%d
    s_lshl_b32 s60, s2, 9
    s_add_u32 s60, s60, %d
    v_add_u32 v160, s60, v166
    v_mov_b32 v167, 0x40000000
    v_cmp_gt_u32 vcc, 32, v%d
    s_lshl_b32 s60, s2, 8
    s_add_u32 s60, s60, %d
    v_cndmask_b32 v160, v167, v160, vcc
    v_add_u32 v161, s60, v166
    v_cmp_gt_u32 vcc, 16, v%d
    buffer_store_dwordx4 v[156:159], v160, s[24:27], 0 offen sc1
    s_cmp_ge_u32 s2, 32
    s_cbranch_scc1 L_nokeyfill
    v_cndmask_b32 v161, v167, v161, vcc
    buffer_store_dwordx4 v[156:159], v161, s[24:27], 0 offen sc1
L_nokeyfill:
''' % (VLANE, WS_ACT, VLANE, WS_R, VLANE))
        else: q.ins.append(i)
    return q

def dump_stamps(p, o, tag):
    p('s_waitcnt vmcnt(0)')
    stamp(p, o, 'end')
    p('s_waitcnt lgkmcnt(0)')
    p('''
    s_lshl_b32 s60, s2, 2
    s_add_u32 s60, s60, s%d
    s_lshl_b32 s60, s60, 6
    s_add_u32 s60, s60, 0x%x
    v_mov_b32 v201, s60
''' % (S_W, WS_STAMP))
    for k in range(8):
        p('v_mov_b32 v%d, s%d' % (202 + k, S_STAMP + 2 * k))
    p('''
    v_cmp_eq_u32 vcc, 0, v%d
    s_and_saveexec_b64 s[60:61], vcc
    s_cbranch_execz L_nostamp%s
    buffer_store_dwordx4 v[202:205], v201, s[24:27], 0 offen
    buffer_store_dwordx4 v[206:209], v201, s[24:27], 0 offen offset:16
L_nostamp%s:
    s_mov_b64 exec, s[60:61]
''' % (VLANE, tag, tag))

def build_k1(o):
    p = Prog()
    p('k1_kernel:')
    pro, vm, VQ, VA = prologue(o)
    p.extend(expand_stamps(pro, o))
    p.extend(kv_addresses(o))
    qp = qproj(o, vm, VQ, VA)
    w, _ = insert_waits(qp.ins)
    p.extend(w)
    stamp(p, o, 'qproj')
    p.extend(qexchange(o, vm))
    stamp(p, o, 'qexch')
    if getattr(o, 'dump', '') == 'q':
        p('''
    s_lshl_b32 s60, s2, 2
    s_add_u32 s60, s60, s%d
    s_lshl_b32 s60, s60, 15
    s_add_u32 s60, s60, 0x2000000
    v_lshlrev_b32 v200, 4, v%d
    v_add_u32 v200, s60, v200
''' % (S_W, VLANE))
        for n in range(32):
            if n % 4 == 0 and n: p('v_add_u32 v200, 0x1000, v200')
            p('buffer_store_dwordx4 %s, v200, s[24:27], 0 offen offset:%d' % (vr(4 * n, 4), (n % 4) * 1024))
        p('s_waitcnt vmcnt(0)')
    p.extend(attn_prologue(o))
    stamp(p, o, 'attnpro')
    if o.stamps: p('s_waitcnt lgkmcnt(0)')
    lp, first, loop_ins, tail = attn_loop(o)
    p.extend(lp)
    stamp(p, o, 'loop')
    if getattr(o, 'dump', '') == 'o':
        p('s_nop 7')
        p('''
    s_lshl_b32 s60, s2, 18
    s_lshl_b32 s61, s%d, 16
    s_add_u32 s60, s60, s61
    s_add_u32 s60, s60, 0x2000000
    v_lshlrev_b32 v210, 4, v%d
    v_add_u32 v210, s60, v210
''' % (S_W, VLANE))
        for r4 in range(64):
            if r4 % 4 == 0 and r4: p('v_add_u32 v210, 0x1000, v210')
            p('buffer_store_dwordx4 %s, v210, s[24:27], 0 offen offset:%d' % (ar(4 * r4, 4), (r4 % 4) * 1024))
        p('''
    s_lshl_b32 s60, s2, 2
    s_add_u32 s60, s60, s%d
    s_lshl_b32 s60, s60, 11
    s_add_u32 s60, s60, 0x8000000
    v_lshlrev_b32 v210, 2, v%d
    v_add_u32 v210, s60, v210
''' % (S_W, VLANE))
        for b in range(4):
            p('buffer_store_dword v%d, v210, s[24:27], 0 offen offset:%d' % (NEGM + 4 * b, 256 * b))
            p('buffer_store_dword v%d, v210, s[24:27], 0 offen offset:%d' % (LREG[1] + b, 1024 + 256 * b))
        p('s_waitcnt vmcnt(0)')
    p.extend(epilogue(o))
    if o.stamps and not o.one:
        stamp(p, o, 'k2m')
        dump_stamps(p, o, '')
    if o.stamps and o.one:
        dump_stamps(p, o, 'B')
    p('s_waitcnt vmcnt(0)')
    p('L_end_k1:')
    p('s_endpgm')
    for tag, par in (('f', 0), ('a', 1), ('b', 0), ('c', 1), ('d', 0)):
        p('L_rare_%s:' % tag)
        p('s_call_b64 s[%d:%d], L_fb_%d' % (S_RET, S_RET + 1, par))
        p('s_branch L_back_%s' % tag)
    p.extend(a2rare())
    p.extend(A.fallback(o, 0))
    p.extend(A.fallback(o, 1))
    probs = check_hazards(first + loop_ins + loop_ins + tail, 'loop') + check_hazards(p.ins, 'all')
    return p, probs

KD = '''
.amdhsa_kernel %s
  .amdhsa_next_free_vgpr %d
  .amdhsa_next_free_sgpr %d
  .amdhsa_accum_offset %d
  .amdhsa_group_segment_fixed_size 0
  .amdhsa_kernarg_size 120
  .amdhsa_user_sgpr_count 2
  .amdhsa_user_sgpr_kernarg_segment_ptr 1
  .amdhsa_system_sgpr_workgroup_id_x 1
  .amdhsa_float_denorm_mode_32 3
.end_amdhsa_kernel
'''

if __name__ == '__main__':
    import sys
    o = A.Opt()
    o.kgap = 1
    o.dma_gaps = [3, 7, 11, 15, 19, 23, 27, 31, 35, 39, 43, 47, 51, 55, 59, 63]
    o.stamps = 1; o.pf = 1; o.pfd = 4; o.pfmoe = 1; o.pf_kv_early = 0; o.late_dma = 0; o.qcvt = 1; o.fuse_k2 = 1; o.kdma_late = 0; o.one = 1; o.esend = 0; o.part_flags = ' sc1'
    out = sys.argv[1]
    for kv in sys.argv[2:]:
        k, v = kv.split('=')
        try: v = int(v, 0)
        except ValueError:
            if v.startswith('['): v = eval(v)
        setattr(o, k, v)
    p, probs = build_k1(o)
    for pr in probs[:20]: print(pr)
    print('hazards', len(probs), 'instrs', len(p.ins))
    hdr = '''; @launch kernel=k1_kernel grid=(256,1,1) block=(256,1,1) lds=163840
.amdgcn_target "amdgcn-amd-amdhsa--gfx950"
.text
.globl k1_kernel
.p2align 8
.type k1_kernel,@function
'''
    ftr = '.section .rodata,"a"\n.p2align 6' + KD % ('k1_kernel', 512, 102, 256)
    open(out, 'w').write(hdr + p.text() + ftr)
```

```python
from asmlib import *
from k1 import WS_CNT, WS_MOD, WS_R, WS_IDX, WS_ACT, WS_H2, WS_PART, xreduce
def vr(a, n=1): return 'v%d' % a if n == 1 else 'v[%d:%d]' % (a, a + n - 1)

def srd(p, s, ptr_lo, nbytes, off=None):
    if off is None:
        if s != ptr_lo:
            p('s_mov_b32 s%d, s%d' % (s, ptr_lo)); p('s_mov_b32 s%d, s%d' % (s + 1, ptr_lo + 1))
    else:
        p('s_add_u32 s%d, s%d, %s' % (s, ptr_lo, off)); p('s_addc_u32 s%d, s%d, 0' % (s + 1, ptr_lo + 1))
    p('s_mov_b32 s%d, %s' % (s + 2, nbytes)); p('s_mov_b32 s%d, 0x20000' % (s + 3))

def wave_reduce(p, r, t, op='v_add_f32'):
    for k in (1, 2, 4, 8):
        p('s_nop 1')
        p('%s_dpp v%d, v%d, v%d row_ror:%d row_mask:0xf bank_mask:0xf' % (op, r, r, r, k))
    p('s_nop 0')
    xreduce(p, r, t, op)

def wave_reduce_multi(p, regs, temps, op='v_add_f32'):
    for k in (1, 2, 4, 8):
        if len(regs) < 3: p('s_nop %d' % (2 - len(regs)))
        for r in regs:
            p('%s_dpp v%d, v%d, v%d row_ror:%d row_mask:0xf bank_mask:0xf' % (op, r, r, r, k))
    for sw in ('v_permlane16_swap_b32', 'v_permlane32_swap_b32'):
        p('s_nop 0')
        for r, t in zip(regs, temps): p('v_mov_b32 v%d, v%d' % (t, r))
        p('s_nop 1')
        for r, t in zip(regs, temps): p('%s v%d, v%d' % (sw, r, t))
        p('s_nop 1')
        for r, t in zip(regs, temps): p('%s v%d, v%d, v%d' % (op, r, r, t))

def build_k0():
    p = Prog()
    p('''
k0_kernel:
    s_cmp_ge_u32 s2, 42
    s_cbranch_scc1 L_end_k0
    s_load_dwordx4 s[4:7], s[0:1], 80
    s_load_dwordx2 s[24:25], s[0:1], 112
    v_and_b32 v1, 7, v0            ; cc
    v_lshrrev_b32 v2, 3, v0        ; kg 0..31
    s_waitcnt lgkmcnt(0)
''')
    srd(p, 8, 4, 896)
    srd(p, 12, 6, 448 * 5376)
    srd(p, 24, 24, 10752)
    p('''
    v_mul_u32_u24 v3, 5376, v2
    v_lshl_add_u32 v3, v1, 4, v3
    s_lshl_b32 s16, s2, 7
    v_add_u32 v3, s16, v3
    v_lshlrev_b32 v4, 1, v2        ; c offset
''')
    for i in range(14):
        p('buffer_load_ushort v%d, v4, s[8:11], 0 offen offset:%d' % (10 + i, 64 * i))
    p('s_mov_b32 s17, %d' % (32 * 5376))
    for i in range(14):
        p('buffer_load_dwordx4 %s, v3, s[12:15], 0 offen' % vr(32 + 4 * i, 4))
        if i < 13: p('v_add_u32 v3, s17, v3')
    p('s_waitcnt vmcnt(14)')
    for i in range(14):
        p('v_lshlrev_b32 v%d, 16, v%d' % (10 + i, 10 + i))
    for i in range(14):
        p('v_mul_f32 v%d, 0xbfb8aa3b, v%d' % (96 + i, 10 + i))
    for i in range(14):
        p('v_exp_f32 v%d, v%d' % (96 + i, 96 + i))
    for i in range(14):
        p('v_add_f32 v%d, 1.0, v%d' % (96 + i, 96 + i))
    for i in range(14):
        p('v_rcp_f32 v%d, v%d' % (96 + i, 96 + i))
    for i in range(14):
        p('v_mul_f32 v%d, v%d, v%d' % (10 + i, 10 + i, 96 + i))
    for i in range(14):
        p('v_cvt_pk_bf16_f32 v%d, v%d, 0' % (10 + i, 10 + i))
    for i in range(14):
        p('v_lshlrev_b32 v%d, 16, v%d' % (96 + i, 10 + i))
    for j in range(8): p('v_mov_b32 v%d, 0' % (112 + j))
    p('s_waitcnt vmcnt(0)')
    for i in range(14):
        for j in range(8):
            w = 32 + 4 * i + j // 2
            sel = (10 + i) if j % 2 == 0 else (96 + i)
            p('v_dot2_f32_bf16 v%d, v%d, v%d, v%d' % (112 + j, w, sel, 112 + j))
    p('s_nop 2')
    regs = [112 + j for j in range(8)]; temps = [120 + j for j in range(8)]
    for r in regs:
        p('v_add_f32_dpp v%d, v%d, v%d row_ror:8 row_mask:0xf bank_mask:0xf' % (r, r, r))
    for sw in ('v_permlane16_swap_b32', 'v_permlane32_swap_b32'):
        for r, t in zip(regs, temps): p('v_mov_b32 v%d, v%d' % (t, r))
        p('s_nop 1')
        for r, t in zip(regs, temps): p('%s v%d, v%d' % (sw, r, t))
        p('s_nop 1')
        for r, t in zip(regs, temps): p('v_add_f32 v%d, v%d, v%d' % (r, r, t))
    p('''
    v_lshrrev_b32 v5, 6, v0
    v_lshlrev_b32 v5, 8, v5
    v_lshl_add_u32 v5, v1, 5, v5
    ds_write_b128 v5, v[112:115]
    ds_write_b128 v5, v[116:119] offset:16
    s_waitcnt lgkmcnt(0)
    s_barrier
    v_cmp_gt_u32 vcc, 64, v0
    s_and_saveexec_b64 s[18:19], vcc
    s_cbranch_execz L_k0_done
    v_lshlrev_b32 v5, 2, v0
    ds_read_b32 v6, v5
    ds_read_b32 v7, v5 offset:256
    ds_read_b32 v8, v5 offset:512
    ds_read_b32 v9, v5 offset:768
    s_waitcnt lgkmcnt(0)
    v_add_f32 v6, v6, v7
    v_add_f32 v8, v8, v9
    v_add_f32 v6, v6, v8
    v_cvt_pk_bf16_f32 v6, v6, 0
    v_lshlrev_b32 v6, 16, v6
    s_mul_i32 s20, s2, 37
    s_lshr_b32 s20, s20, 8
    s_cmp_eq_u32 s20, 1
    s_cselect_b32 s21, 1, 0
    s_cmp_eq_u32 s20, 4
    s_cselect_b32 s21, 1, s21
    s_cmp_eq_u32 s21, 0
    s_cbranch_scc1 L_k0_store
    v_add_f32 v6, 1.0, v6
    v_cvt_pk_bf16_f32 v6, v6, 0
    v_lshlrev_b32 v6, 16, v6
L_k0_store:
    s_lshl_b32 s16, s2, 8
    v_add_u32 v5, s16, v5
    buffer_store_dword v6, v5, s[24:27], 0 offen
L_k0_done:
    s_mov_b64 exec, s[18:19]
    s_waitcnt vmcnt(0)
L_end_k0:
    s_endpgm
''')
    return p

PF_MOE = True
def build_k2():
    p = Prog()
    p('''
k2_kernel:
    s_cmp_ge_u32 s2, 256
    s_cbranch_scc1 L_end_k2
    s_load_dwordx2 s[4:5], s[0:1], 0
    s_load_dwordx2 s[6:7], s[0:1], 48
    s_load_dwordx2 s[28:29], s[0:1], 96
    s_load_dwordx2 s[24:25], s[0:1], 112
    s_load_dwordx4 s[44:47], s[0:1], 56
    s_load_dwordx2 s[48:49], s[0:1], 72
    v_and_b32 v1, 63, v0
    v_lshrrev_b32 v2, 6, v0
    s_nop 0
    v_readfirstlane_b32 s3, v2
    s_lshl_b32 s41, s2, 3
    s_lshl_b32 s42, s3, 1
    s_add_u32 s41, s41, s42
    s_mul_i32 s42, s41, 896
    s_waitcnt lgkmcnt(0)
''')
    srd(p, 8, 4, 2048 * 896)
    srd(p, 12, 6, 896)
    srd(p, 16, 24, 8 * 2048 * 896, str(WS_PART))
    srd(p, 20, 24, 2048 * 896, str(WS_H2))
    srd(p, 32, 24, 10752)
    srd(p, 36, 24, 8192, str(WS_R))
    srd(p, 28, 28, 2048 * 896)
    p('''
    v_lshlrev_b32 v3, 4, v1            ; lane*16
    v_lshlrev_b32 v4, 5, v1
    v_mov_b32 v5, 0x40000000
    v_cmp_gt_u32 vcc, 56, v1
    s_nop 1
    v_cndmask_b32 v3, v5, v3, vcc
    v_cndmask_b32 v4, v5, v4, vcc
    v_cndmask_b32 v6, 0, 1.0, vcc
    v_add_u32 v7, s42, v3
''')
    for rr in range(2):
        for g in range(8):
            p('s_mov_b32 s40, %d' % (g * 2048 * 896 + rr * 896) if not (g == 0 and rr == 0) else 's_mov_b32 s40, 0')
            p('buffer_load_dwordx4 %s, v7, s[16:19], s40 offen' % vr(16 + rr * 40 + 4 * g, 4))
        p('buffer_load_dwordx4 %s, v7, s[8:11], 0 offen offset:%d' % (vr(16 + rr * 40 + 32, 4), rr * 896))
    for k, seg in enumerate((2, 3, 4, 5)):
        p('s_mov_b32 s40, %d' % (seg * 1792))
        p('buffer_load_dwordx4 %s, v4, s[32:35], s40 offen' % vr(96 + 8 * k, 4))
        p('buffer_load_dwordx4 %s, v4, s[32:35], s40 offen offset:16' % vr(100 + 8 * k, 4))
    p('buffer_load_dwordx4 v[128:131], v3, s[12:15], 0 offen')
    p('v_mov_b32 v8, 0x00003f80')
    p('v_mov_b32 v9, 0x3f800000')
    ACC = [136, 152]
    for rr in range(2):
        for j in range(8): p('v_mov_b32 v%d, 0' % (ACC[rr] + j))
    for rr in range(2):
        p('s_waitcnt vmcnt(%d)' % (9 + 1 + (9 if rr == 0 else 0)))
        for g in range(8):
            for j in range(8):
                p('v_dot2_f32_bf16 v%d, v%d, v%d, v%d' % (ACC[rr] + j, 16 + rr * 40 + 4 * g + j // 2, 8 + j % 2, ACC[rr] + j))
    p('s_waitcnt vmcnt(0)')
    p(';ST 0')
    if PF_MOE:
        p('''
    s_and_b32 s50, s2, 7               ; x
    s_lshr_b32 s51, s2, 3              ; i
    v_min_u32 v210, 55, v1
    s_cmp_ge_u32 s3, 2
    s_cbranch_scc1 L_k2_pfdown
    s_mul_i32 s52, s50, 448
    s_lshr_b32 s52, s52, 7
    s_mul_i32 s53, s51, 14
    v_lshrrev_b32 v211, 2, v210
    v_add_u32 v211, s53, v211
    v_mul_u32_u24 v211, 3584, v211
    v_and_b32 v212, 3, v210
    v_add_u32 v212, s52, v212
    v_lshl_add_u32 v211, v212, 7, v211
    s_cmp_eq_u32 s3, 0
    s_cselect_b32 s54, s44, s46
    s_cselect_b32 s55, s45, s47
    global_load_dword v213, v211, s[54:55]
    s_branch L_k2_pfdone
L_k2_pfdown:
    s_lshl_b32 s52, s50, 7             ; x<4: byte 128x
    s_mul_i32 s53, s50, 96
    s_add_u32 s53, s53, 128            ; x>=4: 512 + 96(x-4) = 96x + 128
    s_cmp_lt_u32 s50, 4
    s_cselect_b32 s52, s52, s53
    s_and_b32 s53, s3, 1
    s_mul_i32 s53, s53, 95
    s_add_u32 s52, s52, s53
    s_and_b32 s52, s52, 0xffffff80
    s_mul_i32 s53, s51, 56
    v_add_u32 v211, s53, v210
    v_mul_u32_u24 v211, 896, v211
    v_add_u32 v211, s52, v211
    global_load_dword v213, v211, s[48:49]
L_k2_pfdone:
''')
    X1 = [168, 184]
    for rr in range(2):
        xr = 16 + rr * 40 + 32
        for j in range(8):
            p('v_mul_f32 v%d, v%d, v%d' % (ACC[rr] + j, ACC[rr] + j, 96 + j))
        for j in range(8):
            p('v_dot2_f32_bf16 v%d, v%d, v%d, v%d' % (ACC[rr] + j, xr + j // 2, 8 + j % 2, ACC[rr] + j))
    p('s_nop 2')
    for rr in range(2):
        for j in range(0, 8, 2):
            p('v_cvt_pk_bf16_f32 v%d, v%d, v%d' % (200 + rr * 4 + j // 2, ACC[rr] + j, ACC[rr] + j + 1))
    for rr in range(2):
        for j in range(8):
            if j % 2 == 0: p('v_lshlrev_b32 v%d, 16, v%d' % (X1[rr] + j, 200 + rr * 4 + j // 2))
            else: p('v_and_b32 v%d, 0xffff0000, v%d' % (X1[rr] + j, 200 + rr * 4 + j // 2))
    SUM = [10, 11]
    for rr in range(2):
        p('v_add_f32 v%d, v%d, v%d' % (SUM[rr], X1[rr], X1[rr] + 1))
        for j in range(2, 8): p('v_add_f32 v%d, v%d, v%d' % (SUM[rr], SUM[rr], X1[rr] + j))
    wave_reduce_multi(p, SUM, [12, 13])
    XC = [16, 32]
    for rr in range(2):
        p('v_mul_f32 v%d, 0xbb124925, v%d' % (SUM[rr], SUM[rr]))
    for rr in range(2):
        for j in range(8):
            p('v_add_f32 v%d, v%d, v%d' % (XC[rr] + j, X1[rr] + j, SUM[rr]))
    VAR = [12, 13]
    for rr in range(2):
        p('v_mul_f32 v%d, v%d, v%d' % (VAR[rr], XC[rr], XC[rr]))
        for j in range(1, 8): p('v_fmac_f32 v%d, v%d, v%d' % (VAR[rr], XC[rr] + j, XC[rr] + j))
    for rr in range(2):
        p('v_mul_f32 v%d, v%d, v6' % (VAR[rr], VAR[rr]))
    wave_reduce_multi(p, VAR, [14, 15])
    for rr in range(2):
        p('v_mov_b32 v%d, 0x3727c5ac' % (14 + rr))
        p('v_fmac_f32 v%d, 0x3b124925, v%d' % (14 + rr, VAR[rr]))
    for rr in range(2):
        p('v_rsq_f32 v%d, v%d' % (VAR[rr], 14 + rr))
    p('s_nop 0')
    H = [48, 64]
    for rr in range(2):
        for j in range(8):
            p('v_mul_f32 v%d, v%d, v%d' % (XC[rr] + j, XC[rr] + j, VAR[rr]))
        for j in range(8):
            p('v_fma_f32 v%d, v%d, v%d, v%d' % (XC[rr] + j, XC[rr] + j, 112 + j, 104 + j))
        for j in range(0, 8, 2):
            p('v_cvt_pk_bf16_f32 v%d, v%d, v%d' % (H[rr] + j // 2, XC[rr] + j, XC[rr] + j + 1))
    p(';ST 1')
    for rr in range(2):
        p('buffer_store_dwordx4 %s, v7, s[20:23], 0 offen offset:%d' % (vr(H[rr], 4), rr * 896))
    RR = [14, 15]
    for rr in range(2):
        p('v_mov_b32 v%d, 0' % RR[rr])
    for j in range(4):
        for rr in range(2):
            p('v_dot2_f32_bf16 v%d, v%d, v%d, v%d' % (RR[rr], H[rr] + j, 128 + j, RR[rr]))
    for rr in range(2):
        for j in range(8):
            if j % 2 == 0: p('v_lshlrev_b32 v%d, 16, v%d' % (XC[rr] + j, H[rr] + j // 2))
            else: p('v_and_b32 v%d, 0xffff0000, v%d' % (XC[rr] + j, H[rr] + j // 2))
        for j in range(8):
            p('v_fma_f32 v%d, v%d, v%d, v%d' % (XC[rr] + j, XC[rr] + j, 120 + j, X1[rr] + j))
        for j in range(0, 8, 2):
            p('v_cvt_pk_bf16_f32 v%d, v%d, v%d' % (80 + rr * 4 + j // 2, XC[rr] + j, XC[rr] + j + 1))
        p('buffer_store_dwordx4 %s, v7, s[28:31], 0 offen offset:%d' % (vr(80 + rr * 4, 4), rr * 896))
    wave_reduce_multi(p, RR, [12, 13])
    p('''
    v_cvt_pk_bf16_f32 v14, v14, 0
    v_cvt_pk_bf16_f32 v15, v15, 0
    v_lshlrev_b32 v14, 16, v14
    v_lshlrev_b32 v15, 16, v15
    v_cmp_eq_u32 vcc, 1, v1
    s_nop 1
    v_cndmask_b32 v14, v14, v15, vcc
    v_add_u32 v2, s41, v1
    v_lshlrev_b32 v2, 2, v2
    v_cmp_gt_u32 vcc, 2, v1
    s_nop 1
    v_cndmask_b32 v2, v5, v2, vcc
    buffer_store_dword v14, v2, s[36:39], 0 offen
    s_waitcnt vmcnt(0)
L_end_k2:
    s_endpgm
''')
    return p

def sort8(p, K, T):
    net = [(0,1),(2,3),(4,5),(6,7),(0,2),(1,3),(4,6),(5,7),(1,2),(5,6),(0,4),(3,7),(1,5),(2,6),(1,4),(3,6),(2,4),(3,5),(3,4)]
    for a_, b_ in net:
        p('v_max_u32 v%d, v%d, v%d' % (T, K + a_, K + b_))
        p('v_min_u32 v%d, v%d, v%d' % (K + b_, K + a_, K + b_))
        p('v_mov_b32 v%d, v%d' % (K + a_, T))

def row_rounds(p, K, T, RES, MASK):
    pend = []
    for rnd in range(8):
        p('v_mov_b32 v%d, v%d' % (T, K))
        for k in (1, 2, 4, 8):
            fill = pend[:2]; pend = pend[2:]
            for x in fill: p(x)
            if len(fill) < 2: p('s_nop %d' % (1 - len(fill)))
            p('v_max_u32_dpp v%d, v%d, v%d row_ror:%d row_mask:0xf bank_mask:0xf' % (T, T, T, k))
        for x in pend: p(x)
        pend = []
        p('v_cndmask_b32_e64 v%d, v%d, v%d, s[%d:%d]' % (RES, RES, T, MASK + 2 * rnd, MASK + 2 * rnd + 1))
        if rnd < 7:
            p('v_cmp_eq_u32 vcc, v%d, v%d' % (K, T))
            p('s_nop 1')
            sh = ['v_cndmask_b32 v%d, v%d, v%d, vcc' % (K + j, K + j, K + j + 1) for j in range(7 - rnd)]
            p(sh[0])
            pend = sh[1:]

TOP8_MASK = 64
def top8(p, KEY, T):
    RES = T + 1
    p('v_and_b32 v%d, 7, v1' % T)
    for i in range(8):
        p('v_cmp_eq_u32 s[%d:%d], %d, v%d' % (TOP8_MASK + 2 * i, TOP8_MASK + 1 + 2 * i, i, T))
    sort8(p, KEY, T)
    p('v_mov_b32 v%d, 0' % RES)
    row_rounds(p, KEY, T, RES, TOP8_MASK)
    p('v_lshrrev_b32 v%d, 4, v0' % T)
    p('v_lshlrev_b32 v%d, 5, v%d' % (T, T))
    p('v_and_b32 v%d, 7, v1' % (T + 2))
    p('v_lshl_add_u32 v%d, v%d, 2, v%d' % (T, T + 2, T))
    p('ds_write_b32 v%d, v%d offset:%d' % (T, RES, TOPK_LDS))
    p('s_waitcnt lgkmcnt(0)')
    p('s_barrier')
    p('v_and_b32 v%d, 15, v1' % T)
    p('v_lshlrev_b32 v%d, 5, v%d' % (T, T))
    p('ds_read_b128 %s, v%d offset:%d' % (vr(KEY, 4), T, TOPK_LDS))
    p('ds_read_b128 %s, v%d offset:%d' % (vr(KEY + 4, 4), T, TOPK_LDS + 16))
    p('v_mov_b32 v%d, 0' % RES)
    p('s_waitcnt lgkmcnt(0)')
    row_rounds(p, KEY, T, RES, TOP8_MASK)

TOPK_LDS = 57344

def wstage(p, srd_, voff, nsteps, lds_sgpr):
    p('s_mov_b32 s44, 0')
    for i in range(nsteps):
        p('s_add_u32 m0, s%d, %d' % (lds_sgpr, i * 1024))
        p('s_nop 0')
        p('buffer_load_dwordx4 v%d, s[%d:%d], s44 offen lds' % (voff, srd_, srd_ + 3))
        if i + 1 < nsteps: p('s_add_u32 s44, s44, s45')

def tr_frags(p, addr, dst, nsteps):
    for i in range(nsteps):
        p('ds_read_b64_tr_b16 %s, v%d offset:%d' % (vr(dst + 4 * i, 2), addr, i * 1024))
        p('ds_read_b64_tr_b16 %s, v%d offset:%d' % (vr(dst + 4 * i + 2, 2), addr, i * 1024 + 128))

def build_k3():
    p = Prog()
    p('''
k3_kernel:
    s_cmp_ge_u32 s2, 56
    s_cbranch_scc1 L_end_k3
    s_load_dwordx4 s[4:7], s[0:1], 56
    s_load_dwordx2 s[24:25], s[0:1], 112
    v_and_b32 v1, 63, v0
    v_lshrrev_b32 v2, 6, v0
    s_nop 0
    v_readfirstlane_b32 s3, v2
    s_waitcnt lgkmcnt(0)
    s_cmp_ge_u32 s3, 2
    s_cselect_b32 s4, s6, s4
    s_cselect_b32 s5, s7, s5
''')
    srd(p, 8, 4, 448 * 3584)
    srd(p, 12, 24, 8192, str(WS_R))
    srd(p, 16, 24, 2048 * 896, str(WS_H2))
    srd(p, 20, 24, 28672, str(WS_ACT))
    srd(p, 28, 24, 64, str(WS_IDX))
    p('''
    s_and_b32 s40, s2, 7
    s_mul_i32 s40, s40, 7
    s_lshr_b32 s41, s2, 3
    s_add_u32 s40, s40, s41           ; column block = (wg&7)*7 + (wg>>3): neighbours share an XCD (speed only)
    s_lshl_b32 s40, s40, 6
    s_and_b32 s41, s3, 1
    s_lshl_b32 s41, s41, 5
    s_add_u32 s40, s40, s41
    v_lshrrev_b32 v3, 1, v1
    v_mul_u32_u24 v3, 3584, v3
    v_and_b32 v4, 1, v1
    v_lshl_add_u32 v3, v4, 4, v3
    v_add_u32 v3, s40, v3
    s_mov_b32 s45, %d
    s_mul_i32 s46, s3, 14336
''' % (32 * 3584))
    p('v_lshlrev_b32 v5, 5, v0')
    p('buffer_load_dwordx4 v[8:11], v5, s[12:15], 0 offen')
    p('buffer_load_dwordx4 v[12:15], v5, s[12:15], 0 offen offset:16')
    wstage(p, 8, 3, 14, 46)
    p('v_lshlrev_b32 v6, 3, v0')
    p('v_sub_u32 v6, 2047, v6')
    p('s_waitcnt vmcnt(14)')
    p(';ST 0')
    for j in range(8):
        k = 8 + j
        p('v_ashrrev_i32 v16, 31, v%d' % k)
        p('v_or_b32 v16, 0x80000000, v16')
        p('v_xor_b32 v%d, v%d, v16' % (k, k))
        p('v_and_b32 v%d, 0xffff0000, v%d' % (k, k))
        p('v_subrev_u32 v17, %d, v6' % j)
        p('v_or_b32 v%d, v%d, v17' % (k, k))
    top8(p, 8, 16)
    p(';ST 1')
    p('v_and_b32 v20, 0xffff, v17')
    p('v_sub_u32 v20, 2047, v20')
    p('''
    v_mul_u32_u24 v22, 896, v20
    v_lshrrev_b32 v23, 4, v1
    v_lshl_add_u32 v22, v23, 4, v22
''')
    for i in range(14):
        p('buffer_load_dwordx4 %s, v22, s[16:19], 0 offen offset:%d' % (vr(32 + 4 * i, 4), 64 * i))
    p('''
    s_or_b32 s47, s2, s3
    s_cmp_lg_u32 s47, 0
    s_cbranch_scc1 L_k3_nopub
    v_mov_b32 v24, v17
    v_and_b32 v24, 0xffff0000, v24
    v_ashrrev_i32 v25, 31, v24
    v_not_b32 v25, v25
    v_or_b32 v25, 0x80000000, v25
    v_xor_b32 v24, v24, v25
    v_and_b32 v24, 0xffff0000, v24
    v_mul_f32 v25, 0xbfb8aa3b, v24
    v_exp_f32 v25, v25
    s_nop 0
    v_add_f32 v25, 1.0, v25
    v_rcp_f32 v25, v25
    s_nop 0
    v_cvt_pk_bf16_f32 v25, v25, 0
    v_lshlrev_b32 v25, 16, v25
    v_lshlrev_b32 v26, 2, v1
    v_cmp_gt_u32 vcc, 8, v1
    v_mov_b32 v27, 0x40000000
    s_nop 0
    v_cndmask_b32 v26, v27, v26, vcc
    buffer_store_dword v20, v26, s[28:31], 0 offen
    buffer_store_dword v25, v26, s[28:31], 0 offen offset:32
L_k3_nopub:
''')
    p('''
    v_lshrrev_b32 v28, 4, v1            ; kq
    v_lshlrev_b32 v28, 3, v28           ; 8 kq
    v_bfe_u32 v29, v1, 2, 2             ; r
    v_add_u32 v28, v28, v29
    v_lshlrev_b32 v28, 5, v28           ; row*32
    v_and_b32 v29, 3, v1
    v_lshl_add_u32 v28, v29, 3, v28
    v_add_u32 v28, s46, v28
    s_waitcnt vmcnt(14)
''')
    p(';ST 2')
    tr_frags(p, 28, 96, 14)
    p('s_waitcnt vmcnt(0) lgkmcnt(0)')
    p(';ST 3')
    for i in range(14):
        c = '0' if i == 0 else 'v[160:163]'
        p('v_mfma_f32_16x16x32_bf16 v[160:163], %s, %s, %s' % (vr(32 + 4 * i, 4), vr(96 + 4 * i, 4), c))
    p('s_nop 7')
    p('v_cvt_pk_bf16_f32 v164, v160, v161')
    p('v_cvt_pk_bf16_f32 v165, v162, v163')
    p('''
    v_lshlrev_b32 v160, 16, v164
    v_and_b32 v161, 0xffff0000, v164
    v_lshlrev_b32 v162, 16, v165
    v_and_b32 v163, 0xffff0000, v165
    s_cmp_ge_u32 s3, 2
    s_cbranch_scc1 L_k3_up
''')
    for r in range(4): p('v_mul_f32 v%d, 0xbfb8aa3b, v%d' % (166 + r, 160 + r))
    for r in range(4): p('v_exp_f32 v%d, v%d' % (166 + r, 166 + r))
    for r in range(4): p('v_add_f32 v%d, 1.0, v%d' % (166 + r, 166 + r))
    for r in range(4): p('v_rcp_f32 v%d, v%d' % (166 + r, 166 + r))
    p('s_nop 0')
    for r in range(4): p('v_mul_f32 v%d, v%d, v%d' % (160 + r, 160 + r, 166 + r))
    p('v_cvt_pk_bf16_f32 v164, v160, v161')
    p('v_cvt_pk_bf16_f32 v165, v162, v163')
    p('''
    v_lshlrev_b32 v160, 16, v164
    v_and_b32 v161, 0xffff0000, v164
    v_lshlrev_b32 v162, 16, v165
    v_and_b32 v163, 0xffff0000, v165
L_k3_up:
    s_and_b32 s41, s3, 1
    s_lshl_b32 s41, s41, 10
    v_lshlrev_b32 v30, 4, v1
    v_add_u32 v30, s41, v30
    v_add_u32 v30, %d, v30
    s_cmp_ge_u32 s3, 2
    s_cbranch_scc0 L_k3_gate_wait
    ds_write_b128 v30, v[160:163]
L_k3_gate_wait:
    s_waitcnt lgkmcnt(0)
    s_barrier
    s_cmp_ge_u32 s3, 2
    s_cbranch_scc1 L_end_k3
    ds_read_b128 v[164:167], v30
    s_waitcnt lgkmcnt(0)
''' % (TOPK_LDS + 256))
    for r in range(4): p('v_mul_f32 v%d, v%d, v%d' % (160 + r, 160 + r, 164 + r))
    p('''
    v_cvt_pk_bf16_f32 v160, v160, v161
    v_cvt_pk_bf16_f32 v162, v162, v163
    v_lshrrev_b32 v23, 4, v1
    v_mul_u32_u24 v24, %d, v23          ; 4 rows * 3584 B
    v_and_b32 v25, 15, v1
    v_lshl_add_u32 v24, v25, 1, v24
    v_add_u32 v24, s40, v24
    v_mov_b32 v27, 0x40000000
    v_cmp_gt_u32 vcc, 32, v1
    s_nop 1
    v_cndmask_b32 v24, v27, v24, vcc
    buffer_store_short v160, v24, s[20:23], 0 offen
    buffer_store_short_d16_hi v160, v24, s[20:23], 0 offen offset:3584
    s_mov_b32 s41, 7168
    buffer_store_short v162, v24, s[20:23], s41 offen
    buffer_store_short_d16_hi v162, v24, s[20:23], s41 offen offset:3584
    s_waitcnt vmcnt(0)
L_end_k3:
    s_endpgm
''' % (4 * 3584))
    return p

def build_k4():
    p = Prog()
    p('''
k4_kernel:
    s_cmp_ge_u32 s2, 28
    s_cbranch_scc1 L_end_k4
    s_load_dwordx2 s[4:5], s[0:1], 72
    s_load_dwordx2 s[28:29], s[0:1], 96
    s_load_dwordx2 s[24:25], s[0:1], 112
    v_and_b32 v1, 63, v0
    v_lshrrev_b32 v2, 6, v0
    s_nop 0
    v_readfirstlane_b32 s3, v2
    s_waitcnt lgkmcnt(0)
''')
    p('s_mul_i32 s40, s3, %d' % (448 * 896))
    p('s_add_u32 s4, s4, s40'); p('s_addc_u32 s5, s5, 0')
    srd(p, 8, 4, 448 * 896)
    srd(p, 12, 24, 10752)
    srd(p, 16, 24, 64, str(WS_IDX))
    srd(p, 20, 24, 28672, str(WS_ACT))
    srd(p, 28, 28, 2048 * 896)
    p('''
    s_and_b32 s47, s2, 7
    s_lshr_b32 s41, s2, 3
    s_lshl_b32 s42, s47, 2
    s_mul_i32 s43, s47, 3
    s_add_u32 s43, s43, 4             ; 16 + (x-4)*3 = 3x + 4
    s_cmp_lt_u32 s47, 4
    s_cselect_b32 s47, s42, s43
    s_add_u32 s47, s47, s41           ; column block
    s_lshl_b32 s40, s47, 5              ; column byte offset
    v_lshrrev_b32 v3, 1, v1
    v_mul_u32_u24 v3, 896, v3
    v_and_b32 v4, 1, v1
    v_lshl_add_u32 v3, v4, 4, v3
    v_add_u32 v3, s40, v3
    s_mov_b32 s45, %d
    s_mul_i32 s46, s3, 14336
''' % (32 * 896))
    wstage(p, 8, 3, 14, 46)
    p(';ST 0')
    p('''
    v_and_b32 v4, 7, v1
    v_mul_u32_u24 v22, 3584, v4
    v_lshrrev_b32 v23, 4, v1
    v_lshl_add_u32 v22, v23, 4, v22
    s_mul_i32 s41, s3, 896
    v_add_u32 v22, s41, v22
''')
    for i in range(14):
        p('buffer_load_dwordx4 %s, v22, s[20:23], 0 offen offset:%d' % (vr(32 + 4 * i, 4), 64 * i))
    p('''
    v_lshrrev_b32 v23, 4, v1
    v_and_b32 v23, 1, v23
    v_lshlrev_b32 v24, 4, v23
    buffer_load_dwordx4 v[8:11], v24, s[16:19], 0 offen            ; idx[4kq..]
    buffer_load_dwordx4 v[12:15], v24, s[16:19], 0 offen offset:32 ; sig[4kq..]
    v_and_b32 v25, 15, v1
    v_lshlrev_b32 v26, 2, v25
    s_lshl_b32 s41, s47, 6
    v_add_u32 v26, s41, v26
    s_mov_b32 s42, 8960
    buffer_load_dword v16, v26, s[12:15], s42 offen                ; gb[col]
    v_lshrrev_b32 v28, 4, v1
    v_lshlrev_b32 v28, 3, v28
    v_bfe_u32 v29, v1, 2, 2
    v_add_u32 v28, v28, v29
    v_lshlrev_b32 v28, 5, v28
    v_and_b32 v29, 3, v1
    v_lshl_add_u32 v28, v29, 3, v28
    v_add_u32 v28, s46, v28
    s_waitcnt vmcnt(0)
''')
    p(';ST 1')
    for r in range(4):
        p('v_mul_u32_u24 v%d, 896, v%d' % (17 + r, 8 + r))
    p('v_lshlrev_b32 v25, 1, v25')
    p('v_add_u32 v25, s40, v25')
    for r in range(4):
        p('v_add_u32 v%d, v%d, v25' % (17 + r, 17 + r))
    for r in range(4):
        p('buffer_load_ushort v%d, v%d, s[28:31], 0 offen' % (100 + r, 17 + r))
    tr_frags(p, 28, 104, 14)
    p('s_waitcnt lgkmcnt(0)')
    p(';ST 2')
    for i in range(14):
        c = '0' if i == 0 else 'v[160:163]'
        p('v_mfma_f32_16x16x32_bf16 v[160:163], %s, %s, %s' % (vr(32 + 4 * i, 4), vr(104 + 4 * i, 4), c))
    p('s_nop 7')
    p('''
    v_lshlrev_b32 v30, 4, v1
    s_lshl_b32 s41, s3, 10
    v_add_u32 v30, s41, v30
    ds_write_b128 v30, v[160:163] offset:57344
    s_waitcnt lgkmcnt(0)
    s_barrier
    s_cmp_lg_u32 s3, 0
    s_cbranch_scc1 L_end_k4
    ds_read_b128 v[164:167], v30 offset:58368
    ds_read_b128 v[168:171], v30 offset:59392
    ds_read_b128 v[172:175], v30 offset:60416
    s_waitcnt vmcnt(0) lgkmcnt(0)
''')
    for r in range(4):
        p('v_add_f32 v%d, v%d, v%d' % (160 + r, 160 + r, 164 + r))
        p('v_add_f32 v%d, v%d, v%d' % (168 + r, 168 + r, 172 + r))
    for r in range(4):
        p('v_add_f32 v%d, v%d, v%d' % (160 + r, 160 + r, 168 + r))
    def rnd(a):
        p('v_cvt_pk_bf16_f32 v164, v%d, v%d' % (a, a + 1))
        p('v_cvt_pk_bf16_f32 v165, v%d, v%d' % (a + 2, a + 3))
        p('v_lshlrev_b32 v%d, 16, v164' % a); p('v_and_b32 v%d, 0xffff0000, v164' % (a + 1))
        p('v_lshlrev_b32 v%d, 16, v165' % (a + 2)); p('v_and_b32 v%d, 0xffff0000, v165' % (a + 3))
    rnd(160)
    for r in range(4): p('v_mul_f32 v%d, v%d, v%d' % (160 + r, 160 + r, 12 + r))
    rnd(160)
    for r in range(4):
        p('v_lshlrev_b32 v%d, 16, v%d' % (100 + r, 100 + r))
        p('v_fma_f32 v%d, v%d, v16, v%d' % (160 + r, 160 + r, 100 + r))
    p('v_cvt_pk_bf16_f32 v164, v160, v161')
    p('v_cvt_pk_bf16_f32 v165, v162, v163')
    p('''
    v_mov_b32 v27, 0x40000000
    v_cmp_gt_u32 vcc, 32, v1
    s_nop 1
''')
    for r in range(4): p('v_cndmask_b32 v%d, v27, v%d, vcc' % (17 + r, 17 + r))
    p('''
    buffer_store_short v164, v17, s[28:31], 0 offen
    buffer_store_short_d16_hi v164, v18, s[28:31], 0 offen
    buffer_store_short v165, v19, s[28:31], 0 offen
    buffer_store_short_d16_hi v165, v20, s[28:31], 0 offen
    s_waitcnt vmcnt(0)
L_end_k4:
    s_endpgm
''')
    return p


def keys_and_top8(p):
    top8(p, 8, 16)

K34_FLAGS = False
K34_DIRECT = False
K34_SENT = True
K34_ANY = False
K34_PSLEEP = 8
K34_SLEEP = 4
def g_main(p, emb):
    keys_and_top8(p)
    p(';ST 1')
    p("""
    v_and_b32 v20, 0xffff, v17
    v_sub_u32 v20, 2047, v20
    v_mul_u32_u24 v22, 896, v20
    v_lshrrev_b32 v23, 4, v1
    v_lshl_add_u32 v22, v23, 4, v22
""")
    for i in range(14):
        p('buffer_load_dwordx4 %s, v22, s[16:19], 0 offen offset:%d%s' % (vr(32 + 4 * i, 4), 64 * i, ' sc1' if emb else ''))
    p("""
    v_lshrrev_b32 v28, 4, v1            ; kq
    v_lshlrev_b32 v28, 3, v28           ; 8 kq
    v_bfe_u32 v29, v1, 2, 2             ; r
    v_add_u32 v28, v28, v29
    v_lshlrev_b32 v28, 5, v28           ; row*32
    v_and_b32 v29, 3, v1
    v_lshl_add_u32 v28, v29, 3, v28
    v_add_u32 v28, s46, v28
    s_waitcnt vmcnt(14)
""")
    tr_frags(p, 28, 96, 14)
    p('s_waitcnt vmcnt(0) lgkmcnt(0)')
    p(';ST 2')
    for i in range(14):
        c = '0' if i == 0 else 'v[160:163]'
        p('v_mfma_f32_16x16x32_bf16 v[160:163], %s, %s, %s' % (vr(32 + 4 * i, 4), vr(96 + 4 * i, 4), c))
    p('s_nop 7')
    p("""
    v_cvt_pk_bf16_f32 v164, v160, v161
    v_cvt_pk_bf16_f32 v165, v162, v163
    v_lshlrev_b32 v160, 16, v164
    v_and_b32 v161, 0xffff0000, v164
    v_lshlrev_b32 v162, 16, v165
    v_and_b32 v163, 0xffff0000, v165
    s_and_b32 s41, s3, 1
    s_lshl_b32 s41, s41, 10
    v_lshlrev_b32 v30, 4, v1
    v_add_u32 v30, s41, v30
    v_add_u32 v30, %d, v30
    s_cmp_ge_u32 s3, 2
    s_cbranch_scc0 L_k34_gate
    ds_write_b128 v30, v[160:163]
    s_waitcnt lgkmcnt(0)
    s_barrier
    %s
    s_branch L_st_end_k34
L_k34_gate:
""" % (TOPK_LDS + 512, 's_nop 0' if K34_SENT else 's_barrier'))
    for r in range(4): p('v_mul_f32 v%d, 0xbfb8aa3b, v%d' % (166 + r, 160 + r))
    for r in range(4): p('v_exp_f32 v%d, v%d' % (166 + r, 166 + r))
    for r in range(4): p('v_add_f32 v%d, 1.0, v%d' % (166 + r, 166 + r))
    for r in range(4): p('v_rcp_f32 v%d, v%d' % (166 + r, 166 + r))
    p('s_nop 0')
    for r in range(4): p('v_mul_f32 v%d, v%d, v%d' % (160 + r, 160 + r, 166 + r))
    p("""
    v_cvt_pk_bf16_f32 v164, v160, v161
    v_cvt_pk_bf16_f32 v165, v162, v163
    v_lshlrev_b32 v160, 16, v164
    v_and_b32 v161, 0xffff0000, v164
    v_lshlrev_b32 v162, 16, v165
    v_and_b32 v163, 0xffff0000, v165
    s_waitcnt lgkmcnt(0)
    s_barrier
    ds_read_b128 v[164:167], v30
    s_waitcnt lgkmcnt(0)
""")
    for r in range(4): p('v_mul_f32 v%d, v%d, v%d' % (160 + r, 160 + r, 164 + r))
    for r in range(4): p('v_cvt_pk_bf16_f32 v%d, v%d, 0' % (160 + r, 160 + r))
    p('s_nop 1')
    for r in range(4): p('v_mov_b32_dpp v%d, v%d quad_perm:[1,0,3,2] row_mask:0xf bank_mask:0xf' % (164 + r, 160 + r))
    for r in range(4): p('v_lshl_or_b32 v%d, v%d, 16, v%d' % (160 + r, 164 + r, 160 + r))
    if K34_SENT:
        p('v_mov_b32 v168, 0x7fff7fff')
        for r in range(4):
            p('v_cmp_eq_u32 vcc, -1, v%d' % (160 + r))
            p('s_nop 1')
            p('v_cndmask_b32 v%d, v%d, v168, vcc' % (160 + r, 160 + r))
    p("""
    v_lshrrev_b32 v23, 4, v1
    v_mul_u32_u24 v24, %d, v23          ; 4 rows * 3584 B
    v_and_b32 v25, 15, v1
    v_lshl_add_u32 v24, v25, 1, v24
    v_add_u32 v24, s40, v24
    v_mov_b32 v27, 0x40000000
    v_and_b32 v25, 0x21, v1             ; lanes >= 32 or odd lanes do not store
    v_cmp_eq_u32 vcc, 0, v25
    s_mov_b32 s41, 7168
    s_nop 0
    v_cndmask_b32 v24, v27, v24, vcc
    buffer_store_dword v160, v24, s[20:23], 0 offen sc1
    buffer_store_dword v161, v24, s[20:23], 0 offen offset:3584 sc1
    buffer_store_dword v162, v24, s[20:23], s41 offen sc1
    buffer_store_dword v163, v24, s[20:23], s41 offen offset:3584 sc1
    ;SENTEXIT
    s_waitcnt vmcnt(0)
    s_barrier
    s_cmp_lg_u32 s3, 0
    s_cbranch_scc1 L_st_end_k34
    ;FLAGSIG
    s_branch L_st_end_k34
""" % (4 * 3584))
    if K34_SENT:
        i0 = [k for k, i in enumerate(p.ins) if i.text.startswith(';SENTEXIT')][0]
        p.ins[i0:i0 + 1] = [I('s_branch L_st_end_k34')]
    idx = [k for k, i in enumerate(p.ins) if i.text.startswith(';FLAGSIG')][0]
    sig = """
    v_mov_b32 v24, 0
    v_mov_b32 v25, 1
    v_cmp_eq_u32 vcc, 0, v1
    s_and_saveexec_b64 s[42:43], vcc
    buffer_atomic_add v25, v24, s[56:59], 0 offen sc0 sc1
    s_waitcnt vmcnt(0)
    v_readfirstlane_b32 s41, v25
    s_cmp_eq_u32 s41, 55
    s_cbranch_scc0 L_k34_notlast
    v_mov_b32 v25, 1
    buffer_store_dword v25, v24, s[56:59], 0 offen offset:128 sc1
L_k34_notlast:
    s_mov_b64 exec, s[42:43]
"""
    if K34_DIRECT:
        sig = """
    v_mov_b32 v24, 0
    v_mov_b32 v25, 1
    v_cmp_eq_u32 vcc, 0, v1
    s_and_saveexec_b64 s[42:43], vcc
    buffer_atomic_add v25, v24, s[56:59], 0 offen sc1
    s_mov_b64 exec, s[42:43]
"""
    t = Prog(); t(sig)
    p.ins[idx:idx + 1] = t.ins

def d_main(p, emb):
    keys_and_top8(p)
    p(';ST 0')
    p("""
    v_lshrrev_b32 v23, 4, v1
    v_and_b32 v23, 1, v23
    v_lshlrev_b32 v24, 4, v23
""")
    for r in range(4):
        p('v_add_u32 v21, %d, v24' % (4 * r))
        p('ds_bpermute_b32 v%d, v21, v17' % (8 + r))
    p('s_waitcnt lgkmcnt(0)')
    for r in range(4):
        k = 8 + r
        p('v_and_b32 v%d, 0xffff, v%d' % (17 + r if r else 18, k) if False else 'v_and_b32 v%d, 0xffff, v%d' % (100 + r, k))
        p('v_sub_u32 v%d, 2047, v%d' % (100 + r, 100 + r))
        p('v_mul_u32_u24 v%d, 896, v%d' % (104 + r, 100 + r))
    p('v_lshlrev_b32 v25, 1, v25')
    p('v_add_u32 v25, s40, v25')
    for r in range(4):
        p('v_add_u32 v%d, v%d, v25' % (104 + r, 104 + r))
    for r in range(4):
        p('buffer_load_ushort v%d, v%d, s[28:31], 0 offen%s' % (108 + r, 104 + r, ' sc1' if emb else ''))
    for r in range(4):
        k = 8 + r
        p('v_and_b32 v%d, 0xffff0000, v%d' % (k, k))
        p('v_ashrrev_i32 v16, 31, v%d' % k)
        p('v_not_b32 v16, v16')
        p('v_or_b32 v16, 0x80000000, v16')
        p('v_xor_b32 v%d, v%d, v16' % (k, k))
        p('v_and_b32 v%d, 0xffff0000, v%d' % (k, k))
        p('v_mul_f32 v%d, 0xbfb8aa3b, v%d' % (12 + r, k))
    for r in range(4): p('v_exp_f32 v%d, v%d' % (12 + r, 12 + r))
    p('s_nop 0')
    for r in range(4): p('v_add_f32 v%d, 1.0, v%d' % (12 + r, 12 + r))
    for r in range(4): p('v_rcp_f32 v%d, v%d' % (12 + r, 12 + r))
    p('s_nop 0')
    for r in range(4): p('v_cvt_pk_bf16_f32 v%d, v%d, 0' % (12 + r, 12 + r))
    for r in range(4): p('v_lshlrev_b32 v%d, 16, v%d' % (12 + r, 12 + r))
    p("""
    v_lshrrev_b32 v28, 4, v1
    v_lshlrev_b32 v28, 3, v28
    v_bfe_u32 v29, v1, 2, 2
    v_add_u32 v28, v28, v29
    v_lshlrev_b32 v28, 5, v28
    v_and_b32 v29, 3, v1
    v_lshl_add_u32 v28, v29, 3, v28
    v_add_u32 v28, s46, v28
    v_and_b32 v4, 7, v1
    v_mul_u32_u24 v22, 3584, v4
    v_lshrrev_b32 v23, 4, v1
    v_lshl_add_u32 v22, v23, 4, v22
    s_mul_i32 s41, s3, 896
    v_add_u32 v22, s41, v22
    s_waitcnt vmcnt(4)
""")
    tr_frags(p, 28, 112, 14)
    p(';ST 1')
    if K34_SENT:
        p('''
    v_lshlrev_b32 v21, 6, v1
    s_mul_i32 s41, s3, 896
    s_add_u32 s41, s41, %d
    v_add_u32 v21, s41, v21
    v_mov_b32 v23, 0x40000000
    v_cmp_gt_u32 vcc, 14, v1
    s_nop 1
    v_cndmask_b32 v21, v23, v21, vcc
L_k34_prepoll:
    buffer_load_dword v23, v21, s[20:23], 0 offen sc1
    s_waitcnt vmcnt(0)
    v_cmp_eq_u32 vcc, -1, v23
    %s
    s_sleep %d
    s_branch L_k34_prepoll
''' % (7 * 3584, ('s_nop 0\n    s_cbranch_vccz L_k34_poll' if not K34_ANY else 's_nop 0\n    s_cmp_lg_u32 vcc_lo, 0x3fff\n    s_cbranch_scc1 L_k34_poll'), K34_PSLEEP))
        p('L_k34_poll:')
        for i in range(14):
            p('buffer_load_dwordx4 %s, v22, s[20:23], 0 offen offset:%d sc1' % (vr(32 + 4 * i, 4), 64 * i))
        p('s_waitcnt vmcnt(0)')
        p('v_max3_u32 v21, v32, v33, v34')
        for k in range(35, 87, 2):
            p('v_max3_u32 v21, v21, v%d, v%d' % (k, k + 1))
        p('v_max_u32 v21, v21, v87')
        p('v_cmp_eq_u32 vcc, -1, v21')
        p('s_nop 0')
        p('s_cbranch_vccz L_k34_polled')
        p('s_sleep %d' % K34_SLEEP)
        p('s_branch L_k34_poll')
        p('L_k34_polled:')
        p(';ST 2')
    else:
        p("""
        s_cmp_lg_u32 s3, 0
        s_cbranch_scc1 L_k34_polled
        v_mov_b32 v21, 0
    L_k34_poll:
        buffer_load_dword v23, v21, s[56:59], 0 offen offset:%d sc1
        s_waitcnt vmcnt(0)
        v_readfirstlane_b32 s41, v23
        s_cmp_eq_u32 s41, %d
        s_cbranch_scc1 L_k34_polled
        s_sleep %d
        s_branch L_k34_poll
    L_k34_polled:
        s_barrier
    """ % ((0, 56, K34_SLEEP) if K34_DIRECT else (128, 1, K34_SLEEP)))
        p(';ST 2')
        for i in range(14):
            p('buffer_load_dwordx4 %s, v22, s[20:23], 0 offen offset:%d sc1' % (vr(32 + 4 * i, 4), 64 * i))
    p('s_waitcnt lgkmcnt(0)')
    for i in range(14):
        if i % 2 == 0 and not K34_SENT: p('s_waitcnt vmcnt(%d)' % (12 - i))
        acc = 'v[172:175]' if i % 2 == 0 else 'v[176:179]'
        c = '0' if i < 2 else acc
        p('v_mfma_f32_16x16x32_bf16 %s, %s, %s, %s' % (acc, vr(32 + 4 * i, 4), vr(112 + 4 * i, 4), c))
    p('s_nop 7')
    for r in range(4): p('v_add_f32 v%d, v%d, v%d' % (172 + r, 172 + r, 176 + r))
    p('s_nop 7')
    p("""
    v_lshlrev_b32 v30, 4, v1
    s_lshl_b32 s41, s3, 10
    v_add_u32 v30, s41, v30
    ds_write_b128 v30, v[172:175] offset:%d
    s_waitcnt lgkmcnt(0)
    s_barrier
    s_cmp_lg_u32 s3, 0
    s_cbranch_scc1 L_st_end_k34
    ds_read_b128 v[176:179], v30 offset:%d
    ds_read_b128 v[180:183], v30 offset:%d
    ds_read_b128 v[184:187], v30 offset:%d
    s_waitcnt lgkmcnt(0)
""" % (TOPK_LDS + 1024, TOPK_LDS + 2048, TOPK_LDS + 3072, TOPK_LDS + 4096))
    Y = 172
    for r in range(4):
        p('v_add_f32 v%d, v%d, v%d' % (Y + r, Y + r, 176 + r))
        p('v_add_f32 v%d, v%d, v%d' % (180 + r, 180 + r, 184 + r))
    for r in range(4):
        p('v_add_f32 v%d, v%d, v%d' % (Y + r, Y + r, 180 + r))
    def rnd(a):
        p('v_cvt_pk_bf16_f32 v188, v%d, v%d' % (a, a + 1))
        p('v_cvt_pk_bf16_f32 v189, v%d, v%d' % (a + 2, a + 3))
        p('v_lshlrev_b32 v%d, 16, v188' % a); p('v_and_b32 v%d, 0xffff0000, v188' % (a + 1))
        p('v_lshlrev_b32 v%d, 16, v189' % (a + 2)); p('v_and_b32 v%d, 0xffff0000, v189' % (a + 3))
    rnd(Y)
    for r in range(4): p('v_mul_f32 v%d, v%d, v%d' % (Y + r, Y + r, 12 + r))
    rnd(Y)
    for r in range(4):
        p('v_lshlrev_b32 v%d, 16, v%d' % (108 + r, 108 + r))
        p('v_fma_f32 v%d, v%d, v31, v%d' % (Y + r, Y + r, 108 + r))
    p('v_cvt_pk_bf16_f32 v188, v%d, v%d' % (Y, Y + 1))
    p('v_cvt_pk_bf16_f32 v189, v%d, v%d' % (Y + 2, Y + 3))
    p("""
    v_mov_b32 v27, 0x40000000
    v_cmp_gt_u32 vcc, 32, v1
    s_nop 1
""")
    for r in range(4): p('v_cndmask_b32 v%d, v27, v%d, vcc' % (104 + r, 104 + r))
    p("""
    buffer_store_short v188, v104, s[28:31], 0 offen
    buffer_store_short_d16_hi v188, v105, s[28:31], 0 offen
    buffer_store_short v189, v106, s[28:31], 0 offen
    buffer_store_short_d16_hi v189, v107, s[28:31], 0 offen
""")

def build_k34():
    p = Prog()
    p("""
k34_kernel:
    s_cmp_ge_u32 s2, 84
    s_cbranch_scc1 L_end_k34
    s_load_dwordx4 s[4:7], s[0:1], 56
    s_load_dwordx2 s[48:49], s[0:1], 72
    s_load_dwordx4 s[52:55], s[0:1], 96
    s_load_dwordx2 s[24:25], s[0:1], 112
    v_and_b32 v1, 63, v0
    v_lshrrev_b32 v2, 6, v0
    s_nop 0
    v_readfirstlane_b32 s3, v2
    v_lshlrev_b32 v5, 5, v0
    s_waitcnt lgkmcnt(0)
""")
    srd(p, 12, 24, 8192, str(WS_R))
    p('buffer_load_dwordx4 v[8:11], v5, s[12:15], 0 offen')
    p('buffer_load_dwordx4 v[12:15], v5, s[12:15], 0 offen offset:16')
    srd(p, 16, 24, 2048 * 896, str(WS_H2))
    srd(p, 20, 24, 28672, str(WS_ACT))
    srd(p, 56, 54, 256)
    p("""
    s_cmp_ge_u32 s2, 56
    s_cbranch_scc1 L_k34_down
    s_cmp_ge_u32 s3, 2
    s_cselect_b32 s4, s6, s4
    s_cselect_b32 s5, s7, s5
""")
    srd(p, 8, 4, 448 * 3584)
    p("""
    s_and_b32 s40, s2, 7
    s_mul_i32 s40, s40, 7
    s_lshr_b32 s41, s2, 3
    s_add_u32 s40, s40, s41
    s_lshl_b32 s40, s40, 6
    s_and_b32 s41, s3, 1
    s_lshl_b32 s41, s41, 5
    s_add_u32 s40, s40, s41
    v_lshrrev_b32 v3, 1, v1
    v_mul_u32_u24 v3, 3584, v3
    v_and_b32 v4, 1, v1
    v_lshl_add_u32 v3, v4, 4, v3
    v_add_u32 v3, s40, v3
    s_mov_b32 s45, %d
    s_mul_i32 s46, s3, 14336
""" % (32 * 3584))
    wstage(p, 8, 3, 14, 46)
    p('s_waitcnt vmcnt(14)')
    p(';ST 0')
    g_main(p, False)
    p('L_k34_down:')
    p('s_sub_u32 s39, s2, 56')
    p('s_mul_i32 s40, s3, %d' % (448 * 896))
    p('s_add_u32 s48, s48, s40'); p('s_addc_u32 s49, s49, 0')
    srd(p, 8, 48, 448 * 896)
    srd(p, 60, 24, 10752)
    srd(p, 28, 52, 2048 * 896)
    p("""
    s_and_b32 s47, s39, 7
    s_lshr_b32 s41, s39, 3
    s_lshl_b32 s42, s47, 2
    s_mul_i32 s43, s47, 3
    s_add_u32 s43, s43, 4
    s_cmp_lt_u32 s47, 4
    s_cselect_b32 s47, s42, s43
    s_add_u32 s47, s47, s41           ; column block
    s_lshl_b32 s40, s47, 5              ; column byte offset
    v_lshrrev_b32 v3, 1, v1
    v_mul_u32_u24 v3, 896, v3
    v_and_b32 v4, 1, v1
    v_lshl_add_u32 v3, v4, 4, v3
    v_add_u32 v3, s40, v3
    s_mov_b32 s45, %d
    s_mul_i32 s46, s3, 14336
    v_and_b32 v25, 15, v1
    v_lshlrev_b32 v26, 2, v25
    s_lshl_b32 s41, s47, 6
    v_add_u32 v26, s41, v26
    s_mov_b32 s42, 8960
    buffer_load_dword v31, v26, s[60:63], s42 offen                ; gb[col]
""" % (32 * 896))
    wstage(p, 8, 3, 14, 46)
    p('s_waitcnt vmcnt(15)')
    d_main(p, False)
    p("""
L_st_end_k34:
L_end_k34:
    s_endpgm
""")
    return p


K2_OUT_FLAGS = ''
K2_H_FLAGS = ''
K2_R_FLAGS = ''
def k2_math(p, P0, XR, GA, S2, A2, GB, WR, ACC, X1, PK, VOUT, VMASK, VLANE_, VBIG, SEL, srd_h2, srd_out, srd_r, s_row0, T, key_in_reg=False):
    for rr in range(2):
        for j in range(8):
            p('v_mul_f32 v%d, v%d, v%d' % (ACC[rr] + j, ACC[rr] + j, GA + j))
        for j in range(8):
            p('v_dot2_f32_bf16 v%d, v%d, v%d, v%d' % (ACC[rr] + j, XR[rr] + j // 2, SEL + j % 2, ACC[rr] + j))
    p('s_nop 2')
    for rr in range(2):
        for j in range(0, 8, 2):
            p('v_cvt_pk_bf16_f32 v%d, v%d, v%d' % (PK + rr * 4 + j // 2, ACC[rr] + j, ACC[rr] + j + 1))
    for rr in range(2):
        for j in range(8):
            if j % 2 == 0: p('v_lshlrev_b32 v%d, 16, v%d' % (X1[rr] + j, PK + rr * 4 + j // 2))
            else: p('v_and_b32 v%d, 0xffff0000, v%d' % (X1[rr] + j, PK + rr * 4 + j // 2))
    SUM = [T, T + 1]
    for rr in range(2):
        p('v_add_f32 v%d, v%d, v%d' % (SUM[rr], X1[rr], X1[rr] + 1))
        for j in range(2, 8): p('v_add_f32 v%d, v%d, v%d' % (SUM[rr], SUM[rr], X1[rr] + j))
    wave_reduce_multi(p, SUM, [T + 2, T + 3])
    XC = ACC
    for rr in range(2):
        p('v_mul_f32 v%d, 0xbb124925, v%d' % (SUM[rr], SUM[rr]))
    for rr in range(2):
        for j in range(8):
            p('v_add_f32 v%d, v%d, v%d' % (XC[rr] + j, X1[rr] + j, SUM[rr]))
    VAR = [T + 2, T + 3]
    for rr in range(2):
        p('v_mul_f32 v%d, v%d, v%d' % (VAR[rr], XC[rr], XC[rr]))
        for j in range(1, 8): p('v_fmac_f32 v%d, v%d, v%d' % (VAR[rr], XC[rr] + j, XC[rr] + j))
    for rr in range(2):
        p('v_mul_f32 v%d, v%d, v%d' % (VAR[rr], VAR[rr], VMASK))
    wave_reduce_multi(p, VAR, [T + 4, T + 5])
    for rr in range(2):
        p('v_mov_b32 v%d, 0x3727c5ac' % (T + 4 + rr))
        p('v_fmac_f32 v%d, 0x3b124925, v%d' % (T + 4 + rr, VAR[rr]))
    for rr in range(2):
        p('v_rsq_f32 v%d, v%d' % (VAR[rr], T + 4 + rr))
    p('s_nop 0')
    H = [PK, PK + 4]
    for rr in range(2):
        for j in range(8):
            p('v_mul_f32 v%d, v%d, v%d' % (XC[rr] + j, XC[rr] + j, VAR[rr]))
        for j in range(8):
            p('v_fma_f32 v%d, v%d, v%d, v%d' % (XC[rr] + j, XC[rr] + j, A2 + j, S2 + j))
        for j in range(0, 8, 2):
            p('v_cvt_pk_bf16_f32 v%d, v%d, v%d' % (H[rr] + j // 2, XC[rr] + j, XC[rr] + j + 1))
    for rr in range(2):
        p('buffer_store_dwordx4 %s, v%d, s[%d:%d], 0 offen offset:%d%s' % (vr(H[rr], 4), VOUT, srd_h2, srd_h2 + 3, rr * 896, K2_H_FLAGS))
    RR = [T + 4, T + 5]
    for rr in range(2):
        p('v_mov_b32 v%d, 0' % RR[rr])
    for j in range(4):
        for rr in range(2):
            p('v_dot2_f32_bf16 v%d, v%d, v%d, v%d' % (RR[rr], H[rr] + j, WR + j, RR[rr]))
    OUTR = [P0[0], P0[0] + 4]
    for rr in range(2):
        for j in range(8):
            if j % 2 == 0: p('v_lshlrev_b32 v%d, 16, v%d' % (XC[rr] + j, H[rr] + j // 2))
            else: p('v_and_b32 v%d, 0xffff0000, v%d' % (XC[rr] + j, H[rr] + j // 2))
        for j in range(8):
            p('v_fma_f32 v%d, v%d, v%d, v%d' % (XC[rr] + j, XC[rr] + j, GB + j, X1[rr] + j))
        for j in range(0, 8, 2):
            p('v_cvt_pk_bf16_f32 v%d, v%d, v%d' % (OUTR[rr] + j // 2, XC[rr] + j, XC[rr] + j + 1))
        p('buffer_store_dwordx4 %s, v%d, s[%d:%d], 0 offen offset:%d%s' % (vr(OUTR[rr], 4), VOUT, srd_out, srd_out + 3, rr * 896, K2_OUT_FLAGS))
    wave_reduce_multi(p, RR, [T, T + 1])
    p("""
    v_cvt_pk_bf16_f32 v%d, v%d, 0
    v_cvt_pk_bf16_f32 v%d, v%d, 0
    v_cmp_eq_u32 vcc, 1, v%d
    s_nop 1
    v_cndmask_b32 v%d, v%d, v%d, vcc
    v_lshlrev_b32 v%d, 16, v%d            ; r rounded to bf16 (row0 in lane 0, row1 in lane 1)
    v_ashrrev_i32 v%d, 31, v%d
    v_or_b32 v%d, 0x80000000, v%d
    v_xor_b32 v%d, v%d, v%d               ; order-preserving integer image
    v_and_b32 v%d, 0xffff0000, v%d
    v_add_u32 v%d, s%d, v%d               ; row index
    v_sub_u32 v%d, 2047, v%d
    v_or_b32 v%d, v%d, v%d                ; key = image | (2047 - row): unique, ties go to the lower row
""" % (RR[0], RR[0], RR[1], RR[1], VLANE_, RR[0], RR[0], RR[1], RR[0], RR[0],
       RR[1], RR[0], RR[1], RR[1], RR[0], RR[0], RR[1], RR[0], RR[0],
       T, s_row0, VLANE_, T + 1, T, RR[0], RR[0], T + 1))
    if key_in_reg:
        return RR[0]
    p("""
    v_lshlrev_b32 v%d, 2, v%d
    v_cmp_gt_u32 vcc, 2, v%d
    s_nop 1
    v_cndmask_b32 v%d, v%d, v%d, vcc
    buffer_store_dword v%d, v%d, s[%d:%d], 0 offen%s
""" % (T, T, VLANE_, T, VBIG, T, RR[0], T, srd_r, srd_r + 3, K2_R_FLAGS))


KEY_SLEEP0 = 16
MOE_AFTERPUB = False
MOE_EARLY = True
KEY_SLEEP = 8
MOE_INTERLEAVE = True
def moe_pre(p, SW, VL):
    p("""
    s_cmp_ge_u32 s2, 56
    s_cbranch_scc1 L_moe_pre_d
    s_cmp_ge_u32 s%d, 2
    s_cselect_b32 s64, s30, s28
    s_cselect_b32 s65, s31, s29          ; waves 0,1: gate ; waves 2,3: up
    s_mov_b32 s66, %d
    s_mov_b32 s67, 0x20000
    s_and_b32 s40, s2, 7
    s_mul_i32 s40, s40, 7
    s_lshr_b32 s41, s2, 3
    s_add_u32 s40, s40, s41
    s_lshl_b32 s40, s40, 6
    s_and_b32 s41, s%d, 1
    s_lshl_b32 s41, s41, 5
    s_add_u32 s40, s40, s41
    v_lshrrev_b32 v210, 1, v%d
    v_mul_u32_u24 v210, 3584, v210
    s_mov_b32 s45, %d
    s_branch L_moe_pre_go
L_moe_pre_d:
    s_sub_u32 s39, s2, 56
    s_mul_i32 s40, s%d, %d
    s_add_u32 s64, s32, s40
    s_addc_u32 s65, s33, 0
    s_mov_b32 s66, %d
    s_mov_b32 s67, 0x20000
    s_and_b32 s47, s39, 7
    s_lshr_b32 s41, s39, 3
    s_lshl_b32 s42, s47, 2
    s_mul_i32 s43, s47, 3
    s_add_u32 s43, s43, 4
    s_cmp_lt_u32 s47, 4
    s_cselect_b32 s47, s42, s43
    s_add_u32 s47, s47, s41           ; column block
    s_lshl_b32 s40, s47, 5              ; column byte offset
    v_lshrrev_b32 v210, 1, v%d
    v_mul_u32_u24 v210, 896, v210
    s_mov_b32 s45, %d
L_moe_pre_go:
    v_and_b32 v211, 1, v%d
    v_lshl_add_u32 v210, v211, 4, v210
    v_add_u32 v210, s40, v210
    s_mul_i32 s46, s%d, 14336
""" % (SW, 448 * 3584, SW, VL, 32 * 3584, SW, 448 * 896, 448 * 896, VL, 32 * 896, VL, SW))
    wstage(p, 64, 210, 14, 46)

def moe_main(p, SW, VL, VEC, st=lambda n: None):
    p("""
    s_mov_b32 s3, s%d
    v_mov_b32 v1, v%d
    s_lshl_b32 s41, s3, 6
    v_add_u32 v0, s41, v1
    v_lshlrev_b32 v5, 5, v0
""" % (SW, VL))
    if MOE_AFTERPUB:
        moe_pre(p, SW, VL)
    else:
        p('s_sleep %d' % KEY_SLEEP0)
    p("""
L_keys_poll:
    buffer_load_dwordx4 v[8:11], v5, s[96:99], 0 offen sc1
    buffer_load_dwordx4 v[12:15], v5, s[96:99], 0 offen offset:16 sc1
    s_waitcnt vmcnt(0)
    v_max3_u32 v16, v8, v9, v10
    v_max3_u32 v16, v16, v11, v12
    v_max3_u32 v16, v16, v13, v14
    v_max_u32 v16, v16, v15
    v_cmp_eq_u32 vcc, -1, v16
    s_nop 0
    s_cbranch_vccz L_keys_ok
    s_sleep %d
    s_branch L_keys_poll
L_keys_ok:
""" % KEY_SLEEP)
    st('kpoll')
    pre = Prog()
    if MOE_AFTERPUB:
        pre('s_mov_b32 s44, 0')
    elif MOE_EARLY:
        moe_params(p, SW)
        pre('s_mov_b32 s44, 0')
    else:
        moe_pre(pre, SW, VL)
    cut = [k for k, i in enumerate(pre.ins) if i.text.startswith('s_mov_b32 s44, 0')][0]
    dma_items = pre.ins[cut:] if MOE_INTERLEAVE else []
    p.extend(pre.ins[:cut] if MOE_INTERLEAVE else pre.ins)
    p("""
    s_mov_b32 s28, s16
    s_mov_b32 s29, s17
    s_mov_b32 s30, s18
    s_mov_b32 s31, s19
    s_mov_b32 s16, s20
    s_mov_b32 s17, s21
    s_mov_b32 s18, s22
    s_mov_b32 s19, s23
""")
    srd(p, 20, 24, 28672, str(WS_ACT))
    p('s_cmp_ge_u32 s2, 56')
    p('s_cbranch_scc1 L_moe_d')
    global TOP8_MASK
    TOP8_MASK = 48
    def weave(q, endmark):
        items = []
        cur = []
        for i in dma_items:
            cur.append(i)
            if i.kind == 'vmem': items.append(cur); cur = []
        if cur and items: items[-1] += cur
        end = [k for k, i in enumerate(q.ins) if i.text.startswith(endmark)][0]
        out = []
        step = max(1, (end - 4) // (len(items) + 1)) if items else 1 << 30
        n = 0
        for k, i in enumerate(q.ins):
            out.append(i)
            if k < end and items and n < len(items) and k >= (n + 1) * step and i.text.startswith('v_max_u32_dpp'):
                out += items[n]; n += 1
            if k == end - 1:
                while n < len(items): out += items[n]; n += 1
        return out
    q = Prog()
    g_main(q, True)
    for i in weave(q, ';ST 1'):
        if i.text.startswith(';ST 1'): st('top8')
        elif i.text.startswith(';ST 2'): st('gath')
        else: p.ins.append(i)
    p('L_moe_d:')
    p("""
    v_and_b32 v25, 15, v1
    s_lshl_b32 s41, s47, 6
    v_lshl_add_u32 v26, v25, 2, s41
    v_add_u32 v26, %d, v26
    ds_read_b32 v31, v26
    s_waitcnt lgkmcnt(0)
""" % (VEC + 1344 * 4))
    q = Prog()
    d_main(q, True)
    for i in weave(q, ';ST 0'):
        if i.text.startswith(';ST 0'): st('top8')
        elif i.text.startswith(';ST 2'): st('gath')
        else: p.ins.append(i)
    TOP8_MASK = 64


LB = 69632
def moe_stage_early(p, SW, VL):
    p("""
    s_cmp_ge_u32 s2, 84
    s_cbranch_scc1 L_stage_none
    s_cmp_eq_u32 s%d, 0
    s_cbranch_scc1 L_stage_none
    s_cmp_ge_u32 s2, 56
    s_cbranch_scc1 L_stage_d
    s_and_b32 s40, s2, 7
    s_mul_i32 s40, s40, 7
    s_lshr_b32 s41, s2, 3
    s_add_u32 s40, s40, s41
    s_lshl_b32 s40, s40, 6             ; column byte offset of the block
    v_lshrrev_b32 v210, 1, v%d
    v_mul_u32_u24 v210, 3584, v210
    s_mov_b32 s62, %d
    s_cmp_ge_u32 s%d, 2
    s_cselect_b32 s64, s30, s28
    s_cselect_b32 s65, s31, s29
    s_mov_b32 s66, %d
    s_and_b32 s41, s%d, 1
    s_lshl_b32 s41, s41, 5             ; +32 B for the second column tile
    s_mov_b32 s63, 0                   ; soffset base of region w
    s_mov_b32 s61, 0                   ; soffset base of region 0
    s_branch L_stage_go
L_stage_d:
    s_sub_u32 s39, s2, 56
    s_and_b32 s61, s39, 7
    s_lshr_b32 s41, s39, 3
    s_lshl_b32 s42, s61, 2
    s_mul_i32 s43, s61, 3
    s_add_u32 s43, s43, 4
    s_cmp_lt_u32 s61, 4
    s_cselect_b32 s61, s42, s43
    s_add_u32 s61, s61, s41
    s_lshl_b32 s40, s61, 5
    v_lshrrev_b32 v210, 1, v%d
    v_mul_u32_u24 v210, 896, v210
    s_mov_b32 s62, %d
    s_mov_b32 s64, s32
    s_mov_b32 s65, s33
    s_mov_b32 s66, %d
    s_mov_b32 s41, 0
    s_mul_i32 s63, s%d, %d
    s_mov_b32 s61, 0
L_stage_go:
    s_mov_b32 s67, 0x20000
    v_and_b32 v211, 1, v%d
    v_lshl_add_u32 v210, v211, 4, v210
    v_add_u32 v210, s40, v210
    v_add_u32 v211, s41, v210          ; region w
    s_mul_i32 s42, s%d, 14336
    s_add_u32 s42, s42, %d
""" % (SW, VL, 32 * 3584, SW, 448 * 3584, SW, VL, 32 * 896, 1792 * 896, SW, 448 * 896, VL, SW, LB))
    for i in range(14):
        p('s_add_u32 m0, s42, %d' % (i * 1024))
        p('s_nop 0')
        p('buffer_load_dwordx4 v211, s[64:67], s63 offen lds')
        if i < 13: p('s_add_u32 s63, s63, s62')
    p("""
    s_cmp_eq_u32 s%d, 1
    s_cbranch_scc1 L_stage_w1
    s_waitcnt vmcnt(14)
    s_branch L_stage_done
L_stage_w1:
""" % SW)
    for i in range(14):
        p('s_mov_b32 m0, %d' % (LB + i * 1024))
        p('s_nop 0')
        p('buffer_load_dwordx4 v210, s[64:67], s61 offen lds')
        if i < 13: p('s_add_u32 s61, s61, s62')
    p("""
    s_waitcnt vmcnt(28)
    s_branch L_stage_done
L_stage_none:
    s_waitcnt vmcnt(0)
L_stage_done:
""")

def moe_params(p, SW):
    p("""
    s_mul_i32 s46, s%d, 14336
    s_add_u32 s46, s46, %d
    s_cmp_ge_u32 s2, 56
    s_cbranch_scc1 L_par_d
    s_and_b32 s40, s2, 7
    s_mul_i32 s40, s40, 7
    s_lshr_b32 s41, s2, 3
    s_add_u32 s40, s40, s41
    s_lshl_b32 s40, s40, 6
    s_and_b32 s41, s%d, 1
    s_lshl_b32 s41, s41, 5
    s_add_u32 s40, s40, s41
    s_branch L_par_done
L_par_d:
    s_sub_u32 s39, s2, 56
    s_and_b32 s47, s39, 7
    s_lshr_b32 s41, s39, 3
    s_lshl_b32 s42, s47, 2
    s_mul_i32 s43, s47, 3
    s_add_u32 s43, s43, 4
    s_cmp_lt_u32 s47, 4
    s_cselect_b32 s47, s42, s43
    s_add_u32 s47, s47, s41
    s_lshl_b32 s40, s47, 5
L_par_done:
""" % (SW, LB, SW))
```

```python
from asmlib import *
import gen_attn2 as A
from gen_attn2 import (vr, ar, BLK, HALF, KBUF, VBASE, SREG, PBUF, NEGM, FR, VK, VV, VOFF, LREG, TMP, VLANE,
                       S_K0, S_K1, S_V0, S_V1, S_DST, S_THR, S_RET, S_CNT, S_W, S_96, S, frag, kread, vread, qk_list, exps, dma,
                       max8, lreg)

WS_MOD = 0
WS_R = 0x4000
WS_IDX = 0x8000
WS_ACT = 0x10000
WS_H2 = 0x100000
WS_PART = 0x400000
WS_CNT = 0x20000
WS_STAMP = 0xa000000

H_OFF = 0
MV_OFF = 57344
QSLOT = [98304, 131072, 65536, 32768]
QX = 67584
XR = 0
ST = 131072
KEYL = 68608
VEC = 59392
WO0 = 135168

S_G, S_QB, S_S, S_QH = 36, 37, 38, 39
S_X = 40
S_WQ = 44
S_WO = 48
S_SO = 52
S_T0, S_T1, S_T2, S_T3 = 60, 61, 62, 63
S_QD = 64
S_QD2 = 32
S_WST = 65
S_PART = 68
S_STAMP = 72

class VmTracker:
    def __init__(self): self.ops = []
    def add(self, tag): self.ops.append(tag)
    def wait(self, tag):
        idx = max(i for i, t in enumerate(self.ops) if t == tag)
        n = len(self.ops) - 1 - idx
        assert n <= 63
        return 's_waitcnt vmcnt(%d)' % n

STAMPS = {1: ['start', 'ln_done', 'qproj', 'qexch', 'attnpro', 'loop', 'oproj', 'end'],
          2: ['start', 'xwait', 'stats', 'modbar', 'hbar', 'ln_done', 'qproj', 'end'],
          4: ['start', 'p_w', 'p_bar', 'p_st', 'stats', 'poll_done', 'modbar', 'end'],
          5: ['start', 'oproj', 'stores', 'drain', 'grp', 'k2ld', 'k2m', 'end'],
          6: ['start', 'k2ld', 'k2m', 'pub', 'kpoll', 'top8', 'gath', 'end'],
          3: ['start', 'loop', 'e1bar', 'comb', 'e3bar', 'oproj', 'stores', 'end']}
def stamp(p, o, name):
    if o.stamps and name in STAMPS[o.stamps]:
        k = STAMPS[o.stamps].index(name)
        p('s_memrealtime s[%d:%d]' % (S_STAMP + 2 * k, S_STAMP + 2 * k + 1))
        if name in ('xwait', 'stats', 'modbar', 'hbar', 'e1bar', 'comb', 'e3bar', 'p_w', 'p_bar', 'p_st', 'poll_done', 'pub', 'kpoll', 'top8', 'gath', 'k2m'): p('s_waitcnt lgkmcnt(0)')

def xreduce(p, r, t, op='v_add_f32'):
    p('v_mov_b32 v%d, v%d' % (t, r))
    p('s_nop 1')
    p('v_permlane16_swap_b32 v%d, v%d' % (r, t))
    p('s_nop 1')
    p('%s v%d, v%d, v%d' % (op, r, r, t))
    p('v_mov_b32 v%d, v%d' % (t, r))
    p('s_nop 1')
    p('v_permlane32_swap_b32 v%d, v%d' % (r, t))
    p('s_nop 1')
    p('%s v%d, v%d, v%d' % (op, r, r, t))

HFLY = False
def qslot(step):
    return [65536, 98304, 131072][(step + 1) % 3] if HFLY else QSLOT[step % 4]

def wq_dma(step, vm, VQ):
    out = []
    slot = qslot(step)
    for jj in range(8):
        if jj % 4 == 0:
            out.append('s_add_u32 m0, s%d, %d' % (S_QD2, slot + jj * 1024))
        out.append(('buffer_load_dwordx4 v%d, s[%d:%d], s%d offen offset:%d lds' % (VQ[(jj >> 1) & 1], S_WQ, S_WQ + 3, S_SO + jj, (jj & 3) * 1024), 'wq%d' % step))
    return out

def emit_dma(p, lst, vm, nop=True):
    for s in lst:
        if isinstance(s, tuple):
            p(s[0]); vm.add(s[1])
        else:
            p(s)
            if nop and s.startswith('s_') and 'm0' in s: p('s_nop 0')

WS_MODP = 0x30000
WS_MODP2 = 0x38000

def mod_dot(o, p, NI, cunpack, wname):
    C0, W0, HI, ACC, TT = 168, 76, 132, 148, 156
    cunpack(C0)
    for i in range(NI): p('v_mul_f32 v%d, 0xbfb8aa3b, v%d' % (HI + i, C0 + i))
    for i in range(NI): p('v_exp_f32 v%d, v%d' % (HI + i, HI + i))
    p('s_nop 0')
    for i in range(NI): p('v_add_f32 v%d, 1.0, v%d' % (HI + i, HI + i))
    for i in range(NI): p('v_rcp_f32 v%d, v%d' % (HI + i, HI + i))
    p('s_nop 0')
    for i in range(NI): p('v_mul_f32 v%d, v%d, v%d' % (C0 + i, C0 + i, HI + i))
    for i in range(NI): p('v_cvt_pk_bf16_f32 v%d, v%d, 0' % (C0 + i, C0 + i))
    for i in range(NI): p('v_lshlrev_b32 v%d, 16, v%d' % (HI + i, C0 + i))
    for j in range(8): p('v_mov_b32 v%d, 0' % (ACC + j))
    wname()
    for i in range(NI):
        for j in range(8):
            w = W0 + 4 * i + j // 2
            sel = (C0 + i) if j % 2 == 0 else (HI + i)
            p('v_dot2_f32_bf16 v%d, v%d, v%d, v%d' % (ACC + j, w, sel, ACC + j))
    p('s_nop 2')
    regs = [ACC + j for j in range(8)]; temps = [TT + j for j in range(8)]
    for r in regs:
        p('v_add_f32_dpp v%d, v%d, v%d row_ror:8 row_mask:0xf bank_mask:0xf' % (r, r, r))
    for sw in ('v_permlane16_swap_b32', 'v_permlane32_swap_b32'):
        for r, t in zip(regs, temps): p('v_mov_b32 v%d, v%d' % (t, r))
        p('s_nop 1')
        for r, t in zip(regs, temps): p('%s v%d, v%d' % (sw, r, t))
        p('s_nop 1')
        for r, t in zip(regs, temps): p('v_add_f32 v%d, v%d, v%d' % (r, r, t))

def mod_wgsum(p, tag):
    B_ = MV_OFF + 4096
    p("""
    v_and_b32 v164, 7, v%d
    s_lshl_b32 s60, s%d, 8
    v_lshlrev_b32 v164, 5, v164
    v_add_u32 v164, s60, v164
    ds_write_b128 v164, v[148:151] offset:%d
    ds_write_b128 v164, v[152:155] offset:%d
    s_waitcnt lgkmcnt(0)
    s_barrier
    ;STAMP p_bar
    s_cmp_lg_u32 s%d, 0
    s_cbranch_scc1 L_prod_done_%s
    v_lshlrev_b32 v164, 2, v%d
    ds_read_b32 v165, v164 offset:%d
    ds_read_b32 v166, v164 offset:%d
    ds_read_b32 v167, v164 offset:%d
    ds_read_b32 v168, v164 offset:%d
    s_waitcnt lgkmcnt(0)
    v_add_f32 v165, v165, v166
    v_add_f32 v167, v167, v168
    v_add_f32 v165, v165, v167
""" % (VLANE, S_W, B_, B_ + 16, S_W, tag, VLANE, B_, B_ + 256, B_ + 512, B_ + 768))

def producer(o, p, xloads):
    p("""
    s_cmp_ge_u32 s2, 56
    s_cbranch_scc1 L_prod_late
    s_mul_i32 s57, s2, 74
    s_lshr_b32 s57, s57, 10            ; ks = j / 14
    s_mul_i32 s58, s57, 14
    s_sub_u32 s58, s2, s58             ; cb = j %% 14
    s_mul_i32 s56, s57, 3584
    s_lshl_b32 s59, s58, 8
    s_add_u32 s56, s56, s59
    s_add_u32 s56, s56, %d             ; partial store offset
    s_branch L_prod_map
L_prod_late:
    s_sub_u32 s59, s2, 56
    s_mul_i32 s57, s59, 147
    s_lshr_b32 s57, s57, 12            ; ks = j' / 28
    s_mul_i32 s58, s57, 28
    s_sub_u32 s58, s59, s58            ; cb' = j' %% 28
    s_mul_i32 s56, s57, 7168
    s_lshl_b32 s59, s58, 8
    s_add_u32 s56, s56, s59
    s_add_u32 s56, s56, %d
    s_add_u32 s58, s58, 14
L_prod_map:
    s_mul_i32 s62, s57, 112
    s_mul_i32 s63, s%d, 28
    s_add_u32 s62, s62, s63            ; first row of this wave
    v_and_b32 v206, 7, v%d             ; cc
    v_lshrrev_b32 v207, 3, v%d         ; kg
    v_add_u32 v209, s62, v207          ; row (i = 0)
    v_mul_u32_u24 v208, 5376, v209
    v_lshl_add_u32 v208, v206, 4, v208
    s_lshl_b32 s63, s58, 7
    v_add_u32 v208, s63, v208
    v_lshlrev_b32 v209, 1, v209
    v_mov_b32 v210, 0x40000000
    v_cmp_gt_u32 vcc, 4, v207          ; i = 3 valid only for kg < 4
    s_nop 1
    v_cndmask_b32 v211, v210, v209, vcc
    v_cndmask_b32 v212, v210, v208, vcc
    s_mov_b32 s63, %d
""" % (WS_MODP, WS_MODP2, S_W, VLANE, VLANE, 8 * 5376))
    for i in range(3): p('buffer_load_ushort v%d, v209, s[68:71], 0 offen offset:%d' % (60 + i, 16 * i))
    p('buffer_load_ushort v63, v211, s[68:71], 0 offen offset:48')
    for i in range(3):
        p('buffer_load_dwordx4 %s, v208, s[64:67], 0 offen' % vr(76 + 4 * i, 4))
        p('v_add_u32 v208, s63, v208')
        p('v_add_u32 v212, s63, v212')
    p('buffer_load_dwordx4 v[88:91], v212, s[64:67], 0 offen')
    xloads()
    p('s_waitcnt vmcnt(18)')
    def cun(C0):
        for i in range(4): p('v_lshlrev_b32 v%d, 16, v%d' % (C0 + i, 60 + i))
    def wwait():
        p('s_waitcnt vmcnt(14)')
        stamp(p, o, 'p_w')
    mod_dot(o, p, 4, cun, wwait)
    mod_wgsum(p, 'u')
    p("""
    v_add_u32 v164, s56, v164
    buffer_store_dword v165, v164, s[24:27], 0 offen sc1
    s_cmp_ge_u32 s2, 56
    s_cbranch_scc1 L_prod_done_u       ; late producers signal after the modulation barrier
    ;ZEROCNT
    s_waitcnt vmcnt(0)
    ;STAMP p_st
    v_mov_b32 v165, 1
    v_mov_b32 v164, 0
    v_cmp_eq_u32 vcc, 0, v%d
    s_and_saveexec_b64 s[62:63], vcc
    buffer_atomic_add v165, v164, s[88:91], 0 offen sc0 sc1
    s_waitcnt vmcnt(0)
    v_readfirstlane_b32 s60, v165
    s_cmp_eq_u32 s60, 55
    s_cbranch_scc0 L_prod_notlast
    v_mov_b32 v165, 1
    buffer_store_dword v165, v164, s[88:91], 0 offen offset:128 sc1
L_prod_notlast:
    s_mov_b64 exec, s[62:63]
L_prod_done_u:
""" % VLANE)

def prologue(o):
    p = Prog()
    L = VLANE
    vm = VmTracker()
    p("""
    s_cmp_ge_u32 s2, 256
    s_cbranch_scc1 L_end_k1
    s_load_dwordx2 s[40:41], s[0:1], 0
    s_load_dwordx4 s[4:7], s[0:1], 8
    s_load_dwordx4 s[44:47], s[0:1], 24
    s_load_dwordx4 s[64:67], s[0:1], 80
    s_load_dwordx4 s[88:91], s[0:1], 104
    s_load_dwordx4 s[96:99], s[0:1], 56
    s_load_dwordx2 s[100:101], s[0:1], 72
    v_lshrrev_b32 v1, 6, v0
    v_and_b32 v%d, 63, v0
    s_nop 0
    v_readfirstlane_b32 s%d, v1
    ;MAP
    s_lshr_b32 s%d, s%d, 1        ; s (key half)
    s_and_b32 s%d, s%d, 1         ; qh
""" % (L, S_W, S_S, S_W, S_QH, S_W))
    idx = [k for k, i in enumerate(p.ins) if i.text.startswith(';MAP')][0]
    if getattr(o, 'scramble', 0):
        p.ins[idx:idx + 1] = [I('s_lshr_b32 s%d, s2, 5' % S_G), I('s_and_b32 s%d, s2, 31' % S_QB)]
    else:
        p.ins[idx:idx + 1] = [I('s_and_b32 s%d, s2, 7' % S_G), I('s_lshr_b32 s%d, s2, 3' % S_QB)]
    if o.stamps:
        p('s_memrealtime s[%d:%d]' % (S_STAMP, S_STAMP + 1))
    p("""
    ;CODEPF
    v_and_b32 v200, 15, v%d           ; n
    v_lshrrev_b32 v201, 4, v%d        ; kq
    s_lshl_b32 s60, s%d, 4
    v_add_u32 v202, s60, v200
    v_mul_u32_u24 v202, 896, v202
    v_lshl_add_u32 v202, v201, 4, v202
    s_mul_i32 s60, s%d, 57344
    s_waitcnt lgkmcnt(0)
    s_mov_b32 s24, s90
    s_mov_b32 s25, s91
    s_mov_b32 s26, 0x10000000
    s_mov_b32 s27, 0x20000
    s_mov_b32 s90, 256
    s_mov_b32 s91, 0x20000
    s_add_u32 s40, s40, s60
    s_addc_u32 s41, s41, 0
    s_mov_b32 s42, 57344
    s_mov_b32 s43, 0x20000
""" % (L, L, S_W, S_QB))
    def xl():
        for ks in range(14):
            p('buffer_load_dwordx4 %s, v202, s[40:43], 0 offen offset:%d' % (vr(4 * ks, 4), ks * 64))
    p("""
    s_cmp_ge_u32 s2, 168
    s_cbranch_scc1 L_noprod_a
    s_mov_b32 s68, s64
    s_mov_b32 s69, s65
    s_mov_b32 s70, 896
    s_mov_b32 s71, 0x20000
    s_mov_b32 s64, s66
    s_mov_b32 s65, s67
    s_mov_b32 s66, %d
    s_mov_b32 s67, 0x20000
""" % (448 * 5376))
    producer(o, p, xl)
    p('s_branch L_noprod_b')
    p('L_noprod_a:')
    for ks in range(14):
        p('buffer_load_dwordx4 %s, v202, s[40:43], 0 offen offset:%d' % (vr(4 * ks, 4), ks * 64)); vm.add('x')
    p('L_noprod_b:')
    if not o.one: p("""
    s_cmp_lg_u32 s2, 200
    s_cbranch_scc1 L_noactfill
    v_lshlrev_b32 v206, 4, v%d
    s_lshl_b32 s60, s%d, 10
    s_add_u32 s60, s60, %d
    v_add_u32 v206, s60, v206
    v_mov_b32 v208, -1
    v_mov_b32 v209, -1
    v_mov_b32 v210, -1
    v_mov_b32 v211, -1
""" % (L, S_W, WS_ACT))
    for i_ in range(7 if not o.one else 0):
        p('s_mov_b32 s60, %d' % (i_ * 4096))
        p('buffer_store_dwordx4 v[208:211], v206, s[24:27], s60 offen')
    if not o.one: p('L_noactfill:')
    p("""
    s_mov_b32 s48, s46
    s_mov_b32 s49, s47
    s_mul_i32 s60, s%d, 458752
    s_add_u32 s48, s48, s60
    s_addc_u32 s49, s49, 0
    s_mov_b32 s50, 458752
    s_mov_b32 s51, 0x20000
    s_lshl_b32 s60, s%d, 10
    s_add_u32 s44, s44, s60
    s_addc_u32 s45, s45, 0
    s_sub_u32 s46, 3670016, s60
    s_mov_b32 s47, 0x20000
""" % (S_G, S_G))
    if o.pf:
        D = o.pfd
        p("""
    s_lshl_b32 s60, s%d, 20
    s_cmp_lt_u32 s%d, 16
    s_cselect_b32 s92, s4, s6
    s_cselect_b32 s93, s5, s7
    s_add_u32 s92, s92, s60
    s_addc_u32 s93, s93, 0
    s_mov_b32 s94, 0x100000
    s_mov_b32 s95, 0x20000
    s_and_b32 s60, s%d, 15
    s_lshl_b32 s60, s60, 4
    s_lshl_b32 s61, s%d, 2
    s_add_u32 s60, s60, s61            ; line0 = (qb&15)*16 + w*4
    v_and_b32 v206, 3, v%d
    v_add_u32 v206, s60, v206
    v_lshlrev_b32 v206, 7, v206        ; line*128
    v_lshrrev_b32 v207, 2, v%d         ; tile = lane>>2
    v_lshl_add_u32 v207, v207, 15, v206
    v_mov_b32 v208, 0x40000000
    v_cmp_gt_u32 vcc, %d, v%d
    s_nop 1
    v_cndmask_b32 v207, v208, v207, vcc
    v_cmp_gt_u32 vcc, 4, v%d
    v_add_u32 v206, %d, v206
    s_nop 0
    v_cndmask_b32 v%d, v208, v206, vcc
""" % (S_G, S_QB, S_QB, S_W, L, L, 4 * D, L, L, D * 32768, A.VPFA))
        p("""
    s_mul_i32 s60, s%d, 112
    s_mul_i32 s61, s%d, 28
    s_add_u32 s60, s60, s61
    v_add_u32 v206, s60, v%d
    v_lshrrev_b32 v209, 3, v206
    v_lshlrev_b32 v209, 13, v209
    v_and_b32 v210, 7, v206
    v_lshl_add_u32 v209, v210, 7, v209
    v_lshlrev_b32 v206, 7, v206        ; wo prefetch offset = L*128
    v_cmp_gt_u32 vcc, 28, v%d
    s_nop 1
    v_cndmask_b32 v209, v208, v209, vcc
    v_cndmask_b32 v242, v208, v206, vcc
    v_mov_b32 v240, v209
    v_mov_b32 v241, v207
""" % (S_QB, S_W, L, L))
        p("""
    s_mul_i32 s60, s2, 49
    s_mul_i32 s61, s%d, 13
    s_add_u32 s60, s60, s61
    v_add_u32 v206, s60, v%d
    v_min_u32 v206, 12543, v206
    v_lshlrev_b32 v243, 7, v206
""" % (S_W, L))
    VQ = (204, 205)
    p("""
    v_lshlrev_b32 v206, 1, v201       ; 2*rr
    v_xor_b32 v206, v206, v200        ; slot ^ 2rr
    v_lshlrev_b32 v206, 4, v206
    v_lshl_add_u32 v206, v201, 13, v206
    s_lshl_b32 s60, s%d, 8
    v_add_u32 v204, s60, v206
    v_xor_b32 v205, 0x80, v204
    s_lshl_b32 s%d, s%d, 13
""" % (S_W, S_QD2, S_W))
    for jj in range(8):
        p('s_mov_b32 s%d, %d' % (S_SO + jj, jj * 32768 - (jj & 3) * 1024))
    p("""
    s_lshl_b32 s60, s%d, 20
    s_add_u32 s8, s4, s60
    s_addc_u32 s9, s5, 0
    s_sub_u32 s8, s8, 96
    s_subb_u32 s9, s9, 0
    s_mov_b32 s10, %d
    s_mov_b32 s11, 0x20000
    s_add_u32 s12, s8, 4096
    s_addc_u32 s13, s9, 0
    s_mov_b32 s14, %d
    s_mov_b32 s15, 0x20000
    s_add_u32 s16, s6, s60
    s_addc_u32 s17, s7, 0
    s_sub_u32 s16, s16, 96
    s_subb_u32 s17, s17, 0
    s_mov_b32 s18, %d
    s_mov_b32 s19, 0x20000
    s_add_u32 s20, s16, 4096
    s_addc_u32 s21, s17, 0
    s_mov_b32 s22, %d
    s_mov_b32 s23, 0x20000
    s_mov_b32 s%d, 96
    s_mul_i32 s61, s%d, %d
    s_mul_i32 s62, s%d, %d
    s_add_u32 s%d, s61, s62       ; LDS DMA dest base for K/V
    s_mov_b32 s%d, 0x%x
""" % (S_G, (1 << 20) + 96, (1 << 20) + 96 - 4096, (1 << 20) + 96, (1 << 20) + 96 - 4096, S_96, S_S, HALF, S_QH, 8 * BLK, S_DST, S_THR, o.thr))
    XC = 56
    ONE = 210; SELLO = 211; SELHI = 212; ACC = 214
    p('v_mov_b32 v%d, 0x3f803f80' % ONE)
    p('v_mov_b32 v%d, 0x00003f80' % SELLO)
    p('v_mov_b32 v%d, 0x3f800000' % SELHI)
    for i in range(4): p('v_mov_b32 v%d, 0' % (ACC + i))
    p(vm.wait('x'))
    stamp(p, o, 'xwait')
    if o.pf:
        p('buffer_load_dword v253, v240, s[44:47], 0 offen'); vm.add('pf')
    dmas = []
    for st in range(3):
        dmas += wq_dma(st, vm, VQ)
        dmas += ['v_add_u32 v204, 0x40000, v204', 'v_add_u32 v205, 0x40000, v205']
    valu = []
    for i in range(56):
        valu.append('v_dot2_f32_bf16 v%d, v%d, v%d, v%d' % (ACC + i % 4, i, ONE, ACC + i % 4))
    r = Prog()
    r('s_nop 2')
    r('v_add_f32 v%d, v%d, v%d' % (ACC, ACC, ACC + 1))
    r('v_add_f32 v%d, v%d, v%d' % (ACC + 2, ACC + 2, ACC + 3))
    r('v_add_f32 v%d, v%d, v%d' % (ACC, ACC, ACC + 2))
    xreduce(r, ACC, ACC + 1)
    r('v_mul_f32 v%d, 0x%x, v%d' % (ACC, 0xbb124925, ACC))
    valu.append([i.text for i in r.ins])
    for i in range(56):
        valu.append('v_dot2_f32_bf16 v%d, v%d, v%d, v%d' % (XC + 2 * i, i, SELLO, ACC))
        valu.append('v_dot2_f32_bf16 v%d, v%d, v%d, v%d' % (XC + 2 * i + 1, i, SELHI, ACC))
    V2 = 216
    valu.append(['v_mov_b32 v%d, 0' % (V2 + i) for i in range(4)])
    for i in range(56):
        a_ = V2 + 2 * (i % 2)
        valu.append('v_pk_fma_f32 %s, %s, %s, %s' % (vr(a_, 2), vr(XC + 2 * i, 2), vr(XC + 2 * i, 2), vr(a_, 2)))
    late = dmas if o.late_dma else []
    if o.late_dma: dmas = []
    di = 0
    for k, v in enumerate(valu):
        if isinstance(v, list):
            for x in v: p(x)
        else: p(v)
        if k % 6 == 5 and di < len(dmas):
            while di < len(dmas):
                d = dmas[di]; di += 1
                if isinstance(d, tuple):
                    p(d[0]); vm.add(d[1]); break
                p(d)
                if 'm0' in d:
                    p('s_nop 0')
    while di < len(dmas):
        d = dmas[di]; di += 1
        if isinstance(d, tuple): p(d[0]); vm.add(d[1])
        else:
            p(d)
            if 'm0' in d: p('s_nop 0')
    p('v_add_f32 v%d, v%d, v%d' % (V2, V2, V2 + 1))
    p('v_add_f32 v%d, v%d, v%d' % (V2 + 2, V2 + 2, V2 + 3))
    p('v_add_f32 v%d, v%d, v%d' % (V2, V2, V2 + 2))
    xreduce(p, V2, V2 + 1)
    p('v_mov_b32 v%d, 0x3727c5ac' % (V2 + 1))
    p('v_fmac_f32 v%d, 0x3b124925, v%d' % (V2 + 1, V2))
    p('v_rsq_f32 v%d, v%d' % (V2, V2 + 1))
    p('s_nop 0')
    p('v_mov_b32 v%d, v%d' % (V2 + 1, V2))
    if o.pf and o.pf_kv_early:
        p('buffer_load_dword v254, v241, s[92:95], 0 offen'); vm.add('pf')
    for i in range(56):
        p('v_pk_mul_f32 %s, %s, %s' % (vr(XC + 2 * i, 2), vr(XC + 2 * i, 2), vr(V2, 2)))
    stamp(p, o, 'stats')
    p("""
    s_cmp_lg_u32 s%d, 0
    s_cbranch_scc1 L_modwait_done
    v_mov_b32 v206, 0
L_poll:
    buffer_load_dword v207, v206, s[88:91], 0 offen offset:128 sc1
    s_waitcnt vmcnt(0)
    v_readfirstlane_b32 s60, v207
    s_cmp_eq_u32 s60, 1
    s_cbranch_scc1 L_poll_done
    s_sleep %d
    s_branch L_poll
L_poll_done:
    ;STAMP poll_done
L_modwait_done:
    s_barrier
""" % (S_W, getattr(o, 'msleep', 8)))
    p("""
    v_lshlrev_b32 v206, 4, v%d
    s_lshl_b32 s60, s%d, 10
    v_add_u32 v206, s60, v206
    v_add_u32 v207, %d, v206
""" % (L, S_W, WS_MODP))
    for k_ in range(4):
        if k_: p('v_add_u32 v207, 3584, v207')
        p('buffer_load_dwordx4 %s, v207, s[24:27], 0 offen sc1' % vr(168 + 4 * k_, 4))
    p("""
    s_lshl_b32 s60, s%d, 8
    v_lshl_add_u32 v208, v%d, 2, s60
    v_cmp_le_u32 vcc, 448, v208
    s_waitcnt vmcnt(0)
""" % (S_W, L))
    for r in range(4):
        p('v_add_f32 v%d, v%d, v%d' % (168 + r, 168 + r, 172 + r))
        p('v_add_f32 v%d, v%d, v%d' % (176 + r, 176 + r, 180 + r))
    for r in range(4): p('v_add_f32 v%d, v%d, v%d' % (168 + r, 168 + r, 176 + r))
    for r in range(4): p('v_cvt_pk_bf16_f32 v%d, v%d, 0' % (168 + r, 168 + r))
    for r in range(4): p('v_lshlrev_b32 v%d, 16, v%d' % (168 + r, 168 + r))
    for r in range(4): p('v_add_f32 v%d, 1.0, v%d' % (172 + r, 168 + r))
    for r in range(4): p('v_cvt_pk_bf16_f32 v%d, v%d, 0' % (172 + r, 172 + r))
    for r in range(4): p('v_lshlrev_b32 v%d, 16, v%d' % (172 + r, 172 + r))
    for r in range(4): p('v_cndmask_b32 v%d, v%d, v%d, vcc' % (168 + r, 168 + r, 172 + r))
    for r in range(4): p('v_mul_f32 v%d, 0x3db8aa3b, v%d' % (168 + r, 168 + r))
    p('ds_write_b128 v206, v[168:171] offset:%d' % MV_OFF)
    p('s_waitcnt lgkmcnt(0)')
    p('s_barrier')
    p("""
    s_cmp_lt_u32 s2, 56
    s_cbranch_scc1 L_noa2
    s_cmp_ge_u32 s2, 168
    s_cbranch_scc1 L_noa2
    s_cmp_lg_u32 s%d, 0
    s_cbranch_scc1 L_noa2
    v_mov_b32 v209, 1
    v_mov_b32 v208, 0
    v_cmp_eq_u32 vcc, 0, v%d
    s_and_saveexec_b64 s[62:63], vcc
    buffer_atomic_add v209, v208, s[88:91], 0 offen offset:64 sc1
    s_mov_b64 exec, s[62:63]
L_noa2:
""" % (S_W, L))
    stamp(p, o, 'modbar')
    if o.pf and not o.pf_kv_early:
        p('buffer_load_dword v254, v241, s[92:95], 0 offen'); vm.add('pf')
    MVA = 222; HA = 223
    p('v_lshlrev_b32 v%d, 5, v201' % MVA)
    p('v_add_u32 v%d, %d, v%d' % (MVA, MV_OFF, MVA))
    p('s_mul_i32 s60, s%d, 14336' % S_W)
    p('v_lshlrev_b32 v%d, 4, v%d' % (HA, L))
    p('v_add_u32 v%d, s60, v%d' % (HA, HA))
    q = Prog()
    TA = [16, 32, 168, 184] if getattr(o, 'mvdeep', 0) == 0 else [16, 32, 168, 184, 224, 240]
    NT = len(TA)
    def mvread(ks):
        t = TA[ks % NT]
        q('ds_read_b128 %s, v%d offset:%d' % (vr(t, 4), MVA, ks * 128))
        q('ds_read_b128 %s, v%d offset:%d' % (vr(t + 4, 4), MVA, ks * 128 + 16))
        q('ds_read_b128 %s, v%d offset:%d' % (vr(t + 8, 4), MVA, 1792 + ks * 128))
        q('ds_read_b128 %s, v%d offset:%d' % (vr(t + 12, 4), MVA, 1792 + ks * 128 + 16))
    for ks in range(NT - 1): mvread(ks)
    for ks in range(14):
        if ks + NT - 1 < 14: mvread(ks + NT - 1)
        t = TA[ks % NT]
        for j in range(4):
            q('v_pk_fma_f32 %s, %s, %s, %s' % (vr(t + 2 * j, 2), vr(XC + 8 * ks + 2 * j, 2), vr(t + 8 + 2 * j, 2), vr(t + 2 * j, 2)))
        hr = 4 * (ks % 4)
        for j in range(4):
            q('v_cvt_pk_bf16_f32 v%d, v%d, v%d' % (hr + j, t + 2 * j, t + 2 * j + 1))
        q('ds_write_b128 v%d, %s offset:%d' % (HA, vr(hr, 4), H_OFF + ks * 1024))
    w, _ = insert_waits(q.ins)
    li = 0
    cnt = 0
    for ins_ in w:
        p.ins.append(ins_)
        cnt += 1
        if cnt % 9 == 0 and li < len(late):
            while li < len(late):
                d = late[li]; li += 1
                if isinstance(d, tuple):
                    p(d[0]); vm.add(d[1]); break
                p(d)
                if 'm0' in d: p('s_nop 0')
    while li < len(late):
        d = late[li]; li += 1
        if isinstance(d, tuple): p(d[0]); vm.add(d[1])
        else:
            p(d)
            if 'm0' in d: p('s_nop 0')
    p('s_waitcnt lgkmcnt(0)')
    p('s_barrier')
    stamp(p, o, 'hbar')
    p('v_lshlrev_b32 v%d, 4, v%d' % (203 if HFLY else HA, L))
    for st in range(14 if not HFLY else 0):
        for qt in range(4):
            f = qt * 14 + st
            p('ds_read_b128 %s, v%d offset:%d' % (ar(4 * f, 4), HA, H_OFF + f * 1024))
    VA = 232
    p("""
    v_bfe_u32 v206, v%d, 2, 2          ; r
    v_and_b32 v207, 1, v201            ; kq&1
    v_lshl_add_u32 v207, v207, 2, v206 ; f = r + 4*(kq&1)
    v_lshlrev_b32 v208, 11, v201       ; 2*kq*1024
    v_lshl_add_u32 v208, v206, 8, v208 ; + r*256
    v_and_b32 v209, 3, v%d             ; c
    v_lshl_add_u32 v208, v209, 3, v208 ; + c*8
    v_add_u32 v208, s%d, v208          ; + w*8192
""" % (L, L, S_QD2))
    for T in range(8):
        p('v_xor_b32 v209, %d, v207' % T)
        p('v_lshl_add_u32 v%d, v209, 5, v208' % (VA + T))
    if not HFLY:
        p('s_waitcnt lgkmcnt(0)')
        p('s_barrier')
    stamp(p, o, 'ln_done')
    return p, vm, VQ, VA

def qproj(o, vm, VQ, VA):
    p = Prog()
    N = 14 * 32
    sc = [[] for _ in range(N)]; mem = [[] for _ in range(N)]; val = [[] for _ in range(N)]
    def aread(n):
        st, T = n // 8, n % 8
        r = FR + 4 * (n % 4)
        off = qslot(st)
        return st, T, r, off
    reads = []
    for n in range(14 * 8):
        st, T, r, off = aread(n)
        reads.append(['ds_read_b64_tr_b16 %s, v%d offset:%d' % (vr(r, 2), VA + T, 0),
                      'ds_read_b64_tr_b16 %s, v%d offset:%d' % (vr(r + 2, 2), VA + T, 1024)])
    pre = Prog()
    for T in range(8):
        pre('v_add_u32 v%d, %d, v%d' % (VA + T, qslot(0), VA + T))
    def bset(st, qt):
        if not HFLY: return (qt * 14 + st) * 4
        return (32 if st == 13 else 16 * (st % 2)) + 4 * qt
    def bread(st, qt):
        return 'ds_read_b128 %s, v203 offset:%d' % (ar(bset(st, qt), 4), H_OFF + (qt * 14 + st) * 1024)
    if HFLY:
        for qt in range(4): pre(bread(0, qt))
        for st in range(12):
            for qt in range(4): mem[32 * st + 5 + 4 * qt].append(bread(st + 1, qt))
        for qt in range(4): mem[32 * 11 + 3 + 4 * qt].append(bread(13, qt))
    pre(vm.wait('wq0'))
    for n in range(3):
        for s in reads[n]: pre(s)
    for n in range(14 * 8):
        st, T = n // 8, n % 8
        g = 4 * (n - 3)
        if n >= 3:
            mem[g] += reads[n]
        if st + 1 < 14:
            d = qslot(st + 1) - qslot(st)
            upd = 'v_add_u32 v%d, %s, v%d' % (VA + T, ('0x%x' % (d & 0xffffffff)), VA + T)
            if n >= 3: val[g + 1].append(upd)
            else: val[n + 1].append(upd)
    for st in range(14):
        base = st * 32
        lst = None
        if (not HFLY and st <= 10) or (HFLY and 1 <= st <= 11):
            lst = wq_dma(st + (2 if HFLY else 3), vm, VQ)
            post = ['v_add_u32 v%d, 0x40000, v%d' % (VQ[0], VQ[0]), 'v_add_u32 v%d, 0x40000, v%d' % (VQ[1], VQ[1])]
        elif st >= 12 and not o.kdma_late:
            lst = [(s if s.startswith('s_') else (s, 'k%d' % (st - 12))) for s in dma(o, st - 12, 0, True, False)]
            post = ['v_add_u32 v%d, 0x8000, v%d' % (VOFF, VOFF)]
        if lst:
            gi = 0
            gaps = [base + 2 + 4 * i for i in range(8)]
            for s in lst:
                if isinstance(s, tuple):
                    mem[gaps[gi]].append(s); gi += 1
                else:
                    sc[gaps[gi] - 1].append(s)
            for i, s in enumerate(post):
                val[base + 31].append(s)
    post_cvt = []
    for T in range(8):
        for qt in range(4):
            g = 13 * 32 + T * 4 + qt + 7
            a_ = (T * 4 + qt) * 4; t_ = 128 + 2 * (T * 4 + qt)
            cv = ['v_cvt_pk_bf16_f32 v%d, v%d, v%d' % (t_, a_, a_ + 1), 'v_cvt_pk_bf16_f32 v%d, v%d, v%d' % (t_ + 1, a_ + 2, a_ + 3)]
            placed = False
            if o.qcvt:
                for gg in (g, g + 1, g + 2):
                    if gg < N and len(mem[gg]) == 0 and not val[gg]:
                        val[gg] += cv; placed = True; break
            if not placed: post_cvt += cv
    p.extend(pre)
    for gidx in range(N):
        st, rem = gidx // 32, gidx % 32
        T, qt = rem // 4, rem % 4
        n = st * 8 + T
        acc = (T * 4 + qt) * 4
        c = '0' if st == 0 else vr(acc, 4)
        m = 'v_mfma_f32_16x16x32_bf16 %s, %s, %s, %s' % (vr(acc, 4), vr(FR + 4 * (n % 4), 4), ar(bset(st, qt), 4), c)
        p(m)
        if gidx + 1 < N:
            st2, rem2 = (gidx + 1) // 32, (gidx + 1) % 32
            n2 = st2 * 8 + rem2 // 4
            if HFLY and rem2 < 4:
                p('.need v_mfma_f32_16x16x32_bf16 v[0:3], %s, %s, 0' % (vr(FR + 4 * (n2 % 4), 4), ar(bset(st2, rem2), 4)))
            elif rem2 % 4 == 0:
                p('.need v_mfma_f32_16x16x32_bf16 v[0:3], %s, v[0:3], 0' % vr(FR + 4 * (n2 % 4), 4))
        if rem == 20 and st + 1 < 14:
            p(vm.wait('wq%d' % (st + 1)))
        if st == 11 and rem == 31 and not o.kdma_late:
            if HFLY: p('s_waitcnt lgkmcnt(6)')
            p('s_barrier')
        for s in sc[gidx]: p(s)
        for s in mem[gidx]:
            if isinstance(s, tuple):
                p(s[0]); vm.add(s[1])
            else: p(s)
        for s in val[gidx]: p(s)
    p('s_nop 7')
    for x in post_cvt: p(x)
    return p

def kv_addresses(o):
    p = Prog()
    L = VLANE
    p('''
    s_mul_i32 s61, s%d, %d
    s_lshl_b32 s62, s%d, 14
    s_lshl_b32 s63, s%d, 13
    s_add_u32 s62, s62, s63
    v_lshlrev_b32 v%d, 4, v%d
    v_add_u32 v%d, s62, v%d
''' % (S_S, HALF, S_S, S_QH, VOFF, L, VOFF, VOFF))
    p('''
    v_and_b32 v240, 7, v%d
    v_mul_u32_u24 v240, %d, v240
    v_bfe_u32 v241, v%d, 3, 1
    v_lshlrev_b32 v241, 9, v241
    v_add_u32 v240, v240, v241
    v_lshrrev_b32 v241, 4, v%d
    v_lshlrev_b32 v241, 4, v241
    v_add_u32 v240, v240, v241
    v_add_u32 v%d, s61, v240
    v_lshrrev_b32 v240, 2, v%d
    v_and_b32 v241, 7, v240
    v_mul_u32_u24 v241, %d, v241
    v_lshrrev_b32 v240, 3, v240
    v_lshlrev_b32 v240, 9, v240
    v_add_u32 v240, v240, v241
    v_and_b32 v241, 3, v%d
    v_lshlrev_b32 v241, 3, v241
    v_add_u32 v240, v240, v241
    v_add_u32 v240, s61, v240
    v_add_u32 v%d, %d, v240
''' % (L, BLK, L, L, VK, L, BLK, L, VV, VBASE))
    return p

def qexchange(o, vm):
    p = Prog()
    L = VLANE
    p('''
    v_and_b32 v200, 15, v%d
    v_lshrrev_b32 v201, 4, v%d
    v_mul_u32_u24 v202, 1040, v200
    v_lshl_add_u32 v202, v201, 3, v202
    s_lshl_b32 s60, s%d, 8
    s_add_u32 s60, s60, %d
    v_add_u32 v202, s60, v202
    s_mov_b32 s61, 0x%x
''' % (L, L, S_W, QX, 0x3db8aa3b))
    p('s_barrier')
    if o.kdma_late:
        for kb in range(2):
            for s_ in dma(o, kb, 0, True, False, nop=True):
                p(s_)
                if s_.startswith('buffer'): vm.add('k%d' % kb)
            p('v_add_u32 v%d, 0x8000, v%d' % (VOFF, VOFF))
    q = Prog()
    for T in range(8):
        for qt in range(4):
            q('ds_write_b64 v202, %s offset:%d' % (vr(128 + 2 * (T * 4 + qt), 2), qt * 16 * 1040 + T * 32))
    p.extend(q)
    p('s_waitcnt lgkmcnt(0)')
    p('s_barrier')
    p('''
    s_mul_i32 s60, s%d, %d
    s_add_u32 s60, s60, %d
    v_mul_u32_u24 v202, 1040, v200
    v_lshl_add_u32 v202, v201, 4, v202
    v_add_u32 v202, s60, v202
''' % (S_QH, 32 * 1040, QX))
    for h in range(2):
        for qt in range(2):
            b = 2 * h + qt
            for ks in range(8):
                p('ds_read_b128 %s, v202 offset:%d' % (vr(32 * b + 4 * ks, 4), qt * 16 * 1040 + h * 512 + ks * 64))
    p(vm.wait('k0' if o.kdma_late else 'k1'))
    p('s_waitcnt lgkmcnt(0)')
    p('s_barrier')
    return p

def attn_prologue(o):
    p = Prog()
    p('v_add_u32 v%d, 0xffff0000, v%d' % (VOFF, VOFF))
    p('s_nop 0')
    for s in dma(o, 0, 0, False, True, nop=True): p(s)
    p('v_add_u32 v%d, 0x8000, v%d' % (VOFF, VOFF))
    p('''
    s_add_u32 s8, s8, 0x8000
    s_addc_u32 s9, s9, 0
    s_sub_u32 s10, s10, 0x8000
    s_add_u32 s12, s12, 0x8000
    s_addc_u32 s13, s13, 0
    s_sub_u32 s14, s14, 0x8000
''')
    q = Prog()
    qk = qk_list(o, czero=True)
    for n in range(2):
        for s in kread(o, n, 0): q(s)
    for sl in range(64):
        if sl % 8 == 0 and sl // 8 + 1 < 8:
            for s in kread(o, 2 * (sl // 8 + 1), 0) + kread(o, 2 * (sl // 8 + 1) + 1, 0): q(s)
        q(qk[sl])
    w, _ = insert_waits(q.ins)
    p.extend(w)
    p('s_nop 7')
    t = TMP
    for b in range(4):
        max8(p, t + b, b)
    for b in range(4):
        xreduce(p, t + b, t + 4, 'v_max_f32')
    for b in range(4):
        for r in range(4):
            p('v_sub_f32 v%d, 0, v%d' % (NEGM + 4 * b + r, t + b))
        for a in range(2):
            for r in range(4):
                p('v_sub_f32 v%d, v%d, v%d' % (S(a, b) + r, S(a, b) + r, t + b))
    for i in range(4):
        p('v_mov_b32 v%d, 0' % (LREG[1] + i))
    for s in exps(o, 0, 0, 1, 0): p(s)
    for s in exps(o, 1, 0, 1, 0): p(s)
    p('s_waitcnt vmcnt(0) lgkmcnt(0)')
    p('s_barrier')
    for n in range(2):
        for s in kread(o, n, 1): p(s)
    p('s_waitcnt lgkmcnt(0)')
    return p

XR0E, XRSE, STE, WO0E = 33792, 31744, 160768, 4096
MN, LL = 240, 244
def epi_setup(o):
    L = VLANE
    x = []
    for b in range(4): x.append('v_mov_b32 v%d, v%d' % (MN + b, NEGM + 4 * b))
    for b in range(4): x.append('v_mov_b32 v%d, v%d' % (LL + b, LREG[1] + b))
    for sw in ('v_permlane16_swap_b32', 'v_permlane32_swap_b32'):
        for b in range(4): x.append('v_mov_b32 v%d, v%d' % (248 + b, LL + b))
        for b in range(4): x.append('%s v%d, v%d' % (sw, LL + b, 248 + b))
        for b in range(4): x.append('v_add_f32 v%d, v%d, v%d' % (LL + b, LL + b, 248 + b))
    if o.esend:
        a_ = ['v_and_b32 v203, 15, v%d' % L, 'v_lshlrev_b32 v203, 5, v203',
              's_lshl_b32 s63, s%d, 9' % S_W, 's_add_u32 s63, s63, %d' % STE, 'v_add_u32 v202, s63, v203',
              'v_lshlrev_b32 v199, 4, v%d' % L,
              's_xor_b32 s64, s%d, 2' % S_W, 's_lshl_b32 s65, s64, 9', 's_add_u32 s65, s65, %d' % STE, 'v_add_u32 v203, s65, v203',
              's_mul_i32 s66, s64, %d' % XRSE, 's_add_u32 s66, s66, %d' % XR0E, 'v_add_u32 v201, s66, v199',
              's_mul_i32 s67, s%d, %d' % (S_W, XRSE), 's_add_u32 s67, s67, %d' % XR0E, 'v_add_u32 v200, s67, v199',
              's_lshl_b32 s63, s%d, 10' % S_W, 'v_add_u32 v198, s63, v199',
              's_lshl_b32 s64, s64, 10', 'v_add_u32 v199, s64, v199']
        return x[:8], a_, x[8:]
    x += ['v_and_b32 v203, 15, v%d' % L, 'v_lshlrev_b32 v203, 5, v203',
          's_lshl_b32 s63, s%d, 9' % S_W, 's_add_u32 s63, s63, %d' % ST, 'v_add_u32 v202, s63, v203',
          'v_lshlrev_b32 v200, 4, v%d' % L,
          's_xor_b32 s64, s%d, 2' % S_W, 's_lshl_b32 s65, s64, 9', 's_add_u32 s65, s65, %d' % ST, 'v_add_u32 v203, s65, v203',
          's_lshl_b32 s64, s64, 15', 'v_add_u32 v201, s64, v200',
          's_lshl_b32 s66, s%d, 15' % S_W, 'v_add_u32 v200, s66, v200']
    return x

def last_iteration(o, s_):
    p = Prog()
    own = s_; oth = 1 - s_
    N = 128
    sc = [[] for _ in range(N + 8)]; mem = [[] for _ in range(N + 8)]; val = [[] for _ in range(N + 8)]
    p('v_add_u32 v%d, 0x%x, v%d' % (VV, (-(VBASE + KBUF)) & 0xffffffff, VV))
    for dt in range(2):
        for x in vread(o, dt, 1): p(x)
    for dt in range(2, 16):
        sl = 64 + (dt - 2) * 2 if dt < 4 else 64 + 4 * (dt - 4) + 4
        mem[sl] += vread(o, dt, 1)
    cp, adr, red = epi_setup(o)
    def cost(g): return 4 * len(mem[g]) + 4 * len(val[g])
    g = 64
    def place(x, g0, lim=8):
        g_ = g0
        while cost(g_) + 4 > lim: g_ += 1
        val[g_].append(x); return g_
    for x in cp + adr:
        if x.startswith('s_'): sc[g].append(x)
        else: g = place(x, g)
    gadr = g + 1
    for dt in range(16):
        for qt in range(2):
            if (dt, qt) != (15, 1):
                g0 = max(64 + 4 * dt + 2 * oth + qt + 6, gadr)
                while len(mem[g0]) and g0 < N + 6: g0 += 1
                mem[g0].append('ds_write_b128 v200, %s offset:%d' % (ar((dt * 4 + 2 * oth + qt) * 4, 4), (dt * 2 + qt) * 1024))
    g = gadr
    for x in red: g = place(x, g, 12)
    for dt in range(16):
        for qt in range(2):
            g0 = max(64 + 4 * dt + 2 * own + qt + 6, g)
            for r in range(4):
                g0 = place('v_accvgpr_read_b32 v%d, a%d' % ((dt * 2 + qt) * 4 + r, (dt * 4 + 2 * own + qt) * 4 + r), min(g0, N + 6), 16)
            g = g0
    pv = A.pv_list(o, 1)
    for sl in range(64, N):
        p(pv[sl - 64])
        if sl + 1 < N: p('.need ' + pv[sl + 1 - 64])
        for x in sc[sl]: p(x)
        for x in mem[sl]: p(x)
        for x in val[sl]: p(x)
    p('s_nop 7')
    for sl in range(N, N + 8):
        for x in sc[sl] + mem[sl] + val[sl]: p(x)
    return p

def attn_loop(o):
    p = Prog()
    first = A.iteration(o, 0, 'f', first_pv=True)
    w0, st0 = insert_waits(first.ins)
    p.extend(w0)
    p('s_mov_b32 s%d, 14' % S_CNT)
    p('.p2align 6')
    p('L_loop:')
    body = Prog()
    body.extend(A.iteration(o, 1, 'a'))
    body.extend(A.iteration(o, 0, 'b'))
    w1, st1 = insert_waits(body.ins, st0)
    w, st2 = insert_waits(body.ins, st1)
    assert st2 == st1 and [i.text for i in w] == [i.text for i in w1], 'not steady'
    loop_ins = w
    p.extend(w)
    p('s_sub_u32 s%d, s%d, 1' % (S_CNT, S_CNT))
    p('s_cmp_lg_u32 s%d, 0' % S_CNT)
    p('s_cbranch_scc1 L_loop')
    tail = Prog()
    ex = []
    if o.pf:
        ex = [(71, 'buffer_load_dword v255, v242, s[48:51], 0 offen')]
    tail.extend(A.iteration(o, 1, 'c', extra_mem=ex))
    ex = []
    if o.pf and o.pfmoe:
        ex = [(71, 'global_load_dword v255, v243, s[96:97]'), (75, 'global_load_dword v255, v243, s[98:99]'), (79, 'global_load_dword v255, v243, s[100:101]')]
    if o.esend: o._vdst = 0
    tail.extend(A.iteration(o, 0, 'd', do_dma_k=False, next_k=False, pf_ok=False, extra_mem=ex))
    o._vdst = None
    tail('s_waitcnt vmcnt(%d) lgkmcnt(0)' % len(ex))
    tail('s_barrier')
    if not o.esend:
        tail.extend(A.iteration(o, 1, 'e', do_qk=False, do_dma_k=False, do_dma_v=False, next_k=False, extra_valu=epi_setup(o)))
    w, stt = insert_waits(tail.ins, st1)
    p.extend(w)
    if o.esend:
        p('s_cmp_eq_u32 s%d, 0' % S_S)
        p('s_cbranch_scc0 L_last1')
        w0_, _ = insert_waits(last_iteration(o, 0).ins); p.extend(w0_)
        p('s_branch L_lastdone')
        p('L_last1:')
        w1_, _ = insert_waits(last_iteration(o, 1).ins); p.extend(w1_)
        p('L_lastdone:')
        w = w + w0_
    return p, w0, loop_ins, w

def combine(o, s, shadow):
    p = Prog()
    own = s; oth = 1 - s
    wr = []; rd_ = []
    for dt in range(16):
        for qt in range(2):
            wr.append('ds_write_b128 v200, %s offset:%d' % (ar((dt * 4 + 2 * oth + qt) * 4, 4), (dt * 2 + qt) * 1024))
            rd_.append(['v_accvgpr_read_b32 v%d, a%d' % ((dt * 2 + qt) * 4 + r, (dt * 4 + 2 * own + qt) * 4 + r) for r in range(4)])
    if o.esend:
        p('ds_write_b128 v198, %s' % ar((15 * 4 + 2 * oth + 1) * 4, 4))
    elif getattr(o, 'e1mix', 1):
        sh_ = list(shadow.ins); shadow = Prog()
        per = (len(sh_) + 31) // 32
        for k in range(32):
            p(wr[k])
            for x in rd_[k]: p(x)
            chunk = sh_[k * per:(k + 1) * per]
            p.extend(chunk)
    else:
        for x in wr: p(x)
        for g_ in rd_:
            for x in g_: p(x)
    p.extend(shadow)
    p('s_waitcnt lgkmcnt(0)')
    p('s_barrier')
    stamp(p, o, 'e1bar')
    q = Prog()
    q('ds_read_b128 v[204:207], v203')
    q('ds_read_b128 v[208:211], v203 offset:16')
    order = [(2 * i + y, qt) for i in range(8) for qt in range(2) for y in range(2)]
    RING = 128
    def rd(k):
        dt, qt = order[k]
        if o.esend and (dt, qt) == (15, 1): q('ds_read_b128 %s, v199' % vr(RING + 4 * (k % 8), 4))
        else: q('ds_read_b128 %s, v201 offset:%d' % (vr(RING + 4 * (k % 8), 4), (dt * 2 + qt) * 1024))
    for k in range(8): rd(k)
    AL = 212; BE = 216
    for qt in range(2):
        b = 2 * own + qt
        mo = MN + b; mp = 204 + b; lo = LL + b; lp = 208 + b
        t = 220
        q('v_min_f32 v%d, v%d, v%d' % (t, mo, mp))
        q('v_sub_f32 v%d, v%d, v%d' % (t + 1, t, mo))
        q('v_sub_f32 v%d, v%d, v%d' % (t + 2, t, mp))
        q('v_exp_f32 v%d, v%d' % (t + 1, t + 1))
        q('v_exp_f32 v%d, v%d' % (t + 2, t + 2))
        q('s_nop 0')
        q('v_mul_f32 v%d, v%d, v%d' % (t + 3, t + 1, lo))
        q('v_fmac_f32 v%d, v%d, v%d' % (t + 3, t + 2, lp))
        q('v_rcp_f32 v%d, v%d' % (t + 3, t + 3))
        q('s_nop 0')
        q('v_mul_f32 v%d, v%d, v%d' % (AL + 2 * qt, t + 1, t + 3))
        q('v_mul_f32 v%d, v%d, v%d' % (BE + 2 * qt, t + 2, t + 3))
        q('v_mov_b32 v%d, v%d' % (AL + 2 * qt + 1, AL + 2 * qt))
        q('v_mov_b32 v%d, v%d' % (BE + 2 * qt + 1, BE + 2 * qt))
    for k in range(32):
        dt, qt = order[k]
        i, y = dt // 2, dt % 2
        rv = RING + 4 * (k % 8)
        ow = (dt * 2 + qt) * 4
        q('v_pk_mul_f32 %s, %s, %s' % (vr(rv, 2), vr(rv, 2), vr(BE + 2 * qt, 2)))
        q('v_pk_mul_f32 %s, %s, %s' % (vr(rv + 2, 2), vr(rv + 2, 2), vr(BE + 2 * qt, 2)))
        q('v_pk_fma_f32 %s, %s, %s, %s' % (vr(ow, 2), vr(ow, 2), vr(AL + 2 * qt, 2), vr(rv, 2)))
        q('v_pk_fma_f32 %s, %s, %s, %s' % (vr(ow + 2, 2), vr(ow + 2, 2), vr(AL + 2 * qt, 2), vr(rv + 2, 2)))
        if k + 8 < 32: rd(k + 8)
        fr = 160 + 4 * ((i * 2 + qt) % 8)
        q('v_cvt_pk_bf16_f32 v%d, v%d, v%d' % (fr + 2 * y, ow, ow + 1))
        q('v_cvt_pk_bf16_f32 v%d, v%d, v%d' % (fr + 2 * y + 1, ow + 2, ow + 3))
        if y == 1:
            q('ds_write_b128 v201, %s offset:%d' % (vr(fr, 4), (i * 2 + qt) * 1024))
    w, _ = insert_waits(q.ins)
    p.extend(w)
    return p

def wo_dma(step, slot, VW):
    out = []
    for jj in range(7):
        out.append('s_add_u32 m0, s%d, %d' % (S_T0 + slot, jj * 1024))
        out.append(('buffer_load_dwordx4 v%d, s[%d:%d], s%d offen lds' % (VW + jj, S_WO, S_WO + 3, S_WST), 'wo%d' % step))
    return out

def epilogue(o):
    p = Prog()
    L = VLANE
    vm = VmTracker()
    VW = 232
    p('s_nop 7')
    p('''
    s_barrier
    ds_write_b128 v202, v[%d:%d]
    ds_write_b128 v202, v[%d:%d] offset:16
''' % (MN, MN + 3, LL, LL + 3))
    sh = Prog()
    sh('s_mul_i32 s60, s%d, 224' % S_W)
    sh('s_mov_b32 s61, 0x124925')
    for jj in range(7):
        sh('v_add_u32 v192, %d, v%d' % (64 * jj, L))
        sh('v_mul_u32_u24 v193, s61, v192')
        sh('v_lshrrev_b32 v193, 24, v193')
        sh('v_mul_u32_u24 v194, 14, v193')
        sh('v_sub_u32 v194, v192, v194')
        sh('v_mul_u32_u24 v193, 896, v193')
        sh('v_lshl_add_u32 v193, v194, 4, v193')
        sh('v_add_u32 v%d, s60, v193' % (VW + jj))
    sh('''
    s_mul_i32 s60, s%d, 7168
    s_add_u32 s60, s60, %d
    s_mul_i32 s61, s%d, %d
    s_add_u32 s61, s61, %d
    s_add_u32 s62, s61, 7168
    s_mov_b32 s%d, 0
''' % (S_W, WO0E if o.esend else WO0, S_W, XRSE if o.esend else 32768, (XR0E if o.esend else 0) + 16384, S_WST))
    emit_dma(sh, wo_dma(0, 0, VW), vm)
    sh('s_mov_b32 s%d, 28672' % S_WST)
    AW = 224
    BW = 228
    sh('''
    v_lshrrev_b32 v192, 2, v%d          ; 4kq + r
    v_mul_u32_u24 v192, 224, v192
    v_and_b32 v193, 3, v%d
    v_lshl_add_u32 v192, v193, 3, v192
    v_add_u32 v%d, s60, v192
    v_add_u32 v%d, s61, v192
    v_add_u32 v%d, s62, v192
    v_lshlrev_b32 v192, 4, v%d
''' % (L, L, AW, AW + 1, AW + 2, L))
    for r in range(4):
        sh('v_add_u32 v%d, %d, v192' % (BW + r, (XR0E + r * XRSE) if o.esend else r * 32768))
    p('s_cmp_eq_u32 s%d, 0' % S_S)
    p('s_cbranch_scc0 L_comb1')
    c0 = combine(o, 0, sh); c1 = combine(o, 1, sh)
    p.extend(c0)
    p('s_branch L_combdone')
    p('L_comb1:')
    p.extend(c1)
    p('L_combdone:')
    stamp(p, o, 'comb')
    if o.fuse_k2:
        p('s_load_dwordx2 s[4:5], s[0:1], 48')
        p('s_load_dwordx2 s[6:7], s[0:1], 96')
        if o.one:
            p('s_load_dwordx4 s[28:31], s[0:1], 56')
            p('s_load_dwordx2 s[32:33], s[0:1], 72')
        p('v_mov_b32 v250, 0')
        p('buffer_load_dword v251, v250, s[88:91], 0 offen offset:64 sc1'); vm.add('chk')
    p('s_waitcnt lgkmcnt(0)')
    p('s_barrier')
    stamp(p, o, 'e3bar')
    emit_dma(p, wo_dma(1, 1, VW), vm)
    p('s_mov_b32 s%d, %d' % (S_WST, 2 * 28672))
    def bread(ks, qtile):
        h, i = ks >> 3, ks & 7
        qh, qt = qtile >> 1, qtile & 1
        reg = qh + 2 * (1 - h)
        return 'ds_read_b128 %s, v%d offset:%d' % (vr(112 + 16 * (ks % 2) + 4 * qtile, 4), BW + reg, (i * 2 + qt) * 1024)
    def aread(n):
        ks, T = n // 7, n % 7
        r = FR + 4 * (n % 4)
        return ['ds_read_b64_tr_b16 %s, v%d offset:%d' % (vr(r + 2 * a, 2), AW + ks % 3, a * 3584 + T * 32) for a in range(2)]
    N = 16 * 28
    sc = [[] for _ in range(N)]; mem = [[] for _ in range(N)]; val = [[] for _ in range(N)]
    pre = Prog()
    pre(vm.wait('wo0'))
    for qtile in range(4): pre(bread(0, qtile))
    for n in range(3):
        for s in aread(n): pre(s)
    for n in range(3, 16 * 7):
        mem[4 * (n - 3)] += aread(n)
    for ks in range(15):
        for qtile in range(4):
            mem[28 * ks + 4 * qtile + 5 + 8].append(bread(ks + 1, qtile))
    for ks in range(14):
        lst = wo_dma(ks + 2, (ks + 2) % 3, VW)
        gaps = [28 * ks + 2 + 4 * i for i in range(7)]
        gi = 0
        for s in lst:
            if isinstance(s, tuple):
                mem[gaps[gi]].append(s); gi += 1
            else:
                sc[gaps[gi] - 1].append(s)
        sc[28 * ks + 27].append('s_add_u32 s%d, s%d, 28672' % (S_WST, S_WST))
    import ksmall
    hs = Prog(); hv = []
    hs('''
    s_lshl_b32 s56, s%d, 6
    s_lshl_b32 s57, s%d, 3
    s_add_u32 s56, s56, s57
    s_lshl_b32 s58, s%d, 1
    s_add_u32 s56, s56, s58
    s_add_u32 s57, s57, s58
    s_mul_i32 s57, s57, 896
    s_mul_i32 s58, s56, 896
''' % (S_QB, S_G, S_W))
    ksmall.srd(hs, 8, 24, 8 * 2048 * 896, str(WS_PART))
    ksmall.srd(hs, 12, 4, 896)
    ksmall.srd(hs, 16, 6, 2048 * 896)
    ksmall.srd(hs, 20, 24, 2048 * 896, str(WS_H2))
    ksmall.srd(hs, 96, 24, 8192, str(WS_R))
    hs('s_lshl_b32 s63, s%d, 7' % S_QB)
    hs('s_add_u32 s63, s63, %d' % WS_CNT)
    ksmall.srd(hs, 52, 24, 128, 's63')
    hs('''
    s_lshl_b32 s63, s%d, 11
    s_lshl_b32 s64, s%d, 6
    s_add_u32 s63, s63, s64
    s_mul_i32 s63, s63, 896
    s_add_u32 s63, s63, %d
    s_add_u32 s68, s24, s63
    s_addc_u32 s69, s25, 0
    s_mov_b32 s70, 57344
    s_mov_b32 s71, 0x20000
    s_mul_i32 s63, s%d, 224
    s_mul_i32 s64, s%d, %d
    s_mul_i32 s66, s%d, %d
    s_lshl_b32 s67, s%d, 10
''' % (S_G, S_QB, WS_PART, S_W, S_W, 16 * 912, S_W, 16 * 896, S_W))
    chunks = []
    for ins_ in hs.ins:
        if ins_.op == 's_addc_u32': chunks[-1].append(ins_.text)
        else: chunks.append([ins_.text])
    g = 28 * 12 + 1
    for ch in chunks:
        while len(sc[g]) + len(ch) > 3: g += 1
        sc[g] += ch
    assert g < 28 * 13
    hv = [
        'v_lshlrev_b32 v198, 4, v%d' % L, 'v_lshlrev_b32 v199, 4, v%d' % L, 'v_mov_b32 v194, 0x40000000',
        'v_cmp_gt_u32 vcc, 56, v%d' % L, 'v_mov_b32 v196, 0x00003f80', 'v_mov_b32 v197, 0x3f800000',
        'v_cndmask_b32 v198, v194, v198, vcc', 'v_cndmask_b32 v193, 0, 1.0, vcc',
        'v_add_u32 v192, s58, v198', 'v_add_u32 v195, s57, v198',
        'v_add_u32 v199, s67, v199', 'v_add_u32 v205, %d, v199' % WS_MODP2,
        'v_and_b32 v200, 15, v%d' % L, 'v_mul_u32_u24 v200, 912, v200', 'v_lshrrev_b32 v201, 4, v%d' % L,
        'v_lshl_add_u32 v200, v201, 3, v200', 'v_add_u32 v200, s63, v200',
        'v_lshlrev_b32 v201, 4, v%d' % L, 'v_add_u32 v202, s64, v201', 'v_add_u32 v203, s66, v201',
        'v_cndmask_b32 v203, v194, v203, vcc']
    g = 28 * 13 + 1
    for x in hv:
        while len(mem[g]) or len(val[g]) >= 2: g += 1
        val[g].append(x)
    a2g = 28 * 14 + 17
    assert g < a2g
    sc[a2g].append('.a2check')
    lds_ = [('buffer_load_dwordx4 %s, v195, s[40:43], 0 offen offset:%d' % (vr(144 + 4 * rr, 4), rr * 896)) for rr in range(2)]
    for k_ in range(4):
        for i_ in range(2):
            lds_.append(('s_mov_b32 s59, %d' % (k_ * 7168 + i_ * 4096), 'buffer_load_dwordx4 %s, v205, s[24:27], s59 offen sc1' % vr(160 + 8 * k_ + 4 * i_, 4)))
    lds_.append('buffer_load_dwordx4 v[152:155], v198, s[12:15], 0 offen')
    g = a2g + 1
    for x in lds_:
        while len(mem[g]): g += 1
        if isinstance(x, tuple):
            sc[g].append(x[0]); mem[g].append((x[1], 'tail'))
        else: mem[g].append((x, 'tail'))
        g += 2
    assert g < N + 2, g
    body = Prog()
    body.extend(pre)
    for gidx in range(N):
        ks, rem = gidx // 28, gidx % 28
        T, qt = rem // 4, rem % 4
        n = ks * 7 + T
        acc = (T * 4 + qt) * 4
        c = '0' if ks == 0 else vr(acc, 4)
        body('v_mfma_f32_16x16x32_bf16 %s, %s, %s, %s' % (vr(acc, 4), vr(FR + 4 * (n % 4), 4), vr(112 + 16 * (ks % 2) + 4 * qt, 4), c))
        if gidx + 1 < N:
            ks2, rem2 = (gidx + 1) // 28, (gidx + 1) % 28
            n2 = ks2 * 7 + rem2 // 4
            body('.need v_mfma_f32_16x16x32_bf16 v[0:3], %s, %s, 0' % (vr(FR + 4 * (n2 % 4), 4), vr(112 + 16 * (ks2 % 2) + 4 * (rem2 % 4), 4)))
        if rem == 16 and ks + 1 < 16:
            body(vm.wait('wo%d' % (ks + 1)))
        for s in sc[gidx]:
            if s == '.a2check':
                body('v_readfirstlane_b32 s59, v251')
                body('s_cmp_eq_u32 s59, 112')
                body('s_cbranch_scc0 L_a2rare')
                body('L_a2ok:')
            else: body(s)
        for s in mem[gidx]:
            if isinstance(s, tuple):
                body(s[0]); vm.add(s[1])
            else: body(s)
        for s in val[gidx]: body(s)
    w, _ = insert_waits(body.ins)
    p.extend(w)
    stamp(p, o, 'oproj')
    p('s_nop 7')
    p('s_barrier')
    k = 0
    for qt in range(4):
        for T in range(7):
            acc = (T * 4 + qt) * 4
            t = 112 + 2 * (k % 16); k += 1
            p('v_cvt_pk_bf16_f32 v%d, v%d, v%d' % (t, acc, acc + 1))
            p('v_cvt_pk_bf16_f32 v%d, v%d, v%d' % (t + 1, acc + 2, acc + 3))
            p('ds_write_b64 v200, %s offset:%d' % (vr(t, 2), qt * 16 * 912 + T * 32))
    p('s_waitcnt lgkmcnt(0)')
    p('s_barrier')
    q = Prog()
    for rr in range(16):
        q('ds_read_b128 %s, v202 offset:%d' % (vr(4 * rr, 4), rr * 912))
    for rr in range(16):
        if rr % 4 == 0 and rr: q('v_add_u32 v203, %d, v203' % (4 * 896))
        q('buffer_store_dwordx4 %s, v203, s[68:71], 0 offen offset:%d%s' % (vr(4 * rr, 4), (rr % 4) * 896, o.part_flags))
    w, _ = insert_waits(q.ins)
    p.extend(w)
    stamp(p, o, 'stores')
    p('s_waitcnt vmcnt(16)')
    for i_ in range(2):
        for r in range(4):
            p('v_add_f32 v%d, v%d, v%d' % (160 + 4 * i_ + r, 160 + 4 * i_ + r, 168 + 4 * i_ + r))
            p('v_add_f32 v%d, v%d, v%d' % (176 + 4 * i_ + r, 176 + 4 * i_ + r, 184 + 4 * i_ + r))
    for k_ in range(8): p('v_add_f32 v%d, v%d, v%d' % (160 + k_, 160 + k_, 176 + k_))
    for k_ in range(8): p('v_cvt_pk_bf16_f32 v%d, v%d, 0' % (160 + k_, 160 + k_))
    for k_ in range(8): p('v_lshlrev_b32 v%d, 16, v%d' % (160 + k_, 160 + k_))
    for k_ in range(8): p('v_add_f32 v%d, 1.0, v%d' % (168 + k_, 160 + k_))
    for k_ in range(8): p('v_cvt_pk_bf16_f32 v%d, v%d, 0' % (168 + k_, 168 + k_))
    for k_ in range(8): p('v_lshlrev_b32 v%d, 16, v%d' % (168 + k_, 168 + k_))
    p('v_lshrrev_b32 v242, 2, v199')
    for i_ in range(2):
        p('v_add_u32 v243, %d, v242' % ((1024 * i_ - 896) & 0xffffffff))
        p('v_cmp_gt_u32 vcc, 448, v243')
        p('s_nop 1')
        for r in range(4): p('v_cndmask_b32 v%d, v%d, v%d, vcc' % (160 + 4 * i_ + r, 160 + 4 * i_ + r, 168 + 4 * i_ + r))
    p('ds_write_b128 v199, v[160:163] offset:%d' % VEC)
    p('ds_write_b128 v199, v[164:167] offset:%d' % (VEC + 4096))
    if not o.one:
        p('s_cmp_lg_u32 s2, 0')
        p('s_cbranch_scc1 L_novecpub')
        p('s_mov_b32 s59, 3584')
        p('buffer_store_dwordx4 v[160:163], v199, s[24:27], s59 offen')
        p('s_mov_b32 s59, 7680')
        p('buffer_store_dwordx4 v[164:167], v199, s[24:27], s59 offen')
        p('L_novecpub:')
    p('''
    s_lshl_b32 s63, s%d, 3
    s_lshl_b32 s64, s%d, 1
    s_add_u32 s63, s63, s64
    s_mul_i32 s63, s63, 912
    v_min_u32 v240, 55, v%d
    v_lshlrev_b32 v241, 4, v240
    v_add_u32 v241, s63, v241
    v_lshlrev_b32 v240, 5, v240
''' % (S_G, S_W, L))
    for j in range(1, 8):
        p('s_add_u32 s%d, s%d, %d' % (72 - 72 + 76 + j if False else 59, S_G, j))
        p('s_and_b32 s59, s59, 7')
        p('s_mul_i32 s%d, s59, %d' % (24 + 0 if False else GOFF + j, 2048 * 896))
    if o.one and ksmall.MOE_EARLY:
        ksmall.moe_stage_early(p, S_W, L)
        p('s_waitcnt lgkmcnt(0)')
    else:
        p('s_waitcnt vmcnt(0) lgkmcnt(0)')
    stamp(p, o, 'drain')
    p('''
    s_barrier
    s_cmp_lg_u32 s%d, 0
    s_cbranch_scc1 L_grp_done
    v_mov_b32 v0, 1
    v_mov_b32 v1, 0
    v_cmp_eq_u32 vcc, 0, v%d
    s_and_saveexec_b64 s[60:61], vcc
    buffer_atomic_add v0, v1, s[52:55], 0 offen sc1
    s_mov_b64 exec, s[60:61]
L_grp_poll:
    buffer_load_dword v2, v1, s[52:55], 0 offen sc1
    s_waitcnt vmcnt(0)
    v_readfirstlane_b32 s59, v2
    s_cmp_eq_u32 s59, 8
    s_cbranch_scc1 L_grp_done
    s_sleep %d
    s_branch L_grp_poll
L_grp_done:
    s_barrier
''' % (S_W, L, getattr(o, 'gsleep', 2)))
    stamp(p, o, 'grp')
    for rr in range(2):
        for j in range(1, 8):
            p('buffer_load_dwordx4 %s, v192, s[8:11], s%d offen offset:%d sc1' % (vr(32 * rr + 4 * j, 4), GOFF + j, rr * 896))
    for rr in range(2):
        p('ds_read_b128 %s, v241 offset:%d' % (vr(32 * rr, 4), rr * 912))
    for k_ in range(4):
        p('ds_read_b128 %s, v240 offset:%d' % (vr(160 + 8 * k_, 4), VEC + k_ * 1792))
        p('ds_read_b128 %s, v240 offset:%d' % (vr(164 + 8 * k_, 4), VEC + k_ * 1792 + 16))
    ACC = [64, 72]
    for rr in range(2):
        for j in range(8): p('v_mov_b32 v%d, 0' % (ACC[rr] + j))
    p('v_cmp_gt_u32 vcc, 56, v%d' % L)
    p('s_waitcnt lgkmcnt(0)')
    p('s_nop 0')
    for rr in range(2):
        for r in range(4): p('v_cndmask_b32_e64 v%d, 0, v%d, vcc' % (32 * rr + r, 32 * rr + r))
    for rr in range(2):
        p('s_waitcnt vmcnt(%d)' % (7 if rr == 0 else 0))
        for g_ in range(8):
            for j in range(8):
                p('v_dot2_f32_bf16 v%d, v%d, v%d, v%d' % (ACC[rr] + j, 32 * rr + 4 * g_ + j // 2, 196 + j % 2, ACC[rr] + j))
    p('s_nop 2')
    stamp(p, o, 'k2ld')
    if not o.one:
        ksmall.k2_math(p, [0, 32], [144, 148], 160, 168, 176, 184, 152, ACC, [80, 88], 96, 192, 193, L, 194, 196, 20, 16, 96, 56, 104)
        return p
    ksmall.K2_H_FLAGS = ' sc1'; ksmall.K2_OUT_FLAGS = ' sc1'
    kr = ksmall.k2_math(p, [0, 32], [144, 148], 160, 168, 176, 184, 152, ACC, [80, 88], 96, 192, 193, L, 194, 196, 20, 16, 96, 56, 104, key_in_reg=True)
    stamp(p, o, 'k2m')
    p('''
    s_lshl_b32 s59, s%d, 3
    s_add_u32 s59, s59, %d
    v_lshl_add_u32 v104, v%d, 2, s59
    v_cmp_gt_u32 vcc, 2, v%d
    s_and_saveexec_b64 s[60:61], vcc
    ds_write_b32 v104, v%d
    s_mov_b64 exec, s[60:61]
    s_waitcnt vmcnt(0) lgkmcnt(0)
''' % (S_W, KEYL, L, L, kr))
    p('''
    s_barrier
    s_cmp_lg_u32 s%d, 0
    s_cbranch_scc1 L_key_done
    v_lshlrev_b32 v104, 2, v%d
    v_add_u32 v107, %d, v104
    ds_read_b32 v105, v107
    s_lshr_b32 s59, s56, 3
    s_lshl_b32 s59, s59, 5             ; first row of the workgroup * 4  (row0 = 8*k + 0 for wave 0)
    v_add_u32 v104, s59, v104
    v_mov_b32 v106, 0x40000000
    v_cmp_gt_u32 vcc, 8, v%d
    s_waitcnt lgkmcnt(0)
    s_nop 0
    v_cndmask_b32 v104, v106, v104, vcc
    buffer_store_dword v105, v104, s[96:99], 0 offen sc1
L_key_done:
''' % (S_W, L, KEYL, L))
    stamp(p, o, 'pub')
    p('s_cmp_ge_u32 s2, 84')
    p('s_cbranch_scc1 L_st_end_k34')
    ksmall.moe_main(p, S_W, L, VEC, lambda n: stamp(p, o, n))
    p('L_st_end_k34:')
    return p

GOFF = 43

def a2rare():
    p = Prog()
    p('''
L_a2rare:
    buffer_load_dword v251, v250, s[88:91], 0 offen offset:64 sc1
    s_waitcnt vmcnt(0)
    v_readfirstlane_b32 s59, v251
    s_cmp_eq_u32 s59, 112
    s_cbranch_scc1 L_a2ok
    s_sleep 8
    s_branch L_a2rare
''')
    return p

def expand_stamps(p, o):
    q = Prog()
    for i in p.ins:
        if i.text.startswith(';STAMP'):
            stamp(q, o, i.text.split()[1])
        elif i.text.startswith(';CODEPF'):
            if getattr(o, 'codepf', 0):
                q('''
    s_getpc_b64 s[60:61]
    s_and_b32 s60, s60, 0xffffff00
    s_lshr_b32 s62, s2, 3
    s_mul_i32 s62, s62, 24
    s_mul_i32 s63, s%d, 6
    s_add_u32 s62, s62, s63
    v_min_u32 v210, 5, v%d
    v_add_u32 v210, s62, v210
    v_lshlrev_b32 v210, 7, v210
    v_min_u32 v210, %d, v210
    global_load_dword v255, v210, s[60:61]
''' % (S_W, VLANE, getattr(o, 'codelen', 70000)))
        elif i.text.startswith(';ZEROCNT'):
            q('''
    s_cmp_lg_u32 s2, 0
    s_cbranch_scc1 L_nozero
    v_lshlrev_b32 v166, 7, v%d
    v_add_u32 v166, %d, v166
    v_mov_b32 v167, 0x40000000
    v_cmp_gt_u32 vcc, 40, v%d
    s_nop 1
    v_cndmask_b32 v166, v167, v166, vcc
    v_mov_b32 v167, 0
    buffer_store_dword v167, v166, s[24:27], 0 offen sc1
L_nozero:
''' % (VLANE, WS_CNT, VLANE))
            if o.one:
                q('''
    v_mov_b32 v156, -1
    v_mov_b32 v157, -1
    v_mov_b32 v158, -1
    v_mov_b32 v159, -1
    v_lshlrev_b32 v166, 4, v%d
    s_lshl_b32 s60, s2, 9
    s_add_u32 s60, s60, %d
    v_add_u32 v160, s60, v166
    v_mov_b32 v167, 0x40000000
    v_cmp_gt_u32 vcc, 32, v%d
    s_lshl_b32 s60, s2, 8
    s_add_u32 s60, s60, %d
    v_cndmask_b32 v160, v167, v160, vcc
    v_add_u32 v161, s60, v166
    v_cmp_gt_u32 vcc, 16, v%d
    buffer_store_dwordx4 v[156:159], v160, s[24:27], 0 offen sc1
    s_cmp_ge_u32 s2, 32
    s_cbranch_scc1 L_nokeyfill
    v_cndmask_b32 v161, v167, v161, vcc
    buffer_store_dwordx4 v[156:159], v161, s[24:27], 0 offen sc1
L_nokeyfill:
''' % (VLANE, WS_ACT, VLANE, WS_R, VLANE))
        else: q.ins.append(i)
    return q

def dump_stamps(p, o, tag):
    p('s_waitcnt vmcnt(0)')
    stamp(p, o, 'end')
    p('s_waitcnt lgkmcnt(0)')
    p('''
    s_lshl_b32 s60, s2, 2
    s_add_u32 s60, s60, s%d
    s_lshl_b32 s60, s60, 6
    s_add_u32 s60, s60, 0x%x
    v_mov_b32 v201, s60
''' % (S_W, WS_STAMP))
    for k in range(8):
        p('v_mov_b32 v%d, s%d' % (202 + k, S_STAMP + 2 * k))
    p('''
    v_cmp_eq_u32 vcc, 0, v%d
    s_and_saveexec_b64 s[60:61], vcc
    s_cbranch_execz L_nostamp%s
    buffer_store_dwordx4 v[202:205], v201, s[24:27], 0 offen
    buffer_store_dwordx4 v[206:209], v201, s[24:27], 0 offen offset:16
L_nostamp%s:
    s_mov_b64 exec, s[60:61]
''' % (VLANE, tag, tag))

def build_k1(o):
    global HFLY
    HFLY = bool(getattr(o, 'hfly', 0))
    p = Prog()
    p('k1_kernel:')
    pro, vm, VQ, VA = prologue(o)
    p.extend(expand_stamps(pro, o))
    p.extend(kv_addresses(o))
    qp = qproj(o, vm, VQ, VA)
    w, _ = insert_waits(qp.ins)
    p.extend(w)
    stamp(p, o, 'qproj')
    p.extend(qexchange(o, vm))
    stamp(p, o, 'qexch')
    if getattr(o, 'dump', '') == 'q':
        p('''
    s_lshl_b32 s60, s2, 2
    s_add_u32 s60, s60, s%d
    s_lshl_b32 s60, s60, 15
    s_add_u32 s60, s60, 0x2000000
    v_lshlrev_b32 v200, 4, v%d
    v_add_u32 v200, s60, v200
''' % (S_W, VLANE))
        for n in range(32):
            if n % 4 == 0 and n: p('v_add_u32 v200, 0x1000, v200')
            p('buffer_store_dwordx4 %s, v200, s[24:27], 0 offen offset:%d' % (vr(4 * n, 4), (n % 4) * 1024))
        p('s_waitcnt vmcnt(0)')
    p.extend(attn_prologue(o))
    stamp(p, o, 'attnpro')
    if o.stamps: p('s_waitcnt lgkmcnt(0)')
    lp, first, loop_ins, tail = attn_loop(o)
    p.extend(lp)
    stamp(p, o, 'loop')
    if getattr(o, 'dump', '') == 'o':
        p('s_nop 7')
        p('''
    s_lshl_b32 s60, s2, 18
    s_lshl_b32 s61, s%d, 16
    s_add_u32 s60, s60, s61
    s_add_u32 s60, s60, 0x2000000
    v_lshlrev_b32 v210, 4, v%d
    v_add_u32 v210, s60, v210
''' % (S_W, VLANE))
        for r4 in range(64):
            if r4 % 4 == 0 and r4: p('v_add_u32 v210, 0x1000, v210')
            p('buffer_store_dwordx4 %s, v210, s[24:27], 0 offen offset:%d' % (ar(4 * r4, 4), (r4 % 4) * 1024))
        p('''
    s_lshl_b32 s60, s2, 2
    s_add_u32 s60, s60, s%d
    s_lshl_b32 s60, s60, 11
    s_add_u32 s60, s60, 0x8000000
    v_lshlrev_b32 v210, 2, v%d
    v_add_u32 v210, s60, v210
''' % (S_W, VLANE))
        for b in range(4):
            p('buffer_store_dword v%d, v210, s[24:27], 0 offen offset:%d' % (NEGM + 4 * b, 256 * b))
            p('buffer_store_dword v%d, v210, s[24:27], 0 offen offset:%d' % (LREG[1] + b, 1024 + 256 * b))
        p('s_waitcnt vmcnt(0)')
    p.extend(epilogue(o))
    if o.stamps and not o.one:
        stamp(p, o, 'k2m')
        dump_stamps(p, o, '')
    if o.stamps and o.one:
        dump_stamps(p, o, 'B')
    p('s_waitcnt vmcnt(0)')
    p('L_end_k1:')
    p('s_endpgm')
    for tag, par in (('f', 0), ('a', 1), ('b', 0), ('c', 1), ('d', 0)):
        p('L_rare_%s:' % tag)
        p('s_call_b64 s[%d:%d], L_fb_%d' % (S_RET, S_RET + 1, par))
        p('s_branch L_back_%s' % tag)
    p.extend(a2rare())
    p.extend(A.fallback(o, 0))
    p.extend(A.fallback(o, 1))
    probs = check_hazards(first + loop_ins + loop_ins + tail, 'loop') + check_hazards(p.ins, 'all')
    return p, probs

KD = '''
.amdhsa_kernel %s
  .amdhsa_next_free_vgpr %d
  .amdhsa_next_free_sgpr %d
  .amdhsa_accum_offset %d
  .amdhsa_group_segment_fixed_size 0
  .amdhsa_kernarg_size 120
  .amdhsa_user_sgpr_count 2
  .amdhsa_user_sgpr_kernarg_segment_ptr 1
  .amdhsa_system_sgpr_workgroup_id_x 1
  .amdhsa_float_denorm_mode_32 3
.end_amdhsa_kernel
'''

if __name__ == '__main__':
    import sys
    o = A.Opt()
    o.kgap = 1
    o.dma_gaps = [3, 7, 11, 15, 19, 23, 27, 31, 35, 39, 43, 47, 51, 55, 59, 63]
    o.stamps = 1; o.pf = 1; o.pfd = 4; o.pfmoe = 1; o.pf_kv_early = 0; o.late_dma = 0; o.qcvt = 1; o.fuse_k2 = 1; o.kdma_late = 0; o.one = 1; o.esend = 0; o.part_flags = ' sc1'
    out = sys.argv[1]
    for kv in sys.argv[2:]:
        k, v = kv.split('=')
        try: v = int(v, 0)
        except ValueError:
            if v.startswith('['): v = eval(v)
        setattr(o, k, v)
    p, probs = build_k1(o)
    for pr in probs[:20]: print(pr)
    print('hazards', len(probs), 'instrs', len(p.ins))
    hdr = '''; @launch kernel=k1_kernel grid=(256,1,1) block=(256,1,1) lds=163840
.amdgcn_target "amdgcn-amd-amdhsa--gfx950"
.text
.globl k1_kernel
.p2align 8
.type k1_kernel,@function
'''
    ftr = '.section .rodata,"a"\n.p2align 6' + KD % ('k1_kernel', 512, 102, 256)
    open(out, 'w').write(hdr + p.text() + ftr)
```

```python
from asmlib import *
from k1 import WS_CNT, WS_MOD, WS_R, WS_IDX, WS_ACT, WS_H2, WS_PART, xreduce
def vr(a, n=1): return 'v%d' % a if n == 1 else 'v[%d:%d]' % (a, a + n - 1)

def srd(p, s, ptr_lo, nbytes, off=None):
    if off is None:
        if s != ptr_lo:
            p('s_mov_b32 s%d, s%d' % (s, ptr_lo)); p('s_mov_b32 s%d, s%d' % (s + 1, ptr_lo + 1))
    else:
        p('s_add_u32 s%d, s%d, %s' % (s, ptr_lo, off)); p('s_addc_u32 s%d, s%d, 0' % (s + 1, ptr_lo + 1))
    p('s_mov_b32 s%d, %s' % (s + 2, nbytes)); p('s_mov_b32 s%d, 0x20000' % (s + 3))

def wave_reduce(p, r, t, op='v_add_f32'):
    for k in (1, 2, 4, 8):
        p('s_nop 1')
        p('%s_dpp v%d, v%d, v%d row_ror:%d row_mask:0xf bank_mask:0xf' % (op, r, r, r, k))
    p('s_nop 0')
    xreduce(p, r, t, op)

def wave_reduce_multi(p, regs, temps, op='v_add_f32'):
    for k in (1, 2, 4, 8):
        if len(regs) < 3: p('s_nop %d' % (2 - len(regs)))
        for r in regs:
            p('%s_dpp v%d, v%d, v%d row_ror:%d row_mask:0xf bank_mask:0xf' % (op, r, r, r, k))
    for sw in ('v_permlane16_swap_b32', 'v_permlane32_swap_b32'):
        p('s_nop 0')
        for r, t in zip(regs, temps): p('v_mov_b32 v%d, v%d' % (t, r))
        p('s_nop 1')
        for r, t in zip(regs, temps): p('%s v%d, v%d' % (sw, r, t))
        p('s_nop 1')
        for r, t in zip(regs, temps): p('%s v%d, v%d, v%d' % (op, r, r, t))

def build_k0():
    p = Prog()
    p('''
k0_kernel:
    s_cmp_ge_u32 s2, 42
    s_cbranch_scc1 L_end_k0
    s_load_dwordx4 s[4:7], s[0:1], 80
    s_load_dwordx2 s[24:25], s[0:1], 112
    v_and_b32 v1, 7, v0            ; cc
    v_lshrrev_b32 v2, 3, v0        ; kg 0..31
    s_waitcnt lgkmcnt(0)
''')
    srd(p, 8, 4, 896)
    srd(p, 12, 6, 448 * 5376)
    srd(p, 24, 24, 10752)
    p('''
    v_mul_u32_u24 v3, 5376, v2
    v_lshl_add_u32 v3, v1, 4, v3
    s_lshl_b32 s16, s2, 7
    v_add_u32 v3, s16, v3
    v_lshlrev_b32 v4, 1, v2        ; c offset
''')
    for i in range(14):
        p('buffer_load_ushort v%d, v4, s[8:11], 0 offen offset:%d' % (10 + i, 64 * i))
    p('s_mov_b32 s17, %d' % (32 * 5376))
    for i in range(14):
        p('buffer_load_dwordx4 %s, v3, s[12:15], 0 offen' % vr(32 + 4 * i, 4))
        if i < 13: p('v_add_u32 v3, s17, v3')
    p('s_waitcnt vmcnt(14)')
    for i in range(14):
        p('v_lshlrev_b32 v%d, 16, v%d' % (10 + i, 10 + i))
    for i in range(14):
        p('v_mul_f32 v%d, 0xbfb8aa3b, v%d' % (96 + i, 10 + i))
    for i in range(14):
        p('v_exp_f32 v%d, v%d' % (96 + i, 96 + i))
    for i in range(14):
        p('v_add_f32 v%d, 1.0, v%d' % (96 + i, 96 + i))
    for i in range(14):
        p('v_rcp_f32 v%d, v%d' % (96 + i, 96 + i))
    for i in range(14):
        p('v_mul_f32 v%d, v%d, v%d' % (10 + i, 10 + i, 96 + i))
    for i in range(14):
        p('v_cvt_pk_bf16_f32 v%d, v%d, 0' % (10 + i, 10 + i))
    for i in range(14):
        p('v_lshlrev_b32 v%d, 16, v%d' % (96 + i, 10 + i))
    for j in range(8): p('v_mov_b32 v%d, 0' % (112 + j))
    p('s_waitcnt vmcnt(0)')
    for i in range(14):
        for j in range(8):
            w = 32 + 4 * i + j // 2
            sel = (10 + i) if j % 2 == 0 else (96 + i)
            p('v_dot2_f32_bf16 v%d, v%d, v%d, v%d' % (112 + j, w, sel, 112 + j))
    p('s_nop 2')
    regs = [112 + j for j in range(8)]; temps = [120 + j for j in range(8)]
    for r in regs:
        p('v_add_f32_dpp v%d, v%d, v%d row_ror:8 row_mask:0xf bank_mask:0xf' % (r, r, r))
    for sw in ('v_permlane16_swap_b32', 'v_permlane32_swap_b32'):
        for r, t in zip(regs, temps): p('v_mov_b32 v%d, v%d' % (t, r))
        p('s_nop 1')
        for r, t in zip(regs, temps): p('%s v%d, v%d' % (sw, r, t))
        p('s_nop 1')
        for r, t in zip(regs, temps): p('v_add_f32 v%d, v%d, v%d' % (r, r, t))
    p('''
    v_lshrrev_b32 v5, 6, v0
    v_lshlrev_b32 v5, 8, v5
    v_lshl_add_u32 v5, v1, 5, v5
    ds_write_b128 v5, v[112:115]
    ds_write_b128 v5, v[116:119] offset:16
    s_waitcnt lgkmcnt(0)
    s_barrier
    v_cmp_gt_u32 vcc, 64, v0
    s_and_saveexec_b64 s[18:19], vcc
    s_cbranch_execz L_k0_done
    v_lshlrev_b32 v5, 2, v0
    ds_read_b32 v6, v5
    ds_read_b32 v7, v5 offset:256
    ds_read_b32 v8, v5 offset:512
    ds_read_b32 v9, v5 offset:768
    s_waitcnt lgkmcnt(0)
    v_add_f32 v6, v6, v7
    v_add_f32 v8, v8, v9
    v_add_f32 v6, v6, v8
    v_cvt_pk_bf16_f32 v6, v6, 0
    v_lshlrev_b32 v6, 16, v6
    s_mul_i32 s20, s2, 37
    s_lshr_b32 s20, s20, 8
    s_cmp_eq_u32 s20, 1
    s_cselect_b32 s21, 1, 0
    s_cmp_eq_u32 s20, 4
    s_cselect_b32 s21, 1, s21
    s_cmp_eq_u32 s21, 0
    s_cbranch_scc1 L_k0_store
    v_add_f32 v6, 1.0, v6
    v_cvt_pk_bf16_f32 v6, v6, 0
    v_lshlrev_b32 v6, 16, v6
L_k0_store:
    s_lshl_b32 s16, s2, 8
    v_add_u32 v5, s16, v5
    buffer_store_dword v6, v5, s[24:27], 0 offen
L_k0_done:
    s_mov_b64 exec, s[18:19]
    s_waitcnt vmcnt(0)
L_end_k0:
    s_endpgm
''')
    return p

PF_MOE = True
def build_k2():
    p = Prog()
    p('''
k2_kernel:
    s_cmp_ge_u32 s2, 256
    s_cbranch_scc1 L_end_k2
    s_load_dwordx2 s[4:5], s[0:1], 0
    s_load_dwordx2 s[6:7], s[0:1], 48
    s_load_dwordx2 s[28:29], s[0:1], 96
    s_load_dwordx2 s[24:25], s[0:1], 112
    s_load_dwordx4 s[44:47], s[0:1], 56
    s_load_dwordx2 s[48:49], s[0:1], 72
    v_and_b32 v1, 63, v0
    v_lshrrev_b32 v2, 6, v0
    s_nop 0
    v_readfirstlane_b32 s3, v2
    s_lshl_b32 s41, s2, 3
    s_lshl_b32 s42, s3, 1
    s_add_u32 s41, s41, s42
    s_mul_i32 s42, s41, 896
    s_waitcnt lgkmcnt(0)
''')
    srd(p, 8, 4, 2048 * 896)
    srd(p, 12, 6, 896)
    srd(p, 16, 24, 8 * 2048 * 896, str(WS_PART))
    srd(p, 20, 24, 2048 * 896, str(WS_H2))
    srd(p, 32, 24, 10752)
    srd(p, 36, 24, 8192, str(WS_R))
    srd(p, 28, 28, 2048 * 896)
    p('''
    v_lshlrev_b32 v3, 4, v1            ; lane*16
    v_lshlrev_b32 v4, 5, v1
    v_mov_b32 v5, 0x40000000
    v_cmp_gt_u32 vcc, 56, v1
    s_nop 1
    v_cndmask_b32 v3, v5, v3, vcc
    v_cndmask_b32 v4, v5, v4, vcc
    v_cndmask_b32 v6, 0, 1.0, vcc
    v_add_u32 v7, s42, v3
''')
    for rr in range(2):
        for g in range(8):
            p('s_mov_b32 s40, %d' % (g * 2048 * 896 + rr * 896) if not (g == 0 and rr == 0) else 's_mov_b32 s40, 0')
            p('buffer_load_dwordx4 %s, v7, s[16:19], s40 offen' % vr(16 + rr * 40 + 4 * g, 4))
        p('buffer_load_dwordx4 %s, v7, s[8:11], 0 offen offset:%d' % (vr(16 + rr * 40 + 32, 4), rr * 896))
    for k, seg in enumerate((2, 3, 4, 5)):
        p('s_mov_b32 s40, %d' % (seg * 1792))
        p('buffer_load_dwordx4 %s, v4, s[32:35], s40 offen' % vr(96 + 8 * k, 4))
        p('buffer_load_dwordx4 %s, v4, s[32:35], s40 offen offset:16' % vr(100 + 8 * k, 4))
    p('buffer_load_dwordx4 v[128:131], v3, s[12:15], 0 offen')
    p('v_mov_b32 v8, 0x00003f80')
    p('v_mov_b32 v9, 0x3f800000')
    ACC = [136, 152]
    for rr in range(2):
        for j in range(8): p('v_mov_b32 v%d, 0' % (ACC[rr] + j))
    for rr in range(2):
        p('s_waitcnt vmcnt(%d)' % (9 + 1 + (9 if rr == 0 else 0)))
        for g in range(8):
            for j in range(8):
                p('v_dot2_f32_bf16 v%d, v%d, v%d, v%d' % (ACC[rr] + j, 16 + rr * 40 + 4 * g + j // 2, 8 + j % 2, ACC[rr] + j))
    p('s_waitcnt vmcnt(0)')
    p(';ST 0')
    if PF_MOE:
        p('''
    s_and_b32 s50, s2, 7               ; x
    s_lshr_b32 s51, s2, 3              ; i
    v_min_u32 v210, 55, v1
    s_cmp_ge_u32 s3, 2
    s_cbranch_scc1 L_k2_pfdown
    s_mul_i32 s52, s50, 448
    s_lshr_b32 s52, s52, 7
    s_mul_i32 s53, s51, 14
    v_lshrrev_b32 v211, 2, v210
    v_add_u32 v211, s53, v211
    v_mul_u32_u24 v211, 3584, v211
    v_and_b32 v212, 3, v210
    v_add_u32 v212, s52, v212
    v_lshl_add_u32 v211, v212, 7, v211
    s_cmp_eq_u32 s3, 0
    s_cselect_b32 s54, s44, s46
    s_cselect_b32 s55, s45, s47
    global_load_dword v213, v211, s[54:55]
    s_branch L_k2_pfdone
L_k2_pfdown:
    s_lshl_b32 s52, s50, 7             ; x<4: byte 128x
    s_mul_i32 s53, s50, 96
    s_add_u32 s53, s53, 128            ; x>=4: 512 + 96(x-4) = 96x + 128
    s_cmp_lt_u32 s50, 4
    s_cselect_b32 s52, s52, s53
    s_and_b32 s53, s3, 1
    s_mul_i32 s53, s53, 95
    s_add_u32 s52, s52, s53
    s_and_b32 s52, s52, 0xffffff80
    s_mul_i32 s53, s51, 56
    v_add_u32 v211, s53, v210
    v_mul_u32_u24 v211, 896, v211
    v_add_u32 v211, s52, v211
    global_load_dword v213, v211, s[48:49]
L_k2_pfdone:
''')
    X1 = [168, 184]
    for rr in range(2):
        xr = 16 + rr * 40 + 32
        for j in range(8):
            p('v_mul_f32 v%d, v%d, v%d' % (ACC[rr] + j, ACC[rr] + j, 96 + j))
        for j in range(8):
            p('v_dot2_f32_bf16 v%d, v%d, v%d, v%d' % (ACC[rr] + j, xr + j // 2, 8 + j % 2, ACC[rr] + j))
    p('s_nop 2')
    for rr in range(2):
        for j in range(0, 8, 2):
            p('v_cvt_pk_bf16_f32 v%d, v%d, v%d' % (200 + rr * 4 + j // 2, ACC[rr] + j, ACC[rr] + j + 1))
    for rr in range(2):
        for j in range(8):
            if j % 2 == 0: p('v_lshlrev_b32 v%d, 16, v%d' % (X1[rr] + j, 200 + rr * 4 + j // 2))
            else: p('v_and_b32 v%d, 0xffff0000, v%d' % (X1[rr] + j, 200 + rr * 4 + j // 2))
    SUM = [10, 11]
    for rr in range(2):
        p('v_add_f32 v%d, v%d, v%d' % (SUM[rr], X1[rr], X1[rr] + 1))
        for j in range(2, 8): p('v_add_f32 v%d, v%d, v%d' % (SUM[rr], SUM[rr], X1[rr] + j))
    wave_reduce_multi(p, SUM, [12, 13])
    XC = [16, 32]
    for rr in range(2):
        p('v_mul_f32 v%d, 0xbb124925, v%d' % (SUM[rr], SUM[rr]))
    for rr in range(2):
        for j in range(8):
            p('v_add_f32 v%d, v%d, v%d' % (XC[rr] + j, X1[rr] + j, SUM[rr]))
    VAR = [12, 13]
    for rr in range(2):
        p('v_mul_f32 v%d, v%d, v%d' % (VAR[rr], XC[rr], XC[rr]))
        for j in range(1, 8): p('v_fmac_f32 v%d, v%d, v%d' % (VAR[rr], XC[rr] + j, XC[rr] + j))
    for rr in range(2):
        p('v_mul_f32 v%d, v%d, v6' % (VAR[rr], VAR[rr]))
    wave_reduce_multi(p, VAR, [14, 15])
    for rr in range(2):
        p('v_mov_b32 v%d, 0x3727c5ac' % (14 + rr))
        p('v_fmac_f32 v%d, 0x3b124925, v%d' % (14 + rr, VAR[rr]))
    for rr in range(2):
        p('v_rsq_f32 v%d, v%d' % (VAR[rr], 14 + rr))
    p('s_nop 0')
    H = [48, 64]
    for rr in range(2):
        for j in range(8):
            p('v_mul_f32 v%d, v%d, v%d' % (XC[rr] + j, XC[rr] + j, VAR[rr]))
        for j in range(8):
            p('v_fma_f32 v%d, v%d, v%d, v%d' % (XC[rr] + j, XC[rr] + j, 112 + j, 104 + j))
        for j in range(0, 8, 2):
            p('v_cvt_pk_bf16_f32 v%d, v%d, v%d' % (H[rr] + j // 2, XC[rr] + j, XC[rr] + j + 1))
    p(';ST 1')
    for rr in range(2):
        p('buffer_store_dwordx4 %s, v7, s[20:23], 0 offen offset:%d' % (vr(H[rr], 4), rr * 896))
    RR = [14, 15]
    for rr in range(2):
        p('v_mov_b32 v%d, 0' % RR[rr])
    for j in range(4):
        for rr in range(2):
            p('v_dot2_f32_bf16 v%d, v%d, v%d, v%d' % (RR[rr], H[rr] + j, 128 + j, RR[rr]))
    for rr in range(2):
        for j in range(8):
            if j % 2 == 0: p('v_lshlrev_b32 v%d, 16, v%d' % (XC[rr] + j, H[rr] + j // 2))
            else: p('v_and_b32 v%d, 0xffff0000, v%d' % (XC[rr] + j, H[rr] + j // 2))
        for j in range(8):
            p('v_fma_f32 v%d, v%d, v%d, v%d' % (XC[rr] + j, XC[rr] + j, 120 + j, X1[rr] + j))
        for j in range(0, 8, 2):
            p('v_cvt_pk_bf16_f32 v%d, v%d, v%d' % (80 + rr * 4 + j // 2, XC[rr] + j, XC[rr] + j + 1))
        p('buffer_store_dwordx4 %s, v7, s[28:31], 0 offen offset:%d' % (vr(80 + rr * 4, 4), rr * 896))
    wave_reduce_multi(p, RR, [12, 13])
    p('''
    v_cvt_pk_bf16_f32 v14, v14, 0
    v_cvt_pk_bf16_f32 v15, v15, 0
    v_lshlrev_b32 v14, 16, v14
    v_lshlrev_b32 v15, 16, v15
    v_cmp_eq_u32 vcc, 1, v1
    s_nop 1
    v_cndmask_b32 v14, v14, v15, vcc
    v_add_u32 v2, s41, v1
    v_lshlrev_b32 v2, 2, v2
    v_cmp_gt_u32 vcc, 2, v1
    s_nop 1
    v_cndmask_b32 v2, v5, v2, vcc
    buffer_store_dword v14, v2, s[36:39], 0 offen
    s_waitcnt vmcnt(0)
L_end_k2:
    s_endpgm
''')
    return p

def sort8(p, K, T):
    net = [(0,1),(2,3),(4,5),(6,7),(0,2),(1,3),(4,6),(5,7),(1,2),(5,6),(0,4),(3,7),(1,5),(2,6),(1,4),(3,6),(2,4),(3,5),(3,4)]
    for a_, b_ in net:
        p('v_max_u32 v%d, v%d, v%d' % (T, K + a_, K + b_))
        p('v_min_u32 v%d, v%d, v%d' % (K + b_, K + a_, K + b_))
        p('v_mov_b32 v%d, v%d' % (K + a_, T))

def row_rounds(p, K, T, RES, MASK):
    pend = []
    for rnd in range(8):
        p('v_mov_b32 v%d, v%d' % (T, K))
        for k in (1, 2, 4, 8):
            fill = pend[:2]; pend = pend[2:]
            for x in fill: p(x)
            if len(fill) < 2: p('s_nop %d' % (1 - len(fill)))
            p('v_max_u32_dpp v%d, v%d, v%d row_ror:%d row_mask:0xf bank_mask:0xf' % (T, T, T, k))
        for x in pend: p(x)
        pend = []
        p('v_cndmask_b32_e64 v%d, v%d, v%d, s[%d:%d]' % (RES, RES, T, MASK + 2 * rnd, MASK + 2 * rnd + 1))
        if rnd < 7:
            p('v_cmp_eq_u32 vcc, v%d, v%d' % (K, T))
            p('s_nop 1')
            sh = ['v_cndmask_b32 v%d, v%d, v%d, vcc' % (K + j, K + j, K + j + 1) for j in range(7 - rnd)]
            p(sh[0])
            pend = sh[1:]

TOP8_MASK = 64
def top8(p, KEY, T):
    RES = T + 1
    p('v_and_b32 v%d, 7, v1' % T)
    for i in range(8):
        p('v_cmp_eq_u32 s[%d:%d], %d, v%d' % (TOP8_MASK + 2 * i, TOP8_MASK + 1 + 2 * i, i, T))
    sort8(p, KEY, T)
    p('v_mov_b32 v%d, 0' % RES)
    row_rounds(p, KEY, T, RES, TOP8_MASK)
    p('v_lshrrev_b32 v%d, 4, v0' % T)
    p('v_lshlrev_b32 v%d, 5, v%d' % (T, T))
    p('v_and_b32 v%d, 7, v1' % (T + 2))
    p('v_lshl_add_u32 v%d, v%d, 2, v%d' % (T, T + 2, T))
    p('ds_write_b32 v%d, v%d offset:%d' % (T, RES, TOPK_LDS))
    p('s_waitcnt lgkmcnt(0)')
    p('s_barrier')
    p('v_and_b32 v%d, 15, v1' % T)
    p('v_lshlrev_b32 v%d, 5, v%d' % (T, T))
    p('ds_read_b128 %s, v%d offset:%d' % (vr(KEY, 4), T, TOPK_LDS))
    p('ds_read_b128 %s, v%d offset:%d' % (vr(KEY + 4, 4), T, TOPK_LDS + 16))
    p('v_mov_b32 v%d, 0' % RES)
    p('s_waitcnt lgkmcnt(0)')
    row_rounds(p, KEY, T, RES, TOP8_MASK)

TOPK_LDS = 57344

def wstage(p, srd_, voff, nsteps, lds_sgpr):
    p('s_mov_b32 s44, 0')
    for i in range(nsteps):
        p('s_add_u32 m0, s%d, %d' % (lds_sgpr, i * 1024))
        p('s_nop 0')
        p('buffer_load_dwordx4 v%d, s[%d:%d], s44 offen lds' % (voff, srd_, srd_ + 3))
        if i + 1 < nsteps: p('s_add_u32 s44, s44, s45')

def tr_frags(p, addr, dst, nsteps):
    for i in range(nsteps):
        p('ds_read_b64_tr_b16 %s, v%d offset:%d' % (vr(dst + 4 * i, 2), addr, i * 1024))
        p('ds_read_b64_tr_b16 %s, v%d offset:%d' % (vr(dst + 4 * i + 2, 2), addr, i * 1024 + 128))

def build_k3():
    p = Prog()
    p('''
k3_kernel:
    s_cmp_ge_u32 s2, 56
    s_cbranch_scc1 L_end_k3
    s_load_dwordx4 s[4:7], s[0:1], 56
    s_load_dwordx2 s[24:25], s[0:1], 112
    v_and_b32 v1, 63, v0
    v_lshrrev_b32 v2, 6, v0
    s_nop 0
    v_readfirstlane_b32 s3, v2
    s_waitcnt lgkmcnt(0)
    s_cmp_ge_u32 s3, 2
    s_cselect_b32 s4, s6, s4
    s_cselect_b32 s5, s7, s5
''')
    srd(p, 8, 4, 448 * 3584)
    srd(p, 12, 24, 8192, str(WS_R))
    srd(p, 16, 24, 2048 * 896, str(WS_H2))
    srd(p, 20, 24, 28672, str(WS_ACT))
    srd(p, 28, 24, 64, str(WS_IDX))
    p('''
    s_and_b32 s40, s2, 7
    s_mul_i32 s40, s40, 7
    s_lshr_b32 s41, s2, 3
    s_add_u32 s40, s40, s41           ; column block = (wg&7)*7 + (wg>>3): neighbours share an XCD (speed only)
    s_lshl_b32 s40, s40, 6
    s_and_b32 s41, s3, 1
    s_lshl_b32 s41, s41, 5
    s_add_u32 s40, s40, s41
    v_lshrrev_b32 v3, 1, v1
    v_mul_u32_u24 v3, 3584, v3
    v_and_b32 v4, 1, v1
    v_lshl_add_u32 v3, v4, 4, v3
    v_add_u32 v3, s40, v3
    s_mov_b32 s45, %d
    s_mul_i32 s46, s3, 14336
''' % (32 * 3584))
    p('v_lshlrev_b32 v5, 5, v0')
    p('buffer_load_dwordx4 v[8:11], v5, s[12:15], 0 offen')
    p('buffer_load_dwordx4 v[12:15], v5, s[12:15], 0 offen offset:16')
    wstage(p, 8, 3, 14, 46)
    p('v_lshlrev_b32 v6, 3, v0')
    p('v_sub_u32 v6, 2047, v6')
    p('s_waitcnt vmcnt(14)')
    p(';ST 0')
    for j in range(8):
        k = 8 + j
        p('v_ashrrev_i32 v16, 31, v%d' % k)
        p('v_or_b32 v16, 0x80000000, v16')
        p('v_xor_b32 v%d, v%d, v16' % (k, k))
        p('v_and_b32 v%d, 0xffff0000, v%d' % (k, k))
        p('v_subrev_u32 v17, %d, v6' % j)
        p('v_or_b32 v%d, v%d, v17' % (k, k))
    top8(p, 8, 16)
    p(';ST 1')
    p('v_and_b32 v20, 0xffff, v17')
    p('v_sub_u32 v20, 2047, v20')
    p('''
    v_mul_u32_u24 v22, 896, v20
    v_lshrrev_b32 v23, 4, v1
    v_lshl_add_u32 v22, v23, 4, v22
''')
    for i in range(14):
        p('buffer_load_dwordx4 %s, v22, s[16:19], 0 offen offset:%d' % (vr(32 + 4 * i, 4), 64 * i))
    p('''
    s_or_b32 s47, s2, s3
    s_cmp_lg_u32 s47, 0
    s_cbranch_scc1 L_k3_nopub
    v_mov_b32 v24, v17
    v_and_b32 v24, 0xffff0000, v24
    v_ashrrev_i32 v25, 31, v24
    v_not_b32 v25, v25
    v_or_b32 v25, 0x80000000, v25
    v_xor_b32 v24, v24, v25
    v_and_b32 v24, 0xffff0000, v24
    v_mul_f32 v25, 0xbfb8aa3b, v24
    v_exp_f32 v25, v25
    s_nop 0
    v_add_f32 v25, 1.0, v25
    v_rcp_f32 v25, v25
    s_nop 0
    v_cvt_pk_bf16_f32 v25, v25, 0
    v_lshlrev_b32 v25, 16, v25
    v_lshlrev_b32 v26, 2, v1
    v_cmp_gt_u32 vcc, 8, v1
    v_mov_b32 v27, 0x40000000
    s_nop 0
    v_cndmask_b32 v26, v27, v26, vcc
    buffer_store_dword v20, v26, s[28:31], 0 offen
    buffer_store_dword v25, v26, s[28:31], 0 offen offset:32
L_k3_nopub:
''')
    p('''
    v_lshrrev_b32 v28, 4, v1            ; kq
    v_lshlrev_b32 v28, 3, v28           ; 8 kq
    v_bfe_u32 v29, v1, 2, 2             ; r
    v_add_u32 v28, v28, v29
    v_lshlrev_b32 v28, 5, v28           ; row*32
    v_and_b32 v29, 3, v1
    v_lshl_add_u32 v28, v29, 3, v28
    v_add_u32 v28, s46, v28
    s_waitcnt vmcnt(14)
''')
    p(';ST 2')
    tr_frags(p, 28, 96, 14)
    p('s_waitcnt vmcnt(0) lgkmcnt(0)')
    p(';ST 3')
    for i in range(14):
        c = '0' if i == 0 else 'v[160:163]'
        p('v_mfma_f32_16x16x32_bf16 v[160:163], %s, %s, %s' % (vr(32 + 4 * i, 4), vr(96 + 4 * i, 4), c))
    p('s_nop 7')
    p('v_cvt_pk_bf16_f32 v164, v160, v161')
    p('v_cvt_pk_bf16_f32 v165, v162, v163')
    p('''
    v_lshlrev_b32 v160, 16, v164
    v_and_b32 v161, 0xffff0000, v164
    v_lshlrev_b32 v162, 16, v165
    v_and_b32 v163, 0xffff0000, v165
    s_cmp_ge_u32 s3, 2
    s_cbranch_scc1 L_k3_up
''')
    for r in range(4): p('v_mul_f32 v%d, 0xbfb8aa3b, v%d' % (166 + r, 160 + r))
    for r in range(4): p('v_exp_f32 v%d, v%d' % (166 + r, 166 + r))
    for r in range(4): p('v_add_f32 v%d, 1.0, v%d' % (166 + r, 166 + r))
    for r in range(4): p('v_rcp_f32 v%d, v%d' % (166 + r, 166 + r))
    p('s_nop 0')
    for r in range(4): p('v_mul_f32 v%d, v%d, v%d' % (160 + r, 160 + r, 166 + r))
    p('v_cvt_pk_bf16_f32 v164, v160, v161')
    p('v_cvt_pk_bf16_f32 v165, v162, v163')
    p('''
    v_lshlrev_b32 v160, 16, v164
    v_and_b32 v161, 0xffff0000, v164
    v_lshlrev_b32 v162, 16, v165
    v_and_b32 v163, 0xffff0000, v165
L_k3_up:
    s_and_b32 s41, s3, 1
    s_lshl_b32 s41, s41, 10
    v_lshlrev_b32 v30, 4, v1
    v_add_u32 v30, s41, v30
    v_add_u32 v30, %d, v30
    s_cmp_ge_u32 s3, 2
    s_cbranch_scc0 L_k3_gate_wait
    ds_write_b128 v30, v[160:163]
L_k3_gate_wait:
    s_waitcnt lgkmcnt(0)
    s_barrier
    s_cmp_ge_u32 s3, 2
    s_cbranch_scc1 L_end_k3
    ds_read_b128 v[164:167], v30
    s_waitcnt lgkmcnt(0)
''' % (TOPK_LDS + 256))
    for r in range(4): p('v_mul_f32 v%d, v%d, v%d' % (160 + r, 160 + r, 164 + r))
    p('''
    v_cvt_pk_bf16_f32 v160, v160, v161
    v_cvt_pk_bf16_f32 v162, v162, v163
    v_lshrrev_b32 v23, 4, v1
    v_mul_u32_u24 v24, %d, v23          ; 4 rows * 3584 B
    v_and_b32 v25, 15, v1
    v_lshl_add_u32 v24, v25, 1, v24
    v_add_u32 v24, s40, v24
    v_mov_b32 v27, 0x40000000
    v_cmp_gt_u32 vcc, 32, v1
    s_nop 1
    v_cndmask_b32 v24, v27, v24, vcc
    buffer_store_short v160, v24, s[20:23], 0 offen
    buffer_store_short_d16_hi v160, v24, s[20:23], 0 offen offset:3584
    s_mov_b32 s41, 7168
    buffer_store_short v162, v24, s[20:23], s41 offen
    buffer_store_short_d16_hi v162, v24, s[20:23], s41 offen offset:3584
    s_waitcnt vmcnt(0)
L_end_k3:
    s_endpgm
''' % (4 * 3584))
    return p

def build_k4():
    p = Prog()
    p('''
k4_kernel:
    s_cmp_ge_u32 s2, 28
    s_cbranch_scc1 L_end_k4
    s_load_dwordx2 s[4:5], s[0:1], 72
    s_load_dwordx2 s[28:29], s[0:1], 96
    s_load_dwordx2 s[24:25], s[0:1], 112
    v_and_b32 v1, 63, v0
    v_lshrrev_b32 v2, 6, v0
    s_nop 0
    v_readfirstlane_b32 s3, v2
    s_waitcnt lgkmcnt(0)
''')
    p('s_mul_i32 s40, s3, %d' % (448 * 896))
    p('s_add_u32 s4, s4, s40'); p('s_addc_u32 s5, s5, 0')
    srd(p, 8, 4, 448 * 896)
    srd(p, 12, 24, 10752)
    srd(p, 16, 24, 64, str(WS_IDX))
    srd(p, 20, 24, 28672, str(WS_ACT))
    srd(p, 28, 28, 2048 * 896)
    p('''
    s_and_b32 s47, s2, 7
    s_lshr_b32 s41, s2, 3
    s_lshl_b32 s42, s47, 2
    s_mul_i32 s43, s47, 3
    s_add_u32 s43, s43, 4             ; 16 + (x-4)*3 = 3x + 4
    s_cmp_lt_u32 s47, 4
    s_cselect_b32 s47, s42, s43
    s_add_u32 s47, s47, s41           ; column block
    s_lshl_b32 s40, s47, 5              ; column byte offset
    v_lshrrev_b32 v3, 1, v1
    v_mul_u32_u24 v3, 896, v3
    v_and_b32 v4, 1, v1
    v_lshl_add_u32 v3, v4, 4, v3
    v_add_u32 v3, s40, v3
    s_mov_b32 s45, %d
    s_mul_i32 s46, s3, 14336
''' % (32 * 896))
    wstage(p, 8, 3, 14, 46)
    p(';ST 0')
    p('''
    v_and_b32 v4, 7, v1
    v_mul_u32_u24 v22, 3584, v4
    v_lshrrev_b32 v23, 4, v1
    v_lshl_add_u32 v22, v23, 4, v22
    s_mul_i32 s41, s3, 896
    v_add_u32 v22, s41, v22
''')
    for i in range(14):
        p('buffer_load_dwordx4 %s, v22, s[20:23], 0 offen offset:%d' % (vr(32 + 4 * i, 4), 64 * i))
    p('''
    v_lshrrev_b32 v23, 4, v1
    v_and_b32 v23, 1, v23
    v_lshlrev_b32 v24, 4, v23
    buffer_load_dwordx4 v[8:11], v24, s[16:19], 0 offen            ; idx[4kq..]
    buffer_load_dwordx4 v[12:15], v24, s[16:19], 0 offen offset:32 ; sig[4kq..]
    v_and_b32 v25, 15, v1
    v_lshlrev_b32 v26, 2, v25
    s_lshl_b32 s41, s47, 6
    v_add_u32 v26, s41, v26
    s_mov_b32 s42, 8960
    buffer_load_dword v16, v26, s[12:15], s42 offen                ; gb[col]
    v_lshrrev_b32 v28, 4, v1
    v_lshlrev_b32 v28, 3, v28
    v_bfe_u32 v29, v1, 2, 2
    v_add_u32 v28, v28, v29
    v_lshlrev_b32 v28, 5, v28
    v_and_b32 v29, 3, v1
    v_lshl_add_u32 v28, v29, 3, v28
    v_add_u32 v28, s46, v28
    s_waitcnt vmcnt(0)
''')
    p(';ST 1')
    for r in range(4):
        p('v_mul_u32_u24 v%d, 896, v%d' % (17 + r, 8 + r))
    p('v_lshlrev_b32 v25, 1, v25')
    p('v_add_u32 v25, s40, v25')
    for r in range(4):
        p('v_add_u32 v%d, v%d, v25' % (17 + r, 17 + r))
    for r in range(4):
        p('buffer_load_ushort v%d, v%d, s[28:31], 0 offen' % (100 + r, 17 + r))
    tr_frags(p, 28, 104, 14)
    p('s_waitcnt lgkmcnt(0)')
    p(';ST 2')
    for i in range(14):
        c = '0' if i == 0 else 'v[160:163]'
        p('v_mfma_f32_16x16x32_bf16 v[160:163], %s, %s, %s' % (vr(32 + 4 * i, 4), vr(104 + 4 * i, 4), c))
    p('s_nop 7')
    p('''
    v_lshlrev_b32 v30, 4, v1
    s_lshl_b32 s41, s3, 10
    v_add_u32 v30, s41, v30
    ds_write_b128 v30, v[160:163] offset:57344
    s_waitcnt lgkmcnt(0)
    s_barrier
    s_cmp_lg_u32 s3, 0
    s_cbranch_scc1 L_end_k4
    ds_read_b128 v[164:167], v30 offset:58368
    ds_read_b128 v[168:171], v30 offset:59392
    ds_read_b128 v[172:175], v30 offset:60416
    s_waitcnt vmcnt(0) lgkmcnt(0)
''')
    for r in range(4):
        p('v_add_f32 v%d, v%d, v%d' % (160 + r, 160 + r, 164 + r))
        p('v_add_f32 v%d, v%d, v%d' % (168 + r, 168 + r, 172 + r))
    for r in range(4):
        p('v_add_f32 v%d, v%d, v%d' % (160 + r, 160 + r, 168 + r))
    def rnd(a):
        p('v_cvt_pk_bf16_f32 v164, v%d, v%d' % (a, a + 1))
        p('v_cvt_pk_bf16_f32 v165, v%d, v%d' % (a + 2, a + 3))
        p('v_lshlrev_b32 v%d, 16, v164' % a); p('v_and_b32 v%d, 0xffff0000, v164' % (a + 1))
        p('v_lshlrev_b32 v%d, 16, v165' % (a + 2)); p('v_and_b32 v%d, 0xffff0000, v165' % (a + 3))
    rnd(160)
    for r in range(4): p('v_mul_f32 v%d, v%d, v%d' % (160 + r, 160 + r, 12 + r))
    rnd(160)
    for r in range(4):
        p('v_lshlrev_b32 v%d, 16, v%d' % (100 + r, 100 + r))
        p('v_fma_f32 v%d, v%d, v16, v%d' % (160 + r, 160 + r, 100 + r))
    p('v_cvt_pk_bf16_f32 v164, v160, v161')
    p('v_cvt_pk_bf16_f32 v165, v162, v163')
    p('''
    v_mov_b32 v27, 0x40000000
    v_cmp_gt_u32 vcc, 32, v1
    s_nop 1
''')
    for r in range(4): p('v_cndmask_b32 v%d, v27, v%d, vcc' % (17 + r, 17 + r))
    p('''
    buffer_store_short v164, v17, s[28:31], 0 offen
    buffer_store_short_d16_hi v164, v18, s[28:31], 0 offen
    buffer_store_short v165, v19, s[28:31], 0 offen
    buffer_store_short_d16_hi v165, v20, s[28:31], 0 offen
    s_waitcnt vmcnt(0)
L_end_k4:
    s_endpgm
''')
    return p


def keys_and_top8(p):
    top8(p, 8, 16)

K34_FLAGS = False
K34_DIRECT = False
K34_SENT = True
K34_ANY = False
K34_PSLEEP = 8
K34_SLEEP = 4
def g_main(p, emb):
    keys_and_top8(p)
    p(';ST 1')
    p("""
    v_and_b32 v20, 0xffff, v17
    v_sub_u32 v20, 2047, v20
    v_mul_u32_u24 v22, 896, v20
    v_lshrrev_b32 v23, 4, v1
    v_lshl_add_u32 v22, v23, 4, v22
""")
    for i in range(14):
        p('buffer_load_dwordx4 %s, v22, s[16:19], 0 offen offset:%d%s' % (vr(32 + 4 * i, 4), 64 * i, ' sc1' if emb else ''))
    p("""
    v_lshrrev_b32 v28, 4, v1            ; kq
    v_lshlrev_b32 v28, 3, v28           ; 8 kq
    v_bfe_u32 v29, v1, 2, 2             ; r
    v_add_u32 v28, v28, v29
    v_lshlrev_b32 v28, 5, v28           ; row*32
    v_and_b32 v29, 3, v1
    v_lshl_add_u32 v28, v29, 3, v28
    v_add_u32 v28, s46, v28
    s_waitcnt vmcnt(14)
""")
    tr_frags(p, 28, 96, 14)
    p('s_waitcnt vmcnt(0) lgkmcnt(0)')
    p(';ST 2')
    for i in range(14):
        c = '0' if i == 0 else 'v[160:163]'
        p('v_mfma_f32_16x16x32_bf16 v[160:163], %s, %s, %s' % (vr(32 + 4 * i, 4), vr(96 + 4 * i, 4), c))
    p('s_nop 7')
    p("""
    v_cvt_pk_bf16_f32 v164, v160, v161
    v_cvt_pk_bf16_f32 v165, v162, v163
    v_lshlrev_b32 v160, 16, v164
    v_and_b32 v161, 0xffff0000, v164
    v_lshlrev_b32 v162, 16, v165
    v_and_b32 v163, 0xffff0000, v165
    s_and_b32 s41, s3, 1
    s_lshl_b32 s41, s41, 10
    v_lshlrev_b32 v30, 4, v1
    v_add_u32 v30, s41, v30
    v_add_u32 v30, %d, v30
    s_cmp_ge_u32 s3, 2
    s_cbranch_scc0 L_k34_gate
    ds_write_b128 v30, v[160:163]
    s_waitcnt lgkmcnt(0)
    s_barrier
    %s
    s_branch L_st_end_k34
L_k34_gate:
""" % (TOPK_LDS + 512, 's_nop 0' if K34_SENT else 's_barrier'))
    for r in range(4): p('v_mul_f32 v%d, 0xbfb8aa3b, v%d' % (166 + r, 160 + r))
    for r in range(4): p('v_exp_f32 v%d, v%d' % (166 + r, 166 + r))
    for r in range(4): p('v_add_f32 v%d, 1.0, v%d' % (166 + r, 166 + r))
    for r in range(4): p('v_rcp_f32 v%d, v%d' % (166 + r, 166 + r))
    p('s_nop 0')
    for r in range(4): p('v_mul_f32 v%d, v%d, v%d' % (160 + r, 160 + r, 166 + r))
    p("""
    v_cvt_pk_bf16_f32 v164, v160, v161
    v_cvt_pk_bf16_f32 v165, v162, v163
    v_lshlrev_b32 v160, 16, v164
    v_and_b32 v161, 0xffff0000, v164
    v_lshlrev_b32 v162, 16, v165
    v_and_b32 v163, 0xffff0000, v165
    s_waitcnt lgkmcnt(0)
    s_barrier
    ds_read_b128 v[164:167], v30
    s_waitcnt lgkmcnt(0)
""")
    for r in range(4): p('v_mul_f32 v%d, v%d, v%d' % (160 + r, 160 + r, 164 + r))
    for r in range(4): p('v_cvt_pk_bf16_f32 v%d, v%d, 0' % (160 + r, 160 + r))
    p('s_nop 1')
    for r in range(4): p('v_mov_b32_dpp v%d, v%d quad_perm:[1,0,3,2] row_mask:0xf bank_mask:0xf' % (164 + r, 160 + r))
    for r in range(4): p('v_lshl_or_b32 v%d, v%d, 16, v%d' % (160 + r, 164 + r, 160 + r))
    if K34_SENT:
        p('v_mov_b32 v168, 0x7fff7fff')
        for r in range(4):
            p('v_cmp_eq_u32 vcc, -1, v%d' % (160 + r))
            p('s_nop 1')
            p('v_cndmask_b32 v%d, v%d, v168, vcc' % (160 + r, 160 + r))
    p("""
    v_lshrrev_b32 v23, 4, v1
    v_mul_u32_u24 v24, %d, v23          ; 4 rows * 3584 B
    v_and_b32 v25, 15, v1
    v_lshl_add_u32 v24, v25, 1, v24
    v_add_u32 v24, s40, v24
    v_mov_b32 v27, 0x40000000
    v_and_b32 v25, 0x21, v1             ; lanes >= 32 or odd lanes do not store
    v_cmp_eq_u32 vcc, 0, v25
    s_mov_b32 s41, 7168
    s_nop 0
    v_cndmask_b32 v24, v27, v24, vcc
    buffer_store_dword v160, v24, s[20:23], 0 offen sc1
    buffer_store_dword v161, v24, s[20:23], 0 offen offset:3584 sc1
    buffer_store_dword v162, v24, s[20:23], s41 offen sc1
    buffer_store_dword v163, v24, s[20:23], s41 offen offset:3584 sc1
    ;SENTEXIT
    s_waitcnt vmcnt(0)
    s_barrier
    s_cmp_lg_u32 s3, 0
    s_cbranch_scc1 L_st_end_k34
    ;FLAGSIG
    s_branch L_st_end_k34
""" % (4 * 3584))
    if K34_SENT:
        i0 = [k for k, i in enumerate(p.ins) if i.text.startswith(';SENTEXIT')][0]
        p.ins[i0:i0 + 1] = [I('s_branch L_st_end_k34')]
    idx = [k for k, i in enumerate(p.ins) if i.text.startswith(';FLAGSIG')][0]
    sig = """
    v_mov_b32 v24, 0
    v_mov_b32 v25, 1
    v_cmp_eq_u32 vcc, 0, v1
    s_and_saveexec_b64 s[42:43], vcc
    buffer_atomic_add v25, v24, s[56:59], 0 offen sc0 sc1
    s_waitcnt vmcnt(0)
    v_readfirstlane_b32 s41, v25
    s_cmp_eq_u32 s41, 55
    s_cbranch_scc0 L_k34_notlast
    v_mov_b32 v25, 1
    buffer_store_dword v25, v24, s[56:59], 0 offen offset:128 sc1
L_k34_notlast:
    s_mov_b64 exec, s[42:43]
"""
    if K34_DIRECT:
        sig = """
    v_mov_b32 v24, 0
    v_mov_b32 v25, 1
    v_cmp_eq_u32 vcc, 0, v1
    s_and_saveexec_b64 s[42:43], vcc
    buffer_atomic_add v25, v24, s[56:59], 0 offen sc1
    s_mov_b64 exec, s[42:43]
"""
    t = Prog(); t(sig)
    p.ins[idx:idx + 1] = t.ins

def d_main(p, emb):
    keys_and_top8(p)
    p(';ST 0')
    p("""
    v_lshrrev_b32 v23, 4, v1
    v_and_b32 v23, 1, v23
    v_lshlrev_b32 v24, 4, v23
""")
    for r in range(4):
        p('v_add_u32 v21, %d, v24' % (4 * r))
        p('ds_bpermute_b32 v%d, v21, v17' % (8 + r))
    p('s_waitcnt lgkmcnt(0)')
    for r in range(4):
        k = 8 + r
        p('v_and_b32 v%d, 0xffff, v%d' % (17 + r if r else 18, k) if False else 'v_and_b32 v%d, 0xffff, v%d' % (100 + r, k))
        p('v_sub_u32 v%d, 2047, v%d' % (100 + r, 100 + r))
        p('v_mul_u32_u24 v%d, 896, v%d' % (104 + r, 100 + r))
    p('v_lshlrev_b32 v25, 1, v25')
    p('v_add_u32 v25, s40, v25')
    for r in range(4):
        p('v_add_u32 v%d, v%d, v25' % (104 + r, 104 + r))
    for r in range(4):
        p('buffer_load_ushort v%d, v%d, s[28:31], 0 offen%s' % (108 + r, 104 + r, ' sc1' if emb else ''))
    for r in range(4):
        k = 8 + r
        p('v_and_b32 v%d, 0xffff0000, v%d' % (k, k))
        p('v_ashrrev_i32 v16, 31, v%d' % k)
        p('v_not_b32 v16, v16')
        p('v_or_b32 v16, 0x80000000, v16')
        p('v_xor_b32 v%d, v%d, v16' % (k, k))
        p('v_and_b32 v%d, 0xffff0000, v%d' % (k, k))
        p('v_mul_f32 v%d, 0xbfb8aa3b, v%d' % (12 + r, k))
    for r in range(4): p('v_exp_f32 v%d, v%d' % (12 + r, 12 + r))
    p('s_nop 0')
    for r in range(4): p('v_add_f32 v%d, 1.0, v%d' % (12 + r, 12 + r))
    for r in range(4): p('v_rcp_f32 v%d, v%d' % (12 + r, 12 + r))
    p('s_nop 0')
    for r in range(4): p('v_cvt_pk_bf16_f32 v%d, v%d, 0' % (12 + r, 12 + r))
    for r in range(4): p('v_lshlrev_b32 v%d, 16, v%d' % (12 + r, 12 + r))
    p("""
    v_lshrrev_b32 v28, 4, v1
    v_lshlrev_b32 v28, 3, v28
    v_bfe_u32 v29, v1, 2, 2
    v_add_u32 v28, v28, v29
    v_lshlrev_b32 v28, 5, v28
    v_and_b32 v29, 3, v1
    v_lshl_add_u32 v28, v29, 3, v28
    v_add_u32 v28, s46, v28
    v_and_b32 v4, 7, v1
    v_mul_u32_u24 v22, 3584, v4
    v_lshrrev_b32 v23, 4, v1
    v_lshl_add_u32 v22, v23, 4, v22
    s_mul_i32 s41, s3, 896
    v_add_u32 v22, s41, v22
    s_waitcnt vmcnt(4)
""")
    tr_frags(p, 28, 112, 14)
    p(';ST 1')
    if K34_SENT:
        p('''
    v_lshlrev_b32 v21, 6, v1
    s_mul_i32 s41, s3, 896
    s_add_u32 s41, s41, %d
    v_add_u32 v21, s41, v21
    v_mov_b32 v23, 0x40000000
    v_cmp_gt_u32 vcc, 14, v1
    s_nop 1
    v_cndmask_b32 v21, v23, v21, vcc
L_k34_prepoll:
    buffer_load_dword v23, v21, s[20:23], 0 offen sc1
    s_waitcnt vmcnt(0)
    v_cmp_eq_u32 vcc, -1, v23
    %s
    s_sleep %d
    s_branch L_k34_prepoll
''' % (7 * 3584, ('s_nop 0\n    s_cbranch_vccz L_k34_poll' if not K34_ANY else 's_nop 0\n    s_cmp_lg_u32 vcc_lo, 0x3fff\n    s_cbranch_scc1 L_k34_poll'), K34_PSLEEP))
        p('L_k34_poll:')
        for i in range(14):
            p('buffer_load_dwordx4 %s, v22, s[20:23], 0 offen offset:%d sc1' % (vr(32 + 4 * i, 4), 64 * i))
        p('s_waitcnt vmcnt(0)')
        p('v_max3_u32 v21, v32, v33, v34')
        for k in range(35, 87, 2):
            p('v_max3_u32 v21, v21, v%d, v%d' % (k, k + 1))
        p('v_max_u32 v21, v21, v87')
        p('v_cmp_eq_u32 vcc, -1, v21')
        p('s_nop 0')
        p('s_cbranch_vccz L_k34_polled')
        p('s_sleep %d' % K34_SLEEP)
        p('s_branch L_k34_poll')
        p('L_k34_polled:')
        p(';ST 2')
    else:
        p("""
        s_cmp_lg_u32 s3, 0
        s_cbranch_scc1 L_k34_polled
        v_mov_b32 v21, 0
    L_k34_poll:
        buffer_load_dword v23, v21, s[56:59], 0 offen offset:%d sc1
        s_waitcnt vmcnt(0)
        v_readfirstlane_b32 s41, v23
        s_cmp_eq_u32 s41, %d
        s_cbranch_scc1 L_k34_polled
        s_sleep %d
        s_branch L_k34_poll
    L_k34_polled:
        s_barrier
    """ % ((0, 56, K34_SLEEP) if K34_DIRECT else (128, 1, K34_SLEEP)))
        p(';ST 2')
        for i in range(14):
            p('buffer_load_dwordx4 %s, v22, s[20:23], 0 offen offset:%d sc1' % (vr(32 + 4 * i, 4), 64 * i))
    p('s_waitcnt lgkmcnt(0)')
    for i in range(14):
        if i % 2 == 0 and not K34_SENT: p('s_waitcnt vmcnt(%d)' % (12 - i))
        acc = 'v[172:175]' if i % 2 == 0 else 'v[176:179]'
        c = '0' if i < 2 else acc
        p('v_mfma_f32_16x16x32_bf16 %s, %s, %s, %s' % (acc, vr(32 + 4 * i, 4), vr(112 + 4 * i, 4), c))
    p('s_nop 7')
    for r in range(4): p('v_add_f32 v%d, v%d, v%d' % (172 + r, 172 + r, 176 + r))
    p('s_nop 7')
    p("""
    v_lshlrev_b32 v30, 4, v1
    s_lshl_b32 s41, s3, 10
    v_add_u32 v30, s41, v30
    ds_write_b128 v30, v[172:175] offset:%d
    s_waitcnt lgkmcnt(0)
    s_barrier
    s_cmp_lg_u32 s3, 0
    s_cbranch_scc1 L_st_end_k34
    ds_read_b128 v[176:179], v30 offset:%d
    ds_read_b128 v[180:183], v30 offset:%d
    ds_read_b128 v[184:187], v30 offset:%d
    s_waitcnt lgkmcnt(0)
""" % (TOPK_LDS + 1024, TOPK_LDS + 2048, TOPK_LDS + 3072, TOPK_LDS + 4096))
    Y = 172
    for r in range(4):
        p('v_add_f32 v%d, v%d, v%d' % (Y + r, Y + r, 176 + r))
        p('v_add_f32 v%d, v%d, v%d' % (180 + r, 180 + r, 184 + r))
    for r in range(4):
        p('v_add_f32 v%d, v%d, v%d' % (Y + r, Y + r, 180 + r))
    def rnd(a):
        p('v_cvt_pk_bf16_f32 v188, v%d, v%d' % (a, a + 1))
        p('v_cvt_pk_bf16_f32 v189, v%d, v%d' % (a + 2, a + 3))
        p('v_lshlrev_b32 v%d, 16, v188' % a); p('v_and_b32 v%d, 0xffff0000, v188' % (a + 1))
        p('v_lshlrev_b32 v%d, 16, v189' % (a + 2)); p('v_and_b32 v%d, 0xffff0000, v189' % (a + 3))
    rnd(Y)
    for r in range(4): p('v_mul_f32 v%d, v%d, v%d' % (Y + r, Y + r, 12 + r))
    rnd(Y)
    for r in range(4):
        p('v_lshlrev_b32 v%d, 16, v%d' % (108 + r, 108 + r))
        p('v_fma_f32 v%d, v%d, v31, v%d' % (Y + r, Y + r, 108 + r))
    p('v_cvt_pk_bf16_f32 v188, v%d, v%d' % (Y, Y + 1))
    p('v_cvt_pk_bf16_f32 v189, v%d, v%d' % (Y + 2, Y + 3))
    p("""
    v_mov_b32 v27, 0x40000000
    v_cmp_gt_u32 vcc, 32, v1
    s_nop 1
""")
    for r in range(4): p('v_cndmask_b32 v%d, v27, v%d, vcc' % (104 + r, 104 + r))
    p("""
    buffer_store_short v188, v104, s[28:31], 0 offen
    buffer_store_short_d16_hi v188, v105, s[28:31], 0 offen
    buffer_store_short v189, v106, s[28:31], 0 offen
    buffer_store_short_d16_hi v189, v107, s[28:31], 0 offen
""")

def build_k34():
    p = Prog()
    p("""
k34_kernel:
    s_cmp_ge_u32 s2, 84
    s_cbranch_scc1 L_end_k34
    s_load_dwordx4 s[4:7], s[0:1], 56
    s_load_dwordx2 s[48:49], s[0:1], 72
    s_load_dwordx4 s[52:55], s[0:1], 96
    s_load_dwordx2 s[24:25], s[0:1], 112
    v_and_b32 v1, 63, v0
    v_lshrrev_b32 v2, 6, v0
    s_nop 0
    v_readfirstlane_b32 s3, v2
    v_lshlrev_b32 v5, 5, v0
    s_waitcnt lgkmcnt(0)
""")
    srd(p, 12, 24, 8192, str(WS_R))
    p('buffer_load_dwordx4 v[8:11], v5, s[12:15], 0 offen')
    p('buffer_load_dwordx4 v[12:15], v5, s[12:15], 0 offen offset:16')
    srd(p, 16, 24, 2048 * 896, str(WS_H2))
    srd(p, 20, 24, 28672, str(WS_ACT))
    srd(p, 56, 54, 256)
    p("""
    s_cmp_ge_u32 s2, 56
    s_cbranch_scc1 L_k34_down
    s_cmp_ge_u32 s3, 2
    s_cselect_b32 s4, s6, s4
    s_cselect_b32 s5, s7, s5
""")
    srd(p, 8, 4, 448 * 3584)
    p("""
    s_and_b32 s40, s2, 7
    s_mul_i32 s40, s40, 7
    s_lshr_b32 s41, s2, 3
    s_add_u32 s40, s40, s41
    s_lshl_b32 s40, s40, 6
    s_and_b32 s41, s3, 1
    s_lshl_b32 s41, s41, 5
    s_add_u32 s40, s40, s41
    v_lshrrev_b32 v3, 1, v1
    v_mul_u32_u24 v3, 3584, v3
    v_and_b32 v4, 1, v1
    v_lshl_add_u32 v3, v4, 4, v3
    v_add_u32 v3, s40, v3
    s_mov_b32 s45, %d
    s_mul_i32 s46, s3, 14336
""" % (32 * 3584))
    wstage(p, 8, 3, 14, 46)
    p('s_waitcnt vmcnt(14)')
    p(';ST 0')
    g_main(p, False)
    p('L_k34_down:')
    p('s_sub_u32 s39, s2, 56')
    p('s_mul_i32 s40, s3, %d' % (448 * 896))
    p('s_add_u32 s48, s48, s40'); p('s_addc_u32 s49, s49, 0')
    srd(p, 8, 48, 448 * 896)
    srd(p, 60, 24, 10752)
    srd(p, 28, 52, 2048 * 896)
    p("""
    s_and_b32 s47, s39, 7
    s_lshr_b32 s41, s39, 3
    s_lshl_b32 s42, s47, 2
    s_mul_i32 s43, s47, 3
    s_add_u32 s43, s43, 4
    s_cmp_lt_u32 s47, 4
    s_cselect_b32 s47, s42, s43
    s_add_u32 s47, s47, s41           ; column block
    s_lshl_b32 s40, s47, 5              ; column byte offset
    v_lshrrev_b32 v3, 1, v1
    v_mul_u32_u24 v3, 896, v3
    v_and_b32 v4, 1, v1
    v_lshl_add_u32 v3, v4, 4, v3
    v_add_u32 v3, s40, v3
    s_mov_b32 s45, %d
    s_mul_i32 s46, s3, 14336
    v_and_b32 v25, 15, v1
    v_lshlrev_b32 v26, 2, v25
    s_lshl_b32 s41, s47, 6
    v_add_u32 v26, s41, v26
    s_mov_b32 s42, 8960
    buffer_load_dword v31, v26, s[60:63], s42 offen                ; gb[col]
""" % (32 * 896))
    wstage(p, 8, 3, 14, 46)
    p('s_waitcnt vmcnt(15)')
    d_main(p, False)
    p("""
L_st_end_k34:
L_end_k34:
    s_endpgm
""")
    return p


K2_OUT_FLAGS = ''
K2_H_FLAGS = ''
K2_R_FLAGS = ''
def k2_math(p, P0, XR, GA, S2, A2, GB, WR, ACC, X1, PK, VOUT, VMASK, VLANE_, VBIG, SEL, srd_h2, srd_out, srd_r, s_row0, T, key_in_reg=False):
    for rr in range(2):
        for j in range(8):
            p('v_mul_f32 v%d, v%d, v%d' % (ACC[rr] + j, ACC[rr] + j, GA + j))
        for j in range(8):
            p('v_dot2_f32_bf16 v%d, v%d, v%d, v%d' % (ACC[rr] + j, XR[rr] + j // 2, SEL + j % 2, ACC[rr] + j))
    p('s_nop 2')
    for rr in range(2):
        for j in range(0, 8, 2):
            p('v_cvt_pk_bf16_f32 v%d, v%d, v%d' % (PK + rr * 4 + j // 2, ACC[rr] + j, ACC[rr] + j + 1))
    for rr in range(2):
        for j in range(8):
            if j % 2 == 0: p('v_lshlrev_b32 v%d, 16, v%d' % (X1[rr] + j, PK + rr * 4 + j // 2))
            else: p('v_and_b32 v%d, 0xffff0000, v%d' % (X1[rr] + j, PK + rr * 4 + j // 2))
    SUM = [T, T + 1]
    for rr in range(2):
        p('v_add_f32 v%d, v%d, v%d' % (SUM[rr], X1[rr], X1[rr] + 1))
        for j in range(2, 8): p('v_add_f32 v%d, v%d, v%d' % (SUM[rr], SUM[rr], X1[rr] + j))
    wave_reduce_multi(p, SUM, [T + 2, T + 3])
    XC = ACC
    for rr in range(2):
        p('v_mul_f32 v%d, 0xbb124925, v%d' % (SUM[rr], SUM[rr]))
    for rr in range(2):
        for j in range(8):
            p('v_add_f32 v%d, v%d, v%d' % (XC[rr] + j, X1[rr] + j, SUM[rr]))
    VAR = [T + 2, T + 3]
    for rr in range(2):
        p('v_mul_f32 v%d, v%d, v%d' % (VAR[rr], XC[rr], XC[rr]))
        for j in range(1, 8): p('v_fmac_f32 v%d, v%d, v%d' % (VAR[rr], XC[rr] + j, XC[rr] + j))
    for rr in range(2):
        p('v_mul_f32 v%d, v%d, v%d' % (VAR[rr], VAR[rr], VMASK))
    wave_reduce_multi(p, VAR, [T + 4, T + 5])
    for rr in range(2):
        p('v_mov_b32 v%d, 0x3727c5ac' % (T + 4 + rr))
        p('v_fmac_f32 v%d, 0x3b124925, v%d' % (T + 4 + rr, VAR[rr]))
    for rr in range(2):
        p('v_rsq_f32 v%d, v%d' % (VAR[rr], T + 4 + rr))
    p('s_nop 0')
    H = [PK, PK + 4]
    for rr in range(2):
        for j in range(8):
            p('v_mul_f32 v%d, v%d, v%d' % (XC[rr] + j, XC[rr] + j, VAR[rr]))
        for j in range(8):
            p('v_fma_f32 v%d, v%d, v%d, v%d' % (XC[rr] + j, XC[rr] + j, A2 + j, S2 + j))
        for j in range(0, 8, 2):
            p('v_cvt_pk_bf16_f32 v%d, v%d, v%d' % (H[rr] + j // 2, XC[rr] + j, XC[rr] + j + 1))
    for rr in range(2):
        p('buffer_store_dwordx4 %s, v%d, s[%d:%d], 0 offen offset:%d%s' % (vr(H[rr], 4), VOUT, srd_h2, srd_h2 + 3, rr * 896, K2_H_FLAGS))
    RR = [T + 4, T + 5]
    for rr in range(2):
        p('v_mov_b32 v%d, 0' % RR[rr])
    for j in range(4):
        for rr in range(2):
            p('v_dot2_f32_bf16 v%d, v%d, v%d, v%d' % (RR[rr], H[rr] + j, WR + j, RR[rr]))
    OUTR = [P0[0], P0[0] + 4]
    for rr in range(2):
        for j in range(8):
            if j % 2 == 0: p('v_lshlrev_b32 v%d, 16, v%d' % (XC[rr] + j, H[rr] + j // 2))
            else: p('v_and_b32 v%d, 0xffff0000, v%d' % (XC[rr] + j, H[rr] + j // 2))
        for j in range(8):
            p('v_fma_f32 v%d, v%d, v%d, v%d' % (XC[rr] + j, XC[rr] + j, GB + j, X1[rr] + j))
        for j in range(0, 8, 2):
            p('v_cvt_pk_bf16_f32 v%d, v%d, v%d' % (OUTR[rr] + j // 2, XC[rr] + j, XC[rr] + j + 1))
        p('buffer_store_dwordx4 %s, v%d, s[%d:%d], 0 offen offset:%d%s' % (vr(OUTR[rr], 4), VOUT, srd_out, srd_out + 3, rr * 896, K2_OUT_FLAGS))
    wave_reduce_multi(p, RR, [T, T + 1])
    p("""
    v_cvt_pk_bf16_f32 v%d, v%d, 0
    v_cvt_pk_bf16_f32 v%d, v%d, 0
    v_cmp_eq_u32 vcc, 1, v%d
    s_nop 1
    v_cndmask_b32 v%d, v%d, v%d, vcc
    v_lshlrev_b32 v%d, 16, v%d            ; r rounded to bf16 (row0 in lane 0, row1 in lane 1)
    v_ashrrev_i32 v%d, 31, v%d
    v_or_b32 v%d, 0x80000000, v%d
    v_xor_b32 v%d, v%d, v%d               ; order-preserving integer image
    v_and_b32 v%d, 0xffff0000, v%d
    v_add_u32 v%d, s%d, v%d               ; row index
    v_sub_u32 v%d, 2047, v%d
    v_or_b32 v%d, v%d, v%d                ; key = image | (2047 - row): unique, ties go to the lower row
""" % (RR[0], RR[0], RR[1], RR[1], VLANE_, RR[0], RR[0], RR[1], RR[0], RR[0],
       RR[1], RR[0], RR[1], RR[1], RR[0], RR[0], RR[1], RR[0], RR[0],
       T, s_row0, VLANE_, T + 1, T, RR[0], RR[0], T + 1))
    if key_in_reg:
        return RR[0]
    p("""
    v_lshlrev_b32 v%d, 2, v%d
    v_cmp_gt_u32 vcc, 2, v%d
    s_nop 1
    v_cndmask_b32 v%d, v%d, v%d, vcc
    buffer_store_dword v%d, v%d, s[%d:%d], 0 offen%s
""" % (T, T, VLANE_, T, VBIG, T, RR[0], T, srd_r, srd_r + 3, K2_R_FLAGS))


KEY_SLEEP0 = 16
MOE_AFTERPUB = False
MOE_EARLY = True
KEY_SLEEP = 8
MOE_INTERLEAVE = True
def moe_pre(p, SW, VL):
    p("""
    s_cmp_ge_u32 s2, 56
    s_cbranch_scc1 L_moe_pre_d
    s_cmp_ge_u32 s%d, 2
    s_cselect_b32 s64, s30, s28
    s_cselect_b32 s65, s31, s29          ; waves 0,1: gate ; waves 2,3: up
    s_mov_b32 s66, %d
    s_mov_b32 s67, 0x20000
    s_and_b32 s40, s2, 7
    s_mul_i32 s40, s40, 7
    s_lshr_b32 s41, s2, 3
    s_add_u32 s40, s40, s41
    s_lshl_b32 s40, s40, 6
    s_and_b32 s41, s%d, 1
    s_lshl_b32 s41, s41, 5
    s_add_u32 s40, s40, s41
    v_lshrrev_b32 v210, 1, v%d
    v_mul_u32_u24 v210, 3584, v210
    s_mov_b32 s45, %d
    s_branch L_moe_pre_go
L_moe_pre_d:
    s_sub_u32 s39, s2, 56
    s_mul_i32 s40, s%d, %d
    s_add_u32 s64, s32, s40
    s_addc_u32 s65, s33, 0
    s_mov_b32 s66, %d
    s_mov_b32 s67, 0x20000
    s_and_b32 s47, s39, 7
    s_lshr_b32 s41, s39, 3
    s_lshl_b32 s42, s47, 2
    s_mul_i32 s43, s47, 3
    s_add_u32 s43, s43, 4
    s_cmp_lt_u32 s47, 4
    s_cselect_b32 s47, s42, s43
    s_add_u32 s47, s47, s41           ; column block
    s_lshl_b32 s40, s47, 5              ; column byte offset
    v_lshrrev_b32 v210, 1, v%d
    v_mul_u32_u24 v210, 896, v210
    s_mov_b32 s45, %d
L_moe_pre_go:
    v_and_b32 v211, 1, v%d
    v_lshl_add_u32 v210, v211, 4, v210
    v_add_u32 v210, s40, v210
    s_mul_i32 s46, s%d, 14336
""" % (SW, 448 * 3584, SW, VL, 32 * 3584, SW, 448 * 896, 448 * 896, VL, 32 * 896, VL, SW))
    wstage(p, 64, 210, 14, 46)

def moe_main(p, SW, VL, VEC, st=lambda n: None):
    p("""
    s_mov_b32 s3, s%d
    v_mov_b32 v1, v%d
    s_lshl_b32 s41, s3, 6
    v_add_u32 v0, s41, v1
    v_lshlrev_b32 v5, 5, v0
""" % (SW, VL))
    if MOE_AFTERPUB:
        moe_pre(p, SW, VL)
    p("""
L_keys_poll:
    s_sleep %d
    buffer_load_dwordx4 v[8:11], v5, s[96:99], 0 offen sc1
    buffer_load_dwordx4 v[12:15], v5, s[96:99], 0 offen offset:16 sc1
    s_waitcnt vmcnt(0)
    v_max3_u32 v16, v8, v9, v10
    v_max3_u32 v16, v16, v11, v12
    v_max3_u32 v16, v16, v13, v14
    v_max_u32 v16, v16, v15
    v_cmp_eq_u32 vcc, -1, v16
    s_nop 0
    s_cbranch_vccnz L_keys_poll
L_keys_ok:
""" % KEY_SLEEP0)
    st('kpoll')
    pre = Prog()
    if MOE_AFTERPUB:
        pre('s_mov_b32 s44, 0')
    elif MOE_EARLY:
        moe_params(p, SW)
        pre('s_mov_b32 s44, 0')
    else:
        moe_pre(pre, SW, VL)
    cut = [k for k, i in enumerate(pre.ins) if i.text.startswith('s_mov_b32 s44, 0')][0]
    dma_items = pre.ins[cut:] if MOE_INTERLEAVE else []
    p.extend(pre.ins[:cut] if MOE_INTERLEAVE else pre.ins)
    p("""
    s_mov_b32 s28, s16
    s_mov_b32 s29, s17
    s_mov_b32 s30, s18
    s_mov_b32 s31, s19
    s_mov_b32 s16, s20
    s_mov_b32 s17, s21
    s_mov_b32 s18, s22
    s_mov_b32 s19, s23
""")
    srd(p, 20, 24, 28672, str(WS_ACT))
    p('s_cmp_ge_u32 s2, 56')
    p('s_cbranch_scc1 L_moe_d')
    global TOP8_MASK
    TOP8_MASK = 48
    def weave(q, endmark):
        items = []
        cur = []
        for i in dma_items:
            cur.append(i)
            if i.kind == 'vmem': items.append(cur); cur = []
        if cur and items: items[-1] += cur
        end = [k for k, i in enumerate(q.ins) if i.text.startswith(endmark)][0]
        out = []
        step = max(1, (end - 4) // (len(items) + 1)) if items else 1 << 30
        n = 0
        for k, i in enumerate(q.ins):
            out.append(i)
            if k < end and items and n < len(items) and k >= (n + 1) * step and i.text.startswith('v_max_u32_dpp'):
                out += items[n]; n += 1
            if k == end - 1:
                while n < len(items): out += items[n]; n += 1
        return out
    q = Prog()
    g_main(q, True)
    for i in weave(q, ';ST 1'):
        if i.text.startswith(';ST 1'): st('top8')
        elif i.text.startswith(';ST 2'): st('gath')
        else: p.ins.append(i)
    p('L_moe_d:')
    p("""
    v_and_b32 v25, 15, v1
    s_lshl_b32 s41, s47, 6
    v_lshl_add_u32 v26, v25, 2, s41
    v_add_u32 v26, %d, v26
    ds_read_b32 v31, v26
    s_waitcnt lgkmcnt(0)
""" % (VEC + 1344 * 4))
    q = Prog()
    d_main(q, True)
    for i in weave(q, ';ST 0'):
        if i.text.startswith(';ST 0'): st('top8')
        elif i.text.startswith(';ST 2'): st('gath')
        else: p.ins.append(i)
    TOP8_MASK = 64


LB = 69632
def moe_stage_early(p, SW, VL):
    p("""
    s_cmp_ge_u32 s2, 84
    s_cbranch_scc1 L_stage_none
    s_cmp_eq_u32 s%d, 0
    s_cbranch_scc1 L_stage_none
    s_cmp_ge_u32 s2, 56
    s_cbranch_scc1 L_stage_d
    s_and_b32 s40, s2, 7
    s_mul_i32 s40, s40, 7
    s_lshr_b32 s41, s2, 3
    s_add_u32 s40, s40, s41
    s_lshl_b32 s40, s40, 6             ; column byte offset of the block
    v_lshrrev_b32 v210, 1, v%d
    v_mul_u32_u24 v210, 3584, v210
    s_mov_b32 s62, %d
    s_cmp_ge_u32 s%d, 2
    s_cselect_b32 s64, s30, s28
    s_cselect_b32 s65, s31, s29
    s_mov_b32 s66, %d
    s_and_b32 s41, s%d, 1
    s_lshl_b32 s41, s41, 5             ; +32 B for the second column tile
    s_mov_b32 s63, 0                   ; soffset base of region w
    s_mov_b32 s61, 0                   ; soffset base of region 0
    s_branch L_stage_go
L_stage_d:
    s_sub_u32 s39, s2, 56
    s_and_b32 s61, s39, 7
    s_lshr_b32 s41, s39, 3
    s_lshl_b32 s42, s61, 2
    s_mul_i32 s43, s61, 3
    s_add_u32 s43, s43, 4
    s_cmp_lt_u32 s61, 4
    s_cselect_b32 s61, s42, s43
    s_add_u32 s61, s61, s41
    s_lshl_b32 s40, s61, 5
    v_lshrrev_b32 v210, 1, v%d
    v_mul_u32_u24 v210, 896, v210
    s_mov_b32 s62, %d
    s_mov_b32 s64, s32
    s_mov_b32 s65, s33
    s_mov_b32 s66, %d
    s_mov_b32 s41, 0
    s_mul_i32 s63, s%d, %d
    s_mov_b32 s61, 0
L_stage_go:
    s_mov_b32 s67, 0x20000
    v_and_b32 v211, 1, v%d
    v_lshl_add_u32 v210, v211, 4, v210
    v_add_u32 v210, s40, v210
    v_add_u32 v211, s41, v210          ; region w
    s_mul_i32 s42, s%d, 14336
    s_add_u32 s42, s42, %d
""" % (SW, VL, 32 * 3584, SW, 448 * 3584, SW, VL, 32 * 896, 1792 * 896, SW, 448 * 896, VL, SW, LB))
    for i in range(14):
        p('s_add_u32 m0, s42, %d' % (i * 1024))
        p('s_nop 0')
        p('buffer_load_dwordx4 v211, s[64:67], s63 offen lds')
        if i < 13: p('s_add_u32 s63, s63, s62')
    p("""
    s_cmp_eq_u32 s%d, 1
    s_cbranch_scc1 L_stage_w1
    s_waitcnt vmcnt(14)
    s_branch L_stage_done
L_stage_w1:
""" % SW)
    for i in range(14):
        p('s_mov_b32 m0, %d' % (LB + i * 1024))
        p('s_nop 0')
        p('buffer_load_dwordx4 v210, s[64:67], s61 offen lds')
        if i < 13: p('s_add_u32 s61, s61, s62')
    p("""
    s_waitcnt vmcnt(28)
    s_branch L_stage_done
L_stage_none:
    s_waitcnt vmcnt(0)
L_stage_done:
""")

def moe_params(p, SW):
    p("""
    s_mul_i32 s46, s%d, 14336
    s_add_u32 s46, s46, %d
    s_cmp_ge_u32 s2, 56
    s_cbranch_scc1 L_par_d
    s_and_b32 s40, s2, 7
    s_mul_i32 s40, s40, 7
    s_lshr_b32 s41, s2, 3
    s_add_u32 s40, s40, s41
    s_lshl_b32 s40, s40, 6
    s_and_b32 s41, s%d, 1
    s_lshl_b32 s41, s41, 5
    s_add_u32 s40, s40, s41
    s_branch L_par_done
L_par_d:
    s_sub_u32 s39, s2, 56
    s_and_b32 s47, s39, 7
    s_lshr_b32 s41, s39, 3
    s_lshl_b32 s42, s47, 2
    s_mul_i32 s43, s47, 3
    s_add_u32 s43, s43, 4
    s_cmp_lt_u32 s47, 4
    s_cselect_b32 s47, s42, s43
    s_add_u32 s47, s47, s41
    s_lshl_b32 s40, s47, 5
L_par_done:
""" % (SW, LB, SW))
```

```python
import sys
from asmlib import *
import gen_attn2 as A
import k1, ksmall
def add_stamps(p, k):
    kid = int(k[1])
    q = Prog()
    for j, i in enumerate(p.ins):
        if i.kind == 'branch' and 'L_st_end_' in i.text: p.ins[j] = I(i.text.replace('L_st_end_', 'L_end_'))
    for i in p.ins:
        if i.text.startswith(';ST '):
            n = int(i.text.split()[1])
            q('s_memrealtime s[%d:%d]' % (80 + 2 * n, 81 + 2 * n))
            q('s_waitcnt lgkmcnt(0)')
            continue
        if i.kind == 'label' and i.text.startswith('L_end_'):
            q('L_st_%s:' % k)
            q("""
    s_memrealtime s[94:95]
    s_load_dwordx2 s[88:89], s[0:1], 112
    s_waitcnt lgkmcnt(0)
    s_mov_b32 s90, 0x10000000
    s_mov_b32 s91, 0x20000
    s_lshl_b32 s3, s2, 5
    s_add_u32 s3, s3, %d
    v_mov_b32 v2, s92
    v_mov_b32 v3, s94
    v_mov_b32 v4, s80
    v_mov_b32 v5, s82
    v_mov_b32 v6, s84
    v_mov_b32 v7, s86
    v_mov_b32 v1, s3
    v_cmp_eq_u32 vcc, 0, v255
    s_and_saveexec_b64 s[4:5], vcc
    s_cbranch_execz L_stx_%s
    buffer_store_dwordx4 v[2:5], v1, s[88:91], 0 offen
    buffer_store_dwordx2 v[6:7], v1, s[88:91], 0 offen offset:16
L_stx_%s:
    s_mov_b64 exec, s[4:5]
    s_waitcnt vmcnt(0)
""" % (0xb000000 + kid * 0x10000, k, k))
        q.ins.append(i)
        if i.kind == 'label' and i.text.endswith('_kernel:'):
            q('s_memrealtime s[92:93]')
            q('v_mov_b32 v255, v0')
    n = 0
    for j, i in enumerate(q.ins):
        if i.kind == 'branch' and 'L_end_' in i.text:
            n += 1
            if n > 1: q.ins[j] = I(i.text.replace('L_end_' + k, 'L_st_' + k))
    return q
def build(o, list_k=('k1', 'k2', 'k34')):
    parts = []
    probs = []
    kernels = {'k0': (ksmall.build_k0, 42, 1024, 128), 'k1': (None, 256, 163840, 512), 'k2': (ksmall.build_k2, 256, 0, 256),
               'k3': (ksmall.build_k3, 56, 57344 + 256 + 2048 + 256, 256), 'k4': (ksmall.build_k4, 28, 57344 + 4096, 256),
               'k34': (ksmall.build_k34, 84, 57344 + 5120 + 256, 256)}
    hdr = ''
    for k in list_k:
        hdr += '; @launch kernel=%s_kernel grid=(%d,1,1) block=(256,1,1) lds=%d\n' % (k, kernels[k][1], kernels[k][2])
    hdr += '.amdgcn_target "amdgcn-amd-amdhsa--gfx950"\n.text\n'
    body = ''; kd = ''
    for k in dict.fromkeys(list_k):
        if k == 'k1':
            p, pr = k1.build_k1(o)
        else:
            p = kernels[k][0](); pr = check_hazards(p.ins, k)
        probs += pr
        if getattr(o, 'kst', 0) and k != 'k1':
            p = add_stamps(p, k)
        body += '.globl %s_kernel\n.p2align 8\n.type %s_kernel,@function\n' % (k, k) + p.text()
        nv = 256 if (getattr(o, 'kst', 0) and k != 'k1') else kernels[k][3]
        kd += '.p2align 6' + k1.KD % ('%s_kernel' % k, nv, 102 if k == 'k1' else 96, min(nv, 256))
    return hdr + body + '.section .rodata,"a"\n' + kd, probs
HEADER = '''; adaLN + GQA attention + router/MoE block, one launch, 256 workgroups x 4 waves (one workgroup per CU).
'''
if __name__ == '__main__':
    o = A.Opt()
    o.kgap = 1
    o.dma_gaps = [3, 7, 11, 15, 19, 23, 27, 31, 35, 39, 43, 47, 51, 55, 59, 63]
    o.stamps = 0; o.pf = 1; o.pfd = 3; o.pfmoe = 1; o.pf_kv_early = 0; o.late_dma = 0; o.qcvt = 1; o.fuse_k2 = 1; o.kdma_late = 0; o.one = 1; o.esend = 0; o.fastpro = 1; o.part_flags = ' sc1'
    out = sys.argv[1]
    for kv in sys.argv[2:]:
        k, v = kv.split('=')
        try: v = int(v, 0)
        except ValueError:
            if v.startswith('['): v = eval(v)
        setattr(o, k, v)
    ksmall.K34_DIRECT = getattr(o, 'k34direct', 0); ksmall.K34_SLEEP = getattr(o, 'k34sleep', 4)
    ksmall.K34_SENT = getattr(o, 'k34sent', 1)
    ksmall.K34_PSLEEP = getattr(o, 'k34ps', 8)
    ksmall.K34_ANY = getattr(o, 'k34any', 0)
    ksmall.KEY_SLEEP0 = getattr(o, 'ks0', 24); ksmall.KEY_SLEEP = getattr(o, 'ks', 8); ksmall.MOE_INTERLEAVE = getattr(o, 'weave', 1)
    ksmall.MOE_EARLY = getattr(o, 'early', 0)
    ksmall.MOE_AFTERPUB = getattr(o, 'afterpub', 0)
    ksmall.K2_OUT_FLAGS = getattr(o, 'k2o', ''); ksmall.K2_H_FLAGS = getattr(o, 'k2h', ''); ksmall.K2_R_FLAGS = getattr(o, 'k2r', '')
    txt, probs = build(o, ('k1',) if o.one else ('k1', 'k34'))
    for pr in probs[:20]: print(pr)
    if o.one and getattr(o, 'plain', 1):
        NAME = 'adaLN_cond__gqa_block_cached__moe_arch_mod__prompt_kernel'
        txt = txt.replace('; @launch kernel=k1_kernel grid', '; @launch grid').replace('k1_kernel', NAME)
        txt = HEADER + txt
    print('hazards', len(probs), 'bytes', len(txt))
    open(out, 'w').write(txt)
```

```python
from asmlib import *
import gen_attn2 as A
from gen_attn2 import (vr, ar, BLK, HALF, KBUF, VBASE, SREG, PBUF, NEGM, FR, VK, VV, VOFF, LREG, TMP, VLANE,
                       S_K0, S_K1, S_V0, S_V1, S_DST, S_THR, S_RET, S_CNT, S_W, S_96, S, frag, kread, vread, qk_list, exps, dma,
                       max8, lreg)

WS_MOD = 0
WS_R = 0x4000
WS_IDX = 0x8000
WS_ACT = 0x10000
WS_H2 = 0x100000
WS_PART = 0x400000
WS_CNT = 0x20000
WS_STAMP = 0xa000000

H_OFF = 0
MV_OFF = 57344
QSLOT = [98304, 131072, 65536, 32768]
QX = 67584
XR = 0
ST = 131072
KEYL = 68608
VEC = 59392
WO0 = 135168

S_G, S_QB, S_S, S_QH = 36, 37, 38, 39
S_X = 40
S_WQ = 44
S_WO = 48
S_SO = 52
S_T0, S_T1, S_T2, S_T3 = 60, 61, 62, 63
S_QD = 64
S_QD2 = 32
S_WST = 65
S_PART = 68
S_STAMP = 72

class VmTracker:
    def __init__(self): self.ops = []
    def add(self, tag): self.ops.append(tag)
    def wait(self, tag):
        idx = max(i for i, t in enumerate(self.ops) if t == tag)
        n = len(self.ops) - 1 - idx
        assert n <= 63
        return 's_waitcnt vmcnt(%d)' % n

STAMPS = {1: ['start', 'ln_done', 'qproj', 'qexch', 'attnpro', 'loop', 'oproj', 'end'],
          2: ['start', 'xwait', 'stats', 'modbar', 'hbar', 'ln_done', 'qproj', 'end'],
          4: ['start', 'p_w', 'p_bar', 'p_st', 'stats', 'poll_done', 'modbar', 'end'],
          5: ['start', 'oproj', 'stores', 'drain', 'grp', 'k2ld', 'k2m', 'end'],
          6: ['start', 'k2ld', 'k2m', 'pub', 'kpoll', 'top8', 'gath', 'end'],
          3: ['start', 'loop', 'e1bar', 'comb', 'e3bar', 'oproj', 'stores', 'end']}
def stamp(p, o, name):
    if o.stamps and name in STAMPS[o.stamps]:
        k = STAMPS[o.stamps].index(name)
        p('s_memrealtime s[%d:%d]' % (S_STAMP + 2 * k, S_STAMP + 2 * k + 1))
        if name in ('xwait', 'stats', 'modbar', 'hbar', 'e1bar', 'comb', 'e3bar', 'p_w', 'p_bar', 'p_st', 'poll_done', 'pub', 'kpoll', 'top8', 'gath', 'k2m'): p('s_waitcnt lgkmcnt(0)')

def xreduce(p, r, t, op='v_add_f32'):
    p('v_mov_b32 v%d, v%d' % (t, r))
    p('s_nop 1')
    p('v_permlane16_swap_b32 v%d, v%d' % (r, t))
    p('s_nop 1')
    p('%s v%d, v%d, v%d' % (op, r, r, t))
    p('v_mov_b32 v%d, v%d' % (t, r))
    p('s_nop 1')
    p('v_permlane32_swap_b32 v%d, v%d' % (r, t))
    p('s_nop 1')
    p('%s v%d, v%d, v%d' % (op, r, r, t))

HFLY = False
def qslot(step):
    return [65536, 98304, 131072][(step + 1) % 3] if HFLY else QSLOT[step % 4]

def wq_dma(step, vm, VQ):
    out = []
    slot = qslot(step)
    for jj in range(8):
        if jj % 4 == 0:
            out.append('s_add_u32 m0, s%d, %d' % (S_QD2, slot + jj * 1024))
        out.append(('buffer_load_dwordx4 v%d, s[%d:%d], s%d offen offset:%d lds' % (VQ[(jj >> 1) & 1], S_WQ, S_WQ + 3, S_SO + jj, (jj & 3) * 1024), 'wq%d' % step))
    return out

def emit_dma(p, lst, vm, nop=True):
    for s in lst:
        if isinstance(s, tuple):
            p(s[0]); vm.add(s[1])
        else:
            p(s)
            if nop and s.startswith('s_') and 'm0' in s: p('s_nop 0')

WS_MODP = 0x30000
WS_MODP2 = 0x38000

def mod_dot(o, p, NI, cunpack, wname):
    C0, W0, HI, ACC, TT = 168, 76, 132, 148, 156
    cunpack(C0)
    for i in range(NI): p('v_mul_f32 v%d, 0xbfb8aa3b, v%d' % (HI + i, C0 + i))
    for i in range(NI): p('v_exp_f32 v%d, v%d' % (HI + i, HI + i))
    p('s_nop 0')
    for i in range(NI): p('v_add_f32 v%d, 1.0, v%d' % (HI + i, HI + i))
    for i in range(NI): p('v_rcp_f32 v%d, v%d' % (HI + i, HI + i))
    p('s_nop 0')
    for i in range(NI): p('v_mul_f32 v%d, v%d, v%d' % (C0 + i, C0 + i, HI + i))
    for i in range(NI): p('v_cvt_pk_bf16_f32 v%d, v%d, 0' % (C0 + i, C0 + i))
    for i in range(NI): p('v_lshlrev_b32 v%d, 16, v%d' % (HI + i, C0 + i))
    for j in range(8): p('v_mov_b32 v%d, 0' % (ACC + j))
    wname()
    for i in range(NI):
        for j in range(8):
            w = W0 + 4 * i + j // 2
            sel = (C0 + i) if j % 2 == 0 else (HI + i)
            p('v_dot2_f32_bf16 v%d, v%d, v%d, v%d' % (ACC + j, w, sel, ACC + j))
    p('s_nop 2')
    regs = [ACC + j for j in range(8)]; temps = [TT + j for j in range(8)]
    for r in regs:
        p('v_add_f32_dpp v%d, v%d, v%d row_ror:8 row_mask:0xf bank_mask:0xf' % (r, r, r))
    for sw in ('v_permlane16_swap_b32', 'v_permlane32_swap_b32'):
        for r, t in zip(regs, temps): p('v_mov_b32 v%d, v%d' % (t, r))
        p('s_nop 1')
        for r, t in zip(regs, temps): p('%s v%d, v%d' % (sw, r, t))
        p('s_nop 1')
        for r, t in zip(regs, temps): p('v_add_f32 v%d, v%d, v%d' % (r, r, t))

def mod_wgsum(p, tag):
    B_ = MV_OFF + 4096
    p("""
    v_and_b32 v164, 7, v%d
    s_lshl_b32 s60, s%d, 8
    v_lshlrev_b32 v164, 5, v164
    v_add_u32 v164, s60, v164
    ds_write_b128 v164, v[148:151] offset:%d
    ds_write_b128 v164, v[152:155] offset:%d
    s_waitcnt lgkmcnt(0)
    s_barrier
    ;STAMP p_bar
    s_cmp_lg_u32 s%d, 0
    s_cbranch_scc1 L_prod_done_%s
    v_lshlrev_b32 v164, 2, v%d
    ds_read_b32 v165, v164 offset:%d
    ds_read_b32 v166, v164 offset:%d
    ds_read_b32 v167, v164 offset:%d
    ds_read_b32 v168, v164 offset:%d
    s_waitcnt lgkmcnt(0)
    v_add_f32 v165, v165, v166
    v_add_f32 v167, v167, v168
    v_add_f32 v165, v165, v167
""" % (VLANE, S_W, B_, B_ + 16, S_W, tag, VLANE, B_, B_ + 256, B_ + 512, B_ + 768))

def producer(o, p, xloads):
    p("""
    s_cmp_ge_u32 s2, 56
    s_cbranch_scc1 L_prod_late
    s_mul_i32 s57, s2, 74
    s_lshr_b32 s57, s57, 10            ; ks = j / 14
    s_mul_i32 s58, s57, 14
    s_sub_u32 s58, s2, s58             ; cb = j %% 14
    s_mul_i32 s56, s57, 3584
    s_lshl_b32 s59, s58, 8
    s_add_u32 s56, s56, s59
    s_add_u32 s56, s56, %d             ; partial store offset
    s_branch L_prod_map
L_prod_late:
    s_sub_u32 s59, s2, 56
    s_mul_i32 s57, s59, 147
    s_lshr_b32 s57, s57, 12            ; ks = j' / 28
    s_mul_i32 s58, s57, 28
    s_sub_u32 s58, s59, s58            ; cb' = j' %% 28
    s_mul_i32 s56, s57, 7168
    s_lshl_b32 s59, s58, 8
    s_add_u32 s56, s56, s59
    s_add_u32 s56, s56, %d
    s_add_u32 s58, s58, 14
L_prod_map:
    s_mul_i32 s62, s57, 112
    s_mul_i32 s63, s%d, 28
    s_add_u32 s62, s62, s63            ; first row of this wave
    v_and_b32 v206, 7, v%d             ; cc
    v_lshrrev_b32 v207, 3, v%d         ; kg
    v_add_u32 v209, s62, v207          ; row (i = 0)
    v_mul_u32_u24 v208, 5376, v209
    v_lshl_add_u32 v208, v206, 4, v208
    s_lshl_b32 s63, s58, 7
    v_add_u32 v208, s63, v208
    v_lshlrev_b32 v209, 1, v209
    v_mov_b32 v210, 0x40000000
    v_cmp_gt_u32 vcc, 4, v207          ; i = 3 valid only for kg < 4
    s_nop 1
    v_cndmask_b32 v211, v210, v209, vcc
    v_cndmask_b32 v212, v210, v208, vcc
    s_mov_b32 s63, %d
""" % (WS_MODP, WS_MODP2, S_W, VLANE, VLANE, 8 * 5376))
    for i in range(3): p('buffer_load_ushort v%d, v209, s[68:71], 0 offen offset:%d' % (60 + i, 16 * i))
    p('buffer_load_ushort v63, v211, s[68:71], 0 offen offset:48')
    for i in range(3):
        p('buffer_load_dwordx4 %s, v208, s[64:67], 0 offen' % vr(76 + 4 * i, 4))
        p('v_add_u32 v208, s63, v208')
        p('v_add_u32 v212, s63, v212')
    p('buffer_load_dwordx4 v[88:91], v212, s[64:67], 0 offen')
    xloads()
    p('s_waitcnt vmcnt(18)')
    def cun(C0):
        for i in range(4): p('v_lshlrev_b32 v%d, 16, v%d' % (C0 + i, 60 + i))
    def wwait():
        p('s_waitcnt vmcnt(14)')
        stamp(p, o, 'p_w')
    mod_dot(o, p, 4, cun, wwait)
    mod_wgsum(p, 'u')
    p("""
    v_add_u32 v164, s56, v164
    buffer_store_dword v165, v164, s[24:27], 0 offen sc1
    s_cmp_ge_u32 s2, 56
    s_cbranch_scc1 L_prod_done_u       ; late producers signal after the modulation barrier
    ;ZEROCNT
    s_waitcnt vmcnt(0)
    ;STAMP p_st
    v_mov_b32 v165, 1
    v_mov_b32 v164, 0
    v_cmp_eq_u32 vcc, 0, v%d
    s_and_saveexec_b64 s[62:63], vcc
    buffer_atomic_add v165, v164, s[88:91], 0 offen sc0 sc1
    s_waitcnt vmcnt(0)
    v_readfirstlane_b32 s60, v165
    s_cmp_eq_u32 s60, 55
    s_cbranch_scc0 L_prod_notlast
    v_mov_b32 v165, 1
    buffer_store_dword v165, v164, s[88:91], 0 offen offset:128 sc1
L_prod_notlast:
    s_mov_b64 exec, s[62:63]
L_prod_done_u:
""" % VLANE)

def prologue(o):
    p = Prog()
    L = VLANE
    vm = VmTracker()
    p("""
    s_cmp_ge_u32 s2, 256
    s_cbranch_scc1 L_end_k1
    s_load_dwordx2 s[40:41], s[0:1], 0
    s_load_dwordx4 s[4:7], s[0:1], 8
    s_load_dwordx4 s[44:47], s[0:1], 24
    s_load_dwordx4 s[64:67], s[0:1], 80
    s_load_dwordx4 s[88:91], s[0:1], 104
    s_load_dwordx4 s[96:99], s[0:1], 56
    s_load_dwordx2 s[100:101], s[0:1], 72
    v_lshrrev_b32 v1, 6, v0
    v_and_b32 v%d, 63, v0
    s_nop 0
    v_readfirstlane_b32 s%d, v1
    ;MAP
    s_lshr_b32 s%d, s%d, 1        ; s (key half)
    s_and_b32 s%d, s%d, 1         ; qh
""" % (L, S_W, S_S, S_W, S_QH, S_W))
    idx = [k for k, i in enumerate(p.ins) if i.text.startswith(';MAP')][0]
    if getattr(o, 'scramble', 0):
        p.ins[idx:idx + 1] = [I('s_lshr_b32 s%d, s2, 5' % S_G), I('s_and_b32 s%d, s2, 31' % S_QB)]
    else:
        p.ins[idx:idx + 1] = [I('s_and_b32 s%d, s2, 7' % S_G), I('s_lshr_b32 s%d, s2, 3' % S_QB)]
    if o.stamps:
        p('s_memrealtime s[%d:%d]' % (S_STAMP, S_STAMP + 1))
    p("""
    ;CODEPF
    v_and_b32 v200, 15, v%d           ; n
    v_lshrrev_b32 v201, 4, v%d        ; kq
    s_lshl_b32 s60, s%d, 4
    v_add_u32 v202, s60, v200
    v_mul_u32_u24 v202, 896, v202
    v_lshl_add_u32 v202, v201, 4, v202
    s_mul_i32 s60, s%d, 57344
    s_waitcnt lgkmcnt(0)
    s_mov_b32 s24, s90
    s_mov_b32 s25, s91
    s_mov_b32 s26, 0x10000000
    s_mov_b32 s27, 0x20000
    s_mov_b32 s90, 256
    s_mov_b32 s91, 0x20000
    s_add_u32 s40, s40, s60
    s_addc_u32 s41, s41, 0
    s_mov_b32 s42, 57344
    s_mov_b32 s43, 0x20000
""" % (L, L, S_W, S_QB))
    def xl():
        for ks in range(14):
            p('buffer_load_dwordx4 %s, v202, s[40:43], 0 offen offset:%d' % (vr(4 * ks, 4), ks * 64))
    p("""
    s_cmp_ge_u32 s2, 168
    s_cbranch_scc1 L_noprod_a
    s_mov_b32 s68, s64
    s_mov_b32 s69, s65
    s_mov_b32 s70, 896
    s_mov_b32 s71, 0x20000
    s_mov_b32 s64, s66
    s_mov_b32 s65, s67
    s_mov_b32 s66, %d
    s_mov_b32 s67, 0x20000
""" % (448 * 5376))
    producer(o, p, xl)
    p('s_branch L_noprod_b')
    p('L_noprod_a:')
    for ks in range(14):
        p('buffer_load_dwordx4 %s, v202, s[40:43], 0 offen offset:%d' % (vr(4 * ks, 4), ks * 64)); vm.add('x')
    p('L_noprod_b:')
    if not o.one: p("""
    s_cmp_lg_u32 s2, 200
    s_cbranch_scc1 L_noactfill
    v_lshlrev_b32 v206, 4, v%d
    s_lshl_b32 s60, s%d, 10
    s_add_u32 s60, s60, %d
    v_add_u32 v206, s60, v206
    v_mov_b32 v208, -1
    v_mov_b32 v209, -1
    v_mov_b32 v210, -1
    v_mov_b32 v211, -1
""" % (L, S_W, WS_ACT))
    for i_ in range(7 if not o.one else 0):
        p('s_mov_b32 s60, %d' % (i_ * 4096))
        p('buffer_store_dwordx4 v[208:211], v206, s[24:27], s60 offen')
    if not o.one: p('L_noactfill:')
    p("""
    s_mov_b32 s48, s46
    s_mov_b32 s49, s47
    s_mul_i32 s60, s%d, 458752
    s_add_u32 s48, s48, s60
    s_addc_u32 s49, s49, 0
    s_mov_b32 s50, 458752
    s_mov_b32 s51, 0x20000
    s_lshl_b32 s60, s%d, 10
    s_add_u32 s44, s44, s60
    s_addc_u32 s45, s45, 0
    s_sub_u32 s46, 3670016, s60
    s_mov_b32 s47, 0x20000
""" % (S_G, S_G))
    if o.pf:
        D = o.pfd
        p("""
    s_lshl_b32 s60, s%d, 20
    s_cmp_lt_u32 s%d, 16
    s_cselect_b32 s92, s4, s6
    s_cselect_b32 s93, s5, s7
    s_add_u32 s92, s92, s60
    s_addc_u32 s93, s93, 0
    s_mov_b32 s94, 0x100000
    s_mov_b32 s95, 0x20000
    s_and_b32 s60, s%d, 15
    s_lshl_b32 s60, s60, 4
    s_lshl_b32 s61, s%d, 2
    s_add_u32 s60, s60, s61            ; line0 = (qb&15)*16 + w*4
    v_and_b32 v206, 3, v%d
    v_add_u32 v206, s60, v206
    v_lshlrev_b32 v206, 7, v206        ; line*128
    v_lshrrev_b32 v207, 2, v%d         ; tile = lane>>2
    v_lshl_add_u32 v207, v207, 15, v206
    v_mov_b32 v208, 0x40000000
    v_cmp_gt_u32 vcc, %d, v%d
    s_nop 1
    v_cndmask_b32 v207, v208, v207, vcc
    v_cmp_gt_u32 vcc, 4, v%d
    v_add_u32 v206, %d, v206
    s_nop 0
    v_cndmask_b32 v%d, v208, v206, vcc
""" % (S_G, S_QB, S_QB, S_W, L, L, 4 * D, L, L, D * 32768, A.VPFA))
        p("""
    s_mul_i32 s60, s%d, 112
    s_mul_i32 s61, s%d, 28
    s_add_u32 s60, s60, s61
    v_add_u32 v206, s60, v%d
    v_lshrrev_b32 v209, 3, v206
    v_lshlrev_b32 v209, 13, v209
    v_and_b32 v210, 7, v206
    v_lshl_add_u32 v209, v210, 7, v209
    v_lshlrev_b32 v206, 7, v206        ; wo prefetch offset = L*128
    v_cmp_gt_u32 vcc, 28, v%d
    s_nop 1
    v_cndmask_b32 v209, v208, v209, vcc
    v_cndmask_b32 v242, v208, v206, vcc
    v_mov_b32 v240, v209
    v_mov_b32 v241, v207
""" % (S_QB, S_W, L, L))
        p("""
    s_mul_i32 s60, s2, 49
    s_mul_i32 s61, s%d, 13
    s_add_u32 s60, s60, s61
    v_add_u32 v206, s60, v%d
    v_min_u32 v206, 12543, v206
    v_lshlrev_b32 v243, 7, v206
""" % (S_W, L))
    VQ = (204, 205)
    p("""
    v_lshlrev_b32 v206, 1, v201       ; 2*rr
    v_xor_b32 v206, v206, v200        ; slot ^ 2rr
    v_lshlrev_b32 v206, 4, v206
    v_lshl_add_u32 v206, v201, 13, v206
    s_lshl_b32 s60, s%d, 8
    v_add_u32 v204, s60, v206
    v_xor_b32 v205, 0x80, v204
    s_lshl_b32 s%d, s%d, 13
""" % (S_W, S_QD2, S_W))
    for jj in range(8):
        p('s_mov_b32 s%d, %d' % (S_SO + jj, jj * 32768 - (jj & 3) * 1024))
    p("""
    s_lshl_b32 s60, s%d, 20
    s_add_u32 s8, s4, s60
    s_addc_u32 s9, s5, 0
    s_sub_u32 s8, s8, 96
    s_subb_u32 s9, s9, 0
    s_mov_b32 s10, %d
    s_mov_b32 s11, 0x20000
    s_add_u32 s12, s8, 4096
    s_addc_u32 s13, s9, 0
    s_mov_b32 s14, %d
    s_mov_b32 s15, 0x20000
    s_add_u32 s16, s6, s60
    s_addc_u32 s17, s7, 0
    s_sub_u32 s16, s16, 96
    s_subb_u32 s17, s17, 0
    s_mov_b32 s18, %d
    s_mov_b32 s19, 0x20000
    s_add_u32 s20, s16, 4096
    s_addc_u32 s21, s17, 0
    s_mov_b32 s22, %d
    s_mov_b32 s23, 0x20000
    s_mov_b32 s%d, 96
    s_mul_i32 s61, s%d, %d
    s_mul_i32 s62, s%d, %d
    s_add_u32 s%d, s61, s62       ; LDS DMA dest base for K/V
    s_mov_b32 s%d, 0x%x
""" % (S_G, (1 << 20) + 96, (1 << 20) + 96 - 4096, (1 << 20) + 96, (1 << 20) + 96 - 4096, S_96, S_S, HALF, S_QH, 8 * BLK, S_DST, S_THR, o.thr))
    XC = 56
    ONE = 210; SELLO = 211; SELHI = 212; ACC = 214
    p('v_mov_b32 v%d, 0x3f803f80' % ONE)
    p('v_mov_b32 v%d, 0x00003f80' % SELLO)
    p('v_mov_b32 v%d, 0x3f800000' % SELHI)
    for i in range(4): p('v_mov_b32 v%d, 0' % (ACC + i))
    p(vm.wait('x'))
    stamp(p, o, 'xwait')
    if o.pf:
        p('buffer_load_dword v253, v240, s[44:47], 0 offen'); vm.add('pf')
    dmas = []
    for st in range(3):
        dmas += wq_dma(st, vm, VQ)
        dmas += ['v_add_u32 v204, 0x40000, v204', 'v_add_u32 v205, 0x40000, v205']
    valu = []
    for i in range(56):
        valu.append('v_dot2_f32_bf16 v%d, v%d, v%d, v%d' % (ACC + i % 4, i, ONE, ACC + i % 4))
    r = Prog()
    r('s_nop 2')
    r('v_add_f32 v%d, v%d, v%d' % (ACC, ACC, ACC + 1))
    r('v_add_f32 v%d, v%d, v%d' % (ACC + 2, ACC + 2, ACC + 3))
    r('v_add_f32 v%d, v%d, v%d' % (ACC, ACC, ACC + 2))
    xreduce(r, ACC, ACC + 1)
    r('v_mul_f32 v%d, 0x%x, v%d' % (ACC, 0xbb124925, ACC))
    valu.append([i.text for i in r.ins])
    for i in range(56):
        valu.append('v_dot2_f32_bf16 v%d, v%d, v%d, v%d' % (XC + 2 * i, i, SELLO, ACC))
        valu.append('v_dot2_f32_bf16 v%d, v%d, v%d, v%d' % (XC + 2 * i + 1, i, SELHI, ACC))
    V2 = 216
    valu.append(['v_mov_b32 v%d, 0' % (V2 + i) for i in range(4)])
    for i in range(56):
        a_ = V2 + 2 * (i % 2)
        valu.append('v_pk_fma_f32 %s, %s, %s, %s' % (vr(a_, 2), vr(XC + 2 * i, 2), vr(XC + 2 * i, 2), vr(a_, 2)))
    late = dmas if o.late_dma else []
    if o.late_dma: dmas = []
    di = 0
    for k, v in enumerate(valu):
        if isinstance(v, list):
            for x in v: p(x)
        else: p(v)
        if k % 6 == 5 and di < len(dmas):
            while di < len(dmas):
                d = dmas[di]; di += 1
                if isinstance(d, tuple):
                    p(d[0]); vm.add(d[1]); break
                p(d)
                if 'm0' in d:
                    p('s_nop 0')
    while di < len(dmas):
        d = dmas[di]; di += 1
        if isinstance(d, tuple): p(d[0]); vm.add(d[1])
        else:
            p(d)
            if 'm0' in d: p('s_nop 0')
    p('v_add_f32 v%d, v%d, v%d' % (V2, V2, V2 + 1))
    p('v_add_f32 v%d, v%d, v%d' % (V2 + 2, V2 + 2, V2 + 3))
    p('v_add_f32 v%d, v%d, v%d' % (V2, V2, V2 + 2))
    xreduce(p, V2, V2 + 1)
    p('v_mov_b32 v%d, 0x3727c5ac' % (V2 + 1))
    p('v_fmac_f32 v%d, 0x3b124925, v%d' % (V2 + 1, V2))
    p('v_rsq_f32 v%d, v%d' % (V2, V2 + 1))
    p('s_nop 0')
    p('v_mov_b32 v%d, v%d' % (V2 + 1, V2))
    if o.pf and o.pf_kv_early:
        p('buffer_load_dword v254, v241, s[92:95], 0 offen'); vm.add('pf')
    for i in range(56):
        p('v_pk_mul_f32 %s, %s, %s' % (vr(XC + 2 * i, 2), vr(XC + 2 * i, 2), vr(V2, 2)))
    stamp(p, o, 'stats')
    p("""
    s_cmp_lg_u32 s%d, 0
    s_cbranch_scc1 L_modwait_done
    v_mov_b32 v206, 0
L_poll:
    buffer_load_dword v207, v206, s[88:91], 0 offen offset:128 sc1
    s_waitcnt vmcnt(0)
    v_readfirstlane_b32 s60, v207
    s_cmp_eq_u32 s60, 1
    s_cbranch_scc1 L_poll_done
    s_sleep %d
    s_branch L_poll
L_poll_done:
    ;STAMP poll_done
L_modwait_done:
    s_barrier
""" % (S_W, getattr(o, 'msleep', 8)))
    p("""
    v_lshlrev_b32 v206, 4, v%d
    s_lshl_b32 s60, s%d, 10
    v_add_u32 v206, s60, v206
    v_add_u32 v207, %d, v206
""" % (L, S_W, WS_MODP))
    for k_ in range(4):
        if k_: p('v_add_u32 v207, 3584, v207')
        p('buffer_load_dwordx4 %s, v207, s[24:27], 0 offen sc1' % vr(168 + 4 * k_, 4))
    p("""
    s_lshl_b32 s60, s%d, 8
    v_lshl_add_u32 v208, v%d, 2, s60
    v_cmp_le_u32 vcc, 448, v208
    s_waitcnt vmcnt(0)
""" % (S_W, L))
    for r in range(4):
        p('v_add_f32 v%d, v%d, v%d' % (168 + r, 168 + r, 172 + r))
        p('v_add_f32 v%d, v%d, v%d' % (176 + r, 176 + r, 180 + r))
    for r in range(4): p('v_add_f32 v%d, v%d, v%d' % (168 + r, 168 + r, 176 + r))
    for r in range(4): p('v_cvt_pk_bf16_f32 v%d, v%d, 0' % (168 + r, 168 + r))
    for r in range(4): p('v_lshlrev_b32 v%d, 16, v%d' % (168 + r, 168 + r))
    for r in range(4): p('v_add_f32 v%d, 1.0, v%d' % (172 + r, 168 + r))
    for r in range(4): p('v_cvt_pk_bf16_f32 v%d, v%d, 0' % (172 + r, 172 + r))
    for r in range(4): p('v_lshlrev_b32 v%d, 16, v%d' % (172 + r, 172 + r))
    for r in range(4): p('v_cndmask_b32 v%d, v%d, v%d, vcc' % (168 + r, 168 + r, 172 + r))
    for r in range(4): p('v_mul_f32 v%d, 0x3db8aa3b, v%d' % (168 + r, 168 + r))
    p('ds_write_b128 v206, v[168:171] offset:%d' % MV_OFF)
    p('s_waitcnt lgkmcnt(0)')
    p('s_barrier')
    p("""
    s_cmp_lt_u32 s2, 56
    s_cbranch_scc1 L_noa2
    s_cmp_ge_u32 s2, 168
    s_cbranch_scc1 L_noa2
    s_cmp_lg_u32 s%d, 0
    s_cbranch_scc1 L_noa2
    v_mov_b32 v209, 1
    v_mov_b32 v208, 0
    v_cmp_eq_u32 vcc, 0, v%d
    s_and_saveexec_b64 s[62:63], vcc
    buffer_atomic_add v209, v208, s[88:91], 0 offen offset:64 sc1
    s_mov_b64 exec, s[62:63]
L_noa2:
""" % (S_W, L))
    stamp(p, o, 'modbar')
    if o.pf and not o.pf_kv_early:
        p('buffer_load_dword v254, v241, s[92:95], 0 offen'); vm.add('pf')
    MVA = 222; HA = 223
    p('v_lshlrev_b32 v%d, 5, v201' % MVA)
    p('v_add_u32 v%d, %d, v%d' % (MVA, MV_OFF, MVA))
    p('s_mul_i32 s60, s%d, 14336' % S_W)
    p('v_lshlrev_b32 v%d, 4, v%d' % (HA, L))
    p('v_add_u32 v%d, s60, v%d' % (HA, HA))
    q = Prog()
    TA = [16, 32, 168, 184] if getattr(o, 'mvdeep', 0) == 0 else [16, 32, 168, 184, 224, 240]
    NT = len(TA)
    def mvread(ks):
        t = TA[ks % NT]
        q('ds_read_b128 %s, v%d offset:%d' % (vr(t, 4), MVA, ks * 128))
        q('ds_read_b128 %s, v%d offset:%d' % (vr(t + 4, 4), MVA, ks * 128 + 16))
        q('ds_read_b128 %s, v%d offset:%d' % (vr(t + 8, 4), MVA, 1792 + ks * 128))
        q('ds_read_b128 %s, v%d offset:%d' % (vr(t + 12, 4), MVA, 1792 + ks * 128 + 16))
    for ks in range(NT - 1): mvread(ks)
    for ks in range(14):
        if ks + NT - 1 < 14: mvread(ks + NT - 1)
        t = TA[ks % NT]
        for j in range(4):
            q('v_pk_fma_f32 %s, %s, %s, %s' % (vr(t + 2 * j, 2), vr(XC + 8 * ks + 2 * j, 2), vr(t + 8 + 2 * j, 2), vr(t + 2 * j, 2)))
        hr = 4 * (ks % 4)
        for j in range(4):
            q('v_cvt_pk_bf16_f32 v%d, v%d, v%d' % (hr + j, t + 2 * j, t + 2 * j + 1))
        q('ds_write_b128 v%d, %s offset:%d' % (HA, vr(hr, 4), H_OFF + ks * 1024))
    w, _ = insert_waits(q.ins)
    li = 0
    cnt = 0
    for ins_ in w:
        p.ins.append(ins_)
        cnt += 1
        if cnt % 9 == 0 and li < len(late):
            while li < len(late):
                d = late[li]; li += 1
                if isinstance(d, tuple):
                    p(d[0]); vm.add(d[1]); break
                p(d)
                if 'm0' in d: p('s_nop 0')
    while li < len(late):
        d = late[li]; li += 1
        if isinstance(d, tuple): p(d[0]); vm.add(d[1])
        else:
            p(d)
            if 'm0' in d: p('s_nop 0')
    p('s_waitcnt lgkmcnt(0)')
    p('s_barrier')
    stamp(p, o, 'hbar')
    p('v_lshlrev_b32 v%d, 4, v%d' % (203 if HFLY else HA, L))
    for st in range(14 if not HFLY else 0):
        for qt in range(4):
            f = qt * 14 + st
            p('ds_read_b128 %s, v%d offset:%d' % (ar(4 * f, 4), HA, H_OFF + f * 1024))
    VA = 232
    p("""
    v_bfe_u32 v206, v%d, 2, 2          ; r
    v_and_b32 v207, 1, v201            ; kq&1
    v_lshl_add_u32 v207, v207, 2, v206 ; f = r + 4*(kq&1)
    v_lshlrev_b32 v208, 11, v201       ; 2*kq*1024
    v_lshl_add_u32 v208, v206, 8, v208 ; + r*256
    v_and_b32 v209, 3, v%d             ; c
    v_lshl_add_u32 v208, v209, 3, v208 ; + c*8
    v_add_u32 v208, s%d, v208          ; + w*8192
""" % (L, L, S_QD2))
    for T in range(8):
        p('v_xor_b32 v209, %d, v207' % T)
        p('v_lshl_add_u32 v%d, v209, 5, v208' % (VA + T))
    if not HFLY:
        p('s_waitcnt lgkmcnt(0)')
        p('s_barrier')
    stamp(p, o, 'ln_done')
    return p, vm, VQ, VA

def qproj(o, vm, VQ, VA):
    p = Prog()
    N = 14 * 32
    sc = [[] for _ in range(N)]; mem = [[] for _ in range(N)]; val = [[] for _ in range(N)]
    def aread(n):
        st, T = n // 8, n % 8
        r = FR + 4 * (n % 4)
        off = qslot(st)
        return st, T, r, off
    reads = []
    for n in range(14 * 8):
        st, T, r, off = aread(n)
        reads.append(['ds_read_b64_tr_b16 %s, v%d offset:%d' % (vr(r, 2), VA + T, 0),
                      'ds_read_b64_tr_b16 %s, v%d offset:%d' % (vr(r + 2, 2), VA + T, 1024)])
    pre = Prog()
    for T in range(8):
        pre('v_add_u32 v%d, %d, v%d' % (VA + T, qslot(0), VA + T))
    def bset(st, qt):
        if not HFLY: return (qt * 14 + st) * 4
        return (32 if st == 13 else 16 * (st % 2)) + 4 * qt
    def bread(st, qt):
        return 'ds_read_b128 %s, v203 offset:%d' % (ar(bset(st, qt), 4), H_OFF + (qt * 14 + st) * 1024)
    if HFLY:
        for qt in range(4): pre(bread(0, qt))
        for st in range(12):
            for qt in range(4): mem[32 * st + 5 + 4 * qt].append(bread(st + 1, qt))
        for qt in range(4): mem[32 * 11 + 3 + 4 * qt].append(bread(13, qt))
    pre(vm.wait('wq0'))
    for n in range(3):
        for s in reads[n]: pre(s)
    for n in range(14 * 8):
        st, T = n // 8, n % 8
        g = 4 * (n - 3)
        if n >= 3:
            mem[g] += reads[n]
        if st + 1 < 14:
            d = qslot(st + 1) - qslot(st)
            upd = 'v_add_u32 v%d, %s, v%d' % (VA + T, ('0x%x' % (d & 0xffffffff)), VA + T)
            if n >= 3: val[g + 1].append(upd)
            else: val[n + 1].append(upd)
    for st in range(14):
        base = st * 32
        lst = None
        if (not HFLY and st <= 10) or (HFLY and 1 <= st <= 11):
            lst = wq_dma(st + (2 if HFLY else 3), vm, VQ)
            post = ['v_add_u32 v%d, 0x40000, v%d' % (VQ[0], VQ[0]), 'v_add_u32 v%d, 0x40000, v%d' % (VQ[1], VQ[1])]
        elif st >= 12 and not o.kdma_late:
            lst = [(s if s.startswith('s_') else (s, 'k%d' % (st - 12))) for s in dma(o, st - 12, 0, True, False)]
            post = ['v_add_u32 v%d, 0x8000, v%d' % (VOFF, VOFF)]
        if lst:
            gi = 0
            gaps = [base + 2 + 4 * i for i in range(8)]
            for s in lst:
                if isinstance(s, tuple):
                    mem[gaps[gi]].append(s); gi += 1
                else:
                    sc[gaps[gi] - 1].append(s)
            for i, s in enumerate(post):
                val[base + 31].append(s)
    post_cvt = []
    for T in range(8):
        for qt in range(4):
            g = 13 * 32 + T * 4 + qt + 7
            a_ = (T * 4 + qt) * 4; t_ = 128 + 2 * (T * 4 + qt)
            cv = ['v_cvt_pk_bf16_f32 v%d, v%d, v%d' % (t_, a_, a_ + 1), 'v_cvt_pk_bf16_f32 v%d, v%d, v%d' % (t_ + 1, a_ + 2, a_ + 3)]
            placed = False
            if o.qcvt:
                for gg in (g, g + 1, g + 2):
                    if gg < N and len(mem[gg]) == 0 and not val[gg]:
                        val[gg] += cv; placed = True; break
            if not placed: post_cvt += cv
    p.extend(pre)
    for gidx in range(N):
        st, rem = gidx // 32, gidx % 32
        T, qt = rem // 4, rem % 4
        n = st * 8 + T
        acc = (T * 4 + qt) * 4
        c = '0' if st == 0 else vr(acc, 4)
        m = 'v_mfma_f32_16x16x32_bf16 %s, %s, %s, %s' % (vr(acc, 4), vr(FR + 4 * (n % 4), 4), ar(bset(st, qt), 4), c)
        p(m)
        if gidx + 1 < N:
            st2, rem2 = (gidx + 1) // 32, (gidx + 1) % 32
            n2 = st2 * 8 + rem2 // 4
            if HFLY and rem2 < 4:
                p('.need v_mfma_f32_16x16x32_bf16 v[0:3], %s, %s, 0' % (vr(FR + 4 * (n2 % 4), 4), ar(bset(st2, rem2), 4)))
            elif rem2 % 4 == 0:
                p('.need v_mfma_f32_16x16x32_bf16 v[0:3], %s, v[0:3], 0' % vr(FR + 4 * (n2 % 4), 4))
        if rem == 20 and st + 1 < 14:
            p(vm.wait('wq%d' % (st + 1)))
        if st == 11 and rem == 31 and not o.kdma_late:
            if HFLY: p('s_waitcnt lgkmcnt(6)')
            p('s_barrier')
        for s in sc[gidx]: p(s)
        for s in mem[gidx]:
            if isinstance(s, tuple):
                p(s[0]); vm.add(s[1])
            else: p(s)
        for s in val[gidx]: p(s)
    p('s_nop 7')
    for x in post_cvt: p(x)
    return p

def kv_addresses(o):
    p = Prog()
    L = VLANE
    p('''
    s_mul_i32 s61, s%d, %d
    s_lshl_b32 s62, s%d, 14
    s_lshl_b32 s63, s%d, 13
    s_add_u32 s62, s62, s63
    v_lshlrev_b32 v%d, 4, v%d
    v_add_u32 v%d, s62, v%d
''' % (S_S, HALF, S_S, S_QH, VOFF, L, VOFF, VOFF))
    p('''
    v_and_b32 v240, 7, v%d
    v_mul_u32_u24 v240, %d, v240
    v_bfe_u32 v241, v%d, 3, 1
    v_lshlrev_b32 v241, 9, v241
    v_add_u32 v240, v240, v241
    v_lshrrev_b32 v241, 4, v%d
    v_lshlrev_b32 v241, 4, v241
    v_add_u32 v240, v240, v241
    v_add_u32 v%d, s61, v240
    v_lshrrev_b32 v240, 2, v%d
    v_and_b32 v241, 7, v240
    v_mul_u32_u24 v241, %d, v241
    v_lshrrev_b32 v240, 3, v240
    v_lshlrev_b32 v240, 9, v240
    v_add_u32 v240, v240, v241
    v_and_b32 v241, 3, v%d
    v_lshlrev_b32 v241, 3, v241
    v_add_u32 v240, v240, v241
    v_add_u32 v240, s61, v240
    v_add_u32 v%d, %d, v240
''' % (L, BLK, L, L, VK, L, BLK, L, VV, VBASE))
    return p

def qexchange(o, vm):
    p = Prog()
    L = VLANE
    p('''
    v_and_b32 v200, 15, v%d
    v_lshrrev_b32 v201, 4, v%d
    v_mul_u32_u24 v202, 1040, v200
    v_lshl_add_u32 v202, v201, 3, v202
    s_lshl_b32 s60, s%d, 8
    s_add_u32 s60, s60, %d
    v_add_u32 v202, s60, v202
    s_mov_b32 s61, 0x%x
''' % (L, L, S_W, QX, 0x3db8aa3b))
    p('s_barrier')
    if o.kdma_late:
        for kb in range(2):
            for s_ in dma(o, kb, 0, True, False, nop=True):
                p(s_)
                if s_.startswith('buffer'): vm.add('k%d' % kb)
            p('v_add_u32 v%d, 0x8000, v%d' % (VOFF, VOFF))
    q = Prog()
    for T in range(8):
        for qt in range(4):
            q('ds_write_b64 v202, %s offset:%d' % (vr(128 + 2 * (T * 4 + qt), 2), qt * 16 * 1040 + T * 32))
    p.extend(q)
    p('s_waitcnt lgkmcnt(0)')
    p('s_barrier')
    p('''
    s_mul_i32 s60, s%d, %d
    s_add_u32 s60, s60, %d
    v_mul_u32_u24 v202, 1040, v200
    v_lshl_add_u32 v202, v201, 4, v202
    v_add_u32 v202, s60, v202
''' % (S_QH, 32 * 1040, QX))
    for h in range(2):
        for qt in range(2):
            b = 2 * h + qt
            for ks in range(8):
                p('ds_read_b128 %s, v202 offset:%d' % (vr(32 * b + 4 * ks, 4), qt * 16 * 1040 + h * 512 + ks * 64))
    p(vm.wait('k0' if o.kdma_late else 'k1'))
    p('s_waitcnt lgkmcnt(0)')
    p('s_barrier')
    return p

def attn_prologue_fast(o):
    p = Prog()
    N = 64
    sc = [[] for _ in range(N)]; mem = [[] for _ in range(N)]; val = [[] for _ in range(N)]
    p('v_add_u32 v%d, 0xffff0000, v%d' % (VOFF, VOFF))
    for n in range(2, 16):
        mem[8 * (n // 2 - 1) + (n % 2)] += kread(o, n, 0)
    gi = 0; gaps = [3 + 4 * i for i in range(8)]
    for x in dma(o, 0, 0, False, True):
        if x.startswith('s_'): sc[gaps[gi] - 1].append(x)
        else: mem[gaps[gi]].append(x); gi += 1
    val[gaps[-1] + 1].append('v_add_u32 v%d, 0x8000, v%d' % (VOFF, VOFF))
    for k_, x in enumerate(['s_add_u32 s8, s8, 0x8000', 's_addc_u32 s9, s9, 0', 's_sub_u32 s10, s10, 0x8000']): sc[40].append(x)
    for k_, x in enumerate(['s_add_u32 s12, s12, 0x8000', 's_addc_u32 s13, s13, 0', 's_sub_u32 s14, s14, 0x8000']): sc[44].append(x)
    t = TMP
    st = []
    for b in range(4): st.append('v_max3_f32 v%d, v%d, v%d, v%d' % (t + b, S(0, b), S(0, b) + 1, S(0, b) + 2))
    for b in range(4): st.append('v_max_f32 v%d, v%d, v%d' % (t + b, t + b, S(0, b) + 3))
    for sw in ('v_permlane16_swap_b32', 'v_permlane32_swap_b32'):
        for b in range(4): st.append('v_mov_b32 v%d, v%d' % (t + 4 + b, t + b))
        for b in range(4): st.append('%s v%d, v%d' % (sw, t + b, t + 4 + b))
        for b in range(4): st.append('v_max_f32 v%d, v%d, v%d' % (t + b, t + b, t + 4 + b))
    for b in range(4): st.append('v_sub_f32 v%d, 0, v%d' % (NEGM + 4 * b, t + b))
    for i in range(4): st.append('v_mov_b32 v%d, 0' % (LREG[1] + i))
    for b in range(4):
        for r in range(4): st.append('v_add_f32 v%d, v%d, v%d' % (S(0, b) + r, S(0, b) + r, NEGM + 4 * b))
    for b in range(4):
        for r in range(1, 4): st.append('v_mov_b32 v%d, v%d' % (NEGM + 4 * b + r, NEGM + 4 * b))
    st += exps(o, 0, 0, 1, 0)
    def cost(g): return 4 * len(mem[g]) + sum(8 if A.is_exp(x) else 4 for x in val[g])
    g = 36; rest = []
    for x in st:
        c = 8 if A.is_exp(x) else 4
        while g < N and cost(g) + c > 8: g += 1
        if g < N: val[g].append(x)
        else: rest.append(x)
    qk = qk_list(o, czero=True)
    q = Prog()
    for n in range(2):
        for x in kread(o, n, 0): q(x)
    for sl in range(N):
        q(qk[sl])
        if sl + 1 < N: q('.need ' + qk[sl + 1])
        for x in sc[sl]: q(x)
        for x in mem[sl]: q(x)
        for x in val[sl]: q(x)
    w, _ = insert_waits(q.ins)
    p.extend(w)
    for x in rest: p(x)
    p('s_nop 7')
    for b in range(4):
        for r in range(4): p('v_add_f32 v%d, v%d, v%d' % (S(1, b) + r, S(1, b) + r, NEGM + 4 * b))
    for x in exps(o, 1, 0, 1, 0): p(x)
    for x in A.check(o, 0, 'p'): p(x)
    p('s_nop 1')
    p('s_cbranch_vccnz L_rare_p')
    p('L_back_p:')
    p('s_waitcnt vmcnt(0) lgkmcnt(0)')
    p('s_barrier')
    for n in range(2):
        for x in kread(o, n, 1): p(x)
    p('s_waitcnt lgkmcnt(0)')
    return p

def attn_prologue(o):
    p = Prog()
    p('v_add_u32 v%d, 0xffff0000, v%d' % (VOFF, VOFF))
    p('s_nop 0')
    for s in dma(o, 0, 0, False, True, nop=True): p(s)
    p('v_add_u32 v%d, 0x8000, v%d' % (VOFF, VOFF))
    p('''
    s_add_u32 s8, s8, 0x8000
    s_addc_u32 s9, s9, 0
    s_sub_u32 s10, s10, 0x8000
    s_add_u32 s12, s12, 0x8000
    s_addc_u32 s13, s13, 0
    s_sub_u32 s14, s14, 0x8000
''')
    q = Prog()
    qk = qk_list(o, czero=True)
    for n in range(2):
        for s in kread(o, n, 0): q(s)
    for sl in range(64):
        if sl % 8 == 0 and sl // 8 + 1 < 8:
            for s in kread(o, 2 * (sl // 8 + 1), 0) + kread(o, 2 * (sl // 8 + 1) + 1, 0): q(s)
        q(qk[sl])
    w, _ = insert_waits(q.ins)
    p.extend(w)
    p('s_nop 7')
    t = TMP
    for b in range(4):
        max8(p, t + b, b)
    for b in range(4):
        xreduce(p, t + b, t + 4, 'v_max_f32')
    for b in range(4):
        for r in range(4):
            p('v_sub_f32 v%d, 0, v%d' % (NEGM + 4 * b + r, t + b))
        for a in range(2):
            for r in range(4):
                p('v_sub_f32 v%d, v%d, v%d' % (S(a, b) + r, S(a, b) + r, t + b))
    for i in range(4):
        p('v_mov_b32 v%d, 0' % (LREG[1] + i))
    for s in exps(o, 0, 0, 1, 0): p(s)
    for s in exps(o, 1, 0, 1, 0): p(s)
    p('s_waitcnt vmcnt(0) lgkmcnt(0)')
    p('s_barrier')
    for n in range(2):
        for s in kread(o, n, 1): p(s)
    p('s_waitcnt lgkmcnt(0)')
    return p

XR0E, XRSE, STE, WO0E = 33792, 31744, 160768, 4096
MN, LL = 240, 244
def epi_setup(o):
    L = VLANE
    x = []
    for b in range(4): x.append('v_mov_b32 v%d, v%d' % (MN + b, NEGM + 4 * b))
    for b in range(4): x.append('v_mov_b32 v%d, v%d' % (LL + b, LREG[1] + b))
    for sw in ('v_permlane16_swap_b32', 'v_permlane32_swap_b32'):
        for b in range(4): x.append('v_mov_b32 v%d, v%d' % (248 + b, LL + b))
        for b in range(4): x.append('%s v%d, v%d' % (sw, LL + b, 248 + b))
        for b in range(4): x.append('v_add_f32 v%d, v%d, v%d' % (LL + b, LL + b, 248 + b))
    if o.esend:
        a_ = ['v_and_b32 v203, 15, v%d' % L, 'v_lshlrev_b32 v203, 5, v203',
              's_lshl_b32 s63, s%d, 9' % S_W, 's_add_u32 s63, s63, %d' % STE, 'v_add_u32 v202, s63, v203',
              'v_lshlrev_b32 v199, 4, v%d' % L,
              's_xor_b32 s64, s%d, 2' % S_W, 's_lshl_b32 s65, s64, 9', 's_add_u32 s65, s65, %d' % STE, 'v_add_u32 v203, s65, v203',
              's_mul_i32 s66, s64, %d' % XRSE, 's_add_u32 s66, s66, %d' % XR0E, 'v_add_u32 v201, s66, v199',
              's_mul_i32 s67, s%d, %d' % (S_W, XRSE), 's_add_u32 s67, s67, %d' % XR0E, 'v_add_u32 v200, s67, v199',
              's_lshl_b32 s63, s%d, 10' % S_W, 'v_add_u32 v198, s63, v199',
              's_lshl_b32 s64, s64, 10', 'v_add_u32 v199, s64, v199']
        return x[:8], a_, x[8:]
    x += ['v_and_b32 v203, 15, v%d' % L, 'v_lshlrev_b32 v203, 5, v203',
          's_lshl_b32 s63, s%d, 9' % S_W, 's_add_u32 s63, s63, %d' % ST, 'v_add_u32 v202, s63, v203',
          'v_lshlrev_b32 v200, 4, v%d' % L,
          's_xor_b32 s64, s%d, 2' % S_W, 's_lshl_b32 s65, s64, 9', 's_add_u32 s65, s65, %d' % ST, 'v_add_u32 v203, s65, v203',
          's_lshl_b32 s64, s64, 15', 'v_add_u32 v201, s64, v200',
          's_lshl_b32 s66, s%d, 15' % S_W, 'v_add_u32 v200, s66, v200']
    return x

def last_iteration(o, s_):
    p = Prog()
    own = s_; oth = 1 - s_
    N = 128
    sc = [[] for _ in range(N + 8)]; mem = [[] for _ in range(N + 8)]; val = [[] for _ in range(N + 8)]
    p('v_add_u32 v%d, 0x%x, v%d' % (VV, (-(VBASE + KBUF)) & 0xffffffff, VV))
    for dt in range(2):
        for x in vread(o, dt, 1): p(x)
    for dt in range(2, 16):
        sl = 64 + (dt - 2) * 2 if dt < 4 else 64 + 4 * (dt - 4) + 4
        mem[sl] += vread(o, dt, 1)
    cp, adr, red = epi_setup(o)
    def cost(g): return 4 * len(mem[g]) + 4 * len(val[g])
    g = 64
    def place(x, g0, lim=8):
        g_ = g0
        while cost(g_) + 4 > lim: g_ += 1
        val[g_].append(x); return g_
    for x in cp + adr:
        if x.startswith('s_'): sc[g].append(x)
        else: g = place(x, g)
    gadr = g + 1
    for dt in range(16):
        for qt in range(2):
            if (dt, qt) != (15, 1):
                g0 = max(64 + 4 * dt + 2 * oth + qt + 6, gadr)
                while len(mem[g0]) and g0 < N + 6: g0 += 1
                mem[g0].append('ds_write_b128 v200, %s offset:%d' % (ar((dt * 4 + 2 * oth + qt) * 4, 4), (dt * 2 + qt) * 1024))
    g = gadr
    for x in red: g = place(x, g, 12)
    for dt in range(16):
        for qt in range(2):
            g0 = max(64 + 4 * dt + 2 * own + qt + 6, g)
            for r in range(4):
                g0 = place('v_accvgpr_read_b32 v%d, a%d' % ((dt * 2 + qt) * 4 + r, (dt * 4 + 2 * own + qt) * 4 + r), min(g0, N + 6), 16)
            g = g0
    pv = A.pv_list(o, 1)
    for sl in range(64, N):
        p(pv[sl - 64])
        if sl + 1 < N: p('.need ' + pv[sl + 1 - 64])
        for x in sc[sl]: p(x)
        for x in mem[sl]: p(x)
        for x in val[sl]: p(x)
    p('s_nop 7')
    for sl in range(N, N + 8):
        for x in sc[sl] + mem[sl] + val[sl]: p(x)
    return p

def attn_loop(o):
    p = Prog()
    first = A.iteration(o, 0, 'f', first_pv=True)
    w0, st0 = insert_waits(first.ins)
    p.extend(w0)
    p('s_mov_b32 s%d, 14' % S_CNT)
    p('.p2align 6')
    p('L_loop:')
    body = Prog()
    body.extend(A.iteration(o, 1, 'a'))
    body.extend(A.iteration(o, 0, 'b'))
    w1, st1 = insert_waits(body.ins, st0)
    w, st2 = insert_waits(body.ins, st1)
    assert st2 == st1 and [i.text for i in w] == [i.text for i in w1], 'not steady'
    loop_ins = w
    p.extend(w)
    p('s_sub_u32 s%d, s%d, 1' % (S_CNT, S_CNT))
    p('s_cmp_lg_u32 s%d, 0' % S_CNT)
    p('s_cbranch_scc1 L_loop')
    tail = Prog()
    ex = []
    if o.pf:
        ex = [(71, 'buffer_load_dword v255, v242, s[48:51], 0 offen')]
    tail.extend(A.iteration(o, 1, 'c', extra_mem=ex))
    ex = []
    if o.pf and o.pfmoe:
        ex = [(71, 'global_load_dword v255, v243, s[96:97]'), (75, 'global_load_dword v255, v243, s[98:99]'), (79, 'global_load_dword v255, v243, s[100:101]')]
    if o.esend: o._vdst = 0
    tail.extend(A.iteration(o, 0, 'd', do_dma_k=False, next_k=False, pf_ok=False, extra_mem=ex))
    o._vdst = None
    tail('s_waitcnt vmcnt(%d) lgkmcnt(0)' % len(ex))
    tail('s_barrier')
    if not o.esend:
        tail.extend(A.iteration(o, 1, 'e', do_qk=False, do_dma_k=False, do_dma_v=False, next_k=False, extra_valu=epi_setup(o)))
    w, stt = insert_waits(tail.ins, st1)
    p.extend(w)
    if o.esend:
        p('s_cmp_eq_u32 s%d, 0' % S_S)
        p('s_cbranch_scc0 L_last1')
        w0_, _ = insert_waits(last_iteration(o, 0).ins); p.extend(w0_)
        p('s_branch L_lastdone')
        p('L_last1:')
        w1_, _ = insert_waits(last_iteration(o, 1).ins); p.extend(w1_)
        p('L_lastdone:')
        w = w + w0_
    return p, w0, loop_ins, w

def combine(o, s, shadow):
    p = Prog()
    own = s; oth = 1 - s
    wr = []; rd_ = []
    for dt in range(16):
        for qt in range(2):
            wr.append('ds_write_b128 v200, %s offset:%d' % (ar((dt * 4 + 2 * oth + qt) * 4, 4), (dt * 2 + qt) * 1024))
            rd_.append(['v_accvgpr_read_b32 v%d, a%d' % ((dt * 2 + qt) * 4 + r, (dt * 4 + 2 * own + qt) * 4 + r) for r in range(4)])
    if o.esend:
        p('ds_write_b128 v198, %s' % ar((15 * 4 + 2 * oth + 1) * 4, 4))
    elif getattr(o, 'e1mix', 1):
        sh_ = list(shadow.ins); shadow = Prog()
        per = (len(sh_) + 31) // 32
        for k in range(32):
            p(wr[k])
            for x in rd_[k]: p(x)
            chunk = sh_[k * per:(k + 1) * per]
            p.extend(chunk)
    else:
        for x in wr: p(x)
        for g_ in rd_:
            for x in g_: p(x)
    p.extend(shadow)
    p('s_waitcnt lgkmcnt(0)')
    p('s_barrier')
    stamp(p, o, 'e1bar')
    q = Prog()
    q('ds_read_b128 v[204:207], v203')
    q('ds_read_b128 v[208:211], v203 offset:16')
    order = [(2 * i + y, qt) for i in range(8) for qt in range(2) for y in range(2)]
    RING = 128
    def rd(k):
        dt, qt = order[k]
        if o.esend and (dt, qt) == (15, 1): q('ds_read_b128 %s, v199' % vr(RING + 4 * (k % 8), 4))
        else: q('ds_read_b128 %s, v201 offset:%d' % (vr(RING + 4 * (k % 8), 4), (dt * 2 + qt) * 1024))
    for k in range(8): rd(k)
    AL = 212; BE = 216
    for qt in range(2):
        b = 2 * own + qt
        mo = MN + b; mp = 204 + b; lo = LL + b; lp = 208 + b
        t = 220
        q('v_min_f32 v%d, v%d, v%d' % (t, mo, mp))
        q('v_sub_f32 v%d, v%d, v%d' % (t + 1, t, mo))
        q('v_sub_f32 v%d, v%d, v%d' % (t + 2, t, mp))
        q('v_exp_f32 v%d, v%d' % (t + 1, t + 1))
        q('v_exp_f32 v%d, v%d' % (t + 2, t + 2))
        q('s_nop 0')
        q('v_mul_f32 v%d, v%d, v%d' % (t + 3, t + 1, lo))
        q('v_fmac_f32 v%d, v%d, v%d' % (t + 3, t + 2, lp))
        q('v_rcp_f32 v%d, v%d' % (t + 3, t + 3))
        q('s_nop 0')
        q('v_mul_f32 v%d, v%d, v%d' % (AL + 2 * qt, t + 1, t + 3))
        q('v_mul_f32 v%d, v%d, v%d' % (BE + 2 * qt, t + 2, t + 3))
        q('v_mov_b32 v%d, v%d' % (AL + 2 * qt + 1, AL + 2 * qt))
        q('v_mov_b32 v%d, v%d' % (BE + 2 * qt + 1, BE + 2 * qt))
    for k in range(32):
        dt, qt = order[k]
        i, y = dt // 2, dt % 2
        rv = RING + 4 * (k % 8)
        ow = (dt * 2 + qt) * 4
        q('v_pk_mul_f32 %s, %s, %s' % (vr(rv, 2), vr(rv, 2), vr(BE + 2 * qt, 2)))
        q('v_pk_mul_f32 %s, %s, %s' % (vr(rv + 2, 2), vr(rv + 2, 2), vr(BE + 2 * qt, 2)))
        q('v_pk_fma_f32 %s, %s, %s, %s' % (vr(ow, 2), vr(ow, 2), vr(AL + 2 * qt, 2), vr(rv, 2)))
        q('v_pk_fma_f32 %s, %s, %s, %s' % (vr(ow + 2, 2), vr(ow + 2, 2), vr(AL + 2 * qt, 2), vr(rv + 2, 2)))
        if k + 8 < 32: rd(k + 8)
        fr = 160 + 4 * ((i * 2 + qt) % 8)
        q('v_cvt_pk_bf16_f32 v%d, v%d, v%d' % (fr + 2 * y, ow, ow + 1))
        q('v_cvt_pk_bf16_f32 v%d, v%d, v%d' % (fr + 2 * y + 1, ow + 2, ow + 3))
        if y == 1:
            q('ds_write_b128 v201, %s offset:%d' % (vr(fr, 4), (i * 2 + qt) * 1024))
    w, _ = insert_waits(q.ins)
    p.extend(w)
    return p

def wo_dma(step, slot, VW):
    out = []
    for jj in range(7):
        out.append('s_add_u32 m0, s%d, %d' % (S_T0 + slot, jj * 1024))
        out.append(('buffer_load_dwordx4 v%d, s[%d:%d], s%d offen lds' % (VW + jj, S_WO, S_WO + 3, S_WST), 'wo%d' % step))
    return out

def epilogue(o):
    p = Prog()
    L = VLANE
    vm = VmTracker()
    VW = 232
    p('s_nop 7')
    p('''
    s_barrier
    ds_write_b128 v202, v[%d:%d]
    ds_write_b128 v202, v[%d:%d] offset:16
''' % (MN, MN + 3, LL, LL + 3))
    sh = Prog()
    sh('s_mul_i32 s60, s%d, 224' % S_W)
    sh('s_mov_b32 s61, 0x124925')
    for jj in range(7):
        sh('v_add_u32 v192, %d, v%d' % (64 * jj, L))
        sh('v_mul_u32_u24 v193, s61, v192')
        sh('v_lshrrev_b32 v193, 24, v193')
        sh('v_mul_u32_u24 v194, 14, v193')
        sh('v_sub_u32 v194, v192, v194')
        sh('v_mul_u32_u24 v193, 896, v193')
        sh('v_lshl_add_u32 v193, v194, 4, v193')
        sh('v_add_u32 v%d, s60, v193' % (VW + jj))
    sh('''
    s_mul_i32 s60, s%d, 7168
    s_add_u32 s60, s60, %d
    s_mul_i32 s61, s%d, %d
    s_add_u32 s61, s61, %d
    s_add_u32 s62, s61, 7168
    s_mov_b32 s%d, 0
''' % (S_W, WO0E if o.esend else WO0, S_W, XRSE if o.esend else 32768, (XR0E if o.esend else 0) + 16384, S_WST))
    emit_dma(sh, wo_dma(0, 0, VW), vm)
    sh('s_mov_b32 s%d, 28672' % S_WST)
    AW = 224
    BW = 228
    sh('''
    v_lshrrev_b32 v192, 2, v%d          ; 4kq + r
    v_mul_u32_u24 v192, 224, v192
    v_and_b32 v193, 3, v%d
    v_lshl_add_u32 v192, v193, 3, v192
    v_add_u32 v%d, s60, v192
    v_add_u32 v%d, s61, v192
    v_add_u32 v%d, s62, v192
    v_lshlrev_b32 v192, 4, v%d
''' % (L, L, AW, AW + 1, AW + 2, L))
    for r in range(4):
        sh('v_add_u32 v%d, %d, v192' % (BW + r, (XR0E + r * XRSE) if o.esend else r * 32768))
    p('s_cmp_eq_u32 s%d, 0' % S_S)
    p('s_cbranch_scc0 L_comb1')
    c0 = combine(o, 0, sh); c1 = combine(o, 1, sh)
    p.extend(c0)
    p('s_branch L_combdone')
    p('L_comb1:')
    p.extend(c1)
    p('L_combdone:')
    stamp(p, o, 'comb')
    if o.fuse_k2:
        p('s_load_dwordx2 s[4:5], s[0:1], 48')
        p('s_load_dwordx2 s[6:7], s[0:1], 96')
        if o.one:
            p('s_load_dwordx4 s[28:31], s[0:1], 56')
            p('s_load_dwordx2 s[32:33], s[0:1], 72')
        p('v_mov_b32 v250, 0')
        p('buffer_load_dword v251, v250, s[88:91], 0 offen offset:64 sc1'); vm.add('chk')
    p('s_waitcnt lgkmcnt(0)')
    p('s_barrier')
    stamp(p, o, 'e3bar')
    emit_dma(p, wo_dma(1, 1, VW), vm)
    p('s_mov_b32 s%d, %d' % (S_WST, 2 * 28672))
    def bread(ks, qtile):
        h, i = ks >> 3, ks & 7
        qh, qt = qtile >> 1, qtile & 1
        reg = qh + 2 * (1 - h)
        return 'ds_read_b128 %s, v%d offset:%d' % (vr(112 + 16 * (ks % 2) + 4 * qtile, 4), BW + reg, (i * 2 + qt) * 1024)
    def aread(n):
        ks, T = n // 7, n % 7
        r = FR + 4 * (n % 4)
        return ['ds_read_b64_tr_b16 %s, v%d offset:%d' % (vr(r + 2 * a, 2), AW + ks % 3, a * 3584 + T * 32) for a in range(2)]
    N = 16 * 28
    sc = [[] for _ in range(N)]; mem = [[] for _ in range(N)]; val = [[] for _ in range(N)]
    pre = Prog()
    pre(vm.wait('wo0'))
    for qtile in range(4): pre(bread(0, qtile))
    for n in range(3):
        for s in aread(n): pre(s)
    for n in range(3, 16 * 7):
        mem[4 * (n - 3)] += aread(n)
    for ks in range(15):
        for qtile in range(4):
            mem[28 * ks + 4 * qtile + 5 + 8].append(bread(ks + 1, qtile))
    for ks in range(14):
        lst = wo_dma(ks + 2, (ks + 2) % 3, VW)
        gaps = [28 * ks + 2 + 4 * i for i in range(7)]
        gi = 0
        for s in lst:
            if isinstance(s, tuple):
                mem[gaps[gi]].append(s); gi += 1
            else:
                sc[gaps[gi] - 1].append(s)
        sc[28 * ks + 27].append('s_add_u32 s%d, s%d, 28672' % (S_WST, S_WST))
    import ksmall
    hs = Prog(); hv = []
    hs('''
    s_lshl_b32 s56, s%d, 6
    s_lshl_b32 s57, s%d, 3
    s_add_u32 s56, s56, s57
    s_lshl_b32 s58, s%d, 1
    s_add_u32 s56, s56, s58
    s_add_u32 s57, s57, s58
    s_mul_i32 s57, s57, 896
    s_mul_i32 s58, s56, 896
''' % (S_QB, S_G, S_W))
    ksmall.srd(hs, 8, 24, 8 * 2048 * 896, str(WS_PART))
    ksmall.srd(hs, 12, 4, 896)
    ksmall.srd(hs, 16, 6, 2048 * 896)
    ksmall.srd(hs, 20, 24, 2048 * 896, str(WS_H2))
    ksmall.srd(hs, 96, 24, 8192, str(WS_R))
    hs('s_lshl_b32 s63, s%d, 7' % S_QB)
    hs('s_add_u32 s63, s63, %d' % WS_CNT)
    ksmall.srd(hs, 52, 24, 128, 's63')
    hs('''
    s_lshl_b32 s63, s%d, 11
    s_lshl_b32 s64, s%d, 6
    s_add_u32 s63, s63, s64
    s_mul_i32 s63, s63, 896
    s_add_u32 s63, s63, %d
    s_add_u32 s68, s24, s63
    s_addc_u32 s69, s25, 0
    s_mov_b32 s70, 57344
    s_mov_b32 s71, 0x20000
    s_mul_i32 s63, s%d, 224
    s_mul_i32 s64, s%d, %d
    s_mul_i32 s66, s%d, %d
    s_lshl_b32 s67, s%d, 10
''' % (S_G, S_QB, WS_PART, S_W, S_W, 16 * 912, S_W, 16 * 896, S_W))
    chunks = []
    for ins_ in hs.ins:
        if ins_.op == 's_addc_u32': chunks[-1].append(ins_.text)
        else: chunks.append([ins_.text])
    g = 28 * 12 + 1
    for ch in chunks:
        while len(sc[g]) + len(ch) > 3: g += 1
        sc[g] += ch
    assert g < 28 * 13
    hv = [
        'v_lshlrev_b32 v198, 4, v%d' % L, 'v_lshlrev_b32 v199, 4, v%d' % L, 'v_mov_b32 v194, 0x40000000',
        'v_cmp_gt_u32 vcc, 56, v%d' % L, 'v_mov_b32 v196, 0x00003f80', 'v_mov_b32 v197, 0x3f800000',
        'v_cndmask_b32 v198, v194, v198, vcc', 'v_cndmask_b32 v193, 0, 1.0, vcc',
        'v_add_u32 v192, s58, v198', 'v_add_u32 v195, s57, v198',
        'v_add_u32 v199, s67, v199', 'v_add_u32 v205, %d, v199' % WS_MODP2,
        'v_and_b32 v200, 15, v%d' % L, 'v_mul_u32_u24 v200, 912, v200', 'v_lshrrev_b32 v201, 4, v%d' % L,
        'v_lshl_add_u32 v200, v201, 3, v200', 'v_add_u32 v200, s63, v200',
        'v_lshlrev_b32 v201, 4, v%d' % L, 'v_add_u32 v202, s64, v201', 'v_add_u32 v203, s66, v201',
        'v_cndmask_b32 v203, v194, v203, vcc']
    g = 28 * 13 + 1
    for x in hv:
        while len(mem[g]) or len(val[g]) >= 2: g += 1
        val[g].append(x)
    a2g = 28 * 14 + 17
    assert g < a2g
    sc[a2g].append('.a2check')
    lds_ = [('buffer_load_dwordx4 %s, v195, s[40:43], 0 offen offset:%d' % (vr(144 + 4 * rr, 4), rr * 896)) for rr in range(2)]
    for k_ in range(4):
        for i_ in range(2):
            lds_.append(('s_mov_b32 s59, %d' % (k_ * 7168 + i_ * 4096), 'buffer_load_dwordx4 %s, v205, s[24:27], s59 offen sc1' % vr(160 + 8 * k_ + 4 * i_, 4)))
    lds_.append('buffer_load_dwordx4 v[152:155], v198, s[12:15], 0 offen')
    g = a2g + 1
    for x in lds_:
        while len(mem[g]): g += 1
        if isinstance(x, tuple):
            sc[g].append(x[0]); mem[g].append((x[1], 'tail'))
        else: mem[g].append((x, 'tail'))
        g += 2
    assert g < N + 2, g
    body = Prog()
    body.extend(pre)
    for gidx in range(N):
        ks, rem = gidx // 28, gidx % 28
        T, qt = rem // 4, rem % 4
        n = ks * 7 + T
        acc = (T * 4 + qt) * 4
        c = '0' if ks == 0 else vr(acc, 4)
        body('v_mfma_f32_16x16x32_bf16 %s, %s, %s, %s' % (vr(acc, 4), vr(FR + 4 * (n % 4), 4), vr(112 + 16 * (ks % 2) + 4 * qt, 4), c))
        if gidx + 1 < N:
            ks2, rem2 = (gidx + 1) // 28, (gidx + 1) % 28
            n2 = ks2 * 7 + rem2 // 4
            body('.need v_mfma_f32_16x16x32_bf16 v[0:3], %s, %s, 0' % (vr(FR + 4 * (n2 % 4), 4), vr(112 + 16 * (ks2 % 2) + 4 * (rem2 % 4), 4)))
        if rem == 16 and ks + 1 < 16:
            body(vm.wait('wo%d' % (ks + 1)))
        for s in sc[gidx]:
            if s == '.a2check':
                body('v_readfirstlane_b32 s59, v251')
                body('s_cmp_eq_u32 s59, 112')
                body('s_cbranch_scc0 L_a2rare')
                body('L_a2ok:')
            else: body(s)
        for s in mem[gidx]:
            if isinstance(s, tuple):
                body(s[0]); vm.add(s[1])
            else: body(s)
        for s in val[gidx]: body(s)
    w, _ = insert_waits(body.ins)
    p.extend(w)
    stamp(p, o, 'oproj')
    p('s_nop 7')
    p('s_barrier')
    k = 0
    for qt in range(4):
        for T in range(7):
            acc = (T * 4 + qt) * 4
            t = 112 + 2 * (k % 16); k += 1
            p('v_cvt_pk_bf16_f32 v%d, v%d, v%d' % (t, acc, acc + 1))
            p('v_cvt_pk_bf16_f32 v%d, v%d, v%d' % (t + 1, acc + 2, acc + 3))
            p('ds_write_b64 v200, %s offset:%d' % (vr(t, 2), qt * 16 * 912 + T * 32))
    p('s_waitcnt lgkmcnt(0)')
    p('s_barrier')
    q = Prog()
    for rr in range(16):
        q('ds_read_b128 %s, v202 offset:%d' % (vr(4 * rr, 4), rr * 912))
    for rr in range(16):
        if rr % 4 == 0 and rr: q('v_add_u32 v203, %d, v203' % (4 * 896))
        q('buffer_store_dwordx4 %s, v203, s[68:71], 0 offen offset:%d%s' % (vr(4 * rr, 4), (rr % 4) * 896, o.part_flags))
    w, _ = insert_waits(q.ins)
    p.extend(w)
    stamp(p, o, 'stores')
    p('s_waitcnt vmcnt(16)')
    for i_ in range(2):
        for r in range(4):
            p('v_add_f32 v%d, v%d, v%d' % (160 + 4 * i_ + r, 160 + 4 * i_ + r, 168 + 4 * i_ + r))
            p('v_add_f32 v%d, v%d, v%d' % (176 + 4 * i_ + r, 176 + 4 * i_ + r, 184 + 4 * i_ + r))
    for k_ in range(8): p('v_add_f32 v%d, v%d, v%d' % (160 + k_, 160 + k_, 176 + k_))
    for k_ in range(8): p('v_cvt_pk_bf16_f32 v%d, v%d, 0' % (160 + k_, 160 + k_))
    for k_ in range(8): p('v_lshlrev_b32 v%d, 16, v%d' % (160 + k_, 160 + k_))
    for k_ in range(8): p('v_add_f32 v%d, 1.0, v%d' % (168 + k_, 160 + k_))
    for k_ in range(8): p('v_cvt_pk_bf16_f32 v%d, v%d, 0' % (168 + k_, 168 + k_))
    for k_ in range(8): p('v_lshlrev_b32 v%d, 16, v%d' % (168 + k_, 168 + k_))
    p('v_lshrrev_b32 v242, 2, v199')
    for i_ in range(2):
        p('v_add_u32 v243, %d, v242' % ((1024 * i_ - 896) & 0xffffffff))
        p('v_cmp_gt_u32 vcc, 448, v243')
        p('s_nop 1')
        for r in range(4): p('v_cndmask_b32 v%d, v%d, v%d, vcc' % (160 + 4 * i_ + r, 160 + 4 * i_ + r, 168 + 4 * i_ + r))
    p('ds_write_b128 v199, v[160:163] offset:%d' % VEC)
    p('ds_write_b128 v199, v[164:167] offset:%d' % (VEC + 4096))
    if not o.one:
        p('s_cmp_lg_u32 s2, 0')
        p('s_cbranch_scc1 L_novecpub')
        p('s_mov_b32 s59, 3584')
        p('buffer_store_dwordx4 v[160:163], v199, s[24:27], s59 offen')
        p('s_mov_b32 s59, 7680')
        p('buffer_store_dwordx4 v[164:167], v199, s[24:27], s59 offen')
        p('L_novecpub:')
    p('''
    s_lshl_b32 s63, s%d, 3
    s_lshl_b32 s64, s%d, 1
    s_add_u32 s63, s63, s64
    s_mul_i32 s63, s63, 912
    v_min_u32 v240, 55, v%d
    v_lshlrev_b32 v241, 4, v240
    v_add_u32 v241, s63, v241
    v_lshlrev_b32 v240, 5, v240
''' % (S_G, S_W, L))
    for j in range(1, 8):
        p('s_add_u32 s%d, s%d, %d' % (72 - 72 + 76 + j if False else 59, S_G, j))
        p('s_and_b32 s59, s59, 7')
        p('s_mul_i32 s%d, s59, %d' % (24 + 0 if False else GOFF + j, 2048 * 896))
    if o.one and ksmall.MOE_EARLY:
        ksmall.moe_stage_early(p, S_W, L)
        p('s_waitcnt lgkmcnt(0)')
    else:
        p('s_waitcnt vmcnt(0) lgkmcnt(0)')
    stamp(p, o, 'drain')
    p('''
    s_barrier
    s_cmp_lg_u32 s%d, 0
    s_cbranch_scc1 L_grp_done
    v_mov_b32 v0, 1
    v_mov_b32 v1, 0
    v_cmp_eq_u32 vcc, 0, v%d
    s_and_saveexec_b64 s[60:61], vcc
    buffer_atomic_add v0, v1, s[52:55], 0 offen sc1
    s_mov_b64 exec, s[60:61]
L_grp_poll:
    buffer_load_dword v2, v1, s[52:55], 0 offen sc1
    s_waitcnt vmcnt(0)
    v_readfirstlane_b32 s59, v2
    s_cmp_eq_u32 s59, 8
    s_cbranch_scc1 L_grp_done
    s_sleep %d
    s_branch L_grp_poll
L_grp_done:
    s_barrier
''' % (S_W, L, getattr(o, 'gsleep', 2)))
    stamp(p, o, 'grp')
    for rr in range(2):
        for j in range(1, 8):
            p('buffer_load_dwordx4 %s, v192, s[8:11], s%d offen offset:%d sc1' % (vr(32 * rr + 4 * j, 4), GOFF + j, rr * 896))
    for rr in range(2):
        p('ds_read_b128 %s, v241 offset:%d' % (vr(32 * rr, 4), rr * 912))
    for k_ in range(4):
        p('ds_read_b128 %s, v240 offset:%d' % (vr(160 + 8 * k_, 4), VEC + k_ * 1792))
        p('ds_read_b128 %s, v240 offset:%d' % (vr(164 + 8 * k_, 4), VEC + k_ * 1792 + 16))
    ACC = [64, 72]
    for rr in range(2):
        for j in range(8): p('v_mov_b32 v%d, 0' % (ACC[rr] + j))
    p('v_cmp_gt_u32 vcc, 56, v%d' % L)
    p('s_waitcnt lgkmcnt(0)')
    p('s_nop 0')
    for rr in range(2):
        for r in range(4): p('v_cndmask_b32_e64 v%d, 0, v%d, vcc' % (32 * rr + r, 32 * rr + r))
    for rr in range(2):
        p('s_waitcnt vmcnt(%d)' % (7 if rr == 0 else 0))
        for g_ in range(8):
            for j in range(8):
                p('v_dot2_f32_bf16 v%d, v%d, v%d, v%d' % (ACC[rr] + j, 32 * rr + 4 * g_ + j // 2, 196 + j % 2, ACC[rr] + j))
    p('s_nop 2')
    stamp(p, o, 'k2ld')
    if not o.one:
        ksmall.k2_math(p, [0, 32], [144, 148], 160, 168, 176, 184, 152, ACC, [80, 88], 96, 192, 193, L, 194, 196, 20, 16, 96, 56, 104)
        return p
    ksmall.K2_H_FLAGS = ' sc1'; ksmall.K2_OUT_FLAGS = ' sc1'
    kr = ksmall.k2_math(p, [0, 32], [144, 148], 160, 168, 176, 184, 152, ACC, [80, 88], 96, 192, 193, L, 194, 196, 20, 16, 96, 56, 104, key_in_reg=True)
    stamp(p, o, 'k2m')
    p('''
    s_lshl_b32 s59, s%d, 3
    s_add_u32 s59, s59, %d
    v_lshl_add_u32 v104, v%d, 2, s59
    v_cmp_gt_u32 vcc, 2, v%d
    s_and_saveexec_b64 s[60:61], vcc
    ds_write_b32 v104, v%d
    s_mov_b64 exec, s[60:61]
    s_waitcnt vmcnt(0) lgkmcnt(0)
''' % (S_W, KEYL, L, L, kr))
    p('''
    s_barrier
    s_cmp_lg_u32 s%d, 0
    s_cbranch_scc1 L_key_done
    v_lshlrev_b32 v104, 2, v%d
    v_add_u32 v107, %d, v104
    ds_read_b32 v105, v107
    s_lshr_b32 s59, s56, 3
    s_lshl_b32 s59, s59, 5             ; first row of the workgroup * 4  (row0 = 8*k + 0 for wave 0)
    v_add_u32 v104, s59, v104
    v_mov_b32 v106, 0x40000000
    v_cmp_gt_u32 vcc, 8, v%d
    s_waitcnt lgkmcnt(0)
    s_nop 0
    v_cndmask_b32 v104, v106, v104, vcc
    buffer_store_dword v105, v104, s[96:99], 0 offen sc1
L_key_done:
''' % (S_W, L, KEYL, L))
    stamp(p, o, 'pub')
    p('s_cmp_ge_u32 s2, 84')
    p('s_cbranch_scc1 L_st_end_k34')
    ksmall.moe_main(p, S_W, L, VEC, lambda n: stamp(p, o, n))
    p('L_st_end_k34:')
    return p

GOFF = 43

def a2rare():
    p = Prog()
    p('''
L_a2rare:
    buffer_load_dword v251, v250, s[88:91], 0 offen offset:64 sc1
    s_waitcnt vmcnt(0)
    v_readfirstlane_b32 s59, v251
    s_cmp_eq_u32 s59, 112
    s_cbranch_scc1 L_a2ok
    s_sleep 8
    s_branch L_a2rare
''')
    return p

def expand_stamps(p, o):
    q = Prog()
    for i in p.ins:
        if i.text.startswith(';STAMP'):
            stamp(q, o, i.text.split()[1])
        elif i.text.startswith(';CODEPF'):
            if getattr(o, 'codepf', 0):
                q('''
    s_getpc_b64 s[60:61]
    s_and_b32 s60, s60, 0xffffff00
    s_lshr_b32 s62, s2, 3
    s_mul_i32 s62, s62, 24
    s_mul_i32 s63, s%d, 6
    s_add_u32 s62, s62, s63
    v_min_u32 v210, 5, v%d
    v_add_u32 v210, s62, v210
    v_lshlrev_b32 v210, 7, v210
    v_min_u32 v210, %d, v210
    global_load_dword v255, v210, s[60:61]
''' % (S_W, VLANE, getattr(o, 'codelen', 70000)))
        elif i.text.startswith(';ZEROCNT'):
            q('''
    s_cmp_lg_u32 s2, 0
    s_cbranch_scc1 L_nozero
    v_lshlrev_b32 v166, 7, v%d
    v_add_u32 v166, %d, v166
    v_mov_b32 v167, 0x40000000
    v_cmp_gt_u32 vcc, 40, v%d
    s_nop 1
    v_cndmask_b32 v166, v167, v166, vcc
    v_mov_b32 v167, 0
    buffer_store_dword v167, v166, s[24:27], 0 offen sc1
L_nozero:
''' % (VLANE, WS_CNT, VLANE))
            if o.one:
                q('''
    v_mov_b32 v156, -1
    v_mov_b32 v157, -1
    v_mov_b32 v158, -1
    v_mov_b32 v159, -1
    v_lshlrev_b32 v166, 4, v%d
    s_lshl_b32 s60, s2, 9
    s_add_u32 s60, s60, %d
    v_add_u32 v160, s60, v166
    v_mov_b32 v167, 0x40000000
    v_cmp_gt_u32 vcc, 32, v%d
    s_lshl_b32 s60, s2, 8
    s_add_u32 s60, s60, %d
    v_cndmask_b32 v160, v167, v160, vcc
    v_add_u32 v161, s60, v166
    v_cmp_gt_u32 vcc, 16, v%d
    buffer_store_dwordx4 v[156:159], v160, s[24:27], 0 offen sc1
    s_cmp_ge_u32 s2, 32
    s_cbranch_scc1 L_nokeyfill
    v_cndmask_b32 v161, v167, v161, vcc
    buffer_store_dwordx4 v[156:159], v161, s[24:27], 0 offen sc1
L_nokeyfill:
''' % (VLANE, WS_ACT, VLANE, WS_R, VLANE))
        else: q.ins.append(i)
    return q

def dump_stamps(p, o, tag):
    p('s_waitcnt vmcnt(0)')
    stamp(p, o, 'end')
    p('s_waitcnt lgkmcnt(0)')
    p('''
    s_lshl_b32 s60, s2, 2
    s_add_u32 s60, s60, s%d
    s_lshl_b32 s60, s60, 6
    s_add_u32 s60, s60, 0x%x
    v_mov_b32 v201, s60
''' % (S_W, WS_STAMP))
    for k in range(8):
        p('v_mov_b32 v%d, s%d' % (202 + k, S_STAMP + 2 * k))
    p('''
    v_cmp_eq_u32 vcc, 0, v%d
    s_and_saveexec_b64 s[60:61], vcc
    s_cbranch_execz L_nostamp%s
    buffer_store_dwordx4 v[202:205], v201, s[24:27], 0 offen
    buffer_store_dwordx4 v[206:209], v201, s[24:27], 0 offen offset:16
L_nostamp%s:
    s_mov_b64 exec, s[60:61]
''' % (VLANE, tag, tag))

def build_k1(o):
    global HFLY
    HFLY = bool(getattr(o, 'hfly', 0))
    p = Prog()
    p('k1_kernel:')
    pro, vm, VQ, VA = prologue(o)
    p.extend(expand_stamps(pro, o))
    p.extend(kv_addresses(o))
    qp = qproj(o, vm, VQ, VA)
    w, _ = insert_waits(qp.ins)
    p.extend(w)
    stamp(p, o, 'qproj')
    p.extend(qexchange(o, vm))
    stamp(p, o, 'qexch')
    if getattr(o, 'dump', '') == 'q':
        p('''
    s_lshl_b32 s60, s2, 2
    s_add_u32 s60, s60, s%d
    s_lshl_b32 s60, s60, 15
    s_add_u32 s60, s60, 0x2000000
    v_lshlrev_b32 v200, 4, v%d
    v_add_u32 v200, s60, v200
''' % (S_W, VLANE))
        for n in range(32):
            if n % 4 == 0 and n: p('v_add_u32 v200, 0x1000, v200')
            p('buffer_store_dwordx4 %s, v200, s[24:27], 0 offen offset:%d' % (vr(4 * n, 4), (n % 4) * 1024))
        p('s_waitcnt vmcnt(0)')
    p.extend(attn_prologue_fast(o) if getattr(o, 'fastpro', 0) else attn_prologue(o))
    stamp(p, o, 'attnpro')
    if o.stamps: p('s_waitcnt lgkmcnt(0)')
    lp, first, loop_ins, tail = attn_loop(o)
    p.extend(lp)
    stamp(p, o, 'loop')
    if getattr(o, 'dump', '') == 'o':
        p('s_nop 7')
        p('''
    s_lshl_b32 s60, s2, 18
    s_lshl_b32 s61, s%d, 16
    s_add_u32 s60, s60, s61
    s_add_u32 s60, s60, 0x2000000
    v_lshlrev_b32 v210, 4, v%d
    v_add_u32 v210, s60, v210
''' % (S_W, VLANE))
        for r4 in range(64):
            if r4 % 4 == 0 and r4: p('v_add_u32 v210, 0x1000, v210')
            p('buffer_store_dwordx4 %s, v210, s[24:27], 0 offen offset:%d' % (ar(4 * r4, 4), (r4 % 4) * 1024))
        p('''
    s_lshl_b32 s60, s2, 2
    s_add_u32 s60, s60, s%d
    s_lshl_b32 s60, s60, 11
    s_add_u32 s60, s60, 0x8000000
    v_lshlrev_b32 v210, 2, v%d
    v_add_u32 v210, s60, v210
''' % (S_W, VLANE))
        for b in range(4):
            p('buffer_store_dword v%d, v210, s[24:27], 0 offen offset:%d' % (NEGM + 4 * b, 256 * b))
            p('buffer_store_dword v%d, v210, s[24:27], 0 offen offset:%d' % (LREG[1] + b, 1024 + 256 * b))
        p('s_waitcnt vmcnt(0)')
    p.extend(epilogue(o))
    if o.stamps and not o.one:
        stamp(p, o, 'k2m')
        dump_stamps(p, o, '')
    if o.stamps and o.one:
        dump_stamps(p, o, 'B')
    p('s_waitcnt vmcnt(0)')
    p('L_end_k1:')
    p('s_endpgm')
    for tag, par in (('f', 0), ('a', 1), ('b', 0), ('c', 1), ('d', 0)) + ((('p', 1),) if getattr(o, 'fastpro', 0) else ()):
        p('L_rare_%s:' % tag)
        p('s_call_b64 s[%d:%d], L_fb_%d' % (S_RET, S_RET + 1, par))
        p('s_branch L_back_%s' % tag)
    p.extend(a2rare())
    p.extend(A.fallback(o, 0))
    p.extend(A.fallback(o, 1))
    probs = check_hazards(first + loop_ins + loop_ins + tail, 'loop') + check_hazards(p.ins, 'all')
    return p, probs

KD = '''
.amdhsa_kernel %s
  .amdhsa_next_free_vgpr %d
  .amdhsa_next_free_sgpr %d
  .amdhsa_accum_offset %d
  .amdhsa_group_segment_fixed_size 0
  .amdhsa_kernarg_size 120
  .amdhsa_user_sgpr_count 2
  .amdhsa_user_sgpr_kernarg_segment_ptr 1
  .amdhsa_system_sgpr_workgroup_id_x 1
  .amdhsa_float_denorm_mode_32 3
.end_amdhsa_kernel
'''

if __name__ == '__main__':
    import sys
    o = A.Opt()
    o.kgap = 1
    o.dma_gaps = [3, 7, 11, 15, 19, 23, 27, 31, 35, 39, 43, 47, 51, 55, 59, 63]
    o.stamps = 1; o.pf = 1; o.pfd = 4; o.pfmoe = 1; o.pf_kv_early = 0; o.late_dma = 0; o.qcvt = 1; o.fuse_k2 = 1; o.kdma_late = 0; o.one = 1; o.esend = 0; o.part_flags = ' sc1'
    out = sys.argv[1]
    for kv in sys.argv[2:]:
        k, v = kv.split('=')
        try: v = int(v, 0)
        except ValueError:
            if v.startswith('['): v = eval(v)
        setattr(o, k, v)
    p, probs = build_k1(o)
    for pr in probs[:20]: print(pr)
    print('hazards', len(probs), 'instrs', len(p.ins))
    hdr = '''; @launch kernel=k1_kernel grid=(256,1,1) block=(256,1,1) lds=163840
.amdgcn_target "amdgcn-amd-amdhsa--gfx950"
.text
.globl k1_kernel
.p2align 8
.type k1_kernel,@function
'''
    ftr = '.section .rodata,"a"\n.p2align 6' + KD % ('k1_kernel', 512, 102, 256)
    open(out, 'w').write(hdr + p.text() + ftr)
```
